```python
import torch

def _softmax(x, axis=-1):
    return torch.softmax(x, dim=axis)
def _gelu(x):
    return torch.nn.functional.gelu(x, approximate="tanh")
def _silu(x):
    return torch.nn.functional.silu(x)
def _sigmoid(x):
    return torch.sigmoid(x)
def _layernorm(x, axis=-1, eps=1e-5):
    m = x.mean(dim=axis, keepdim=True)
    v = x.var(dim=axis, keepdim=True, unbiased=False)
    return (x - m) / torch.sqrt(v + eps)
def _scatter_add(tgt, idx, src, axis=0):
    return tgt.clone().index_add_(axis, idx, src)
def _segment_sum(src, seg, n):
    out = torch.zeros((n,) + src.shape[1:], dtype=src.dtype)
    return out.index_add_(0, seg, src)
def _pad(x, pw):
    flat = tuple(v for pair in reversed(pw) for v in pair)
    return torch.nn.functional.pad(x, flat)

kernel_name = 'interleave_layers__compressed_kv_cla__mha_block_cached__decode'

def setup_inputs():

    _w = (lambda a: (lambda t: t.to(torch.bfloat16) if t.is_floating_point() else t)(torch.as_tensor(a)))
    def _A_setup():
        B, H, Sq, Sk, D, M = 1, 32, 1, 8192, 128, 640
        Dc = 4 * D
        return {
            "x": _w((lambda *s: torch.randn(*s, dtype=torch.bfloat16) * 0.05)(B, Sq, M)),
            "c_kv": _w((lambda *s: torch.randn(*s, dtype=torch.bfloat16) * 1.6)(B, Sk, Dc)),
            "w_q": _w((lambda *s: torch.randn(*s, dtype=torch.bfloat16) * 0.8)(M, H, D) * (M ** -0.5)),
            "w_uk": _w((lambda *s: torch.randn(*s, dtype=torch.bfloat16) * 0.8)(Dc, H, D) * (Dc ** -0.5)),
            "w_uv": _w((lambda *s: torch.randn(*s, dtype=torch.bfloat16) * 1.6)(Dc, H, D) * (Dc ** -0.5)),
            "w_o": _w((lambda *s: torch.randn(*s, dtype=torch.bfloat16) * 1.6)(H, D, M) * ((H * D) ** -0.5)),
        }
    _A_in = _A_setup()

    def _B_setup():
        B, Sq, D = 1, 1, 640
        H, Sk, Dh = 32, 8192, 128
        return {
            "x": _w((lambda *s: torch.randn(*s, dtype=torch.bfloat16) * 0.05)(B, Sq, D)),
            "k_cache": _w((lambda *s: torch.randn(*s, dtype=torch.bfloat16) * 3.2)(B, H, Sk, Dh)),
            "v_cache": _w((lambda *s: torch.randn(*s, dtype=torch.bfloat16) * 0.4)(B, H, Sk, Dh)),
            "wq": _w((lambda *s: torch.randn(*s, dtype=torch.bfloat16) * 3.2)(D, H * Dh) * (D ** -0.5)),
            "wo": _w((lambda *s: torch.randn(*s, dtype=torch.bfloat16) * 0.4)(H * Dh, D) * ((H * Dh) ** -0.5)),
        }
    _B_in = _B_setup()

    return {
        "A_x": _A_in["x"],
        "A_c_kv": _A_in["c_kv"],
        "A_w_q": _A_in["w_q"],
        "A_w_uk": _A_in["w_uk"],
        "A_w_uv": _A_in["w_uv"],
        "A_w_o": _A_in["w_o"],
        "B_x": _B_in["x"],
        "B_k_cache": _B_in["k_cache"],
        "B_v_cache": _B_in["v_cache"],
        "B_wq": _B_in["wq"],
        "B_wo": _B_in["wo"],
    }

def reference(A_x, A_c_kv, A_w_q, A_w_uk, A_w_uv, A_w_o, B_x, B_k_cache, B_v_cache, B_wq, B_wo):
    def _A_ref(x, c_kv, w_q, w_uk, w_uv, w_o):
        B, Sq, M = x.shape[0], x.shape[1], x.shape[2]
        Sk = c_kv.shape[1]
        H, D = w_q.shape[1], w_q.shape[2]
        q = torch.einsum("bqm,mhd->bhqd", x, w_q)
        k = torch.einsum("bkc,chd->bhkd", c_kv, w_uk)
        v = torch.einsum("bkc,chd->bhkd", c_kv, w_uv)
        scores = torch.einsum("bhqd,bhkd->bhqk", q, k) * (D ** -0.5)
        off = Sk - Sq
        qi = torch.arange(Sq)[:, None]
        kj = torch.arange(Sk)[None, :]
        cmask = kj <= (qi + off)
        scores = torch.where(cmask[None, None], scores, -1e9)
        p = _softmax(scores, axis=-1)
        ctx = torch.einsum("bhqk,bhkd->bhqd", p, v)
        return torch.einsum("bhqd,hdm->bqm", ctx, w_o)

    def _B_ref(x, k_cache, v_cache, wq, wo):
        B, Sq, D = x.shape
        H, Dh = 32, 128
        q = (lambda x, *d: x.permute(*d))((x @ wq).reshape(B, Sq, H, Dh), 0, 2, 1, 3)
        scores = torch.einsum("bhqd,bhkd->bhqk", q, k_cache) * (Dh ** -0.5)
        p = _softmax(scores, axis=-1)
        o = torch.einsum("bhqk,bhkd->bhqd", p, v_cache)
        return (lambda x, *d: x.permute(*d))(o, 0, 2, 1, 3).reshape(B, Sq, H * Dh) @ wo

    x = A_x
    x = x + _A_ref(_layernorm(x, axis=-1), A_c_kv, A_w_q, A_w_uk, A_w_uv, A_w_o)
    x = x + _B_ref(_layernorm(x, axis=-1), B_k_cache, B_v_cache, B_wq, B_wo)
    x = x + _A_ref(_layernorm(x, axis=-1), A_c_kv, A_w_q, A_w_uk, A_w_uv, A_w_o)
    x = x + _B_ref(_layernorm(x, axis=-1), B_k_cache, B_v_cache, B_wq, B_wo)
    return x
```

```python
import re

TRANS = ("v_exp_f32", "v_log_f32", "v_rcp_f32", "v_rsq_f32", "v_sqrt_f32", "v_sin_f32", "v_cos_f32", "v_rcp_iflag_f32")

def regs_of(op):
    op = op.strip()
    if op.startswith("-"): op = op[1:]
    if op.startswith("abs(") or op.startswith("|"): op = op.strip("abs()|")
    m = re.fullmatch(r"([vas])(\d+)", op)
    if m: return {m.group(1) + m.group(2)}
    m = re.fullmatch(r"([vas])\[(\d+):(\d+)\]", op)
    if m: return {m.group(1) + str(i) for i in range(int(m.group(2)), int(m.group(3)) + 1)}
    if op == "vcc": return {"vcc_lo", "vcc_hi"}
    if op in ("vcc_lo", "vcc_hi", "m0"): return {op}
    if op == "exec": return {"exec"}
    return set()

class Ins:
    def __init__(self, text):
        self.text = text
        t = text.split(";")[0].strip()
        self.label = None; self.mn = None
        if t.endswith(":"):
            self.label = t[:-1]; return
        parts = t.split(None, 1)
        self.mn = parts[0]
        rest = parts[1] if len(parts) > 1 else ""
        ops = [o.strip() for o in re.split(r",(?![^\[]*\])", rest)] if rest else []
        mods = ""
        if ops:
            last = ops[-1].split(None, 1)
            ops[-1] = last[0]
            mods = last[1] if len(last) > 1 else ""
        self.ops = ops; self.mods = mods
        mn = self.mn
        self.is_mfma = mn.startswith("v_mfma")
        self.is_valu = mn.startswith("v_") and not self.is_mfma
        self.is_vmem = mn.startswith("buffer_") or mn.startswith("global_")
        self.is_ds = mn.startswith("ds_")
        self.is_salu = mn.startswith("s_")
        self.is_dpp = self.is_valu and any(k in mods for k in ("quad_perm", "row_", "wave_"))
        self.is_trans = any(mn.startswith(x) for x in TRANS)
        self.is_perml = mn.startswith("v_permlane")
        self.is_rdlane = mn.startswith("v_readlane") or mn.startswith("v_readfirstlane")
        self.defs = set(); self.uses = set(); self.srcC = set(); self.ab = set(); self.data = set()
        R = [regs_of(o) for o in ops]
        if self.is_mfma:
            self.defs = R[0]; self.ab = R[1] | R[2]; self.srcC = R[3]; self.uses = self.ab | self.srcC
        elif self.is_valu:
            if mn.startswith("v_cmp"):
                self.defs = R[0]; self.uses = set().union(*R[1:]) if len(R) > 1 else set()
            elif self.is_perml:
                self.defs = R[0] | R[1]; self.uses = R[0] | R[1]
            elif re.match(r"v_(add|sub|subrev|addc|subb)_co_", mn):
                self.defs = R[0] | R[1]; self.uses = set().union(*R[2:])
            else:
                self.defs = R[0]; self.uses = set().union(*R[1:]) if len(R) > 1 else set()
                if mn.startswith("v_fmac") or mn.startswith("v_dot2c") or mn.startswith("v_writelane") or self.is_dpp:
                    self.uses |= R[0]
                if mn.startswith("v_cndmask") and len(ops) == 3: self.uses |= {"vcc_lo", "vcc_hi"}
        elif self.is_vmem:
            lds = " lds" in (" " + mods) or (ops and ops[-1] == "lds")
            if mn.startswith("buffer_load"):
                if lds:
                    self.uses = set().union(*R) | {"m0"}; self.ldsdma = True
                else:
                    self.defs = R[0]; self.uses = set().union(*R[1:])
            elif mn.startswith("buffer_store"):
                self.uses = set().union(*R); self.data = R[0]
            elif mn.startswith("buffer_atomic"):
                self.uses = set().union(*R); self.data = R[0]
                if "sc0" in mods: self.defs = R[0]
            elif mn.startswith("global_load"):
                self.defs = R[0]; self.uses = set().union(*R[1:])
            elif mn.startswith("global_store"):
                self.uses = set().union(*R); self.data = R[1]
            else:
                self.uses = set().union(*R) if R else set()
        elif self.is_ds:
            if mn.startswith("ds_read") or mn.startswith("ds_bpermute") or mn.startswith("ds_swizzle"):
                self.defs = R[0]; self.uses = set().union(*R[1:]) if len(R) > 1 else set()
            else:
                self.uses = set().union(*R) if R else set()
        elif self.is_salu:
            nodef = ("s_cmp", "s_cbranch", "s_branch", "s_waitcnt", "s_nop", "s_barrier", "s_endpgm", "s_setpc", "s_sleep", "s_bitcmp", "s_setprio")
            if mn.startswith(nodef):
                self.uses = set().union(*R) if R else set()
            else:
                self.defs = R[0] if R else set(); self.uses = set().union(*R[1:]) if len(R) > 1 else set()
                if "saveexec" in mn: self.defs |= {"exec"}
        self.wide_store = self.is_vmem and bool(self.data) and (mn.endswith("x4") or mn.endswith("x3"))
    def states(self):
        if self.mn == "s_nop": return int(self.ops[0], 0) + 1
        return 1

def isv(r): return r[0] in "va" and r not in ("vcc_lo", "vcc_hi")
def iss(r): return r[0] == "s" or r.startswith("vcc")

def need(prod, cons):
    n = 0
    if prod.is_valu:
        vd = {r for r in prod.defs if isv(r)}; sd = {r for r in prod.defs if iss(r)}
        if vd:
            if cons.is_mfma and vd & cons.uses: n = max(n, 2)
            if cons.is_dpp and vd & cons.uses: n = max(n, 2)
            if cons.is_perml and vd & cons.uses: n = max(n, 2)
            if cons.is_rdlane and vd & cons.uses: n = max(n, 1)
            if prod.is_trans and (cons.is_valu or cons.is_mfma) and not cons.is_trans and vd & cons.uses: n = max(n, 1)
        if sd:
            if cons.is_valu and sd & cons.uses: n = max(n, 4 if (cons.is_rdlane or cons.mn.startswith("v_writelane")) and sd & regs_of(cons.ops[-1]) else 2)
            if cons.is_vmem and sd & cons.uses: n = max(n, 5)
            if cons.is_salu and sd & cons.uses and not cons.mn.startswith("s_cbranch"): n = max(n, 1)
    if prod.is_mfma:
        passes = 8 if "32x32" in prod.mn else 4
        big = {4: 8, 8: 12}[passes]
        if cons.is_mfma:
            if prod.defs & cons.ab: n = max(n, big)
            if prod.defs & cons.srcC and prod.defs != cons.srcC: n = max(n, {4: 6, 8: 10}[passes])
            if prod.defs & cons.defs and prod.defs != cons.srcC and not (prod.defs & cons.srcC): n = max(n, big)
        elif cons.is_valu or cons.is_vmem or cons.is_ds:
            if prod.defs & (cons.uses | cons.defs): n = max(n, big)
        if cons.is_valu and prod.srcC & cons.defs: n = max(n, {4: 3, 8: 7}[passes])
    if prod.wide_store:
        if prod.data & cons.defs: n = max(n, 2 if cons.is_valu or cons.is_mfma else 1)
    if prod.is_salu and "m0" in prod.defs and cons.is_vmem and "m0" in cons.uses: n = max(n, 1)
    return n

WINDOW = 14
def fix(lines):
    ins = [Ins(l.strip()) for l in lines]
    labels_in = {}
    for it in range(4):
        out = []
        state = []
        new_in = {}
        def merge(a, b):
            d = {}
            for (p, g) in a + b:
                k = id(p)
                if k not in d or g < d[k][1]: d[k] = (p, g)
            return list(d.values())
        for x in ins:
            if x.label is not None:
                state = merge(state, labels_in.get(x.label, []))
                out.append(x); continue
            if x.mn is None: out.append(x); continue
            req = 0
            for (p, age) in state:
                r = need(p, x) - age
                if r > req: req = r
            if req > 0:
                k = req
                while k > 0:
                    s = min(k, 16)
                    out.append(Ins(f"s_nop {s-1}")); k -= s
                state = [(p, a + req) for (p, a) in state]
            out.append(x)
            st = x.states()
            state = [(p, a + st) for (p, a) in state if a + st < WINDOW]
            if x.is_valu or x.is_mfma or x.wide_store or (x.is_salu and "m0" in x.defs):
                state.append((x, 0))
            if x.mn.startswith("s_cbranch") or x.mn == "s_branch":
                tgt = x.ops[0]
                new_in[tgt] = merge(new_in.get(tgt, []), list(state))
                if x.mn == "s_branch": state = []
            if x.mn in ("s_endpgm", "s_setpc_b64"): state = []
        same = all(len(new_in.get(k, [])) == len(labels_in.get(k, [])) and sorted(g for _, g in new_in.get(k, [])) == sorted(g for _, g in labels_in.get(k, [])) for k in set(new_in) | set(labels_in))
        labels_in = new_in
        ins = out
        if same and it > 0: break
    res = []
    for x in ins:
        res.append(x.text if x.label is not None else "    " + x.text)
    return res
```

```python
import sys
from hazard import fix

KNAME = "interleave_layers__compressed_kv_cla__mha_block_cached__decode_kernel"

class Asm:
    def __init__(self): self.lines = []; self.n = 0
    def __call__(self, s):
        for l in s.split("\n"):
            l = l.strip()
            if l: self.lines.append(l)
    def label(self, name): self.lines.append(name + ":")
    def newlabel(self, base="L"):
        self.n += 1; return f"{base}_{self.n}"

def vr(b, n=1): return f"v{b}" if n == 1 else f"v[{b}:{b+n-1}]"
def ar(b, n=1): return f"a{b}" if n == 1 else f"a[{b}:{b+n-1}]"
def sr(b, n=1): return f"s{b}" if n == 1 else f"s[{b}:{b+n-1}]"
DPPALL = "row_mask:0xf bank_mask:0xf"

WS_L0   = 0x100000
WS_LSTR = 0x1000000
O_QP   = 0x000000
O_ROW  = 0x080000
O_COL  = 0x0C0000
O_QABS = 0x100000
O_ML   = 0x110000
O_CTXP = 0x200000
O_XCC  = 0x001000

L_VL  = 0
L_CKV = 65536
L_R0  = 131072
L_ST  = 151680
L_RED = 156032
RSTR  = 1056
L_U   = 160256
LDS_BYTES = 163840

sH, sJ, sW, sL, sAct = 3, 4, 5, 6, 7
SRD_WS, SRD_K, SRD_V, SRD_A, SRD_B = 8, 12, 16, 20, 24
sSPC, sRET = 28, 30
sT = [32, 33, 34, 35]
sSel = [36, 37, 38, 39]
pWqA, pWqB, pWuk, pWuv, pWoA, pWoB, pCkv, pOut, pX = 40, 42, 44, 46, 48, 50, 52, 54, 56
sLB = 58
sGA, sS = 59, 60
sSO = 61
sSpin = 62
sPos = 63
sFF = 64
sTmp = list(range(65, 76))
sMask = [76, 78, 80, 82]
sM5 = 84
sDbg = 86
sErr = 88
sLocal = 89
sA, sB_ = 90, 91
sTs = 92

vL16, vM, vT, vX, vWoff, vKoff, vVoff, vRedW = 0, [1, 2, 3, 4], 5, 6, 7, 8, 9, 10
vT0 = 11
WQ  = 76
WUK = 60
WUV = 80
VTR = 64
VRES = 96

SC = (128 ** -0.5) * 1.4426950408889634
SPIN_MAX = 1 << 16

def f32hex(x):
    import struct
    return "0x%08x" % struct.unpack("<I", struct.pack("<f", x))[0]

class Gen:
    def __init__(self, kblk=8, stream_mode="co", stop_after=None, local=False, stamps=False, pol="nt", wpol=""):
        self.a = Asm(); self.kblk = kblk; self.mode = stream_mode; self.stop = stop_after
        self.local = local; self.stamps = stamps; self.pol = pol; self.wpol = wpol
        self.nstamp = 0

    def srd(self, s, lo, hi=None, nbytes=0x7fffffff):
        a = self.a
        a(f"s_mov_b32 s{s}, s{lo}"); a(f"s_mov_b32 s{s+1}, s{lo+1}")
        a(f"s_mov_b32 s{s+2}, {nbytes:#x}"); a(f"s_mov_b32 s{s+3}, 0x20000")
    def exec_all(self): self.a("s_mov_b64 exec, -1")
    def exec_set(self, lo, hi):
        self.a(f"s_mov_b32 exec_lo, {lo:#x}"); self.a(f"s_mov_b32 exec_hi, {hi:#x}")
    def tag(self, regs):
        for i, r in enumerate(regs):
            self.a(f"v_perm_b32 v{r}, v{r}, v{vT}, s{sSel[i%4]}")
    def stamp(self, idx):
        if not self.stamps: return
        a = self.a
        lab = a.newlabel("st")
        a(f"s_cmp_lg_u32 s{sW}, 0"); a(f"s_cbranch_scc1 {lab}")
        a(f"s_memrealtime s[{sTs}:{sTs+1}]")
        a("s_waitcnt lgkmcnt(0)")
        a(f"s_lshl_b32 s{sTmp[10]}, s2, 8"); a(f"s_lshl_b32 s{sTmp[9]}, s{sL}, 6"); a(f"s_add_u32 s{sTmp[10]}, s{sTmp[10]}, s{sTmp[9]}")
        a(f"s_add_u32 s{sTmp[10]}, s{sTmp[10]}, {0x80000 + idx*4}")
        a(f"v_mov_b32 v{vT0}, s{sTs}")
        a(f"v_mov_b32 v{vT0+1}, 0")
        a(f"s_mov_b64 s[{sTs}:{sTs+1}], exec"); a("s_mov_b64 exec, 1")
        a(f"buffer_store_dword v{vT0}, v{vT0+1}, s[{SRD_WS}:{SRD_WS+3}], s{sTmp[10]} offen")
        a(f"s_mov_b64 exec, s[{sTs}:{sTs+1}]")
        a.label(lab)

    def stream_call(self):
        self.a(f"s_swappc_b64 s[{sRET}:{sRET+1}], s[{sSPC}:{sSPC+1}]")

    def maybe_stream(self):
        a = self.a
        lab = a.newlabel("ns")
        a(f"s_cmp_eq_u32 s{sAct}, 0"); a(f"s_cbranch_scc1 {lab}")
        self.stream_call()
        a.label(lab)

    def drain(self, keep):
        a = self.a
        l0 = a.newlabel("drain"); l1 = a.newlabel("drained")
        a.label(l0)
        a(f"s_cmp_eq_u32 s{sAct}, 0"); a(f"s_cbranch_scc1 {l1}")
        self.stream_call()
        a(f"s_waitcnt vmcnt({keep})")
        a(f"s_branch {l0}")
        a.label(l1)

    def poll(self, issue, regs, execmask=None):
        a = self.a
        lp = a.newlabel("poll"); ns = a.newlabel("pns"); jn = a.newlabel("pj"); dn = a.newlabel("pdone")
        if execmask: self.exec_set(*execmask)
        a(f"s_mov_b32 s{sSpin}, 0")
        a.label(lp)
        issue()
        if self.mode == "co":
            a(f"s_cmp_eq_u32 s{sAct}, 0"); a(f"s_cbranch_scc1 {ns}")
            if execmask: self.exec_all()
            self.stream_call()
            if execmask: self.exec_set(*execmask)
            a(f"s_waitcnt vmcnt({self.kblk})")
            a(f"s_branch {jn}")
            a.label(ns)
        a("s_waitcnt vmcnt(0)")
        a.label(jn)
        acc = vT0; acc2 = vT0 + 1
        dw = [g + i for g in regs for i in range(4)]
        for r in dw: a(f"v_xor_b32 v{r}, s{sT[dw.index(r) % 4]}, v{r}")
        a(f"v_or3_b32 v{acc}, v{dw[0]}, v{dw[1]}, v{dw[2]}")
        a(f"v_or_b32 v{acc2}, v{dw[3]}, v{dw[3]}") if len(dw) == 4 else a(f"v_or3_b32 v{acc2}, v{dw[3]}, v{dw[4]}, v{dw[5]}")
        k = 4 if len(dw) == 4 else 6
        tog = 0
        while k < len(dw):
            tgt = acc if tog == 0 else acc2
            if k + 1 < len(dw):
                a(f"v_or3_b32 v{tgt}, v{tgt}, v{dw[k]}, v{dw[k+1]}"); k += 2
            else:
                a(f"v_or_b32 v{tgt}, v{tgt}, v{dw[k]}"); k += 1
            tog ^= 1
        a(f"v_or_b32 v{acc}, v{acc}, v{acc2}")
        a(f"v_and_b32 v{acc}, s{sFF}, v{acc}")
        a(f"v_cmp_ne_u32 vcc, 0, v{acc}")
        a(f"s_cbranch_vccz {dn}")
        a(f"s_add_u32 s{sSpin}, s{sSpin}, 1")
        a(f"s_cmp_lt_u32 s{sSpin}, {SPIN_MAX}")
        a(f"s_cbranch_scc1 {lp}")
        a(f"s_mov_b32 s{sErr}, 1")
        a.label(dn)
        if execmask: self.exec_all()

    def reduce63(self, regs, op):
        a = self.a
        for d in ("quad_perm:[1,0,3,2]", "quad_perm:[2,3,0,1]", "row_half_mirror", "row_mirror"):
            for r in regs: a(f"{op}_dpp v{r}, v{r}, v{r} {d} {DPPALL}")
        for r in regs: a(f"{op}_dpp v{r}, v{r}, v{r} row_bcast:15 row_mask:0xa bank_mask:0xf")
        for r in regs: a(f"{op}_dpp v{r}, v{r}, v{r} row_bcast:31 row_mask:0xc bank_mask:0xf")

    def treduce(self, r):
        a = self.a
        a(f"v_permlane32_swap_b32 v{r[0]}, v{r[2]}")
        a(f"v_permlane32_swap_b32 v{r[1]}, v{r[3]}")
        a(f"v_add_f32 v{r[0]}, v{r[0]}, v{r[2]}")
        a(f"v_add_f32 v{r[1]}, v{r[1]}, v{r[3]}")
        a(f"v_permlane16_swap_b32 v{r[0]}, v{r[1]}")
        a(f"v_add_f32 v{r[0]}, v{r[0]}, v{r[1]}")

    def pv_gemv(self, Xp, nload, bop, D, Abuf, pre=None):
        a = self.a
        def build(i):
            A = Abuf + 4 * (i % 2)
            for r in range(4):
                a(f"v_and_b32_dpp v{A+r}, v{Xp}, v{vM[r]} row_newbcast:{i} {DPPALL}")
        build(0)
        if nload > 1: build(1)
        for i in range(nload):
            if pre: pre(i)
            A = Abuf + 4 * (i % 2)
            c = "0" if i == 0 else vr(D, 4)
            a(f"v_mfma_f32_16x16x32_bf16 {vr(D,4)}, {vr(A,4)}, {bop(i)}, {c}")
            if i + 2 < nload: build(i + 2)

    def red_write(self, D, off=0):
        a = self.a
        self.exec_set(0xffffffff, 1)
        a(f"ds_write_b128 v{vRedW}, {vr(D,4)} offset:{off}")
        self.exec_all()

    def red_final_read(self, G, off=0):
        a = self.a
        a(f"v_add_u32 v{vT0}, {L_RED}, v{vL16}")
        for w in range(4):
            a(f"ds_read_b128 {vr(G+4*w,4)}, v{vT0} offset:{w*RSTR+off}")

    def sum4(self, G):
        a = self.a
        for r in range(4):
            a(f"v_add_f32 v{G+r}, v{G+r}, v{G+4+r}")
            a(f"v_add_f32 v{G+8+r}, v{G+8+r}, v{G+12+r}")
        for r in range(4):
            a(f"v_add_f32 v{G+r}, v{G+r}, v{G+8+r}")

    def store_flavor(self, row):
        return "sc1"

    def row_store(self, data, vaddr, soff):
        a = self.a
        if self.local:
            l0 = a.newlabel("rs"); l1 = a.newlabel("rs")
            a(f"s_cmp_eq_u32 s{sLocal}, 0"); a(f"s_cbranch_scc1 {l0}")
            a(f"buffer_store_dwordx4 {vr(data,4)}, v{vaddr}, s[{SRD_WS}:{SRD_WS+3}], s{soff} offen")
            a(f"s_branch {l1}")
            a.label(l0)
            a(f"buffer_store_dwordx4 {vr(data,4)}, v{vaddr}, s[{SRD_WS}:{SRD_WS+3}], s{soff} offen sc1")
            a.label(l1)
        else:
            a(f"buffer_store_dwordx4 {vr(data,4)}, v{vaddr}, s[{SRD_WS}:{SRD_WS+3}], s{soff} offen sc1")

    def load_wq(self):
        a = self.a
        l0 = a.newlabel("wq"); l1 = a.newlabel("wq")
        a(f"s_bitcmp1_b32 s{sL}, 0"); a(f"s_cbranch_scc1 {l0}")
        a(f"s_mov_b32 s{SRD_A}, s{pWqA}"); a(f"s_mov_b32 s{SRD_A+1}, s{pWqA+1}"); a(f"s_branch {l1}")
        a.label(l0)
        a(f"s_mov_b32 s{SRD_A}, s{pWqB}"); a(f"s_mov_b32 s{SRD_A+1}, s{pWqB+1}")
        a.label(l1)
        a(f"s_mov_b32 s{SRD_A+2}, {19*8192+256}"); a(f"s_mov_b32 s{SRD_A+3}, 0x20000")
        for i in range(5):
            a(f"s_mov_b32 s{sTmp[0]}, {i*32768}")
            a(f"buffer_load_dwordx4 {vr(WQ+4*i,4)}, v{vWoff}, s[{SRD_A}:{SRD_A+3}], s{sTmp[0]} offen {self.wpol}")
    def load_wuk(self):
        a = self.a
        self.srd(SRD_A, pWuk, nbytes=15*8192+256)
        t = vT0
        a(f"v_lshrrev_b32 v{t}, 8, v{vKoff}"); a(f"v_lshlrev_b32 v{t}, 13, v{t}")
        a(f"v_and_b32 v{t+1}, s{sFF}, v{vKoff}"); a(f"v_or_b32 v{t}, v{t}, v{t+1}")
        for i in range(4):
            a(f"s_mov_b32 s{sTmp[0]}, {i*32768}")
            a(f"buffer_load_dwordx4 {vr(WUK+4*i,4)}, v{t}, s[{SRD_A}:{SRD_A+3}], s{sTmp[0]} offen {self.wpol}")
    def load_wuv(self):
        a = self.a
        self.srd(SRD_A, pWuv, nbytes=15*8192+256)
        for i in range(4):
            a(f"s_mov_b32 s{sTmp[0]}, {i*32768}")
            a(f"buffer_load_dwordx4 {vr(WUV+4*i,4)}, v{vWoff}, s[{SRD_A}:{SRD_A+3}], s{sTmp[0]} offen {self.wpol}")
    def load_wo(self, p):
        a = self.a
        self.srd(SRD_A, p, nbytes=31*1280+160)
        t = 12
        a(f"v_lshrrev_b32 v{t+1}, 4, v{vL16}")
        a(f"v_mul_u32_u24 v{t+2}, 6554, v{t+1}"); a(f"v_lshrrev_b32 v{t+2}, 16, v{t+2}")
        a(f"v_mul_u32_u24 v{t+3}, 10, v{t+2}"); a(f"v_sub_u32 v{t+1}, v{t+1}, v{t+3}")
        a(f"v_mul_u32_u24 v{t+2}, 1280, v{t+2}"); a(f"v_lshl_add_u32 v{t}, v{t+1}, 4, v{t+2}")
        a(f"s_mul_i32 s{sTmp[1]}, s{sW}, {32*160}"); a(f"s_add_u32 s{sTmp[1]}, s{sTmp[1]}, {L_R0}")
        for i in range(6):
            if i == 0: self.exec_set(0xffffffff, 0x0fffffff)
            if i == 5: self.exec_set(0x000fffff, 0)
            a(f"s_add_u32 m0, s{sTmp[1]}, {i*6*160}")
            a(f"s_mov_b32 s{sTmp[0]}, {i*6*1280}")
            a(f"buffer_load_dwordx4 v{t}, s[{SRD_A}:{SRD_A+3}], s{sTmp[0]} offen {self.wpol} lds")
        self.exec_all()
    def load_ckv(self):
        a = self.a
        self.srd(SRD_A, pCkv, nbytes=16384)
        a(f"s_lshl_b32 s{sTmp[1]}, s{sW}, 14"); a(f"s_add_u32 s{sTmp[1]}, s{sTmp[1]}, {L_CKV}")
        for kk in range(16):
            f = (kk & 8) | ((kk & 3) << 1) | ((kk >> 2) & 1)
            a(f"v_xor_b32 v{vT0}, {f*16}, v{vL16}")
            a(f"s_add_u32 m0, s{sTmp[1]}, {kk*1024}")
            a(f"s_mov_b32 s{sTmp[0]}, {kk*1024}")
            a(f"buffer_load_dwordx4 v{vT0}, s[{SRD_A}:{SRD_A+3}], s{sTmp[0]} offen {self.wpol} lds")
    def load_vtr(self):
        a = self.a
        for b in (14, 15):
            a(f"s_mov_b32 s{sTmp[0]}, {b*4096}")
            for u in range(4):
                a(f"buffer_load_dwordx4 {vr(VTR+(b-14)*16+4*u,4)}, v{vVoff}, s[{SRD_V}:{SRD_V+3}], s{sTmp[0]} offen offset:{u*256} {self.pol}")

    def prologue(self):
        a = self.a
        a("s_cmp_ge_u32 s2, 256"); a("s_cbranch_scc1 L_end")
        a("s_load_dwordx4 s[64:67], s[0:1], 0")
        a("s_load_dwordx4 s[68:71], s[0:1], 16")
        a("s_load_dwordx4 s[72:75], s[0:1], 32")
        a("s_load_dwordx4 s[76:79], s[0:1], 56")
        a("s_load_dwordx4 s[80:83], s[0:1], 72")
        a("s_load_dwordx4 s[84:87], s[0:1], 88")
        a("s_load_dwordx2 s[8:9], s[0:1], 104")
        a(f"v_lshrrev_b32 v20, 6, v0")
        a(f"v_and_b32 v21, 63, v0")
        a(f"v_readfirstlane_b32 s{sW}, v20")
        a(f"s_and_b32 s{sH}, s2, 31"); a(f"s_lshr_b32 s{sJ}, s2, 5")
        a(f"s_lshr_b32 s{sGA}, s2, 3"); a(f"s_and_b32 s{sGA}, s{sGA}, 1")
        a(f"s_lshr_b32 s{sS}, s2, 4"); a(f"s_lshl_b32 s{sS}, s{sS}, 3"); a(f"s_and_b32 s92, s2, 7"); a(f"s_or_b32 s{sS}, s{sS}, s92")
        a(f"v_lshlrev_b32 v{vL16}, 4, v21")
        a("v_and_b32 v22, 15, v21")
        a("v_lshrrev_b32 v23, 4, v21")
        a(f"v_lshlrev_b32 v24, 4, v22")
        a(f"v_lshl_add_u32 v{vWoff}, v23, 13, v24")
        a(f"v_lshl_add_u32 v{vVoff}, v23, 10, v24")
        a("v_and_b32 v25, 3, v22"); a("v_lshl_add_u32 v25, v23, 2, v25"); a("v_lshlrev_b32 v25, 4, v25")
        a("v_lshrrev_b32 v26, 2, v22"); a(f"v_lshl_add_u32 v{vKoff}, v26, 8, v25")
        a("v_and_b32 v25, 1, v22"); a("v_cmp_eq_u32 vcc, 1, v25")
        a("v_mov_b32 v26, 0xffff"); a("v_mov_b32 v27, 0xffff0000"); a("v_cndmask_b32 v26, v26, v27, vcc")
        a("v_lshrrev_b32 v25, 1, v22")
        for r in range(4):
            a(f"v_cmp_eq_u32 vcc, {r}, v25"); a(f"v_cndmask_b32 v{vM[r]}, 0, v26, vcc")
        a("v_lshl_add_u32 v25, v22, 1, v23"); a("v_lshlrev_b32 v25, 4, v25")
        a("v_cmp_gt_u32 vcc, 32, v21"); a("v_mov_b32 v26, 512"); a("v_cndmask_b32 v25, v26, v25, vcc")
        a(f"s_mul_i32 s92, s{sW}, {RSTR}"); a(f"s_add_u32 s92, s92, {L_RED}"); a(f"v_add_u32 v{vRedW}, s92, v25")
        a("s_waitcnt lgkmcnt(0)")
        a(f"s_mov_b32 s{SRD_WS+2}, 0x10000000"); a(f"s_mov_b32 s{SRD_WS+3}, 0x20000")
        a("v_mov_b32 v28, 0")
        a(f"buffer_load_dword v{vT}, v28, s[{SRD_WS}:{SRD_WS+3}], 0 offen sc1")
        a(f"s_mov_b32 s{pX}, s64"); a(f"s_mov_b32 s{pX+1}, s65")
        self.srd(SRD_B, pX, nbytes=1280)
        a(f"s_mul_i32 s92, s{sJ}, 80"); a(f"s_mul_i32 s93, s{sW}, 20"); a("s_add_u32 s92, s92, s93")
        a("v_lshl_add_u32 v25, v22, 2, v23"); a("v_add_u32 v25, s92, v25"); a("v_lshlrev_b32 v29, 1, v25")
        a(f"s_mov_b32 s94, 0x001f001f"); a(f"s_mov_b32 s95, 0x001f001f")
        a(f"v_mov_b32 v{vX}, 0")
        a("s_mov_b64 exec, s[94:95]")
        a(f"buffer_load_ushort v{vX}, v29, s[{SRD_B}:{SRD_B+3}], 0 offen")
        self.exec_all()
        def addp(dst, src, terms):
            a(f"s_mov_b32 s92, 0")
            for (sreg, c) in terms:
                a(f"s_mul_i32 s93, s{sreg}, {c}"); a("s_add_u32 s92, s92, s93")
            a(f"s_add_u32 s{dst}, s{src}, s92"); a(f"s_addc_u32 s{dst+1}, s{src+1}, 0")
        addp(pWqA, 68, [(sJ, 80*8192), (sW, 20*8192), (sH, 256)])
        addp(pWqB, 80, [(sJ, 80*8192), (sW, 20*8192), (sH, 256)])
        addp(pWuk, 70, [(sJ, 64*8192), (sW, 16*8192), (sH, 256)])
        addp(pWuv, 72, [(sJ, 64*8192), (sW, 16*8192), (sH, 256)])
        addp(pWoA, 74, [(sH, 163840), (sW, 32*1280), (sJ, 160)])
        addp(pWoB, 82, [(sH, 163840), (sW, 32*1280), (sJ, 160)])
        addp(pCkv, 66, [(sS, 65536), (sW, 16384)])
        addp(SRD_K, 76, [(sH, 2097152), (sJ, 262144), (sW, 65536)])
        addp(SRD_V, 78, [(sH, 2097152), (sJ, 262144), (sW, 65536)])
        a(f"s_mov_b32 s{SRD_K+2}, 65536"); a(f"s_mov_b32 s{SRD_K+3}, 0x20000")
        a(f"s_mov_b32 s{SRD_V+2}, 65536"); a(f"s_mov_b32 s{SRD_V+3}, 0x20000")
        a(f"s_mov_b32 s{pOut}, s84"); a(f"s_mov_b32 s{pOut+1}, s85")
        a(f"s_mov_b32 s{sFF}, 0xff")
        a(f"s_mov_b32 s{sL}, 0"); a(f"s_mov_b32 s{sErr}, 0"); a(f"s_mov_b32 s{sLocal}, 0")
        a(f"s_mov_b32 s{sDbg}, s86"); a(f"s_mov_b32 s{sDbg+1}, s87")
        a(f"s_mov_b32 s{sM5}, 0x001f001f"); a(f"s_mov_b32 s{sM5+1}, 0x001f001f")
        self.load_wq()
        self.load_wuk()
        self.load_ckv()
        for i in range(4): a(f"s_mov_b32 s{sSel[i]}, {0x07060500+i:#x}")
        for t in range(4):
            a(f"s_mov_b32 s{sMask[t]}, {(0x000f000f << (4*t)):#x}"); a(f"s_mov_b32 s{sMask[t]+1}, {(0x000f000f << (4*t)):#x}")
        a(f"s_getpc_b64 s[{sSPC}:{sSPC+1}]")
        a.label("L_pc0")
        a(f"s_add_u32 s{sSPC}, s{sSPC}, L_stream-L_pc0"); a(f"s_addc_u32 s{sSPC+1}, s{sSPC+1}, 0")
        a(f"s_mov_b32 s{sAct}, 1"); a(f"s_mov_b32 s{sPos}, 0")
        a(f"s_mov_b32 s{sLB}, {WS_L0:#x}")
        a("s_waitcnt vmcnt(20)")
        a(f"v_readfirstlane_b32 s92, v{vT}")
        a(f"s_mul_i32 s92, s92, 0x9E3779B1"); a(f"s_add_u32 s{sT[0]}, s92, 0x7F4A7C15")
        a(f"v_mov_b32 v{vT}, s{sT[0]}")
        a(f"s_bfe_u32 s{sT[1]}, s{sT[0]}, 0x80008"); a(f"s_bfe_u32 s{sT[2]}, s{sT[0]}, 0x80010"); a(f"s_lshr_b32 s{sT[3]}, s{sT[0]}, 24")
        a(f"s_and_b32 s{sT[0]}, s{sT[0]}, 0xff")
        a(f"v_lshlrev_b32 v{vX}, 16, v{vX}")
        if self.mode == "first":
            self.drain(16)

    def stream(self):
        a = self.a
        loads = []
        for i in range(64):
            loads.append(("K", i))
        for b in range(10):
            for u in range(4): loads.append(("V", b, u))
        for b in range(10, 14):
            for u in range(4): loads.append(("L", b, u))
        k = self.kblk
        assert len(loads) % k == 0
        a.label("L_stream")
        for bi in range(0, len(loads), k):
            last_so = None
            for ld in loads[bi:bi+k]:
                if ld[0] == "K":
                    i = ld[1]; so = (i >> 2) * 4096
                    if so != last_so: a(f"s_mov_b32 s{sSO}, {so}"); last_so = so
                    a(f"buffer_load_dwordx4 {ar(4*i,4)}, v{vKoff}, s[{SRD_K}:{SRD_K+3}], s{sSO} offen offset:{(i&3)*1024} {self.pol}")
                elif ld[0] == "V":
                    _, b, u = ld; so = b * 4096
                    if so != last_so: a(f"s_mov_b32 s{sSO}, {so}"); last_so = so
                    a(f"buffer_load_dwordx4 {vr(VRES+16*b+4*u,4)}, v{vVoff}, s[{SRD_V}:{SRD_V+3}], s{sSO} offen offset:{u*256} {self.pol}")
                else:
                    _, b, u = ld
                    a(f"s_lshl_b32 s{sSO}, s{sW}, 14"); a(f"s_add_u32 m0, s{sSO}, {L_VL + ((b-10)*4+u)*1024}")
                    a(f"s_mov_b32 s{sSO}, {b*4096+u*256}"); last_so = None
                    a(f"buffer_load_dwordx4 v{vVoff}, s[{SRD_V}:{SRD_V+3}], s{sSO} offen {self.pol} lds")
            a(f"s_add_u32 s{sPos}, s{sPos}, {k}")
            if bi + k >= len(loads): a(f"s_mov_b32 s{sAct}, 0")
            a(f"s_swappc_b64 s[{sSPC}:{sSPC+1}], s[{sRET}:{sRET+1}]")
        a("s_endpgm")

    def qpart(self):
        a = self.a
        W = f"s[{SRD_WS}:{SRD_WS+3}]"
        self.stamp(0)
        Xp, S1, S2 = 13, 14, 15
        D, Du, Ab = 16, 20, 24
        a(f"v_cvt_pk_bf16_f32 v{Xp}, v{vX}, v{vX}")
        a(f"v_and_b32 v{S1}, 0xffff0000, v{Xp}")
        a(f"v_mul_f32 v{S2}, v{S1}, v{S1}")
        self.pv_gemv(Xp, 5, lambda i: vr(WQ+4*i, 4), D, Ab)
        lu = a.newlabel("nou")
        a(f"s_cmp_ge_u32 s{sL}, 2"); a(f"s_cbranch_scc1 {lu}")
        for r in range(4): a(f"v_and_b32 v{32+r}, 0x3f803f80, v{vM[r]}")
        for i in range(5):
            c = "0" if i == 0 else vr(Du, 4)
            a(f"v_mfma_f32_16x16x32_bf16 {vr(Du,4)}, {vr(32,4)}, {vr(WQ+4*i,4)}, {c}")
        self.red_write(Du, 528)
        a.label(lu)
        self.reduce63([S1, S2], "v_add_f32")
        a(f"v_readlane_b32 s{sA}, v{S1}, 63"); a(f"v_readlane_b32 s{sB_}, v{S2}, 63")
        a(f"v_writelane_b32 v{D}, s{sA}, 32"); a(f"v_writelane_b32 v{D+1}, s{sB_}, 32")
        self.red_write(D)
        a("s_waitcnt lgkmcnt(0)"); a("s_barrier")
        lf = a.newlabel("qfin")
        a(f"s_cmp_lg_u32 s{sW}, 0"); a(f"s_cbranch_scc1 {lf}")
        G = 16
        self.red_final_read(G)
        t = 13
        a(f"v_lshrrev_b32 v{t}, 4, v{vL16}")
        a(f"v_and_b32 v{t+1}, 1, v{t}"); a(f"v_lshlrev_b32 v{t+1}, 4, v{t+1}")
        a(f"v_lshrrev_b32 v{t+2}, 1, v{t}"); a(f"v_add_u32 v{t+1}, v{t+1}, v{t+2}"); a(f"v_lshlrev_b32 v{t+1}, 4, v{t+1}")
        a(f"v_cmp_gt_u32 vcc, 32, v{t}"); a(f"v_mov_b32 v{t+2}, 512"); a(f"v_cndmask_b32 v{t}, v{t+2}, v{t+1}, vcc")
        a(f"s_lshl_b32 s{sTmp[0]}, s{sH}, 3"); a(f"s_add_u32 s{sTmp[0]}, s{sTmp[0]}, s{sJ}"); a(f"s_lshl_b32 s{sTmp[0]}, s{sTmp[0]}, 11")
        a(f"s_add_u32 s{sTmp[0]}, s{sTmp[0]}, s{sLB}")
        a("s_waitcnt lgkmcnt(0)")
        self.sum4(G); self.tag([G, G+1, G+2, G+3])
        self.exec_set(0xffffffff, 1)
        self.row_store(G, t, sTmp[0])
        self.exec_all()
        a(f"s_cmp_ge_u32 s{sL}, 2"); a(f"s_cbranch_scc1 {lf}")
        G2 = 32
        self.red_final_read(G2, 528)
        a(f"s_add_u32 s{sTmp[0]}, s{sTmp[0]}, 1024")
        a("s_waitcnt lgkmcnt(0)")
        self.sum4(G2); self.tag([G2, G2+1, G2+2, G2+3])
        self.exec_set(0xffffffff, 0)
        self.row_store(G2, t, sTmp[0])
        self.exec_all()
        a.label(lf)
        self.stamp(1)
        ad, ad2, adu = 13, 14, 15
        Gq, Gs, Gu = 16, 32, 36
        a(f"v_lshrrev_b32 v{ad}, 8, v{vKoff}"); a(f"v_lshlrev_b32 v{ad}, 11, v{ad}")
        a(f"v_and_b32 v{ad2}, s{sFF}, v{vKoff}"); a(f"v_or_b32 v{ad}, v{ad}, v{ad2}")
        a(f"v_lshlrev_b32 v{adu}, 1, v{ad2}")
        a(f"v_lshrrev_b32 v{ad2}, 4, v{vL16}"); a(f"v_and_b32 v{ad2}, 7, v{ad2}"); a(f"v_lshlrev_b32 v{ad2}, 11, v{ad2}")
        a(f"s_lshl_b32 s{sTmp[0]}, s{sH}, 14"); a(f"s_add_u32 s{sTmp[0]}, s{sTmp[0]}, s{sLB}")
        a(f"s_add_u32 s{sTmp[1]}, s{sTmp[0]}, 8192")
        def iss_q():
            for i in range(2):
                for hf in range(2):
                    a(f"buffer_load_dwordx4 {vr(Gq+8*i+4*hf,4)}, v{ad}, {W}, s{sTmp[i]} offen offset:{hf*256} sc1")
            a(f"buffer_load_dwordx4 {vr(Gs,4)}, v{ad2}, {W}, s{sTmp[0]} offen offset:512 sc1")
        def iss_u():
            for i in range(2):
                for hf in range(2):
                    a(f"buffer_load_dwordx4 {vr(Gu+8*i+4*hf,4)}, v{ad}, {W}, s{sTmp[i]} offen offset:{1024+hf*256} sc1")
        U = 36
        l_late = a.newlabel("qlate"); l_j = a.newlabel("qj")
        a(f"s_and_b32 s{sTmp[2]}, s{sL}, 1"); a(f"s_lshl_b32 s{sTmp[2]}, s{sTmp[2]}, 9"); a(f"s_add_u32 s{sTmp[2]}, s{sTmp[2]}, {L_U}")
        a(f"v_add_u32 v{adu}, s{sTmp[2]}, v{adu}")
        a(f"s_cmp_ge_u32 s{sL}, 2"); a(f"s_cbranch_scc1 {l_late}")
        self.poll(lambda: (iss_q(), iss_u()), [Gq, Gq+4, Gq+8, Gq+12, Gs, Gu, Gu+4, Gu+8, Gu+12])
        for r in range(8): a(f"v_add_f32 v{Gu+r}, v{Gu+r}, v{Gu+8+r}")
        for d in ("row_ror:4", "row_ror:8"):
            for r in range(8): a(f"v_add_f32_dpp v{Gu+r}, v{Gu+r}, v{Gu+r} {d} {DPPALL}")
        lw = a.newlabel("uw")
        a(f"s_cmp_lg_u32 s{sW}, 0"); a(f"s_cbranch_scc1 {lw}")
        self.exec_set(0x000f000f, 0x000f000f)
        a(f"ds_write_b128 v{adu}, {vr(U,4)}"); a(f"ds_write_b128 v{adu}, {vr(U+4,4)} offset:16")
        self.exec_all()
        a.label(lw)
        a(f"s_branch {l_j}")
        a.label(l_late)
        a(f"ds_read_b128 {vr(U,4)}, v{adu}"); a(f"ds_read_b128 {vr(U+4,4)}, v{adu} offset:16")
        self.poll(iss_q, [Gq, Gq+4, Gq+8, Gq+12, Gs])
        a("s_waitcnt lgkmcnt(0)")
        a.label(l_j)
        self.stamp(2)
        for d in ("quad_perm:[1,0,3,2]", "quad_perm:[2,3,0,1]", "row_half_mirror"):
            for r in (Gs, Gs+1): a(f"v_add_f32_dpp v{r}, v{r}, v{r} {d} {DPPALL}")
        for r in range(8): a(f"v_add_f32 v{Gq+r}, v{Gq+r}, v{Gq+8+r}")
        a(f"v_mul_f32 v{Gs}, {f32hex(1/640)}, v{Gs}")
        a(f"v_mul_f32 v{Gs+1}, {f32hex(1/640)}, v{Gs+1}")
        a(f"v_fma_f32 v{Gs+1}, -v{Gs}, v{Gs}, v{Gs+1}")
        a(f"v_add_f32 v{Gs+1}, {f32hex(1e-5)}, v{Gs+1}")
        a(f"v_rsq_f32 v{Gs+1}, v{Gs+1}")
        for d in ("row_ror:4", "row_ror:8"):
            for r in range(8): a(f"v_add_f32_dpp v{Gq+r}, v{Gq+r}, v{Gq+r} {d} {DPPALL}")
        a(f"v_mul_f32 v{Gs+1}, {f32hex(SC)}, v{Gs+1}")
        for r in range(8): a(f"v_fma_f32 v{Gq+r}, -v{Gs}, v{U+r}, v{Gq+r}")
        for r in range(8): a(f"v_mul_f32 v{Gq+r}, v{Gs+1}, v{Gq+r}")
        Qp = 24
        for r in range(4): a(f"v_cvt_pk_bf16_f32 v{Qp+r}, v{Gq+2*r}, v{Gq+2*r+1}")
        AT = 44
        for t in range(4):
            for r in range(4):
                a(f"v_cndmask_b32 v{AT+4*t+r}, 0, v{Qp+r}, s[{sMask[t]}:{sMask[t]+1}]")
        return AT

    def amiddle(self, AT):
        a = self.a
        W = f"s[{SRD_WS}:{SRD_WS+3}]"
        D = 16
        for t in range(4):
            c = "0" if t == 0 else vr(D, 4)
            a(f"v_mfma_f32_16x16x32_bf16 {vr(D,4)}, {vr(AT+4*t,4)}, {vr(WUK+4*t,4)}, {c}")
        a(f"v_lshrrev_b32 v13, 8, v{vL16}"); a("v_lshlrev_b32 v13, 4, v13")
        a(f"s_lshl_b32 s{sTmp[0]}, s{sH}, 11"); a(f"s_lshl_b32 s{sTmp[1]}, s{sJ}, 8"); a(f"s_add_u32 s{sTmp[0]}, s{sTmp[0]}, s{sTmp[1]}")
        a(f"s_lshl_b32 s{sTmp[1]}, s{sW}, 6"); a(f"s_add_u32 s{sTmp[0]}, s{sTmp[0]}, s{sTmp[1]}")
        a(f"s_add_u32 s{sTmp[0]}, s{sTmp[0]}, s{sLB}"); a(f"s_add_u32 s{sTmp[0]}, s{sTmp[0]}, {O_QABS}")
        S = 20
        a(f"v_mov_b32_dpp v{S}, v{D} quad_perm:[0,0,0,0] {DPPALL}")
        for r in range(1, 4):
            a(f"v_add_f32_dpp v{S}, v{D+r}, v{S} quad_perm:[{r},{r},{r},{r}] {DPPALL}")
        G = 24
        for q in range(4): a(f"v_mov_b32_dpp v{G+q}, v{S} row_newbcast:{4*q} {DPPALL}")
        self.tag([G, G+1, G+2, G+3])
        self.exec_set(0x00010001, 0x00010001)
        a(f"buffer_store_dwordx4 {vr(G,4)}, v13, {W}, s{sTmp[0]} offen sc1")
        self.exec_all()
        self.stamp(3)
        self.load_wuv()
        Gq = 16
        a(f"s_lshl_b32 s{sTmp[0]}, s{sGA}, 4"); a(f"s_lshl_b32 s{sTmp[1]}, s{sW}, 2"); a(f"s_add_u32 s{sTmp[0]}, s{sTmp[0]}, s{sTmp[1]}")
        a(f"s_lshl_b32 s{sTmp[0]}, s{sTmp[0]}, 11"); a(f"s_add_u32 s{sTmp[0]}, s{sTmp[0]}, s{sLB}"); a(f"s_add_u32 s{sTmp[0]}, s{sTmp[0]}, {O_QABS}")
        for i in range(1, 4): a(f"s_add_u32 s{sTmp[i]}, s{sTmp[0]}, {i*2048}")
        def iss():
            for i in range(8):
                a(f"buffer_load_dwordx4 {vr(Gq+4*i,4)}, v{vL16}, {W}, s{sTmp[i>>1]} offen offset:{(i&1)*1024} sc1")
        self.poll(iss, [Gq+4*i for i in range(8)])
        self.stamp(4)
        a(f"s_mul_i32 s{sTmp[0]}, s{sW}, {4*1040}"); a(f"s_add_u32 s{sTmp[0]}, s{sTmp[0]}, {L_R0}")
        a(f"v_lshrrev_b32 v13, 1, v{vL16}"); a(f"v_add_u32 v13, s{sTmp[0]}, v13")
        for i in range(8):
            b = Gq + 4*i
            a(f"v_cvt_pk_bf16_f32 v{b}, v{b}, v{b+1}"); a(f"v_cvt_pk_bf16_f32 v{b+1}, v{b+2}, v{b+3}")
            a(f"ds_write_b64 v13, {vr(b,2)} offset:{(i>>1)*1040+(i&1)*512}")
        vA0, vB0, vAx = 52, 53, 54
        n, g = 48, 49
        a(f"v_lshrrev_b32 v{n}, 4, v{vL16}"); a(f"v_lshrrev_b32 v{g}, 4, v{n}"); a(f"v_and_b32 v{n}, 15, v{n}")
        a(f"v_and_b32 v50, 8, v{n}"); a(f"v_and_b32 v51, 3, v{n}"); a(f"v_lshl_or_b32 v50, v51, 1, v50")
        a(f"v_bfe_u32 v51, v{n}, 2, 1"); a(f"v_or_b32 v50, v50, v51")
        a(f"s_lshl_b32 s{sTmp[0]}, s{sW}, 14"); a(f"s_add_u32 s{sTmp[0]}, s{sTmp[0]}, {L_CKV}")
        a(f"v_lshlrev_b32 v51, 10, v{n}"); a(f"v_lshl_add_u32 v51, v{g}, 8, v51"); a(f"v_lshl_add_u32 v51, v50, 4, v51")
        a(f"v_add_u32 v{vA0}, s{sTmp[0]}, v51")
        a(f"v_mul_u32_u24 v{vB0}, 1040, v{n}"); a(f"v_lshl_add_u32 v{vB0}, v{g}, 8, v{vB0}"); a(f"v_add_u32 v{vB0}, {L_R0}, v{vB0}")
        a("s_waitcnt lgkmcnt(0)"); a("s_barrier")
        AB = 16
        Ds = 56
        def rd(st):
            b = AB + 8 * (st % 4)
            if st == 0: a(f"ds_read_b128 {vr(b,4)}, v{vA0}")
            else:
                a(f"v_xor_b32 v{vAx}, {st<<4}, v{vA0}"); a(f"ds_read_b128 {vr(b,4)}, v{vAx}")
            a(f"ds_read_b128 {vr(b+4,4)}, v{vB0} offset:{st*16}")
        for st in range(4): rd(st)
        for st in range(16):
            rem = min(3, 15 - st)
            a(f"s_waitcnt lgkmcnt({2*rem})")
            b = AB + 8 * (st % 4)
            c = "0" if st == 0 else vr(Ds, 4)
            a(f"v_mfma_f32_16x16x32_bf16 {vr(Ds,4)}, {vr(b,4)}, {vr(b+4,4)}, {c}")
            if st + 4 < 16: rd(st + 4)
        a(f"v_mul_u32_u24 v51, 272, v{n}"); a(f"v_lshl_add_u32 v50, v{g}, 4, v51")
        a(f"s_lshl_b32 s{sTmp[0]}, s{sW}, 6"); a(f"s_add_u32 s{sTmp[0]}, s{sTmp[0]}, {L_ST}"); a(f"v_add_u32 v50, s{sTmp[0]}, v50")
        a(f"v_lshl_add_u32 v51, v{g}, 5, v51"); a(f"v_add_u32 v51, {L_ST}, v51")
        vC0, vC1, vX0, vX1 = 76, 77, 78, 79
        a(f"v_and_b32 v13, 3, v{n}"); a(f"v_lshrrev_b32 v14, 2, v{n}")
        a(f"v_and_b32 v15, 1, v{g}"); a(f"v_lshlrev_b32 v15, 3, v15"); a(f"v_lshl_add_u32 v15, v14, 1, v15")
        a(f"v_lshrrev_b32 v52, 1, v13"); a(f"v_xor_b32 v15, v15, v52")
        a(f"v_lshl_add_u32 v52, v{g}, 3, v14"); a(f"v_lshlrev_b32 v52, 10, v52")
        a(f"v_lshl_add_u32 v52, v15, 4, v52"); a(f"v_and_b32 v13, 1, v13"); a(f"v_lshl_add_u32 v52, v13, 3, v52")
        a(f"s_lshl_b32 s{sTmp[0]}, s{sW}, 8"); a(f"s_add_u32 s{sTmp[0]}, s{sTmp[0]}, {L_CKV}")
        a(f"v_add_u32 v{vC0}, s{sTmp[0]}, v52")
        a(f"v_add_u32 v{vC1}, 4096, v{vC0}"); a(f"v_xor_b32 v{vC1}, 16, v{vC1}")
        a(f"ds_write_b128 v50, {vr(Ds,4)}")
        a("s_waitcnt lgkmcnt(0)"); a("s_barrier")
        SS = 16
        for u in range(2):
            for hf in range(2):
                a(f"ds_read_b128 {vr(SS+8*u+4*hf,4)}, v51 offset:{u*128+hf*16}")
        self.load_wo(pWoA)
        a("s_waitcnt lgkmcnt(0)")
        m, l, t1 = 32, 33, 34
        a(f"v_max3_f32 v{m}, v{SS}, v{SS+1}, v{SS+2}")
        for k in range(3, 15, 2): a(f"v_max3_f32 v{m}, v{m}, v{SS+k}, v{SS+k+1}")
        a(f"v_max_f32 v{m}, v{m}, v{SS+15}")
        for sw in ("v_permlane16_swap_b32", "v_permlane32_swap_b32"):
            a(f"v_mov_b32 v{t1}, v{m}"); a(f"{sw} v{m}, v{t1}"); a(f"v_max_f32 v{m}, v{m}, v{t1}")
        for k in range(16): a(f"v_sub_f32 v{SS+k}, v{SS+k}, v{m}")
        for k in range(16): a(f"v_exp_f32 v{SS+k}, v{SS+k}")
        P = 36
        for k in range(8): a(f"v_cvt_pk_bf16_f32 v{P+k}, v{SS+2*k}, v{SS+2*k+1}")
        for k in range(8): a(f"v_add_f32 v{SS+k}, v{SS+k}, v{SS+8+k}")
        for k in range(4): a(f"v_add_f32 v{SS+k}, v{SS+k}, v{SS+4+k}")
        a(f"v_add_f32 v{SS}, v{SS}, v{SS+1}"); a(f"v_add_f32 v{SS+2}, v{SS+2}, v{SS+3}"); a(f"v_add_f32 v{l}, v{SS}, v{SS+2}")
        for sw in ("v_permlane16_swap_b32", "v_permlane32_swap_b32"):
            a(f"v_mov_b32 v{t1}, v{l}"); a(f"{sw} v{l}, v{t1}"); a(f"v_add_f32 v{l}, v{l}, v{t1}")
        DT = 44
        AF = 16
        steps = [(t, u) for t in range(8) for u in range(2)]
        def rdA(k):
            t, u = steps[k]; b = AF + 4 * (k % 4)
            if u == 0:
                if t == 0:
                    a(f"v_mov_b32 v{vX0}, v{vC0}"); a(f"v_mov_b32 v{vX1}, v{vC1}")
                else:
                    a(f"v_xor_b32 v{vX0}, {t<<5}, v{vC0}"); a(f"v_xor_b32 v{vX1}, {t<<5}, v{vC1}")
            a(f"ds_read_b64_tr_b16 {vr(b,2)}, v{vX0} offset:{u*32768}")
            a(f"ds_read_b64_tr_b16 {vr(b+2,2)}, v{vX1} offset:{u*32768}")
        for k in range(4): rdA(k)
        for k in range(16):
            t, u = steps[k]; b = AF + 4 * (k % 4)
            rem = min(3, 15 - k)
            a(f"s_waitcnt lgkmcnt({2*rem})")
            c = "0" if u == 0 else vr(DT+4*t, 4)
            a(f"v_mfma_f32_16x16x32_bf16 {vr(DT+4*t,4)}, {vr(b,4)}, {vr(P+4*u,4)}, {c}")
            if k + 4 < 16: rdA(k + 4)
        a(f"v_lshrrev_b32 v13, 4, v{vL16}"); a(f"v_and_b32 v14, 15, v13"); a(f"v_lshrrev_b32 v13, 4, v13")
        a(f"v_lshlrev_b32 v15, 18, v14"); a(f"v_lshl_add_u32 v13, v13, 4, v15")
        a(f"v_lshlrev_b32 v14, 11, v14")
        a(f"s_lshl_b32 s{sTmp[0]}, s{sGA}, 22"); a(f"s_lshl_b32 s{sTmp[1]}, s{sW}, 16"); a(f"s_add_u32 s{sTmp[0]}, s{sTmp[0]}, s{sTmp[1]}")
        a(f"s_lshl_b32 s{sTmp[1]}, s{sS}, 6"); a(f"s_add_u32 s{sTmp[0]}, s{sTmp[0]}, s{sTmp[1]}")
        a(f"s_add_u32 s{sTmp[0]}, s{sTmp[0]}, s{sLB}"); a(f"s_add_u32 s{sTmp[0]}, s{sTmp[0]}, {O_CTXP}")
        for t in range(8):
            self.tag([DT+4*t+r for r in range(4)])
            a(f"s_add_u32 s{sTmp[1]}, s{sTmp[0]}, {(t>>2)*32768+(t&3)*8192}")
            a(f"buffer_store_dwordx4 {vr(DT+4*t,4)}, v13, {W}, s{sTmp[1]} offen sc1")
        lm = a.newlabel("ml")
        a(f"s_cmp_lg_u32 s{sW}, 0"); a(f"s_cbranch_scc1 {lm}")
        a(f"v_mov_b32 v34, 0"); a(f"v_mov_b32 v35, 0"); self.tag([32, 33, 34, 35])
        a(f"s_lshl_b32 s{sTmp[1]}, s{sGA}, 15"); a(f"s_lshl_b32 s{sTmp[2]}, s{sS}, 4"); a(f"s_add_u32 s{sTmp[1]}, s{sTmp[1]}, s{sTmp[2]}")
        a(f"s_add_u32 s{sTmp[1]}, s{sTmp[1]}, s{sLB}"); a(f"s_add_u32 s{sTmp[1]}, s{sTmp[1]}, {O_ML}")
        self.exec_set(0xffff, 0)
        a(f"buffer_store_dwordx4 {vr(32,4)}, v14, {W}, s{sTmp[1]} offen sc1")
        self.exec_all()
        a.label(lm)
        self.stamp(5)
        G, ML = 16, 48
        a(f"v_lshrrev_b32 v14, 4, v{vL16}"); a(f"v_and_b32 v13, 3, v14"); a(f"v_lshrrev_b32 v14, 2, v14")
        a(f"v_lshlrev_b32 v13, 9, v13"); a(f"v_lshl_add_u32 v13, v14, 4, v13")
        a(f"s_lshl_b32 s{sTmp[0]}, s{sH}, 3"); a(f"s_add_u32 s{sTmp[0]}, s{sTmp[0]}, s{sJ}"); a(f"s_lshl_b32 s{sTmp[0]}, s{sTmp[0]}, 2")
        a(f"s_add_u32 s{sTmp[0]}, s{sTmp[0]}, s{sW}"); a(f"s_lshl_b32 s{sTmp[0]}, s{sTmp[0]}, 13")
        a(f"s_add_u32 s{sTmp[0]}, s{sTmp[0]}, s{sLB}"); a(f"s_add_u32 s{sTmp[0]}, s{sTmp[0]}, {O_CTXP}")
        a(f"s_add_u32 s{sTmp[1]}, s{sTmp[0]}, 4096")
        a(f"s_lshl_b32 s{sTmp[2]}, s{sH}, 11"); a(f"s_add_u32 s{sTmp[2]}, s{sTmp[2]}, s{sLB}"); a(f"s_add_u32 s{sTmp[2]}, s{sTmp[2]}, {O_ML}")
        def iss5():
            for aa in range(2):
                a(f"buffer_load_dwordx4 {vr(ML+4*aa,4)}, v13, {W}, s{sTmp[2]} offen offset:{aa*256} sc1")
            for i in range(8):
                a(f"buffer_load_dwordx4 {vr(G+4*i,4)}, v{vL16}, {W}, s{sTmp[i>>2]} offen offset:{(i&3)*1024} sc1")
        self.poll(iss5, [ML, ML+4] + [G+4*i for i in range(8)])
        self.stamp(6)
        M, wA, wB, den = 56, 57, 58, 59
        a(f"v_max_f32 v{M}, v{ML}, v{ML+4}")
        self.reduce63([M], "v_max_f32")
        a(f"v_readlane_b32 s{sA}, v{M}, 63")
        a(f"v_subrev_f32 v{wA}, s{sA}, v{ML}"); a(f"v_subrev_f32 v{wB}, s{sA}, v{ML+4}")
        a(f"v_exp_f32 v{wA}, v{wA}"); a(f"v_exp_f32 v{wB}, v{wB}")
        a(f"v_mul_f32 v{den}, v{wA}, v{ML+1}"); a(f"v_fmac_f32 v{den}, v{wB}, v{ML+5}")
        acc = 60
        for i in range(8):
            wr = wA if i % 2 == 0 else wB; q = i >> 1
            for r in range(4):
                op = "v_mul_f32_dpp" if i == 0 else "v_fmac_f32_dpp"
                a(f"{op} v{acc+r}, v{wr}, v{G+4*i+r} quad_perm:[{q},{q},{q},{q}] {DPPALL}")
        self.reduce63([den], "v_add_f32")
        for d in ("row_ror:4", "row_ror:8"):
            for r in range(4): a(f"v_add_f32_dpp v{acc+r}, v{acc+r}, v{acc+r} {d} {DPPALL}")
        a(f"v_readlane_b32 s{sA}, v{den}, 63")
        self.treduce([acc, acc+1, acc+2, acc+3])
        a(f"v_rcp_f32 v{den}, s{sA}")
        a(f"v_mul_f32 v{acc}, v{acc}, v{den}")
        Xp = 13
        a(f"v_cvt_pk_bf16_f32 v{Xp}, v{acc}, v{acc}")
        D, Ab = 16, 20
        self.pv_gemv(Xp, 4, lambda i: vr(WUV+4*i, 4), D, Ab)
        self.red_write(D)
        a("s_waitcnt lgkmcnt(0)"); a("s_barrier")
        lf = a.newlabel("uvfin")
        a(f"s_cmp_lg_u32 s{sW}, 0"); a(f"s_cbranch_scc1 {lf}")
        G = 16
        self.red_final_read(G)
        self.row_slot_addr()
        a("s_waitcnt lgkmcnt(0)")
        self.sum4(G)
        a(f"s_mov_b32 s{sA}, {f32hex(0.125)}")
        a(f"v_writelane_b32 v{G}, 0, 32"); a(f"v_writelane_b32 v{G+1}, s{sA}, 32")
        self.tag([G, G+1, G+2, G+3])
        self.exec_set(0xffffffff, 1)
        self.row_store(G, vL16, sTmp[0])
        self.exec_all()
        a.label(lf)
        self.stamp(7)

    def row_slot_addr(self):
        a = self.a
        a(f"s_lshl_b32 s{sTmp[0]}, s{sH}, 3"); a(f"s_add_u32 s{sTmp[0]}, s{sTmp[0]}, s{sJ}"); a(f"s_lshl_b32 s{sTmp[0]}, s{sTmp[0]}, 10")
        a(f"s_add_u32 s{sTmp[0]}, s{sTmp[0]}, s{sLB}"); a(f"s_add_u32 s{sTmp[0]}, s{sTmp[0]}, {O_ROW}")

    def bmiddle(self, AT):
        a = self.a
        k = self.kblk
        if self.mode == "co":
            l0 = a.newlabel("kw"); l1 = a.newlabel("kw")
            a(f"s_cmp_ge_u32 s{sPos}, {64+k}"); a(f"s_cbranch_scc1 {l1}")
            a.label(l0)
            self.stream_call()
            a(f"s_waitcnt vmcnt({k})")
            a(f"s_cmp_lt_u32 s{sPos}, {64+k}"); a(f"s_cbranch_scc1 {l0}")
            a.label(l1)
        self.load_vtr()
        self.load_wo(pWoB)
        Db = [16, 20, 24]; SB = 28
        def red(b):
            D = Db[b % 3]
            a(f"v_mov_b32_dpp v{SB+b}, v{D} quad_perm:[0,0,0,0] {DPPALL}")
            for r in range(1, 4):
                a(f"v_add_f32_dpp v{SB+b}, v{D+r}, v{SB+b} quad_perm:[{r},{r},{r},{r}] {DPPALL}")
        for b in range(16):
            D = Db[b % 3]
            for t in range(4):
                c = "0" if t == 0 else vr(D, 4)
                a(f"v_mfma_f32_16x16x32_bf16 {vr(D,4)}, {vr(AT+4*t,4)}, {ar(16*b+4*t,4)}, {c}")
            if b >= 2: red(b - 2)
            if self.mode == "co" and b in (4, 10): self.maybe_stream()
        red(14); red(15)
        self.stamp(3)
        m = 13
        a(f"v_max3_f32 v{m}, v{SB}, v{SB+1}, v{SB+2}")
        for q in range(3, 15, 2): a(f"v_max3_f32 v{m}, v{m}, v{SB+q}, v{SB+q+1}")
        a(f"v_max_f32 v{m}, v{m}, v{SB+15}")
        for d in ("row_ror:4", "row_ror:8"): a(f"v_max_f32_dpp v{m}, v{m}, v{m} {d} {DPPALL}")
        a(f"v_max_f32_dpp v{m}, v{m}, v{m} row_bcast:15 row_mask:0xa bank_mask:0xf")
        a(f"v_max_f32_dpp v{m}, v{m}, v{m} row_bcast:31 row_mask:0xc bank_mask:0xf")
        a(f"v_readlane_b32 s{sA}, v{m}, 63")
        for q in range(16): a(f"v_subrev_f32 v{SB+q}, s{sA}, v{SB+q}")
        for q in range(16): a(f"v_exp_f32 v{SB+q}, v{SB+q}")
        l = 14
        a(f"v_add_f32 v{l}, v{SB}, v{SB+1}"); a(f"v_add_f32 v15, v{SB+2}, v{SB+3}")
        for q in range(4, 16, 2):
            a(f"v_add_f32 v{l}, v{l}, v{SB+q}"); a(f"v_add_f32 v15, v15, v{SB+q+1}")
        a(f"v_add_f32 v{l}, v{l}, v15")
        for q in range(16): a(f"v_cvt_pk_bf16_f32 v{SB+q}, v{SB+q}, v{SB+q}")
        for d in ("row_ror:4", "row_ror:8"): a(f"v_add_f32_dpp v{l}, v{l}, v{l} {d} {DPPALL}")
        a(f"v_add_f32_dpp v{l}, v{l}, v{l} row_bcast:15 row_mask:0xa bank_mask:0xf")
        a(f"v_add_f32_dpp v{l}, v{l}, v{l} row_bcast:31 row_mask:0xc bank_mask:0xf")
        a(f"v_readlane_b32 s{sB_}, v{l}, 63")
        self.stamp(4)
        if self.mode == "co": self.drain(k)
        Ab, Do = 44, 52
        LB = [16, 20, 24, 56]
        a(f"s_lshl_b32 s{sTmp[0]}, s{sW}, 14"); a(f"v_add_u32 v15, s{sTmp[0]}, v{vL16}")
        if L_VL: a(f"v_add_u32 v15, {L_VL}, v15")
        order = [(b, u) for b in range(10) for u in range(4)] + [(b, u) for b in range(10, 14) for u in range(4)] + [(b, u) for b in (14, 15) for u in range(4)]
        def build(kk):
            b, u = order[kk]; A = Ab + 4 * (kk % 2)
            for r in range(4):
                a(f"v_and_b32_dpp v{A+r}, v{SB+b}, v{vM[r]} row_newbcast:{4*u} {DPPALL}")
        def bop(kk):
            b, u = order[kk]
            if b < 10: return vr(VRES+16*b+4*u, 4)
            if b < 14: return vr(LB[u], 4)
            return vr(VTR+16*(b-14)+4*u, 4)
        def ldsrd(b, u):
            a(f"ds_read_b128 {vr(LB[u],4)}, v15 offset:{((b-10)*4+u)*1024}")
        build(0); build(1)
        for kk in range(len(order)):
            b, u = order[kk]
            if (b, u) == (8, 0):
                a("s_waitcnt vmcnt(0)")
                for uu in range(4): ldsrd(10, uu)
            if 10 <= b < 14: a(f"s_waitcnt lgkmcnt(3)" if not (b == 13 and u > 0) else f"s_waitcnt lgkmcnt({3-u})")
            A = Ab + 4 * (kk % 2)
            c = "0" if kk == 0 else vr(Do, 4)
            a(f"v_mfma_f32_16x16x32_bf16 {vr(Do,4)}, {vr(A,4)}, {bop(kk)}, {c}")
            if 10 <= b < 13: ldsrd(b + 1, u)
            if kk + 2 < len(order): build(kk + 2)
        a(f"v_writelane_b32 v{Do}, s{sA}, 32"); a(f"v_writelane_b32 v{Do+1}, s{sB_}, 32")
        self.red_write(Do)
        a("s_waitcnt lgkmcnt(0)"); a("s_barrier")
        self.stamp(5)
        lf = a.newlabel("bfin")
        a(f"s_cmp_lg_u32 s{sW}, 0"); a(f"s_cbranch_scc1 {lf}")
        G = 16; MLr = 32
        self.red_final_read(G)
        a(f"v_mov_b32 v13, {L_RED+512}")
        for w in range(4): a(f"ds_read_b64 {vr(MLr+2*w,2)}, v13 offset:{w*RSTR}")
        self.row_slot_addr()
        a("s_waitcnt lgkmcnt(0)")
        M = 40
        a(f"v_max3_f32 v{M}, v{MLr}, v{MLr+2}, v{MLr+4}"); a(f"v_max_f32 v{M}, v{M}, v{MLr+6}")
        for w in range(4): a(f"v_sub_f32 v{MLr+2*w}, v{MLr+2*w}, v{M}")
        for w in range(4): a(f"v_exp_f32 v{MLr+2*w}, v{MLr+2*w}")
        for r in range(4): a(f"v_mul_f32 v{G+r}, v{MLr}, v{G+r}")
        for w in range(1, 4):
            for r in range(4): a(f"v_fmac_f32 v{G+r}, v{MLr+2*w}, v{G+4*w+r}")
        a(f"v_readfirstlane_b32 s{sA}, v{M}")
        a(f"v_writelane_b32 v{G}, s{sA}, 32")
        self.tag([G, G+1, G+2, G+3])
        self.exec_set(0xffffffff, 1)
        self.row_store(G, vL16, sTmp[0])
        self.exec_all()
        a.label(lf)
        self.stamp(7)

    def opart(self):
        a = self.a
        W = f"s[{SRD_WS}:{SRD_WS+3}]"
        G, ML = 16, 20
        a(f"v_lshrrev_b32 v13, 7, v{vL16}"); a(f"v_lshlrev_b32 v13, 10, v13")
        a(f"v_and_b32 v14, 0x70, v{vL16}"); a(f"v_mov_b32 v15, v13"); a(f"v_add_u32 v13, v13, v14")
        a(f"s_lshl_b32 s{sTmp[0]}, s{sH}, 13"); a(f"s_add_u32 s{sTmp[0]}, s{sTmp[0]}, s{sLB}"); a(f"s_add_u32 s{sTmp[0]}, s{sTmp[0]}, {O_ROW}")
        a(f"s_lshl_b32 s{sTmp[1]}, s{sW}, 7"); a(f"s_add_u32 s{sTmp[1]}, s{sTmp[1]}, s{sTmp[0]}")
        def iss():
            a(f"buffer_load_dwordx4 {vr(ML,4)}, v15, {W}, s{sTmp[0]} offen offset:512 sc1")
            a(f"buffer_load_dwordx4 {vr(G,4)}, v13, {W}, s{sTmp[1]} offen sc1")
        self.poll(iss, [ML, G])
        self.stamp(8)
        WB = 24
        a(f"v_lshrrev_b32 v13, 8, v{vL16}"); a(f"v_mul_u32_u24 v13, 160, v13")
        a(f"v_and_b32 v14, 0xf0, v{vL16}"); a(f"v_add_u32 v13, v13, v14")
        a(f"s_mul_i32 s{sTmp[0]}, s{sW}, {32*160}"); a(f"s_add_u32 s{sTmp[0]}, s{sTmp[0]}, {L_R0}"); a(f"v_add_u32 v13, s{sTmp[0]}, v13")
        for i in range(8): a(f"ds_read_b128 {vr(WB+4*i,4)}, v13 offset:{i*640}")
        M, f, Ls = 14, 15, 56
        a(f"v_max_f32_dpp v{M}, v{ML}, v{ML} row_ror:8 {DPPALL}")
        a(f"v_max_f32_dpp v{M}, v{M}, v{M} row_bcast:15 row_mask:0xa bank_mask:0xf")
        a(f"v_max_f32_dpp v{M}, v{M}, v{M} row_bcast:31 row_mask:0xc bank_mask:0xf")
        a(f"v_readlane_b32 s{sA}, v{M}, 63")
        a(f"v_subrev_f32 v{f}, s{sA}, v{ML}"); a(f"v_exp_f32 v{f}, v{f}")
        a(f"v_mul_f32 v{Ls}, v{f}, v{ML+1}")
        for r in range(4): a(f"v_mul_f32 v{G+r}, v{f}, v{G+r}")
        a(f"v_add_f32_dpp v{Ls}, v{Ls}, v{Ls} row_ror:8 {DPPALL}")
        for r in range(4): a(f"v_add_f32_dpp v{G+r}, v{G+r}, v{G+r} row_ror:8 {DPPALL}")
        a(f"v_add_f32_dpp v{Ls}, v{Ls}, v{Ls} row_bcast:15 row_mask:0xa bank_mask:0xf")
        a(f"v_add_f32_dpp v{Ls}, v{Ls}, v{Ls} row_bcast:31 row_mask:0xc bank_mask:0xf")
        self.treduce([G, G+1, G+2, G+3])
        a(f"v_readlane_b32 s{sA}, v{Ls}, 63")
        a(f"v_rcp_f32 v{Ls}, s{sA}")
        a(f"v_mul_f32 v{G}, v{G}, v{Ls}")
        Xp = 13
        a(f"v_cvt_pk_bf16_f32 v{Xp}, v{G}, v{G}")
        D, Ab = 16, 56
        a("s_waitcnt lgkmcnt(0)")
        self.pv_gemv(Xp, 8, lambda i: vr(WB+4*i, 4), D, Ab)
        self.red_write(D)
        a("s_waitcnt lgkmcnt(0)"); a("s_barrier")
        lf = a.newlabel("ofin")
        a(f"s_cmp_lg_u32 s{sW}, 0"); a(f"s_cbranch_scc1 {lf}")
        self.red_final_read(G)
        a(f"v_lshrrev_b32 v13, 4, v{vL16}"); a(f"v_mul_u32_u24 v14, 13108, v13"); a(f"v_lshrrev_b32 v14, 16, v14")
        a(f"v_mul_u32_u24 v15, 5, v14"); a(f"v_sub_u32 v13, v13, v15"); a(f"v_lshlrev_b32 v13, 4, v13"); a(f"v_lshl_add_u32 v13, v14, 7, v13")
        a(f"s_lshl_b32 s{sTmp[0]}, s{sJ}, 5"); a(f"s_add_u32 s{sTmp[0]}, s{sTmp[0]}, s{sH}"); a(f"s_lshl_b32 s{sTmp[0]}, s{sTmp[0]}, 9")
        a(f"s_add_u32 s{sTmp[0]}, s{sTmp[0]}, s{sLB}"); a(f"s_add_u32 s{sTmp[0]}, s{sTmp[0]}, {O_COL}")
        a("s_waitcnt lgkmcnt(0)")
        self.sum4(G); self.tag([G, G+1, G+2, G+3])
        self.exec_set(0xfffff, 0)
        a(f"buffer_store_dwordx4 {vr(G,4)}, v13, {W}, s{sTmp[0]} offen sc1")
        self.exec_all()
        a.label(lf)
        self.stamp(9)
        lnp = a.newlabel("nopf"); lb = a.newlabel("nouk")
        a(f"s_cmp_eq_u32 s{sL}, 3"); a(f"s_cbranch_scc1 {lnp}")
        a(f"s_add_u32 s{sL}, s{sL}, 1")
        self.load_wq()
        a(f"s_bitcmp1_b32 s{sL}, 0"); a(f"s_cbranch_scc1 {lb}")
        self.load_wuk()
        a.label(lb)
        a(f"s_sub_u32 s{sL}, s{sL}, 1")
        a.label(lnp)
        a(f"v_lshrrev_b32 v13, 7, v{vL16}"); a(f"v_lshlrev_b32 v13, 9, v13")
        a(f"v_and_b32 v14, 0x70, v{vL16}"); a(f"v_add_u32 v13, v13, v14")
        a(f"s_lshl_b32 s{sTmp[0]}, s{sJ}, 14"); a(f"s_lshl_b32 s{sTmp[1]}, s{sW}, 7"); a(f"s_add_u32 s{sTmp[0]}, s{sTmp[0]}, s{sTmp[1]}")
        a(f"s_add_u32 s{sTmp[0]}, s{sTmp[0]}, s{sLB}"); a(f"s_add_u32 s{sTmp[0]}, s{sTmp[0]}, {O_COL}")
        for i in range(1, 4): a(f"s_add_u32 s{sTmp[i]}, s{sTmp[0]}, {i*4096}")
        def issc():
            for i in range(4):
                a(f"buffer_load_dwordx4 {vr(G+4*i,4)}, v13, {W}, s{sTmp[i]} offen sc1")
        self.poll(issc, [G, G+4, G+8, G+12], execmask=(0x1f1f1f1f, 0x1f1f1f1f))
        self.stamp(10)
        self.sum4(G)
        for r in range(4): a(f"v_add_f32_dpp v{G+r}, v{G+r}, v{G+r} row_ror:8 {DPPALL}")
        self.treduce([G, G+1, G+2, G+3])
        a(f"v_add_f32 v{G}, v{G}, v{vX}")
        a(f"v_cndmask_b32 v{vX}, 0, v{G}, s[{sM5}:{sM5+1}]")

    def epilogue(self):
        a = self.a
        le = a.newlabel("fin")
        a(f"s_cmp_lg_u32 s{sH}, 0"); a(f"s_cbranch_scc1 {le}")
        self.srd(SRD_B, pOut, nbytes=1280)
        a(f"v_lshrrev_b32 v13, 4, v{vL16}"); a(f"v_and_b32 v14, 15, v13"); a(f"v_lshrrev_b32 v13, 4, v13")
        a(f"v_lshl_add_u32 v13, v14, 2, v13")
        a(f"s_mul_i32 s{sTmp[0]}, s{sJ}, 80"); a(f"s_mul_i32 s{sTmp[1]}, s{sW}, 20"); a(f"s_add_u32 s{sTmp[0]}, s{sTmp[0]}, s{sTmp[1]}")
        a(f"v_add_u32 v13, s{sTmp[0]}, v13"); a(f"v_lshlrev_b32 v13, 1, v13")
        a(f"v_cvt_pk_bf16_f32 v14, v{vX}, v{vX}")
        a(f"s_mov_b64 exec, s[{sM5}:{sM5+1}]")
        a(f"buffer_store_short v14, v13, s[{SRD_B}:{SRD_B+3}], 0 offen")
        self.exec_all()
        a(f"s_cmp_lg_u32 s2, 0"); a(f"s_cbranch_scc1 {le}")
        a(f"s_cmp_lg_u32 s{sW}, 0"); a(f"s_cbranch_scc1 {le}")
        a(f"v_mov_b32 v13, 0")
        a("s_mov_b64 exec, 1")
        a(f"buffer_store_dword v{vT}, v13, s[{SRD_WS}:{SRD_WS+3}], 0 offen sc1")
        self.exec_all()
        a.label(le)
        l2 = a.newlabel("noerr")
        a(f"s_cmp_eq_u32 s{sErr}, 0"); a(f"s_cbranch_scc1 {l2}")
        self.srd(SRD_B, sDbg, nbytes=256)
        a(f"v_mov_b32 v13, 0"); a(f"v_mov_b32 v14, 0xdead")
        a("s_mov_b64 exec, 1")
        a(f"buffer_store_dword v14, v13, s[{SRD_B}:{SRD_B+3}], 0 offen")
        a.label(l2)

    def build(self):
        a = self.a
        self.prologue()
        a.label("L_layer")
        AT = self.qpart()
        lb = "L_bmid"; lo = "L_opart"
        a(f"s_bitcmp1_b32 s{sL}, 0"); a(f"s_cbranch_scc1 {lb}")
        self.amiddle(AT)
        a(f"s_branch {lo}")
        a.label(lb)
        self.bmiddle(AT)
        a.label(lo)
        self.opart()
        self.stamp(11)
        a(f"s_add_u32 s{sL}, s{sL}, 1"); a(f"s_add_u32 s{sLB}, s{sLB}, {WS_LSTR:#x}")
        nl = self.stop if self.stop else 4
        a(f"s_cmp_lt_u32 s{sL}, {nl}"); a("s_cbranch_scc1 L_layer")
        self.epilogue()
        a("s_waitcnt vmcnt(0)")
        a.label("L_end")
        a("s_endpgm")
        self.stream()
        return fix(a.lines)

HEADER = open("interleave_layers__compressed_kv_cla__mha_block_cached__decode.s.ref").read().split("; Override launch")[0]

def make(path, **kw):
    body = "\n".join(Gen(**kw).build())
    src = f"""{HEADER}; @launch grid=(256,1,1) block=(256,1,1) lds={LDS_BYTES}
.amdgcn_target "amdgcn-amd-amdhsa--gfx950"
.text
.globl {KNAME}
.p2align 8
.type {KNAME},@function
{KNAME}:
{body}
.section .rodata,"a"
.p2align 6
.amdhsa_kernel {KNAME}
  .amdhsa_next_free_vgpr 512
  .amdhsa_next_free_sgpr 102
  .amdhsa_accum_offset 256
  .amdhsa_group_segment_fixed_size 0
  .amdhsa_kernarg_size 112
  .amdhsa_user_sgpr_count 2
  .amdhsa_user_sgpr_kernarg_segment_ptr 1
  .amdhsa_system_sgpr_workgroup_id_x 1
  .amdhsa_float_denorm_mode_32 3
.end_amdhsa_kernel
"""
    open(path, "w").write(src)

if __name__ == "__main__":
    import argparse
    ap = argparse.ArgumentParser()
    ap.add_argument("-o", default="k.s"); ap.add_argument("--mode", default="co"); ap.add_argument("--kblk", type=int, default=8)
    ap.add_argument("--stop", type=int, default=0); ap.add_argument("--stamps", action="store_true"); ap.add_argument("--local", action="store_true")
    ap.add_argument("--pol", default="nt"); ap.add_argument("--wpol", default="")
    x = ap.parse_args()
    make(x.o, kblk=x.kblk, stream_mode=x.mode, stop_after=x.stop or None, stamps=x.stamps, local=x.local, pol=x.pol, wpol=x.wpol)
```

```python
import sys, struct
from hazard import fix

KNAME = "interleave_layers__compressed_kv_cla__mha_block_cached__decode_kernel"

class Asm:
    def __init__(self): self.lines = []; self.n = 0
    def __call__(self, s):
        for l in s.split("\n"):
            l = l.strip()
            if l: self.lines.append(l)
    def label(self, name): self.lines.append(name + ":")
    def newlabel(self, base="L"):
        self.n += 1; return f"{base}_{self.n}"

def vr(b, n=1): return f"v{b}" if n == 1 else f"v[{b}:{b+n-1}]"
def ar(b, n=1): return f"a{b}" if n == 1 else f"a[{b}:{b+n-1}]"
DPPALL = "row_mask:0xf bank_mask:0xf"
def f32hex(x): return "0x%08x" % struct.unpack("<I", struct.pack("<f", x))[0]

O_XCC  = 0x001000
O_STAMP = 0x080000
O_QP   = 0x100000
O_ROW  = 0x180000
O_COL  = 0x1C0000
O_QABS = 0x200000
O_ML1  = 0x210000
O_C2   = 0x240000
O_ML2  = 0x2C0000
O_C1   = 0x300000

L_VL  = 0
L_CKV = 65536
L_R0  = 131072
L_ST  = 151680
L_RED = 156032
RSTR  = 1056
L_U   = 160256
LDS_BYTES = 163840

sH, sJ, sW, sL, sAct = 3, 4, 5, 6, 7
SRD_WS, SRD_K, SRD_V, SRD_A, SRD_B = 8, 12, 16, 20, 24
sSPC, sRET = 28, 30
sT = [32, 33, 34, 35]
sSel = [36, 37, 38, 39]
pWqA, pWqB, pWuk, pWuv, pWoA, pWoB, pCkv, pOut, pX = 40, 42, 44, 46, 48, 50, 52, 54, 56
sCol = 58
sGA, sS = 59, 60
sSO = 61
sSpin = 62
sPos = 63
sFF = 64
sTmp = list(range(65, 76))
sMask = [76, 78, 80, 82]
sM5 = 84
sDbg = 86
sErr = 88
sLocal = 89
sA, sB_ = 90, 91
sTs = 92
sXG, sI, sSc, sXcc = 98, 99, 100, 101
sTf = 97

vL16, vM, vT, vX, vWoff, vKoff, vVoff, vRedW = 0, [1, 2, 3, 4], 5, 6, 7, 8, 9, 10
vT0 = 11
vCk = 11
vWo = 13
WQ, WUK, WUV, VTR, VRES = 76, 60, 80, 64, 96
AT = 44

SC = (128 ** -0.5) * 1.4426950408889634
SPIN_MAX = 1 << 16
W = f"s[{SRD_WS}:{SRD_WS+3}]"

class Gen:
    def __init__(self, kblk=8, stream_mode="co", stop_after=None, local=True, stamps="", pol="nt", wpol="", cpol="", codepf=True,
                 qkcalls=(4, 10), sent=True, nopf=False, once=True, xcalls=()):
        self.once = once; self.xcalls = xcalls
        self.nopf = nopf
        self.a = Asm(); self.kblk = kblk; self.mode = stream_mode; self.stop = stop_after
        self.local = local; self.stamps = stamps; self.pol = pol; self.wpol = wpol; self.cpol = cpol; self.codepf = codepf
        self.qkcalls = qkcalls; self.sent = sent

    def srd(self, s, lo, nbytes):
        a = self.a
        a(f"s_mov_b32 s{s}, s{lo}"); a(f"s_mov_b32 s{s+1}, s{lo+1}")
        a(f"s_mov_b32 s{s+2}, {nbytes:#x}"); a(f"s_mov_b32 s{s+3}, 0x20000")
    def exec_all(self): self.a("s_mov_b64 exec, -1")
    def exec_set(self, lo, hi):
        self.a(f"s_mov_b32 exec_lo, {lo:#x}"); self.a(f"s_mov_b32 exec_hi, {hi:#x}")
    def tag(self, regs):
        for i, r in enumerate(regs):
            self.a(f"v_perm_b32 v{r}, v{r}, v{vT}, s{sSel[i%4]}")
    def stamp(self, idx):
        if not self.stamps: return
        if self.stamps == "light" and idx not in (12, 13): return
        a = self.a
        lab = a.newlabel("st")
        a(f"s_cmp_lg_u32 s{sW}, 0"); a(f"s_cbranch_scc1 {lab}")
        a(f"s_memrealtime s[{sTs}:{sTs+1}]")
        a("s_waitcnt lgkmcnt(0)")
        a(f"s_lshl_b32 s96, s2, 2"); a(f"s_add_u32 s96, s96, s{sL}"); a(f"s_lshl_b32 s96, s96, 7")
        a(f"s_add_u32 s96, s96, {O_STAMP + idx*4}")
        a(f"v_mov_b32 v{vT0}, s{sTs}")
        a(f"v_mov_b32 v{vT0+1}, 0")
        a(f"s_mov_b64 s[{sTs}:{sTs+1}], exec"); a("s_mov_b64 exec, 1")
        a(f"buffer_store_dword v{vT0}, v{vT0+1}, {W}, s96 offen")
        a(f"s_mov_b64 exec, s[{sTs}:{sTs+1}]")
        a.label(lab)
    def stream_call(self):
        self.a(f"s_swappc_b64 s[{sRET}:{sRET+1}], s[{sSPC}:{sSPC+1}]")
    def maybe_stream(self):
        a = self.a
        lab = a.newlabel("ns")
        a(f"s_cmp_eq_u32 s{sAct}, 0"); a(f"s_cbranch_scc1 {lab}")
        self.stream_call()
        a.label(lab)
    def drain(self, keep):
        a = self.a
        l0 = a.newlabel("drain"); l1 = a.newlabel("drained")
        a.label(l0)
        a(f"s_cmp_eq_u32 s{sAct}, 0"); a(f"s_cbranch_scc1 {l1}")
        self.stream_call()
        a(f"s_waitcnt vmcnt({keep})")
        a(f"s_branch {l0}")
        a.label(l1)

    def poll(self, issue, regs, execmask=None, stream=True):
        a = self.a
        lp = a.newlabel("poll"); ns = a.newlabel("pns"); jn = a.newlabel("pj"); dn = a.newlabel("pdone")
        if execmask: self.exec_set(*execmask)
        a(f"s_mov_b32 s{sSpin}, 0")
        a.label(lp)
        issue()
        if self.mode == "co" and stream:
            a(f"s_cmp_eq_u32 s{sAct}, 0"); a(f"s_cbranch_scc1 {ns}")
            if self.once:
                a(f"s_cmp_lg_u32 s{sSpin}, 0"); a(f"s_cbranch_scc1 {ns}")
            if execmask: self.exec_all()
            self.stream_call()
            if execmask: self.exec_set(*execmask)
            a(f"s_waitcnt vmcnt({self.kblk})")
            a(f"s_branch {jn}")
            a.label(ns)
        a("s_waitcnt vmcnt(0)")
        a.label(jn)
        acc, acc2 = vT0, vT0 + 1
        dw = [g + i for g in regs for i in range(4)]
        for k, r in enumerate(dw): a(f"v_xor_b32 v{r}, s{sT[k % 4]}, v{r}")
        a(f"v_or3_b32 v{acc}, v{dw[0]}, v{dw[1]}, v{dw[2]}")
        if len(dw) == 4:
            a(f"v_or_b32 v{acc}, v{acc}, v{dw[3]}")
        else:
            a(f"v_or3_b32 v{acc2}, v{dw[3]}, v{dw[4]}, v{dw[5]}")
            k = 6; tog = 0
            while k < len(dw):
                tgt = acc if tog == 0 else acc2
                a(f"v_or3_b32 v{tgt}, v{tgt}, v{dw[k]}, v{dw[k+1]}"); k += 2
                tog ^= 1
            a(f"v_or_b32 v{acc}, v{acc}, v{acc2}")
        a(f"v_and_b32 v{acc}, s{sFF}, v{acc}")
        a(f"v_cmp_ne_u32 vcc, 0, v{acc}")
        a(f"s_cbranch_vccz {dn}")
        a(f"s_add_u32 s{sSpin}, s{sSpin}, 1")
        a(f"s_cmp_lt_u32 s{sSpin}, {SPIN_MAX}")
        a(f"s_cbranch_scc1 {lp}")
        a(f"s_mov_b32 s{sErr}, 1")
        a.label(dn)
        if execmask: self.exec_all()

    def dpp_steps(self, regs, op, steps):
        for d in steps:
            for r in regs:
                if d == "b15": self.a(f"{op}_dpp v{r}, v{r}, v{r} row_bcast:15 row_mask:0xa bank_mask:0xf")
                elif d == "b31": self.a(f"{op}_dpp v{r}, v{r}, v{r} row_bcast:31 row_mask:0xc bank_mask:0xf")
                else: self.a(f"{op}_dpp v{r}, v{r}, v{r} {d} {DPPALL}")
    X1, X2, HM, RM = "quad_perm:[1,0,3,2]", "quad_perm:[2,3,0,1]", "row_half_mirror", "row_mirror"
    def reduce63(self, regs, op):
        self.dpp_steps(regs, op, [self.X1, self.X2, self.HM, self.RM, "b15", "b31"])

    def treduce(self, r):
        a = self.a
        a(f"v_permlane32_swap_b32 v{r[0]}, v{r[2]}")
        a(f"v_permlane32_swap_b32 v{r[1]}, v{r[3]}")
        a(f"v_add_f32 v{r[0]}, v{r[0]}, v{r[2]}")
        a(f"v_add_f32 v{r[1]}, v{r[1]}, v{r[3]}")
        a(f"v_permlane16_swap_b32 v{r[0]}, v{r[1]}")
        a(f"v_add_f32 v{r[0]}, v{r[0]}, v{r[1]}")

    def pv_gemv(self, Xp, nload, bop, D, Abuf):
        a = self.a
        def build(i):
            A = Abuf + 4 * (i % 2)
            for r in range(4):
                a(f"v_and_b32_dpp v{A+r}, v{Xp}, v{vM[r]} row_newbcast:{i} {DPPALL}")
        build(0)
        if nload > 1: build(1)
        for i in range(nload):
            A = Abuf + 4 * (i % 2)
            c = "0" if i == 0 else vr(D, 4)
            a(f"v_mfma_f32_16x16x32_bf16 {vr(D,4)}, {vr(A,4)}, {bop(i)}, {c}")
            if i + 2 < nload: build(i + 2)

    def red_write(self, D, off=0):
        a = self.a
        a("s_mov_b32 exec_hi, 1")
        a(f"ds_write_b128 v{vRedW}, {vr(D,4)} offset:{off}")
        a("s_mov_b32 exec_hi, -1")
    def red_final_read(self, G, off=0):
        a = self.a
        a(f"v_add_u32 v{vT0}, {L_RED}, v{vL16}")
        for w in range(4):
            a(f"ds_read_b128 {vr(G+4*w,4)}, v{vT0} offset:{w*RSTR+off}")
    def sum4(self, G):
        a = self.a
        for r in range(4):
            a(f"v_add_f32 v{G+r}, v{G+r}, v{G+4+r}")
            a(f"v_add_f32 v{G+8+r}, v{G+8+r}, v{G+12+r}")
        for r in range(4):
            a(f"v_add_f32 v{G+r}, v{G+r}, v{G+8+r}")

    def local_stores(self, items):
        a = self.a
        def emit(flag):
            for (data, vaddr, soff, pre) in items:
                if pre: pre()
                a(f"buffer_store_dwordx4 {vr(data,4)}, v{vaddr}, {W}, s{soff} offen {flag}")
        if self.local:
            l0 = a.newlabel("ls"); l1 = a.newlabel("ls")
            a(f"s_cmp_eq_u32 s{sLocal}, 0"); a(f"s_cbranch_scc1 {l0}")
            emit("")
            a(f"s_branch {l1}")
            a.label(l0)
            emit("sc1")
            a.label(l1)
        else:
            emit("sc1")

    def next_tag(self):
        a = self.a
        a(f"s_mul_i32 s{sTf}, s{sTf}, 0x9E3779B1"); a(f"s_add_u32 s{sTf}, s{sTf}, 0x7F4A7C15")
        a(f"v_mov_b32 v{vT}, s{sTf}")
        a(f"s_and_b32 s{sT[0]}, s{sTf}, 0xff"); a(f"s_bfe_u32 s{sT[1]}, s{sTf}, 0x80008")
        a(f"s_bfe_u32 s{sT[2]}, s{sTf}, 0x80010"); a(f"s_lshr_b32 s{sT[3]}, s{sTf}, 24")

    def pf_guard(self, fn, lmin=2):
        if not self.nopf: return fn()
        a = self.a; l = a.newlabel("npf")
        a(f"s_cmp_ge_u32 s{sL}, {lmin}"); a(f"s_cbranch_scc1 {l}")
        fn()
        a.label(l)
    def load_wq(self):
        self.pf_guard(self.load_wq_)
    def load_wq_(self):
        a = self.a
        l0 = a.newlabel("wq"); l1 = a.newlabel("wq")
        a(f"s_bitcmp1_b32 s{sL}, 0"); a(f"s_cbranch_scc1 {l0}")
        a(f"s_mov_b32 s{SRD_A}, s{pWqA}"); a(f"s_mov_b32 s{SRD_A+1}, s{pWqA+1}"); a(f"s_branch {l1}")
        a.label(l0)
        a(f"s_mov_b32 s{SRD_A}, s{pWqB}"); a(f"s_mov_b32 s{SRD_A+1}, s{pWqB+1}")
        a.label(l1)
        a(f"s_mov_b32 s{SRD_A+2}, {19*8192+256}"); a(f"s_mov_b32 s{SRD_A+3}, 0x20000")
        for i in range(5):
            a(f"s_mov_b32 s{sTmp[0]}, {i*32768}")
            a(f"buffer_load_dwordx4 {vr(WQ+4*i,4)}, v{vWoff}, s[{SRD_A}:{SRD_A+3}], s{sTmp[0]} offen {self.wpol}")
    def load_wuk(self):
        self.pf_guard(self.load_wuk_)
    def load_wuk_(self):
        a = self.a
        self.srd(SRD_A, pWuk, 15*8192+256)
        t = vT0
        a(f"v_lshrrev_b32 v{t}, 8, v{vKoff}"); a(f"v_lshlrev_b32 v{t}, 13, v{t}")
        a(f"v_and_b32 v{t+1}, s{sFF}, v{vKoff}"); a(f"v_or_b32 v{t}, v{t}, v{t+1}")
        for i in range(4):
            a(f"s_mov_b32 s{sTmp[0]}, {i*32768}")
            a(f"buffer_load_dwordx4 {vr(WUK+4*i,4)}, v{t}, s[{SRD_A}:{SRD_A+3}], s{sTmp[0]} offen {self.wpol}")
    def load_wuv(self):
        self.pf_guard(self.load_wuv_)
    def load_wuv_(self):
        a = self.a
        self.srd(SRD_A, pWuv, 15*8192+256)
        for i in range(4):
            a(f"s_mov_b32 s{sTmp[0]}, {i*32768}")
            a(f"buffer_load_dwordx4 {vr(WUV+4*i,4)}, v{vWoff}, s[{SRD_A}:{SRD_A+3}], s{sTmp[0]} offen {self.wpol}")
    def wo_setup(self, p):
        a = self.a
        self.srd(SRD_A, p, 31*1280+160)
        a(f"s_mul_i32 s{sTmp[1]}, s{sW}, {32*160}"); a(f"s_add_u32 s{sTmp[1]}, s{sTmp[1]}, {L_R0}")
    def wo_one(self, i):
        a = self.a
        a(f"s_add_u32 m0, s{sTmp[1]}, {i*6*160}")
        a(f"s_mov_b32 s{sTmp[0]}, {i*6*1280}")
        if i < 5: a("s_mov_b32 exec_hi, 0x0fffffff")
        else: self.exec_set(0x000fffff, 0)
        a(f"buffer_load_dwordx4 v{vWo}, s[{SRD_A}:{SRD_A+3}], s{sTmp[0]} offen {self.wpol} lds")
        if i < 5: a("s_mov_b32 exec_hi, -1")
        else: self.exec_all()
    def load_wo(self, p):
        def f():
            self.wo_setup(p)
            for i in range(6): self.wo_one(i)
        self.pf_guard(f)
    def ckv_one(self, kk):
        a = self.a
        f = (kk & 8) | ((kk & 3) << 1) | ((kk >> 2) & 1)
        a(f"v_xor_b32 v{vCk}, {f*16}, v{vL16}")
        a(f"s_lshl_b32 s{sSO}, s{sW}, 14"); a(f"s_add_u32 m0, s{sSO}, {L_CKV + kk*1024}")
        a(f"s_mov_b32 s{sSO}, {kk*1024}")
        a(f"buffer_load_dwordx4 v{vCk}, s[{SRD_B}:{SRD_B+3}], s{sSO} offen {self.cpol} lds")
    def vtr_one(self, k):
        a = self.a
        b, u = 14 + (k >> 2), k & 3
        if u == 0: a(f"s_mov_b32 s{sTmp[2]}, {b*4096}")
        a(f"buffer_load_dwordx4 {vr(VTR+(b-14)*16+4*u,4)}, v{vVoff}, s[{SRD_V}:{SRD_V+3}], s{sTmp[2]} offen offset:{u*256} {self.pol}")

    def prologue(self):
        a = self.a
        a("s_cmp_ge_u32 s2, 256"); a("s_cbranch_scc1 L_end")
        a("s_load_dwordx4 s[64:67], s[0:1], 0")
        a("s_load_dwordx4 s[68:71], s[0:1], 16")
        a("s_load_dwordx4 s[72:75], s[0:1], 32")
        a("s_load_dwordx4 s[76:79], s[0:1], 56")
        a("s_load_dwordx4 s[80:83], s[0:1], 72")
        a("s_load_dwordx4 s[84:87], s[0:1], 88")
        a("s_load_dwordx2 s[8:9], s[0:1], 104")
        a(f"v_lshrrev_b32 v20, 6, v0")
        a(f"v_and_b32 v21, 63, v0")
        a(f"v_readfirstlane_b32 s{sW}, v20")
        a(f"s_and_b32 s{sH}, s2, 31"); a(f"s_lshr_b32 s{sJ}, s2, 5")
        a(f"s_and_b32 s{sXG}, s2, 7"); a(f"s_lshr_b32 s{sI}, s2, 3")
        a(f"s_and_b32 s{sGA}, s{sI}, 1")
        a(f"s_lshr_b32 s{sS}, s{sI}, 1"); a(f"s_lshl_b32 s92, s{sXG}, 4"); a(f"s_add_u32 s{sS}, s{sS}, s92")
        a(f"v_lshlrev_b32 v{vL16}, 4, v21")
        if self.codepf:
            lc = a.newlabel("cpf")
            a(f"s_cmp_lg_u32 s{sW}, 3"); a(f"s_cbranch_scc1 {lc}")
            a("s_getpc_b64 s[20:21]")
            a.label("L_pcx")
            a("s_mov_b32 s22, L_codeend-L_pcx"); a("s_mov_b32 s23, 0x20000")
            a("v_lshlrev_b32 v22, 6, v21")
            self.ncode = 7
            for i in range(self.ncode):
                a(f"s_mov_b32 s92, {i*4096}")
                a(f"buffer_load_dword v23, v22, s[20:23], s92 offen")
            a.label(lc)
        a("v_and_b32 v22, 15, v21")
        a("v_lshrrev_b32 v23, 4, v21") if not self.codepf else a("v_lshrrev_b32 v19, 4, v21")
        g = 23 if not self.codepf else 19
        a(f"v_lshlrev_b32 v24, 4, v22")
        a(f"v_lshl_add_u32 v{vWoff}, v{g}, 13, v24")
        a(f"v_lshl_add_u32 v{vVoff}, v{g}, 10, v24")
        a(f"v_and_b32 v25, 3, v22"); a(f"v_lshl_add_u32 v25, v{g}, 2, v25"); a("v_lshlrev_b32 v25, 4, v25")
        a("v_lshrrev_b32 v26, 2, v22"); a(f"v_lshl_add_u32 v{vKoff}, v26, 8, v25")
        a("v_and_b32 v25, 1, v22"); a("v_cmp_eq_u32 vcc, 1, v25")
        a("v_mov_b32 v26, 0xffff"); a("v_mov_b32 v27, 0xffff0000"); a("v_cndmask_b32 v26, v26, v27, vcc")
        a("v_lshrrev_b32 v25, 1, v22")
        for r in range(4):
            a(f"v_cmp_eq_u32 vcc, {r}, v25"); a(f"v_cndmask_b32 v{vM[r]}, 0, v26, vcc")
        a(f"v_lshl_add_u32 v25, v22, 1, v{g}"); a("v_lshlrev_b32 v25, 4, v25")
        a("v_cmp_gt_u32 vcc, 32, v21"); a("v_mov_b32 v26, 512"); a("v_cndmask_b32 v25, v26, v25, vcc")
        a(f"s_mul_i32 s92, s{sW}, {RSTR}"); a(f"s_add_u32 s92, s92, {L_RED}"); a(f"v_add_u32 v{vRedW}, s92, v25")
        a(f"v_mul_u32_u24 v25, 6554, v21"); a(f"v_lshrrev_b32 v25, 16, v25")
        a(f"v_mul_u32_u24 v26, 10, v25"); a(f"v_sub_u32 v26, v21, v26")
        a(f"v_mul_u32_u24 v25, 1280, v25"); a(f"v_lshl_add_u32 v{vWo}, v26, 4, v25")
        a("s_waitcnt lgkmcnt(0)")
        a(f"s_mov_b32 s{SRD_WS+2}, 0x10000000"); a(f"s_mov_b32 s{SRD_WS+3}, 0x20000")
        if self.stamps:
            a(f"s_mov_b32 s{sL}, 0")
            self.stamp(12)
        a("v_mov_b32 v28, 0")
        a(f"buffer_load_dword v{vT}, v28, {W}, 0 offen sc1")
        a(f"s_mov_b32 s{pX}, s64"); a(f"s_mov_b32 s{pX+1}, s65")
        self.srd(SRD_B, pX, 1280)
        a(f"s_mul_i32 s92, s{sJ}, 80"); a(f"s_mul_i32 s93, s{sW}, 20"); a("s_add_u32 s92, s92, s93")
        a(f"v_lshl_add_u32 v25, v22, 2, v{g}"); a("v_add_u32 v25, s92, v25"); a("v_lshlrev_b32 v29, 1, v25")
        a(f"s_mov_b32 s94, 0x001f001f"); a(f"s_mov_b32 s95, 0x001f001f")
        a(f"v_mov_b32 v{vX}, 0")
        a("s_mov_b64 exec, s[94:95]")
        a(f"buffer_load_ushort v{vX}, v29, s[{SRD_B}:{SRD_B+3}], 0 offen")
        self.exec_all()
        def addp(dst, src, terms):
            a(f"s_mov_b32 s92, 0")
            for (sreg, c) in terms:
                a(f"s_mul_i32 s93, s{sreg}, {c}"); a("s_add_u32 s92, s92, s93")
            a(f"s_add_u32 s{dst}, s{src}, s92"); a(f"s_addc_u32 s{dst+1}, s{src+1}, 0")
        addp(pWqA, 68, [(sJ, 80*8192), (sW, 20*8192), (sH, 256)])
        a(f"s_mov_b32 s{sL}, 0")
        self.load_wq()
        addp(pWuk, 70, [(sJ, 64*8192), (sW, 16*8192), (sH, 256)])
        a(f"s_mov_b32 s{sFF}, 0xff")
        self.load_wuk()
        addp(pCkv, 66, [(sS, 65536), (sW, 16384)])
        addp(pWqB, 80, [(sJ, 80*8192), (sW, 20*8192), (sH, 256)])
        addp(pWuv, 72, [(sJ, 64*8192), (sW, 16*8192), (sH, 256)])
        addp(pWoA, 74, [(sH, 163840), (sW, 32*1280), (sJ, 160)])
        addp(pWoB, 82, [(sH, 163840), (sW, 32*1280), (sJ, 160)])
        addp(SRD_K, 76, [(sH, 2097152), (sJ, 262144), (sW, 65536)])
        addp(SRD_V, 78, [(sH, 2097152), (sJ, 262144), (sW, 65536)])
        a(f"s_mov_b32 s{SRD_K+2}, 65536"); a(f"s_mov_b32 s{SRD_K+3}, 0x20000")
        a(f"s_mov_b32 s{SRD_V+2}, 65536"); a(f"s_mov_b32 s{SRD_V+3}, 0x20000")
        a(f"s_mov_b32 s{pOut}, s84"); a(f"s_mov_b32 s{pOut+1}, s85")
        self.srd(SRD_B, pCkv, 16384)
        a(f"s_mov_b32 s{sErr}, 0"); a(f"s_mov_b32 s{sLocal}, 0")
        a(f"s_mov_b32 s{sM5}, 0x001f001f"); a(f"s_mov_b32 s{sM5+1}, 0x001f001f")
        for i in range(4): a(f"s_mov_b32 s{sSel[i]}, {0x07060500+i:#x}")
        for t in range(4):
            a(f"s_mov_b32 s{sMask[t]}, {(0x000f000f << (4*t)):#x}"); a(f"s_mov_b32 s{sMask[t]+1}, {(0x000f000f << (4*t)):#x}")
        a(f"s_getpc_b64 s[{sSPC}:{sSPC+1}]")
        a.label("L_pc0")
        a(f"s_add_u32 s{sSPC}, s{sSPC}, L_stream-L_pc0"); a(f"s_addc_u32 s{sSPC+1}, s{sSPC+1}, 0")
        a(f"s_mov_b32 s{sAct}, 1"); a(f"s_mov_b32 s{sPos}, 0")
        a(f"s_mov_b32 s{sCol}, {O_COL:#x}")
        a(f"s_getreg_b32 s{sXcc}, hwreg(HW_REG_XCC_ID)"); a(f"s_and_b32 s{sXcc}, s{sXcc}, 0xf"); a(f"s_add_u32 s{sXcc}, s{sXcc}, 1"); a(f"s_lshl_b32 s{sXcc}, s{sXcc}, 8")
        self.stream_call()
        a(f"s_waitcnt vmcnt({4+self.first_block()})")
        a(f"v_readfirstlane_b32 s{sTf}, v{vT}")
        self.next_tag()
        a(f"v_lshlrev_b32 v{vX}, 16, v{vX}")
        if self.local:
            lx = a.newlabel("xp")
            a(f"s_cmp_lg_u32 s{sW}, 0"); a(f"s_cbranch_scc1 {lx}")
            for r in range(4): a(f"v_mov_b32 v{16+r}, s{sXcc}")
            self.tag([16, 17, 18, 19])
            a(f"s_lshl_b32 s92, s{sXG}, 9"); a(f"s_lshl_b32 s93, s{sI}, 4"); a("s_add_u32 s92, s92, s93"); a(f"s_add_u32 s92, s92, {O_XCC}")
            a("v_mov_b32 v20, 0")
            a("s_mov_b64 exec, 1")
            a(f"buffer_store_dwordx4 v[16:19], v20, {W}, s92 offen sc1")
            self.exec_all()
            a.label(lx)
        if self.mode == "first":
            self.drain(16)

    NLOADS = 136
    def first_block(self):
        r = self.NLOADS % self.kblk
        return r if r else self.kblk
    def stream(self):
        a = self.a
        loads = [("C", i) for i in range(16)] + [("K", i) for i in range(64)]
        loads += [("V", b, u) for b in range(10) for u in range(4)]
        loads += [("L", b, u) for b in range(10, 14) for u in range(4)]
        k = self.kblk
        assert len(loads) == self.NLOADS
        a.label("L_stream")
        starts = [0] + list(range(self.first_block(), len(loads), k))
        for bn, bi in enumerate(starts):
            be = starts[bn+1] if bn + 1 < len(starts) else len(loads)
            last_so = None
            for ld in loads[bi:be]:
                if ld[0] == "C":
                    self.ckv_one(ld[1]); last_so = None
                elif ld[0] == "K":
                    i = ld[1]; so = (i >> 2) * 4096
                    if so != last_so: a(f"s_mov_b32 s{sSO}, {so}"); last_so = so
                    a(f"buffer_load_dwordx4 {ar(4*i,4)}, v{vKoff}, s[{SRD_K}:{SRD_K+3}], s{sSO} offen offset:{(i&3)*1024} {self.pol}")
                elif ld[0] == "V":
                    _, b, u = ld; so = b * 4096
                    if so != last_so: a(f"s_mov_b32 s{sSO}, {so}"); last_so = so
                    a(f"buffer_load_dwordx4 {vr(VRES+16*b+4*u,4)}, v{vVoff}, s[{SRD_V}:{SRD_V+3}], s{sSO} offen offset:{u*256} {self.pol}")
                else:
                    _, b, u = ld
                    a(f"s_lshl_b32 s{sSO}, s{sW}, 14"); a(f"s_add_u32 m0, s{sSO}, {L_VL + ((b-10)*4+u)*1024}")
                    a(f"s_mov_b32 s{sSO}, {b*4096+u*256}"); last_so = None
                    a(f"buffer_load_dwordx4 v{vVoff}, s[{SRD_V}:{SRD_V+3}], s{sSO} offen {self.pol} lds")
            a(f"s_add_u32 s{sPos}, s{sPos}, {be-bi}")
            if be >= len(loads): a(f"s_mov_b32 s{sAct}, 0")
            a(f"s_swappc_b64 s[{sSPC}:{sSPC+1}], s[{sRET}:{sRET+1}]")
        a("s_endpgm")

    def qpart(self):
        a = self.a
        self.stamp(0)
        Xp, S1, S2 = 14, 15, 36
        D, Du, Ab = 16, 20, 24
        a(f"v_cvt_pk_bf16_f32 v{Xp}, v{vX}, v{vX}")
        a(f"v_and_b32 v{S1}, 0xffff0000, v{Xp}")
        a(f"v_mul_f32 v{S2}, v{S1}, v{S1}")
        self.pv_gemv(Xp, 5, lambda i: vr(WQ+4*i, 4), D, Ab)
        self.reduce63([S1, S2], "v_add_f32")
        lu = a.newlabel("nou")
        a(f"s_cmp_ge_u32 s{sL}, 2"); a(f"s_cbranch_scc1 {lu}")
        for r in range(4): a(f"v_and_b32 v{32+r}, 0x3f803f80, v{vM[r]}")
        for i in range(5):
            c = "0" if i == 0 else vr(Du, 4)
            a(f"v_mfma_f32_16x16x32_bf16 {vr(Du,4)}, {vr(32,4)}, {vr(WQ+4*i,4)}, {c}")
        self.red_write(Du, 528)
        a.label(lu)
        a(f"v_readlane_b32 s{sA}, v{S1}, 63"); a(f"v_readlane_b32 s{sB_}, v{S2}, 63")
        a(f"v_writelane_b32 v{D}, s{sA}, 32"); a(f"v_writelane_b32 v{D+1}, s{sB_}, 32")
        self.red_write(D)
        t = 14
        a(f"v_lshrrev_b32 v{t}, 4, v{vL16}")
        a(f"v_and_b32 v15, 1, v{t}"); a(f"v_lshlrev_b32 v15, 4, v15")
        a(f"v_lshrrev_b32 v36, 1, v{t}"); a(f"v_add_u32 v15, v15, v36"); a(f"v_lshlrev_b32 v15, 4, v15")
        a(f"v_cmp_gt_u32 vcc, 32, v{t}"); a(f"v_mov_b32 v36, 512"); a(f"v_cndmask_b32 v{t}, v36, v15, vcc")
        a(f"s_lshl_b32 s{sTmp[0]}, s{sH}, 3"); a(f"s_add_u32 s{sTmp[0]}, s{sTmp[0]}, s{sJ}"); a(f"s_lshl_b32 s{sTmp[0]}, s{sTmp[0]}, 11")
        a(f"s_add_u32 s{sTmp[0]}, s{sTmp[0]}, {O_QP}")
        a("s_waitcnt lgkmcnt(0)"); a("s_barrier")
        lf = a.newlabel("qfin")
        a(f"s_cmp_lg_u32 s{sW}, 0"); a(f"s_cbranch_scc1 {lf}")
        G = 16
        self.red_final_read(G)
        a("s_waitcnt lgkmcnt(0)")
        self.sum4(G); self.tag([G, G+1, G+2, G+3])
        a("s_mov_b32 exec_hi, 1")
        self.local_stores([(G, t, sTmp[0], None)])
        a("s_mov_b32 exec_hi, -1")
        a(f"s_cmp_ge_u32 s{sL}, 2"); a(f"s_cbranch_scc1 {lf}")
        G2 = 32
        self.red_final_read(G2, 528)
        a(f"s_add_u32 s{sTmp[0]}, s{sTmp[0]}, 1024")
        a("s_waitcnt lgkmcnt(0)")
        self.sum4(G2); self.tag([G2, G2+1, G2+2, G2+3])
        a("s_mov_b32 exec_hi, 0")
        self.local_stores([(G2, t, sTmp[0], None)])
        a("s_mov_b32 exec_hi, -1")
        a.label(lf)
        self.stamp(1)
        ad, ad2, adu, adx = 14, 15, 56, 57
        Gq, Gs, Gu, Gx = 16, 32, 36, 52
        a(f"v_lshrrev_b32 v{ad}, 8, v{vKoff}"); a(f"v_lshlrev_b32 v{ad}, 11, v{ad}")
        a(f"v_and_b32 v{ad2}, s{sFF}, v{vKoff}"); a(f"v_or_b32 v{ad}, v{ad}, v{ad2}")
        a(f"v_lshlrev_b32 v{adu}, 1, v{ad2}")
        a(f"v_lshrrev_b32 v{ad2}, 4, v{vL16}"); a(f"v_and_b32 v{ad2}, 7, v{ad2}"); a(f"v_lshlrev_b32 v{ad2}, 11, v{ad2}")
        a(f"s_lshl_b32 s{sTmp[0]}, s{sH}, 14"); a(f"s_add_u32 s{sTmp[0]}, s{sTmp[0]}, {O_QP}")
        a(f"s_add_u32 s{sTmp[1]}, s{sTmp[0]}, 8192")
        def iss_q():
            for i in range(2):
                for hf in range(2):
                    a(f"buffer_load_dwordx4 {vr(Gq+8*i+4*hf,4)}, v{ad}, {W}, s{sTmp[i]} offen offset:{hf*256} sc1")
            a(f"buffer_load_dwordx4 {vr(Gs,4)}, v{ad2}, {W}, s{sTmp[0]} offen offset:512 sc1")
        def iss_u():
            for i in range(2):
                for hf in range(2):
                    a(f"buffer_load_dwordx4 {vr(Gu+8*i+4*hf,4)}, v{ad}, {W}, s{sTmp[i]} offen offset:{1024+hf*256} sc1")
        def iss_x():
            a(f"buffer_load_dwordx4 {vr(Gx,4)}, v{adx}, {W}, s{sTmp[3]} offen sc1")
        U = 36
        l_late = a.newlabel("qlate"); l_j = a.newlabel("qj")
        a(f"s_and_b32 s{sTmp[2]}, s{sL}, 1"); a(f"s_lshl_b32 s{sTmp[2]}, s{sTmp[2]}, 9"); a(f"s_add_u32 s{sTmp[2]}, s{sTmp[2]}, {L_U}")
        a(f"v_add_u32 v{adu}, s{sTmp[2]}, v{adu}")
        a(f"s_cmp_ge_u32 s{sL}, 2"); a(f"s_cbranch_scc1 {l_late}")
        base_regs = [Gq, Gq+4, Gq+8, Gq+12, Gs, Gu, Gu+4, Gu+8, Gu+12]
        if self.local:
            l_one = a.newlabel("qone"); l_u = a.newlabel("qu")
            a(f"s_cmp_eq_u32 s{sL}, 1"); a(f"s_cbranch_scc1 {l_one}")
            a(f"v_and_b32 v{adx}, 0x1f0, v{vL16}")
            a(f"s_lshl_b32 s{sTmp[3]}, s{sXG}, 9"); a(f"s_add_u32 s{sTmp[3]}, s{sTmp[3]}, {O_XCC}")
            self.poll(lambda: (iss_q(), iss_u(), iss_x()), base_regs + [Gx])
            a(f"v_cmp_ne_u32 vcc, s{sXcc}, v{Gx}")
            a(f"s_cmp_eq_u64 vcc, 0"); a(f"s_cselect_b32 s{sLocal}, 1, 0")
            a(f"s_branch {l_u}")
            a.label(l_one)
            self.poll(lambda: (iss_q(), iss_u()), base_regs)
            a.label(l_u)
        else:
            self.poll(lambda: (iss_q(), iss_u()), base_regs)
        for r in range(8): a(f"v_add_f32 v{Gu+r}, v{Gu+r}, v{Gu+8+r}")
        self.dpp_steps([Gu+r for r in range(8)], "v_add_f32", ["row_ror:4", "row_ror:8"])
        lw = a.newlabel("uw")
        a(f"s_cmp_lg_u32 s{sW}, 0"); a(f"s_cbranch_scc1 {lw}")
        self.exec_set(0x000f000f, 0x000f000f)
        a(f"ds_write_b128 v{adu}, {vr(U,4)}"); a(f"ds_write_b128 v{adu}, {vr(U+4,4)} offset:16")
        self.exec_all()
        a.label(lw)
        a(f"s_branch {l_j}")
        a.label(l_late)
        a(f"ds_read_b128 {vr(U,4)}, v{adu}"); a(f"ds_read_b128 {vr(U+4,4)}, v{adu} offset:16")
        self.poll(iss_q, [Gq, Gq+4, Gq+8, Gq+12, Gs])
        a("s_waitcnt lgkmcnt(0)")
        a.label(l_j)
        self.stamp(2)
        st = [Gs, Gs+1]
        adds = [f"v_add_f32 v{Gq+r}, v{Gq+r}, v{Gq+8+r}" for r in range(8)]
        seq = []
        for k, d in enumerate((self.X1, self.X2, self.HM)):
            seq += [f"v_add_f32_dpp v{r}, v{r}, v{r} {d} {DPPALL}" for r in st]
            seq += adds[3*k:3*k+3] if k < 2 else adds[6:]
        for s_ in seq: a(s_)
        a(f"v_mul_f32 v{Gs}, {f32hex(1/640)}, v{Gs}")
        ror4 = [f"v_add_f32_dpp v{Gq+r}, v{Gq+r}, v{Gq+r} row_ror:4 {DPPALL}" for r in range(8)]
        ror8 = [f"v_add_f32_dpp v{Gq+r}, v{Gq+r}, v{Gq+r} row_ror:8 {DPPALL}" for r in range(8)]
        a(f"v_mul_f32 v{Gs+1}, {f32hex(1/640)}, v{Gs+1}")
        for s_ in ror4[:4]: a(s_)
        a(f"v_fma_f32 v{Gs+1}, -v{Gs}, v{Gs}, v{Gs+1}")
        for s_ in ror4[4:]: a(s_)
        a(f"v_add_f32 v{Gs+1}, {f32hex(1e-5)}, v{Gs+1}")
        for s_ in ror8[:4]: a(s_)
        a(f"v_rsq_f32 v{Gs+1}, v{Gs+1}")
        for s_ in ror8[4:]: a(s_)
        a(f"v_mul_f32 v{Gs+1}, {f32hex(SC)}, v{Gs+1}")
        for r in range(8): a(f"v_fma_f32 v{Gq+r}, -v{Gs}, v{U+r}, v{Gq+r}")
        a(f"v_readfirstlane_b32 s{sSc}, v{Gs+1}")
        Qp = 24
        for r in range(4): a(f"v_cvt_pk_bf16_f32 v{Qp+r}, v{Gq+2*r}, v{Gq+2*r+1}")
        for t in range(4):
            for r in range(4):
                a(f"v_cndmask_b32 v{AT+4*t+r}, 0, v{Qp+r}, s[{sMask[t]}:{sMask[t]+1}]")

    def combine8(self, G, ML, tmp):
        a = self.a
        M, f, Ls = tmp, tmp+1, tmp+2
        a(f"v_max_f32_dpp v{M}, v{ML}, v{ML} row_ror:8 {DPPALL}")
        self.dpp_steps([M], "v_max_f32", ["b15", "b31"])
        a(f"v_readlane_b32 s{sA}, v{M}, 63")
        a(f"v_subrev_f32 v{f}, s{sA}, v{ML}"); a(f"v_exp_f32 v{f}, v{f}")
        a(f"v_mul_f32 v{Ls}, v{f}, v{ML+1}")
        for r in range(4): a(f"v_mul_f32 v{G+r}, v{f}, v{G+r}")
        a(f"v_add_f32_dpp v{Ls}, v{Ls}, v{Ls} row_ror:8 {DPPALL}")
        for r in range(4): a(f"v_add_f32_dpp v{G+r}, v{G+r}, v{G+r} row_ror:8 {DPPALL}")
        a(f"v_add_f32_dpp v{Ls}, v{Ls}, v{Ls} row_bcast:15 row_mask:0xa bank_mask:0xf")
        a(f"v_permlane32_swap_b32 v{G}, v{G+2}")
        a(f"v_permlane32_swap_b32 v{G+1}, v{G+3}")
        a(f"v_add_f32_dpp v{Ls}, v{Ls}, v{Ls} row_bcast:31 row_mask:0xc bank_mask:0xf")
        a(f"v_add_f32 v{G}, v{G}, v{G+2}")
        a(f"v_add_f32 v{G+1}, v{G+1}, v{G+3}")
        a(f"v_readlane_b32 s{sA}, v{Ls}, 63")
        a(f"v_permlane16_swap_b32 v{G}, v{G+1}")
        a(f"v_rcp_f32 v{Ls}, s{sA}")
        a(f"v_add_f32 v{G}, v{G}, v{G+1}")
        a(f"v_mul_f32 v{G}, v{G}, v{Ls}")

    def amiddle(self):
        a = self.a
        D = 16
        for t in range(4):
            c = "0" if t == 0 else vr(D, 4)
            a(f"v_mfma_f32_16x16x32_bf16 {vr(D,4)}, {vr(AT+4*t,4)}, {vr(WUK+4*t,4)}, {c}")
        a(f"v_lshrrev_b32 v14, 8, v{vL16}"); a("v_lshlrev_b32 v14, 4, v14")
        a(f"s_lshl_b32 s{sTmp[0]}, s{sH}, 11"); a(f"s_lshl_b32 s{sTmp[1]}, s{sJ}, 8"); a(f"s_add_u32 s{sTmp[0]}, s{sTmp[0]}, s{sTmp[1]}")
        a(f"s_lshl_b32 s{sTmp[1]}, s{sW}, 6"); a(f"s_add_u32 s{sTmp[0]}, s{sTmp[0]}, s{sTmp[1]}")
        a(f"s_add_u32 s{sTmp[0]}, s{sTmp[0]}, {O_QABS}")
        S, S2 = 20, 21
        a(f"v_mov_b32_dpp v{S}, v{D} quad_perm:[0,0,0,0] {DPPALL}")
        a(f"v_mov_b32_dpp v{S2}, v{D+2} quad_perm:[2,2,2,2] {DPPALL}")
        a(f"s_nop 0")
        a(f"v_add_f32_dpp v{S}, v{D+1}, v{S} quad_perm:[1,1,1,1] {DPPALL}")
        a(f"v_add_f32_dpp v{S2}, v{D+3}, v{S2} quad_perm:[3,3,3,3] {DPPALL}")
        a(f"v_add_f32 v{S}, v{S}, v{S2}")
        a(f"v_mul_f32 v{S}, s{sSc}, v{S}")
        G = 24
        for q in range(4): a(f"v_mov_b32_dpp v{G+q}, v{S} row_newbcast:{4*q} {DPPALL}")
        self.tag([G, G+1, G+2, G+3])
        self.exec_set(0x00010001, 0x00010001)
        a(f"buffer_store_dwordx4 {vr(G,4)}, v14, {W}, s{sTmp[0]} offen sc1")
        self.exec_all()
        self.stamp(3)
        self.load_wuv()
        Gq = 16
        a(f"s_lshl_b32 s{sTmp[0]}, s{sGA}, 4"); a(f"s_lshl_b32 s{sTmp[1]}, s{sW}, 2"); a(f"s_add_u32 s{sTmp[0]}, s{sTmp[0]}, s{sTmp[1]}")
        a(f"s_lshl_b32 s{sTmp[0]}, s{sTmp[0]}, 11"); a(f"s_add_u32 s{sTmp[0]}, s{sTmp[0]}, {O_QABS}")
        for i in range(1, 4): a(f"s_add_u32 s{sTmp[i]}, s{sTmp[0]}, {i*2048}")
        vA0, vB0, vAx = 52, 53, 54
        n, g = 48, 49
        a(f"v_lshrrev_b32 v{n}, 4, v{vL16}"); a(f"v_lshrrev_b32 v{g}, 4, v{n}"); a(f"v_and_b32 v{n}, 15, v{n}")
        a(f"v_and_b32 v50, 8, v{n}"); a(f"v_and_b32 v51, 3, v{n}"); a(f"v_lshl_or_b32 v50, v51, 1, v50")
        a(f"v_bfe_u32 v51, v{n}, 2, 1"); a(f"v_or_b32 v50, v50, v51")
        a(f"s_lshl_b32 s{sTmp[4]}, s{sW}, 14"); a(f"s_add_u32 s{sTmp[4]}, s{sTmp[4]}, {L_CKV}")
        a(f"v_lshlrev_b32 v51, 10, v{n}"); a(f"v_lshl_add_u32 v51, v{g}, 8, v51"); a(f"v_lshl_add_u32 v51, v50, 4, v51")
        a(f"v_add_u32 v{vA0}, s{sTmp[4]}, v51")
        a(f"v_mul_u32_u24 v{vB0}, 1040, v{n}"); a(f"v_lshl_add_u32 v{vB0}, v{g}, 8, v{vB0}"); a(f"v_add_u32 v{vB0}, {L_R0}, v{vB0}")
        a(f"v_mul_u32_u24 v51, 272, v{n}"); a(f"v_lshl_add_u32 v50, v{g}, 4, v51")
        a(f"s_lshl_b32 s{sTmp[4]}, s{sW}, 6"); a(f"s_add_u32 s{sTmp[4]}, s{sTmp[4]}, {L_ST}"); a(f"v_add_u32 v50, s{sTmp[4]}, v50")
        a(f"v_lshl_add_u32 v51, v{g}, 5, v51"); a(f"v_add_u32 v51, {L_ST}, v51")
        vC0, vC1, vX0, vX1 = 76, 77, 78, 79
        a(f"v_and_b32 v14, 3, v{n}"); a(f"v_lshrrev_b32 v15, 2, v{n}")
        a(f"v_and_b32 v55, 1, v{g}"); a(f"v_lshlrev_b32 v55, 3, v55"); a(f"v_lshl_add_u32 v55, v15, 1, v55")
        a(f"v_lshrrev_b32 v56, 1, v14"); a(f"v_xor_b32 v55, v55, v56")
        a(f"v_lshl_add_u32 v56, v{g}, 3, v15"); a(f"v_lshlrev_b32 v56, 10, v56")
        a(f"v_lshl_add_u32 v56, v55, 4, v56"); a(f"v_and_b32 v14, 1, v14"); a(f"v_lshl_add_u32 v56, v14, 3, v56")
        a(f"s_lshl_b32 s{sTmp[4]}, s{sW}, 8"); a(f"s_add_u32 s{sTmp[4]}, s{sTmp[4]}, {L_CKV}")
        a(f"v_add_u32 v{vC0}, s{sTmp[4]}, v56")
        a(f"v_add_u32 v{vC1}, 4096, v{vC0}"); a(f"v_xor_b32 v{vC1}, 16, v{vC1}")
        a(f"s_mul_i32 s{sTmp[4]}, s{sW}, {4*1040}"); a(f"s_add_u32 s{sTmp[4]}, s{sTmp[4]}, {L_R0}")
        a(f"v_lshrrev_b32 v15, 1, v{vL16}"); a(f"v_add_u32 v15, s{sTmp[4]}, v15")
        lg0 = a.newlabel("cg"); lg1 = a.newlabel("cg")
        a.label(lg0)
        a(f"s_cmp_ge_u32 s{sPos}, 16"); a(f"s_cbranch_scc1 {lg1}")
        self.stream_call()
        a(f"s_branch {lg0}")
        a.label(lg1)
        if self.sent:
            lsk = a.newlabel("nosent")
            a(f"s_cmp_lg_u32 s{sAct}, 0"); a(f"s_cbranch_scc1 {lsk}")
            a(f"v_lshlrev_b32 v14, 2, v{vL16}")
            def iss0():
                a(f"buffer_load_dwordx4 {vr(Gq,4)}, v14, {W}, s{sTmp[0]} offen sc1")
                a(f"buffer_load_dwordx4 {vr(Gq+4,4)}, v14, {W}, s{sTmp[2]} offen sc1")
            self.poll(iss0, [Gq, Gq+4], stream=False)
            a.label(lsk)
            self.stamp(15)
        def iss():
            for i in range(8):
                a(f"buffer_load_dwordx4 {vr(Gq+4*i,4)}, v{vL16}, {W}, s{sTmp[i>>1]} offen offset:{(i&1)*1024} sc1")
        self.poll(iss, [Gq+4*i for i in range(8)])
        self.stamp(4)
        for i in range(8):
            b = Gq + 4*i
            a(f"v_cvt_pk_bf16_f32 v{b}, v{b}, v{b+1}"); a(f"v_cvt_pk_bf16_f32 v{b+1}, v{b+2}, v{b+3}")
            a(f"ds_write_b64 v15, {vr(b,2)} offset:{(i>>1)*1040+(i&1)*512}")
        a("s_waitcnt lgkmcnt(0)"); a("s_barrier")
        self.stamp(16)
        if self.mode == "co" and "S" in self.xcalls: self.maybe_stream()
        AB = 16
        Ds = 56
        def rd(st):
            b = AB + 8 * (st % 4)
            if st == 0: a(f"ds_read_b128 {vr(b,4)}, v{vA0}")
            else:
                a(f"v_xor_b32 v{vAx}, {st<<4}, v{vA0}"); a(f"ds_read_b128 {vr(b,4)}, v{vAx}")
            a(f"ds_read_b128 {vr(b+4,4)}, v{vB0} offset:{st*16}")
        for st in range(4): rd(st)
        for st in range(16):
            rem = min(3, 15 - st)
            a(f"s_waitcnt lgkmcnt({2*rem})")
            b = AB + 8 * (st % 4)
            c = "0" if st == 0 else vr(Ds, 4)
            a(f"v_mfma_f32_16x16x32_bf16 {vr(Ds,4)}, {vr(b,4)}, {vr(b+4,4)}, {c}")
            if st + 4 < 16: rd(st + 4)
        a(f"ds_write_b128 v50, {vr(Ds,4)}")
        a("s_waitcnt lgkmcnt(0)"); a("s_barrier")
        self.stamp(17)
        SS = 16
        for u in range(2):
            for hf in range(2):
                a(f"ds_read_b128 {vr(SS+8*u+4*hf,4)}, v51 offset:{u*128+hf*16}")
        DT = 44; AF = 56
        m, l, t1, t2 = 32, 33, 34, 35
        a("s_waitcnt lgkmcnt(0)")
        a(f"v_max3_f32 v{m}, v{SS}, v{SS+1}, v{SS+2}"); a(f"v_max3_f32 v{t1}, v{SS+3}, v{SS+4}, v{SS+5}")
        a(f"v_max3_f32 v{m}, v{m}, v{SS+6}, v{SS+7}"); a(f"v_max3_f32 v{t1}, v{t1}, v{SS+8}, v{SS+9}")
        a(f"v_max3_f32 v{m}, v{m}, v{SS+10}, v{SS+11}"); a(f"v_max3_f32 v{t1}, v{t1}, v{SS+12}, v{SS+13}")
        a(f"v_max3_f32 v{m}, v{m}, v{SS+14}, v{SS+15}"); a(f"v_max_f32 v{m}, v{m}, v{t1}")
        for sw in ("v_permlane16_swap_b32", "v_permlane32_swap_b32"):
            a(f"v_mov_b32 v{t1}, v{m}"); a(f"{sw} v{m}, v{t1}"); a(f"v_max_f32 v{m}, v{m}, v{t1}")
        for k in range(16): a(f"v_sub_f32 v{SS+k}, v{SS+k}, v{m}")
        for k in range(16): a(f"v_exp_f32 v{SS+k}, v{SS+k}")
        P = 36
        for k in range(8): a(f"v_cvt_pk_bf16_f32 v{P+k}, v{SS+2*k}, v{SS+2*k+1}")
        for k in range(8): a(f"v_add_f32 v{SS+k}, v{SS+k}, v{SS+8+k}")
        for k in range(4): a(f"v_add_f32 v{SS+k}, v{SS+k}, v{SS+4+k}")
        a(f"v_add_f32 v{SS}, v{SS}, v{SS+1}"); a(f"v_add_f32 v{SS+2}, v{SS+2}, v{SS+3}"); a(f"v_add_f32 v{l}, v{SS}, v{SS+2}")
        self.stamp(18)
        if self.mode == "co" and "smax" in self.xcalls: self.maybe_stream()
        AF = 16
        steps = [(t, u) for t in range(8) for u in range(2)]
        def rdA(k):
            t, u = steps[k]; b = AF + 4 * (k % 4)
            if u == 0:
                if t == 0:
                    a(f"v_mov_b32 v{vX0}, v{vC0}"); a(f"v_mov_b32 v{vX1}, v{vC1}")
                else:
                    a(f"v_xor_b32 v{vX0}, {t<<5}, v{vC0}"); a(f"v_xor_b32 v{vX1}, {t<<5}, v{vC1}")
            a(f"ds_read_b64_tr_b16 {vr(b,2)}, v{vX0} offset:{u*32768}")
            a(f"ds_read_b64_tr_b16 {vr(b+2,2)}, v{vX1} offset:{u*32768}")
        for k in range(4): rdA(k)
        for sw in ("v_permlane16_swap_b32", "v_permlane32_swap_b32"):
            a(f"v_mov_b32 v{t1}, v{l}"); a(f"{sw} v{l}, v{t1}"); a(f"v_add_f32 v{l}, v{l}, v{t1}")
        a(f"v_lshrrev_b32 v14, 8, v{vL16}"); a(f"v_lshlrev_b32 v14, 17, v14"); a(f"v_and_b32 v15, 0xf0, v{vL16}"); a(f"v_add_u32 v14, v14, v15")
        a(f"s_lshl_b32 s{sTmp[0]}, s{sXG}, 20"); a(f"s_lshl_b32 s{sTmp[1]}, s{sGA}, 19"); a(f"s_add_u32 s{sTmp[0]}, s{sTmp[0]}, s{sTmp[1]}")
        a(f"s_lshl_b32 s{sTmp[1]}, s{sW}, 15"); a(f"s_add_u32 s{sTmp[0]}, s{sTmp[0]}, s{sTmp[1]}")
        a(f"s_and_b32 s{sTmp[2]}, s{sS}, 15"); a(f"s_lshl_b32 s{sTmp[1]}, s{sTmp[2]}, 9"); a(f"s_add_u32 s{sTmp[0]}, s{sTmp[0]}, s{sTmp[1]}")
        a(f"s_add_u32 s{sTmp[0]}, s{sTmp[0]}, {O_C1}")
        a(f"s_lshl_b32 s{sTmp[3]}, s{sXG}, 14"); a(f"s_lshl_b32 s{sTmp[1]}, s{sGA}, 13"); a(f"s_add_u32 s{sTmp[3]}, s{sTmp[3]}, s{sTmp[1]}")
        a(f"s_lshl_b32 s{sTmp[1]}, s{sW}, 9"); a(f"s_add_u32 s{sTmp[3]}, s{sTmp[3]}, s{sTmp[1]}")
        a(f"s_lshl_b32 s{sTmp[1]}, s{sTmp[2]}, 5"); a(f"s_add_u32 s{sTmp[3]}, s{sTmp[3]}, s{sTmp[1]}")
        a(f"s_add_u32 s{sTmp[3]}, s{sTmp[3]}, {O_ML1}")
        a(f"v_bfe_u32 v15, v{vL16}, 6, 2"); a(f"v_lshlrev_b32 v15, 11, v15")
        a(f"v_bfe_u32 v32+2, v{vL16}, 8, 1".replace("v32+2", "v34")); a(f"v_lshl_add_u32 v15, v34, 4, v15")
        MG = 76 - 0
        a(f"s_mov_b32 vcc_lo, 0xffff0000"); a("s_mov_b32 vcc_hi, 0")
        a(f"v_cndmask_b32 v34, v32, v33, vcc")
        mlops = [f"v_mov_b32_dpp v32, v34 quad_perm:[0,0,0,0] {DPPALL}", f"v_mov_b32_dpp v33, v34 quad_perm:[1,1,1,1] {DPPALL}",
                 f"v_mov_b32_dpp v35, v34 quad_perm:[3,3,3,3] {DPPALL}", f"v_mov_b32_dpp v34, v34 quad_perm:[2,2,2,2] {DPPALL}"]
        for k in range(16):
            t, u = steps[k]; b = AF + 4 * (k % 4)
            rem = min(3, 15 - k)
            a(f"s_waitcnt lgkmcnt({2*rem})")
            c = "0" if u == 0 else vr(DT+4*t, 4)
            a(f"v_mfma_f32_16x16x32_bf16 {vr(DT+4*t,4)}, {vr(P+4*u,4)}, {vr(b,4)}, {c}")
            if k + 4 < 16: rdA(k + 4)
            if k == 0:
                for x_ in mlops: a(x_)
            if k == 2: self.tag([32, 33, 34, 35])
            if u == 1 and t >= 2: self.tag([DT+4*(t-2)+r for r in range(4)])
        self.tag([DT+4*6+r for r in range(4)]); self.tag([DT+4*7+r for r in range(4)])
        self.stamp(19)
        items = []
        for t in range(8):
            def pre(t=t): a(f"s_add_u32 s{sTmp[1]}, s{sTmp[0]}, {(t>>1)*8192+(t&1)*256}")
            items.append((DT+4*t, 14, sTmp[1], pre))
        def pre_ml(): a("s_mov_b32 exec_lo, 0x11111111"); a("s_mov_b32 exec_hi, 0")
        items.append((32, 15, sTmp[3], pre_ml))
        self.local_stores(items)
        self.exec_all()
        self.stamp(5)
        G, MM, LL = 16, 48, 52
        a(f"v_lshrrev_b32 v14, 4, v{vL16}"); a(f"v_and_b32 v15, 7, v14"); a(f"v_lshrrev_b32 v14, 5, v14")
        a(f"v_lshl_add_u32 v14, v15, 1, v14"); a(f"v_lshlrev_b32 v14, 5, v14")
        a(f"s_lshl_b32 s{sTmp[0]}, s{sXG}, 5"); a(f"s_add_u32 s{sTmp[0]}, s{sTmp[0]}, s{sI}")
        a(f"s_lshl_b32 s{sTmp[2]}, s{sTmp[0]}, 9"); a(f"s_add_u32 s{sTmp[2]}, s{sTmp[2]}, {O_ML1}")
        a(f"s_lshl_b32 s{sTmp[0]}, s{sTmp[0]}, 2"); a(f"s_add_u32 s{sTmp[0]}, s{sTmp[0]}, s{sW}")
        a(f"s_lshl_b32 s{sTmp[0]}, s{sTmp[0]}, 13"); a(f"s_add_u32 s{sTmp[0]}, s{sTmp[0]}, {O_C1}")
        a(f"s_add_u32 s{sTmp[1]}, s{sTmp[0]}, 4096")
        def issML():
            a(f"buffer_load_dwordx4 {vr(MM,4)}, v14, {W}, s{sTmp[2]} offen sc1")
            a(f"buffer_load_dwordx4 {vr(LL,4)}, v14, {W}, s{sTmp[2]} offen offset:16 sc1")
        lsk = a.newlabel("noml")
        a(f"s_cmp_lg_u32 s{sAct}, 0"); a(f"s_cbranch_scc1 {lsk}")
        self.poll(issML, [MM, LL], stream=False)
        a.label(lsk)
        self.stamp(20)
        Mx, wv, den, t1 = 56, 60, 64, 68
        chk = 72
        lp = a.newlabel("sw1"); ns = a.newlabel("sw1n"); jn = a.newlabel("sw1j"); dn = a.newlabel("sw1d"); ns2 = a.newlabel("sw1m"); jn2 = a.newlabel("sw1k")
        a(f"s_mov_b32 s{sSpin}, 0")
        a.label(lp)
        issML()
        for i in range(8):
            a(f"buffer_load_dwordx4 {vr(G+4*i,4)}, v{vL16}, {W}, s{sTmp[i>>2]} offen offset:{(i&3)*1024} sc1")
        if self.mode == "co":
            a(f"s_cmp_eq_u32 s{sAct}, 0"); a(f"s_cbranch_scc1 {ns}")
            if self.once:
                a(f"s_cmp_lg_u32 s{sSpin}, 0"); a(f"s_cbranch_scc1 {ns}")
            self.stream_call()
            a(f"s_mov_b32 s{sTmp[4]}, 1")
            a(f"s_waitcnt vmcnt({8+self.kblk})")
            a(f"s_branch {jn}")
            a.label(ns)
        a(f"s_mov_b32 s{sTmp[4]}, 0")
        a("s_waitcnt vmcnt(8)")
        a.label(jn)
        for r in range(4): a(f"v_xor_b32 v{MM+r}, s{sT[r]}, v{MM+r}")
        for r in range(4): a(f"v_xor_b32 v{LL+r}, s{sT[r]}, v{LL+r}")
        a(f"v_or3_b32 v{chk}, v{MM}, v{MM+1}, v{MM+2}"); a(f"v_or3_b32 v{chk}, v{chk}, v{MM+3}, v{LL}")
        a(f"v_or3_b32 v{chk}, v{chk}, v{LL+1}, v{LL+2}"); a(f"v_or_b32 v{chk}, v{chk}, v{LL+3}")
        R4 = range(4)
        for r in R4: a(f"v_max_f32_dpp v{Mx+r}, v{MM+r}, v{MM+r} {self.X1} {DPPALL}")
        self.dpp_steps([Mx+r for r in R4], "v_max_f32", [self.X2, self.HM])
        for r in R4: a(f"v_mov_b32 v{t1+r}, v{Mx+r}")
        for r in R4: a(f"v_permlane32_swap_b32 v{Mx+r}, v{t1+r}")
        for r in R4: a(f"v_max_f32 v{Mx+r}, v{Mx+r}, v{t1+r}")
        for r in R4: a(f"v_sub_f32 v{wv+r}, v{MM+r}, v{Mx+r}")
        for r in R4: a(f"v_exp_f32 v{wv+r}, v{wv+r}")
        for r in R4: a(f"v_mul_f32 v{den+r}, v{wv+r}, v{LL+r}")
        self.dpp_steps([den+r for r in R4], "v_add_f32", [self.X1, self.X2, self.HM])
        for r in R4: a(f"v_mov_b32 v{t1+r}, v{den+r}")
        for r in R4: a(f"v_permlane32_swap_b32 v{den+r}, v{t1+r}")
        for r in R4: a(f"v_add_f32 v{den+r}, v{den+r}, v{t1+r}")
        if self.mode == "co":
            a(f"s_cmp_eq_u32 s{sTmp[4]}, 0"); a(f"s_cbranch_scc1 {ns2}")
            a(f"s_waitcnt vmcnt({self.kblk})")
            a(f"s_branch {jn2}")
            a.label(ns2)
        a("s_waitcnt vmcnt(0)")
        a.label(jn2)
        dw = [G + i for i in range(32)]
        for k, r in enumerate(dw): a(f"v_xor_b32 v{r}, s{sT[k % 4]}, v{r}")
        a(f"v_or3_b32 v{vT0}, v{dw[0]}, v{dw[1]}, v{chk}"); a(f"v_or3_b32 v{vT0+1}, v{dw[2]}, v{dw[3]}, v{dw[4]}")
        k = 5; tog = 0
        while k < 31:
            tgt = vT0 + tog
            a(f"v_or3_b32 v{tgt}, v{tgt}, v{dw[k]}, v{dw[k+1]}"); k += 2; tog ^= 1
        a(f"v_or3_b32 v{vT0}, v{vT0}, v{vT0+1}, v{dw[31]}")
        a(f"v_and_b32 v{vT0}, s{sFF}, v{vT0}")
        a(f"v_cmp_ne_u32 vcc, 0, v{vT0}")
        a(f"s_cbranch_vccz {dn}")
        a(f"s_add_u32 s{sSpin}, s{sSpin}, 1"); a(f"s_cmp_lt_u32 s{sSpin}, {SPIN_MAX}"); a(f"s_cbranch_scc1 {lp}")
        a(f"s_mov_b32 s{sErr}, 1")
        a.label(dn)
        self.stamp(6)
        acc = 48
        for i in range(8):
            for r in range(4):
                op = "v_mul_f32_dpp" if i == 0 else "v_fmac_f32_dpp"
                a(f"{op} v{acc+r}, v{wv+r}, v{G+4*i+r} row_newbcast:{i} {DPPALL}")
        a(f"v_bfe_u32 v14, v{vL16}, 8, 1"); a(f"v_lshlrev_b32 v14, 11, v14"); a(f"v_and_b32 v15, 0xf0, v{vL16}"); a(f"v_add_u32 v14, v14, v15")
        for r in R4: a(f"v_mov_b32 v{t1+r}, v{acc+r}")
        a(f"s_lshr_b32 s{sTmp[0]}, s{sI}, 2"); a(f"s_lshl_b32 s{sTmp[0]}, s{sTmp[0]}, 16")
        a(f"s_and_b32 s{sTmp[1]}, s{sI}, 3"); a(f"s_lshl_b32 s{sTmp[1]}, s{sTmp[1]}, 14"); a(f"s_add_u32 s{sTmp[0]}, s{sTmp[0]}, s{sTmp[1]}")
        for r in R4: a(f"v_permlane32_swap_b32 v{acc+r}, v{t1+r}")
        a(f"s_lshl_b32 s{sTmp[1]}, s{sW}, 12"); a(f"s_add_u32 s{sTmp[0]}, s{sTmp[0]}, s{sTmp[1]}")
        a(f"s_lshl_b32 s{sTmp[1]}, s{sXG}, 8"); a(f"s_add_u32 s{sTmp[0]}, s{sTmp[0]}, s{sTmp[1]}")
        for r in R4: a(f"v_add_f32 v{acc+r}, v{acc+r}, v{t1+r}")
        a(f"s_add_u32 s{sTmp[0]}, s{sTmp[0]}, {O_C2}")
        self.tag([acc, acc+1, acc+2, acc+3])
        a("s_mov_b32 exec_hi, 0")
        a(f"buffer_store_dwordx4 {vr(acc,4)}, v14, {W}, s{sTmp[0]} offen sc1")
        a("s_mov_b32 exec_hi, -1")
        lm = a.newlabel("ml2")
        a(f"s_and_b32 s{sTmp[1]}, s{sI}, 3"); a(f"s_or_b32 s{sTmp[1]}, s{sTmp[1]}, s{sW}"); a(f"s_cmp_lg_u32 s{sTmp[1]}, 0"); a(f"s_cbranch_scc1 {lm}")
        for r in (1, 2, 3):
            a(f"s_mov_b64 vcc, {1 << r}")
            a(f"v_cndmask_b32 v{Mx}, v{Mx}, v{Mx+r}, vcc"); a(f"v_cndmask_b32 v{den}, v{den}, v{den+r}, vcc")
        a(f"v_mov_b32 v{Mx+1}, v{den}"); a(f"v_mov_b32 v{Mx+2}, 0"); a(f"v_mov_b32 v{Mx+3}, 0")
        self.tag([Mx, Mx+1, Mx+2, Mx+3])
        a(f"s_lshl_b32 s{sTmp[1]}, s{sI}, 7"); a(f"s_lshl_b32 s{sTmp[2]}, s{sXG}, 4"); a(f"s_add_u32 s{sTmp[1]}, s{sTmp[1]}, s{sTmp[2]}")
        a(f"s_add_u32 s{sTmp[1]}, s{sTmp[1]}, {O_ML2}")
        a(f"v_lshlrev_b32 v15, 3, v{vL16}")
        a("s_mov_b64 exec, 15")
        a(f"buffer_store_dwordx4 {vr(Mx,4)}, v15, {W}, s{sTmp[1]} offen sc1")
        self.exec_all()
        a.label(lm)
        self.stamp(21)
        self.load_wo(pWoA)
        G0, G1, M0, M1 = 16, 20, 24, 28
        a(f"v_bfe_u32 v15, v{vL16}, 6, 2")
        a(f"v_bfe_u32 v14, v{vL16}, 4, 2"); a(f"v_lshlrev_b32 v14, 2, v14"); a(f"v_lshrrev_b32 v32, 8, v{vL16}"); a(f"v_add_u32 v14, v14, v32")
        a(f"v_lshlrev_b32 v14, 4, v14"); a(f"v_lshl_add_u32 v14, v15, 8, v14")
        a(f"v_lshlrev_b32 v15, 4, v15")
        a(f"s_lshr_b32 s{sTmp[0]}, s{sH}, 2"); a(f"s_lshl_b32 s{sTmp[0]}, s{sTmp[0]}, 16"); a(f"s_lshl_b32 s{sTmp[1]}, s{sJ}, 13"); a(f"s_add_u32 s{sTmp[0]}, s{sTmp[0]}, s{sTmp[1]}")
        a(f"s_lshl_b32 s{sTmp[1]}, s{sW}, 11"); a(f"s_add_u32 s{sTmp[0]}, s{sTmp[0]}, s{sTmp[1]}"); a(f"s_add_u32 s{sTmp[0]}, s{sTmp[0]}, {O_C2}")
        a(f"s_lshl_b32 s{sTmp[2]}, s{sH}, 7"); a(f"s_add_u32 s{sTmp[2]}, s{sTmp[2]}, {O_ML2}")
        def iss2():
            a(f"buffer_load_dwordx4 {vr(M0,4)}, v15, {W}, s{sTmp[2]} offen sc1")
            a(f"buffer_load_dwordx4 {vr(M1,4)}, v15, {W}, s{sTmp[2]} offen offset:64 sc1")
            a(f"buffer_load_dwordx4 {vr(G0,4)}, v14, {W}, s{sTmp[0]} offen sc1")
            a(f"buffer_load_dwordx4 {vr(G1,4)}, v14, {W}, s{sTmp[0]} offen offset:1024 sc1")
        self.poll(iss2, [M0, M1, G0, G1])
        self.stamp(14)
        lsel = [a.newlabel("sel") for _ in range(4)]; lj = a.newlabel("selj")
        Mx, f0, f1, Ls = 32, 33, 34, 35
        a(f"v_max_f32 v{Mx}, v{M0}, v{M1}")
        a(f"s_and_b32 s{sTmp[1]}, s{sH}, 3")
        for r in (1, 2, 3):
            a(f"s_cmp_eq_u32 s{sTmp[1]}, {r}"); a(f"s_cbranch_scc1 {lsel[r]}")
        a(f"s_branch {lj}")
        for r in (1, 2, 3):
            a.label(lsel[r])
            a(f"v_mov_b32 v{G0}, v{G0+r}"); a(f"v_mov_b32 v{G1}, v{G1+r}")
            if r < 3: a(f"s_branch {lj}")
        a.label(lj)
        self.dpp_steps([Mx], "v_max_f32", ["row_ror:4", "row_ror:8"])
        a(f"v_sub_f32 v{f0}, v{M0}, v{Mx}"); a(f"v_sub_f32 v{f1}, v{M1}, v{Mx}")
        a(f"v_exp_f32 v{f0}, v{f0}"); a(f"v_exp_f32 v{f1}, v{f1}")
        a(f"v_mul_f32 v{Ls}, v{f0}, v{M0+1}"); a(f"v_mul_f32 v{G0}, v{f0}, v{G0}")
        a(f"v_fmac_f32 v{Ls}, v{f1}, v{M1+1}"); a(f"v_fmac_f32 v{G0}, v{f1}, v{G1}")
        self.dpp_steps([Ls, G0], "v_add_f32", ["row_ror:4", "row_ror:8"])
        a(f"v_rcp_f32 v{Ls}, v{Ls}")
        a(f"v_mul_f32 v{G0}, v{G0}, v{Ls}")
        Xp = 14
        a(f"v_cvt_pk_bf16_f32 v{Xp}, v{G0}, v{G0}")
        D, Ab = 16, 20
        self.pv_gemv(Xp, 4, lambda i: vr(WUV+4*i, 4), D, Ab)
        self.red_write(D)
        self.row_slot_addr()
        a("s_waitcnt lgkmcnt(0)"); a("s_barrier")
        lf = a.newlabel("uvfin")
        a(f"s_cmp_lg_u32 s{sW}, 0"); a(f"s_cbranch_scc1 {lf}")
        G = 16
        self.red_final_read(G)
        a(f"s_mov_b32 s{sA}, {f32hex(0.125)}")
        a("s_waitcnt lgkmcnt(0)")
        self.sum4(G)
        a(f"v_writelane_b32 v{G}, 0, 32"); a(f"v_writelane_b32 v{G+1}, s{sA}, 32")
        self.tag([G, G+1, G+2, G+3])
        a("s_mov_b32 exec_hi, 1")
        self.local_stores([(G, vL16, sTmp[0], None)])
        a("s_mov_b32 exec_hi, -1")
        a.label(lf)
        self.stamp(7)

    def check_inline(self, regs, ok_label):
        a = self.a
        acc, acc2 = vT0, vT0 + 1
        dw = [g + i for g in regs for i in range(4)]
        for k, r in enumerate(dw): a(f"v_xor_b32 v{r}, s{sT[k % 4]}, v{r}")
        a(f"v_or3_b32 v{acc}, v{dw[0]}, v{dw[1]}, v{dw[2]}")
        a(f"v_or3_b32 v{acc2}, v{dw[3]}, v{dw[4]}, v{dw[5]}")
        k = 6; tog = 0
        while k < len(dw):
            tgt = acc if tog == 0 else acc2
            a(f"v_or3_b32 v{tgt}, v{tgt}, v{dw[k]}, v{dw[k+1]}"); k += 2; tog ^= 1
        a(f"v_or_b32 v{acc}, v{acc}, v{acc2}")
        a(f"v_and_b32 v{acc}, s{sFF}, v{acc}")
        a(f"v_cmp_ne_u32 vcc, 0, v{acc}")
        a(f"s_cbranch_vccz {ok_label}")

    def row_slot_addr(self):
        a = self.a
        a(f"s_lshl_b32 s{sTmp[0]}, s{sH}, 3"); a(f"s_add_u32 s{sTmp[0]}, s{sTmp[0]}, s{sJ}"); a(f"s_lshl_b32 s{sTmp[0]}, s{sTmp[0]}, 10")
        a(f"s_add_u32 s{sTmp[0]}, s{sTmp[0]}, {O_ROW}")

    def bmiddle(self):
        a = self.a
        k = self.kblk
        if self.mode == "co":
            l0 = a.newlabel("kw"); l1 = a.newlabel("kw")
            a(f"s_cmp_ge_u32 s{sPos}, {80+k}"); a(f"s_cbranch_scc1 {l1}")
            a.label(l0)
            self.stream_call()
            a(f"s_waitcnt vmcnt({k})")
            a(f"s_cmp_lt_u32 s{sPos}, {80+k}"); a(f"s_cbranch_scc1 {l0}")
            a.label(l1)
        self.stamp(16)
        self.wo_setup(pWoB)
        Db = [16, 20, 24]; SB = 28; Tt = 14
        def redops(b):
            D = Db[b % 3]; S = SB + b
            return [f"v_mov_b32_dpp v{S}, v{D} quad_perm:[0,0,0,0] {DPPALL}",
                    f"v_mov_b32_dpp v{Tt}, v{D+2} quad_perm:[2,2,2,2] {DPPALL}",
                    f"v_add_f32_dpp v{S}, v{D+1}, v{S} quad_perm:[1,1,1,1] {DPPALL}",
                    f"v_add_f32_dpp v{Tt}, v{D+3}, v{Tt} quad_perm:[3,3,3,3] {DPPALL}",
                    f"v_add_f32 v{S}, v{S}, v{Tt}"]
        for b in range(16):
            D = Db[b % 3]
            ro = redops(b - 2) if b >= 2 else []
            for t in range(4):
                c = "0" if t == 0 else vr(D, 4)
                a(f"v_mfma_f32_16x16x32_bf16 {vr(D,4)}, {vr(AT+4*t,4)}, {ar(16*b+4*t,4)}, {c}")
                if ro: a(ro[t])
                if t == 1 and b < 8: self.pf_guard(lambda: self.vtr_one(b))
                if t == 2 and 8 <= b < 14: self.pf_guard(lambda: self.wo_one(b - 8))
            if ro: a(ro[4])
            if self.mode == "co" and b in self.qkcalls: self.maybe_stream()
        r14, r15 = redops(14), redops(15)
        r15 = [x.replace(f"v{Tt}", "v15") for x in r15]
        for x14, x15 in zip(r14, r15):
            a(x14); a(x15)
        self.stamp(3)
        m, m2 = 14, 15
        a(f"v_max3_f32 v{m}, v{SB}, v{SB+1}, v{SB+2}"); a(f"v_max3_f32 v{m2}, v{SB+3}, v{SB+4}, v{SB+5}")
        a(f"v_max3_f32 v{m}, v{m}, v{SB+6}, v{SB+7}"); a(f"v_max3_f32 v{m2}, v{m2}, v{SB+8}, v{SB+9}")
        a(f"v_max3_f32 v{m}, v{m}, v{SB+10}, v{SB+11}"); a(f"v_max3_f32 v{m2}, v{m2}, v{SB+12}, v{SB+13}")
        a(f"v_max3_f32 v{m}, v{m}, v{SB+14}, v{SB+15}"); a(f"v_max_f32 v{m}, v{m}, v{m2}")
        self.dpp_steps([m], "v_max_f32", ["row_ror:4", "row_ror:8", "b15", "b31"])
        a(f"v_readlane_b32 s{sA}, v{m}, 63")
        a(f"v_mov_b32 v{m2}, s{sSc}")
        a(f"v_mul_f32 v{m}, s{sA}, v{m2}")
        a(f"v_readfirstlane_b32 s{sA}, v{m}")
        for q in range(16): a(f"v_fma_f32 v{SB+q}, v{SB+q}, s{sSc}, -v{m}")
        for q in range(16): a(f"v_exp_f32 v{SB+q}, v{SB+q}")
        l, l2 = 14, 15
        a(f"v_add_f32 v{l}, v{SB}, v{SB+1}"); a(f"v_add_f32 v{l2}, v{SB+2}, v{SB+3}")
        for q in range(4, 16, 2):
            a(f"v_add_f32 v{l}, v{l}, v{SB+q}"); a(f"v_add_f32 v{l2}, v{l2}, v{SB+q+1}")
        a(f"v_add_f32 v{l}, v{l}, v{l2}")
        pk = [f"v_cvt_pk_bf16_f32 v{SB+q}, v{SB+q}, v{SB+q}" for q in range(16)]
        red = [f"v_add_f32_dpp v{l}, v{l}, v{l} row_ror:4 {DPPALL}", f"v_add_f32_dpp v{l}, v{l}, v{l} row_ror:8 {DPPALL}",
               f"v_add_f32_dpp v{l}, v{l}, v{l} row_bcast:15 row_mask:0xa bank_mask:0xf", f"v_add_f32_dpp v{l}, v{l}, v{l} row_bcast:31 row_mask:0xc bank_mask:0xf"]
        for i in range(4):
            for x_ in pk[4*i:4*i+2]: a(x_)
            a(red[i])
            for x_ in pk[4*i+2:4*i+4]: a(x_)
        a(f"v_readlane_b32 s{sB_}, v{l}, 63")
        self.stamp(4)
        if self.mode == "co": self.drain(k)
        Ab, Do = 44, 52
        LB = [16, 20, 24, 56]
        a(f"s_lshl_b32 s{sTmp[0]}, s{sW}, 14"); a(f"v_add_u32 v15, s{sTmp[0]}, v{vL16}")
        if L_VL: a(f"v_add_u32 v15, {L_VL}, v15")
        order = [(b, u) for b in range(10) for u in range(4)] + [(b, u) for b in range(10, 14) for u in range(4)] + [(b, u) for b in (14, 15) for u in range(4)]
        def build(kk):
            b, u = order[kk]; A = Ab + 4 * (kk % 2)
            for r in range(4):
                a(f"v_and_b32_dpp v{A+r}, v{SB+b}, v{vM[r]} row_newbcast:{4*u} {DPPALL}")
        def bop(kk):
            b, u = order[kk]
            if b < 10: return vr(VRES+16*b+4*u, 4)
            if b < 14: return vr(LB[u], 4)
            return vr(VTR+16*(b-14)+4*u, 4)
        def ldsrd(b, u):
            a(f"ds_read_b128 {vr(LB[u],4)}, v15 offset:{((b-10)*4+u)*1024}")
        build(0); build(1)
        for kk in range(len(order)):
            b, u = order[kk]
            if (b, u) == (8, 0):
                self.stamp(17)
                a("s_waitcnt vmcnt(0)")
                self.stamp(18)
                for uu in range(4): ldsrd(10, uu)
            if 10 <= b < 14: a(f"s_waitcnt lgkmcnt(3)" if not (b == 13 and u > 0) else f"s_waitcnt lgkmcnt({3-u})")
            A = Ab + 4 * (kk % 2)
            c = "0" if kk == 0 else vr(Do, 4)
            a(f"v_mfma_f32_16x16x32_bf16 {vr(Do,4)}, {vr(A,4)}, {bop(kk)}, {c}")
            if 10 <= b < 13: ldsrd(b + 1, u)
            if kk + 2 < len(order): build(kk + 2)
        self.row_slot_addr()
        a(f"v_writelane_b32 v{Do}, s{sA}, 32"); a(f"v_writelane_b32 v{Do+1}, s{sB_}, 32")
        self.red_write(Do)
        a("s_waitcnt lgkmcnt(0)"); a("s_barrier")
        self.stamp(5)
        lf = a.newlabel("bfin")
        a(f"s_cmp_lg_u32 s{sW}, 0"); a(f"s_cbranch_scc1 {lf}")
        G = 16; MLr = 32
        a(f"v_mov_b32 v14, {L_RED+512}")
        for w in range(4): a(f"ds_read_b64 {vr(MLr+2*w,2)}, v14 offset:{w*RSTR}")
        self.red_final_read(G)
        a("s_waitcnt lgkmcnt(4)")
        M = 40
        a(f"v_max3_f32 v{M}, v{MLr}, v{MLr+2}, v{MLr+4}"); a(f"v_max_f32 v{M}, v{M}, v{MLr+6}")
        for w in range(4): a(f"v_sub_f32 v{MLr+2*w}, v{MLr+2*w}, v{M}")
        for w in range(4): a(f"v_exp_f32 v{MLr+2*w}, v{MLr+2*w}")
        a(f"v_readfirstlane_b32 s{sA}, v{M}")
        a("s_waitcnt lgkmcnt(0)")
        for r in range(4): a(f"v_mul_f32 v{G+r}, v{MLr}, v{G+r}")
        for w in range(1, 4):
            for r in range(4): a(f"v_fmac_f32 v{G+r}, v{MLr+2*w}, v{G+4*w+r}")
        a(f"v_writelane_b32 v{G}, s{sA}, 32")
        self.tag([G, G+1, G+2, G+3])
        a("s_mov_b32 exec_hi, 1")
        self.local_stores([(G, vL16, sTmp[0], None)])
        a("s_mov_b32 exec_hi, -1")
        a.label(lf)
        self.stamp(7)

    def opart(self):
        a = self.a
        G, ML = 16, 20
        a(f"v_lshrrev_b32 v14, 7, v{vL16}"); a(f"v_lshlrev_b32 v15, 10, v14")
        a(f"v_and_b32 v14, 0x70, v{vL16}"); a(f"v_add_u32 v14, v15, v14")
        a(f"s_lshl_b32 s{sTmp[0]}, s{sH}, 13"); a(f"s_add_u32 s{sTmp[0]}, s{sTmp[0]}, {O_ROW}")
        a(f"s_lshl_b32 s{sTmp[1]}, s{sW}, 7"); a(f"s_add_u32 s{sTmp[1]}, s{sTmp[1]}, s{sTmp[0]}")
        a(f"v_lshrrev_b32 v60, 8, v{vL16}"); a(f"v_mul_u32_u24 v60, 160, v60")
        a(f"v_and_b32 v61, 0xf0, v{vL16}"); a(f"v_add_u32 v60, v60, v61")
        a(f"s_mul_i32 s{sTmp[2]}, s{sW}, {32*160}"); a(f"s_add_u32 s{sTmp[2]}, s{sTmp[2]}, {L_R0}"); a(f"v_add_u32 v60, s{sTmp[2]}, v60")
        def iss():
            a(f"buffer_load_dwordx4 {vr(ML,4)}, v15, {W}, s{sTmp[0]} offen offset:512 sc1")
            a(f"buffer_load_dwordx4 {vr(G,4)}, v14, {W}, s{sTmp[1]} offen sc1")
        self.poll(iss, [ML, G])
        self.stamp(8)
        WB = 24
        for i in range(8): a(f"ds_read_b128 {vr(WB+4*i,4)}, v60 offset:{i*640}")
        self.combine8(G, ML, 56)
        Xp = 14
        a(f"v_cvt_pk_bf16_f32 v{Xp}, v{G}, v{G}")
        D, Ab = 16, 56
        a("s_waitcnt lgkmcnt(0)")
        self.pv_gemv(Xp, 8, lambda i: vr(WB+4*i, 4), D, Ab)
        self.red_write(D)
        a(f"v_lshrrev_b32 v14, 4, v{vL16}"); a(f"v_mul_u32_u24 v15, 13108, v14"); a(f"v_lshrrev_b32 v15, 16, v15")
        a(f"v_mul_u32_u24 v24, 5, v15"); a(f"v_sub_u32 v14, v14, v24"); a(f"v_lshlrev_b32 v14, 4, v14"); a(f"v_lshl_add_u32 v14, v15, 7, v14")
        a(f"s_lshl_b32 s{sTmp[0]}, s{sJ}, 5"); a(f"s_add_u32 s{sTmp[0]}, s{sTmp[0]}, s{sH}"); a(f"s_lshl_b32 s{sTmp[0]}, s{sTmp[0]}, 9")
        a(f"s_add_u32 s{sTmp[0]}, s{sTmp[0]}, s{sCol}")
        a("s_waitcnt lgkmcnt(0)"); a("s_barrier")
        lf = a.newlabel("ofin")
        a(f"s_cmp_lg_u32 s{sW}, 0"); a(f"s_cbranch_scc1 {lf}")
        self.red_final_read(G)
        a("s_waitcnt lgkmcnt(0)")
        self.sum4(G); self.tag([G, G+1, G+2, G+3])
        self.exec_set(0xfffff, 0)
        a(f"buffer_store_dwordx4 {vr(G,4)}, v14, {W}, s{sTmp[0]} offen sc1")
        self.exec_all()
        a.label(lf)
        self.stamp(9)
        lnp = a.newlabel("nopf"); lb = a.newlabel("nouk")
        a(f"s_cmp_eq_u32 s{sL}, 3"); a(f"s_cbranch_scc1 {lnp}")
        a(f"s_add_u32 s{sL}, s{sL}, 1")
        self.load_wq()
        a(f"s_bitcmp1_b32 s{sL}, 0"); a(f"s_cbranch_scc1 {lb}")
        self.load_wuk()
        a.label(lb)
        a(f"s_sub_u32 s{sL}, s{sL}, 1")
        a.label(lnp)
        a(f"v_lshrrev_b32 v14, 7, v{vL16}"); a(f"v_lshlrev_b32 v14, 9, v14")
        a(f"v_and_b32 v15, 0x70, v{vL16}"); a(f"v_add_u32 v14, v14, v15")
        a(f"s_lshl_b32 s{sTmp[0]}, s{sJ}, 14"); a(f"s_lshl_b32 s{sTmp[1]}, s{sW}, 7"); a(f"s_add_u32 s{sTmp[0]}, s{sTmp[0]}, s{sTmp[1]}")
        a(f"s_add_u32 s{sTmp[0]}, s{sTmp[0]}, s{sCol}")
        for i in range(1, 4): a(f"s_add_u32 s{sTmp[i]}, s{sTmp[0]}, {i*4096}")
        def issc():
            for i in range(4):
                a(f"buffer_load_dwordx4 {vr(G+4*i,4)}, v14, {W}, s{sTmp[i]} offen sc1")
        self.poll(issc, [G, G+4, G+8, G+12], execmask=(0x1f1f1f1f, 0x1f1f1f1f))
        self.stamp(10)
        self.sum4(G)
        for r in range(4): a(f"v_add_f32_dpp v{G+r}, v{G+r}, v{G+r} row_ror:8 {DPPALL}")
        self.treduce([G, G+1, G+2, G+3])
        a(f"v_add_f32 v{G}, v{G}, v{vX}")
        a(f"v_cndmask_b32 v{vX}, 0, v{G}, s[{sM5}:{sM5+1}]")

    def epilogue(self):
        a = self.a
        le = a.newlabel("fin")
        a(f"s_cmp_lg_u32 s{sH}, 0"); a(f"s_cbranch_scc1 {le}")
        self.srd(SRD_B, pOut, 1280)
        a(f"v_lshrrev_b32 v14, 4, v{vL16}"); a(f"v_and_b32 v15, 15, v14"); a(f"v_lshrrev_b32 v14, 4, v14")
        a(f"v_lshl_add_u32 v14, v15, 2, v14")
        a(f"s_mul_i32 s{sTmp[0]}, s{sJ}, 80"); a(f"s_mul_i32 s{sTmp[1]}, s{sW}, 20"); a(f"s_add_u32 s{sTmp[0]}, s{sTmp[0]}, s{sTmp[1]}")
        a(f"v_add_u32 v14, s{sTmp[0]}, v14"); a(f"v_lshlrev_b32 v14, 1, v14")
        a(f"v_cvt_pk_bf16_f32 v15, v{vX}, v{vX}")
        a(f"s_mov_b64 exec, s[{sM5}:{sM5+1}]")
        a(f"buffer_store_short v15, v14, s[{SRD_B}:{SRD_B+3}], 0 offen")
        self.exec_all()
        a(f"s_cmp_lg_u32 s2, 0"); a(f"s_cbranch_scc1 {le}")
        a(f"s_cmp_lg_u32 s{sW}, 0"); a(f"s_cbranch_scc1 {le}")
        a(f"v_mov_b32 v14, 0")
        a("s_mov_b64 exec, 1")
        a(f"buffer_store_dword v{vT}, v14, {W}, 0 offen sc1")
        self.exec_all()
        a.label(le)
        l2 = a.newlabel("noerr")
        a(f"s_cmp_eq_u32 s{sErr}, 0"); a(f"s_cbranch_scc1 {l2}")
        self.srd(SRD_B, sDbg, 256)
        a(f"v_mov_b32 v14, 0"); a(f"v_mov_b32 v15, 0xdead")
        a("s_mov_b64 exec, 1")
        a(f"buffer_store_dword v15, v14, s[{SRD_B}:{SRD_B+3}], 0 offen")
        self.exec_all()
        a.label(l2)

    def build(self):
        a = self.a
        self.prologue()
        a.label("L_layer")
        self.qpart()
        a(f"s_bitcmp1_b32 s{sL}, 0"); a(f"s_cbranch_scc1 L_bmid")
        self.amiddle()
        a(f"s_branch L_opart")
        a.label("L_bmid")
        self.bmiddle()
        a.label("L_opart")
        self.opart()
        self.stamp(11)
        a(f"s_add_u32 s{sL}, s{sL}, 1"); a(f"s_xor_b32 s{sCol}, s{sCol}, 0x20000")
        nl = self.stop if self.stop else 4
        a(f"s_cmp_ge_u32 s{sL}, {nl}"); a("s_cbranch_scc1 L_done")
        self.next_tag()
        a("s_branch L_layer")
        a.label("L_done")
        self.epilogue()
        if self.stamps:
            a(f"s_mov_b32 s{sL}, 3")
            self.stamp(13)
        a("s_waitcnt vmcnt(0)")
        a.label("L_end")
        a("s_endpgm")
        self.stream()
        a.label("L_codeend")
        return fix(a.lines)

HEADER = open("interleave_layers__compressed_kv_cla__mha_block_cached__decode.s.ref").read().split("; Override launch")[0]

def make(path, **kw):
    body = "\n".join(Gen(**kw).build())
    src = f"""{HEADER}; @launch grid=(256,1,1) block=(256,1,1) lds={LDS_BYTES}
.amdgcn_target "amdgcn-amd-amdhsa--gfx950"
.text
.globl {KNAME}
.p2align 8
.type {KNAME},@function
{KNAME}:
{body}
.section .rodata,"a"
.p2align 6
.amdhsa_kernel {KNAME}
  .amdhsa_next_free_vgpr 512
  .amdhsa_next_free_sgpr 102
  .amdhsa_accum_offset 256
  .amdhsa_group_segment_fixed_size 0
  .amdhsa_kernarg_size 112
  .amdhsa_user_sgpr_count 2
  .amdhsa_user_sgpr_kernarg_segment_ptr 1
  .amdhsa_system_sgpr_workgroup_id_x 1
  .amdhsa_float_denorm_mode_32 3
.end_amdhsa_kernel
"""
    open(path, "w").write(src)

if __name__ == "__main__":
    import argparse
    ap = argparse.ArgumentParser()
    ap.add_argument("-o", default="k.s"); ap.add_argument("--opts", default="")
    x = ap.parse_args()
    kw = {}
    for o in filter(None, x.opts.split(";")):
        k_, v_ = o.split("="); kw[k_] = eval(v_)
    make(x.o, **kw)
```

```python
import sys, struct
from hazard import fix

KNAME = "interleave_layers__compressed_kv_cla__mha_block_cached__decode_kernel"

class Asm:
    def __init__(self): self.lines = []; self.n = 0
    def __call__(self, s):
        for l in s.split("\n"):
            l = l.strip()
            if l: self.lines.append(l)
    def label(self, name): self.lines.append(name + ":")
    def newlabel(self, base="L"):
        self.n += 1; return f"{base}_{self.n}"

def vr(b, n=1): return f"v{b}" if n == 1 else f"v[{b}:{b+n-1}]"
def ar(b, n=1): return f"a{b}" if n == 1 else f"a[{b}:{b+n-1}]"
DPPALL = "row_mask:0xf bank_mask:0xf"
def f32hex(x): return "0x%08x" % struct.unpack("<I", struct.pack("<f", x))[0]

O_XCC  = 0x001000
O_STAMP = 0x080000
O_QP   = 0x100000
O_ROW  = 0x180000
O_COL  = 0x1C0000
O_QABS = 0x200000
O_ML1  = 0x210000
O_C2   = 0x240000
O_ML2  = 0x2C0000
O_C1   = 0x300000

L_VL  = 0
L_CKV = 65536
L_R0  = 131072
L_ST  = 151680
L_RED = 156032
RSTR  = 1056
L_U   = 160256
LDS_BYTES = 163840

sH, sJ, sW, sL, sAct = 3, 4, 5, 6, 7
SRD_WS, SRD_K, SRD_V, SRD_A, SRD_B = 8, 12, 16, 20, 24
sSPC, sRET = 28, 30
sT = [32, 33, 34, 35]
sSel = [36, 37, 38, 39]
pWqA, pWqB, pWuk, pWuv, pWoA, pWoB, pCkv, pOut, pX = 40, 42, 44, 46, 48, 50, 52, 54, 56
sCol = 58
sGA, sS = 59, 60
sSO = 61
sSpin = 62
sPos = 63
sFF = 64
sTmp = list(range(65, 76))
sMask = [76, 78, 80, 82]
sM5 = 84
sDbg = 86
sErr = 88
sLocal = 89
sA, sB_ = 90, 91
sTs = 92
sXG, sI, sSc, sXcc = 98, 99, 100, 101
sTf = 97
sDW, sRET2, sYoung, sVm, sVm2, sDl = 70, 72, 74, 75, 94, 95

vL16, vM, vT, vX, vWoff, vKoff, vVoff, vRedW = 0, [1, 2, 3, 4], 5, 6, 7, 8, 9, 10
vT0 = 11
vCk = 11
vWo = 13
WQ, WUK, WUV, VTR, VRES = 76, 60, 80, 64, 96
AT = 44

SC = (128 ** -0.5) * 1.4426950408889634
SPIN_MAX = 1 << 16
W = f"s[{SRD_WS}:{SRD_WS+3}]"

class Gen:
    def __init__(self, kblk=8, stream_mode="co", stop_after=None, local=True, stamps="", pol="nt", wpol="", cpol="", codepf=True,
                 qkcalls=(4, 10), sent=True, nopf=False, once=True, xcalls=(), dlim=6, keep=6, addn=True, pretouch=True, mlsent=True, slp=0, sent1=False, pfnew=True, mltail=True, dsite=None, pre=None, rsl=None, dq=None):
        self.pre = pre or {}; self.rsl = rsl or {}; self.dq = dq
        self.pfnew = pfnew; self.mltail = mltail; self.dsite = dsite or {}
        self.slp = slp; self.sent1 = sent1
        self.addn = addn; self.pretouch = pretouch; self.mlsent = mlsent
        self.once = once; self.xcalls = xcalls; self.dlim = dlim; self.keep = keep
        self.nopf = nopf
        self.a = Asm(); self.kblk = kblk; self.mode = stream_mode; self.stop = stop_after
        self.local = local; self.stamps = stamps; self.pol = pol; self.wpol = wpol; self.cpol = cpol; self.codepf = codepf
        self.qkcalls = qkcalls; self.sent = sent

    def srd(self, s, lo, nbytes):
        a = self.a
        a(f"s_mov_b32 s{s}, s{lo}"); a(f"s_mov_b32 s{s+1}, s{lo+1}")
        a(f"s_mov_b32 s{s+2}, {nbytes:#x}"); a(f"s_mov_b32 s{s+3}, 0x20000")
    def exec_all(self): self.a("s_mov_b64 exec, -1")
    def exec_set(self, lo, hi):
        self.a(f"s_mov_b32 exec_lo, {lo:#x}"); self.a(f"s_mov_b32 exec_hi, {hi:#x}")
    def tag(self, regs):
        for i, r in enumerate(regs):
            self.a(f"v_perm_b32 v{r}, v{r}, v{vT}, s{sSel[i%4]}")
    def stamp(self, idx):
        if not self.stamps: return
        if self.stamps == "light" and idx not in (12, 13): return
        a = self.a
        lab = a.newlabel("st")
        a(f"s_cmp_lg_u32 s{sW}, 0"); a(f"s_cbranch_scc1 {lab}")
        a(f"s_memrealtime s[{sTs}:{sTs+1}]")
        a("s_waitcnt lgkmcnt(0)")
        a(f"s_lshl_b32 s96, s2, 2"); a(f"s_add_u32 s96, s96, s{sL}"); a(f"s_lshl_b32 s96, s96, 7")
        a(f"s_add_u32 s96, s96, {O_STAMP + idx*4}")
        a(f"v_mov_b32 v{vT0}, s{sTs}")
        a(f"v_mov_b32 v{vT0+1}, 0")
        a(f"s_mov_b64 s[{sTs}:{sTs+1}], exec"); a("s_mov_b64 exec, 1")
        a(f"buffer_store_dword v{vT0}, v{vT0+1}, {W}, s96 offen")
        a(f"s_mov_b64 exec, s[{sTs}:{sTs+1}]")
        a.label(lab)
    def stampval(self, idx, sreg):
        if self.stamps != "full": return
        a = self.a
        lab = a.newlabel("sv")
        a(f"s_cmp_lg_u32 s{sW}, 0"); a(f"s_cbranch_scc1 {lab}")
        a(f"s_lshl_b32 s96, s2, 2"); a(f"s_add_u32 s96, s96, s{sL}"); a(f"s_lshl_b32 s96, s96, 7")
        a(f"s_add_u32 s96, s96, {O_STAMP + idx*4}")
        a(f"v_mov_b32 v{vT0}, s{sreg}")
        a(f"v_mov_b32 v{vT0+1}, 0")
        a(f"s_mov_b64 s[{sTs}:{sTs+1}], exec"); a("s_mov_b64 exec, 1")
        a(f"buffer_store_dword v{vT0}, v{vT0+1}, {W}, s96 offen")
        a(f"s_mov_b64 exec, s[{sTs}:{sTs+1}]")
        a.label(lab)
    def stream_call(self):
        self.a(f"s_swappc_b64 s[{sRET}:{sRET+1}], s[{sSPC}:{sSPC+1}]")
    def maybe_stream(self):
        a = self.a
        lab = a.newlabel("ns")
        a(f"s_cmp_eq_u32 s{sAct}, 0"); a(f"s_cbranch_scc1 {lab}")
        self.stream_call()
        a.label(lab)
    def read_vm(self):
        a = self.a
        a(f"s_getreg_b32 s{sVm}, hwreg(HW_REG_IB_STS)")
        a(f"s_bfe_u32 s{sVm2}, s{sVm}, 0x20016"); a(f"s_and_b32 s{sVm}, s{sVm}, 15")
        a(f"s_lshl4_add_u32 s{sVm}, s{sVm2}, s{sVm}")
    def dw_sub(self):
        a = self.a
        a.label("L_dw")
        self.read_vm()
        a(f"s_cmp_le_u32 s{sVm}, s{sYoung}"); a("s_cbranch_scc1 L_dwret")
        a(f"s_cmp_ge_u32 s{sVm}, s{sDl}"); a("s_cbranch_scc1 L_dw")
        a(f"s_cmp_eq_u32 s{sAct}, 0"); a("s_cbranch_scc1 L_dw")
        self.stream_call()
        a(f"s_add_u32 s{sYoung}, s{sYoung}, {self.kblk}")
        a("s_branch L_dw")
        a.label("L_dwret")
        a(f"s_setpc_b64 s[{sRET2}:{sRET2+1}]")
    def dwait(self, young, n=0, site=None):
        dl = self.dsite.get(site, self.dlim)
        a = self.a
        if self.mode != "co":
            a(f"s_waitcnt vmcnt({young})"); return
        ns = a.newlabel("dwn"); jn = a.newlabel("dwj")
        a(f"s_cmp_eq_u32 s{sAct}, 0"); a(f"s_cbranch_scc1 {ns}")
        a(f"s_mov_b32 s{sYoung}, {young}"); a(f"s_mov_b32 s{sDl}, {dl + n if dl else 0}")
        a(f"s_swappc_b64 s[{sRET2}:{sRET2+1}], s[{sDW}:{sDW+1}]")
        a(f"s_branch {jn}")
        a.label(ns)
        a(f"s_waitcnt vmcnt({young})")
        a.label(jn)
    def topup(self, depth=None):
        if self.mode != "co": return
        depth = self.dlim if depth is None else depth
        a = self.a
        lab = a.newlabel("tu")
        a(f"s_cmp_eq_u32 s{sAct}, 0"); a(f"s_cbranch_scc1 {lab}")
        self.read_vm()
        a(f"s_cmp_ge_u32 s{sVm}, {depth}"); a(f"s_cbranch_scc1 {lab}")
        self.stream_call()
        a.label(lab)
    def drain(self, keep):
        a = self.a
        l0 = a.newlabel("drain"); l1 = a.newlabel("drained")
        a.label(l0)
        a(f"s_cmp_eq_u32 s{sAct}, 0"); a(f"s_cbranch_scc1 {l1}")
        self.stream_call()
        a(f"s_waitcnt vmcnt({keep})")
        a(f"s_branch {l0}")
        a.label(l1)

    def poll(self, issue, regs, execmask=None, stream=True, site=None):
        a = self.a
        lp = a.newlabel("poll"); ns = a.newlabel("pns"); jn = a.newlabel("pj"); dn = a.newlabel("pdone")
        if execmask: self.exec_set(*execmask)
        a(f"s_mov_b32 s{sSpin}, 0")
        if self.pre.get(site): a(f"s_sleep {self.pre[site]}")
        a.label(lp)
        issue()
        if execmask and self.mode == "co": self.exec_all()
        self.dwait(0, len(regs) if self.addn else 0, site)
        if execmask and self.mode == "co": self.exec_set(*execmask)
        a.label(jn)
        acc, acc2 = vT0, vT0 + 1
        dw = [g + i for g in regs for i in range(4)]
        for k, r in enumerate(dw): a(f"v_xor_b32 v{r}, s{sT[k % 4]}, v{r}")
        a(f"v_or3_b32 v{acc}, v{dw[0]}, v{dw[1]}, v{dw[2]}")
        if len(dw) == 4:
            a(f"v_or_b32 v{acc}, v{acc}, v{dw[3]}")
        else:
            a(f"v_or3_b32 v{acc2}, v{dw[3]}, v{dw[4]}, v{dw[5]}")
            k = 6; tog = 0
            while k < len(dw):
                tgt = acc if tog == 0 else acc2
                a(f"v_or3_b32 v{tgt}, v{tgt}, v{dw[k]}, v{dw[k+1]}"); k += 2
                tog ^= 1
            a(f"v_or_b32 v{acc}, v{acc}, v{acc2}")
        a(f"v_and_b32 v{acc}, s{sFF}, v{acc}")
        a(f"v_cmp_ne_u32 vcc, 0, v{acc}")
        a(f"s_cbranch_vccz {dn}")
        if self.rsl.get(site): a(f"s_sleep {self.rsl[site]}")
        if self.slp:
            lz = a.newlabel("nsl")
            a(f"s_cmp_eq_u32 s{sAct}, 0"); a(f"s_cbranch_scc1 {lz}")
            a(f"s_sleep {self.slp}")
            a.label(lz)
        a(f"s_add_u32 s{sSpin}, s{sSpin}, 1")
        a(f"s_cmp_lt_u32 s{sSpin}, {SPIN_MAX}")
        a(f"s_cbranch_scc1 {lp}")
        a(f"s_mov_b32 s{sErr}, 1")
        a.label(dn)
        if execmask: self.exec_all()

    def dpp_steps(self, regs, op, steps):
        for d in steps:
            for r in regs:
                if d == "b15": self.a(f"{op}_dpp v{r}, v{r}, v{r} row_bcast:15 row_mask:0xa bank_mask:0xf")
                elif d == "b31": self.a(f"{op}_dpp v{r}, v{r}, v{r} row_bcast:31 row_mask:0xc bank_mask:0xf")
                else: self.a(f"{op}_dpp v{r}, v{r}, v{r} {d} {DPPALL}")
    X1, X2, HM, RM = "quad_perm:[1,0,3,2]", "quad_perm:[2,3,0,1]", "row_half_mirror", "row_mirror"
    def reduce63(self, regs, op):
        self.dpp_steps(regs, op, [self.X1, self.X2, self.HM, self.RM, "b15", "b31"])

    def treduce(self, r):
        a = self.a
        a(f"v_permlane32_swap_b32 v{r[0]}, v{r[2]}")
        a(f"v_permlane32_swap_b32 v{r[1]}, v{r[3]}")
        a(f"v_add_f32 v{r[0]}, v{r[0]}, v{r[2]}")
        a(f"v_add_f32 v{r[1]}, v{r[1]}, v{r[3]}")
        a(f"v_permlane16_swap_b32 v{r[0]}, v{r[1]}")
        a(f"v_add_f32 v{r[0]}, v{r[0]}, v{r[1]}")

    def pv_gemv(self, Xp, nload, bop, D, Abuf):
        a = self.a
        def build(i):
            A = Abuf + 4 * (i % 2)
            for r in range(4):
                a(f"v_and_b32_dpp v{A+r}, v{Xp}, v{vM[r]} row_newbcast:{i} {DPPALL}")
        build(0)
        if nload > 1: build(1)
        for i in range(nload):
            A = Abuf + 4 * (i % 2)
            c = "0" if i == 0 else vr(D, 4)
            a(f"v_mfma_f32_16x16x32_bf16 {vr(D,4)}, {vr(A,4)}, {bop(i)}, {c}")
            if i + 2 < nload: build(i + 2)

    def red_write(self, D, off=0):
        a = self.a
        a("s_mov_b32 exec_hi, 1")
        a(f"ds_write_b128 v{vRedW}, {vr(D,4)} offset:{off}")
        a("s_mov_b32 exec_hi, -1")
    def red_final_read(self, G, off=0):
        a = self.a
        a(f"v_add_u32 v{vT0}, {L_RED}, v{vL16}")
        for w in range(4):
            a(f"ds_read_b128 {vr(G+4*w,4)}, v{vT0} offset:{w*RSTR+off}")
    def sum4(self, G):
        a = self.a
        for r in range(4):
            a(f"v_add_f32 v{G+r}, v{G+r}, v{G+4+r}")
            a(f"v_add_f32 v{G+8+r}, v{G+8+r}, v{G+12+r}")
        for r in range(4):
            a(f"v_add_f32 v{G+r}, v{G+r}, v{G+8+r}")

    def local_stores(self, items):
        a = self.a
        def emit(flag):
            for (data, vaddr, soff, pre) in items:
                if pre: pre()
                a(f"buffer_store_dwordx4 {vr(data,4)}, v{vaddr}, {W}, s{soff} offen {flag}")
        if self.local:
            l0 = a.newlabel("ls"); l1 = a.newlabel("ls")
            a(f"s_cmp_eq_u32 s{sLocal}, 0"); a(f"s_cbranch_scc1 {l0}")
            emit("")
            a(f"s_branch {l1}")
            a.label(l0)
            emit("sc1")
            a.label(l1)
        else:
            emit("sc1")

    def next_tag(self):
        a = self.a
        a(f"s_mul_i32 s{sTf}, s{sTf}, 0x9E3779B1"); a(f"s_add_u32 s{sTf}, s{sTf}, 0x7F4A7C15")
        a(f"v_mov_b32 v{vT}, s{sTf}")
        a(f"s_and_b32 s{sT[0]}, s{sTf}, 0xff"); a(f"s_bfe_u32 s{sT[1]}, s{sTf}, 0x80008")
        a(f"s_bfe_u32 s{sT[2]}, s{sTf}, 0x80010"); a(f"s_lshr_b32 s{sT[3]}, s{sTf}, 24")

    def pf_guard(self, fn, lmin=2):
        if not self.nopf: return fn()
        a = self.a; l = a.newlabel("npf")
        a(f"s_cmp_ge_u32 s{sL}, {lmin}"); a(f"s_cbranch_scc1 {l}")
        fn()
        a.label(l)
    def load_wq(self):
        self.pf_guard(self.load_wq_)
    def load_wq_(self):
        a = self.a
        l0 = a.newlabel("wq"); l1 = a.newlabel("wq")
        a(f"s_bitcmp1_b32 s{sL}, 0"); a(f"s_cbranch_scc1 {l0}")
        a(f"s_mov_b32 s{SRD_A}, s{pWqA}"); a(f"s_mov_b32 s{SRD_A+1}, s{pWqA+1}"); a(f"s_branch {l1}")
        a.label(l0)
        a(f"s_mov_b32 s{SRD_A}, s{pWqB}"); a(f"s_mov_b32 s{SRD_A+1}, s{pWqB+1}")
        a.label(l1)
        a(f"s_mov_b32 s{SRD_A+2}, {19*8192+256}"); a(f"s_mov_b32 s{SRD_A+3}, 0x20000")
        for i in range(5):
            a(f"s_mov_b32 s{sTmp[0]}, {i*32768}")
            a(f"buffer_load_dwordx4 {vr(WQ+4*i,4)}, v{vWoff}, s[{SRD_A}:{SRD_A+3}], s{sTmp[0]} offen {self.wpol}")
    def load_wuk(self):
        self.pf_guard(self.load_wuk_)
    def load_wuk_(self):
        a = self.a
        self.srd(SRD_A, pWuk, 15*8192+256)
        t = vT0
        a(f"v_lshrrev_b32 v{t}, 8, v{vKoff}"); a(f"v_lshlrev_b32 v{t}, 13, v{t}")
        a(f"v_and_b32 v{t+1}, s{sFF}, v{vKoff}"); a(f"v_or_b32 v{t}, v{t}, v{t+1}")
        for i in range(4):
            a(f"s_mov_b32 s{sTmp[0]}, {i*32768}")
            a(f"buffer_load_dwordx4 {vr(WUK+4*i,4)}, v{t}, s[{SRD_A}:{SRD_A+3}], s{sTmp[0]} offen {self.wpol}")
    def load_wuv(self):
        self.pf_guard(self.load_wuv_)
    def load_wuv_(self):
        a = self.a
        self.srd(SRD_A, pWuv, 15*8192+256)
        for i in range(4):
            a(f"s_mov_b32 s{sTmp[0]}, {i*32768}")
            a(f"buffer_load_dwordx4 {vr(WUV+4*i,4)}, v{vWoff}, s[{SRD_A}:{SRD_A+3}], s{sTmp[0]} offen {self.wpol}")
    def wo_setup(self, p):
        a = self.a
        self.srd(SRD_A, p, 31*1280+160)
        a(f"s_mul_i32 s{sTmp[1]}, s{sW}, {32*160}"); a(f"s_add_u32 s{sTmp[1]}, s{sTmp[1]}, {L_R0}")
    def wo_one(self, i):
        a = self.a
        a(f"s_add_u32 m0, s{sTmp[1]}, {i*6*160}")
        a(f"s_mov_b32 s{sTmp[0]}, {i*6*1280}")
        if i < 5: a("s_mov_b32 exec_hi, 0x0fffffff")
        else: self.exec_set(0x000fffff, 0)
        a(f"buffer_load_dwordx4 v{vWo}, s[{SRD_A}:{SRD_A+3}], s{sTmp[0]} offen {self.wpol} lds")
        if i < 5: a("s_mov_b32 exec_hi, -1")
        else: self.exec_all()
    def load_wo(self, p):
        def f():
            self.wo_setup(p)
            for i in range(6): self.wo_one(i)
        self.pf_guard(f)
    def ckv_one(self, kk):
        a = self.a
        f = (kk & 8) | ((kk & 3) << 1) | ((kk >> 2) & 1)
        a(f"v_xor_b32 v{vCk}, {f*16}, v{vL16}")
        a(f"s_lshl_b32 s{sSO}, s{sW}, 14"); a(f"s_add_u32 m0, s{sSO}, {L_CKV + kk*1024}")
        a(f"s_mov_b32 s{sSO}, {kk*1024}")
        a(f"buffer_load_dwordx4 v{vCk}, s[{SRD_B}:{SRD_B+3}], s{sSO} offen {self.cpol} lds")
    def vtr_one(self, k):
        a = self.a
        b, u = 14 + (k >> 2), k & 3
        if u == 0: a(f"s_mov_b32 s{sTmp[2]}, {b*4096}")
        a(f"buffer_load_dwordx4 {vr(VTR+(b-14)*16+4*u,4)}, v{vVoff}, s[{SRD_V}:{SRD_V+3}], s{sTmp[2]} offen offset:{u*256} {self.pol}")

    def prologue(self):
        a = self.a
        a("s_cmp_ge_u32 s2, 256"); a("s_cbranch_scc1 L_end")
        a("s_load_dwordx4 s[64:67], s[0:1], 0")
        a("s_load_dwordx4 s[68:71], s[0:1], 16")
        a("s_load_dwordx4 s[72:75], s[0:1], 32")
        a("s_load_dwordx4 s[76:79], s[0:1], 56")
        a("s_load_dwordx4 s[80:83], s[0:1], 72")
        a("s_load_dwordx4 s[84:87], s[0:1], 88")
        a("s_load_dwordx2 s[8:9], s[0:1], 104")
        a(f"v_lshrrev_b32 v20, 6, v0")
        a(f"v_and_b32 v21, 63, v0")
        a(f"v_readfirstlane_b32 s{sW}, v20")
        a(f"s_and_b32 s{sH}, s2, 31"); a(f"s_lshr_b32 s{sJ}, s2, 5")
        a(f"s_and_b32 s{sXG}, s2, 7"); a(f"s_lshr_b32 s{sI}, s2, 3")
        a(f"s_and_b32 s{sGA}, s{sI}, 1")
        a(f"s_lshr_b32 s{sS}, s{sI}, 1"); a(f"s_lshl_b32 s92, s{sXG}, 4"); a(f"s_add_u32 s{sS}, s{sS}, s92")
        a(f"v_lshlrev_b32 v{vL16}, 4, v21")
        if self.codepf:
            lc = a.newlabel("cpf")
            a(f"s_cmp_lg_u32 s{sW}, 3"); a(f"s_cbranch_scc1 {lc}")
            a("s_getpc_b64 s[20:21]")
            a.label("L_pcx")
            a("s_mov_b32 s22, L_codeend-L_pcx"); a("s_mov_b32 s23, 0x20000")
            a("v_lshlrev_b32 v22, 6, v21")
            self.ncode = 7
            for i in range(self.ncode):
                a(f"s_mov_b32 s92, {i*4096}")
                a(f"buffer_load_dword v23, v22, s[20:23], s92 offen")
            a.label(lc)
        a("v_and_b32 v22, 15, v21")
        a("v_lshrrev_b32 v23, 4, v21") if not self.codepf else a("v_lshrrev_b32 v19, 4, v21")
        g = 23 if not self.codepf else 19
        a(f"v_lshlrev_b32 v24, 4, v22")
        a(f"v_lshl_add_u32 v{vWoff}, v{g}, 13, v24")
        a(f"v_lshl_add_u32 v{vVoff}, v{g}, 10, v24")
        a(f"v_and_b32 v25, 3, v22"); a(f"v_lshl_add_u32 v25, v{g}, 2, v25"); a("v_lshlrev_b32 v25, 4, v25")
        a("v_lshrrev_b32 v26, 2, v22"); a(f"v_lshl_add_u32 v{vKoff}, v26, 8, v25")
        a("v_and_b32 v25, 1, v22"); a("v_cmp_eq_u32 vcc, 1, v25")
        a("v_mov_b32 v26, 0xffff"); a("v_mov_b32 v27, 0xffff0000"); a("v_cndmask_b32 v26, v26, v27, vcc")
        a("v_lshrrev_b32 v25, 1, v22")
        for r in range(4):
            a(f"v_cmp_eq_u32 vcc, {r}, v25"); a(f"v_cndmask_b32 v{vM[r]}, 0, v26, vcc")
        a(f"v_lshl_add_u32 v25, v22, 1, v{g}"); a("v_lshlrev_b32 v25, 4, v25")
        a("v_cmp_gt_u32 vcc, 32, v21"); a("v_mov_b32 v26, 512"); a("v_cndmask_b32 v25, v26, v25, vcc")
        a(f"s_mul_i32 s92, s{sW}, {RSTR}"); a(f"s_add_u32 s92, s92, {L_RED}"); a(f"v_add_u32 v{vRedW}, s92, v25")
        a(f"v_mul_u32_u24 v25, 6554, v21"); a(f"v_lshrrev_b32 v25, 16, v25")
        a(f"v_mul_u32_u24 v26, 10, v25"); a(f"v_sub_u32 v26, v21, v26")
        a(f"v_mul_u32_u24 v25, 1280, v25"); a(f"v_lshl_add_u32 v{vWo}, v26, 4, v25")
        a("s_waitcnt lgkmcnt(0)")
        a(f"s_mov_b32 s{SRD_WS+2}, 0x10000000"); a(f"s_mov_b32 s{SRD_WS+3}, 0x20000")
        if self.stamps:
            a(f"s_mov_b32 s{sL}, 0")
            self.stamp(12)
        a("v_mov_b32 v28, 0")
        a(f"buffer_load_dword v{vT}, v28, {W}, 0 offen sc1")
        a(f"s_mov_b32 s{pX}, s64"); a(f"s_mov_b32 s{pX+1}, s65")
        self.srd(SRD_B, pX, 1280)
        a(f"s_mul_i32 s92, s{sJ}, 80"); a(f"s_mul_i32 s93, s{sW}, 20"); a("s_add_u32 s92, s92, s93")
        a(f"v_lshl_add_u32 v25, v22, 2, v{g}"); a("v_add_u32 v25, s92, v25"); a("v_lshlrev_b32 v29, 1, v25")
        a(f"s_mov_b32 s94, 0x001f001f"); a(f"s_mov_b32 s95, 0x001f001f")
        a(f"v_mov_b32 v{vX}, 0")
        a("s_mov_b64 exec, s[94:95]")
        a(f"buffer_load_ushort v{vX}, v29, s[{SRD_B}:{SRD_B+3}], 0 offen")
        self.exec_all()
        def addp(dst, src, terms):
            a(f"s_mov_b32 s92, 0")
            for (sreg, c) in terms:
                a(f"s_mul_i32 s93, s{sreg}, {c}"); a("s_add_u32 s92, s92, s93")
            a(f"s_add_u32 s{dst}, s{src}, s92"); a(f"s_addc_u32 s{dst+1}, s{src+1}, 0")
        addp(pWqA, 68, [(sJ, 80*8192), (sW, 20*8192), (sH, 256)])
        a(f"s_mov_b32 s{sL}, 0")
        self.load_wq()
        addp(pWuk, 70, [(sJ, 64*8192), (sW, 16*8192), (sH, 256)])
        a(f"s_mov_b32 s{sFF}, 0xff")
        self.load_wuk()
        addp(pCkv, 66, [(sS, 65536), (sW, 16384)])
        addp(pWqB, 80, [(sJ, 80*8192), (sW, 20*8192), (sH, 256)])
        addp(pWuv, 72, [(sJ, 64*8192), (sW, 16*8192), (sH, 256)])
        addp(pWoA, 74, [(sH, 163840), (sW, 32*1280), (sJ, 160)])
        addp(pWoB, 82, [(sH, 163840), (sW, 32*1280), (sJ, 160)])
        addp(SRD_K, 76, [(sH, 2097152), (sJ, 262144), (sW, 65536)])
        addp(SRD_V, 78, [(sH, 2097152), (sJ, 262144), (sW, 65536)])
        a(f"s_mov_b32 s{SRD_K+2}, 65536"); a(f"s_mov_b32 s{SRD_K+3}, 0x20000")
        a(f"s_mov_b32 s{SRD_V+2}, 65536"); a(f"s_mov_b32 s{SRD_V+3}, 0x20000")
        a(f"s_mov_b32 s{pOut}, s84"); a(f"s_mov_b32 s{pOut+1}, s85")
        self.srd(SRD_B, pCkv, 16384)
        if self.pretouch:
            a(f"s_lshl_b32 s92, s2, 13"); a(f"s_lshl_b32 s93, s{sW}, 11"); a("s_add_u32 s92, s92, s93"); a(f"s_add_u32 s92, s92, {O_QP}")
            a(f"buffer_load_dwordx4 v[48:51], v{vL16}, {W}, s92 offen")
            a(f"buffer_load_dwordx4 v[48:51], v{vL16}, {W}, s92 offen offset:1024")
        a(f"s_mov_b32 s{sErr}, 0"); a(f"s_mov_b32 s{sLocal}, 0")
        a(f"s_mov_b32 s{sM5}, 0x001f001f"); a(f"s_mov_b32 s{sM5+1}, 0x001f001f")
        for i in range(4): a(f"s_mov_b32 s{sSel[i]}, {0x07060500+i:#x}")
        for t in range(4):
            a(f"s_mov_b32 s{sMask[t]}, {(0x000f000f << (4*t)):#x}"); a(f"s_mov_b32 s{sMask[t]+1}, {(0x000f000f << (4*t)):#x}")
        a(f"s_getpc_b64 s[{sSPC}:{sSPC+1}]")
        a.label("L_pc0")
        a(f"s_add_u32 s{sSPC}, s{sSPC}, L_stream-L_pc0"); a(f"s_addc_u32 s{sSPC+1}, s{sSPC+1}, 0")
        a(f"s_mov_b32 s{sAct}, 1"); a(f"s_mov_b32 s{sPos}, 0")
        a(f"s_mov_b32 s{sCol}, {O_COL:#x}")
        a(f"s_getreg_b32 s{sXcc}, hwreg(HW_REG_XCC_ID)"); a(f"s_and_b32 s{sXcc}, s{sXcc}, 0xf"); a(f"s_add_u32 s{sXcc}, s{sXcc}, 1"); a(f"s_lshl_b32 s{sXcc}, s{sXcc}, 8")
        a(f"s_getpc_b64 s[{sDW}:{sDW+1}]")
        a.label("L_pc1")
        a(f"s_add_u32 s{sDW}, s{sDW}, L_dw-L_pc1"); a(f"s_addc_u32 s{sDW+1}, s{sDW+1}, 0")
        self.dwait(6 if self.pretouch else 4, 0, 'pro')
        a(f"v_readfirstlane_b32 s{sTf}, v{vT}")
        self.next_tag()
        a(f"v_lshlrev_b32 v{vX}, 16, v{vX}")
        if self.local:
            lx = a.newlabel("xp")
            a(f"s_cmp_lg_u32 s{sW}, 0"); a(f"s_cbranch_scc1 {lx}")
            for r in range(4): a(f"v_mov_b32 v{16+r}, s{sXcc}")
            self.tag([16, 17, 18, 19])
            a(f"s_lshl_b32 s92, s{sXG}, 9"); a(f"s_lshl_b32 s93, s{sI}, 4"); a("s_add_u32 s92, s92, s93"); a(f"s_add_u32 s92, s92, {O_XCC}")
            a("v_mov_b32 v20, 0")
            a("s_mov_b64 exec, 1")
            a(f"buffer_store_dwordx4 v[16:19], v20, {W}, s92 offen sc1")
            self.exec_all()
            a.label(lx)
        if self.mode == "first":
            self.drain(16)

    NLOADS = 136
    def first_block(self):
        r = self.NLOADS % self.kblk
        return r if r else self.kblk
    def stream(self):
        a = self.a
        loads = [("C", i) for i in range(16)] + [("K", i) for i in range(64)]
        loads += [("V", b, u) for b in range(10) for u in range(4)]
        loads += [("L", b, u) for b in range(10, 14) for u in range(4)]
        k = self.kblk
        assert len(loads) == self.NLOADS
        a.label("L_stream")
        starts = [0] + list(range(self.first_block(), len(loads), k))
        for bn, bi in enumerate(starts):
            be = starts[bn+1] if bn + 1 < len(starts) else len(loads)
            last_so = None
            for ld in loads[bi:be]:
                if ld[0] == "C":
                    self.ckv_one(ld[1]); last_so = None
                elif ld[0] == "K":
                    i = ld[1]; so = (i >> 2) * 4096
                    if so != last_so: a(f"s_mov_b32 s{sSO}, {so}"); last_so = so
                    a(f"buffer_load_dwordx4 {ar(4*i,4)}, v{vKoff}, s[{SRD_K}:{SRD_K+3}], s{sSO} offen offset:{(i&3)*1024} {self.pol}")
                elif ld[0] == "V":
                    _, b, u = ld; so = b * 4096
                    if so != last_so: a(f"s_mov_b32 s{sSO}, {so}"); last_so = so
                    a(f"buffer_load_dwordx4 {vr(VRES+16*b+4*u,4)}, v{vVoff}, s[{SRD_V}:{SRD_V+3}], s{sSO} offen offset:{u*256} {self.pol}")
                else:
                    _, b, u = ld
                    a(f"s_lshl_b32 s{sSO}, s{sW}, 14"); a(f"s_add_u32 m0, s{sSO}, {L_VL + ((b-10)*4+u)*1024}")
                    a(f"s_mov_b32 s{sSO}, {b*4096+u*256}"); last_so = None
                    a(f"buffer_load_dwordx4 v{vVoff}, s[{SRD_V}:{SRD_V+3}], s{sSO} offen {self.pol} lds")
            a(f"s_add_u32 s{sPos}, s{sPos}, {be-bi}")
            if be >= len(loads): a(f"s_mov_b32 s{sAct}, 0")
            a(f"s_swappc_b64 s[{sSPC}:{sSPC+1}], s[{sRET}:{sRET+1}]")
        a("s_endpgm")

    def qpart(self):
        a = self.a
        self.stamp(0)
        Xp, S1, S2 = 14, 15, 36
        D, Du, Ab = 16, 20, 24
        a(f"v_cvt_pk_bf16_f32 v{Xp}, v{vX}, v{vX}")
        a(f"v_and_b32 v{S1}, 0xffff0000, v{Xp}")
        a(f"v_mul_f32 v{S2}, v{S1}, v{S1}")
        self.pv_gemv(Xp, 5, lambda i: vr(WQ+4*i, 4), D, Ab)
        self.reduce63([S1, S2], "v_add_f32")
        lu = a.newlabel("nou")
        a(f"s_cmp_ge_u32 s{sL}, 2"); a(f"s_cbranch_scc1 {lu}")
        for r in range(4): a(f"v_and_b32 v{32+r}, 0x3f803f80, v{vM[r]}")
        for i in range(5):
            c = "0" if i == 0 else vr(Du, 4)
            a(f"v_mfma_f32_16x16x32_bf16 {vr(Du,4)}, {vr(32,4)}, {vr(WQ+4*i,4)}, {c}")
        self.red_write(Du, 528)
        a.label(lu)
        a(f"v_readlane_b32 s{sA}, v{S1}, 63"); a(f"v_readlane_b32 s{sB_}, v{S2}, 63")
        a(f"v_writelane_b32 v{D}, s{sA}, 32"); a(f"v_writelane_b32 v{D+1}, s{sB_}, 32")
        self.red_write(D)
        t = 14
        a(f"v_lshrrev_b32 v{t}, 4, v{vL16}")
        a(f"v_and_b32 v15, 1, v{t}"); a(f"v_lshlrev_b32 v15, 4, v15")
        a(f"v_lshrrev_b32 v36, 1, v{t}"); a(f"v_add_u32 v15, v15, v36"); a(f"v_lshlrev_b32 v15, 4, v15")
        a(f"v_cmp_gt_u32 vcc, 32, v{t}"); a(f"v_mov_b32 v36, 512"); a(f"v_cndmask_b32 v{t}, v36, v15, vcc")
        a(f"s_lshl_b32 s{sTmp[0]}, s{sH}, 3"); a(f"s_add_u32 s{sTmp[0]}, s{sTmp[0]}, s{sJ}"); a(f"s_lshl_b32 s{sTmp[0]}, s{sTmp[0]}, 11")
        a(f"s_add_u32 s{sTmp[0]}, s{sTmp[0]}, {O_QP}")
        a("s_waitcnt lgkmcnt(0)"); a("s_barrier")
        lf = a.newlabel("qfin")
        a(f"s_cmp_lg_u32 s{sW}, 0"); a(f"s_cbranch_scc1 {lf}")
        G = 16
        self.red_final_read(G)
        a("s_waitcnt lgkmcnt(0)")
        self.sum4(G); self.tag([G, G+1, G+2, G+3])
        a("s_mov_b32 exec_hi, 1")
        self.local_stores([(G, t, sTmp[0], None)])
        a("s_mov_b32 exec_hi, -1")
        a(f"s_cmp_ge_u32 s{sL}, 2"); a(f"s_cbranch_scc1 {lf}")
        G2 = 32
        self.red_final_read(G2, 528)
        a(f"s_add_u32 s{sTmp[0]}, s{sTmp[0]}, 1024")
        a("s_waitcnt lgkmcnt(0)")
        self.sum4(G2); self.tag([G2, G2+1, G2+2, G2+3])
        a("s_mov_b32 exec_hi, 0")
        self.local_stores([(G2, t, sTmp[0], None)])
        a("s_mov_b32 exec_hi, -1")
        a.label(lf)
        self.stamp(1)
        ad, ad2, adu, adx = 14, 15, 56, 57
        Gq, Gs, Gu, Gx = 16, 32, 36, 52
        a(f"v_lshrrev_b32 v{ad}, 8, v{vKoff}"); a(f"v_lshlrev_b32 v{ad}, 11, v{ad}")
        a(f"v_and_b32 v{ad2}, s{sFF}, v{vKoff}"); a(f"v_or_b32 v{ad}, v{ad}, v{ad2}")
        a(f"v_lshlrev_b32 v{adu}, 1, v{ad2}")
        a(f"v_lshrrev_b32 v{ad2}, 4, v{vL16}"); a(f"v_and_b32 v{ad2}, 7, v{ad2}"); a(f"v_lshlrev_b32 v{ad2}, 11, v{ad2}")
        a(f"s_lshl_b32 s{sTmp[0]}, s{sH}, 14"); a(f"s_add_u32 s{sTmp[0]}, s{sTmp[0]}, {O_QP}")
        a(f"s_add_u32 s{sTmp[1]}, s{sTmp[0]}, 8192")
        def iss_q():
            for i in range(2):
                for hf in range(2):
                    a(f"buffer_load_dwordx4 {vr(Gq+8*i+4*hf,4)}, v{ad}, {W}, s{sTmp[i]} offen offset:{hf*256} sc1")
            a(f"buffer_load_dwordx4 {vr(Gs,4)}, v{ad2}, {W}, s{sTmp[0]} offen offset:512 sc1")
        def iss_u():
            for i in range(2):
                for hf in range(2):
                    a(f"buffer_load_dwordx4 {vr(Gu+8*i+4*hf,4)}, v{ad}, {W}, s{sTmp[i]} offen offset:{1024+hf*256} sc1")
        def iss_x():
            a(f"buffer_load_dwordx4 {vr(Gx,4)}, v{adx}, {W}, s{sTmp[3]} offen sc1")
        U = 36
        l_late = a.newlabel("qlate"); l_j = a.newlabel("qj")
        a(f"s_and_b32 s{sTmp[2]}, s{sL}, 1"); a(f"s_lshl_b32 s{sTmp[2]}, s{sTmp[2]}, 9"); a(f"s_add_u32 s{sTmp[2]}, s{sTmp[2]}, {L_U}")
        a(f"v_add_u32 v{adu}, s{sTmp[2]}, v{adu}")
        a(f"s_cmp_ge_u32 s{sL}, 2"); a(f"s_cbranch_scc1 {l_late}")
        base_regs = [Gq, Gq+4, Gq+8, Gq+12, Gs, Gu, Gu+4, Gu+8, Gu+12]
        if self.local:
            l_one = a.newlabel("qone"); l_u = a.newlabel("qu")
            a(f"s_cmp_eq_u32 s{sL}, 1"); a(f"s_cbranch_scc1 {l_one}")
            a(f"v_and_b32 v{adx}, 0x1f0, v{vL16}")
            a(f"s_lshl_b32 s{sTmp[3]}, s{sXG}, 9"); a(f"s_add_u32 s{sTmp[3]}, s{sTmp[3]}, {O_XCC}")
            self.poll(lambda: (iss_q(), iss_u(), iss_x()), base_regs + [Gx], site='q0')
            a(f"v_cmp_ne_u32 vcc, s{sXcc}, v{Gx}")
            a(f"s_cmp_eq_u64 vcc, 0"); a(f"s_cselect_b32 s{sLocal}, 1, 0")
            a(f"s_branch {l_u}")
            a.label(l_one)
            self.poll(lambda: (iss_q(), iss_u()), base_regs, site='q1')
            a.label(l_u)
        else:
            self.poll(lambda: (iss_q(), iss_u()), base_regs)
        for r in range(8): a(f"v_add_f32 v{Gu+r}, v{Gu+r}, v{Gu+8+r}")
        self.dpp_steps([Gu+r for r in range(8)], "v_add_f32", ["row_ror:4", "row_ror:8"])
        lw = a.newlabel("uw")
        a(f"s_cmp_lg_u32 s{sW}, 0"); a(f"s_cbranch_scc1 {lw}")
        self.exec_set(0x000f000f, 0x000f000f)
        a(f"ds_write_b128 v{adu}, {vr(U,4)}"); a(f"ds_write_b128 v{adu}, {vr(U+4,4)} offset:16")
        self.exec_all()
        a.label(lw)
        a(f"s_branch {l_j}")
        a.label(l_late)
        a(f"ds_read_b128 {vr(U,4)}, v{adu}"); a(f"ds_read_b128 {vr(U+4,4)}, v{adu} offset:16")
        self.poll(iss_q, [Gq, Gq+4, Gq+8, Gq+12, Gs])
        a("s_waitcnt lgkmcnt(0)")
        a.label(l_j)
        self.stamp(2)
        st = [Gs, Gs+1]
        adds = [f"v_add_f32 v{Gq+r}, v{Gq+r}, v{Gq+8+r}" for r in range(8)]
        seq = []
        for k, d in enumerate((self.X1, self.X2, self.HM)):
            seq += [f"v_add_f32_dpp v{r}, v{r}, v{r} {d} {DPPALL}" for r in st]
            seq += adds[3*k:3*k+3] if k < 2 else adds[6:]
        for s_ in seq: a(s_)
        a(f"v_mul_f32 v{Gs}, {f32hex(1/640)}, v{Gs}")
        ror4 = [f"v_add_f32_dpp v{Gq+r}, v{Gq+r}, v{Gq+r} row_ror:4 {DPPALL}" for r in range(8)]
        ror8 = [f"v_add_f32_dpp v{Gq+r}, v{Gq+r}, v{Gq+r} row_ror:8 {DPPALL}" for r in range(8)]
        a(f"v_mul_f32 v{Gs+1}, {f32hex(1/640)}, v{Gs+1}")
        for s_ in ror4[:4]: a(s_)
        a(f"v_fma_f32 v{Gs+1}, -v{Gs}, v{Gs}, v{Gs+1}")
        for s_ in ror4[4:]: a(s_)
        a(f"v_add_f32 v{Gs+1}, {f32hex(1e-5)}, v{Gs+1}")
        for s_ in ror8[:4]: a(s_)
        a(f"v_rsq_f32 v{Gs+1}, v{Gs+1}")
        for s_ in ror8[4:]: a(s_)
        a(f"v_mul_f32 v{Gs+1}, {f32hex(SC)}, v{Gs+1}")
        for r in range(8): a(f"v_fma_f32 v{Gq+r}, -v{Gs}, v{U+r}, v{Gq+r}")
        a(f"v_readfirstlane_b32 s{sSc}, v{Gs+1}")
        Qp = 24
        for r in range(4): a(f"v_cvt_pk_bf16_f32 v{Qp+r}, v{Gq+2*r}, v{Gq+2*r+1}")
        for t in range(4):
            for r in range(4):
                a(f"v_cndmask_b32 v{AT+4*t+r}, 0, v{Qp+r}, s[{sMask[t]}:{sMask[t]+1}]")

    def combine8(self, G, ML, tmp):
        a = self.a
        M, f, Ls = tmp, tmp+1, tmp+2
        a(f"v_max_f32_dpp v{M}, v{ML}, v{ML} row_ror:8 {DPPALL}")
        self.dpp_steps([M], "v_max_f32", ["b15", "b31"])
        a(f"v_readlane_b32 s{sA}, v{M}, 63")
        a(f"v_subrev_f32 v{f}, s{sA}, v{ML}"); a(f"v_exp_f32 v{f}, v{f}")
        a(f"v_mul_f32 v{Ls}, v{f}, v{ML+1}")
        for r in range(4): a(f"v_mul_f32 v{G+r}, v{f}, v{G+r}")
        a(f"v_add_f32_dpp v{Ls}, v{Ls}, v{Ls} row_ror:8 {DPPALL}")
        for r in range(4): a(f"v_add_f32_dpp v{G+r}, v{G+r}, v{G+r} row_ror:8 {DPPALL}")
        a(f"v_add_f32_dpp v{Ls}, v{Ls}, v{Ls} row_bcast:15 row_mask:0xa bank_mask:0xf")
        a(f"v_permlane32_swap_b32 v{G}, v{G+2}")
        a(f"v_permlane32_swap_b32 v{G+1}, v{G+3}")
        a(f"v_add_f32_dpp v{Ls}, v{Ls}, v{Ls} row_bcast:31 row_mask:0xc bank_mask:0xf")
        a(f"v_add_f32 v{G}, v{G}, v{G+2}")
        a(f"v_add_f32 v{G+1}, v{G+1}, v{G+3}")
        a(f"v_readlane_b32 s{sA}, v{Ls}, 63")
        a(f"v_permlane16_swap_b32 v{G}, v{G+1}")
        a(f"v_rcp_f32 v{Ls}, s{sA}")
        a(f"v_add_f32 v{G}, v{G}, v{G+1}")
        a(f"v_mul_f32 v{G}, v{G}, v{Ls}")

    def amiddle(self):
        a = self.a
        D = 16
        for t in range(4):
            c = "0" if t == 0 else vr(D, 4)
            a(f"v_mfma_f32_16x16x32_bf16 {vr(D,4)}, {vr(AT+4*t,4)}, {vr(WUK+4*t,4)}, {c}")
        a(f"v_lshrrev_b32 v14, 8, v{vL16}"); a("v_lshlrev_b32 v14, 4, v14")
        a(f"s_lshl_b32 s{sTmp[0]}, s{sH}, 11"); a(f"s_lshl_b32 s{sTmp[1]}, s{sJ}, 8"); a(f"s_add_u32 s{sTmp[0]}, s{sTmp[0]}, s{sTmp[1]}")
        a(f"s_lshl_b32 s{sTmp[1]}, s{sW}, 6"); a(f"s_add_u32 s{sTmp[0]}, s{sTmp[0]}, s{sTmp[1]}")
        a(f"s_add_u32 s{sTmp[0]}, s{sTmp[0]}, {O_QABS}")
        S, S2 = 20, 21
        a(f"v_mov_b32_dpp v{S}, v{D} quad_perm:[0,0,0,0] {DPPALL}")
        a(f"v_mov_b32_dpp v{S2}, v{D+2} quad_perm:[2,2,2,2] {DPPALL}")
        a(f"s_nop 0")
        a(f"v_add_f32_dpp v{S}, v{D+1}, v{S} quad_perm:[1,1,1,1] {DPPALL}")
        a(f"v_add_f32_dpp v{S2}, v{D+3}, v{S2} quad_perm:[3,3,3,3] {DPPALL}")
        a(f"v_add_f32 v{S}, v{S}, v{S2}")
        a(f"v_mul_f32 v{S}, s{sSc}, v{S}")
        G = 24
        for q in range(4): a(f"v_mov_b32_dpp v{G+q}, v{S} row_newbcast:{4*q} {DPPALL}")
        self.tag([G, G+1, G+2, G+3])
        self.exec_set(0x00010001, 0x00010001)
        a(f"buffer_store_dwordx4 {vr(G,4)}, v14, {W}, s{sTmp[0]} offen sc1")
        self.exec_all()
        self.stamp(3)
        if not self.pfnew: self.load_wuv()
        Gq = 16
        a(f"s_lshl_b32 s{sTmp[0]}, s{sGA}, 15"); a(f"s_lshl_b32 s{sTmp[1]}, s{sW}, 9"); a(f"s_add_u32 s{sTmp[0]}, s{sTmp[0]}, s{sTmp[1]}")
        a(f"s_add_u32 s{sTmp[0]}, s{sTmp[0]}, {O_QABS}")
        for i in range(1, 4): a(f"s_add_u32 s{sTmp[i]}, s{sTmp[0]}, {i*8192}")
        vA0, vB0, vAx = 52, 53, 54
        n, g = 48, 49
        a(f"v_lshrrev_b32 v{n}, 4, v{vL16}"); a(f"v_lshrrev_b32 v{g}, 4, v{n}"); a(f"v_and_b32 v{n}, 15, v{n}")
        a(f"v_and_b32 v50, 8, v{n}"); a(f"v_and_b32 v51, 3, v{n}"); a(f"v_lshl_or_b32 v50, v51, 1, v50")
        a(f"v_bfe_u32 v51, v{n}, 2, 1"); a(f"v_or_b32 v50, v50, v51")
        a(f"s_lshl_b32 s{sTmp[4]}, s{sW}, 14"); a(f"s_add_u32 s{sTmp[4]}, s{sTmp[4]}, {L_CKV}")
        a(f"v_lshlrev_b32 v51, 10, v{n}"); a(f"v_lshl_add_u32 v51, v{g}, 8, v51"); a(f"v_lshl_add_u32 v51, v50, 4, v51")
        a(f"v_add_u32 v{vA0}, s{sTmp[4]}, v51")
        a(f"v_mul_u32_u24 v{vB0}, 1040, v{n}"); a(f"v_lshl_add_u32 v{vB0}, v{g}, 8, v{vB0}"); a(f"v_add_u32 v{vB0}, {L_R0}, v{vB0}")
        a(f"v_mul_u32_u24 v51, 272, v{n}"); a(f"v_lshl_add_u32 v50, v{g}, 4, v51")
        a(f"s_lshl_b32 s{sTmp[4]}, s{sW}, 6"); a(f"s_add_u32 s{sTmp[4]}, s{sTmp[4]}, {L_ST}"); a(f"v_add_u32 v50, s{sTmp[4]}, v50")
        a(f"v_lshl_add_u32 v51, v{g}, 5, v51"); a(f"v_add_u32 v51, {L_ST}, v51")
        vC0, vC1, vX0, vX1 = 76, 77, 78, 79
        a(f"v_and_b32 v14, 3, v{n}"); a(f"v_lshrrev_b32 v15, 2, v{n}")
        a(f"v_and_b32 v55, 1, v{g}"); a(f"v_lshlrev_b32 v55, 3, v55"); a(f"v_lshl_add_u32 v55, v15, 1, v55")
        a(f"v_lshrrev_b32 v56, 1, v14"); a(f"v_xor_b32 v55, v55, v56")
        a(f"v_lshl_add_u32 v56, v{g}, 3, v15"); a(f"v_lshlrev_b32 v56, 10, v56")
        a(f"v_lshl_add_u32 v56, v55, 4, v56"); a(f"v_and_b32 v14, 1, v14"); a(f"v_lshl_add_u32 v56, v14, 3, v56")
        a(f"s_lshl_b32 s{sTmp[4]}, s{sW}, 8"); a(f"s_add_u32 s{sTmp[4]}, s{sTmp[4]}, {L_CKV}")
        a(f"v_add_u32 v{vC0}, s{sTmp[4]}, v56")
        a(f"v_add_u32 v{vC1}, 4096, v{vC0}"); a(f"v_xor_b32 v{vC1}, 16, v{vC1}")
        a(f"s_lshl_b32 s{sTmp[4]}, s{sW}, 8"); a(f"s_add_u32 s{sTmp[4]}, s{sTmp[4]}, {L_R0}")
        a(f"v_lshrrev_b32 v14, 9, v{vL16}"); a(f"v_and_b32 v57, 0x1f0, v{vL16}")
        a(f"v_lshrrev_b32 v15, 1, v57"); a(f"v_mul_u32_u24 v58, 1040, v14"); a(f"v_add_u32 v15, v15, v58"); a(f"v_add_u32 v15, s{sTmp[4]}, v15")
        a(f"v_lshl_add_u32 v57, v14, 11, v57")
        lg0 = a.newlabel("cg"); lg1 = a.newlabel("cg")
        a.label(lg0)
        a(f"s_cmp_ge_u32 s{sPos}, 16"); a(f"s_cbranch_scc1 {lg1}")
        self.stream_call()
        a(f"s_branch {lg0}")
        a.label(lg1)
        if self.sent:
            lsk = a.newlabel("nosent")
            if not self.sent1:
                a(f"s_cmp_lg_u32 s{sAct}, 0"); a(f"s_cbranch_scc1 {lsk}")
            a(f"v_lshrrev_b32 v14, 7, v{vL16}"); a(f"v_lshlrev_b32 v14, 11, v14"); a(f"v_and_b32 v58, 0x70, v{vL16}"); a(f"v_lshl_add_u32 v14, v58, 2, v14")
            def iss0():
                a(f"buffer_load_dwordx4 {vr(Gq,4)}, v14, {W}, s{sTmp[0]} offen sc1")
                a(f"buffer_load_dwordx4 {vr(Gq+4,4)}, v14, {W}, s{sTmp[2]} offen sc1")
            self.poll(iss0, [Gq, Gq+4], site='sent')
            a.label(lsk)
            self.stamp(15)
        def iss():
            for i in range(8):
                so = sTmp[i >> 1]
                if i & 1:
                    a(f"s_add_u32 s{sTmp[5-1]}, s{so}, 4096"); so = sTmp[4]
                a(f"buffer_load_dwordx4 {vr(Gq+4*i,4)}, v57, {W}, s{so} offen sc1")
        self.poll(iss, [Gq+4*i for i in range(8)], site='h4')
        self.stampval(30, sSpin); self.stampval(31, sPos)
        self.stamp(4)
        if self.pfnew: self.load_wuv()
        for i in range(8):
            b = Gq + 4*i
            a(f"v_cvt_pk_bf16_f32 v{b}, v{b}, v{b+1}"); a(f"v_cvt_pk_bf16_f32 v{b+1}, v{b+2}, v{b+3}")
            a(f"ds_write_b64 v15, {vr(b,2)} offset:{i*2*1040}")
        a("s_waitcnt lgkmcnt(0)"); a("s_barrier")
        self.stamp(16)
        if "S" in self.xcalls: self.topup()
        AB = 16
        Ds = 56
        def rd(st):
            b = AB + 8 * (st % 4)
            if st == 0: a(f"ds_read_b128 {vr(b,4)}, v{vA0}")
            else:
                a(f"v_xor_b32 v{vAx}, {st<<4}, v{vA0}"); a(f"ds_read_b128 {vr(b,4)}, v{vAx}")
            a(f"ds_read_b128 {vr(b+4,4)}, v{vB0} offset:{st*16}")
        for st in range(4): rd(st)
        for st in range(16):
            rem = min(3, 15 - st)
            a(f"s_waitcnt lgkmcnt({2*rem})")
            b = AB + 8 * (st % 4)
            c = "0" if st == 0 else vr(Ds, 4)
            a(f"v_mfma_f32_16x16x32_bf16 {vr(Ds,4)}, {vr(b,4)}, {vr(b+4,4)}, {c}")
            if st + 4 < 16: rd(st + 4)
        a(f"ds_write_b128 v50, {vr(Ds,4)}")
        a("s_waitcnt lgkmcnt(0)"); a("s_barrier")
        self.stamp(17)
        SS = 16
        for u in range(2):
            for hf in range(2):
                a(f"ds_read_b128 {vr(SS+8*u+4*hf,4)}, v51 offset:{u*128+hf*16}")
        if self.pfnew: self.load_wo(pWoA)
        DT = 44; AF = 56
        m, l, t1, t2 = 32, 33, 34, 35
        a("s_waitcnt lgkmcnt(0)")
        a(f"v_max3_f32 v{m}, v{SS}, v{SS+1}, v{SS+2}"); a(f"v_max3_f32 v{t1}, v{SS+3}, v{SS+4}, v{SS+5}")
        a(f"v_max3_f32 v{m}, v{m}, v{SS+6}, v{SS+7}"); a(f"v_max3_f32 v{t1}, v{t1}, v{SS+8}, v{SS+9}")
        a(f"v_max3_f32 v{m}, v{m}, v{SS+10}, v{SS+11}"); a(f"v_max3_f32 v{t1}, v{t1}, v{SS+12}, v{SS+13}")
        a(f"v_max3_f32 v{m}, v{m}, v{SS+14}, v{SS+15}"); a(f"v_max_f32 v{m}, v{m}, v{t1}")
        for sw in ("v_permlane16_swap_b32", "v_permlane32_swap_b32"):
            a(f"v_mov_b32 v{t1}, v{m}"); a(f"{sw} v{m}, v{t1}"); a(f"v_max_f32 v{m}, v{m}, v{t1}")
        for k in range(16): a(f"v_sub_f32 v{SS+k}, v{SS+k}, v{m}")
        for k in range(16): a(f"v_exp_f32 v{SS+k}, v{SS+k}")
        P = 36
        for k in range(8): a(f"v_cvt_pk_bf16_f32 v{P+k}, v{SS+2*k}, v{SS+2*k+1}")
        for k in range(8): a(f"v_add_f32 v{SS+k}, v{SS+k}, v{SS+8+k}")
        for k in range(4): a(f"v_add_f32 v{SS+k}, v{SS+k}, v{SS+4+k}")
        a(f"v_add_f32 v{SS}, v{SS}, v{SS+1}"); a(f"v_add_f32 v{SS+2}, v{SS+2}, v{SS+3}"); a(f"v_add_f32 v{l}, v{SS}, v{SS+2}")
        self.stamp(18)
        if "smax" in self.xcalls: self.topup()
        AF = 16
        steps = [(t, u) for t in range(8) for u in range(2)]
        def rdA(k):
            t, u = steps[k]; b = AF + 4 * (k % 4)
            if u == 0:
                if t == 0:
                    a(f"v_mov_b32 v{vX0}, v{vC0}"); a(f"v_mov_b32 v{vX1}, v{vC1}")
                else:
                    a(f"v_xor_b32 v{vX0}, {t<<5}, v{vC0}"); a(f"v_xor_b32 v{vX1}, {t<<5}, v{vC1}")
            a(f"ds_read_b64_tr_b16 {vr(b,2)}, v{vX0} offset:{u*32768}")
            a(f"ds_read_b64_tr_b16 {vr(b+2,2)}, v{vX1} offset:{u*32768}")
        for k in range(4): rdA(k)
        for sw in ("v_permlane16_swap_b32", "v_permlane32_swap_b32"):
            a(f"v_mov_b32 v{t1}, v{l}"); a(f"{sw} v{l}, v{t1}"); a(f"v_add_f32 v{l}, v{l}, v{t1}")
        a(f"v_lshrrev_b32 v14, 8, v{vL16}"); a(f"v_lshlrev_b32 v14, 17, v14"); a(f"v_and_b32 v15, 0xf0, v{vL16}"); a(f"v_add_u32 v14, v14, v15")
        a(f"s_lshl_b32 s{sTmp[0]}, s{sXG}, 20"); a(f"s_lshl_b32 s{sTmp[1]}, s{sGA}, 19"); a(f"s_add_u32 s{sTmp[0]}, s{sTmp[0]}, s{sTmp[1]}")
        a(f"s_lshl_b32 s{sTmp[1]}, s{sW}, 15"); a(f"s_add_u32 s{sTmp[0]}, s{sTmp[0]}, s{sTmp[1]}")
        a(f"s_and_b32 s{sTmp[2]}, s{sS}, 15"); a(f"s_lshl_b32 s{sTmp[1]}, s{sTmp[2]}, 9"); a(f"s_add_u32 s{sTmp[0]}, s{sTmp[0]}, s{sTmp[1]}")
        a(f"s_add_u32 s{sTmp[0]}, s{sTmp[0]}, {O_C1}")
        a(f"s_lshl_b32 s{sTmp[3]}, s{sXG}, 14"); a(f"s_lshl_b32 s{sTmp[1]}, s{sGA}, 13"); a(f"s_add_u32 s{sTmp[3]}, s{sTmp[3]}, s{sTmp[1]}")
        a(f"s_lshl_b32 s{sTmp[1]}, s{sW}, 9"); a(f"s_add_u32 s{sTmp[3]}, s{sTmp[3]}, s{sTmp[1]}")
        a(f"s_lshl_b32 s{sTmp[1]}, s{sTmp[2]}, 5"); a(f"s_add_u32 s{sTmp[3]}, s{sTmp[3]}, s{sTmp[1]}")
        a(f"s_add_u32 s{sTmp[3]}, s{sTmp[3]}, {O_ML1}")
        a(f"v_bfe_u32 v15, v{vL16}, 6, 2"); a(f"v_lshlrev_b32 v15, 11, v15")
        a(f"v_bfe_u32 v32+2, v{vL16}, 8, 1".replace("v32+2", "v34")); a(f"v_lshl_add_u32 v15, v34, 4, v15")
        MG = 76 - 0
        a(f"s_mov_b32 vcc_lo, 0xffff0000"); a("s_mov_b32 vcc_hi, 0")
        a(f"v_cndmask_b32 v34, v32, v33, vcc")
        mlops = [f"v_mov_b32_dpp v32, v34 quad_perm:[0,0,0,0] {DPPALL}", f"v_mov_b32_dpp v33, v34 quad_perm:[1,1,1,1] {DPPALL}",
                 f"v_mov_b32_dpp v35, v34 quad_perm:[3,3,3,3] {DPPALL}", f"v_mov_b32_dpp v34, v34 quad_perm:[2,2,2,2] {DPPALL}"]
        for k in range(16):
            t, u = steps[k]; b = AF + 4 * (k % 4)
            rem = min(3, 15 - k)
            a(f"s_waitcnt lgkmcnt({2*rem})")
            c = "0" if u == 0 else vr(DT+4*t, 4)
            a(f"v_mfma_f32_16x16x32_bf16 {vr(DT+4*t,4)}, {vr(P+4*u,4)}, {vr(b,4)}, {c}")
            if k + 4 < 16: rdA(k + 4)
            if k == 0:
                for x_ in mlops: a(x_)
            if k == 2: self.tag([32, 33, 34, 35])
            if u == 1 and t >= 2: self.tag([DT+4*(t-2)+r for r in range(4)])
        self.tag([DT+4*6+r for r in range(4)]); self.tag([DT+4*7+r for r in range(4)])
        self.stamp(19)
        items = []
        for t in range(8):
            def pre(t=t): a(f"s_add_u32 s{sTmp[1]}, s{sTmp[0]}, {(t>>1)*8192+(t&1)*256}")
            items.append((DT+4*t, 14, sTmp[1], pre))
        def pre_ml(): a("s_mov_b32 exec_lo, 0x11111111"); a("s_mov_b32 exec_hi, 0")
        items.append((32, 15, sTmp[3], pre_ml))
        self.local_stores(items)
        self.exec_all()
        self.stamp(5)
        G, MM, LL = 16, 48, 52
        a(f"v_lshrrev_b32 v14, 4, v{vL16}"); a(f"v_and_b32 v15, 7, v14"); a(f"v_lshrrev_b32 v14, 5, v14")
        a(f"v_lshl_add_u32 v14, v15, 1, v14"); a(f"v_lshlrev_b32 v14, 5, v14")
        a(f"s_lshl_b32 s{sTmp[0]}, s{sXG}, 5"); a(f"s_add_u32 s{sTmp[0]}, s{sTmp[0]}, s{sI}")
        a(f"s_lshl_b32 s{sTmp[2]}, s{sTmp[0]}, 9"); a(f"s_add_u32 s{sTmp[2]}, s{sTmp[2]}, {O_ML1}")
        a(f"s_lshl_b32 s{sTmp[0]}, s{sTmp[0]}, 2"); a(f"s_add_u32 s{sTmp[0]}, s{sTmp[0]}, s{sW}")
        a(f"s_lshl_b32 s{sTmp[0]}, s{sTmp[0]}, 13"); a(f"s_add_u32 s{sTmp[0]}, s{sTmp[0]}, {O_C1}")
        a(f"s_add_u32 s{sTmp[1]}, s{sTmp[0]}, 4096")
        def issML():
            a(f"buffer_load_dwordx4 {vr(MM,4)}, v14, {W}, s{sTmp[2]} offen sc1")
            a(f"buffer_load_dwordx4 {vr(LL,4)}, v14, {W}, s{sTmp[2]} offen offset:16 sc1")
        lsk = a.newlabel("noml")
        if not self.mlsent:
            a(f"s_cmp_lg_u32 s{sAct}, 0"); a(f"s_cbranch_scc1 {lsk}")
        if not self.mltail:
            a(f"s_cmp_ge_u32 s{sL}, 2"); a(f"s_cbranch_scc1 {lsk}")
        self.poll(issML, [MM, LL], site='ml1')
        a.label(lsk)
        self.stamp(20)
        Mx, wv, den, t1 = 56, 60, 64, 68
        chk = 72
        lp = a.newlabel("sw1"); ns = a.newlabel("sw1n"); jn = a.newlabel("sw1j"); dn = a.newlabel("sw1d"); ns2 = a.newlabel("sw1m"); jn2 = a.newlabel("sw1k")
        a(f"s_mov_b32 s{sSpin}, 0")
        a.label(lp)
        issML()
        for i in range(8):
            a(f"buffer_load_dwordx4 {vr(G+4*i,4)}, v{vL16}, {W}, s{sTmp[i>>2]} offen offset:{(i&3)*1024} sc1")
        a(f"s_mov_b32 s{sYoung}, 8")
        self.dwait(8, 10 if self.addn else 0, 'sw1')
        a(f"s_sub_u32 s{sTmp[4]}, s{sYoung}, 8")
        for r in range(4): a(f"v_xor_b32 v{MM+r}, s{sT[r]}, v{MM+r}")
        for r in range(4): a(f"v_xor_b32 v{LL+r}, s{sT[r]}, v{LL+r}")
        a(f"v_or3_b32 v{chk}, v{MM}, v{MM+1}, v{MM+2}"); a(f"v_or3_b32 v{chk}, v{chk}, v{MM+3}, v{LL}")
        a(f"v_or3_b32 v{chk}, v{chk}, v{LL+1}, v{LL+2}"); a(f"v_or_b32 v{chk}, v{chk}, v{LL+3}")
        R4 = range(4)
        for r in R4: a(f"v_max_f32_dpp v{Mx+r}, v{MM+r}, v{MM+r} {self.X1} {DPPALL}")
        self.dpp_steps([Mx+r for r in R4], "v_max_f32", [self.X2, self.HM])
        for r in R4: a(f"v_mov_b32 v{t1+r}, v{Mx+r}")
        for r in R4: a(f"v_permlane32_swap_b32 v{Mx+r}, v{t1+r}")
        for r in R4: a(f"v_max_f32 v{Mx+r}, v{Mx+r}, v{t1+r}")
        for r in R4: a(f"v_sub_f32 v{wv+r}, v{MM+r}, v{Mx+r}")
        for r in R4: a(f"v_exp_f32 v{wv+r}, v{wv+r}")
        for r in R4: a(f"v_mul_f32 v{den+r}, v{wv+r}, v{LL+r}")
        self.dpp_steps([den+r for r in R4], "v_add_f32", [self.X1, self.X2, self.HM])
        for r in R4: a(f"v_mov_b32 v{t1+r}, v{den+r}")
        for r in R4: a(f"v_permlane32_swap_b32 v{den+r}, v{t1+r}")
        for r in R4: a(f"v_add_f32 v{den+r}, v{den+r}, v{t1+r}")
        if self.mode == "co":
            a(f"s_cmp_eq_u32 s{sTmp[4]}, 0"); a(f"s_cbranch_scc1 {ns2}")
            a(f"s_mov_b32 s{sYoung}, s{sTmp[4]}")
            a(f"s_swappc_b64 s[{sRET2}:{sRET2+1}], s[{sDW}:{sDW+1}]")
            a(f"s_branch {jn2}")
            a.label(ns2)
        self.dwait(0, 0, 'sw1')
        a.label(jn2)
        dw = [G + i for i in range(32)]
        for k, r in enumerate(dw): a(f"v_xor_b32 v{r}, s{sT[k % 4]}, v{r}")
        a(f"v_or3_b32 v{vT0}, v{dw[0]}, v{dw[1]}, v{chk}"); a(f"v_or3_b32 v{vT0+1}, v{dw[2]}, v{dw[3]}, v{dw[4]}")
        k = 5; tog = 0
        while k < 31:
            tgt = vT0 + tog
            a(f"v_or3_b32 v{tgt}, v{tgt}, v{dw[k]}, v{dw[k+1]}"); k += 2; tog ^= 1
        a(f"v_or3_b32 v{vT0}, v{vT0}, v{vT0+1}, v{dw[31]}")
        a(f"v_and_b32 v{vT0}, s{sFF}, v{vT0}")
        a(f"v_cmp_ne_u32 vcc, 0, v{vT0}")
        a(f"s_cbranch_vccz {dn}")
        a(f"s_add_u32 s{sSpin}, s{sSpin}, 1"); a(f"s_cmp_lt_u32 s{sSpin}, {SPIN_MAX}"); a(f"s_cbranch_scc1 {lp}")
        a(f"s_mov_b32 s{sErr}, 1")
        a.label(dn)
        self.stampval(24, sSpin); self.stampval(25, sPos)
        self.stamp(6)
        acc = 48
        for i in range(8):
            for r in range(4):
                op = "v_mul_f32_dpp" if i == 0 else "v_fmac_f32_dpp"
                a(f"{op} v{acc+r}, v{wv+r}, v{G+4*i+r} row_newbcast:{i} {DPPALL}")
        a(f"v_bfe_u32 v14, v{vL16}, 8, 1"); a(f"v_lshlrev_b32 v14, 11, v14"); a(f"v_and_b32 v15, 0xf0, v{vL16}"); a(f"v_add_u32 v14, v14, v15")
        for r in R4: a(f"v_mov_b32 v{t1+r}, v{acc+r}")
        a(f"s_lshr_b32 s{sTmp[0]}, s{sI}, 2"); a(f"s_lshl_b32 s{sTmp[0]}, s{sTmp[0]}, 16")
        a(f"s_and_b32 s{sTmp[1]}, s{sI}, 3"); a(f"s_lshl_b32 s{sTmp[1]}, s{sTmp[1]}, 14"); a(f"s_add_u32 s{sTmp[0]}, s{sTmp[0]}, s{sTmp[1]}")
        for r in R4: a(f"v_permlane32_swap_b32 v{acc+r}, v{t1+r}")
        a(f"s_lshl_b32 s{sTmp[1]}, s{sW}, 12"); a(f"s_add_u32 s{sTmp[0]}, s{sTmp[0]}, s{sTmp[1]}")
        a(f"s_lshl_b32 s{sTmp[1]}, s{sXG}, 8"); a(f"s_add_u32 s{sTmp[0]}, s{sTmp[0]}, s{sTmp[1]}")
        for r in R4: a(f"v_add_f32 v{acc+r}, v{acc+r}, v{t1+r}")
        a(f"s_add_u32 s{sTmp[0]}, s{sTmp[0]}, {O_C2}")
        self.tag([acc, acc+1, acc+2, acc+3])
        a("s_mov_b32 exec_hi, 0")
        a(f"buffer_store_dwordx4 {vr(acc,4)}, v14, {W}, s{sTmp[0]} offen sc1")
        a("s_mov_b32 exec_hi, -1")
        lm = a.newlabel("ml2")
        a(f"s_and_b32 s{sTmp[1]}, s{sI}, 3"); a(f"s_or_b32 s{sTmp[1]}, s{sTmp[1]}, s{sW}"); a(f"s_cmp_lg_u32 s{sTmp[1]}, 0"); a(f"s_cbranch_scc1 {lm}")
        for r in (1, 2, 3):
            a(f"s_mov_b64 vcc, {1 << r}")
            a(f"v_cndmask_b32 v{Mx}, v{Mx}, v{Mx+r}, vcc"); a(f"v_cndmask_b32 v{den}, v{den}, v{den+r}, vcc")
        a(f"v_mov_b32 v{Mx+1}, v{den}"); a(f"v_mov_b32 v{Mx+2}, 0"); a(f"v_mov_b32 v{Mx+3}, 0")
        self.tag([Mx, Mx+1, Mx+2, Mx+3])
        a(f"s_lshl_b32 s{sTmp[1]}, s{sI}, 7"); a(f"s_lshl_b32 s{sTmp[2]}, s{sXG}, 4"); a(f"s_add_u32 s{sTmp[1]}, s{sTmp[1]}, s{sTmp[2]}")
        a(f"s_add_u32 s{sTmp[1]}, s{sTmp[1]}, {O_ML2}")
        a(f"v_lshlrev_b32 v15, 3, v{vL16}")
        a("s_mov_b64 exec, 15")
        a(f"buffer_store_dwordx4 {vr(Mx,4)}, v15, {W}, s{sTmp[1]} offen sc1")
        self.exec_all()
        a.label(lm)
        self.stamp(21)
        if not self.pfnew: self.load_wo(pWoA)
        G0, G1, M0, M1 = 16, 20, 24, 28
        a(f"v_bfe_u32 v15, v{vL16}, 6, 2")
        a(f"v_bfe_u32 v14, v{vL16}, 4, 2"); a(f"v_lshlrev_b32 v14, 2, v14"); a(f"v_lshrrev_b32 v32, 8, v{vL16}"); a(f"v_add_u32 v14, v14, v32")
        a(f"v_lshlrev_b32 v14, 4, v14"); a(f"v_lshl_add_u32 v14, v15, 8, v14")
        a(f"v_lshlrev_b32 v15, 4, v15")
        a(f"s_lshr_b32 s{sTmp[0]}, s{sH}, 2"); a(f"s_lshl_b32 s{sTmp[0]}, s{sTmp[0]}, 16"); a(f"s_lshl_b32 s{sTmp[1]}, s{sJ}, 13"); a(f"s_add_u32 s{sTmp[0]}, s{sTmp[0]}, s{sTmp[1]}")
        a(f"s_lshl_b32 s{sTmp[1]}, s{sW}, 11"); a(f"s_add_u32 s{sTmp[0]}, s{sTmp[0]}, s{sTmp[1]}"); a(f"s_add_u32 s{sTmp[0]}, s{sTmp[0]}, {O_C2}")
        a(f"s_lshl_b32 s{sTmp[2]}, s{sH}, 7"); a(f"s_add_u32 s{sTmp[2]}, s{sTmp[2]}, {O_ML2}")
        def iss2():
            a(f"buffer_load_dwordx4 {vr(M0,4)}, v15, {W}, s{sTmp[2]} offen sc1")
            a(f"buffer_load_dwordx4 {vr(M1,4)}, v15, {W}, s{sTmp[2]} offen offset:64 sc1")
            a(f"buffer_load_dwordx4 {vr(G0,4)}, v14, {W}, s{sTmp[0]} offen sc1")
            a(f"buffer_load_dwordx4 {vr(G1,4)}, v14, {W}, s{sTmp[0]} offen offset:1024 sc1")
        self.poll(iss2, [M0, M1, G0, G1], site='h5b')
        self.stampval(26, sSpin); self.stampval(27, sPos)
        self.stamp(14)
        lsel = [a.newlabel("sel") for _ in range(4)]; lj = a.newlabel("selj")
        Mx, f0, f1, Ls = 32, 33, 34, 35
        a(f"v_max_f32 v{Mx}, v{M0}, v{M1}")
        a(f"s_and_b32 s{sTmp[1]}, s{sH}, 3")
        for r in (1, 2, 3):
            a(f"s_cmp_eq_u32 s{sTmp[1]}, {r}"); a(f"s_cbranch_scc1 {lsel[r]}")
        a(f"s_branch {lj}")
        for r in (1, 2, 3):
            a.label(lsel[r])
            a(f"v_mov_b32 v{G0}, v{G0+r}"); a(f"v_mov_b32 v{G1}, v{G1+r}")
            if r < 3: a(f"s_branch {lj}")
        a.label(lj)
        self.dpp_steps([Mx], "v_max_f32", ["row_ror:4", "row_ror:8"])
        a(f"v_sub_f32 v{f0}, v{M0}, v{Mx}"); a(f"v_sub_f32 v{f1}, v{M1}, v{Mx}")
        a(f"v_exp_f32 v{f0}, v{f0}"); a(f"v_exp_f32 v{f1}, v{f1}")
        a(f"v_mul_f32 v{Ls}, v{f0}, v{M0+1}"); a(f"v_mul_f32 v{G0}, v{f0}, v{G0}")
        a(f"v_fmac_f32 v{Ls}, v{f1}, v{M1+1}"); a(f"v_fmac_f32 v{G0}, v{f1}, v{G1}")
        self.dpp_steps([Ls, G0], "v_add_f32", ["row_ror:4", "row_ror:8"])
        a(f"v_rcp_f32 v{Ls}, v{Ls}")
        a(f"v_mul_f32 v{G0}, v{G0}, v{Ls}")
        Xp = 14
        a(f"v_cvt_pk_bf16_f32 v{Xp}, v{G0}, v{G0}")
        D, Ab = 16, 20
        self.pv_gemv(Xp, 4, lambda i: vr(WUV+4*i, 4), D, Ab)
        self.red_write(D)
        self.row_slot_addr()
        a("s_waitcnt lgkmcnt(0)"); a("s_barrier")
        lf = a.newlabel("uvfin")
        a(f"s_cmp_lg_u32 s{sW}, 0"); a(f"s_cbranch_scc1 {lf}")
        G = 16
        self.red_final_read(G)
        a(f"s_mov_b32 s{sA}, {f32hex(0.125)}")
        a("s_waitcnt lgkmcnt(0)")
        self.sum4(G)
        a(f"v_writelane_b32 v{G}, 0, 32"); a(f"v_writelane_b32 v{G+1}, s{sA}, 32")
        self.tag([G, G+1, G+2, G+3])
        a("s_mov_b32 exec_hi, 1")
        self.local_stores([(G, vL16, sTmp[0], None)])
        a("s_mov_b32 exec_hi, -1")
        a.label(lf)
        self.stamp(7)

    def check_inline(self, regs, ok_label):
        a = self.a
        acc, acc2 = vT0, vT0 + 1
        dw = [g + i for g in regs for i in range(4)]
        for k, r in enumerate(dw): a(f"v_xor_b32 v{r}, s{sT[k % 4]}, v{r}")
        a(f"v_or3_b32 v{acc}, v{dw[0]}, v{dw[1]}, v{dw[2]}")
        a(f"v_or3_b32 v{acc2}, v{dw[3]}, v{dw[4]}, v{dw[5]}")
        k = 6; tog = 0
        while k < len(dw):
            tgt = acc if tog == 0 else acc2
            a(f"v_or3_b32 v{tgt}, v{tgt}, v{dw[k]}, v{dw[k+1]}"); k += 2; tog ^= 1
        a(f"v_or_b32 v{acc}, v{acc}, v{acc2}")
        a(f"v_and_b32 v{acc}, s{sFF}, v{acc}")
        a(f"v_cmp_ne_u32 vcc, 0, v{acc}")
        a(f"s_cbranch_vccz {ok_label}")

    def row_slot_addr(self):
        a = self.a
        a(f"s_lshl_b32 s{sTmp[0]}, s{sH}, 3"); a(f"s_add_u32 s{sTmp[0]}, s{sTmp[0]}, s{sJ}"); a(f"s_lshl_b32 s{sTmp[0]}, s{sTmp[0]}, 10")
        a(f"s_add_u32 s{sTmp[0]}, s{sTmp[0]}, {O_ROW}")

    def bmiddle(self):
        a = self.a
        k = self.kblk
        if self.mode == "co":
            l0 = a.newlabel("kw"); l1 = a.newlabel("kw")
            a.label(l0)
            a(f"s_cmp_ge_u32 s{sPos}, {80+self.keep}"); a(f"s_cbranch_scc1 {l1}")
            self.stream_call()
            a(f"s_waitcnt vmcnt({self.keep})")
            a(f"s_branch {l0}")
            a.label(l1)
            a(f"s_waitcnt vmcnt({self.keep})")
        self.stampval(24, sPos)
        self.stamp(16)
        self.wo_setup(pWoB)
        Db = [16, 20, 24]; SB = 28; Tt = 14
        def redops(b):
            D = Db[b % 3]; S = SB + b
            return [f"v_mov_b32_dpp v{S}, v{D} quad_perm:[0,0,0,0] {DPPALL}",
                    f"v_mov_b32_dpp v{Tt}, v{D+2} quad_perm:[2,2,2,2] {DPPALL}",
                    f"v_add_f32_dpp v{S}, v{D+1}, v{S} quad_perm:[1,1,1,1] {DPPALL}",
                    f"v_add_f32_dpp v{Tt}, v{D+3}, v{Tt} quad_perm:[3,3,3,3] {DPPALL}",
                    f"v_add_f32 v{S}, v{S}, v{Tt}"]
        for b in range(16):
            D = Db[b % 3]
            ro = redops(b - 2) if b >= 2 else []
            for t in range(4):
                c = "0" if t == 0 else vr(D, 4)
                a(f"v_mfma_f32_16x16x32_bf16 {vr(D,4)}, {vr(AT+4*t,4)}, {ar(16*b+4*t,4)}, {c}")
                if ro: a(ro[t])
                if t == 1 and b < 8: self.pf_guard(lambda: self.vtr_one(b))
                if t == 2 and 8 <= b < 14: self.pf_guard(lambda: self.wo_one(b - 8))
            if ro: a(ro[4])
            if b in self.qkcalls: self.topup(self.dq)
        r14, r15 = redops(14), redops(15)
        r15 = [x.replace(f"v{Tt}", "v15") for x in r15]
        for x14, x15 in zip(r14, r15):
            a(x14); a(x15)
        self.stamp(3)
        m, m2 = 14, 15
        a(f"v_max3_f32 v{m}, v{SB}, v{SB+1}, v{SB+2}"); a(f"v_max3_f32 v{m2}, v{SB+3}, v{SB+4}, v{SB+5}")
        a(f"v_max3_f32 v{m}, v{m}, v{SB+6}, v{SB+7}"); a(f"v_max3_f32 v{m2}, v{m2}, v{SB+8}, v{SB+9}")
        a(f"v_max3_f32 v{m}, v{m}, v{SB+10}, v{SB+11}"); a(f"v_max3_f32 v{m2}, v{m2}, v{SB+12}, v{SB+13}")
        a(f"v_max3_f32 v{m}, v{m}, v{SB+14}, v{SB+15}"); a(f"v_max_f32 v{m}, v{m}, v{m2}")
        self.dpp_steps([m], "v_max_f32", ["row_ror:4", "row_ror:8", "b15", "b31"])
        a(f"v_readlane_b32 s{sA}, v{m}, 63")
        a(f"v_mov_b32 v{m2}, s{sSc}")
        a(f"v_mul_f32 v{m}, s{sA}, v{m2}")
        a(f"v_readfirstlane_b32 s{sA}, v{m}")
        for q in range(16): a(f"v_fma_f32 v{SB+q}, v{SB+q}, s{sSc}, -v{m}")
        for q in range(16): a(f"v_exp_f32 v{SB+q}, v{SB+q}")
        l, l2 = 14, 15
        a(f"v_add_f32 v{l}, v{SB}, v{SB+1}"); a(f"v_add_f32 v{l2}, v{SB+2}, v{SB+3}")
        for q in range(4, 16, 2):
            a(f"v_add_f32 v{l}, v{l}, v{SB+q}"); a(f"v_add_f32 v{l2}, v{l2}, v{SB+q+1}")
        a(f"v_add_f32 v{l}, v{l}, v{l2}")
        pk = [f"v_cvt_pk_bf16_f32 v{SB+q}, v{SB+q}, v{SB+q}" for q in range(16)]
        red = [f"v_add_f32_dpp v{l}, v{l}, v{l} row_ror:4 {DPPALL}", f"v_add_f32_dpp v{l}, v{l}, v{l} row_ror:8 {DPPALL}",
               f"v_add_f32_dpp v{l}, v{l}, v{l} row_bcast:15 row_mask:0xa bank_mask:0xf", f"v_add_f32_dpp v{l}, v{l}, v{l} row_bcast:31 row_mask:0xc bank_mask:0xf"]
        for i in range(4):
            for x_ in pk[4*i:4*i+2]: a(x_)
            a(red[i])
            for x_ in pk[4*i+2:4*i+4]: a(x_)
        a(f"v_readlane_b32 s{sB_}, v{l}, 63")
        self.stamp(4)
        if self.mode == "co":
            self.drain(self.keep)
            a("s_waitcnt vmcnt(16)")
        Ab, Do = 44, 52
        LB = [16, 20, 24, 56]
        a(f"s_lshl_b32 s{sTmp[0]}, s{sW}, 14"); a(f"v_add_u32 v15, s{sTmp[0]}, v{vL16}")
        if L_VL: a(f"v_add_u32 v15, {L_VL}, v15")
        order = [(b, u) for b in range(10) for u in range(4)] + [(b, u) for b in range(10, 14) for u in range(4)] + [(b, u) for b in (14, 15) for u in range(4)]
        def build(kk):
            b, u = order[kk]; A = Ab + 4 * (kk % 2)
            for r in range(4):
                a(f"v_and_b32_dpp v{A+r}, v{SB+b}, v{vM[r]} row_newbcast:{4*u} {DPPALL}")
        def bop(kk):
            b, u = order[kk]
            if b < 10: return vr(VRES+16*b+4*u, 4)
            if b < 14: return vr(LB[u], 4)
            return vr(VTR+16*(b-14)+4*u, 4)
        def ldsrd(b, u):
            a(f"ds_read_b128 {vr(LB[u],4)}, v15 offset:{((b-10)*4+u)*1024}")
        build(0); build(1)
        for kk in range(len(order)):
            b, u = order[kk]
            if (b, u) == (8, 0):
                self.stamp(17)
                a("s_waitcnt vmcnt(0)")
                self.stamp(18)
                for uu in range(4): ldsrd(10, uu)
            if 10 <= b < 14: a(f"s_waitcnt lgkmcnt(3)" if not (b == 13 and u > 0) else f"s_waitcnt lgkmcnt({3-u})")
            A = Ab + 4 * (kk % 2)
            c = "0" if kk == 0 else vr(Do, 4)
            a(f"v_mfma_f32_16x16x32_bf16 {vr(Do,4)}, {vr(A,4)}, {bop(kk)}, {c}")
            if 10 <= b < 13: ldsrd(b + 1, u)
            if kk + 2 < len(order): build(kk + 2)
        self.row_slot_addr()
        a(f"v_writelane_b32 v{Do}, s{sA}, 32"); a(f"v_writelane_b32 v{Do+1}, s{sB_}, 32")
        self.red_write(Do)
        a("s_waitcnt lgkmcnt(0)"); a("s_barrier")
        self.stamp(5)
        lf = a.newlabel("bfin")
        a(f"s_cmp_lg_u32 s{sW}, 0"); a(f"s_cbranch_scc1 {lf}")
        G = 16; MLr = 32
        a(f"v_mov_b32 v14, {L_RED+512}")
        for w in range(4): a(f"ds_read_b64 {vr(MLr+2*w,2)}, v14 offset:{w*RSTR}")
        self.red_final_read(G)
        a("s_waitcnt lgkmcnt(4)")
        M = 40
        a(f"v_max3_f32 v{M}, v{MLr}, v{MLr+2}, v{MLr+4}"); a(f"v_max_f32 v{M}, v{M}, v{MLr+6}")
        for w in range(4): a(f"v_sub_f32 v{MLr+2*w}, v{MLr+2*w}, v{M}")
        for w in range(4): a(f"v_exp_f32 v{MLr+2*w}, v{MLr+2*w}")
        a(f"v_readfirstlane_b32 s{sA}, v{M}")
        a("s_waitcnt lgkmcnt(0)")
        for r in range(4): a(f"v_mul_f32 v{G+r}, v{MLr}, v{G+r}")
        for w in range(1, 4):
            for r in range(4): a(f"v_fmac_f32 v{G+r}, v{MLr+2*w}, v{G+4*w+r}")
        a(f"v_writelane_b32 v{G}, s{sA}, 32")
        self.tag([G, G+1, G+2, G+3])
        a("s_mov_b32 exec_hi, 1")
        self.local_stores([(G, vL16, sTmp[0], None)])
        a("s_mov_b32 exec_hi, -1")
        a.label(lf)
        self.stamp(7)

    def opart(self):
        a = self.a
        G, ML = 16, 20
        a(f"v_lshrrev_b32 v14, 7, v{vL16}"); a(f"v_lshlrev_b32 v15, 10, v14")
        a(f"v_and_b32 v14, 0x70, v{vL16}"); a(f"v_add_u32 v14, v15, v14")
        a(f"s_lshl_b32 s{sTmp[0]}, s{sH}, 13"); a(f"s_add_u32 s{sTmp[0]}, s{sTmp[0]}, {O_ROW}")
        a(f"s_lshl_b32 s{sTmp[1]}, s{sW}, 7"); a(f"s_add_u32 s{sTmp[1]}, s{sTmp[1]}, s{sTmp[0]}")
        a(f"v_lshrrev_b32 v59, 8, v{vL16}"); a(f"v_mul_u32_u24 v59, 160, v59")
        a(f"v_and_b32 v58, 0xf0, v{vL16}"); a(f"v_add_u32 v59, v59, v58")
        a(f"s_mul_i32 s{sTmp[2]}, s{sW}, {32*160}"); a(f"s_add_u32 s{sTmp[2]}, s{sTmp[2]}, {L_R0}"); a(f"v_add_u32 v59, s{sTmp[2]}, v59")
        def iss():
            a(f"buffer_load_dwordx4 {vr(ML,4)}, v15, {W}, s{sTmp[0]} offen offset:512 sc1")
            a(f"buffer_load_dwordx4 {vr(G,4)}, v14, {W}, s{sTmp[1]} offen sc1")
        self.poll(iss, [ML, G], site='row')
        self.stamp(8)
        WB = 24
        for i in range(8): a(f"ds_read_b128 {vr(WB+4*i,4)}, v59 offset:{i*640}")
        if self.pfnew: self.next_w()
        self.combine8(G, ML, 56)
        Xp = 14
        a(f"v_cvt_pk_bf16_f32 v{Xp}, v{G}, v{G}")
        D, Ab = 56, 16
        a("s_waitcnt lgkmcnt(0)")
        self.pv_gemv(Xp, 8, lambda i: vr(WB+4*i, 4), D, Ab)
        self.red_write(D)
        a(f"v_lshrrev_b32 v14, 4, v{vL16}"); a(f"v_mul_u32_u24 v15, 13108, v14"); a(f"v_lshrrev_b32 v15, 16, v15")
        a(f"v_mul_u32_u24 v24, 5, v15"); a(f"v_sub_u32 v14, v14, v24"); a(f"v_lshlrev_b32 v14, 4, v14"); a(f"v_lshl_add_u32 v14, v15, 7, v14")
        a(f"s_lshl_b32 s{sTmp[0]}, s{sJ}, 5"); a(f"s_add_u32 s{sTmp[0]}, s{sTmp[0]}, s{sH}"); a(f"s_lshl_b32 s{sTmp[0]}, s{sTmp[0]}, 9")
        a(f"s_add_u32 s{sTmp[0]}, s{sTmp[0]}, s{sCol}")
        a("s_waitcnt lgkmcnt(0)"); a("s_barrier")
        lf = a.newlabel("ofin")
        a(f"s_cmp_lg_u32 s{sW}, 0"); a(f"s_cbranch_scc1 {lf}")
        self.red_final_read(G)
        a("s_waitcnt lgkmcnt(0)")
        self.sum4(G); self.tag([G, G+1, G+2, G+3])
        self.exec_set(0xfffff, 0)
        a(f"buffer_store_dwordx4 {vr(G,4)}, v14, {W}, s{sTmp[0]} offen sc1")
        self.exec_all()
        a.label(lf)
        self.stamp(9)
        if not self.pfnew: self.next_w()
        a(f"v_lshrrev_b32 v14, 7, v{vL16}"); a(f"v_lshlrev_b32 v14, 9, v14")
        a(f"v_and_b32 v15, 0x70, v{vL16}"); a(f"v_add_u32 v14, v14, v15")
        a(f"s_lshl_b32 s{sTmp[0]}, s{sJ}, 14"); a(f"s_lshl_b32 s{sTmp[1]}, s{sW}, 7"); a(f"s_add_u32 s{sTmp[0]}, s{sTmp[0]}, s{sTmp[1]}")
        a(f"s_add_u32 s{sTmp[0]}, s{sTmp[0]}, s{sCol}")
        for i in range(1, 4): a(f"s_add_u32 s{sTmp[i]}, s{sTmp[0]}, {i*4096}")
        def issc():
            for i in range(4):
                a(f"buffer_load_dwordx4 {vr(G+4*i,4)}, v14, {W}, s{sTmp[i]} offen sc1")
        self.poll(issc, [G, G+4, G+8, G+12], execmask=(0x1f1f1f1f, 0x1f1f1f1f), site='col')
        self.stampval(28, sSpin); self.stampval(29, sPos)
        self.stamp(10)
        self.sum4(G)
        for r in range(4): a(f"v_add_f32_dpp v{G+r}, v{G+r}, v{G+r} row_ror:8 {DPPALL}")
        self.treduce([G, G+1, G+2, G+3])
        a(f"v_add_f32 v{G}, v{G}, v{vX}")
        a(f"v_cndmask_b32 v{vX}, 0, v{G}, s[{sM5}:{sM5+1}]")

    def next_w(self):
        a = self.a
        lnp = a.newlabel("nopf"); lb = a.newlabel("nouk")
        a(f"s_cmp_eq_u32 s{sL}, 3"); a(f"s_cbranch_scc1 {lnp}")
        a(f"s_add_u32 s{sL}, s{sL}, 1")
        self.load_wq()
        a(f"s_bitcmp1_b32 s{sL}, 0"); a(f"s_cbranch_scc1 {lb}")
        self.load_wuk()
        a.label(lb)
        a(f"s_sub_u32 s{sL}, s{sL}, 1")
        a.label(lnp)

    def epilogue(self):
        a = self.a
        le = a.newlabel("fin")
        a(f"s_cmp_lg_u32 s{sH}, 0"); a(f"s_cbranch_scc1 {le}")
        self.srd(SRD_B, pOut, 1280)
        a(f"v_lshrrev_b32 v14, 4, v{vL16}"); a(f"v_and_b32 v15, 15, v14"); a(f"v_lshrrev_b32 v14, 4, v14")
        a(f"v_lshl_add_u32 v14, v15, 2, v14")
        a(f"s_mul_i32 s{sTmp[0]}, s{sJ}, 80"); a(f"s_mul_i32 s{sTmp[1]}, s{sW}, 20"); a(f"s_add_u32 s{sTmp[0]}, s{sTmp[0]}, s{sTmp[1]}")
        a(f"v_add_u32 v14, s{sTmp[0]}, v14"); a(f"v_lshlrev_b32 v14, 1, v14")
        a(f"v_cvt_pk_bf16_f32 v15, v{vX}, v{vX}")
        a(f"s_mov_b64 exec, s[{sM5}:{sM5+1}]")
        a(f"buffer_store_short v15, v14, s[{SRD_B}:{SRD_B+3}], 0 offen")
        self.exec_all()
        a(f"s_cmp_lg_u32 s2, 0"); a(f"s_cbranch_scc1 {le}")
        a(f"s_cmp_lg_u32 s{sW}, 0"); a(f"s_cbranch_scc1 {le}")
        a(f"v_mov_b32 v14, 0")
        a("s_mov_b64 exec, 1")
        a(f"buffer_store_dword v{vT}, v14, {W}, 0 offen sc1")
        self.exec_all()
        a.label(le)
        l2 = a.newlabel("noerr")
        a(f"s_cmp_eq_u32 s{sErr}, 0"); a(f"s_cbranch_scc1 {l2}")
        self.srd(SRD_B, sDbg, 256)
        a(f"v_mov_b32 v14, 0"); a(f"v_mov_b32 v15, 0xdead")
        a("s_mov_b64 exec, 1")
        a(f"buffer_store_dword v15, v14, s[{SRD_B}:{SRD_B+3}], 0 offen")
        self.exec_all()
        a.label(l2)

    def build(self):
        a = self.a
        self.prologue()
        a.label("L_layer")
        self.qpart()
        a(f"s_bitcmp1_b32 s{sL}, 0"); a(f"s_cbranch_scc1 L_bmid")
        self.amiddle()
        a(f"s_branch L_opart")
        a.label("L_bmid")
        self.bmiddle()
        a.label("L_opart")
        self.opart()
        self.stamp(11)
        a(f"s_add_u32 s{sL}, s{sL}, 1"); a(f"s_xor_b32 s{sCol}, s{sCol}, 0x20000")
        nl = self.stop if self.stop else 4
        a(f"s_cmp_ge_u32 s{sL}, {nl}"); a("s_cbranch_scc1 L_done")
        self.next_tag()
        a("s_branch L_layer")
        a.label("L_done")
        self.epilogue()
        if self.stamps:
            a(f"s_mov_b32 s{sL}, 3")
            self.stamp(13)
        a("s_waitcnt vmcnt(0)")
        a.label("L_end")
        a("s_endpgm")
        self.dw_sub()
        self.stream()
        a.label("L_codeend")
        return fix(a.lines)

HEADER = open("interleave_layers__compressed_kv_cla__mha_block_cached__decode.s.ref").read().split("; Override launch")[0]

def make(path, **kw):
    body = "\n".join(Gen(**kw).build())
    src = f"""{HEADER}; @launch grid=(256,1,1) block=(256,1,1) lds={LDS_BYTES}
.amdgcn_target "amdgcn-amd-amdhsa--gfx950"
.text
.globl {KNAME}
.p2align 8
.type {KNAME},@function
{KNAME}:
{body}
.section .rodata,"a"
.p2align 6
.amdhsa_kernel {KNAME}
  .amdhsa_next_free_vgpr 512
  .amdhsa_next_free_sgpr 102
  .amdhsa_accum_offset 256
  .amdhsa_group_segment_fixed_size 0
  .amdhsa_kernarg_size 112
  .amdhsa_user_sgpr_count 2
  .amdhsa_user_sgpr_kernarg_segment_ptr 1
  .amdhsa_system_sgpr_workgroup_id_x 1
  .amdhsa_float_denorm_mode_32 3
.end_amdhsa_kernel
"""
    open(path, "w").write(src)

if __name__ == "__main__":
    import argparse
    ap = argparse.ArgumentParser()
    ap.add_argument("-o", default="k.s"); ap.add_argument("--opts", default="")
    x = ap.parse_args()
    kw = {}
    for o in filter(None, x.opts.split(";")):
        k_, v_ = o.split("="); kw[k_] = eval(v_)
    make(x.o, **kw)
```

```python
import sys, struct
from hazard import fix

KNAME = "interleave_layers__compressed_kv_cla__mha_block_cached__decode_kernel"

class Asm:
    def __init__(self): self.lines = []; self.n = 0
    def __call__(self, s):
        for l in s.split("\n"):
            l = l.strip()
            if l: self.lines.append(l)
    def label(self, name): self.lines.append(name + ":")
    def newlabel(self, base="L"):
        self.n += 1; return f"{base}_{self.n}"

def vr(b, n=1): return f"v{b}" if n == 1 else f"v[{b}:{b+n-1}]"
def ar(b, n=1): return f"a{b}" if n == 1 else f"a[{b}:{b+n-1}]"
DPPALL = "row_mask:0xf bank_mask:0xf"
def f32hex(x): return "0x%08x" % struct.unpack("<I", struct.pack("<f", x))[0]

O_XCC  = 0x001000
O_STAMP = 0x080000
O_QP   = 0x100000
O_ROW  = 0x180000
O_COL  = 0x1C0000
O_QABS = 0x200000
O_ML1  = 0x210000
O_C2   = 0x240000
O_ML2  = 0x2C0000
O_C1   = 0x300000

L_VL  = 0
L_CKV = 65536
L_R0  = 131072
L_ST  = 151680
L_RED = 156032
RSTR  = 1056
L_U   = 160256
LDS_BYTES = 163840

sH, sJ, sW, sL, sAct = 3, 4, 5, 6, 7
SRD_WS, SRD_K, SRD_V, SRD_A, SRD_B = 8, 12, 16, 20, 24
sSPC, sRET = 28, 30
sT = [32, 33, 34, 35]
sSel = [36, 37, 38, 39]
pWqA, pWqB, pWuk, pWuv, pWoA, pWoB, pCkv, pOut, pX = 40, 42, 44, 46, 48, 50, 52, 54, 56
sCol = 58
sGA, sS = 59, 60
sSO = 61
sSpin = 62
sPos = 63
sFF = 64
sTmp = list(range(65, 76))
sMask = [76, 78, 80, 82]
sM5 = 84
sDbg = 86
sErr = 88
sLocal = 89
sA, sB_ = 90, 91
sTs = 92
sXG, sI, sSc, sXcc = 98, 99, 100, 101
sTf = 97
sDW, sRET2, sYoung, sVm, sVm2, sDl = 70, 72, 74, 75, 94, 95

vL16, vM, vT, vX, vWoff, vKoff, vVoff, vRedW = 0, [1, 2, 3, 4], 5, 6, 7, 8, 9, 10
vT0 = 11
vCk = 11
vWo = 13
WQ, WUK, WUV, VTR, VRES = 76, 60, 80, 64, 96
AT = 44

SC = (128 ** -0.5) * 1.4426950408889634
SPIN_MAX = 1 << 16
W = f"s[{SRD_WS}:{SRD_WS+3}]"

class Gen:
    def __init__(self, kblk=8, stream_mode="co", stop_after=None, local=True, stamps="", pol="nt", wpol="", cpol="", codepf=True,
                 qkcalls=(4, 10), sent=True, nopf=False, once=True, xcalls=(), dlim=6, keep=6, addn=True, pretouch=True, mlsent=True, slp=0, sent1=False, pfnew=True, mltail=True, dsite=None, pre=None, rsl=None, dq=None, dbg=None):
        self.dbg = dbg
        self.pre = pre or {}; self.rsl = rsl or {}; self.dq = dq
        self.pfnew = pfnew; self.mltail = mltail; self.dsite = dsite or {}
        self.slp = slp; self.sent1 = sent1
        self.addn = addn; self.pretouch = pretouch; self.mlsent = mlsent
        self.once = once; self.xcalls = xcalls; self.dlim = dlim; self.keep = keep
        self.nopf = nopf
        self.a = Asm(); self.kblk = kblk; self.mode = stream_mode; self.stop = stop_after
        self.local = local; self.stamps = stamps; self.pol = pol; self.wpol = wpol; self.cpol = cpol; self.codepf = codepf
        self.qkcalls = qkcalls; self.sent = sent

    def srd(self, s, lo, nbytes):
        a = self.a
        a(f"s_mov_b32 s{s}, s{lo}"); a(f"s_mov_b32 s{s+1}, s{lo+1}")
        a(f"s_mov_b32 s{s+2}, {nbytes:#x}"); a(f"s_mov_b32 s{s+3}, 0x20000")
    def exec_all(self): self.a("s_mov_b64 exec, -1")
    def exec_set(self, lo, hi):
        self.a(f"s_mov_b32 exec_lo, {lo:#x}"); self.a(f"s_mov_b32 exec_hi, {hi:#x}")
    def tag(self, regs):
        for i, r in enumerate(regs):
            self.a(f"v_perm_b32 v{r}, v{r}, v{vT}, s{sSel[i%4]}")
    def stamp(self, idx):
        if not self.stamps: return
        if self.stamps == "light" and idx not in (12, 13): return
        a = self.a
        lab = a.newlabel("st")
        a(f"s_cmp_lg_u32 s{sW}, 0"); a(f"s_cbranch_scc1 {lab}")
        a(f"s_memrealtime s[{sTs}:{sTs+1}]")
        a("s_waitcnt lgkmcnt(0)")
        a(f"s_lshl_b32 s96, s2, 2"); a(f"s_add_u32 s96, s96, s{sL}"); a(f"s_lshl_b32 s96, s96, 7")
        a(f"s_add_u32 s96, s96, {O_STAMP + idx*4}")
        a(f"v_mov_b32 v{vT0}, s{sTs}")
        a(f"v_mov_b32 v{vT0+1}, 0")
        a(f"s_mov_b64 s[{sTs}:{sTs+1}], exec"); a("s_mov_b64 exec, 1")
        a(f"buffer_store_dword v{vT0}, v{vT0+1}, {W}, s96 offen")
        a(f"s_mov_b64 exec, s[{sTs}:{sTs+1}]")
        a.label(lab)
    def dbgstamp(self, k, cond_layer=None):
        if not self.dbg or k not in self.dbg: return
        a = self.a
        k = self.dbg.index(k)
        lab = a.newlabel("db")
        a(f"s_cmp_lg_u32 s{sW}, 0"); a(f"s_cbranch_scc1 {lab}")
        a(f"s_cmp_ge_u32 s2, 8"); a(f"s_cbranch_scc1 {lab}")
        if cond_layer is not None:
            a(f"s_cmp_lg_u32 s{sL}, {cond_layer}"); a(f"s_cbranch_scc1 {lab}")
        a(f"s_memrealtime s[{sTs}:{sTs+1}]")
        a("s_waitcnt lgkmcnt(0)")
        a(f"s_mov_b32 s{SRD_A}, s{sDbg}"); a(f"s_mov_b32 s{SRD_A+1}, s{sDbg+1}"); a(f"s_mov_b32 s{SRD_A+2}, 256"); a(f"s_mov_b32 s{SRD_A+3}, 0x20000")
        a(f"s_lshl_b32 s96, s2, 3"); a(f"s_add_u32 s96, s96, {4*k}")
        a(f"v_mov_b32 v{vT0}, s{sTs}")
        a(f"v_mov_b32 v{vT0+1}, 0")
        a(f"s_mov_b64 s[{sTs}:{sTs+1}], exec"); a("s_mov_b64 exec, 1")
        a(f"buffer_store_dword v{vT0}, v{vT0+1}, s[{SRD_A}:{SRD_A+3}], s96 offen")
        a(f"s_mov_b64 exec, s[{sTs}:{sTs+1}]")
        a.label(lab)
    def stampval(self, idx, sreg):
        if self.stamps != "full": return
        a = self.a
        lab = a.newlabel("sv")
        a(f"s_cmp_lg_u32 s{sW}, 0"); a(f"s_cbranch_scc1 {lab}")
        a(f"s_lshl_b32 s96, s2, 2"); a(f"s_add_u32 s96, s96, s{sL}"); a(f"s_lshl_b32 s96, s96, 7")
        a(f"s_add_u32 s96, s96, {O_STAMP + idx*4}")
        a(f"v_mov_b32 v{vT0}, s{sreg}")
        a(f"v_mov_b32 v{vT0+1}, 0")
        a(f"s_mov_b64 s[{sTs}:{sTs+1}], exec"); a("s_mov_b64 exec, 1")
        a(f"buffer_store_dword v{vT0}, v{vT0+1}, {W}, s96 offen")
        a(f"s_mov_b64 exec, s[{sTs}:{sTs+1}]")
        a.label(lab)
    def stream_call(self):
        self.a(f"s_swappc_b64 s[{sRET}:{sRET+1}], s[{sSPC}:{sSPC+1}]")
    def maybe_stream(self):
        a = self.a
        lab = a.newlabel("ns")
        a(f"s_cmp_eq_u32 s{sAct}, 0"); a(f"s_cbranch_scc1 {lab}")
        self.stream_call()
        a.label(lab)
    def read_vm(self):
        a = self.a
        a(f"s_getreg_b32 s{sVm}, hwreg(HW_REG_IB_STS)")
        a(f"s_bfe_u32 s{sVm2}, s{sVm}, 0x20016"); a(f"s_and_b32 s{sVm}, s{sVm}, 15")
        a(f"s_lshl4_add_u32 s{sVm}, s{sVm2}, s{sVm}")
    def dw_sub(self):
        a = self.a
        a.label("L_dw")
        self.read_vm()
        a(f"s_cmp_le_u32 s{sVm}, s{sYoung}"); a("s_cbranch_scc1 L_dwret")
        a(f"s_cmp_ge_u32 s{sVm}, s{sDl}"); a("s_cbranch_scc1 L_dw")
        a(f"s_cmp_eq_u32 s{sAct}, 0"); a("s_cbranch_scc1 L_dw")
        self.stream_call()
        a(f"s_add_u32 s{sYoung}, s{sYoung}, {self.kblk}")
        a("s_branch L_dw")
        a.label("L_dwret")
        a(f"s_setpc_b64 s[{sRET2}:{sRET2+1}]")
    def dwait(self, young, n=0, site=None):
        dl = self.dsite.get(site, self.dlim)
        a = self.a
        if self.mode != "co":
            a(f"s_waitcnt vmcnt({young})"); return
        ns = a.newlabel("dwn"); jn = a.newlabel("dwj")
        a(f"s_cmp_eq_u32 s{sAct}, 0"); a(f"s_cbranch_scc1 {ns}")
        a(f"s_mov_b32 s{sYoung}, {young}"); a(f"s_mov_b32 s{sDl}, {dl + n if dl else 0}")
        a(f"s_swappc_b64 s[{sRET2}:{sRET2+1}], s[{sDW}:{sDW+1}]")
        a(f"s_branch {jn}")
        a.label(ns)
        a(f"s_waitcnt vmcnt({young})")
        a.label(jn)
    def topup(self, depth=None):
        if self.mode != "co": return
        depth = self.dlim if depth is None else depth
        a = self.a
        lab = a.newlabel("tu")
        a(f"s_cmp_eq_u32 s{sAct}, 0"); a(f"s_cbranch_scc1 {lab}")
        self.read_vm()
        a(f"s_cmp_ge_u32 s{sVm}, {depth}"); a(f"s_cbranch_scc1 {lab}")
        self.stream_call()
        a.label(lab)
    def drain(self, keep):
        a = self.a
        l0 = a.newlabel("drain"); l1 = a.newlabel("drained")
        a.label(l0)
        a(f"s_cmp_eq_u32 s{sAct}, 0"); a(f"s_cbranch_scc1 {l1}")
        self.stream_call()
        a(f"s_waitcnt vmcnt({keep})")
        a(f"s_branch {l0}")
        a.label(l1)

    def poll(self, issue, regs, execmask=None, stream=True, site=None):
        a = self.a
        lp = a.newlabel("poll"); ns = a.newlabel("pns"); jn = a.newlabel("pj"); dn = a.newlabel("pdone")
        if execmask: self.exec_set(*execmask)
        a(f"s_mov_b32 s{sSpin}, 0")
        if self.pre.get(site): a(f"s_sleep {self.pre[site]}")
        a.label(lp)
        issue()
        if execmask and self.mode == "co": self.exec_all()
        self.dwait(0, len(regs) if self.addn else 0, site)
        if execmask and self.mode == "co": self.exec_set(*execmask)
        a.label(jn)
        acc, acc2 = vT0, vT0 + 1
        dw = [g + i for g in regs for i in range(4)]
        for k, r in enumerate(dw): a(f"v_xor_b32 v{r}, s{sT[k % 4]}, v{r}")
        a(f"v_or3_b32 v{acc}, v{dw[0]}, v{dw[1]}, v{dw[2]}")
        if len(dw) == 4:
            a(f"v_or_b32 v{acc}, v{acc}, v{dw[3]}")
        else:
            a(f"v_or3_b32 v{acc2}, v{dw[3]}, v{dw[4]}, v{dw[5]}")
            k = 6; tog = 0
            while k < len(dw):
                tgt = acc if tog == 0 else acc2
                a(f"v_or3_b32 v{tgt}, v{tgt}, v{dw[k]}, v{dw[k+1]}"); k += 2
                tog ^= 1
            a(f"v_or_b32 v{acc}, v{acc}, v{acc2}")
        a(f"v_and_b32 v{acc}, s{sFF}, v{acc}")
        a(f"v_cmp_ne_u32 vcc, 0, v{acc}")
        a(f"s_cbranch_vccz {dn}")
        if self.rsl.get(site): a(f"s_sleep {self.rsl[site]}")
        if self.slp:
            lz = a.newlabel("nsl")
            a(f"s_cmp_eq_u32 s{sAct}, 0"); a(f"s_cbranch_scc1 {lz}")
            a(f"s_sleep {self.slp}")
            a.label(lz)
        a(f"s_add_u32 s{sSpin}, s{sSpin}, 1")
        a(f"s_cmp_lt_u32 s{sSpin}, {SPIN_MAX}")
        a(f"s_cbranch_scc1 {lp}")
        a(f"s_mov_b32 s{sErr}, 1")
        a.label(dn)
        if execmask: self.exec_all()

    def dpp_steps(self, regs, op, steps):
        for d in steps:
            for r in regs:
                if d == "b15": self.a(f"{op}_dpp v{r}, v{r}, v{r} row_bcast:15 row_mask:0xa bank_mask:0xf")
                elif d == "b31": self.a(f"{op}_dpp v{r}, v{r}, v{r} row_bcast:31 row_mask:0xc bank_mask:0xf")
                else: self.a(f"{op}_dpp v{r}, v{r}, v{r} {d} {DPPALL}")
    X1, X2, HM, RM = "quad_perm:[1,0,3,2]", "quad_perm:[2,3,0,1]", "row_half_mirror", "row_mirror"
    def reduce63(self, regs, op):
        self.dpp_steps(regs, op, [self.X1, self.X2, self.HM, self.RM, "b15", "b31"])

    def treduce(self, r):
        a = self.a
        a(f"v_permlane32_swap_b32 v{r[0]}, v{r[2]}")
        a(f"v_permlane32_swap_b32 v{r[1]}, v{r[3]}")
        a(f"v_add_f32 v{r[0]}, v{r[0]}, v{r[2]}")
        a(f"v_add_f32 v{r[1]}, v{r[1]}, v{r[3]}")
        a(f"v_permlane16_swap_b32 v{r[0]}, v{r[1]}")
        a(f"v_add_f32 v{r[0]}, v{r[0]}, v{r[1]}")

    def pv_gemv(self, Xp, nload, bop, D, Abuf):
        a = self.a
        def build(i):
            A = Abuf + 4 * (i % 2)
            for r in range(4):
                a(f"v_and_b32_dpp v{A+r}, v{Xp}, v{vM[r]} row_newbcast:{i} {DPPALL}")
        build(0)
        if nload > 1: build(1)
        for i in range(nload):
            A = Abuf + 4 * (i % 2)
            c = "0" if i == 0 else vr(D, 4)
            a(f"v_mfma_f32_16x16x32_bf16 {vr(D,4)}, {vr(A,4)}, {bop(i)}, {c}")
            if i + 2 < nload: build(i + 2)

    def red_write(self, D, off=0):
        a = self.a
        a("s_mov_b32 exec_hi, 1")
        a(f"ds_write_b128 v{vRedW}, {vr(D,4)} offset:{off}")
        a("s_mov_b32 exec_hi, -1")
    def red_final_read(self, G, off=0):
        a = self.a
        a(f"v_add_u32 v{vT0}, {L_RED}, v{vL16}")
        for w in range(4):
            a(f"ds_read_b128 {vr(G+4*w,4)}, v{vT0} offset:{w*RSTR+off}")
    def sum4(self, G):
        a = self.a
        for r in range(4):
            a(f"v_add_f32 v{G+r}, v{G+r}, v{G+4+r}")
            a(f"v_add_f32 v{G+8+r}, v{G+8+r}, v{G+12+r}")
        for r in range(4):
            a(f"v_add_f32 v{G+r}, v{G+r}, v{G+8+r}")

    def local_stores(self, items):
        a = self.a
        def emit(flag):
            for (data, vaddr, soff, pre) in items:
                if pre: pre()
                a(f"buffer_store_dwordx4 {vr(data,4)}, v{vaddr}, {W}, s{soff} offen {flag}")
        if self.local:
            l0 = a.newlabel("ls"); l1 = a.newlabel("ls")
            a(f"s_cmp_eq_u32 s{sLocal}, 0"); a(f"s_cbranch_scc1 {l0}")
            emit("")
            a(f"s_branch {l1}")
            a.label(l0)
            emit("sc1")
            a.label(l1)
        else:
            emit("sc1")

    def next_tag(self):
        a = self.a
        a(f"s_mul_i32 s{sTf}, s{sTf}, 0x9E3779B1"); a(f"s_add_u32 s{sTf}, s{sTf}, 0x7F4A7C15")
        a(f"v_mov_b32 v{vT}, s{sTf}")
        a(f"s_and_b32 s{sT[0]}, s{sTf}, 0xff"); a(f"s_bfe_u32 s{sT[1]}, s{sTf}, 0x80008")
        a(f"s_bfe_u32 s{sT[2]}, s{sTf}, 0x80010"); a(f"s_lshr_b32 s{sT[3]}, s{sTf}, 24")

    def pf_guard(self, fn, lmin=2):
        if not self.nopf: return fn()
        a = self.a; l = a.newlabel("npf")
        a(f"s_cmp_ge_u32 s{sL}, {lmin}"); a(f"s_cbranch_scc1 {l}")
        fn()
        a.label(l)
    def load_wq(self):
        self.pf_guard(self.load_wq_)
    def load_wq_(self):
        a = self.a
        l0 = a.newlabel("wq"); l1 = a.newlabel("wq")
        a(f"s_bitcmp1_b32 s{sL}, 0"); a(f"s_cbranch_scc1 {l0}")
        a(f"s_mov_b32 s{SRD_A}, s{pWqA}"); a(f"s_mov_b32 s{SRD_A+1}, s{pWqA+1}"); a(f"s_branch {l1}")
        a.label(l0)
        a(f"s_mov_b32 s{SRD_A}, s{pWqB}"); a(f"s_mov_b32 s{SRD_A+1}, s{pWqB+1}")
        a.label(l1)
        a(f"s_mov_b32 s{SRD_A+2}, {19*8192+256}"); a(f"s_mov_b32 s{SRD_A+3}, 0x20000")
        for i in range(5):
            a(f"s_mov_b32 s{sTmp[0]}, {i*32768}")
            a(f"buffer_load_dwordx4 {vr(WQ+4*i,4)}, v{vWoff}, s[{SRD_A}:{SRD_A+3}], s{sTmp[0]} offen {self.wpol}")
    def load_wuk(self):
        self.pf_guard(self.load_wuk_)
    def load_wuk_(self):
        a = self.a
        self.srd(SRD_A, pWuk, 15*8192+256)
        t = vT0
        a(f"v_lshrrev_b32 v{t}, 8, v{vKoff}"); a(f"v_lshlrev_b32 v{t}, 13, v{t}")
        a(f"v_and_b32 v{t+1}, s{sFF}, v{vKoff}"); a(f"v_or_b32 v{t}, v{t}, v{t+1}")
        for i in range(4):
            a(f"s_mov_b32 s{sTmp[0]}, {i*32768}")
            a(f"buffer_load_dwordx4 {vr(WUK+4*i,4)}, v{t}, s[{SRD_A}:{SRD_A+3}], s{sTmp[0]} offen {self.wpol}")
    def load_wuv(self):
        self.pf_guard(self.load_wuv_)
    def load_wuv_(self):
        a = self.a
        self.srd(SRD_A, pWuv, 15*8192+256)
        for i in range(4):
            a(f"s_mov_b32 s{sTmp[0]}, {i*32768}")
            a(f"buffer_load_dwordx4 {vr(WUV+4*i,4)}, v{vWoff}, s[{SRD_A}:{SRD_A+3}], s{sTmp[0]} offen {self.wpol}")
    def wo_setup(self, p):
        a = self.a
        self.srd(SRD_A, p, 31*1280+160)
        a(f"s_mul_i32 s{sTmp[1]}, s{sW}, {32*160}"); a(f"s_add_u32 s{sTmp[1]}, s{sTmp[1]}, {L_R0}")
    def wo_one(self, i):
        a = self.a
        a(f"s_add_u32 m0, s{sTmp[1]}, {i*6*160}")
        a(f"s_mov_b32 s{sTmp[0]}, {i*6*1280}")
        if i < 5: a("s_mov_b32 exec_hi, 0x0fffffff")
        else: self.exec_set(0x000fffff, 0)
        a(f"buffer_load_dwordx4 v{vWo}, s[{SRD_A}:{SRD_A+3}], s{sTmp[0]} offen {self.wpol} lds")
        if i < 5: a("s_mov_b32 exec_hi, -1")
        else: self.exec_all()
    def load_wo(self, p):
        def f():
            self.wo_setup(p)
            for i in range(6): self.wo_one(i)
        self.pf_guard(f)
    def ckv_one(self, kk):
        a = self.a
        f = (kk & 8) | ((kk & 3) << 1) | ((kk >> 2) & 1)
        a(f"v_xor_b32 v{vCk}, {f*16}, v{vL16}")
        a(f"s_lshl_b32 s{sSO}, s{sW}, 14"); a(f"s_add_u32 m0, s{sSO}, {L_CKV + kk*1024}")
        a(f"s_mov_b32 s{sSO}, {kk*1024}")
        a(f"buffer_load_dwordx4 v{vCk}, s[{SRD_B}:{SRD_B+3}], s{sSO} offen {self.cpol} lds")
    def vtr_one(self, k):
        a = self.a
        b, u = 14 + (k >> 2), k & 3
        if u == 0: a(f"s_mov_b32 s{sTmp[2]}, {b*4096}")
        a(f"buffer_load_dwordx4 {vr(VTR+(b-14)*16+4*u,4)}, v{vVoff}, s[{SRD_V}:{SRD_V+3}], s{sTmp[2]} offen offset:{u*256} {self.pol}")

    def prologue(self):
        a = self.a
        a("s_cmp_ge_u32 s2, 256"); a("s_cbranch_scc1 L_end")
        a("s_load_dwordx4 s[64:67], s[0:1], 0")
        a("s_load_dwordx4 s[68:71], s[0:1], 16")
        a("s_load_dwordx4 s[72:75], s[0:1], 32")
        a("s_load_dwordx4 s[76:79], s[0:1], 56")
        a("s_load_dwordx4 s[80:83], s[0:1], 72")
        a("s_load_dwordx4 s[84:87], s[0:1], 88")
        a("s_load_dwordx2 s[8:9], s[0:1], 104")
        a(f"v_lshrrev_b32 v20, 6, v0")
        a(f"v_and_b32 v21, 63, v0")
        a(f"v_readfirstlane_b32 s{sW}, v20")
        a(f"s_and_b32 s{sH}, s2, 31"); a(f"s_lshr_b32 s{sJ}, s2, 5")
        a(f"s_and_b32 s{sXG}, s2, 7"); a(f"s_lshr_b32 s{sI}, s2, 3")
        a(f"s_and_b32 s{sGA}, s{sI}, 1")
        a(f"s_lshr_b32 s{sS}, s{sI}, 1"); a(f"s_lshl_b32 s92, s{sXG}, 4"); a(f"s_add_u32 s{sS}, s{sS}, s92")
        a(f"v_lshlrev_b32 v{vL16}, 4, v21")
        if self.codepf:
            lc = a.newlabel("cpf")
            a(f"s_cmp_lg_u32 s{sW}, 3"); a(f"s_cbranch_scc1 {lc}")
            a("s_getpc_b64 s[20:21]")
            a.label("L_pcx")
            a("s_mov_b32 s22, L_codeend-L_pcx"); a("s_mov_b32 s23, 0x20000")
            a("v_lshlrev_b32 v22, 6, v21")
            self.ncode = 7
            for i in range(self.ncode):
                a(f"s_mov_b32 s92, {i*4096}")
                a(f"buffer_load_dword v23, v22, s[20:23], s92 offen")
            a.label(lc)
        a("v_and_b32 v22, 15, v21")
        a("v_lshrrev_b32 v23, 4, v21") if not self.codepf else a("v_lshrrev_b32 v19, 4, v21")
        g = 23 if not self.codepf else 19
        a(f"v_lshlrev_b32 v24, 4, v22")
        a(f"v_lshl_add_u32 v{vWoff}, v{g}, 13, v24")
        a(f"v_lshl_add_u32 v{vVoff}, v{g}, 10, v24")
        a(f"v_and_b32 v25, 3, v22"); a(f"v_lshl_add_u32 v25, v{g}, 2, v25"); a("v_lshlrev_b32 v25, 4, v25")
        a("v_lshrrev_b32 v26, 2, v22"); a(f"v_lshl_add_u32 v{vKoff}, v26, 8, v25")
        a("v_and_b32 v25, 1, v22"); a("v_cmp_eq_u32 vcc, 1, v25")
        a("v_mov_b32 v26, 0xffff"); a("v_mov_b32 v27, 0xffff0000"); a("v_cndmask_b32 v26, v26, v27, vcc")
        a("v_lshrrev_b32 v25, 1, v22")
        for r in range(4):
            a(f"v_cmp_eq_u32 vcc, {r}, v25"); a(f"v_cndmask_b32 v{vM[r]}, 0, v26, vcc")
        a(f"v_lshl_add_u32 v25, v22, 1, v{g}"); a("v_lshlrev_b32 v25, 4, v25")
        a("v_cmp_gt_u32 vcc, 32, v21"); a("v_mov_b32 v26, 512"); a("v_cndmask_b32 v25, v26, v25, vcc")
        a(f"s_mul_i32 s92, s{sW}, {RSTR}"); a(f"s_add_u32 s92, s92, {L_RED}"); a(f"v_add_u32 v{vRedW}, s92, v25")
        a(f"v_mul_u32_u24 v25, 6554, v21"); a(f"v_lshrrev_b32 v25, 16, v25")
        a(f"v_mul_u32_u24 v26, 10, v25"); a(f"v_sub_u32 v26, v21, v26")
        a(f"v_mul_u32_u24 v25, 1280, v25"); a(f"v_lshl_add_u32 v{vWo}, v26, 4, v25")
        a("s_waitcnt lgkmcnt(0)")
        a(f"s_mov_b32 s{SRD_WS+2}, 0x10000000"); a(f"s_mov_b32 s{SRD_WS+3}, 0x20000")
        if self.stamps:
            a(f"s_mov_b32 s{sL}, 0")
            self.stamp(12)
        self.dbgstamp("entry")
        a("v_mov_b32 v28, 0")
        a(f"buffer_load_dword v{vT}, v28, {W}, 0 offen sc1")
        a(f"s_mov_b32 s{pX}, s64"); a(f"s_mov_b32 s{pX+1}, s65")
        self.srd(SRD_B, pX, 1280)
        a(f"s_mul_i32 s92, s{sJ}, 80"); a(f"s_mul_i32 s93, s{sW}, 20"); a("s_add_u32 s92, s92, s93")
        a(f"v_lshl_add_u32 v25, v22, 2, v{g}"); a("v_add_u32 v25, s92, v25"); a("v_lshlrev_b32 v29, 1, v25")
        a(f"s_mov_b32 s94, 0x001f001f"); a(f"s_mov_b32 s95, 0x001f001f")
        a(f"v_mov_b32 v{vX}, 0")
        a("s_mov_b64 exec, s[94:95]")
        a(f"buffer_load_ushort v{vX}, v29, s[{SRD_B}:{SRD_B+3}], 0 offen")
        self.exec_all()
        def addp(dst, src, terms):
            a(f"s_mov_b32 s92, 0")
            for (sreg, c) in terms:
                a(f"s_mul_i32 s93, s{sreg}, {c}"); a("s_add_u32 s92, s92, s93")
            a(f"s_add_u32 s{dst}, s{src}, s92"); a(f"s_addc_u32 s{dst+1}, s{src+1}, 0")
        addp(pWqA, 68, [(sJ, 80*8192), (sW, 20*8192), (sH, 256)])
        a(f"s_mov_b32 s{sL}, 0")
        self.load_wq()
        addp(pWuk, 70, [(sJ, 64*8192), (sW, 16*8192), (sH, 256)])
        a(f"s_mov_b32 s{sFF}, 0xff")
        self.load_wuk()
        addp(pCkv, 66, [(sS, 65536), (sW, 16384)])
        addp(pWqB, 80, [(sJ, 80*8192), (sW, 20*8192), (sH, 256)])
        addp(pWuv, 72, [(sJ, 64*8192), (sW, 16*8192), (sH, 256)])
        addp(pWoA, 74, [(sH, 163840), (sW, 32*1280), (sJ, 160)])
        addp(pWoB, 82, [(sH, 163840), (sW, 32*1280), (sJ, 160)])
        addp(SRD_K, 76, [(sH, 2097152), (sJ, 262144), (sW, 65536)])
        addp(SRD_V, 78, [(sH, 2097152), (sJ, 262144), (sW, 65536)])
        a(f"s_mov_b32 s{SRD_K+2}, 65536"); a(f"s_mov_b32 s{SRD_K+3}, 0x20000")
        a(f"s_mov_b32 s{SRD_V+2}, 65536"); a(f"s_mov_b32 s{SRD_V+3}, 0x20000")
        a(f"s_mov_b32 s{pOut}, s84"); a(f"s_mov_b32 s{pOut+1}, s85")
        self.srd(SRD_B, pCkv, 16384)
        if self.pretouch:
            a(f"s_lshl_b32 s92, s2, 13"); a(f"s_lshl_b32 s93, s{sW}, 11"); a("s_add_u32 s92, s92, s93"); a(f"s_add_u32 s92, s92, {O_QP}")
            a(f"buffer_load_dwordx4 v[48:51], v{vL16}, {W}, s92 offen")
            a(f"buffer_load_dwordx4 v[48:51], v{vL16}, {W}, s92 offen offset:1024")
        a(f"s_mov_b32 s{sErr}, 0"); a(f"s_mov_b32 s{sLocal}, 0")
        a(f"s_mov_b32 s{sM5}, 0x001f001f"); a(f"s_mov_b32 s{sM5+1}, 0x001f001f")
        for i in range(4): a(f"s_mov_b32 s{sSel[i]}, {0x07060500+i:#x}")
        for t in range(4):
            a(f"s_mov_b32 s{sMask[t]}, {(0x000f000f << (4*t)):#x}"); a(f"s_mov_b32 s{sMask[t]+1}, {(0x000f000f << (4*t)):#x}")
        a(f"s_getpc_b64 s[{sSPC}:{sSPC+1}]")
        a.label("L_pc0")
        a(f"s_add_u32 s{sSPC}, s{sSPC}, L_stream-L_pc0"); a(f"s_addc_u32 s{sSPC+1}, s{sSPC+1}, 0")
        a(f"s_mov_b32 s{sAct}, 1"); a(f"s_mov_b32 s{sPos}, 0")
        a(f"s_mov_b32 s{sCol}, {O_COL:#x}")
        a(f"s_getreg_b32 s{sXcc}, hwreg(HW_REG_XCC_ID)"); a(f"s_and_b32 s{sXcc}, s{sXcc}, 0xf"); a(f"s_add_u32 s{sXcc}, s{sXcc}, 1"); a(f"s_lshl_b32 s{sXcc}, s{sXcc}, 8")
        a(f"s_getpc_b64 s[{sDW}:{sDW+1}]")
        a.label("L_pc1")
        a(f"s_add_u32 s{sDW}, s{sDW}, L_dw-L_pc1"); a(f"s_addc_u32 s{sDW+1}, s{sDW+1}, 0")
        self.dwait(6 if self.pretouch else 4, 0, 'pro')
        a(f"v_readfirstlane_b32 s{sTf}, v{vT}")
        self.next_tag()
        a(f"v_lshlrev_b32 v{vX}, 16, v{vX}")
        if self.local:
            lx = a.newlabel("xp")
            a(f"s_cmp_lg_u32 s{sW}, 0"); a(f"s_cbranch_scc1 {lx}")
            for r in range(4): a(f"v_mov_b32 v{16+r}, s{sXcc}")
            self.tag([16, 17, 18, 19])
            a(f"s_lshl_b32 s92, s{sXG}, 9"); a(f"s_lshl_b32 s93, s{sI}, 4"); a("s_add_u32 s92, s92, s93"); a(f"s_add_u32 s92, s92, {O_XCC}")
            a("v_mov_b32 v20, 0")
            a("s_mov_b64 exec, 1")
            a(f"buffer_store_dwordx4 v[16:19], v20, {W}, s92 offen sc1")
            self.exec_all()
            a.label(lx)
        if self.mode == "first":
            self.drain(16)

    NLOADS = 136
    def first_block(self):
        r = self.NLOADS % self.kblk
        return r if r else self.kblk
    def stream(self):
        a = self.a
        loads = [("C", i) for i in range(16)] + [("K", i) for i in range(64)]
        loads += [("V", b, u) for b in range(10) for u in range(4)]
        loads += [("L", b, u) for b in range(10, 14) for u in range(4)]
        k = self.kblk
        assert len(loads) == self.NLOADS
        a.label("L_stream")
        starts = [0] + list(range(self.first_block(), len(loads), k))
        for bn, bi in enumerate(starts):
            be = starts[bn+1] if bn + 1 < len(starts) else len(loads)
            last_so = None
            for ld in loads[bi:be]:
                if ld[0] == "C":
                    self.ckv_one(ld[1]); last_so = None
                elif ld[0] == "K":
                    i = ld[1]; so = (i >> 2) * 4096
                    if so != last_so: a(f"s_mov_b32 s{sSO}, {so}"); last_so = so
                    a(f"buffer_load_dwordx4 {ar(4*i,4)}, v{vKoff}, s[{SRD_K}:{SRD_K+3}], s{sSO} offen offset:{(i&3)*1024} {self.pol}")
                elif ld[0] == "V":
                    _, b, u = ld; so = b * 4096
                    if so != last_so: a(f"s_mov_b32 s{sSO}, {so}"); last_so = so
                    a(f"buffer_load_dwordx4 {vr(VRES+16*b+4*u,4)}, v{vVoff}, s[{SRD_V}:{SRD_V+3}], s{sSO} offen offset:{u*256} {self.pol}")
                else:
                    _, b, u = ld
                    a(f"s_lshl_b32 s{sSO}, s{sW}, 14"); a(f"s_add_u32 m0, s{sSO}, {L_VL + ((b-10)*4+u)*1024}")
                    a(f"s_mov_b32 s{sSO}, {b*4096+u*256}"); last_so = None
                    a(f"buffer_load_dwordx4 v{vVoff}, s[{SRD_V}:{SRD_V+3}], s{sSO} offen {self.pol} lds")
            a(f"s_add_u32 s{sPos}, s{sPos}, {be-bi}")
            if be >= len(loads): a(f"s_mov_b32 s{sAct}, 0")
            a(f"s_swappc_b64 s[{sSPC}:{sSPC+1}], s[{sRET}:{sRET+1}]")
        a("s_endpgm")

    def qpart(self):
        a = self.a
        self.stamp(0)
        Xp, S1, S2 = 14, 15, 36
        D, Du, Ab = 16, 20, 24
        a(f"v_cvt_pk_bf16_f32 v{Xp}, v{vX}, v{vX}")
        a(f"v_and_b32 v{S1}, 0xffff0000, v{Xp}")
        a(f"v_mul_f32 v{S2}, v{S1}, v{S1}")
        self.pv_gemv(Xp, 5, lambda i: vr(WQ+4*i, 4), D, Ab)
        self.reduce63([S1, S2], "v_add_f32")
        lu = a.newlabel("nou")
        a(f"s_cmp_ge_u32 s{sL}, 2"); a(f"s_cbranch_scc1 {lu}")
        for r in range(4): a(f"v_and_b32 v{32+r}, 0x3f803f80, v{vM[r]}")
        for i in range(5):
            c = "0" if i == 0 else vr(Du, 4)
            a(f"v_mfma_f32_16x16x32_bf16 {vr(Du,4)}, {vr(32,4)}, {vr(WQ+4*i,4)}, {c}")
        self.red_write(Du, 528)
        a.label(lu)
        a(f"v_readlane_b32 s{sA}, v{S1}, 63"); a(f"v_readlane_b32 s{sB_}, v{S2}, 63")
        a(f"v_writelane_b32 v{D}, s{sA}, 32"); a(f"v_writelane_b32 v{D+1}, s{sB_}, 32")
        self.red_write(D)
        t = 14
        a(f"v_lshrrev_b32 v{t}, 4, v{vL16}")
        a(f"v_and_b32 v15, 1, v{t}"); a(f"v_lshlrev_b32 v15, 4, v15")
        a(f"v_lshrrev_b32 v36, 1, v{t}"); a(f"v_add_u32 v15, v15, v36"); a(f"v_lshlrev_b32 v15, 4, v15")
        a(f"v_cmp_gt_u32 vcc, 32, v{t}"); a(f"v_mov_b32 v36, 512"); a(f"v_cndmask_b32 v{t}, v36, v15, vcc")
        a(f"s_lshl_b32 s{sTmp[0]}, s{sH}, 3"); a(f"s_add_u32 s{sTmp[0]}, s{sTmp[0]}, s{sJ}"); a(f"s_lshl_b32 s{sTmp[0]}, s{sTmp[0]}, 11")
        a(f"s_add_u32 s{sTmp[0]}, s{sTmp[0]}, {O_QP}")
        a("s_waitcnt lgkmcnt(0)"); a("s_barrier")
        lf = a.newlabel("qfin")
        a(f"s_cmp_lg_u32 s{sW}, 0"); a(f"s_cbranch_scc1 {lf}")
        G = 16
        self.red_final_read(G)
        a("s_waitcnt lgkmcnt(0)")
        self.sum4(G); self.tag([G, G+1, G+2, G+3])
        a("s_mov_b32 exec_hi, 1")
        self.local_stores([(G, t, sTmp[0], None)])
        a("s_mov_b32 exec_hi, -1")
        a(f"s_cmp_ge_u32 s{sL}, 2"); a(f"s_cbranch_scc1 {lf}")
        G2 = 32
        self.red_final_read(G2, 528)
        a(f"s_add_u32 s{sTmp[0]}, s{sTmp[0]}, 1024")
        a("s_waitcnt lgkmcnt(0)")
        self.sum4(G2); self.tag([G2, G2+1, G2+2, G2+3])
        a("s_mov_b32 exec_hi, 0")
        self.local_stores([(G2, t, sTmp[0], None)])
        a("s_mov_b32 exec_hi, -1")
        a.label(lf)
        self.stamp(1)
        ad, ad2, adu, adx = 14, 15, 56, 57
        Gq, Gs, Gu, Gx = 16, 32, 36, 52
        a(f"v_lshrrev_b32 v{ad}, 8, v{vKoff}"); a(f"v_lshlrev_b32 v{ad}, 11, v{ad}")
        a(f"v_and_b32 v{ad2}, s{sFF}, v{vKoff}"); a(f"v_or_b32 v{ad}, v{ad}, v{ad2}")
        a(f"v_lshlrev_b32 v{adu}, 1, v{ad2}")
        a(f"v_lshrrev_b32 v{ad2}, 4, v{vL16}"); a(f"v_and_b32 v{ad2}, 7, v{ad2}"); a(f"v_lshlrev_b32 v{ad2}, 11, v{ad2}")
        a(f"s_lshl_b32 s{sTmp[0]}, s{sH}, 14"); a(f"s_add_u32 s{sTmp[0]}, s{sTmp[0]}, {O_QP}")
        a(f"s_add_u32 s{sTmp[1]}, s{sTmp[0]}, 8192")
        def iss_q():
            for i in range(2):
                for hf in range(2):
                    a(f"buffer_load_dwordx4 {vr(Gq+8*i+4*hf,4)}, v{ad}, {W}, s{sTmp[i]} offen offset:{hf*256} sc1")
            a(f"buffer_load_dwordx4 {vr(Gs,4)}, v{ad2}, {W}, s{sTmp[0]} offen offset:512 sc1")
        def iss_u():
            for i in range(2):
                for hf in range(2):
                    a(f"buffer_load_dwordx4 {vr(Gu+8*i+4*hf,4)}, v{ad}, {W}, s{sTmp[i]} offen offset:{1024+hf*256} sc1")
        def iss_x():
            a(f"buffer_load_dwordx4 {vr(Gx,4)}, v{adx}, {W}, s{sTmp[3]} offen sc1")
        U = 36
        l_late = a.newlabel("qlate"); l_j = a.newlabel("qj")
        a(f"s_and_b32 s{sTmp[2]}, s{sL}, 1"); a(f"s_lshl_b32 s{sTmp[2]}, s{sTmp[2]}, 9"); a(f"s_add_u32 s{sTmp[2]}, s{sTmp[2]}, {L_U}")
        a(f"v_add_u32 v{adu}, s{sTmp[2]}, v{adu}")
        a(f"s_cmp_ge_u32 s{sL}, 2"); a(f"s_cbranch_scc1 {l_late}")
        base_regs = [Gq, Gq+4, Gq+8, Gq+12, Gs, Gu, Gu+4, Gu+8, Gu+12]
        if self.local:
            l_one = a.newlabel("qone"); l_u = a.newlabel("qu")
            a(f"s_cmp_eq_u32 s{sL}, 1"); a(f"s_cbranch_scc1 {l_one}")
            a(f"v_and_b32 v{adx}, 0x1f0, v{vL16}")
            a(f"s_lshl_b32 s{sTmp[3]}, s{sXG}, 9"); a(f"s_add_u32 s{sTmp[3]}, s{sTmp[3]}, {O_XCC}")
            self.poll(lambda: (iss_q(), iss_u(), iss_x()), base_regs + [Gx], site='q0')
            a(f"v_cmp_ne_u32 vcc, s{sXcc}, v{Gx}")
            a(f"s_cmp_eq_u64 vcc, 0"); a(f"s_cselect_b32 s{sLocal}, 1, 0")
            a(f"s_branch {l_u}")
            a.label(l_one)
            self.poll(lambda: (iss_q(), iss_u()), base_regs, site='q1')
            a.label(l_u)
        else:
            self.poll(lambda: (iss_q(), iss_u()), base_regs)
        for r in range(8): a(f"v_add_f32 v{Gu+r}, v{Gu+r}, v{Gu+8+r}")
        self.dpp_steps([Gu+r for r in range(8)], "v_add_f32", ["row_ror:4", "row_ror:8"])
        lw = a.newlabel("uw")
        a(f"s_cmp_lg_u32 s{sW}, 0"); a(f"s_cbranch_scc1 {lw}")
        self.exec_set(0x000f000f, 0x000f000f)
        a(f"ds_write_b128 v{adu}, {vr(U,4)}"); a(f"ds_write_b128 v{adu}, {vr(U+4,4)} offset:16")
        self.exec_all()
        a.label(lw)
        a(f"s_branch {l_j}")
        a.label(l_late)
        a(f"ds_read_b128 {vr(U,4)}, v{adu}"); a(f"ds_read_b128 {vr(U+4,4)}, v{adu} offset:16")
        self.poll(iss_q, [Gq, Gq+4, Gq+8, Gq+12, Gs])
        a("s_waitcnt lgkmcnt(0)")
        a.label(l_j)
        self.stamp(2)
        st = [Gs, Gs+1]
        adds = [f"v_add_f32 v{Gq+r}, v{Gq+r}, v{Gq+8+r}" for r in range(8)]
        seq = []
        for k, d in enumerate((self.X1, self.X2, self.HM)):
            seq += [f"v_add_f32_dpp v{r}, v{r}, v{r} {d} {DPPALL}" for r in st]
            seq += adds[3*k:3*k+3] if k < 2 else adds[6:]
        for s_ in seq: a(s_)
        a(f"v_mul_f32 v{Gs}, {f32hex(1/640)}, v{Gs}")
        ror4 = [f"v_add_f32_dpp v{Gq+r}, v{Gq+r}, v{Gq+r} row_ror:4 {DPPALL}" for r in range(8)]
        ror8 = [f"v_add_f32_dpp v{Gq+r}, v{Gq+r}, v{Gq+r} row_ror:8 {DPPALL}" for r in range(8)]
        a(f"v_mul_f32 v{Gs+1}, {f32hex(1/640)}, v{Gs+1}")
        for s_ in ror4[:4]: a(s_)
        a(f"v_fma_f32 v{Gs+1}, -v{Gs}, v{Gs}, v{Gs+1}")
        for s_ in ror4[4:]: a(s_)
        a(f"v_add_f32 v{Gs+1}, {f32hex(1e-5)}, v{Gs+1}")
        for s_ in ror8[:4]: a(s_)
        a(f"v_rsq_f32 v{Gs+1}, v{Gs+1}")
        for s_ in ror8[4:]: a(s_)
        a(f"v_mul_f32 v{Gs+1}, {f32hex(SC)}, v{Gs+1}")
        for r in range(8): a(f"v_fma_f32 v{Gq+r}, -v{Gs}, v{U+r}, v{Gq+r}")
        a(f"v_readfirstlane_b32 s{sSc}, v{Gs+1}")
        Qp = 24
        for r in range(4): a(f"v_cvt_pk_bf16_f32 v{Qp+r}, v{Gq+2*r}, v{Gq+2*r+1}")
        for t in range(4):
            for r in range(4):
                a(f"v_cndmask_b32 v{AT+4*t+r}, 0, v{Qp+r}, s[{sMask[t]}:{sMask[t]+1}]")

    def combine8(self, G, ML, tmp):
        a = self.a
        M, f, Ls = tmp, tmp+1, tmp+2
        a(f"v_max_f32_dpp v{M}, v{ML}, v{ML} row_ror:8 {DPPALL}")
        self.dpp_steps([M], "v_max_f32", ["b15", "b31"])
        a(f"v_readlane_b32 s{sA}, v{M}, 63")
        a(f"v_subrev_f32 v{f}, s{sA}, v{ML}"); a(f"v_exp_f32 v{f}, v{f}")
        a(f"v_mul_f32 v{Ls}, v{f}, v{ML+1}")
        for r in range(4): a(f"v_mul_f32 v{G+r}, v{f}, v{G+r}")
        a(f"v_add_f32_dpp v{Ls}, v{Ls}, v{Ls} row_ror:8 {DPPALL}")
        for r in range(4): a(f"v_add_f32_dpp v{G+r}, v{G+r}, v{G+r} row_ror:8 {DPPALL}")
        a(f"v_add_f32_dpp v{Ls}, v{Ls}, v{Ls} row_bcast:15 row_mask:0xa bank_mask:0xf")
        a(f"v_permlane32_swap_b32 v{G}, v{G+2}")
        a(f"v_permlane32_swap_b32 v{G+1}, v{G+3}")
        a(f"v_add_f32_dpp v{Ls}, v{Ls}, v{Ls} row_bcast:31 row_mask:0xc bank_mask:0xf")
        a(f"v_add_f32 v{G}, v{G}, v{G+2}")
        a(f"v_add_f32 v{G+1}, v{G+1}, v{G+3}")
        a(f"v_readlane_b32 s{sA}, v{Ls}, 63")
        a(f"v_permlane16_swap_b32 v{G}, v{G+1}")
        a(f"v_rcp_f32 v{Ls}, s{sA}")
        a(f"v_add_f32 v{G}, v{G}, v{G+1}")
        a(f"v_mul_f32 v{G}, v{G}, v{Ls}")

    def amiddle(self):
        a = self.a
        D = 16
        for t in range(4):
            c = "0" if t == 0 else vr(D, 4)
            a(f"v_mfma_f32_16x16x32_bf16 {vr(D,4)}, {vr(AT+4*t,4)}, {vr(WUK+4*t,4)}, {c}")
        a(f"v_lshrrev_b32 v14, 8, v{vL16}"); a("v_lshlrev_b32 v14, 4, v14")
        a(f"s_lshl_b32 s{sTmp[0]}, s{sH}, 11"); a(f"s_lshl_b32 s{sTmp[1]}, s{sJ}, 8"); a(f"s_add_u32 s{sTmp[0]}, s{sTmp[0]}, s{sTmp[1]}")
        a(f"s_lshl_b32 s{sTmp[1]}, s{sW}, 6"); a(f"s_add_u32 s{sTmp[0]}, s{sTmp[0]}, s{sTmp[1]}")
        a(f"s_add_u32 s{sTmp[0]}, s{sTmp[0]}, {O_QABS}")
        S, S2 = 20, 21
        a(f"v_mov_b32_dpp v{S}, v{D} quad_perm:[0,0,0,0] {DPPALL}")
        a(f"v_mov_b32_dpp v{S2}, v{D+2} quad_perm:[2,2,2,2] {DPPALL}")
        a(f"s_nop 0")
        a(f"v_add_f32_dpp v{S}, v{D+1}, v{S} quad_perm:[1,1,1,1] {DPPALL}")
        a(f"v_add_f32_dpp v{S2}, v{D+3}, v{S2} quad_perm:[3,3,3,3] {DPPALL}")
        a(f"v_add_f32 v{S}, v{S}, v{S2}")
        a(f"v_mul_f32 v{S}, s{sSc}, v{S}")
        G = 24
        for q in range(4): a(f"v_mov_b32_dpp v{G+q}, v{S} row_newbcast:{4*q} {DPPALL}")
        self.tag([G, G+1, G+2, G+3])
        self.exec_set(0x00010001, 0x00010001)
        a(f"buffer_store_dwordx4 {vr(G,4)}, v14, {W}, s{sTmp[0]} offen sc1")
        self.exec_all()
        self.stamp(3)
        if not self.pfnew: self.load_wuv()
        Gq = 16
        a(f"s_lshl_b32 s{sTmp[0]}, s{sGA}, 15"); a(f"s_lshl_b32 s{sTmp[1]}, s{sW}, 9"); a(f"s_add_u32 s{sTmp[0]}, s{sTmp[0]}, s{sTmp[1]}")
        a(f"s_add_u32 s{sTmp[0]}, s{sTmp[0]}, {O_QABS}")
        for i in range(1, 4): a(f"s_add_u32 s{sTmp[i]}, s{sTmp[0]}, {i*8192}")
        vA0, vB0, vAx = 52, 53, 54
        n, g = 48, 49
        a(f"v_lshrrev_b32 v{n}, 4, v{vL16}"); a(f"v_lshrrev_b32 v{g}, 4, v{n}"); a(f"v_and_b32 v{n}, 15, v{n}")
        a(f"v_and_b32 v50, 8, v{n}"); a(f"v_and_b32 v51, 3, v{n}"); a(f"v_lshl_or_b32 v50, v51, 1, v50")
        a(f"v_bfe_u32 v51, v{n}, 2, 1"); a(f"v_or_b32 v50, v50, v51")
        a(f"s_lshl_b32 s{sTmp[4]}, s{sW}, 14"); a(f"s_add_u32 s{sTmp[4]}, s{sTmp[4]}, {L_CKV}")
        a(f"v_lshlrev_b32 v51, 10, v{n}"); a(f"v_lshl_add_u32 v51, v{g}, 8, v51"); a(f"v_lshl_add_u32 v51, v50, 4, v51")
        a(f"v_add_u32 v{vA0}, s{sTmp[4]}, v51")
        a(f"v_mul_u32_u24 v{vB0}, 1040, v{n}"); a(f"v_lshl_add_u32 v{vB0}, v{g}, 8, v{vB0}"); a(f"v_add_u32 v{vB0}, {L_R0}, v{vB0}")
        a(f"v_mul_u32_u24 v51, 272, v{n}"); a(f"v_lshl_add_u32 v50, v{g}, 4, v51")
        a(f"s_lshl_b32 s{sTmp[4]}, s{sW}, 6"); a(f"s_add_u32 s{sTmp[4]}, s{sTmp[4]}, {L_ST}"); a(f"v_add_u32 v50, s{sTmp[4]}, v50")
        a(f"v_lshl_add_u32 v51, v{g}, 5, v51"); a(f"v_add_u32 v51, {L_ST}, v51")
        vC0, vC1, vX0, vX1 = 76, 77, 78, 79
        a(f"v_and_b32 v14, 3, v{n}"); a(f"v_lshrrev_b32 v15, 2, v{n}")
        a(f"v_and_b32 v55, 1, v{g}"); a(f"v_lshlrev_b32 v55, 3, v55"); a(f"v_lshl_add_u32 v55, v15, 1, v55")
        a(f"v_lshrrev_b32 v56, 1, v14"); a(f"v_xor_b32 v55, v55, v56")
        a(f"v_lshl_add_u32 v56, v{g}, 3, v15"); a(f"v_lshlrev_b32 v56, 10, v56")
        a(f"v_lshl_add_u32 v56, v55, 4, v56"); a(f"v_and_b32 v14, 1, v14"); a(f"v_lshl_add_u32 v56, v14, 3, v56")
        a(f"s_lshl_b32 s{sTmp[4]}, s{sW}, 8"); a(f"s_add_u32 s{sTmp[4]}, s{sTmp[4]}, {L_CKV}")
        a(f"v_add_u32 v{vC0}, s{sTmp[4]}, v56")
        a(f"v_add_u32 v{vC1}, 4096, v{vC0}"); a(f"v_xor_b32 v{vC1}, 16, v{vC1}")
        a(f"s_lshl_b32 s{sTmp[4]}, s{sW}, 8"); a(f"s_add_u32 s{sTmp[4]}, s{sTmp[4]}, {L_R0}")
        a(f"v_lshrrev_b32 v14, 9, v{vL16}"); a(f"v_and_b32 v57, 0x1f0, v{vL16}")
        a(f"v_lshrrev_b32 v15, 1, v57"); a(f"v_mul_u32_u24 v58, 1040, v14"); a(f"v_add_u32 v15, v15, v58"); a(f"v_add_u32 v15, s{sTmp[4]}, v15")
        a(f"v_lshl_add_u32 v57, v14, 11, v57")
        lg0 = a.newlabel("cg"); lg1 = a.newlabel("cg")
        a.label(lg0)
        a(f"s_cmp_ge_u32 s{sPos}, 16"); a(f"s_cbranch_scc1 {lg1}")
        self.stream_call()
        a(f"s_branch {lg0}")
        a.label(lg1)
        if self.sent:
            lsk = a.newlabel("nosent")
            if not self.sent1:
                a(f"s_cmp_lg_u32 s{sAct}, 0"); a(f"s_cbranch_scc1 {lsk}")
            a(f"v_lshrrev_b32 v14, 7, v{vL16}"); a(f"v_lshlrev_b32 v14, 11, v14"); a(f"v_and_b32 v58, 0x70, v{vL16}"); a(f"v_lshl_add_u32 v14, v58, 2, v14")
            def iss0():
                a(f"buffer_load_dwordx4 {vr(Gq,4)}, v14, {W}, s{sTmp[0]} offen sc1")
                a(f"buffer_load_dwordx4 {vr(Gq+4,4)}, v14, {W}, s{sTmp[2]} offen sc1")
            self.poll(iss0, [Gq, Gq+4], site='sent')
            a.label(lsk)
            self.stamp(15)
        def iss():
            for i in range(8):
                so = sTmp[i >> 1]
                if i & 1:
                    a(f"s_add_u32 s{sTmp[5-1]}, s{so}, 4096"); so = sTmp[4]
                a(f"buffer_load_dwordx4 {vr(Gq+4*i,4)}, v57, {W}, s{so} offen sc1")
        self.poll(iss, [Gq+4*i for i in range(8)], site='h4')
        self.stampval(30, sSpin); self.stampval(31, sPos)
        self.stamp(4)
        if self.pfnew: self.load_wuv()
        for i in range(8):
            b = Gq + 4*i
            a(f"v_cvt_pk_bf16_f32 v{b}, v{b}, v{b+1}"); a(f"v_cvt_pk_bf16_f32 v{b+1}, v{b+2}, v{b+3}")
            a(f"ds_write_b64 v15, {vr(b,2)} offset:{i*2*1040}")
        a("s_waitcnt lgkmcnt(0)"); a("s_barrier")
        self.stamp(16)
        if "S" in self.xcalls: self.topup()
        AB = 16
        Ds = 56
        def rd(st):
            b = AB + 8 * (st % 4)
            if st == 0: a(f"ds_read_b128 {vr(b,4)}, v{vA0}")
            else:
                a(f"v_xor_b32 v{vAx}, {st<<4}, v{vA0}"); a(f"ds_read_b128 {vr(b,4)}, v{vAx}")
            a(f"ds_read_b128 {vr(b+4,4)}, v{vB0} offset:{st*16}")
        for st in range(4): rd(st)
        for st in range(16):
            rem = min(3, 15 - st)
            a(f"s_waitcnt lgkmcnt({2*rem})")
            b = AB + 8 * (st % 4)
            c = "0" if st == 0 else vr(Ds, 4)
            a(f"v_mfma_f32_16x16x32_bf16 {vr(Ds,4)}, {vr(b,4)}, {vr(b+4,4)}, {c}")
            if st + 4 < 16: rd(st + 4)
        a(f"ds_write_b128 v50, {vr(Ds,4)}")
        a("s_waitcnt lgkmcnt(0)"); a("s_barrier")
        self.stamp(17)
        SS = 16
        for u in range(2):
            for hf in range(2):
                a(f"ds_read_b128 {vr(SS+8*u+4*hf,4)}, v51 offset:{u*128+hf*16}")
        if self.pfnew: self.load_wo(pWoA)
        DT = 44; AF = 56
        m, l, t1, t2 = 32, 33, 34, 35
        a("s_waitcnt lgkmcnt(0)")
        a(f"v_max3_f32 v{m}, v{SS}, v{SS+1}, v{SS+2}"); a(f"v_max3_f32 v{t1}, v{SS+3}, v{SS+4}, v{SS+5}")
        a(f"v_max3_f32 v{m}, v{m}, v{SS+6}, v{SS+7}"); a(f"v_max3_f32 v{t1}, v{t1}, v{SS+8}, v{SS+9}")
        a(f"v_max3_f32 v{m}, v{m}, v{SS+10}, v{SS+11}"); a(f"v_max3_f32 v{t1}, v{t1}, v{SS+12}, v{SS+13}")
        a(f"v_max3_f32 v{m}, v{m}, v{SS+14}, v{SS+15}"); a(f"v_max_f32 v{m}, v{m}, v{t1}")
        for sw in ("v_permlane16_swap_b32", "v_permlane32_swap_b32"):
            a(f"v_mov_b32 v{t1}, v{m}"); a(f"{sw} v{m}, v{t1}"); a(f"v_max_f32 v{m}, v{m}, v{t1}")
        for k in range(16): a(f"v_sub_f32 v{SS+k}, v{SS+k}, v{m}")
        for k in range(16): a(f"v_exp_f32 v{SS+k}, v{SS+k}")
        P = 36
        for k in range(8): a(f"v_cvt_pk_bf16_f32 v{P+k}, v{SS+2*k}, v{SS+2*k+1}")
        for k in range(8): a(f"v_add_f32 v{SS+k}, v{SS+k}, v{SS+8+k}")
        for k in range(4): a(f"v_add_f32 v{SS+k}, v{SS+k}, v{SS+4+k}")
        a(f"v_add_f32 v{SS}, v{SS}, v{SS+1}"); a(f"v_add_f32 v{SS+2}, v{SS+2}, v{SS+3}"); a(f"v_add_f32 v{l}, v{SS}, v{SS+2}")
        self.stamp(18)
        if "smax" in self.xcalls: self.topup()
        AF = 16
        steps = [(t, u) for t in range(8) for u in range(2)]
        def rdA(k):
            t, u = steps[k]; b = AF + 4 * (k % 4)
            if u == 0:
                if t == 0:
                    a(f"v_mov_b32 v{vX0}, v{vC0}"); a(f"v_mov_b32 v{vX1}, v{vC1}")
                else:
                    a(f"v_xor_b32 v{vX0}, {t<<5}, v{vC0}"); a(f"v_xor_b32 v{vX1}, {t<<5}, v{vC1}")
            a(f"ds_read_b64_tr_b16 {vr(b,2)}, v{vX0} offset:{u*32768}")
            a(f"ds_read_b64_tr_b16 {vr(b+2,2)}, v{vX1} offset:{u*32768}")
        for k in range(4): rdA(k)
        for sw in ("v_permlane16_swap_b32", "v_permlane32_swap_b32"):
            a(f"v_mov_b32 v{t1}, v{l}"); a(f"{sw} v{l}, v{t1}"); a(f"v_add_f32 v{l}, v{l}, v{t1}")
        a(f"v_lshrrev_b32 v14, 8, v{vL16}"); a(f"v_lshlrev_b32 v14, 17, v14"); a(f"v_and_b32 v15, 0xf0, v{vL16}"); a(f"v_add_u32 v14, v14, v15")
        a(f"s_lshl_b32 s{sTmp[0]}, s{sXG}, 20"); a(f"s_lshl_b32 s{sTmp[1]}, s{sGA}, 19"); a(f"s_add_u32 s{sTmp[0]}, s{sTmp[0]}, s{sTmp[1]}")
        a(f"s_lshl_b32 s{sTmp[1]}, s{sW}, 15"); a(f"s_add_u32 s{sTmp[0]}, s{sTmp[0]}, s{sTmp[1]}")
        a(f"s_and_b32 s{sTmp[2]}, s{sS}, 15"); a(f"s_lshl_b32 s{sTmp[1]}, s{sTmp[2]}, 9"); a(f"s_add_u32 s{sTmp[0]}, s{sTmp[0]}, s{sTmp[1]}")
        a(f"s_add_u32 s{sTmp[0]}, s{sTmp[0]}, {O_C1}")
        a(f"s_lshl_b32 s{sTmp[3]}, s{sXG}, 14"); a(f"s_lshl_b32 s{sTmp[1]}, s{sGA}, 13"); a(f"s_add_u32 s{sTmp[3]}, s{sTmp[3]}, s{sTmp[1]}")
        a(f"s_lshl_b32 s{sTmp[1]}, s{sW}, 9"); a(f"s_add_u32 s{sTmp[3]}, s{sTmp[3]}, s{sTmp[1]}")
        a(f"s_lshl_b32 s{sTmp[1]}, s{sTmp[2]}, 5"); a(f"s_add_u32 s{sTmp[3]}, s{sTmp[3]}, s{sTmp[1]}")
        a(f"s_add_u32 s{sTmp[3]}, s{sTmp[3]}, {O_ML1}")
        a(f"v_bfe_u32 v15, v{vL16}, 6, 2"); a(f"v_lshlrev_b32 v15, 11, v15")
        a(f"v_bfe_u32 v32+2, v{vL16}, 8, 1".replace("v32+2", "v34")); a(f"v_lshl_add_u32 v15, v34, 4, v15")
        MG = 76 - 0
        a(f"s_mov_b32 vcc_lo, 0xffff0000"); a("s_mov_b32 vcc_hi, 0")
        a(f"v_cndmask_b32 v34, v32, v33, vcc")
        mlops = [f"v_mov_b32_dpp v32, v34 quad_perm:[0,0,0,0] {DPPALL}", f"v_mov_b32_dpp v33, v34 quad_perm:[1,1,1,1] {DPPALL}",
                 f"v_mov_b32_dpp v35, v34 quad_perm:[3,3,3,3] {DPPALL}", f"v_mov_b32_dpp v34, v34 quad_perm:[2,2,2,2] {DPPALL}"]
        for k in range(16):
            t, u = steps[k]; b = AF + 4 * (k % 4)
            rem = min(3, 15 - k)
            a(f"s_waitcnt lgkmcnt({2*rem})")
            c = "0" if u == 0 else vr(DT+4*t, 4)
            a(f"v_mfma_f32_16x16x32_bf16 {vr(DT+4*t,4)}, {vr(P+4*u,4)}, {vr(b,4)}, {c}")
            if k + 4 < 16: rdA(k + 4)
            if k == 0:
                for x_ in mlops: a(x_)
            if k == 2: self.tag([32, 33, 34, 35])
            if u == 1 and t >= 2: self.tag([DT+4*(t-2)+r for r in range(4)])
        self.tag([DT+4*6+r for r in range(4)]); self.tag([DT+4*7+r for r in range(4)])
        self.stamp(19)
        items = []
        for t in range(8):
            def pre(t=t): a(f"s_add_u32 s{sTmp[1]}, s{sTmp[0]}, {(t>>1)*8192+(t&1)*256}")
            items.append((DT+4*t, 14, sTmp[1], pre))
        def pre_ml(): a("s_mov_b32 exec_lo, 0x11111111"); a("s_mov_b32 exec_hi, 0")
        items.append((32, 15, sTmp[3], pre_ml))
        self.local_stores(items)
        self.exec_all()
        self.stamp(5)
        G, MM, LL = 16, 48, 52
        a(f"v_lshrrev_b32 v14, 4, v{vL16}"); a(f"v_and_b32 v15, 7, v14"); a(f"v_lshrrev_b32 v14, 5, v14")
        a(f"v_lshl_add_u32 v14, v15, 1, v14"); a(f"v_lshlrev_b32 v14, 5, v14")
        a(f"s_lshl_b32 s{sTmp[0]}, s{sXG}, 5"); a(f"s_add_u32 s{sTmp[0]}, s{sTmp[0]}, s{sI}")
        a(f"s_lshl_b32 s{sTmp[2]}, s{sTmp[0]}, 9"); a(f"s_add_u32 s{sTmp[2]}, s{sTmp[2]}, {O_ML1}")
        a(f"s_lshl_b32 s{sTmp[0]}, s{sTmp[0]}, 2"); a(f"s_add_u32 s{sTmp[0]}, s{sTmp[0]}, s{sW}")
        a(f"s_lshl_b32 s{sTmp[0]}, s{sTmp[0]}, 13"); a(f"s_add_u32 s{sTmp[0]}, s{sTmp[0]}, {O_C1}")
        a(f"s_add_u32 s{sTmp[1]}, s{sTmp[0]}, 4096")
        def issML():
            a(f"buffer_load_dwordx4 {vr(MM,4)}, v14, {W}, s{sTmp[2]} offen sc1")
            a(f"buffer_load_dwordx4 {vr(LL,4)}, v14, {W}, s{sTmp[2]} offen offset:16 sc1")
        lsk = a.newlabel("noml")
        if not self.mlsent:
            a(f"s_cmp_lg_u32 s{sAct}, 0"); a(f"s_cbranch_scc1 {lsk}")
        if not self.mltail:
            a(f"s_cmp_ge_u32 s{sL}, 2"); a(f"s_cbranch_scc1 {lsk}")
        self.poll(issML, [MM, LL], site='ml1')
        a.label(lsk)
        self.stamp(20)
        Mx, wv, den, t1 = 56, 60, 64, 68
        chk = 72
        lp = a.newlabel("sw1"); ns = a.newlabel("sw1n"); jn = a.newlabel("sw1j"); dn = a.newlabel("sw1d"); ns2 = a.newlabel("sw1m"); jn2 = a.newlabel("sw1k")
        a(f"s_mov_b32 s{sSpin}, 0")
        a.label(lp)
        issML()
        for i in range(8):
            a(f"buffer_load_dwordx4 {vr(G+4*i,4)}, v{vL16}, {W}, s{sTmp[i>>2]} offen offset:{(i&3)*1024} sc1")
        a(f"s_mov_b32 s{sYoung}, 8")
        self.dwait(8, 10 if self.addn else 0, 'sw1')
        a(f"s_sub_u32 s{sTmp[4]}, s{sYoung}, 8")
        for r in range(4): a(f"v_xor_b32 v{MM+r}, s{sT[r]}, v{MM+r}")
        for r in range(4): a(f"v_xor_b32 v{LL+r}, s{sT[r]}, v{LL+r}")
        a(f"v_or3_b32 v{chk}, v{MM}, v{MM+1}, v{MM+2}"); a(f"v_or3_b32 v{chk}, v{chk}, v{MM+3}, v{LL}")
        a(f"v_or3_b32 v{chk}, v{chk}, v{LL+1}, v{LL+2}"); a(f"v_or_b32 v{chk}, v{chk}, v{LL+3}")
        R4 = range(4)
        for r in R4: a(f"v_max_f32_dpp v{Mx+r}, v{MM+r}, v{MM+r} {self.X1} {DPPALL}")
        self.dpp_steps([Mx+r for r in R4], "v_max_f32", [self.X2, self.HM])
        for r in R4: a(f"v_mov_b32 v{t1+r}, v{Mx+r}")
        for r in R4: a(f"v_permlane32_swap_b32 v{Mx+r}, v{t1+r}")
        for r in R4: a(f"v_max_f32 v{Mx+r}, v{Mx+r}, v{t1+r}")
        for r in R4: a(f"v_sub_f32 v{wv+r}, v{MM+r}, v{Mx+r}")
        for r in R4: a(f"v_exp_f32 v{wv+r}, v{wv+r}")
        for r in R4: a(f"v_mul_f32 v{den+r}, v{wv+r}, v{LL+r}")
        self.dpp_steps([den+r for r in R4], "v_add_f32", [self.X1, self.X2, self.HM])
        for r in R4: a(f"v_mov_b32 v{t1+r}, v{den+r}")
        for r in R4: a(f"v_permlane32_swap_b32 v{den+r}, v{t1+r}")
        for r in R4: a(f"v_add_f32 v{den+r}, v{den+r}, v{t1+r}")
        if self.mode == "co":
            a(f"s_cmp_eq_u32 s{sTmp[4]}, 0"); a(f"s_cbranch_scc1 {ns2}")
            a(f"s_mov_b32 s{sYoung}, s{sTmp[4]}")
            a(f"s_swappc_b64 s[{sRET2}:{sRET2+1}], s[{sDW}:{sDW+1}]")
            a(f"s_branch {jn2}")
            a.label(ns2)
        self.dwait(0, 0, 'sw1')
        a.label(jn2)
        dw = [G + i for i in range(32)]
        for k, r in enumerate(dw): a(f"v_xor_b32 v{r}, s{sT[k % 4]}, v{r}")
        a(f"v_or3_b32 v{vT0}, v{dw[0]}, v{dw[1]}, v{chk}"); a(f"v_or3_b32 v{vT0+1}, v{dw[2]}, v{dw[3]}, v{dw[4]}")
        k = 5; tog = 0
        while k < 31:
            tgt = vT0 + tog
            a(f"v_or3_b32 v{tgt}, v{tgt}, v{dw[k]}, v{dw[k+1]}"); k += 2; tog ^= 1
        a(f"v_or3_b32 v{vT0}, v{vT0}, v{vT0+1}, v{dw[31]}")
        a(f"v_and_b32 v{vT0}, s{sFF}, v{vT0}")
        a(f"v_cmp_ne_u32 vcc, 0, v{vT0}")
        a(f"s_cbranch_vccz {dn}")
        a(f"s_add_u32 s{sSpin}, s{sSpin}, 1"); a(f"s_cmp_lt_u32 s{sSpin}, {SPIN_MAX}"); a(f"s_cbranch_scc1 {lp}")
        a(f"s_mov_b32 s{sErr}, 1")
        a.label(dn)
        self.stampval(24, sSpin); self.stampval(25, sPos)
        self.stamp(6)
        acc = 48
        for i in range(8):
            for r in range(4):
                op = "v_mul_f32_dpp" if i == 0 else "v_fmac_f32_dpp"
                a(f"{op} v{acc+r}, v{wv+r}, v{G+4*i+r} row_newbcast:{i} {DPPALL}")
        a(f"v_bfe_u32 v14, v{vL16}, 8, 1"); a(f"v_lshlrev_b32 v14, 11, v14"); a(f"v_and_b32 v15, 0xf0, v{vL16}"); a(f"v_add_u32 v14, v14, v15")
        for r in R4: a(f"v_mov_b32 v{t1+r}, v{acc+r}")
        a(f"s_lshr_b32 s{sTmp[0]}, s{sI}, 2"); a(f"s_lshl_b32 s{sTmp[0]}, s{sTmp[0]}, 16")
        a(f"s_and_b32 s{sTmp[1]}, s{sI}, 3"); a(f"s_lshl_b32 s{sTmp[1]}, s{sTmp[1]}, 14"); a(f"s_add_u32 s{sTmp[0]}, s{sTmp[0]}, s{sTmp[1]}")
        for r in R4: a(f"v_permlane32_swap_b32 v{acc+r}, v{t1+r}")
        a(f"s_lshl_b32 s{sTmp[1]}, s{sW}, 12"); a(f"s_add_u32 s{sTmp[0]}, s{sTmp[0]}, s{sTmp[1]}")
        a(f"s_lshl_b32 s{sTmp[1]}, s{sXG}, 8"); a(f"s_add_u32 s{sTmp[0]}, s{sTmp[0]}, s{sTmp[1]}")
        for r in R4: a(f"v_add_f32 v{acc+r}, v{acc+r}, v{t1+r}")
        a(f"s_add_u32 s{sTmp[0]}, s{sTmp[0]}, {O_C2}")
        self.tag([acc, acc+1, acc+2, acc+3])
        a("s_mov_b32 exec_hi, 0")
        a(f"buffer_store_dwordx4 {vr(acc,4)}, v14, {W}, s{sTmp[0]} offen sc1")
        a("s_mov_b32 exec_hi, -1")
        lm = a.newlabel("ml2")
        a(f"s_and_b32 s{sTmp[1]}, s{sI}, 3"); a(f"s_or_b32 s{sTmp[1]}, s{sTmp[1]}, s{sW}"); a(f"s_cmp_lg_u32 s{sTmp[1]}, 0"); a(f"s_cbranch_scc1 {lm}")
        for r in (1, 2, 3):
            a(f"s_mov_b64 vcc, {1 << r}")
            a(f"v_cndmask_b32 v{Mx}, v{Mx}, v{Mx+r}, vcc"); a(f"v_cndmask_b32 v{den}, v{den}, v{den+r}, vcc")
        a(f"v_mov_b32 v{Mx+1}, v{den}"); a(f"v_mov_b32 v{Mx+2}, 0"); a(f"v_mov_b32 v{Mx+3}, 0")
        self.tag([Mx, Mx+1, Mx+2, Mx+3])
        a(f"s_lshl_b32 s{sTmp[1]}, s{sI}, 7"); a(f"s_lshl_b32 s{sTmp[2]}, s{sXG}, 4"); a(f"s_add_u32 s{sTmp[1]}, s{sTmp[1]}, s{sTmp[2]}")
        a(f"s_add_u32 s{sTmp[1]}, s{sTmp[1]}, {O_ML2}")
        a(f"v_lshlrev_b32 v15, 3, v{vL16}")
        a("s_mov_b64 exec, 15")
        a(f"buffer_store_dwordx4 {vr(Mx,4)}, v15, {W}, s{sTmp[1]} offen sc1")
        self.exec_all()
        a.label(lm)
        self.stamp(21)
        if not self.pfnew: self.load_wo(pWoA)
        G0, G1, M0, M1 = 16, 20, 24, 28
        a(f"v_bfe_u32 v15, v{vL16}, 6, 2")
        a(f"v_bfe_u32 v14, v{vL16}, 4, 2"); a(f"v_lshlrev_b32 v14, 2, v14"); a(f"v_lshrrev_b32 v32, 8, v{vL16}"); a(f"v_add_u32 v14, v14, v32")
        a(f"v_lshlrev_b32 v14, 4, v14"); a(f"v_lshl_add_u32 v14, v15, 8, v14")
        a(f"v_lshlrev_b32 v15, 4, v15")
        a(f"s_lshr_b32 s{sTmp[0]}, s{sH}, 2"); a(f"s_lshl_b32 s{sTmp[0]}, s{sTmp[0]}, 16"); a(f"s_lshl_b32 s{sTmp[1]}, s{sJ}, 13"); a(f"s_add_u32 s{sTmp[0]}, s{sTmp[0]}, s{sTmp[1]}")
        a(f"s_lshl_b32 s{sTmp[1]}, s{sW}, 11"); a(f"s_add_u32 s{sTmp[0]}, s{sTmp[0]}, s{sTmp[1]}"); a(f"s_add_u32 s{sTmp[0]}, s{sTmp[0]}, {O_C2}")
        a(f"s_lshl_b32 s{sTmp[2]}, s{sH}, 7"); a(f"s_add_u32 s{sTmp[2]}, s{sTmp[2]}, {O_ML2}")
        def iss2():
            a(f"buffer_load_dwordx4 {vr(M0,4)}, v15, {W}, s{sTmp[2]} offen sc1")
            a(f"buffer_load_dwordx4 {vr(M1,4)}, v15, {W}, s{sTmp[2]} offen offset:64 sc1")
            a(f"buffer_load_dwordx4 {vr(G0,4)}, v14, {W}, s{sTmp[0]} offen sc1")
            a(f"buffer_load_dwordx4 {vr(G1,4)}, v14, {W}, s{sTmp[0]} offen offset:1024 sc1")
        self.poll(iss2, [M0, M1, G0, G1], site='h5b')
        self.stampval(26, sSpin); self.stampval(27, sPos)
        self.stamp(14)
        lsel = [a.newlabel("sel") for _ in range(4)]; lj = a.newlabel("selj")
        Mx, f0, f1, Ls = 32, 33, 34, 35
        a(f"v_max_f32 v{Mx}, v{M0}, v{M1}")
        a(f"s_and_b32 s{sTmp[1]}, s{sH}, 3")
        for r in (1, 2, 3):
            a(f"s_cmp_eq_u32 s{sTmp[1]}, {r}"); a(f"s_cbranch_scc1 {lsel[r]}")
        a(f"s_branch {lj}")
        for r in (1, 2, 3):
            a.label(lsel[r])
            a(f"v_mov_b32 v{G0}, v{G0+r}"); a(f"v_mov_b32 v{G1}, v{G1+r}")
            if r < 3: a(f"s_branch {lj}")
        a.label(lj)
        self.dpp_steps([Mx], "v_max_f32", ["row_ror:4", "row_ror:8"])
        a(f"v_sub_f32 v{f0}, v{M0}, v{Mx}"); a(f"v_sub_f32 v{f1}, v{M1}, v{Mx}")
        a(f"v_exp_f32 v{f0}, v{f0}"); a(f"v_exp_f32 v{f1}, v{f1}")
        a(f"v_mul_f32 v{Ls}, v{f0}, v{M0+1}"); a(f"v_mul_f32 v{G0}, v{f0}, v{G0}")
        a(f"v_fmac_f32 v{Ls}, v{f1}, v{M1+1}"); a(f"v_fmac_f32 v{G0}, v{f1}, v{G1}")
        self.dpp_steps([Ls, G0], "v_add_f32", ["row_ror:4", "row_ror:8"])
        a(f"v_rcp_f32 v{Ls}, v{Ls}")
        a(f"v_mul_f32 v{G0}, v{G0}, v{Ls}")
        Xp = 14
        a(f"v_cvt_pk_bf16_f32 v{Xp}, v{G0}, v{G0}")
        D, Ab = 16, 20
        self.pv_gemv(Xp, 4, lambda i: vr(WUV+4*i, 4), D, Ab)
        self.red_write(D)
        self.row_slot_addr()
        a("s_waitcnt lgkmcnt(0)"); a("s_barrier")
        lf = a.newlabel("uvfin")
        a(f"s_cmp_lg_u32 s{sW}, 0"); a(f"s_cbranch_scc1 {lf}")
        G = 16
        self.red_final_read(G)
        a(f"s_mov_b32 s{sA}, {f32hex(0.125)}")
        a("s_waitcnt lgkmcnt(0)")
        self.sum4(G)
        a(f"v_writelane_b32 v{G}, 0, 32"); a(f"v_writelane_b32 v{G+1}, s{sA}, 32")
        self.tag([G, G+1, G+2, G+3])
        a("s_mov_b32 exec_hi, 1")
        self.local_stores([(G, vL16, sTmp[0], None)])
        a("s_mov_b32 exec_hi, -1")
        a.label(lf)
        self.stamp(7)

    def check_inline(self, regs, ok_label):
        a = self.a
        acc, acc2 = vT0, vT0 + 1
        dw = [g + i for g in regs for i in range(4)]
        for k, r in enumerate(dw): a(f"v_xor_b32 v{r}, s{sT[k % 4]}, v{r}")
        a(f"v_or3_b32 v{acc}, v{dw[0]}, v{dw[1]}, v{dw[2]}")
        a(f"v_or3_b32 v{acc2}, v{dw[3]}, v{dw[4]}, v{dw[5]}")
        k = 6; tog = 0
        while k < len(dw):
            tgt = acc if tog == 0 else acc2
            a(f"v_or3_b32 v{tgt}, v{tgt}, v{dw[k]}, v{dw[k+1]}"); k += 2; tog ^= 1
        a(f"v_or_b32 v{acc}, v{acc}, v{acc2}")
        a(f"v_and_b32 v{acc}, s{sFF}, v{acc}")
        a(f"v_cmp_ne_u32 vcc, 0, v{acc}")
        a(f"s_cbranch_vccz {ok_label}")

    def row_slot_addr(self):
        a = self.a
        a(f"s_lshl_b32 s{sTmp[0]}, s{sH}, 3"); a(f"s_add_u32 s{sTmp[0]}, s{sTmp[0]}, s{sJ}"); a(f"s_lshl_b32 s{sTmp[0]}, s{sTmp[0]}, 10")
        a(f"s_add_u32 s{sTmp[0]}, s{sTmp[0]}, {O_ROW}")

    def bmiddle(self):
        a = self.a
        k = self.kblk
        if self.mode == "co":
            l0 = a.newlabel("kw"); l1 = a.newlabel("kw")
            a.label(l0)
            a(f"s_cmp_ge_u32 s{sPos}, {80+self.keep}"); a(f"s_cbranch_scc1 {l1}")
            self.stream_call()
            a(f"s_waitcnt vmcnt({self.keep})")
            a(f"s_branch {l0}")
            a.label(l1)
            a(f"s_waitcnt vmcnt({self.keep})")
        self.stampval(24, sPos)
        self.stamp(16)
        self.wo_setup(pWoB)
        Db = [16, 20, 24]; SB = 28; Tt = 14
        def redops(b):
            D = Db[b % 3]; S = SB + b
            return [f"v_mov_b32_dpp v{S}, v{D} quad_perm:[0,0,0,0] {DPPALL}",
                    f"v_mov_b32_dpp v{Tt}, v{D+2} quad_perm:[2,2,2,2] {DPPALL}",
                    f"v_add_f32_dpp v{S}, v{D+1}, v{S} quad_perm:[1,1,1,1] {DPPALL}",
                    f"v_add_f32_dpp v{Tt}, v{D+3}, v{Tt} quad_perm:[3,3,3,3] {DPPALL}",
                    f"v_add_f32 v{S}, v{S}, v{Tt}"]
        for b in range(16):
            D = Db[b % 3]
            ro = redops(b - 2) if b >= 2 else []
            for t in range(4):
                c = "0" if t == 0 else vr(D, 4)
                a(f"v_mfma_f32_16x16x32_bf16 {vr(D,4)}, {vr(AT+4*t,4)}, {ar(16*b+4*t,4)}, {c}")
                if ro: a(ro[t])
                if t == 1 and b < 8: self.pf_guard(lambda: self.vtr_one(b))
                if t == 2 and 8 <= b < 14: self.pf_guard(lambda: self.wo_one(b - 8))
            if ro: a(ro[4])
            if b in self.qkcalls: self.topup(self.dq)
        r14, r15 = redops(14), redops(15)
        r15 = [x.replace(f"v{Tt}", "v15") for x in r15]
        for x14, x15 in zip(r14, r15):
            a(x14); a(x15)
        self.stamp(3)
        m, m2 = 14, 15
        a(f"v_max3_f32 v{m}, v{SB}, v{SB+1}, v{SB+2}"); a(f"v_max3_f32 v{m2}, v{SB+3}, v{SB+4}, v{SB+5}")
        a(f"v_max3_f32 v{m}, v{m}, v{SB+6}, v{SB+7}"); a(f"v_max3_f32 v{m2}, v{m2}, v{SB+8}, v{SB+9}")
        a(f"v_max3_f32 v{m}, v{m}, v{SB+10}, v{SB+11}"); a(f"v_max3_f32 v{m2}, v{m2}, v{SB+12}, v{SB+13}")
        a(f"v_max3_f32 v{m}, v{m}, v{SB+14}, v{SB+15}"); a(f"v_max_f32 v{m}, v{m}, v{m2}")
        self.dpp_steps([m], "v_max_f32", ["row_ror:4", "row_ror:8", "b15", "b31"])
        a(f"v_readlane_b32 s{sA}, v{m}, 63")
        a(f"v_mov_b32 v{m2}, s{sSc}")
        a(f"v_mul_f32 v{m}, s{sA}, v{m2}")
        a(f"v_readfirstlane_b32 s{sA}, v{m}")
        for q in range(16): a(f"v_fma_f32 v{SB+q}, v{SB+q}, s{sSc}, -v{m}")
        for q in range(16): a(f"v_exp_f32 v{SB+q}, v{SB+q}")
        l, l2 = 14, 15
        a(f"v_add_f32 v{l}, v{SB}, v{SB+1}"); a(f"v_add_f32 v{l2}, v{SB+2}, v{SB+3}")
        for q in range(4, 16, 2):
            a(f"v_add_f32 v{l}, v{l}, v{SB+q}"); a(f"v_add_f32 v{l2}, v{l2}, v{SB+q+1}")
        a(f"v_add_f32 v{l}, v{l}, v{l2}")
        pk = [f"v_cvt_pk_bf16_f32 v{SB+q}, v{SB+q}, v{SB+q}" for q in range(16)]
        red = [f"v_add_f32_dpp v{l}, v{l}, v{l} row_ror:4 {DPPALL}", f"v_add_f32_dpp v{l}, v{l}, v{l} row_ror:8 {DPPALL}",
               f"v_add_f32_dpp v{l}, v{l}, v{l} row_bcast:15 row_mask:0xa bank_mask:0xf", f"v_add_f32_dpp v{l}, v{l}, v{l} row_bcast:31 row_mask:0xc bank_mask:0xf"]
        for i in range(4):
            for x_ in pk[4*i:4*i+2]: a(x_)
            a(red[i])
            for x_ in pk[4*i+2:4*i+4]: a(x_)
        a(f"v_readlane_b32 s{sB_}, v{l}, 63")
        self.stamp(4)
        if self.mode == "co":
            self.drain(self.keep)
            a("s_waitcnt vmcnt(16)")
        Ab, Do = 44, 52
        LB = [16, 20, 24, 56]
        a(f"s_lshl_b32 s{sTmp[0]}, s{sW}, 14"); a(f"v_add_u32 v15, s{sTmp[0]}, v{vL16}")
        if L_VL: a(f"v_add_u32 v15, {L_VL}, v15")
        order = [(b, u) for b in range(10) for u in range(4)] + [(b, u) for b in range(10, 14) for u in range(4)] + [(b, u) for b in (14, 15) for u in range(4)]
        def build(kk):
            b, u = order[kk]; A = Ab + 4 * (kk % 2)
            for r in range(4):
                a(f"v_and_b32_dpp v{A+r}, v{SB+b}, v{vM[r]} row_newbcast:{4*u} {DPPALL}")
        def bop(kk):
            b, u = order[kk]
            if b < 10: return vr(VRES+16*b+4*u, 4)
            if b < 14: return vr(LB[u], 4)
            return vr(VTR+16*(b-14)+4*u, 4)
        def ldsrd(b, u):
            a(f"ds_read_b128 {vr(LB[u],4)}, v15 offset:{((b-10)*4+u)*1024}")
        build(0); build(1)
        for kk in range(len(order)):
            b, u = order[kk]
            if (b, u) == (8, 0):
                self.stamp(17)
                a("s_waitcnt vmcnt(0)")
                self.stamp(18)
                for uu in range(4): ldsrd(10, uu)
            if 10 <= b < 14: a(f"s_waitcnt lgkmcnt(3)" if not (b == 13 and u > 0) else f"s_waitcnt lgkmcnt({3-u})")
            A = Ab + 4 * (kk % 2)
            c = "0" if kk == 0 else vr(Do, 4)
            a(f"v_mfma_f32_16x16x32_bf16 {vr(Do,4)}, {vr(A,4)}, {bop(kk)}, {c}")
            if 10 <= b < 13: ldsrd(b + 1, u)
            if kk + 2 < len(order): build(kk + 2)
        self.row_slot_addr()
        a(f"v_writelane_b32 v{Do}, s{sA}, 32"); a(f"v_writelane_b32 v{Do+1}, s{sB_}, 32")
        self.red_write(Do)
        a("s_waitcnt lgkmcnt(0)"); a("s_barrier")
        self.stamp(5)
        lf = a.newlabel("bfin")
        a(f"s_cmp_lg_u32 s{sW}, 0"); a(f"s_cbranch_scc1 {lf}")
        G = 16; MLr = 32
        a(f"v_mov_b32 v14, {L_RED+512}")
        for w in range(4): a(f"ds_read_b64 {vr(MLr+2*w,2)}, v14 offset:{w*RSTR}")
        self.red_final_read(G)
        a("s_waitcnt lgkmcnt(4)")
        M = 40
        a(f"v_max3_f32 v{M}, v{MLr}, v{MLr+2}, v{MLr+4}"); a(f"v_max_f32 v{M}, v{M}, v{MLr+6}")
        for w in range(4): a(f"v_sub_f32 v{MLr+2*w}, v{MLr+2*w}, v{M}")
        for w in range(4): a(f"v_exp_f32 v{MLr+2*w}, v{MLr+2*w}")
        a(f"v_readfirstlane_b32 s{sA}, v{M}")
        a("s_waitcnt lgkmcnt(0)")
        for r in range(4): a(f"v_mul_f32 v{G+r}, v{MLr}, v{G+r}")
        for w in range(1, 4):
            for r in range(4): a(f"v_fmac_f32 v{G+r}, v{MLr+2*w}, v{G+4*w+r}")
        a(f"v_writelane_b32 v{G}, s{sA}, 32")
        self.tag([G, G+1, G+2, G+3])
        a("s_mov_b32 exec_hi, 1")
        self.local_stores([(G, vL16, sTmp[0], None)])
        a("s_mov_b32 exec_hi, -1")
        a.label(lf)
        self.stamp(7)

    def opart(self):
        a = self.a
        G, ML = 16, 20
        a(f"v_lshrrev_b32 v14, 7, v{vL16}"); a(f"v_lshlrev_b32 v15, 10, v14")
        a(f"v_and_b32 v14, 0x70, v{vL16}"); a(f"v_add_u32 v14, v15, v14")
        a(f"s_lshl_b32 s{sTmp[0]}, s{sH}, 13"); a(f"s_add_u32 s{sTmp[0]}, s{sTmp[0]}, {O_ROW}")
        a(f"s_lshl_b32 s{sTmp[1]}, s{sW}, 7"); a(f"s_add_u32 s{sTmp[1]}, s{sTmp[1]}, s{sTmp[0]}")
        a(f"v_lshrrev_b32 v59, 8, v{vL16}"); a(f"v_mul_u32_u24 v59, 160, v59")
        a(f"v_and_b32 v58, 0xf0, v{vL16}"); a(f"v_add_u32 v59, v59, v58")
        a(f"s_mul_i32 s{sTmp[2]}, s{sW}, {32*160}"); a(f"s_add_u32 s{sTmp[2]}, s{sTmp[2]}, {L_R0}"); a(f"v_add_u32 v59, s{sTmp[2]}, v59")
        def iss():
            a(f"buffer_load_dwordx4 {vr(ML,4)}, v15, {W}, s{sTmp[0]} offen offset:512 sc1")
            a(f"buffer_load_dwordx4 {vr(G,4)}, v14, {W}, s{sTmp[1]} offen sc1")
        self.poll(iss, [ML, G], site='row')
        self.stamp(8)
        WB = 24
        for i in range(8): a(f"ds_read_b128 {vr(WB+4*i,4)}, v59 offset:{i*640}")
        if self.pfnew: self.next_w()
        self.combine8(G, ML, 56)
        Xp = 14
        a(f"v_cvt_pk_bf16_f32 v{Xp}, v{G}, v{G}")
        D, Ab = 56, 16
        a("s_waitcnt lgkmcnt(0)")
        self.pv_gemv(Xp, 8, lambda i: vr(WB+4*i, 4), D, Ab)
        self.red_write(D)
        a(f"v_lshrrev_b32 v14, 4, v{vL16}"); a(f"v_mul_u32_u24 v15, 13108, v14"); a(f"v_lshrrev_b32 v15, 16, v15")
        a(f"v_mul_u32_u24 v24, 5, v15"); a(f"v_sub_u32 v14, v14, v24"); a(f"v_lshlrev_b32 v14, 4, v14"); a(f"v_lshl_add_u32 v14, v15, 7, v14")
        a(f"s_lshl_b32 s{sTmp[0]}, s{sJ}, 5"); a(f"s_add_u32 s{sTmp[0]}, s{sTmp[0]}, s{sH}"); a(f"s_lshl_b32 s{sTmp[0]}, s{sTmp[0]}, 9")
        a(f"s_add_u32 s{sTmp[0]}, s{sTmp[0]}, s{sCol}")
        a("s_waitcnt lgkmcnt(0)"); a("s_barrier")
        lf = a.newlabel("ofin")
        a(f"s_cmp_lg_u32 s{sW}, 0"); a(f"s_cbranch_scc1 {lf}")
        self.red_final_read(G)
        a("s_waitcnt lgkmcnt(0)")
        self.sum4(G); self.tag([G, G+1, G+2, G+3])
        self.exec_set(0xfffff, 0)
        a(f"buffer_store_dwordx4 {vr(G,4)}, v14, {W}, s{sTmp[0]} offen sc1")
        self.exec_all()
        a.label(lf)
        self.stamp(9)
        if not self.pfnew: self.next_w()
        a(f"v_lshrrev_b32 v14, 7, v{vL16}"); a(f"v_lshlrev_b32 v14, 9, v14")
        a(f"v_and_b32 v15, 0x70, v{vL16}"); a(f"v_add_u32 v14, v14, v15")
        a(f"s_lshl_b32 s{sTmp[0]}, s{sJ}, 14"); a(f"s_lshl_b32 s{sTmp[1]}, s{sW}, 7"); a(f"s_add_u32 s{sTmp[0]}, s{sTmp[0]}, s{sTmp[1]}")
        a(f"s_add_u32 s{sTmp[0]}, s{sTmp[0]}, s{sCol}")
        for i in range(1, 4): a(f"s_add_u32 s{sTmp[i]}, s{sTmp[0]}, {i*4096}")
        def issc():
            for i in range(4):
                a(f"buffer_load_dwordx4 {vr(G+4*i,4)}, v14, {W}, s{sTmp[i]} offen sc1")
        self.poll(issc, [G, G+4, G+8, G+12], execmask=(0x1f1f1f1f, 0x1f1f1f1f), site='col')
        self.stampval(28, sSpin); self.stampval(29, sPos)
        self.stamp(10)
        self.sum4(G)
        for r in range(4): a(f"v_add_f32_dpp v{G+r}, v{G+r}, v{G+r} row_ror:8 {DPPALL}")
        self.treduce([G, G+1, G+2, G+3])
        a(f"v_add_f32 v{G}, v{G}, v{vX}")
        a(f"v_cndmask_b32 v{vX}, 0, v{G}, s[{sM5}:{sM5+1}]")

    def next_w(self):
        a = self.a
        lnp = a.newlabel("nopf"); lb = a.newlabel("nouk")
        a(f"s_cmp_eq_u32 s{sL}, 3"); a(f"s_cbranch_scc1 {lnp}")
        a(f"s_add_u32 s{sL}, s{sL}, 1")
        self.load_wq()
        a(f"s_bitcmp1_b32 s{sL}, 0"); a(f"s_cbranch_scc1 {lb}")
        self.load_wuk()
        a.label(lb)
        a(f"s_sub_u32 s{sL}, s{sL}, 1")
        a.label(lnp)

    def epilogue(self):
        a = self.a
        le = a.newlabel("fin")
        a(f"s_cmp_lg_u32 s{sH}, 0"); a(f"s_cbranch_scc1 {le}")
        self.srd(SRD_B, pOut, 1280)
        a(f"v_lshrrev_b32 v14, 4, v{vL16}"); a(f"v_and_b32 v15, 15, v14"); a(f"v_lshrrev_b32 v14, 4, v14")
        a(f"v_lshl_add_u32 v14, v15, 2, v14")
        a(f"s_mul_i32 s{sTmp[0]}, s{sJ}, 80"); a(f"s_mul_i32 s{sTmp[1]}, s{sW}, 20"); a(f"s_add_u32 s{sTmp[0]}, s{sTmp[0]}, s{sTmp[1]}")
        a(f"v_add_u32 v14, s{sTmp[0]}, v14"); a(f"v_lshlrev_b32 v14, 1, v14")
        a(f"v_cvt_pk_bf16_f32 v15, v{vX}, v{vX}")
        a(f"s_mov_b64 exec, s[{sM5}:{sM5+1}]")
        a(f"buffer_store_short v15, v14, s[{SRD_B}:{SRD_B+3}], 0 offen")
        self.exec_all()
        a(f"s_cmp_lg_u32 s2, 0"); a(f"s_cbranch_scc1 {le}")
        a(f"s_cmp_lg_u32 s{sW}, 0"); a(f"s_cbranch_scc1 {le}")
        a(f"v_mov_b32 v14, 0")
        a("s_mov_b64 exec, 1")
        a(f"buffer_store_dword v{vT}, v14, {W}, 0 offen sc1")
        self.exec_all()
        a.label(le)
        l2 = a.newlabel("noerr")
        a(f"s_cmp_eq_u32 s{sErr}, 0"); a(f"s_cbranch_scc1 {l2}")
        self.srd(SRD_B, sDbg, 256)
        a(f"v_mov_b32 v14, 0"); a(f"v_mov_b32 v15, 0xdead")
        a("s_mov_b64 exec, 1")
        a(f"buffer_store_dword v15, v14, s[{SRD_B}:{SRD_B+3}], 0 offen")
        self.exec_all()
        a.label(l2)

    def build(self):
        a = self.a
        self.prologue()
        a.label("L_layer")
        self.qpart()
        a(f"s_bitcmp1_b32 s{sL}, 0"); a(f"s_cbranch_scc1 L_bmid")
        self.amiddle()
        a(f"s_branch L_opart")
        a.label("L_bmid")
        self.bmiddle()
        a.label("L_opart")
        self.opart()
        self.stamp(11)
        for L_ in range(4): self.dbgstamp(f"end{L_}", L_)
        a(f"s_add_u32 s{sL}, s{sL}, 1"); a(f"s_xor_b32 s{sCol}, s{sCol}, 0x20000")
        nl = self.stop if self.stop else 4
        a(f"s_cmp_ge_u32 s{sL}, {nl}"); a("s_cbranch_scc1 L_done")
        self.next_tag()
        a("s_branch L_layer")
        a.label("L_done")
        self.epilogue()
        if self.stamps:
            a(f"s_mov_b32 s{sL}, 3")
            self.stamp(13)
        a("s_waitcnt vmcnt(0)")
        a.label("L_end")
        a("s_endpgm")
        self.dw_sub()
        self.stream()
        a.label("L_codeend")
        return fix(a.lines)

HEADER = open("interleave_layers__compressed_kv_cla__mha_block_cached__decode.s.ref").read().split("; Override launch")[0]

def make(path, **kw):
    body = "\n".join(Gen(**kw).build())
    src = f"""{HEADER}; @launch grid=(256,1,1) block=(256,1,1) lds={LDS_BYTES}
.amdgcn_target "amdgcn-amd-amdhsa--gfx950"
.text
.globl {KNAME}
.p2align 8
.type {KNAME},@function
{KNAME}:
{body}
.section .rodata,"a"
.p2align 6
.amdhsa_kernel {KNAME}
  .amdhsa_next_free_vgpr 512
  .amdhsa_next_free_sgpr 102
  .amdhsa_accum_offset 256
  .amdhsa_group_segment_fixed_size 0
  .amdhsa_kernarg_size 112
  .amdhsa_user_sgpr_count 2
  .amdhsa_user_sgpr_kernarg_segment_ptr 1
  .amdhsa_system_sgpr_workgroup_id_x 1
  .amdhsa_float_denorm_mode_32 3
.end_amdhsa_kernel
"""
    open(path, "w").write(src)

if __name__ == "__main__":
    import argparse
    ap = argparse.ArgumentParser()
    ap.add_argument("-o", default="k.s"); ap.add_argument("--opts", default="")
    x = ap.parse_args()
    kw = {}
    for o in filter(None, x.opts.split(";")):
        k_, v_ = o.split("="); kw[k_] = eval(v_)
    make(x.o, **kw)
```

```python
import sys, struct
from hazard import fix

KNAME = "interleave_layers__compressed_kv_cla__mha_block_cached__decode_kernel"

class Asm:
    def __init__(self): self.lines = []; self.n = 0
    def __call__(self, s):
        for l in s.split("\n"):
            l = l.strip()
            if l: self.lines.append(l)
    def label(self, name): self.lines.append(name + ":")
    def newlabel(self, base="L"):
        self.n += 1; return f"{base}_{self.n}"

def vr(b, n=1): return f"v{b}" if n == 1 else f"v[{b}:{b+n-1}]"
def ar(b, n=1): return f"a{b}" if n == 1 else f"a[{b}:{b+n-1}]"
DPPALL = "row_mask:0xf bank_mask:0xf"
def f32hex(x): return "0x%08x" % struct.unpack("<I", struct.pack("<f", x))[0]

O_XCC  = 0x001000
O_STAMP = 0x080000
O_QP   = 0x100000
O_ROW  = 0x180000
O_COL  = 0x1C0000
O_QABS = 0x200000
O_ML1  = 0x210000
O_C2   = 0x240000
O_ML2  = 0x2C0000
O_C1   = 0x300000

L_VL  = 0
L_CKV = 65536
L_R0  = 131072
L_ST  = 151680
L_RED = 156032
RSTR  = 1056
L_U   = 160256
LDS_BYTES = 163840

sH, sJ, sW, sL, sAct = 3, 4, 5, 6, 7
SRD_WS, SRD_K, SRD_V, SRD_A, SRD_B = 8, 12, 16, 20, 24
sSPC, sRET = 28, 30
sT = [32, 33, 34, 35]
sSel = [36, 37, 38, 39]
pWqA, pWqB, pWuk, pWuv, pWoA, pWoB, pCkv, pOut, pX = 40, 42, 44, 46, 48, 50, 52, 54, 56
sCol = 58
sGA, sS = 59, 60
sSO = 61
sSpin = 62
sPos = 63
sFF = 64
sTmp = list(range(65, 76))
sMask = [76, 78, 80, 82]
sM5 = 84
sDbg = 86
sErr = 88
sLocal = 89
sA, sB_ = 90, 91
sTs = 92
sXG, sI, sSc, sXcc = 98, 99, 100, 101
sTf = 97
sDW, sRET2, sYoung, sVm, sVm2, sDl = 70, 72, 74, 75, 94, 95
sBud = 57

vL16, vM, vT, vX, vWoff, vKoff, vVoff, vRedW = 0, [1, 2, 3, 4], 5, 6, 7, 8, 9, 10
vT0 = 11
vCk = 11
vWo = 13
WQ, WUK, WUV, VTR, VRES = 76, 60, 80, 64, 96
AT = 44

SC = (128 ** -0.5) * 1.4426950408889634
SPIN_MAX = 1 << 16
W = f"s[{SRD_WS}:{SRD_WS+3}]"

class Gen:
    def __init__(self, kblk=8, stream_mode="co", stop_after=None, local=True, stamps="", pol="nt", wpol="", cpol="", codepf=True,
                 qkcalls=(4, 10), sent=True, nopf=False, once=True, xcalls=(), dlim=6, keep=6, addn=True, pretouch=True, mlsent=True, slp=0, sent1=False, pfnew=True, mltail=True, dsite=None, pre=None, rsl=None, dq=None, dbg=None, bud=None):
        self.bud = bud
        self.dbg = dbg
        self.pre = pre or {}; self.rsl = rsl or {}; self.dq = dq
        self.pfnew = pfnew; self.mltail = mltail; self.dsite = dsite or {}
        self.slp = slp; self.sent1 = sent1
        self.addn = addn; self.pretouch = pretouch; self.mlsent = mlsent
        self.once = once; self.xcalls = xcalls; self.dlim = dlim; self.keep = keep
        self.nopf = nopf
        self.a = Asm(); self.kblk = kblk; self.mode = stream_mode; self.stop = stop_after
        self.local = local; self.stamps = stamps; self.pol = pol; self.wpol = wpol; self.cpol = cpol; self.codepf = codepf
        self.qkcalls = qkcalls; self.sent = sent

    def srd(self, s, lo, nbytes):
        a = self.a
        a(f"s_mov_b32 s{s}, s{lo}"); a(f"s_mov_b32 s{s+1}, s{lo+1}")
        a(f"s_mov_b32 s{s+2}, {nbytes:#x}"); a(f"s_mov_b32 s{s+3}, 0x20000")
    def exec_all(self): self.a("s_mov_b64 exec, -1")
    def exec_set(self, lo, hi):
        self.a(f"s_mov_b32 exec_lo, {lo:#x}"); self.a(f"s_mov_b32 exec_hi, {hi:#x}")
    def tag(self, regs):
        for i, r in enumerate(regs):
            self.a(f"v_perm_b32 v{r}, v{r}, v{vT}, s{sSel[i%4]}")
    def stamp(self, idx):
        if not self.stamps: return
        if self.stamps == "light" and idx not in (12, 13): return
        a = self.a
        lab = a.newlabel("st")
        a(f"s_cmp_lg_u32 s{sW}, 0"); a(f"s_cbranch_scc1 {lab}")
        a(f"s_memrealtime s[{sTs}:{sTs+1}]")
        a("s_waitcnt lgkmcnt(0)")
        a(f"s_lshl_b32 s96, s2, 2"); a(f"s_add_u32 s96, s96, s{sL}"); a(f"s_lshl_b32 s96, s96, 7")
        a(f"s_add_u32 s96, s96, {O_STAMP + idx*4}")
        a(f"v_mov_b32 v{vT0}, s{sTs}")
        a(f"v_mov_b32 v{vT0+1}, 0")
        a(f"s_mov_b64 s[{sTs}:{sTs+1}], exec"); a("s_mov_b64 exec, 1")
        a(f"buffer_store_dword v{vT0}, v{vT0+1}, {W}, s96 offen")
        a(f"s_mov_b64 exec, s[{sTs}:{sTs+1}]")
        a.label(lab)
    def dbgstamp(self, k, cond_layer=None):
        if not self.dbg or k not in self.dbg: return
        a = self.a
        k = self.dbg.index(k)
        lab = a.newlabel("db")
        a(f"s_cmp_lg_u32 s{sW}, 0"); a(f"s_cbranch_scc1 {lab}")
        a(f"s_cmp_ge_u32 s2, 8"); a(f"s_cbranch_scc1 {lab}")
        if cond_layer is not None:
            a(f"s_cmp_lg_u32 s{sL}, {cond_layer}"); a(f"s_cbranch_scc1 {lab}")
        a(f"s_memrealtime s[{sTs}:{sTs+1}]")
        a("s_waitcnt lgkmcnt(0)")
        a(f"s_mov_b32 s{SRD_A}, s{sDbg}"); a(f"s_mov_b32 s{SRD_A+1}, s{sDbg+1}"); a(f"s_mov_b32 s{SRD_A+2}, 256"); a(f"s_mov_b32 s{SRD_A+3}, 0x20000")
        a(f"s_lshl_b32 s96, s2, 3"); a(f"s_add_u32 s96, s96, {4*k}")
        a(f"v_mov_b32 v{vT0}, s{sTs}")
        a(f"v_mov_b32 v{vT0+1}, 0")
        a(f"s_mov_b64 s[{sTs}:{sTs+1}], exec"); a("s_mov_b64 exec, 1")
        a(f"buffer_store_dword v{vT0}, v{vT0+1}, s[{SRD_A}:{SRD_A+3}], s96 offen")
        a(f"s_mov_b64 exec, s[{sTs}:{sTs+1}]")
        a.label(lab)
    def stampval(self, idx, sreg):
        if self.stamps != "full": return
        a = self.a
        lab = a.newlabel("sv")
        a(f"s_cmp_lg_u32 s{sW}, 0"); a(f"s_cbranch_scc1 {lab}")
        a(f"s_lshl_b32 s96, s2, 2"); a(f"s_add_u32 s96, s96, s{sL}"); a(f"s_lshl_b32 s96, s96, 7")
        a(f"s_add_u32 s96, s96, {O_STAMP + idx*4}")
        a(f"v_mov_b32 v{vT0}, s{sreg}")
        a(f"v_mov_b32 v{vT0+1}, 0")
        a(f"s_mov_b64 s[{sTs}:{sTs+1}], exec"); a("s_mov_b64 exec, 1")
        a(f"buffer_store_dword v{vT0}, v{vT0+1}, {W}, s96 offen")
        a(f"s_mov_b64 exec, s[{sTs}:{sTs+1}]")
        a.label(lab)
    def stream_call(self):
        self.a(f"s_swappc_b64 s[{sRET}:{sRET+1}], s[{sSPC}:{sSPC+1}]")
    def maybe_stream(self):
        a = self.a
        lab = a.newlabel("ns")
        a(f"s_cmp_eq_u32 s{sAct}, 0"); a(f"s_cbranch_scc1 {lab}")
        self.stream_call()
        a.label(lab)
    def read_vm(self):
        a = self.a
        a(f"s_getreg_b32 s{sVm}, hwreg(HW_REG_IB_STS)")
        a(f"s_bfe_u32 s{sVm2}, s{sVm}, 0x20016"); a(f"s_and_b32 s{sVm}, s{sVm}, 15")
        a(f"s_lshl4_add_u32 s{sVm}, s{sVm2}, s{sVm}")
    def dw_sub(self):
        a = self.a
        a.label("L_dw")
        self.read_vm()
        a(f"s_cmp_le_u32 s{sVm}, s{sYoung}"); a("s_cbranch_scc1 L_dwret")
        a(f"s_cmp_ge_u32 s{sVm}, s{sDl}"); a("s_cbranch_scc1 L_dw")
        a(f"s_cmp_eq_u32 s{sAct}, 0"); a("s_cbranch_scc1 L_dw")
        if self.bud is not None:
            a(f"s_cmp_le_i32 s{sBud}, 0"); a("s_cbranch_scc1 L_dw")
            a(f"s_sub_u32 s{sBud}, s{sBud}, {self.kblk}")
        self.stream_call()
        a(f"s_add_u32 s{sYoung}, s{sYoung}, {self.kblk}")
        a("s_branch L_dw")
        a.label("L_dwret")
        a(f"s_setpc_b64 s[{sRET2}:{sRET2+1}]")
    def dwait(self, young, n=0, site=None):
        dl = self.dsite.get(site, self.dlim)
        a = self.a
        if self.mode != "co":
            a(f"s_waitcnt vmcnt({young})"); return
        ns = a.newlabel("dwn"); jn = a.newlabel("dwj")
        a(f"s_cmp_eq_u32 s{sAct}, 0"); a(f"s_cbranch_scc1 {ns}")
        a(f"s_mov_b32 s{sYoung}, {young}"); a(f"s_mov_b32 s{sDl}, {dl + n if dl else 0}")
        a(f"s_swappc_b64 s[{sRET2}:{sRET2+1}], s[{sDW}:{sDW+1}]")
        a(f"s_branch {jn}")
        a.label(ns)
        a(f"s_waitcnt vmcnt({young})")
        a.label(jn)
    def topup(self, depth=None):
        if self.mode != "co": return
        depth = self.dlim if depth is None else depth
        a = self.a
        lab = a.newlabel("tu")
        a(f"s_cmp_eq_u32 s{sAct}, 0"); a(f"s_cbranch_scc1 {lab}")
        self.read_vm()
        a(f"s_cmp_ge_u32 s{sVm}, {depth}"); a(f"s_cbranch_scc1 {lab}")
        self.stream_call()
        a.label(lab)
    def drain(self, keep):
        a = self.a
        l0 = a.newlabel("drain"); l1 = a.newlabel("drained")
        a.label(l0)
        a(f"s_cmp_eq_u32 s{sAct}, 0"); a(f"s_cbranch_scc1 {l1}")
        self.stream_call()
        a(f"s_waitcnt vmcnt({keep})")
        a(f"s_branch {l0}")
        a.label(l1)

    def poll(self, issue, regs, execmask=None, stream=True, site=None):
        a = self.a
        lp = a.newlabel("poll"); ns = a.newlabel("pns"); jn = a.newlabel("pj"); dn = a.newlabel("pdone")
        if execmask: self.exec_set(*execmask)
        a(f"s_mov_b32 s{sSpin}, 0")
        if self.bud is not None: a(f"s_mov_b32 s{sBud}, {self.bud.get(site, self.bud.get('*', 8))}")
        if self.pre.get(site): a(f"s_sleep {self.pre[site]}")
        a.label(lp)
        issue()
        if execmask and self.mode == "co": self.exec_all()
        self.dwait(0, len(regs) if self.addn else 0, site)
        if execmask and self.mode == "co": self.exec_set(*execmask)
        a.label(jn)
        acc, acc2 = vT0, vT0 + 1
        dw = [g + i for g in regs for i in range(4)]
        for k, r in enumerate(dw): a(f"v_xor_b32 v{r}, s{sT[k % 4]}, v{r}")
        a(f"v_or3_b32 v{acc}, v{dw[0]}, v{dw[1]}, v{dw[2]}")
        if len(dw) == 4:
            a(f"v_or_b32 v{acc}, v{acc}, v{dw[3]}")
        else:
            a(f"v_or3_b32 v{acc2}, v{dw[3]}, v{dw[4]}, v{dw[5]}")
            k = 6; tog = 0
            while k < len(dw):
                tgt = acc if tog == 0 else acc2
                a(f"v_or3_b32 v{tgt}, v{tgt}, v{dw[k]}, v{dw[k+1]}"); k += 2
                tog ^= 1
            a(f"v_or_b32 v{acc}, v{acc}, v{acc2}")
        a(f"v_and_b32 v{acc}, s{sFF}, v{acc}")
        a(f"v_cmp_ne_u32 vcc, 0, v{acc}")
        a(f"s_cbranch_vccz {dn}")
        if self.rsl.get(site): a(f"s_sleep {self.rsl[site]}")
        if self.slp:
            lz = a.newlabel("nsl")
            a(f"s_cmp_eq_u32 s{sAct}, 0"); a(f"s_cbranch_scc1 {lz}")
            a(f"s_sleep {self.slp}")
            a.label(lz)
        a(f"s_add_u32 s{sSpin}, s{sSpin}, 1")
        a(f"s_cmp_lt_u32 s{sSpin}, {SPIN_MAX}")
        a(f"s_cbranch_scc1 {lp}")
        a(f"s_mov_b32 s{sErr}, 1")
        a.label(dn)
        if execmask: self.exec_all()

    def dpp_steps(self, regs, op, steps):
        for d in steps:
            for r in regs:
                if d == "b15": self.a(f"{op}_dpp v{r}, v{r}, v{r} row_bcast:15 row_mask:0xa bank_mask:0xf")
                elif d == "b31": self.a(f"{op}_dpp v{r}, v{r}, v{r} row_bcast:31 row_mask:0xc bank_mask:0xf")
                else: self.a(f"{op}_dpp v{r}, v{r}, v{r} {d} {DPPALL}")
    X1, X2, HM, RM = "quad_perm:[1,0,3,2]", "quad_perm:[2,3,0,1]", "row_half_mirror", "row_mirror"
    def reduce63(self, regs, op):
        self.dpp_steps(regs, op, [self.X1, self.X2, self.HM, self.RM, "b15", "b31"])

    def treduce(self, r):
        a = self.a
        a(f"v_permlane32_swap_b32 v{r[0]}, v{r[2]}")
        a(f"v_permlane32_swap_b32 v{r[1]}, v{r[3]}")
        a(f"v_add_f32 v{r[0]}, v{r[0]}, v{r[2]}")
        a(f"v_add_f32 v{r[1]}, v{r[1]}, v{r[3]}")
        a(f"v_permlane16_swap_b32 v{r[0]}, v{r[1]}")
        a(f"v_add_f32 v{r[0]}, v{r[0]}, v{r[1]}")

    def pv_gemv(self, Xp, nload, bop, D, Abuf):
        a = self.a
        def build(i):
            A = Abuf + 4 * (i % 2)
            for r in range(4):
                a(f"v_and_b32_dpp v{A+r}, v{Xp}, v{vM[r]} row_newbcast:{i} {DPPALL}")
        build(0)
        if nload > 1: build(1)
        for i in range(nload):
            A = Abuf + 4 * (i % 2)
            c = "0" if i == 0 else vr(D, 4)
            a(f"v_mfma_f32_16x16x32_bf16 {vr(D,4)}, {vr(A,4)}, {bop(i)}, {c}")
            if i + 2 < nload: build(i + 2)

    def red_write(self, D, off=0):
        a = self.a
        a("s_mov_b32 exec_hi, 1")
        a(f"ds_write_b128 v{vRedW}, {vr(D,4)} offset:{off}")
        a("s_mov_b32 exec_hi, -1")
    def red_final_read(self, G, off=0):
        a = self.a
        a(f"v_add_u32 v{vT0}, {L_RED}, v{vL16}")
        for w in range(4):
            a(f"ds_read_b128 {vr(G+4*w,4)}, v{vT0} offset:{w*RSTR+off}")
    def sum4(self, G):
        a = self.a
        for r in range(4):
            a(f"v_add_f32 v{G+r}, v{G+r}, v{G+4+r}")
            a(f"v_add_f32 v{G+8+r}, v{G+8+r}, v{G+12+r}")
        for r in range(4):
            a(f"v_add_f32 v{G+r}, v{G+r}, v{G+8+r}")

    def local_stores(self, items):
        a = self.a
        def emit(flag):
            for (data, vaddr, soff, pre) in items:
                if pre: pre()
                a(f"buffer_store_dwordx4 {vr(data,4)}, v{vaddr}, {W}, s{soff} offen {flag}")
        if self.local:
            l0 = a.newlabel("ls"); l1 = a.newlabel("ls")
            a(f"s_cmp_eq_u32 s{sLocal}, 0"); a(f"s_cbranch_scc1 {l0}")
            emit("")
            a(f"s_branch {l1}")
            a.label(l0)
            emit("sc1")
            a.label(l1)
        else:
            emit("sc1")

    def next_tag(self):
        a = self.a
        a(f"s_mul_i32 s{sTf}, s{sTf}, 0x9E3779B1"); a(f"s_add_u32 s{sTf}, s{sTf}, 0x7F4A7C15")
        a(f"v_mov_b32 v{vT}, s{sTf}")
        a(f"s_and_b32 s{sT[0]}, s{sTf}, 0xff"); a(f"s_bfe_u32 s{sT[1]}, s{sTf}, 0x80008")
        a(f"s_bfe_u32 s{sT[2]}, s{sTf}, 0x80010"); a(f"s_lshr_b32 s{sT[3]}, s{sTf}, 24")

    def pf_guard(self, fn, lmin=2):
        if not self.nopf: return fn()
        a = self.a; l = a.newlabel("npf")
        a(f"s_cmp_ge_u32 s{sL}, {lmin}"); a(f"s_cbranch_scc1 {l}")
        fn()
        a.label(l)
    def load_wq(self):
        self.pf_guard(self.load_wq_)
    def load_wq_(self):
        a = self.a
        l0 = a.newlabel("wq"); l1 = a.newlabel("wq")
        a(f"s_bitcmp1_b32 s{sL}, 0"); a(f"s_cbranch_scc1 {l0}")
        a(f"s_mov_b32 s{SRD_A}, s{pWqA}"); a(f"s_mov_b32 s{SRD_A+1}, s{pWqA+1}"); a(f"s_branch {l1}")
        a.label(l0)
        a(f"s_mov_b32 s{SRD_A}, s{pWqB}"); a(f"s_mov_b32 s{SRD_A+1}, s{pWqB+1}")
        a.label(l1)
        a(f"s_mov_b32 s{SRD_A+2}, {19*8192+256}"); a(f"s_mov_b32 s{SRD_A+3}, 0x20000")
        for i in range(5):
            a(f"s_mov_b32 s{sTmp[0]}, {i*32768}")
            a(f"buffer_load_dwordx4 {vr(WQ+4*i,4)}, v{vWoff}, s[{SRD_A}:{SRD_A+3}], s{sTmp[0]} offen {self.wpol}")
    def load_wuk(self):
        self.pf_guard(self.load_wuk_)
    def load_wuk_(self):
        a = self.a
        self.srd(SRD_A, pWuk, 15*8192+256)
        t = vT0
        a(f"v_lshrrev_b32 v{t}, 8, v{vKoff}"); a(f"v_lshlrev_b32 v{t}, 13, v{t}")
        a(f"v_and_b32 v{t+1}, s{sFF}, v{vKoff}"); a(f"v_or_b32 v{t}, v{t}, v{t+1}")
        for i in range(4):
            a(f"s_mov_b32 s{sTmp[0]}, {i*32768}")
            a(f"buffer_load_dwordx4 {vr(WUK+4*i,4)}, v{t}, s[{SRD_A}:{SRD_A+3}], s{sTmp[0]} offen {self.wpol}")
    def load_wuv(self):
        self.pf_guard(self.load_wuv_)
    def load_wuv_(self):
        a = self.a
        self.srd(SRD_A, pWuv, 15*8192+256)
        for i in range(4):
            a(f"s_mov_b32 s{sTmp[0]}, {i*32768}")
            a(f"buffer_load_dwordx4 {vr(WUV+4*i,4)}, v{vWoff}, s[{SRD_A}:{SRD_A+3}], s{sTmp[0]} offen {self.wpol}")
    def wo_setup(self, p):
        a = self.a
        self.srd(SRD_A, p, 31*1280+160)
        a(f"s_mul_i32 s{sTmp[1]}, s{sW}, {32*160}"); a(f"s_add_u32 s{sTmp[1]}, s{sTmp[1]}, {L_R0}")
    def wo_one(self, i):
        a = self.a
        a(f"s_add_u32 m0, s{sTmp[1]}, {i*6*160}")
        a(f"s_mov_b32 s{sTmp[0]}, {i*6*1280}")
        if i < 5: a("s_mov_b32 exec_hi, 0x0fffffff")
        else: self.exec_set(0x000fffff, 0)
        a(f"buffer_load_dwordx4 v{vWo}, s[{SRD_A}:{SRD_A+3}], s{sTmp[0]} offen {self.wpol} lds")
        if i < 5: a("s_mov_b32 exec_hi, -1")
        else: self.exec_all()
    def load_wo(self, p):
        def f():
            self.wo_setup(p)
            for i in range(6): self.wo_one(i)
        self.pf_guard(f)
    def ckv_one(self, kk):
        a = self.a
        f = (kk & 8) | ((kk & 3) << 1) | ((kk >> 2) & 1)
        a(f"v_xor_b32 v{vCk}, {f*16}, v{vL16}")
        a(f"s_lshl_b32 s{sSO}, s{sW}, 14"); a(f"s_add_u32 m0, s{sSO}, {L_CKV + kk*1024}")
        a(f"s_mov_b32 s{sSO}, {kk*1024}")
        a(f"buffer_load_dwordx4 v{vCk}, s[{SRD_B}:{SRD_B+3}], s{sSO} offen {self.cpol} lds")
    def vtr_one(self, k):
        a = self.a
        b, u = 14 + (k >> 2), k & 3
        if u == 0: a(f"s_mov_b32 s{sTmp[2]}, {b*4096}")
        a(f"buffer_load_dwordx4 {vr(VTR+(b-14)*16+4*u,4)}, v{vVoff}, s[{SRD_V}:{SRD_V+3}], s{sTmp[2]} offen offset:{u*256} {self.pol}")

    def prologue(self):
        a = self.a
        a("s_cmp_ge_u32 s2, 256"); a("s_cbranch_scc1 L_end")
        a("s_load_dwordx4 s[64:67], s[0:1], 0")
        a("s_load_dwordx4 s[68:71], s[0:1], 16")
        a("s_load_dwordx4 s[72:75], s[0:1], 32")
        a("s_load_dwordx4 s[76:79], s[0:1], 56")
        a("s_load_dwordx4 s[80:83], s[0:1], 72")
        a("s_load_dwordx4 s[84:87], s[0:1], 88")
        a("s_load_dwordx2 s[8:9], s[0:1], 104")
        a(f"v_lshrrev_b32 v20, 6, v0")
        a(f"v_and_b32 v21, 63, v0")
        a(f"v_readfirstlane_b32 s{sW}, v20")
        a(f"s_and_b32 s{sH}, s2, 31"); a(f"s_lshr_b32 s{sJ}, s2, 5")
        a(f"s_and_b32 s{sXG}, s2, 7"); a(f"s_lshr_b32 s{sI}, s2, 3")
        a(f"s_and_b32 s{sGA}, s{sI}, 1")
        a(f"s_lshr_b32 s{sS}, s{sI}, 1"); a(f"s_lshl_b32 s92, s{sXG}, 4"); a(f"s_add_u32 s{sS}, s{sS}, s92")
        a(f"v_lshlrev_b32 v{vL16}, 4, v21")
        if self.codepf:
            lc = a.newlabel("cpf")
            a(f"s_cmp_lg_u32 s{sW}, 3"); a(f"s_cbranch_scc1 {lc}")
            a("s_getpc_b64 s[20:21]")
            a.label("L_pcx")
            a("s_mov_b32 s22, L_codeend-L_pcx"); a("s_mov_b32 s23, 0x20000")
            a("v_lshlrev_b32 v22, 6, v21")
            self.ncode = 7
            for i in range(self.ncode):
                a(f"s_mov_b32 s92, {i*4096}")
                a(f"buffer_load_dword v23, v22, s[20:23], s92 offen")
            a.label(lc)
        a("v_and_b32 v22, 15, v21")
        a("v_lshrrev_b32 v23, 4, v21") if not self.codepf else a("v_lshrrev_b32 v19, 4, v21")
        g = 23 if not self.codepf else 19
        a(f"v_lshlrev_b32 v24, 4, v22")
        a(f"v_lshl_add_u32 v{vWoff}, v{g}, 13, v24")
        a(f"v_lshl_add_u32 v{vVoff}, v{g}, 10, v24")
        a(f"v_and_b32 v25, 3, v22"); a(f"v_lshl_add_u32 v25, v{g}, 2, v25"); a("v_lshlrev_b32 v25, 4, v25")
        a("v_lshrrev_b32 v26, 2, v22"); a(f"v_lshl_add_u32 v{vKoff}, v26, 8, v25")
        a("v_and_b32 v25, 1, v22"); a("v_cmp_eq_u32 vcc, 1, v25")
        a("v_mov_b32 v26, 0xffff"); a("v_mov_b32 v27, 0xffff0000"); a("v_cndmask_b32 v26, v26, v27, vcc")
        a("v_lshrrev_b32 v25, 1, v22")
        for r in range(4):
            a(f"v_cmp_eq_u32 vcc, {r}, v25"); a(f"v_cndmask_b32 v{vM[r]}, 0, v26, vcc")
        a(f"v_lshl_add_u32 v25, v22, 1, v{g}"); a("v_lshlrev_b32 v25, 4, v25")
        a("v_cmp_gt_u32 vcc, 32, v21"); a("v_mov_b32 v26, 512"); a("v_cndmask_b32 v25, v26, v25, vcc")
        a(f"s_mul_i32 s92, s{sW}, {RSTR}"); a(f"s_add_u32 s92, s92, {L_RED}"); a(f"v_add_u32 v{vRedW}, s92, v25")
        a(f"v_mul_u32_u24 v25, 6554, v21"); a(f"v_lshrrev_b32 v25, 16, v25")
        a(f"v_mul_u32_u24 v26, 10, v25"); a(f"v_sub_u32 v26, v21, v26")
        a(f"v_mul_u32_u24 v25, 1280, v25"); a(f"v_lshl_add_u32 v{vWo}, v26, 4, v25")
        a("s_waitcnt lgkmcnt(0)")
        a(f"s_mov_b32 s{SRD_WS+2}, 0x10000000"); a(f"s_mov_b32 s{SRD_WS+3}, 0x20000")
        if self.stamps:
            a(f"s_mov_b32 s{sL}, 0")
            self.stamp(12)
        self.dbgstamp("entry")
        a("v_mov_b32 v28, 0")
        a(f"buffer_load_dword v{vT}, v28, {W}, 0 offen sc1")
        a(f"s_mov_b32 s{pX}, s64"); a(f"s_mov_b32 s{pX+1}, s65")
        self.srd(SRD_B, pX, 1280)
        a(f"s_mul_i32 s92, s{sJ}, 80"); a(f"s_mul_i32 s93, s{sW}, 20"); a("s_add_u32 s92, s92, s93")
        a(f"v_lshl_add_u32 v25, v22, 2, v{g}"); a("v_add_u32 v25, s92, v25"); a("v_lshlrev_b32 v29, 1, v25")
        a(f"s_mov_b32 s94, 0x001f001f"); a(f"s_mov_b32 s95, 0x001f001f")
        a(f"v_mov_b32 v{vX}, 0")
        a("s_mov_b64 exec, s[94:95]")
        a(f"buffer_load_ushort v{vX}, v29, s[{SRD_B}:{SRD_B+3}], 0 offen")
        self.exec_all()
        def addp(dst, src, terms):
            a(f"s_mov_b32 s92, 0")
            for (sreg, c) in terms:
                a(f"s_mul_i32 s93, s{sreg}, {c}"); a("s_add_u32 s92, s92, s93")
            a(f"s_add_u32 s{dst}, s{src}, s92"); a(f"s_addc_u32 s{dst+1}, s{src+1}, 0")
        addp(pWqA, 68, [(sJ, 80*8192), (sW, 20*8192), (sH, 256)])
        a(f"s_mov_b32 s{sL}, 0")
        self.load_wq()
        addp(pWuk, 70, [(sJ, 64*8192), (sW, 16*8192), (sH, 256)])
        a(f"s_mov_b32 s{sFF}, 0xff")
        self.load_wuk()
        addp(pCkv, 66, [(sS, 65536), (sW, 16384)])
        addp(pWqB, 80, [(sJ, 80*8192), (sW, 20*8192), (sH, 256)])
        addp(pWuv, 72, [(sJ, 64*8192), (sW, 16*8192), (sH, 256)])
        addp(pWoA, 74, [(sH, 163840), (sW, 32*1280), (sJ, 160)])
        addp(pWoB, 82, [(sH, 163840), (sW, 32*1280), (sJ, 160)])
        addp(SRD_K, 76, [(sH, 2097152), (sJ, 262144), (sW, 65536)])
        addp(SRD_V, 78, [(sH, 2097152), (sJ, 262144), (sW, 65536)])
        a(f"s_mov_b32 s{SRD_K+2}, 65536"); a(f"s_mov_b32 s{SRD_K+3}, 0x20000")
        a(f"s_mov_b32 s{SRD_V+2}, 65536"); a(f"s_mov_b32 s{SRD_V+3}, 0x20000")
        a(f"s_mov_b32 s{pOut}, s84"); a(f"s_mov_b32 s{pOut+1}, s85")
        self.srd(SRD_B, pCkv, 16384)
        if self.pretouch:
            a(f"s_lshl_b32 s92, s2, 13"); a(f"s_lshl_b32 s93, s{sW}, 11"); a("s_add_u32 s92, s92, s93"); a(f"s_add_u32 s92, s92, {O_QP}")
            a(f"buffer_load_dwordx4 v[48:51], v{vL16}, {W}, s92 offen")
            a(f"buffer_load_dwordx4 v[48:51], v{vL16}, {W}, s92 offen offset:1024")
        a(f"s_mov_b32 s{sErr}, 0"); a(f"s_mov_b32 s{sLocal}, 0")
        a(f"s_mov_b32 s{sM5}, 0x001f001f"); a(f"s_mov_b32 s{sM5+1}, 0x001f001f")
        for i in range(4): a(f"s_mov_b32 s{sSel[i]}, {0x07060500+i:#x}")
        for t in range(4):
            a(f"s_mov_b32 s{sMask[t]}, {(0x000f000f << (4*t)):#x}"); a(f"s_mov_b32 s{sMask[t]+1}, {(0x000f000f << (4*t)):#x}")
        a(f"s_getpc_b64 s[{sSPC}:{sSPC+1}]")
        a.label("L_pc0")
        a(f"s_add_u32 s{sSPC}, s{sSPC}, L_stream-L_pc0"); a(f"s_addc_u32 s{sSPC+1}, s{sSPC+1}, 0")
        a(f"s_mov_b32 s{sAct}, 1"); a(f"s_mov_b32 s{sPos}, 0")
        a(f"s_mov_b32 s{sCol}, {O_COL:#x}")
        a(f"s_getreg_b32 s{sXcc}, hwreg(HW_REG_XCC_ID)"); a(f"s_and_b32 s{sXcc}, s{sXcc}, 0xf"); a(f"s_add_u32 s{sXcc}, s{sXcc}, 1"); a(f"s_lshl_b32 s{sXcc}, s{sXcc}, 8")
        a(f"s_getpc_b64 s[{sDW}:{sDW+1}]")
        a.label("L_pc1")
        a(f"s_add_u32 s{sDW}, s{sDW}, L_dw-L_pc1"); a(f"s_addc_u32 s{sDW+1}, s{sDW+1}, 0")
        if self.bud is not None: a(f"s_mov_b32 s{sBud}, {self.bud.get('pro', self.bud.get('*', 8))}")
        self.dwait(6 if self.pretouch else 4, 0, 'pro')
        a(f"v_readfirstlane_b32 s{sTf}, v{vT}")
        self.next_tag()
        a(f"v_lshlrev_b32 v{vX}, 16, v{vX}")
        if self.local:
            lx = a.newlabel("xp")
            a(f"s_cmp_lg_u32 s{sW}, 0"); a(f"s_cbranch_scc1 {lx}")
            for r in range(4): a(f"v_mov_b32 v{16+r}, s{sXcc}")
            self.tag([16, 17, 18, 19])
            a(f"s_lshl_b32 s92, s{sXG}, 9"); a(f"s_lshl_b32 s93, s{sI}, 4"); a("s_add_u32 s92, s92, s93"); a(f"s_add_u32 s92, s92, {O_XCC}")
            a("v_mov_b32 v20, 0")
            a("s_mov_b64 exec, 1")
            a(f"buffer_store_dwordx4 v[16:19], v20, {W}, s92 offen sc1")
            self.exec_all()
            a.label(lx)
        if self.mode == "first":
            self.drain(16)

    NLOADS = 136
    def first_block(self):
        r = self.NLOADS % self.kblk
        return r if r else self.kblk
    def stream(self):
        a = self.a
        loads = [("C", i) for i in range(16)] + [("K", i) for i in range(64)]
        loads += [("V", b, u) for b in range(10) for u in range(4)]
        loads += [("L", b, u) for b in range(10, 14) for u in range(4)]
        k = self.kblk
        assert len(loads) == self.NLOADS
        a.label("L_stream")
        starts = [0] + list(range(self.first_block(), len(loads), k))
        for bn, bi in enumerate(starts):
            be = starts[bn+1] if bn + 1 < len(starts) else len(loads)
            last_so = None
            for ld in loads[bi:be]:
                if ld[0] == "C":
                    self.ckv_one(ld[1]); last_so = None
                elif ld[0] == "K":
                    i = ld[1]; so = (i >> 2) * 4096
                    if so != last_so: a(f"s_mov_b32 s{sSO}, {so}"); last_so = so
                    a(f"buffer_load_dwordx4 {ar(4*i,4)}, v{vKoff}, s[{SRD_K}:{SRD_K+3}], s{sSO} offen offset:{(i&3)*1024} {self.pol}")
                elif ld[0] == "V":
                    _, b, u = ld; so = b * 4096
                    if so != last_so: a(f"s_mov_b32 s{sSO}, {so}"); last_so = so
                    a(f"buffer_load_dwordx4 {vr(VRES+16*b+4*u,4)}, v{vVoff}, s[{SRD_V}:{SRD_V+3}], s{sSO} offen offset:{u*256} {self.pol}")
                else:
                    _, b, u = ld
                    a(f"s_lshl_b32 s{sSO}, s{sW}, 14"); a(f"s_add_u32 m0, s{sSO}, {L_VL + ((b-10)*4+u)*1024}")
                    a(f"s_mov_b32 s{sSO}, {b*4096+u*256}"); last_so = None
                    a(f"buffer_load_dwordx4 v{vVoff}, s[{SRD_V}:{SRD_V+3}], s{sSO} offen {self.pol} lds")
            a(f"s_add_u32 s{sPos}, s{sPos}, {be-bi}")
            if be >= len(loads): a(f"s_mov_b32 s{sAct}, 0")
            a(f"s_swappc_b64 s[{sSPC}:{sSPC+1}], s[{sRET}:{sRET+1}]")
        a("s_endpgm")

    def qpart(self):
        a = self.a
        self.stamp(0)
        Xp, S1, S2 = 14, 15, 36
        D, Du, Ab = 16, 20, 24
        a(f"v_cvt_pk_bf16_f32 v{Xp}, v{vX}, v{vX}")
        a(f"v_and_b32 v{S1}, 0xffff0000, v{Xp}")
        a(f"v_mul_f32 v{S2}, v{S1}, v{S1}")
        self.pv_gemv(Xp, 5, lambda i: vr(WQ+4*i, 4), D, Ab)
        self.reduce63([S1, S2], "v_add_f32")
        lu = a.newlabel("nou")
        a(f"s_cmp_ge_u32 s{sL}, 2"); a(f"s_cbranch_scc1 {lu}")
        for r in range(4): a(f"v_and_b32 v{32+r}, 0x3f803f80, v{vM[r]}")
        for i in range(5):
            c = "0" if i == 0 else vr(Du, 4)
            a(f"v_mfma_f32_16x16x32_bf16 {vr(Du,4)}, {vr(32,4)}, {vr(WQ+4*i,4)}, {c}")
        self.red_write(Du, 528)
        a.label(lu)
        a(f"v_readlane_b32 s{sA}, v{S1}, 63"); a(f"v_readlane_b32 s{sB_}, v{S2}, 63")
        a(f"v_writelane_b32 v{D}, s{sA}, 32"); a(f"v_writelane_b32 v{D+1}, s{sB_}, 32")
        self.red_write(D)
        t = 14
        a(f"v_lshrrev_b32 v{t}, 4, v{vL16}")
        a(f"v_and_b32 v15, 1, v{t}"); a(f"v_lshlrev_b32 v15, 4, v15")
        a(f"v_lshrrev_b32 v36, 1, v{t}"); a(f"v_add_u32 v15, v15, v36"); a(f"v_lshlrev_b32 v15, 4, v15")
        a(f"v_cmp_gt_u32 vcc, 32, v{t}"); a(f"v_mov_b32 v36, 512"); a(f"v_cndmask_b32 v{t}, v36, v15, vcc")
        a(f"s_lshl_b32 s{sTmp[0]}, s{sH}, 3"); a(f"s_add_u32 s{sTmp[0]}, s{sTmp[0]}, s{sJ}"); a(f"s_lshl_b32 s{sTmp[0]}, s{sTmp[0]}, 11")
        a(f"s_add_u32 s{sTmp[0]}, s{sTmp[0]}, {O_QP}")
        a("s_waitcnt lgkmcnt(0)"); a("s_barrier")
        lf = a.newlabel("qfin")
        a(f"s_cmp_lg_u32 s{sW}, 0"); a(f"s_cbranch_scc1 {lf}")
        G = 16
        self.red_final_read(G)
        a("s_waitcnt lgkmcnt(0)")
        self.sum4(G); self.tag([G, G+1, G+2, G+3])
        a("s_mov_b32 exec_hi, 1")
        self.local_stores([(G, t, sTmp[0], None)])
        a("s_mov_b32 exec_hi, -1")
        a(f"s_cmp_ge_u32 s{sL}, 2"); a(f"s_cbranch_scc1 {lf}")
        G2 = 32
        self.red_final_read(G2, 528)
        a(f"s_add_u32 s{sTmp[0]}, s{sTmp[0]}, 1024")
        a("s_waitcnt lgkmcnt(0)")
        self.sum4(G2); self.tag([G2, G2+1, G2+2, G2+3])
        a("s_mov_b32 exec_hi, 0")
        self.local_stores([(G2, t, sTmp[0], None)])
        a("s_mov_b32 exec_hi, -1")
        a.label(lf)
        self.stamp(1)
        ad, ad2, adu, adx = 14, 15, 56, 57
        Gq, Gs, Gu, Gx = 16, 32, 36, 52
        a(f"v_lshrrev_b32 v{ad}, 8, v{vKoff}"); a(f"v_lshlrev_b32 v{ad}, 11, v{ad}")
        a(f"v_and_b32 v{ad2}, s{sFF}, v{vKoff}"); a(f"v_or_b32 v{ad}, v{ad}, v{ad2}")
        a(f"v_lshlrev_b32 v{adu}, 1, v{ad2}")
        a(f"v_lshrrev_b32 v{ad2}, 4, v{vL16}"); a(f"v_and_b32 v{ad2}, 7, v{ad2}"); a(f"v_lshlrev_b32 v{ad2}, 11, v{ad2}")
        a(f"s_lshl_b32 s{sTmp[0]}, s{sH}, 14"); a(f"s_add_u32 s{sTmp[0]}, s{sTmp[0]}, {O_QP}")
        a(f"s_add_u32 s{sTmp[1]}, s{sTmp[0]}, 8192")
        def iss_q():
            for i in range(2):
                for hf in range(2):
                    a(f"buffer_load_dwordx4 {vr(Gq+8*i+4*hf,4)}, v{ad}, {W}, s{sTmp[i]} offen offset:{hf*256} sc1")
            a(f"buffer_load_dwordx4 {vr(Gs,4)}, v{ad2}, {W}, s{sTmp[0]} offen offset:512 sc1")
        def iss_u():
            for i in range(2):
                for hf in range(2):
                    a(f"buffer_load_dwordx4 {vr(Gu+8*i+4*hf,4)}, v{ad}, {W}, s{sTmp[i]} offen offset:{1024+hf*256} sc1")
        def iss_x():
            a(f"buffer_load_dwordx4 {vr(Gx,4)}, v{adx}, {W}, s{sTmp[3]} offen sc1")
        U = 36
        l_late = a.newlabel("qlate"); l_j = a.newlabel("qj")
        a(f"s_and_b32 s{sTmp[2]}, s{sL}, 1"); a(f"s_lshl_b32 s{sTmp[2]}, s{sTmp[2]}, 9"); a(f"s_add_u32 s{sTmp[2]}, s{sTmp[2]}, {L_U}")
        a(f"v_add_u32 v{adu}, s{sTmp[2]}, v{adu}")
        a(f"s_cmp_ge_u32 s{sL}, 2"); a(f"s_cbranch_scc1 {l_late}")
        base_regs = [Gq, Gq+4, Gq+8, Gq+12, Gs, Gu, Gu+4, Gu+8, Gu+12]
        if self.local:
            l_one = a.newlabel("qone"); l_u = a.newlabel("qu")
            a(f"s_cmp_eq_u32 s{sL}, 1"); a(f"s_cbranch_scc1 {l_one}")
            a(f"v_and_b32 v{adx}, 0x1f0, v{vL16}")
            a(f"s_lshl_b32 s{sTmp[3]}, s{sXG}, 9"); a(f"s_add_u32 s{sTmp[3]}, s{sTmp[3]}, {O_XCC}")
            self.poll(lambda: (iss_q(), iss_u(), iss_x()), base_regs + [Gx], site='q0')
            a(f"v_cmp_ne_u32 vcc, s{sXcc}, v{Gx}")
            a(f"s_cmp_eq_u64 vcc, 0"); a(f"s_cselect_b32 s{sLocal}, 1, 0")
            a(f"s_branch {l_u}")
            a.label(l_one)
            self.poll(lambda: (iss_q(), iss_u()), base_regs, site='q1')
            a.label(l_u)
        else:
            self.poll(lambda: (iss_q(), iss_u()), base_regs)
        for r in range(8): a(f"v_add_f32 v{Gu+r}, v{Gu+r}, v{Gu+8+r}")
        self.dpp_steps([Gu+r for r in range(8)], "v_add_f32", ["row_ror:4", "row_ror:8"])
        lw = a.newlabel("uw")
        a(f"s_cmp_lg_u32 s{sW}, 0"); a(f"s_cbranch_scc1 {lw}")
        self.exec_set(0x000f000f, 0x000f000f)
        a(f"ds_write_b128 v{adu}, {vr(U,4)}"); a(f"ds_write_b128 v{adu}, {vr(U+4,4)} offset:16")
        self.exec_all()
        a.label(lw)
        a(f"s_branch {l_j}")
        a.label(l_late)
        a(f"ds_read_b128 {vr(U,4)}, v{adu}"); a(f"ds_read_b128 {vr(U+4,4)}, v{adu} offset:16")
        self.poll(iss_q, [Gq, Gq+4, Gq+8, Gq+12, Gs])
        a("s_waitcnt lgkmcnt(0)")
        a.label(l_j)
        self.stamp(2)
        st = [Gs, Gs+1]
        adds = [f"v_add_f32 v{Gq+r}, v{Gq+r}, v{Gq+8+r}" for r in range(8)]
        seq = []
        for k, d in enumerate((self.X1, self.X2, self.HM)):
            seq += [f"v_add_f32_dpp v{r}, v{r}, v{r} {d} {DPPALL}" for r in st]
            seq += adds[3*k:3*k+3] if k < 2 else adds[6:]
        for s_ in seq: a(s_)
        a(f"v_mul_f32 v{Gs}, {f32hex(1/640)}, v{Gs}")
        ror4 = [f"v_add_f32_dpp v{Gq+r}, v{Gq+r}, v{Gq+r} row_ror:4 {DPPALL}" for r in range(8)]
        ror8 = [f"v_add_f32_dpp v{Gq+r}, v{Gq+r}, v{Gq+r} row_ror:8 {DPPALL}" for r in range(8)]
        a(f"v_mul_f32 v{Gs+1}, {f32hex(1/640)}, v{Gs+1}")
        for s_ in ror4[:4]: a(s_)
        a(f"v_fma_f32 v{Gs+1}, -v{Gs}, v{Gs}, v{Gs+1}")
        for s_ in ror4[4:]: a(s_)
        a(f"v_add_f32 v{Gs+1}, {f32hex(1e-5)}, v{Gs+1}")
        for s_ in ror8[:4]: a(s_)
        a(f"v_rsq_f32 v{Gs+1}, v{Gs+1}")
        for s_ in ror8[4:]: a(s_)
        a(f"v_mul_f32 v{Gs+1}, {f32hex(SC)}, v{Gs+1}")
        for r in range(8): a(f"v_fma_f32 v{Gq+r}, -v{Gs}, v{U+r}, v{Gq+r}")
        a(f"v_readfirstlane_b32 s{sSc}, v{Gs+1}")
        Qp = 24
        for r in range(4): a(f"v_cvt_pk_bf16_f32 v{Qp+r}, v{Gq+2*r}, v{Gq+2*r+1}")
        for t in range(4):
            for r in range(4):
                a(f"v_cndmask_b32 v{AT+4*t+r}, 0, v{Qp+r}, s[{sMask[t]}:{sMask[t]+1}]")

    def combine8(self, G, ML, tmp):
        a = self.a
        M, f, Ls = tmp, tmp+1, tmp+2
        a(f"v_max_f32_dpp v{M}, v{ML}, v{ML} row_ror:8 {DPPALL}")
        self.dpp_steps([M], "v_max_f32", ["b15", "b31"])
        a(f"v_readlane_b32 s{sA}, v{M}, 63")
        a(f"v_subrev_f32 v{f}, s{sA}, v{ML}"); a(f"v_exp_f32 v{f}, v{f}")
        a(f"v_mul_f32 v{Ls}, v{f}, v{ML+1}")
        for r in range(4): a(f"v_mul_f32 v{G+r}, v{f}, v{G+r}")
        a(f"v_add_f32_dpp v{Ls}, v{Ls}, v{Ls} row_ror:8 {DPPALL}")
        for r in range(4): a(f"v_add_f32_dpp v{G+r}, v{G+r}, v{G+r} row_ror:8 {DPPALL}")
        a(f"v_add_f32_dpp v{Ls}, v{Ls}, v{Ls} row_bcast:15 row_mask:0xa bank_mask:0xf")
        a(f"v_permlane32_swap_b32 v{G}, v{G+2}")
        a(f"v_permlane32_swap_b32 v{G+1}, v{G+3}")
        a(f"v_add_f32_dpp v{Ls}, v{Ls}, v{Ls} row_bcast:31 row_mask:0xc bank_mask:0xf")
        a(f"v_add_f32 v{G}, v{G}, v{G+2}")
        a(f"v_add_f32 v{G+1}, v{G+1}, v{G+3}")
        a(f"v_readlane_b32 s{sA}, v{Ls}, 63")
        a(f"v_permlane16_swap_b32 v{G}, v{G+1}")
        a(f"v_rcp_f32 v{Ls}, s{sA}")
        a(f"v_add_f32 v{G}, v{G}, v{G+1}")
        a(f"v_mul_f32 v{G}, v{G}, v{Ls}")

    def amiddle(self):
        a = self.a
        D = 16
        for t in range(4):
            c = "0" if t == 0 else vr(D, 4)
            a(f"v_mfma_f32_16x16x32_bf16 {vr(D,4)}, {vr(AT+4*t,4)}, {vr(WUK+4*t,4)}, {c}")
        a(f"v_lshrrev_b32 v14, 8, v{vL16}"); a("v_lshlrev_b32 v14, 4, v14")
        a(f"s_lshl_b32 s{sTmp[0]}, s{sH}, 11"); a(f"s_lshl_b32 s{sTmp[1]}, s{sJ}, 8"); a(f"s_add_u32 s{sTmp[0]}, s{sTmp[0]}, s{sTmp[1]}")
        a(f"s_lshl_b32 s{sTmp[1]}, s{sW}, 6"); a(f"s_add_u32 s{sTmp[0]}, s{sTmp[0]}, s{sTmp[1]}")
        a(f"s_add_u32 s{sTmp[0]}, s{sTmp[0]}, {O_QABS}")
        S, S2 = 20, 21
        a(f"v_mov_b32_dpp v{S}, v{D} quad_perm:[0,0,0,0] {DPPALL}")
        a(f"v_mov_b32_dpp v{S2}, v{D+2} quad_perm:[2,2,2,2] {DPPALL}")
        a(f"s_nop 0")
        a(f"v_add_f32_dpp v{S}, v{D+1}, v{S} quad_perm:[1,1,1,1] {DPPALL}")
        a(f"v_add_f32_dpp v{S2}, v{D+3}, v{S2} quad_perm:[3,3,3,3] {DPPALL}")
        a(f"v_add_f32 v{S}, v{S}, v{S2}")
        a(f"v_mul_f32 v{S}, s{sSc}, v{S}")
        G = 24
        for q in range(4): a(f"v_mov_b32_dpp v{G+q}, v{S} row_newbcast:{4*q} {DPPALL}")
        self.tag([G, G+1, G+2, G+3])
        self.exec_set(0x00010001, 0x00010001)
        a(f"buffer_store_dwordx4 {vr(G,4)}, v14, {W}, s{sTmp[0]} offen sc1")
        self.exec_all()
        self.stamp(3)
        if not self.pfnew: self.load_wuv()
        Gq = 16
        a(f"s_lshl_b32 s{sTmp[0]}, s{sGA}, 15"); a(f"s_lshl_b32 s{sTmp[1]}, s{sW}, 9"); a(f"s_add_u32 s{sTmp[0]}, s{sTmp[0]}, s{sTmp[1]}")
        a(f"s_add_u32 s{sTmp[0]}, s{sTmp[0]}, {O_QABS}")
        for i in range(1, 4): a(f"s_add_u32 s{sTmp[i]}, s{sTmp[0]}, {i*8192}")
        vA0, vB0, vAx = 52, 53, 54
        n, g = 48, 49
        a(f"v_lshrrev_b32 v{n}, 4, v{vL16}"); a(f"v_lshrrev_b32 v{g}, 4, v{n}"); a(f"v_and_b32 v{n}, 15, v{n}")
        a(f"v_and_b32 v50, 8, v{n}"); a(f"v_and_b32 v51, 3, v{n}"); a(f"v_lshl_or_b32 v50, v51, 1, v50")
        a(f"v_bfe_u32 v51, v{n}, 2, 1"); a(f"v_or_b32 v50, v50, v51")
        a(f"s_lshl_b32 s{sTmp[4]}, s{sW}, 14"); a(f"s_add_u32 s{sTmp[4]}, s{sTmp[4]}, {L_CKV}")
        a(f"v_lshlrev_b32 v51, 10, v{n}"); a(f"v_lshl_add_u32 v51, v{g}, 8, v51"); a(f"v_lshl_add_u32 v51, v50, 4, v51")
        a(f"v_add_u32 v{vA0}, s{sTmp[4]}, v51")
        a(f"v_mul_u32_u24 v{vB0}, 1040, v{n}"); a(f"v_lshl_add_u32 v{vB0}, v{g}, 8, v{vB0}"); a(f"v_add_u32 v{vB0}, {L_R0}, v{vB0}")
        a(f"v_mul_u32_u24 v51, 272, v{n}"); a(f"v_lshl_add_u32 v50, v{g}, 4, v51")
        a(f"s_lshl_b32 s{sTmp[4]}, s{sW}, 6"); a(f"s_add_u32 s{sTmp[4]}, s{sTmp[4]}, {L_ST}"); a(f"v_add_u32 v50, s{sTmp[4]}, v50")
        a(f"v_lshl_add_u32 v51, v{g}, 5, v51"); a(f"v_add_u32 v51, {L_ST}, v51")
        vC0, vC1, vX0, vX1 = 76, 77, 78, 79
        a(f"v_and_b32 v14, 3, v{n}"); a(f"v_lshrrev_b32 v15, 2, v{n}")
        a(f"v_and_b32 v55, 1, v{g}"); a(f"v_lshlrev_b32 v55, 3, v55"); a(f"v_lshl_add_u32 v55, v15, 1, v55")
        a(f"v_lshrrev_b32 v56, 1, v14"); a(f"v_xor_b32 v55, v55, v56")
        a(f"v_lshl_add_u32 v56, v{g}, 3, v15"); a(f"v_lshlrev_b32 v56, 10, v56")
        a(f"v_lshl_add_u32 v56, v55, 4, v56"); a(f"v_and_b32 v14, 1, v14"); a(f"v_lshl_add_u32 v56, v14, 3, v56")
        a(f"s_lshl_b32 s{sTmp[4]}, s{sW}, 8"); a(f"s_add_u32 s{sTmp[4]}, s{sTmp[4]}, {L_CKV}")
        a(f"v_add_u32 v{vC0}, s{sTmp[4]}, v56")
        a(f"v_add_u32 v{vC1}, 4096, v{vC0}"); a(f"v_xor_b32 v{vC1}, 16, v{vC1}")
        a(f"s_lshl_b32 s{sTmp[4]}, s{sW}, 8"); a(f"s_add_u32 s{sTmp[4]}, s{sTmp[4]}, {L_R0}")
        a(f"v_lshrrev_b32 v14, 9, v{vL16}"); a(f"v_and_b32 v57, 0x1f0, v{vL16}")
        a(f"v_lshrrev_b32 v15, 1, v57"); a(f"v_mul_u32_u24 v58, 1040, v14"); a(f"v_add_u32 v15, v15, v58"); a(f"v_add_u32 v15, s{sTmp[4]}, v15")
        a(f"v_lshl_add_u32 v57, v14, 11, v57")
        lg0 = a.newlabel("cg"); lg1 = a.newlabel("cg")
        a.label(lg0)
        a(f"s_cmp_ge_u32 s{sPos}, 16"); a(f"s_cbranch_scc1 {lg1}")
        self.stream_call()
        a(f"s_branch {lg0}")
        a.label(lg1)
        if self.sent:
            lsk = a.newlabel("nosent")
            if not self.sent1:
                a(f"s_cmp_lg_u32 s{sAct}, 0"); a(f"s_cbranch_scc1 {lsk}")
            a(f"v_lshrrev_b32 v14, 7, v{vL16}"); a(f"v_lshlrev_b32 v14, 11, v14"); a(f"v_and_b32 v58, 0x70, v{vL16}"); a(f"v_lshl_add_u32 v14, v58, 2, v14")
            def iss0():
                a(f"buffer_load_dwordx4 {vr(Gq,4)}, v14, {W}, s{sTmp[0]} offen sc1")
                a(f"buffer_load_dwordx4 {vr(Gq+4,4)}, v14, {W}, s{sTmp[2]} offen sc1")
            self.poll(iss0, [Gq, Gq+4], site='sent')
            a.label(lsk)
            self.stamp(15)
        def iss():
            for i in range(8):
                so = sTmp[i >> 1]
                if i & 1:
                    a(f"s_add_u32 s{sTmp[5-1]}, s{so}, 4096"); so = sTmp[4]
                a(f"buffer_load_dwordx4 {vr(Gq+4*i,4)}, v57, {W}, s{so} offen sc1")
        self.poll(iss, [Gq+4*i for i in range(8)], site='h4')
        self.stampval(30, sSpin); self.stampval(31, sPos)
        self.stamp(4)
        if self.pfnew: self.load_wuv()
        for i in range(8):
            b = Gq + 4*i
            a(f"v_cvt_pk_bf16_f32 v{b}, v{b}, v{b+1}"); a(f"v_cvt_pk_bf16_f32 v{b+1}, v{b+2}, v{b+3}")
            a(f"ds_write_b64 v15, {vr(b,2)} offset:{i*2*1040}")
        a("s_waitcnt lgkmcnt(0)"); a("s_barrier")
        self.stamp(16)
        if "S" in self.xcalls: self.topup()
        AB = 16
        Ds = 56
        def rd(st):
            b = AB + 8 * (st % 4)
            if st == 0: a(f"ds_read_b128 {vr(b,4)}, v{vA0}")
            else:
                a(f"v_xor_b32 v{vAx}, {st<<4}, v{vA0}"); a(f"ds_read_b128 {vr(b,4)}, v{vAx}")
            a(f"ds_read_b128 {vr(b+4,4)}, v{vB0} offset:{st*16}")
        for st in range(4): rd(st)
        for st in range(16):
            rem = min(3, 15 - st)
            a(f"s_waitcnt lgkmcnt({2*rem})")
            b = AB + 8 * (st % 4)
            c = "0" if st == 0 else vr(Ds, 4)
            a(f"v_mfma_f32_16x16x32_bf16 {vr(Ds,4)}, {vr(b,4)}, {vr(b+4,4)}, {c}")
            if st + 4 < 16: rd(st + 4)
        a(f"ds_write_b128 v50, {vr(Ds,4)}")
        a("s_waitcnt lgkmcnt(0)"); a("s_barrier")
        self.stamp(17)
        SS = 16
        for u in range(2):
            for hf in range(2):
                a(f"ds_read_b128 {vr(SS+8*u+4*hf,4)}, v51 offset:{u*128+hf*16}")
        if self.pfnew: self.load_wo(pWoA)
        DT = 44; AF = 56
        m, l, t1, t2 = 32, 33, 34, 35
        a("s_waitcnt lgkmcnt(0)")
        a(f"v_max3_f32 v{m}, v{SS}, v{SS+1}, v{SS+2}"); a(f"v_max3_f32 v{t1}, v{SS+3}, v{SS+4}, v{SS+5}")
        a(f"v_max3_f32 v{m}, v{m}, v{SS+6}, v{SS+7}"); a(f"v_max3_f32 v{t1}, v{t1}, v{SS+8}, v{SS+9}")
        a(f"v_max3_f32 v{m}, v{m}, v{SS+10}, v{SS+11}"); a(f"v_max3_f32 v{t1}, v{t1}, v{SS+12}, v{SS+13}")
        a(f"v_max3_f32 v{m}, v{m}, v{SS+14}, v{SS+15}"); a(f"v_max_f32 v{m}, v{m}, v{t1}")
        for sw in ("v_permlane16_swap_b32", "v_permlane32_swap_b32"):
            a(f"v_mov_b32 v{t1}, v{m}"); a(f"{sw} v{m}, v{t1}"); a(f"v_max_f32 v{m}, v{m}, v{t1}")
        for k in range(16): a(f"v_sub_f32 v{SS+k}, v{SS+k}, v{m}")
        for k in range(16): a(f"v_exp_f32 v{SS+k}, v{SS+k}")
        P = 36
        for k in range(8): a(f"v_cvt_pk_bf16_f32 v{P+k}, v{SS+2*k}, v{SS+2*k+1}")
        for k in range(8): a(f"v_add_f32 v{SS+k}, v{SS+k}, v{SS+8+k}")
        for k in range(4): a(f"v_add_f32 v{SS+k}, v{SS+k}, v{SS+4+k}")
        a(f"v_add_f32 v{SS}, v{SS}, v{SS+1}"); a(f"v_add_f32 v{SS+2}, v{SS+2}, v{SS+3}"); a(f"v_add_f32 v{l}, v{SS}, v{SS+2}")
        self.stamp(18)
        if "smax" in self.xcalls: self.topup()
        AF = 16
        steps = [(t, u) for t in range(8) for u in range(2)]
        def rdA(k):
            t, u = steps[k]; b = AF + 4 * (k % 4)
            if u == 0:
                if t == 0:
                    a(f"v_mov_b32 v{vX0}, v{vC0}"); a(f"v_mov_b32 v{vX1}, v{vC1}")
                else:
                    a(f"v_xor_b32 v{vX0}, {t<<5}, v{vC0}"); a(f"v_xor_b32 v{vX1}, {t<<5}, v{vC1}")
            a(f"ds_read_b64_tr_b16 {vr(b,2)}, v{vX0} offset:{u*32768}")
            a(f"ds_read_b64_tr_b16 {vr(b+2,2)}, v{vX1} offset:{u*32768}")
        for k in range(4): rdA(k)
        for sw in ("v_permlane16_swap_b32", "v_permlane32_swap_b32"):
            a(f"v_mov_b32 v{t1}, v{l}"); a(f"{sw} v{l}, v{t1}"); a(f"v_add_f32 v{l}, v{l}, v{t1}")
        a(f"v_lshrrev_b32 v14, 8, v{vL16}"); a(f"v_lshlrev_b32 v14, 17, v14"); a(f"v_and_b32 v15, 0xf0, v{vL16}"); a(f"v_add_u32 v14, v14, v15")
        a(f"s_lshl_b32 s{sTmp[0]}, s{sXG}, 20"); a(f"s_lshl_b32 s{sTmp[1]}, s{sGA}, 19"); a(f"s_add_u32 s{sTmp[0]}, s{sTmp[0]}, s{sTmp[1]}")
        a(f"s_lshl_b32 s{sTmp[1]}, s{sW}, 15"); a(f"s_add_u32 s{sTmp[0]}, s{sTmp[0]}, s{sTmp[1]}")
        a(f"s_and_b32 s{sTmp[2]}, s{sS}, 15"); a(f"s_lshl_b32 s{sTmp[1]}, s{sTmp[2]}, 9"); a(f"s_add_u32 s{sTmp[0]}, s{sTmp[0]}, s{sTmp[1]}")
        a(f"s_add_u32 s{sTmp[0]}, s{sTmp[0]}, {O_C1}")
        a(f"s_lshl_b32 s{sTmp[3]}, s{sXG}, 14"); a(f"s_lshl_b32 s{sTmp[1]}, s{sGA}, 13"); a(f"s_add_u32 s{sTmp[3]}, s{sTmp[3]}, s{sTmp[1]}")
        a(f"s_lshl_b32 s{sTmp[1]}, s{sW}, 9"); a(f"s_add_u32 s{sTmp[3]}, s{sTmp[3]}, s{sTmp[1]}")
        a(f"s_lshl_b32 s{sTmp[1]}, s{sTmp[2]}, 5"); a(f"s_add_u32 s{sTmp[3]}, s{sTmp[3]}, s{sTmp[1]}")
        a(f"s_add_u32 s{sTmp[3]}, s{sTmp[3]}, {O_ML1}")
        a(f"v_bfe_u32 v15, v{vL16}, 6, 2"); a(f"v_lshlrev_b32 v15, 11, v15")
        a(f"v_bfe_u32 v32+2, v{vL16}, 8, 1".replace("v32+2", "v34")); a(f"v_lshl_add_u32 v15, v34, 4, v15")
        MG = 76 - 0
        a(f"s_mov_b32 vcc_lo, 0xffff0000"); a("s_mov_b32 vcc_hi, 0")
        a(f"v_cndmask_b32 v34, v32, v33, vcc")
        mlops = [f"v_mov_b32_dpp v32, v34 quad_perm:[0,0,0,0] {DPPALL}", f"v_mov_b32_dpp v33, v34 quad_perm:[1,1,1,1] {DPPALL}",
                 f"v_mov_b32_dpp v35, v34 quad_perm:[3,3,3,3] {DPPALL}", f"v_mov_b32_dpp v34, v34 quad_perm:[2,2,2,2] {DPPALL}"]
        for k in range(16):
            t, u = steps[k]; b = AF + 4 * (k % 4)
            rem = min(3, 15 - k)
            a(f"s_waitcnt lgkmcnt({2*rem})")
            c = "0" if u == 0 else vr(DT+4*t, 4)
            a(f"v_mfma_f32_16x16x32_bf16 {vr(DT+4*t,4)}, {vr(P+4*u,4)}, {vr(b,4)}, {c}")
            if k + 4 < 16: rdA(k + 4)
            if k == 0:
                for x_ in mlops: a(x_)
            if k == 2: self.tag([32, 33, 34, 35])
            if u == 1 and t >= 2: self.tag([DT+4*(t-2)+r for r in range(4)])
        self.tag([DT+4*6+r for r in range(4)]); self.tag([DT+4*7+r for r in range(4)])
        self.stamp(19)
        items = []
        for t in range(8):
            def pre(t=t): a(f"s_add_u32 s{sTmp[1]}, s{sTmp[0]}, {(t>>1)*8192+(t&1)*256}")
            items.append((DT+4*t, 14, sTmp[1], pre))
        def pre_ml(): a("s_mov_b32 exec_lo, 0x11111111"); a("s_mov_b32 exec_hi, 0")
        items.append((32, 15, sTmp[3], pre_ml))
        self.local_stores(items)
        self.exec_all()
        self.stamp(5)
        G, MM, LL = 16, 48, 52
        a(f"v_lshrrev_b32 v14, 4, v{vL16}"); a(f"v_and_b32 v15, 7, v14"); a(f"v_lshrrev_b32 v14, 5, v14")
        a(f"v_lshl_add_u32 v14, v15, 1, v14"); a(f"v_lshlrev_b32 v14, 5, v14")
        a(f"s_lshl_b32 s{sTmp[0]}, s{sXG}, 5"); a(f"s_add_u32 s{sTmp[0]}, s{sTmp[0]}, s{sI}")
        a(f"s_lshl_b32 s{sTmp[2]}, s{sTmp[0]}, 9"); a(f"s_add_u32 s{sTmp[2]}, s{sTmp[2]}, {O_ML1}")
        a(f"s_lshl_b32 s{sTmp[0]}, s{sTmp[0]}, 2"); a(f"s_add_u32 s{sTmp[0]}, s{sTmp[0]}, s{sW}")
        a(f"s_lshl_b32 s{sTmp[0]}, s{sTmp[0]}, 13"); a(f"s_add_u32 s{sTmp[0]}, s{sTmp[0]}, {O_C1}")
        a(f"s_add_u32 s{sTmp[1]}, s{sTmp[0]}, 4096")
        def issML():
            a(f"buffer_load_dwordx4 {vr(MM,4)}, v14, {W}, s{sTmp[2]} offen sc1")
            a(f"buffer_load_dwordx4 {vr(LL,4)}, v14, {W}, s{sTmp[2]} offen offset:16 sc1")
        lsk = a.newlabel("noml")
        if not self.mlsent:
            a(f"s_cmp_lg_u32 s{sAct}, 0"); a(f"s_cbranch_scc1 {lsk}")
        if not self.mltail:
            a(f"s_cmp_ge_u32 s{sL}, 2"); a(f"s_cbranch_scc1 {lsk}")
        self.poll(issML, [MM, LL], site='ml1')
        a.label(lsk)
        self.stamp(20)
        Mx, wv, den, t1 = 56, 60, 64, 68
        chk = 72
        lp = a.newlabel("sw1"); ns = a.newlabel("sw1n"); jn = a.newlabel("sw1j"); dn = a.newlabel("sw1d"); ns2 = a.newlabel("sw1m"); jn2 = a.newlabel("sw1k")
        a(f"s_mov_b32 s{sSpin}, 0")
        if self.bud is not None: a(f"s_mov_b32 s{sBud}, {self.bud.get('sw1', self.bud.get('*', 8))}")
        a.label(lp)
        issML()
        for i in range(8):
            a(f"buffer_load_dwordx4 {vr(G+4*i,4)}, v{vL16}, {W}, s{sTmp[i>>2]} offen offset:{(i&3)*1024} sc1")
        a(f"s_mov_b32 s{sYoung}, 8")
        self.dwait(8, 10 if self.addn else 0, 'sw1')
        a(f"s_sub_u32 s{sTmp[4]}, s{sYoung}, 8")
        for r in range(4): a(f"v_xor_b32 v{MM+r}, s{sT[r]}, v{MM+r}")
        for r in range(4): a(f"v_xor_b32 v{LL+r}, s{sT[r]}, v{LL+r}")
        a(f"v_or3_b32 v{chk}, v{MM}, v{MM+1}, v{MM+2}"); a(f"v_or3_b32 v{chk}, v{chk}, v{MM+3}, v{LL}")
        a(f"v_or3_b32 v{chk}, v{chk}, v{LL+1}, v{LL+2}"); a(f"v_or_b32 v{chk}, v{chk}, v{LL+3}")
        R4 = range(4)
        for r in R4: a(f"v_max_f32_dpp v{Mx+r}, v{MM+r}, v{MM+r} {self.X1} {DPPALL}")
        self.dpp_steps([Mx+r for r in R4], "v_max_f32", [self.X2, self.HM])
        for r in R4: a(f"v_mov_b32 v{t1+r}, v{Mx+r}")
        for r in R4: a(f"v_permlane32_swap_b32 v{Mx+r}, v{t1+r}")
        for r in R4: a(f"v_max_f32 v{Mx+r}, v{Mx+r}, v{t1+r}")
        for r in R4: a(f"v_sub_f32 v{wv+r}, v{MM+r}, v{Mx+r}")
        for r in R4: a(f"v_exp_f32 v{wv+r}, v{wv+r}")
        for r in R4: a(f"v_mul_f32 v{den+r}, v{wv+r}, v{LL+r}")
        self.dpp_steps([den+r for r in R4], "v_add_f32", [self.X1, self.X2, self.HM])
        for r in R4: a(f"v_mov_b32 v{t1+r}, v{den+r}")
        for r in R4: a(f"v_permlane32_swap_b32 v{den+r}, v{t1+r}")
        for r in R4: a(f"v_add_f32 v{den+r}, v{den+r}, v{t1+r}")
        if self.mode == "co":
            a(f"s_cmp_eq_u32 s{sTmp[4]}, 0"); a(f"s_cbranch_scc1 {ns2}")
            a(f"s_mov_b32 s{sYoung}, s{sTmp[4]}")
            a(f"s_swappc_b64 s[{sRET2}:{sRET2+1}], s[{sDW}:{sDW+1}]")
            a(f"s_branch {jn2}")
            a.label(ns2)
        self.dwait(0, 0, 'sw1')
        a.label(jn2)
        dw = [G + i for i in range(32)]
        for k, r in enumerate(dw): a(f"v_xor_b32 v{r}, s{sT[k % 4]}, v{r}")
        a(f"v_or3_b32 v{vT0}, v{dw[0]}, v{dw[1]}, v{chk}"); a(f"v_or3_b32 v{vT0+1}, v{dw[2]}, v{dw[3]}, v{dw[4]}")
        k = 5; tog = 0
        while k < 31:
            tgt = vT0 + tog
            a(f"v_or3_b32 v{tgt}, v{tgt}, v{dw[k]}, v{dw[k+1]}"); k += 2; tog ^= 1
        a(f"v_or3_b32 v{vT0}, v{vT0}, v{vT0+1}, v{dw[31]}")
        a(f"v_and_b32 v{vT0}, s{sFF}, v{vT0}")
        a(f"v_cmp_ne_u32 vcc, 0, v{vT0}")
        a(f"s_cbranch_vccz {dn}")
        a(f"s_add_u32 s{sSpin}, s{sSpin}, 1"); a(f"s_cmp_lt_u32 s{sSpin}, {SPIN_MAX}"); a(f"s_cbranch_scc1 {lp}")
        a(f"s_mov_b32 s{sErr}, 1")
        a.label(dn)
        self.stampval(24, sSpin); self.stampval(25, sPos)
        self.stamp(6)
        acc = 48
        for i in range(8):
            for r in range(4):
                op = "v_mul_f32_dpp" if i == 0 else "v_fmac_f32_dpp"
                a(f"{op} v{acc+r}, v{wv+r}, v{G+4*i+r} row_newbcast:{i} {DPPALL}")
        a(f"v_bfe_u32 v14, v{vL16}, 8, 1"); a(f"v_lshlrev_b32 v14, 11, v14"); a(f"v_and_b32 v15, 0xf0, v{vL16}"); a(f"v_add_u32 v14, v14, v15")
        for r in R4: a(f"v_mov_b32 v{t1+r}, v{acc+r}")
        a(f"s_lshr_b32 s{sTmp[0]}, s{sI}, 2"); a(f"s_lshl_b32 s{sTmp[0]}, s{sTmp[0]}, 16")
        a(f"s_and_b32 s{sTmp[1]}, s{sI}, 3"); a(f"s_lshl_b32 s{sTmp[1]}, s{sTmp[1]}, 14"); a(f"s_add_u32 s{sTmp[0]}, s{sTmp[0]}, s{sTmp[1]}")
        for r in R4: a(f"v_permlane32_swap_b32 v{acc+r}, v{t1+r}")
        a(f"s_lshl_b32 s{sTmp[1]}, s{sW}, 12"); a(f"s_add_u32 s{sTmp[0]}, s{sTmp[0]}, s{sTmp[1]}")
        a(f"s_lshl_b32 s{sTmp[1]}, s{sXG}, 8"); a(f"s_add_u32 s{sTmp[0]}, s{sTmp[0]}, s{sTmp[1]}")
        for r in R4: a(f"v_add_f32 v{acc+r}, v{acc+r}, v{t1+r}")
        a(f"s_add_u32 s{sTmp[0]}, s{sTmp[0]}, {O_C2}")
        self.tag([acc, acc+1, acc+2, acc+3])
        a("s_mov_b32 exec_hi, 0")
        a(f"buffer_store_dwordx4 {vr(acc,4)}, v14, {W}, s{sTmp[0]} offen sc1")
        a("s_mov_b32 exec_hi, -1")
        lm = a.newlabel("ml2")
        a(f"s_and_b32 s{sTmp[1]}, s{sI}, 3"); a(f"s_or_b32 s{sTmp[1]}, s{sTmp[1]}, s{sW}"); a(f"s_cmp_lg_u32 s{sTmp[1]}, 0"); a(f"s_cbranch_scc1 {lm}")
        for r in (1, 2, 3):
            a(f"s_mov_b64 vcc, {1 << r}")
            a(f"v_cndmask_b32 v{Mx}, v{Mx}, v{Mx+r}, vcc"); a(f"v_cndmask_b32 v{den}, v{den}, v{den+r}, vcc")
        a(f"v_mov_b32 v{Mx+1}, v{den}"); a(f"v_mov_b32 v{Mx+2}, 0"); a(f"v_mov_b32 v{Mx+3}, 0")
        self.tag([Mx, Mx+1, Mx+2, Mx+3])
        a(f"s_lshl_b32 s{sTmp[1]}, s{sI}, 7"); a(f"s_lshl_b32 s{sTmp[2]}, s{sXG}, 4"); a(f"s_add_u32 s{sTmp[1]}, s{sTmp[1]}, s{sTmp[2]}")
        a(f"s_add_u32 s{sTmp[1]}, s{sTmp[1]}, {O_ML2}")
        a(f"v_lshlrev_b32 v15, 3, v{vL16}")
        a("s_mov_b64 exec, 15")
        a(f"buffer_store_dwordx4 {vr(Mx,4)}, v15, {W}, s{sTmp[1]} offen sc1")
        self.exec_all()
        a.label(lm)
        self.stamp(21)
        if not self.pfnew: self.load_wo(pWoA)
        G0, G1, M0, M1 = 16, 20, 24, 28
        a(f"v_bfe_u32 v15, v{vL16}, 6, 2")
        a(f"v_bfe_u32 v14, v{vL16}, 4, 2"); a(f"v_lshlrev_b32 v14, 2, v14"); a(f"v_lshrrev_b32 v32, 8, v{vL16}"); a(f"v_add_u32 v14, v14, v32")
        a(f"v_lshlrev_b32 v14, 4, v14"); a(f"v_lshl_add_u32 v14, v15, 8, v14")
        a(f"v_lshlrev_b32 v15, 4, v15")
        a(f"s_lshr_b32 s{sTmp[0]}, s{sH}, 2"); a(f"s_lshl_b32 s{sTmp[0]}, s{sTmp[0]}, 16"); a(f"s_lshl_b32 s{sTmp[1]}, s{sJ}, 13"); a(f"s_add_u32 s{sTmp[0]}, s{sTmp[0]}, s{sTmp[1]}")
        a(f"s_lshl_b32 s{sTmp[1]}, s{sW}, 11"); a(f"s_add_u32 s{sTmp[0]}, s{sTmp[0]}, s{sTmp[1]}"); a(f"s_add_u32 s{sTmp[0]}, s{sTmp[0]}, {O_C2}")
        a(f"s_lshl_b32 s{sTmp[2]}, s{sH}, 7"); a(f"s_add_u32 s{sTmp[2]}, s{sTmp[2]}, {O_ML2}")
        def iss2():
            a(f"buffer_load_dwordx4 {vr(M0,4)}, v15, {W}, s{sTmp[2]} offen sc1")
            a(f"buffer_load_dwordx4 {vr(M1,4)}, v15, {W}, s{sTmp[2]} offen offset:64 sc1")
            a(f"buffer_load_dwordx4 {vr(G0,4)}, v14, {W}, s{sTmp[0]} offen sc1")
            a(f"buffer_load_dwordx4 {vr(G1,4)}, v14, {W}, s{sTmp[0]} offen offset:1024 sc1")
        self.poll(iss2, [M0, M1, G0, G1], site='h5b')
        self.stampval(26, sSpin); self.stampval(27, sPos)
        self.stamp(14)
        lsel = [a.newlabel("sel") for _ in range(4)]; lj = a.newlabel("selj")
        Mx, f0, f1, Ls = 32, 33, 34, 35
        a(f"v_max_f32 v{Mx}, v{M0}, v{M1}")
        a(f"s_and_b32 s{sTmp[1]}, s{sH}, 3")
        for r in (1, 2, 3):
            a(f"s_cmp_eq_u32 s{sTmp[1]}, {r}"); a(f"s_cbranch_scc1 {lsel[r]}")
        a(f"s_branch {lj}")
        for r in (1, 2, 3):
            a.label(lsel[r])
            a(f"v_mov_b32 v{G0}, v{G0+r}"); a(f"v_mov_b32 v{G1}, v{G1+r}")
            if r < 3: a(f"s_branch {lj}")
        a.label(lj)
        self.dpp_steps([Mx], "v_max_f32", ["row_ror:4", "row_ror:8"])
        a(f"v_sub_f32 v{f0}, v{M0}, v{Mx}"); a(f"v_sub_f32 v{f1}, v{M1}, v{Mx}")
        a(f"v_exp_f32 v{f0}, v{f0}"); a(f"v_exp_f32 v{f1}, v{f1}")
        a(f"v_mul_f32 v{Ls}, v{f0}, v{M0+1}"); a(f"v_mul_f32 v{G0}, v{f0}, v{G0}")
        a(f"v_fmac_f32 v{Ls}, v{f1}, v{M1+1}"); a(f"v_fmac_f32 v{G0}, v{f1}, v{G1}")
        self.dpp_steps([Ls, G0], "v_add_f32", ["row_ror:4", "row_ror:8"])
        a(f"v_rcp_f32 v{Ls}, v{Ls}")
        a(f"v_mul_f32 v{G0}, v{G0}, v{Ls}")
        Xp = 14
        a(f"v_cvt_pk_bf16_f32 v{Xp}, v{G0}, v{G0}")
        D, Ab = 16, 20
        self.pv_gemv(Xp, 4, lambda i: vr(WUV+4*i, 4), D, Ab)
        self.red_write(D)
        self.row_slot_addr()
        a("s_waitcnt lgkmcnt(0)"); a("s_barrier")
        lf = a.newlabel("uvfin")
        a(f"s_cmp_lg_u32 s{sW}, 0"); a(f"s_cbranch_scc1 {lf}")
        G = 16
        self.red_final_read(G)
        a(f"s_mov_b32 s{sA}, {f32hex(0.125)}")
        a("s_waitcnt lgkmcnt(0)")
        self.sum4(G)
        a(f"v_writelane_b32 v{G}, 0, 32"); a(f"v_writelane_b32 v{G+1}, s{sA}, 32")
        self.tag([G, G+1, G+2, G+3])
        a("s_mov_b32 exec_hi, 1")
        self.local_stores([(G, vL16, sTmp[0], None)])
        a("s_mov_b32 exec_hi, -1")
        a.label(lf)
        self.stamp(7)

    def check_inline(self, regs, ok_label):
        a = self.a
        acc, acc2 = vT0, vT0 + 1
        dw = [g + i for g in regs for i in range(4)]
        for k, r in enumerate(dw): a(f"v_xor_b32 v{r}, s{sT[k % 4]}, v{r}")
        a(f"v_or3_b32 v{acc}, v{dw[0]}, v{dw[1]}, v{dw[2]}")
        a(f"v_or3_b32 v{acc2}, v{dw[3]}, v{dw[4]}, v{dw[5]}")
        k = 6; tog = 0
        while k < len(dw):
            tgt = acc if tog == 0 else acc2
            a(f"v_or3_b32 v{tgt}, v{tgt}, v{dw[k]}, v{dw[k+1]}"); k += 2; tog ^= 1
        a(f"v_or_b32 v{acc}, v{acc}, v{acc2}")
        a(f"v_and_b32 v{acc}, s{sFF}, v{acc}")
        a(f"v_cmp_ne_u32 vcc, 0, v{acc}")
        a(f"s_cbranch_vccz {ok_label}")

    def row_slot_addr(self):
        a = self.a
        a(f"s_lshl_b32 s{sTmp[0]}, s{sH}, 3"); a(f"s_add_u32 s{sTmp[0]}, s{sTmp[0]}, s{sJ}"); a(f"s_lshl_b32 s{sTmp[0]}, s{sTmp[0]}, 10")
        a(f"s_add_u32 s{sTmp[0]}, s{sTmp[0]}, {O_ROW}")

    def bmiddle(self):
        a = self.a
        k = self.kblk
        if self.mode == "co":
            l0 = a.newlabel("kw"); l1 = a.newlabel("kw")
            a.label(l0)
            a(f"s_cmp_ge_u32 s{sPos}, {80+self.keep}"); a(f"s_cbranch_scc1 {l1}")
            self.stream_call()
            a(f"s_waitcnt vmcnt({self.keep})")
            a(f"s_branch {l0}")
            a.label(l1)
            a(f"s_waitcnt vmcnt({self.keep})")
        self.stampval(24, sPos)
        self.stamp(16)
        self.wo_setup(pWoB)
        Db = [16, 20, 24]; SB = 28; Tt = 14
        def redops(b):
            D = Db[b % 3]; S = SB + b
            return [f"v_mov_b32_dpp v{S}, v{D} quad_perm:[0,0,0,0] {DPPALL}",
                    f"v_mov_b32_dpp v{Tt}, v{D+2} quad_perm:[2,2,2,2] {DPPALL}",
                    f"v_add_f32_dpp v{S}, v{D+1}, v{S} quad_perm:[1,1,1,1] {DPPALL}",
                    f"v_add_f32_dpp v{Tt}, v{D+3}, v{Tt} quad_perm:[3,3,3,3] {DPPALL}",
                    f"v_add_f32 v{S}, v{S}, v{Tt}"]
        for b in range(16):
            D = Db[b % 3]
            ro = redops(b - 2) if b >= 2 else []
            for t in range(4):
                c = "0" if t == 0 else vr(D, 4)
                a(f"v_mfma_f32_16x16x32_bf16 {vr(D,4)}, {vr(AT+4*t,4)}, {ar(16*b+4*t,4)}, {c}")
                if ro: a(ro[t])
                if t == 1 and b < 8: self.pf_guard(lambda: self.vtr_one(b))
                if t == 2 and 8 <= b < 14: self.pf_guard(lambda: self.wo_one(b - 8))
            if ro: a(ro[4])
            if b in self.qkcalls: self.topup(self.dq)
        r14, r15 = redops(14), redops(15)
        r15 = [x.replace(f"v{Tt}", "v15") for x in r15]
        for x14, x15 in zip(r14, r15):
            a(x14); a(x15)
        self.stamp(3)
        m, m2 = 14, 15
        a(f"v_max3_f32 v{m}, v{SB}, v{SB+1}, v{SB+2}"); a(f"v_max3_f32 v{m2}, v{SB+3}, v{SB+4}, v{SB+5}")
        a(f"v_max3_f32 v{m}, v{m}, v{SB+6}, v{SB+7}"); a(f"v_max3_f32 v{m2}, v{m2}, v{SB+8}, v{SB+9}")
        a(f"v_max3_f32 v{m}, v{m}, v{SB+10}, v{SB+11}"); a(f"v_max3_f32 v{m2}, v{m2}, v{SB+12}, v{SB+13}")
        a(f"v_max3_f32 v{m}, v{m}, v{SB+14}, v{SB+15}"); a(f"v_max_f32 v{m}, v{m}, v{m2}")
        self.dpp_steps([m], "v_max_f32", ["row_ror:4", "row_ror:8", "b15", "b31"])
        a(f"v_readlane_b32 s{sA}, v{m}, 63")
        a(f"v_mov_b32 v{m2}, s{sSc}")
        a(f"v_mul_f32 v{m}, s{sA}, v{m2}")
        a(f"v_readfirstlane_b32 s{sA}, v{m}")
        for q in range(16): a(f"v_fma_f32 v{SB+q}, v{SB+q}, s{sSc}, -v{m}")
        for q in range(16): a(f"v_exp_f32 v{SB+q}, v{SB+q}")
        l, l2 = 14, 15
        a(f"v_add_f32 v{l}, v{SB}, v{SB+1}"); a(f"v_add_f32 v{l2}, v{SB+2}, v{SB+3}")
        for q in range(4, 16, 2):
            a(f"v_add_f32 v{l}, v{l}, v{SB+q}"); a(f"v_add_f32 v{l2}, v{l2}, v{SB+q+1}")
        a(f"v_add_f32 v{l}, v{l}, v{l2}")
        pk = [f"v_cvt_pk_bf16_f32 v{SB+q}, v{SB+q}, v{SB+q}" for q in range(16)]
        red = [f"v_add_f32_dpp v{l}, v{l}, v{l} row_ror:4 {DPPALL}", f"v_add_f32_dpp v{l}, v{l}, v{l} row_ror:8 {DPPALL}",
               f"v_add_f32_dpp v{l}, v{l}, v{l} row_bcast:15 row_mask:0xa bank_mask:0xf", f"v_add_f32_dpp v{l}, v{l}, v{l} row_bcast:31 row_mask:0xc bank_mask:0xf"]
        for i in range(4):
            for x_ in pk[4*i:4*i+2]: a(x_)
            a(red[i])
            for x_ in pk[4*i+2:4*i+4]: a(x_)
        a(f"v_readlane_b32 s{sB_}, v{l}, 63")
        self.stamp(4)
        if self.mode == "co":
            self.drain(self.keep)
            a("s_waitcnt vmcnt(16)")
        Ab, Do = 44, 52
        LB = [16, 20, 24, 56]
        a(f"s_lshl_b32 s{sTmp[0]}, s{sW}, 14"); a(f"v_add_u32 v15, s{sTmp[0]}, v{vL16}")
        if L_VL: a(f"v_add_u32 v15, {L_VL}, v15")
        order = [(b, u) for b in range(10) for u in range(4)] + [(b, u) for b in range(10, 14) for u in range(4)] + [(b, u) for b in (14, 15) for u in range(4)]
        def build(kk):
            b, u = order[kk]; A = Ab + 4 * (kk % 2)
            for r in range(4):
                a(f"v_and_b32_dpp v{A+r}, v{SB+b}, v{vM[r]} row_newbcast:{4*u} {DPPALL}")
        def bop(kk):
            b, u = order[kk]
            if b < 10: return vr(VRES+16*b+4*u, 4)
            if b < 14: return vr(LB[u], 4)
            return vr(VTR+16*(b-14)+4*u, 4)
        def ldsrd(b, u):
            a(f"ds_read_b128 {vr(LB[u],4)}, v15 offset:{((b-10)*4+u)*1024}")
        build(0); build(1)
        for kk in range(len(order)):
            b, u = order[kk]
            if (b, u) == (8, 0):
                self.stamp(17)
                a("s_waitcnt vmcnt(0)")
                self.stamp(18)
                for uu in range(4): ldsrd(10, uu)
            if 10 <= b < 14: a(f"s_waitcnt lgkmcnt(3)" if not (b == 13 and u > 0) else f"s_waitcnt lgkmcnt({3-u})")
            A = Ab + 4 * (kk % 2)
            c = "0" if kk == 0 else vr(Do, 4)
            a(f"v_mfma_f32_16x16x32_bf16 {vr(Do,4)}, {vr(A,4)}, {bop(kk)}, {c}")
            if 10 <= b < 13: ldsrd(b + 1, u)
            if kk + 2 < len(order): build(kk + 2)
        self.row_slot_addr()
        a(f"v_writelane_b32 v{Do}, s{sA}, 32"); a(f"v_writelane_b32 v{Do+1}, s{sB_}, 32")
        self.red_write(Do)
        a("s_waitcnt lgkmcnt(0)"); a("s_barrier")
        self.stamp(5)
        lf = a.newlabel("bfin")
        a(f"s_cmp_lg_u32 s{sW}, 0"); a(f"s_cbranch_scc1 {lf}")
        G = 16; MLr = 32
        a(f"v_mov_b32 v14, {L_RED+512}")
        for w in range(4): a(f"ds_read_b64 {vr(MLr+2*w,2)}, v14 offset:{w*RSTR}")
        self.red_final_read(G)
        a("s_waitcnt lgkmcnt(4)")
        M = 40
        a(f"v_max3_f32 v{M}, v{MLr}, v{MLr+2}, v{MLr+4}"); a(f"v_max_f32 v{M}, v{M}, v{MLr+6}")
        for w in range(4): a(f"v_sub_f32 v{MLr+2*w}, v{MLr+2*w}, v{M}")
        for w in range(4): a(f"v_exp_f32 v{MLr+2*w}, v{MLr+2*w}")
        a(f"v_readfirstlane_b32 s{sA}, v{M}")
        a("s_waitcnt lgkmcnt(0)")
        for r in range(4): a(f"v_mul_f32 v{G+r}, v{MLr}, v{G+r}")
        for w in range(1, 4):
            for r in range(4): a(f"v_fmac_f32 v{G+r}, v{MLr+2*w}, v{G+4*w+r}")
        a(f"v_writelane_b32 v{G}, s{sA}, 32")
        self.tag([G, G+1, G+2, G+3])
        a("s_mov_b32 exec_hi, 1")
        self.local_stores([(G, vL16, sTmp[0], None)])
        a("s_mov_b32 exec_hi, -1")
        a.label(lf)
        self.stamp(7)

    def opart(self):
        a = self.a
        G, ML = 16, 20
        a(f"v_lshrrev_b32 v14, 7, v{vL16}"); a(f"v_lshlrev_b32 v15, 10, v14")
        a(f"v_and_b32 v14, 0x70, v{vL16}"); a(f"v_add_u32 v14, v15, v14")
        a(f"s_lshl_b32 s{sTmp[0]}, s{sH}, 13"); a(f"s_add_u32 s{sTmp[0]}, s{sTmp[0]}, {O_ROW}")
        a(f"s_lshl_b32 s{sTmp[1]}, s{sW}, 7"); a(f"s_add_u32 s{sTmp[1]}, s{sTmp[1]}, s{sTmp[0]}")
        a(f"v_lshrrev_b32 v59, 8, v{vL16}"); a(f"v_mul_u32_u24 v59, 160, v59")
        a(f"v_and_b32 v58, 0xf0, v{vL16}"); a(f"v_add_u32 v59, v59, v58")
        a(f"s_mul_i32 s{sTmp[2]}, s{sW}, {32*160}"); a(f"s_add_u32 s{sTmp[2]}, s{sTmp[2]}, {L_R0}"); a(f"v_add_u32 v59, s{sTmp[2]}, v59")
        def iss():
            a(f"buffer_load_dwordx4 {vr(ML,4)}, v15, {W}, s{sTmp[0]} offen offset:512 sc1")
            a(f"buffer_load_dwordx4 {vr(G,4)}, v14, {W}, s{sTmp[1]} offen sc1")
        self.poll(iss, [ML, G], site='row')
        self.stamp(8)
        WB = 24
        for i in range(8): a(f"ds_read_b128 {vr(WB+4*i,4)}, v59 offset:{i*640}")
        if self.pfnew: self.next_w()
        self.combine8(G, ML, 56)
        Xp = 14
        a(f"v_cvt_pk_bf16_f32 v{Xp}, v{G}, v{G}")
        D, Ab = 56, 16
        a("s_waitcnt lgkmcnt(0)")
        self.pv_gemv(Xp, 8, lambda i: vr(WB+4*i, 4), D, Ab)
        self.red_write(D)
        a(f"v_lshrrev_b32 v14, 4, v{vL16}"); a(f"v_mul_u32_u24 v15, 13108, v14"); a(f"v_lshrrev_b32 v15, 16, v15")
        a(f"v_mul_u32_u24 v24, 5, v15"); a(f"v_sub_u32 v14, v14, v24"); a(f"v_lshlrev_b32 v14, 4, v14"); a(f"v_lshl_add_u32 v14, v15, 7, v14")
        a(f"s_lshl_b32 s{sTmp[0]}, s{sJ}, 5"); a(f"s_add_u32 s{sTmp[0]}, s{sTmp[0]}, s{sH}"); a(f"s_lshl_b32 s{sTmp[0]}, s{sTmp[0]}, 9")
        a(f"s_add_u32 s{sTmp[0]}, s{sTmp[0]}, s{sCol}")
        a("s_waitcnt lgkmcnt(0)"); a("s_barrier")
        lf = a.newlabel("ofin")
        a(f"s_cmp_lg_u32 s{sW}, 0"); a(f"s_cbranch_scc1 {lf}")
        self.red_final_read(G)
        a("s_waitcnt lgkmcnt(0)")
        self.sum4(G); self.tag([G, G+1, G+2, G+3])
        self.exec_set(0xfffff, 0)
        a(f"buffer_store_dwordx4 {vr(G,4)}, v14, {W}, s{sTmp[0]} offen sc1")
        self.exec_all()
        a.label(lf)
        self.stamp(9)
        if not self.pfnew: self.next_w()
        a(f"v_lshrrev_b32 v14, 7, v{vL16}"); a(f"v_lshlrev_b32 v14, 9, v14")
        a(f"v_and_b32 v15, 0x70, v{vL16}"); a(f"v_add_u32 v14, v14, v15")
        a(f"s_lshl_b32 s{sTmp[0]}, s{sJ}, 14"); a(f"s_lshl_b32 s{sTmp[1]}, s{sW}, 7"); a(f"s_add_u32 s{sTmp[0]}, s{sTmp[0]}, s{sTmp[1]}")
        a(f"s_add_u32 s{sTmp[0]}, s{sTmp[0]}, s{sCol}")
        for i in range(1, 4): a(f"s_add_u32 s{sTmp[i]}, s{sTmp[0]}, {i*4096}")
        def issc():
            for i in range(4):
                a(f"buffer_load_dwordx4 {vr(G+4*i,4)}, v14, {W}, s{sTmp[i]} offen sc1")
        self.poll(issc, [G, G+4, G+8, G+12], execmask=(0x1f1f1f1f, 0x1f1f1f1f), site='col')
        self.stampval(28, sSpin); self.stampval(29, sPos)
        self.stamp(10)
        self.sum4(G)
        for r in range(4): a(f"v_add_f32_dpp v{G+r}, v{G+r}, v{G+r} row_ror:8 {DPPALL}")
        self.treduce([G, G+1, G+2, G+3])
        a(f"v_add_f32 v{G}, v{G}, v{vX}")
        a(f"v_cndmask_b32 v{vX}, 0, v{G}, s[{sM5}:{sM5+1}]")

    def next_w(self):
        a = self.a
        lnp = a.newlabel("nopf"); lb = a.newlabel("nouk")
        a(f"s_cmp_eq_u32 s{sL}, 3"); a(f"s_cbranch_scc1 {lnp}")
        a(f"s_add_u32 s{sL}, s{sL}, 1")
        self.load_wq()
        a(f"s_bitcmp1_b32 s{sL}, 0"); a(f"s_cbranch_scc1 {lb}")
        self.load_wuk()
        a.label(lb)
        a(f"s_sub_u32 s{sL}, s{sL}, 1")
        a.label(lnp)

    def epilogue(self):
        a = self.a
        le = a.newlabel("fin")
        a(f"s_cmp_lg_u32 s{sH}, 0"); a(f"s_cbranch_scc1 {le}")
        self.srd(SRD_B, pOut, 1280)
        a(f"v_lshrrev_b32 v14, 4, v{vL16}"); a(f"v_and_b32 v15, 15, v14"); a(f"v_lshrrev_b32 v14, 4, v14")
        a(f"v_lshl_add_u32 v14, v15, 2, v14")
        a(f"s_mul_i32 s{sTmp[0]}, s{sJ}, 80"); a(f"s_mul_i32 s{sTmp[1]}, s{sW}, 20"); a(f"s_add_u32 s{sTmp[0]}, s{sTmp[0]}, s{sTmp[1]}")
        a(f"v_add_u32 v14, s{sTmp[0]}, v14"); a(f"v_lshlrev_b32 v14, 1, v14")
        a(f"v_cvt_pk_bf16_f32 v15, v{vX}, v{vX}")
        a(f"s_mov_b64 exec, s[{sM5}:{sM5+1}]")
        a(f"buffer_store_short v15, v14, s[{SRD_B}:{SRD_B+3}], 0 offen")
        self.exec_all()
        a(f"s_cmp_lg_u32 s2, 0"); a(f"s_cbranch_scc1 {le}")
        a(f"s_cmp_lg_u32 s{sW}, 0"); a(f"s_cbranch_scc1 {le}")
        a(f"v_mov_b32 v14, 0")
        a("s_mov_b64 exec, 1")
        a(f"buffer_store_dword v{vT}, v14, {W}, 0 offen sc1")
        self.exec_all()
        a.label(le)
        l2 = a.newlabel("noerr")
        a(f"s_cmp_eq_u32 s{sErr}, 0"); a(f"s_cbranch_scc1 {l2}")
        self.srd(SRD_B, sDbg, 256)
        a(f"v_mov_b32 v14, 0"); a(f"v_mov_b32 v15, 0xdead")
        a("s_mov_b64 exec, 1")
        a(f"buffer_store_dword v15, v14, s[{SRD_B}:{SRD_B+3}], 0 offen")
        self.exec_all()
        a.label(l2)

    def build(self):
        a = self.a
        self.prologue()
        a.label("L_layer")
        self.qpart()
        a(f"s_bitcmp1_b32 s{sL}, 0"); a(f"s_cbranch_scc1 L_bmid")
        self.amiddle()
        a(f"s_branch L_opart")
        a.label("L_bmid")
        self.bmiddle()
        a.label("L_opart")
        self.opart()
        self.stamp(11)
        for L_ in range(4): self.dbgstamp(f"end{L_}", L_)
        a(f"s_add_u32 s{sL}, s{sL}, 1"); a(f"s_xor_b32 s{sCol}, s{sCol}, 0x20000")
        nl = self.stop if self.stop else 4
        a(f"s_cmp_ge_u32 s{sL}, {nl}"); a("s_cbranch_scc1 L_done")
        self.next_tag()
        a("s_branch L_layer")
        a.label("L_done")
        self.epilogue()
        if self.stamps:
            a(f"s_mov_b32 s{sL}, 3")
            self.stamp(13)
        a("s_waitcnt vmcnt(0)")
        a.label("L_end")
        a("s_endpgm")
        self.dw_sub()
        self.stream()
        a.label("L_codeend")
        return fix(a.lines)

HEADER = open("interleave_layers__compressed_kv_cla__mha_block_cached__decode.s.ref").read().split("; Override launch")[0]

def make(path, **kw):
    body = "\n".join(Gen(**kw).build())
    src = f"""{HEADER}; @launch grid=(256,1,1) block=(256,1,1) lds={LDS_BYTES}
.amdgcn_target "amdgcn-amd-amdhsa--gfx950"
.text
.globl {KNAME}
.p2align 8
.type {KNAME},@function
{KNAME}:
{body}
.section .rodata,"a"
.p2align 6
.amdhsa_kernel {KNAME}
  .amdhsa_next_free_vgpr 512
  .amdhsa_next_free_sgpr 102
  .amdhsa_accum_offset 256
  .amdhsa_group_segment_fixed_size 0
  .amdhsa_kernarg_size 112
  .amdhsa_user_sgpr_count 2
  .amdhsa_user_sgpr_kernarg_segment_ptr 1
  .amdhsa_system_sgpr_workgroup_id_x 1
  .amdhsa_float_denorm_mode_32 3
.end_amdhsa_kernel
"""
    open(path, "w").write(src)

if __name__ == "__main__":
    import argparse
    ap = argparse.ArgumentParser()
    ap.add_argument("-o", default="k.s"); ap.add_argument("--opts", default="")
    x = ap.parse_args()
    kw = {}
    for o in filter(None, x.opts.split(";")):
        k_, v_ = o.split("="); kw[k_] = eval(v_)
    make(x.o, **kw)
```

```python
import sys, struct
from hazard import fix

KNAME = "interleave_layers__compressed_kv_cla__mha_block_cached__decode_kernel"

class Asm:
    def __init__(self): self.lines = []; self.n = 0
    def __call__(self, s):
        for l in s.split("\n"):
            l = l.strip()
            if l: self.lines.append(l)
    def label(self, name): self.lines.append(name + ":")
    def newlabel(self, base="L"):
        self.n += 1; return f"{base}_{self.n}"

def vr(b, n=1): return f"v{b}" if n == 1 else f"v[{b}:{b+n-1}]"
def ar(b, n=1): return f"a{b}" if n == 1 else f"a[{b}:{b+n-1}]"
DPPALL = "row_mask:0xf bank_mask:0xf"
def f32hex(x): return "0x%08x" % struct.unpack("<I", struct.pack("<f", x))[0]

O_XCC  = 0x001000
O_STAMP = 0x080000
O_QP   = 0x100000
O_ROW  = 0x180000
O_COL  = 0x1C0000
O_QABS = 0x200000
O_ML1  = 0x210000
O_C2   = 0x240000
O_ML2  = 0x2C0000
O_C1   = 0x300000

L_VL  = 0
L_CKV = 65536
L_R0  = 131072
L_ST  = 151680
L_RED = 156032
RSTR  = 1056
L_U   = 160256
LDS_BYTES = 163840

sH, sJ, sW, sL, sAct = 3, 4, 5, 6, 7
SRD_WS, SRD_K, SRD_V, SRD_A, SRD_B = 8, 12, 16, 20, 24
sSPC, sRET = 28, 30
sT = [32, 33, 34, 35]
sSel = [36, 37, 38, 39]
pWqA, pWqB, pWuk, pWuv, pWoA, pWoB, pCkv, pOut, pX = 40, 42, 44, 46, 48, 50, 52, 54, 56
sCol = 58
sGA, sS = 59, 60
sSO = 61
sSpin = 62
sPos = 63
sFF = 64
sTmp = list(range(65, 76))
sMask = [76, 78, 80, 82]
sM5 = 84
sDbg = 86
sErr = 88
sLocal = 89
sA, sB_ = 90, 91
sTs = 92
sXG, sI, sSc, sXcc = 98, 99, 100, 101
sTf = 97
sDW, sRET2, sYoung, sVm, sVm2, sDl = 70, 72, 74, 75, 94, 95
sBud = 57

vL16, vM, vT, vX, vWoff, vKoff, vVoff, vRedW = 0, [1, 2, 3, 4], 5, 6, 7, 8, 9, 10
vT0 = 11
vCk = 11
vWo = 13
WQ, WUK, WUV, VTR, VRES = 76, 60, 80, 64, 96
AT = 44

SC = (128 ** -0.5) * 1.4426950408889634
SPIN_MAX = 1 << 16
W = f"s[{SRD_WS}:{SRD_WS+3}]"

class Gen:
    def __init__(self, kblk=8, stream_mode="co", stop_after=None, local=True, stamps="", pol="nt", wpol="", cpol="", codepf=True,
                 qkcalls=(4, 10), sent=True, nopf=False, once=True, xcalls=(), dlim=6, keep=6, addn=True, pretouch=True, mlsent=True, slp=0, sent1=False, pfnew=True, mltail=True, dsite=None, pre=None, rsl=None, dq=None, dbg=None, bud=None, skipfin=True, vsplit=True, woqk=True, split2=True):
        self.split2 = split2
        self.woqk = woqk
        self.skipfin = skipfin; self.vsplit = vsplit
        self.bud = bud
        self.dbg = dbg
        self.pre = pre or {}; self.rsl = rsl or {}; self.dq = dq
        self.pfnew = pfnew; self.mltail = mltail; self.dsite = dsite or {}
        self.slp = slp; self.sent1 = sent1
        self.addn = addn; self.pretouch = pretouch; self.mlsent = mlsent
        self.once = once; self.xcalls = xcalls; self.dlim = dlim; self.keep = keep
        self.nopf = nopf
        self.a = Asm(); self.kblk = kblk; self.mode = stream_mode; self.stop = stop_after
        self.local = local; self.stamps = stamps; self.pol = pol; self.wpol = wpol; self.cpol = cpol; self.codepf = codepf
        self.qkcalls = qkcalls; self.sent = sent

    def srd(self, s, lo, nbytes):
        a = self.a
        a(f"s_mov_b32 s{s}, s{lo}"); a(f"s_mov_b32 s{s+1}, s{lo+1}")
        a(f"s_mov_b32 s{s+2}, {nbytes:#x}"); a(f"s_mov_b32 s{s+3}, 0x20000")
    def exec_all(self): self.a("s_mov_b64 exec, -1")
    def exec_set(self, lo, hi):
        self.a(f"s_mov_b32 exec_lo, {lo:#x}"); self.a(f"s_mov_b32 exec_hi, {hi:#x}")
    def tag(self, regs):
        for i, r in enumerate(regs):
            self.a(f"v_perm_b32 v{r}, v{r}, v{vT}, s{sSel[i%4]}")
    def stamp(self, idx):
        if not self.stamps: return
        if self.stamps == "light" and idx not in (12, 13): return
        a = self.a
        lab = a.newlabel("st")
        a(f"s_cmp_lg_u32 s{sW}, 0"); a(f"s_cbranch_scc1 {lab}")
        a(f"s_memrealtime s[{sTs}:{sTs+1}]")
        a("s_waitcnt lgkmcnt(0)")
        a(f"s_lshl_b32 s96, s2, 2"); a(f"s_add_u32 s96, s96, s{sL}"); a(f"s_lshl_b32 s96, s96, 7")
        a(f"s_add_u32 s96, s96, {O_STAMP + idx*4}")
        a(f"v_mov_b32 v{vT0}, s{sTs}")
        a(f"v_mov_b32 v{vT0+1}, 0")
        a(f"s_mov_b64 s[{sTs}:{sTs+1}], exec"); a("s_mov_b64 exec, 1")
        a(f"buffer_store_dword v{vT0}, v{vT0+1}, {W}, s96 offen")
        a(f"s_mov_b64 exec, s[{sTs}:{sTs+1}]")
        a.label(lab)
    def dbgstamp(self, k, cond_layer=None):
        if not self.dbg or k not in self.dbg: return
        a = self.a
        k = self.dbg.index(k)
        lab = a.newlabel("db")
        a(f"s_cmp_lg_u32 s{sW}, 0"); a(f"s_cbranch_scc1 {lab}")
        a(f"s_cmp_ge_u32 s2, 8"); a(f"s_cbranch_scc1 {lab}")
        if cond_layer is not None:
            a(f"s_cmp_lg_u32 s{sL}, {cond_layer}"); a(f"s_cbranch_scc1 {lab}")
        a(f"s_memrealtime s[{sTs}:{sTs+1}]")
        a("s_waitcnt lgkmcnt(0)")
        a(f"s_mov_b32 s{SRD_A}, s{sDbg}"); a(f"s_mov_b32 s{SRD_A+1}, s{sDbg+1}"); a(f"s_mov_b32 s{SRD_A+2}, 256"); a(f"s_mov_b32 s{SRD_A+3}, 0x20000")
        a(f"s_lshl_b32 s96, s2, 3"); a(f"s_add_u32 s96, s96, {4*k}")
        a(f"v_mov_b32 v{vT0}, s{sTs}")
        a(f"v_mov_b32 v{vT0+1}, 0")
        a(f"s_mov_b64 s[{sTs}:{sTs+1}], exec"); a("s_mov_b64 exec, 1")
        a(f"buffer_store_dword v{vT0}, v{vT0+1}, s[{SRD_A}:{SRD_A+3}], s96 offen")
        a(f"s_mov_b64 exec, s[{sTs}:{sTs+1}]")
        a.label(lab)
    def stampval(self, idx, sreg):
        if self.stamps != "full": return
        a = self.a
        lab = a.newlabel("sv")
        a(f"s_cmp_lg_u32 s{sW}, 0"); a(f"s_cbranch_scc1 {lab}")
        a(f"s_lshl_b32 s96, s2, 2"); a(f"s_add_u32 s96, s96, s{sL}"); a(f"s_lshl_b32 s96, s96, 7")
        a(f"s_add_u32 s96, s96, {O_STAMP + idx*4}")
        a(f"v_mov_b32 v{vT0}, s{sreg}")
        a(f"v_mov_b32 v{vT0+1}, 0")
        a(f"s_mov_b64 s[{sTs}:{sTs+1}], exec"); a("s_mov_b64 exec, 1")
        a(f"buffer_store_dword v{vT0}, v{vT0+1}, {W}, s96 offen")
        a(f"s_mov_b64 exec, s[{sTs}:{sTs+1}]")
        a.label(lab)
    def stream_call(self):
        self.a(f"s_swappc_b64 s[{sRET}:{sRET+1}], s[{sSPC}:{sSPC+1}]")
    def maybe_stream(self):
        a = self.a
        lab = a.newlabel("ns")
        a(f"s_cmp_eq_u32 s{sAct}, 0"); a(f"s_cbranch_scc1 {lab}")
        self.stream_call()
        a.label(lab)
    def read_vm(self):
        a = self.a
        a(f"s_getreg_b32 s{sVm}, hwreg(HW_REG_IB_STS)")
        a(f"s_bfe_u32 s{sVm2}, s{sVm}, 0x20016"); a(f"s_and_b32 s{sVm}, s{sVm}, 15")
        a(f"s_lshl4_add_u32 s{sVm}, s{sVm2}, s{sVm}")
    def dw_sub(self):
        a = self.a
        a.label("L_dw")
        self.read_vm()
        a(f"s_cmp_le_u32 s{sVm}, s{sYoung}"); a("s_cbranch_scc1 L_dwret")
        a(f"s_cmp_ge_u32 s{sVm}, s{sDl}"); a("s_cbranch_scc1 L_dw")
        a(f"s_cmp_eq_u32 s{sAct}, 0"); a("s_cbranch_scc1 L_dw")
        if self.bud is not None:
            a(f"s_cmp_le_i32 s{sBud}, 0"); a("s_cbranch_scc1 L_dw")
            a(f"s_sub_u32 s{sBud}, s{sBud}, {self.kblk}")
        self.stream_call()
        a(f"s_add_u32 s{sYoung}, s{sYoung}, {self.kblk}")
        a("s_branch L_dw")
        a.label("L_dwret")
        a(f"s_setpc_b64 s[{sRET2}:{sRET2+1}]")
    def dwait(self, young, n=0, site=None):
        dl = self.dsite.get(site, self.dlim)
        a = self.a
        if self.mode != "co":
            a(f"s_waitcnt vmcnt({young})"); return
        ns = a.newlabel("dwn"); jn = a.newlabel("dwj")
        a(f"s_cmp_eq_u32 s{sAct}, 0"); a(f"s_cbranch_scc1 {ns}")
        a(f"s_mov_b32 s{sYoung}, {young}"); a(f"s_mov_b32 s{sDl}, {dl + n if dl else 0}")
        a(f"s_swappc_b64 s[{sRET2}:{sRET2+1}], s[{sDW}:{sDW+1}]")
        a(f"s_branch {jn}")
        a.label(ns)
        a(f"s_waitcnt vmcnt({young})")
        a.label(jn)
    def topup(self, depth=None):
        if self.mode != "co": return
        depth = self.dlim if depth is None else depth
        a = self.a
        lab = a.newlabel("tu")
        a(f"s_cmp_eq_u32 s{sAct}, 0"); a(f"s_cbranch_scc1 {lab}")
        self.read_vm()
        a(f"s_cmp_ge_u32 s{sVm}, {depth}"); a(f"s_cbranch_scc1 {lab}")
        self.stream_call()
        a.label(lab)
    def drain(self, keep):
        a = self.a
        l0 = a.newlabel("drain"); l1 = a.newlabel("drained")
        a.label(l0)
        a(f"s_cmp_eq_u32 s{sAct}, 0"); a(f"s_cbranch_scc1 {l1}")
        self.stream_call()
        a(f"s_waitcnt vmcnt({keep})")
        a(f"s_branch {l0}")
        a.label(l1)

    def poll(self, issue, regs, execmask=None, stream=True, site=None):
        a = self.a
        lp = a.newlabel("poll"); ns = a.newlabel("pns"); jn = a.newlabel("pj"); dn = a.newlabel("pdone")
        if execmask: self.exec_set(*execmask)
        a(f"s_mov_b32 s{sSpin}, 0")
        if self.bud is not None: a(f"s_mov_b32 s{sBud}, {self.bud.get(site, self.bud.get('*', 8))}")
        if self.pre.get(site): a(f"s_sleep {self.pre[site]}")
        a.label(lp)
        issue()
        if execmask and self.mode == "co": self.exec_all()
        self.dwait(0, len(regs) if self.addn else 0, site)
        if execmask and self.mode == "co": self.exec_set(*execmask)
        a.label(jn)
        acc, acc2 = vT0, vT0 + 1
        dw = [g + i for g in regs for i in range(4)]
        for k, r in enumerate(dw): a(f"v_xor_b32 v{r}, s{sT[k % 4]}, v{r}")
        a(f"v_or3_b32 v{acc}, v{dw[0]}, v{dw[1]}, v{dw[2]}")
        if len(dw) == 4:
            a(f"v_or_b32 v{acc}, v{acc}, v{dw[3]}")
        else:
            a(f"v_or3_b32 v{acc2}, v{dw[3]}, v{dw[4]}, v{dw[5]}")
            k = 6; tog = 0
            while k < len(dw):
                tgt = acc if tog == 0 else acc2
                a(f"v_or3_b32 v{tgt}, v{tgt}, v{dw[k]}, v{dw[k+1]}"); k += 2
                tog ^= 1
            a(f"v_or_b32 v{acc}, v{acc}, v{acc2}")
        a(f"v_and_b32 v{acc}, s{sFF}, v{acc}")
        a(f"v_cmp_ne_u32 vcc, 0, v{acc}")
        a(f"s_cbranch_vccz {dn}")
        if self.rsl.get(site): a(f"s_sleep {self.rsl[site]}")
        if self.slp:
            lz = a.newlabel("nsl")
            a(f"s_cmp_eq_u32 s{sAct}, 0"); a(f"s_cbranch_scc1 {lz}")
            a(f"s_sleep {self.slp}")
            a.label(lz)
        a(f"s_add_u32 s{sSpin}, s{sSpin}, 1")
        a(f"s_cmp_lt_u32 s{sSpin}, {SPIN_MAX}")
        a(f"s_cbranch_scc1 {lp}")
        a(f"s_mov_b32 s{sErr}, 1")
        a.label(dn)
        if execmask: self.exec_all()

    def dpp_steps(self, regs, op, steps):
        for d in steps:
            for r in regs:
                if d == "b15": self.a(f"{op}_dpp v{r}, v{r}, v{r} row_bcast:15 row_mask:0xa bank_mask:0xf")
                elif d == "b31": self.a(f"{op}_dpp v{r}, v{r}, v{r} row_bcast:31 row_mask:0xc bank_mask:0xf")
                else: self.a(f"{op}_dpp v{r}, v{r}, v{r} {d} {DPPALL}")
    X1, X2, HM, RM = "quad_perm:[1,0,3,2]", "quad_perm:[2,3,0,1]", "row_half_mirror", "row_mirror"
    def reduce63(self, regs, op):
        self.dpp_steps(regs, op, [self.X1, self.X2, self.HM, self.RM, "b15", "b31"])

    def treduce(self, r):
        a = self.a
        a(f"v_permlane32_swap_b32 v{r[0]}, v{r[2]}")
        a(f"v_permlane32_swap_b32 v{r[1]}, v{r[3]}")
        a(f"v_add_f32 v{r[0]}, v{r[0]}, v{r[2]}")
        a(f"v_add_f32 v{r[1]}, v{r[1]}, v{r[3]}")
        a(f"v_permlane16_swap_b32 v{r[0]}, v{r[1]}")
        a(f"v_add_f32 v{r[0]}, v{r[0]}, v{r[1]}")

    def pv_gemv(self, Xp, nload, bop, D, Abuf):
        a = self.a
        def build(i):
            A = Abuf + 4 * (i % 2)
            for r in range(4):
                a(f"v_and_b32_dpp v{A+r}, v{Xp}, v{vM[r]} row_newbcast:{i} {DPPALL}")
        build(0)
        if nload > 1: build(1)
        for i in range(nload):
            A = Abuf + 4 * (i % 2)
            c = "0" if i == 0 else vr(D, 4)
            a(f"v_mfma_f32_16x16x32_bf16 {vr(D,4)}, {vr(A,4)}, {bop(i)}, {c}")
            if i + 2 < nload: build(i + 2)

    def red_write(self, D, off=0):
        a = self.a
        a("s_mov_b32 exec_hi, 1")
        a(f"ds_write_b128 v{vRedW}, {vr(D,4)} offset:{off}")
        a("s_mov_b32 exec_hi, -1")
    def red_final_read(self, G, off=0):
        a = self.a
        a(f"v_add_u32 v{vT0}, {L_RED}, v{vL16}")
        for w in range(4):
            a(f"ds_read_b128 {vr(G+4*w,4)}, v{vT0} offset:{w*RSTR+off}")
    def sum4(self, G):
        a = self.a
        for r in range(4):
            a(f"v_add_f32 v{G+r}, v{G+r}, v{G+4+r}")
            a(f"v_add_f32 v{G+8+r}, v{G+8+r}, v{G+12+r}")
        for r in range(4):
            a(f"v_add_f32 v{G+r}, v{G+r}, v{G+8+r}")

    def local_stores(self, items):
        a = self.a
        def emit(flag):
            for (data, vaddr, soff, pre) in items:
                if pre: pre()
                a(f"buffer_store_dwordx4 {vr(data,4)}, v{vaddr}, {W}, s{soff} offen {flag}")
        if self.local:
            l0 = a.newlabel("ls"); l1 = a.newlabel("ls")
            a(f"s_cmp_eq_u32 s{sLocal}, 0"); a(f"s_cbranch_scc1 {l0}")
            emit("")
            a(f"s_branch {l1}")
            a.label(l0)
            emit("sc1")
            a.label(l1)
        else:
            emit("sc1")

    def next_tag(self):
        a = self.a
        a(f"s_mul_i32 s{sTf}, s{sTf}, 0x9E3779B1"); a(f"s_add_u32 s{sTf}, s{sTf}, 0x7F4A7C15")
        a(f"v_mov_b32 v{vT}, s{sTf}")
        a(f"s_and_b32 s{sT[0]}, s{sTf}, 0xff"); a(f"s_bfe_u32 s{sT[1]}, s{sTf}, 0x80008")
        a(f"s_bfe_u32 s{sT[2]}, s{sTf}, 0x80010"); a(f"s_lshr_b32 s{sT[3]}, s{sTf}, 24")

    def pf_guard(self, fn, lmin=2):
        if not self.nopf: return fn()
        a = self.a; l = a.newlabel("npf")
        a(f"s_cmp_ge_u32 s{sL}, {lmin}"); a(f"s_cbranch_scc1 {l}")
        fn()
        a.label(l)
    def load_wq(self):
        self.pf_guard(self.load_wq_)
    def load_wq_(self):
        a = self.a
        l0 = a.newlabel("wq"); l1 = a.newlabel("wq")
        a(f"s_bitcmp1_b32 s{sL}, 0"); a(f"s_cbranch_scc1 {l0}")
        a(f"s_mov_b32 s{SRD_A}, s{pWqA}"); a(f"s_mov_b32 s{SRD_A+1}, s{pWqA+1}"); a(f"s_branch {l1}")
        a.label(l0)
        a(f"s_mov_b32 s{SRD_A}, s{pWqB}"); a(f"s_mov_b32 s{SRD_A+1}, s{pWqB+1}")
        a.label(l1)
        a(f"s_mov_b32 s{SRD_A+2}, {19*8192+256}"); a(f"s_mov_b32 s{SRD_A+3}, 0x20000")
        for i in range(5):
            a(f"s_mov_b32 s{sTmp[0]}, {i*32768}")
            a(f"buffer_load_dwordx4 {vr(WQ+4*i,4)}, v{vWoff}, s[{SRD_A}:{SRD_A+3}], s{sTmp[0]} offen {self.wpol}")
    def load_wuk(self):
        self.pf_guard(self.load_wuk_)
    def load_wuk_(self):
        a = self.a
        self.srd(SRD_A, pWuk, 15*8192+256)
        t = vT0
        a(f"v_lshrrev_b32 v{t}, 8, v{vKoff}"); a(f"v_lshlrev_b32 v{t}, 13, v{t}")
        a(f"v_and_b32 v{t+1}, s{sFF}, v{vKoff}"); a(f"v_or_b32 v{t}, v{t}, v{t+1}")
        for i in range(4):
            a(f"s_mov_b32 s{sTmp[0]}, {i*32768}")
            a(f"buffer_load_dwordx4 {vr(WUK+4*i,4)}, v{t}, s[{SRD_A}:{SRD_A+3}], s{sTmp[0]} offen {self.wpol}")
    def load_wuv(self):
        self.pf_guard(self.load_wuv_)
    def load_wuv_(self):
        a = self.a
        self.srd(SRD_A, pWuv, 15*8192+256)
        for i in range(4):
            a(f"s_mov_b32 s{sTmp[0]}, {i*32768}")
            a(f"buffer_load_dwordx4 {vr(WUV+4*i,4)}, v{vWoff}, s[{SRD_A}:{SRD_A+3}], s{sTmp[0]} offen {self.wpol}")
    def wo_setup(self, p):
        a = self.a
        self.srd(SRD_A, p, 31*1280+160)
        a(f"s_mul_i32 s{sTmp[1]}, s{sW}, {32*160}"); a(f"s_add_u32 s{sTmp[1]}, s{sTmp[1]}, {L_R0}")
    def wo_one(self, i):
        a = self.a
        a(f"s_add_u32 m0, s{sTmp[1]}, {i*6*160}")
        a(f"s_mov_b32 s{sTmp[0]}, {i*6*1280}")
        if i < 5: a("s_mov_b32 exec_hi, 0x0fffffff")
        else: self.exec_set(0x000fffff, 0)
        a(f"buffer_load_dwordx4 v{vWo}, s[{SRD_A}:{SRD_A+3}], s{sTmp[0]} offen {self.wpol} lds")
        if i < 5: a("s_mov_b32 exec_hi, -1")
        else: self.exec_all()
    def load_wo(self, p):
        def f():
            self.wo_setup(p)
            for i in range(6): self.wo_one(i)
        self.pf_guard(f)
    def ckv_one(self, kk):
        a = self.a
        f = (kk & 8) | ((kk & 3) << 1) | ((kk >> 2) & 1)
        a(f"v_xor_b32 v{vCk}, {f*16}, v{vL16}")
        a(f"s_lshl_b32 s{sSO}, s{sW}, 14"); a(f"s_add_u32 m0, s{sSO}, {L_CKV + kk*1024}")
        a(f"s_mov_b32 s{sSO}, {kk*1024}")
        a(f"buffer_load_dwordx4 v{vCk}, s[{SRD_B}:{SRD_B+3}], s{sSO} offen {self.cpol} lds")
    def vtr_reg(self, b, u):
        if self.vsplit: return (60 if b == 14 else 80) + 4 * u
        return VTR + (b - 14) * 16 + 4 * u
    def vtr_one(self, k):
        a = self.a
        b, u = 14 + (k >> 2), k & 3
        if u == 0: a(f"s_mov_b32 s{sTmp[2]}, {b*4096}")
        a(f"buffer_load_dwordx4 {vr(self.vtr_reg(b, u),4)}, v{vVoff}, s[{SRD_V}:{SRD_V+3}], s{sTmp[2]} offen offset:{u*256} {self.pol}")

    def prologue(self):
        a = self.a
        a("s_cmp_ge_u32 s2, 256"); a("s_cbranch_scc1 L_end")
        a("s_load_dwordx4 s[64:67], s[0:1], 0")
        a("s_load_dwordx4 s[68:71], s[0:1], 16")
        a("s_load_dwordx4 s[72:75], s[0:1], 32")
        a("s_load_dwordx4 s[76:79], s[0:1], 56")
        a("s_load_dwordx4 s[80:83], s[0:1], 72")
        a("s_load_dwordx4 s[84:87], s[0:1], 88")
        a("s_load_dwordx2 s[8:9], s[0:1], 104")
        a(f"v_lshrrev_b32 v20, 6, v0")
        a(f"v_and_b32 v21, 63, v0")
        a(f"v_readfirstlane_b32 s{sW}, v20")
        a(f"s_and_b32 s{sH}, s2, 31"); a(f"s_lshr_b32 s{sJ}, s2, 5")
        a(f"s_and_b32 s{sXG}, s2, 7"); a(f"s_lshr_b32 s{sI}, s2, 3")
        a(f"s_and_b32 s{sGA}, s{sI}, 1")
        a(f"s_lshr_b32 s{sS}, s{sI}, 1"); a(f"s_lshl_b32 s92, s{sXG}, 4"); a(f"s_add_u32 s{sS}, s{sS}, s92")
        a(f"v_lshlrev_b32 v{vL16}, 4, v21")
        if self.codepf:
            lc = a.newlabel("cpf")
            a(f"s_cmp_lg_u32 s{sW}, 3"); a(f"s_cbranch_scc1 {lc}")
            a("s_getpc_b64 s[20:21]")
            a.label("L_pcx")
            a("s_mov_b32 s22, L_codeend-L_pcx"); a("s_mov_b32 s23, 0x20000")
            a("v_lshlrev_b32 v22, 6, v21")
            self.ncode = 7
            for i in range(self.ncode):
                a(f"s_mov_b32 s92, {i*4096}")
                a(f"buffer_load_dword v23, v22, s[20:23], s92 offen")
            a.label(lc)
        a("v_and_b32 v22, 15, v21")
        a("v_lshrrev_b32 v23, 4, v21") if not self.codepf else a("v_lshrrev_b32 v19, 4, v21")
        g = 23 if not self.codepf else 19
        a(f"v_lshlrev_b32 v24, 4, v22")
        a(f"v_lshl_add_u32 v{vWoff}, v{g}, 13, v24")
        a(f"v_lshl_add_u32 v{vVoff}, v{g}, 10, v24")
        a(f"v_and_b32 v25, 3, v22"); a(f"v_lshl_add_u32 v25, v{g}, 2, v25"); a("v_lshlrev_b32 v25, 4, v25")
        a("v_lshrrev_b32 v26, 2, v22"); a(f"v_lshl_add_u32 v{vKoff}, v26, 8, v25")
        a("v_and_b32 v25, 1, v22"); a("v_cmp_eq_u32 vcc, 1, v25")
        a("v_mov_b32 v26, 0xffff"); a("v_mov_b32 v27, 0xffff0000"); a("v_cndmask_b32 v26, v26, v27, vcc")
        a("v_lshrrev_b32 v25, 1, v22")
        for r in range(4):
            a(f"v_cmp_eq_u32 vcc, {r}, v25"); a(f"v_cndmask_b32 v{vM[r]}, 0, v26, vcc")
        a(f"v_lshl_add_u32 v25, v22, 1, v{g}"); a("v_lshlrev_b32 v25, 4, v25")
        a("v_cmp_gt_u32 vcc, 32, v21"); a("v_mov_b32 v26, 512"); a("v_cndmask_b32 v25, v26, v25, vcc")
        a(f"s_mul_i32 s92, s{sW}, {RSTR}"); a(f"s_add_u32 s92, s92, {L_RED}"); a(f"v_add_u32 v{vRedW}, s92, v25")
        a(f"v_mul_u32_u24 v25, 6554, v21"); a(f"v_lshrrev_b32 v25, 16, v25")
        a(f"v_mul_u32_u24 v26, 10, v25"); a(f"v_sub_u32 v26, v21, v26")
        a(f"v_mul_u32_u24 v25, 1280, v25"); a(f"v_lshl_add_u32 v{vWo}, v26, 4, v25")
        a("s_waitcnt lgkmcnt(0)")
        a(f"s_mov_b32 s{SRD_WS+2}, 0x10000000"); a(f"s_mov_b32 s{SRD_WS+3}, 0x20000")
        if self.stamps:
            a(f"s_mov_b32 s{sL}, 0")
            self.stamp(12)
        self.dbgstamp("entry")
        a("v_mov_b32 v28, 0")
        a(f"buffer_load_dword v{vT}, v28, {W}, 0 offen sc1")
        a(f"s_mov_b32 s{pX}, s64"); a(f"s_mov_b32 s{pX+1}, s65")
        self.srd(SRD_B, pX, 1280)
        a(f"s_mul_i32 s92, s{sJ}, 80"); a(f"s_mul_i32 s93, s{sW}, 20"); a("s_add_u32 s92, s92, s93")
        a(f"v_lshl_add_u32 v25, v22, 2, v{g}"); a("v_add_u32 v25, s92, v25"); a("v_lshlrev_b32 v29, 1, v25")
        a(f"s_mov_b32 s94, 0x001f001f"); a(f"s_mov_b32 s95, 0x001f001f")
        a(f"v_mov_b32 v{vX}, 0")
        a("s_mov_b64 exec, s[94:95]")
        a(f"buffer_load_ushort v{vX}, v29, s[{SRD_B}:{SRD_B+3}], 0 offen")
        self.exec_all()
        def addp(dst, src, terms):
            a(f"s_mov_b32 s92, 0")
            for (sreg, c) in terms:
                a(f"s_mul_i32 s93, s{sreg}, {c}"); a("s_add_u32 s92, s92, s93")
            a(f"s_add_u32 s{dst}, s{src}, s92"); a(f"s_addc_u32 s{dst+1}, s{src+1}, 0")
        addp(pWqA, 68, [(sJ, 80*8192), (sW, 20*8192), (sH, 256)])
        a(f"s_mov_b32 s{sL}, 0")
        self.load_wq()
        addp(pWuk, 70, [(sJ, 64*8192), (sW, 16*8192), (sH, 256)])
        a(f"s_mov_b32 s{sFF}, 0xff")
        self.load_wuk()
        addp(pCkv, 66, [(sS, 65536), (sW, 16384)])
        addp(pWqB, 80, [(sJ, 80*8192), (sW, 20*8192), (sH, 256)])
        addp(pWuv, 72, [(sJ, 64*8192), (sW, 16*8192), (sH, 256)])
        addp(pWoA, 74, [(sH, 163840), (sW, 32*1280), (sJ, 160)])
        addp(pWoB, 82, [(sH, 163840), (sW, 32*1280), (sJ, 160)])
        addp(SRD_K, 76, [(sH, 2097152), (sJ, 262144), (sW, 65536)])
        addp(SRD_V, 78, [(sH, 2097152), (sJ, 262144), (sW, 65536)])
        a(f"s_mov_b32 s{SRD_K+2}, 65536"); a(f"s_mov_b32 s{SRD_K+3}, 0x20000")
        a(f"s_mov_b32 s{SRD_V+2}, 65536"); a(f"s_mov_b32 s{SRD_V+3}, 0x20000")
        a(f"s_mov_b32 s{pOut}, s84"); a(f"s_mov_b32 s{pOut+1}, s85")
        self.srd(SRD_B, pCkv, 16384)
        if self.pretouch:
            a(f"s_lshl_b32 s92, s2, 13"); a(f"s_lshl_b32 s93, s{sW}, 11"); a("s_add_u32 s92, s92, s93"); a(f"s_add_u32 s92, s92, {O_QP}")
            a(f"buffer_load_dwordx4 v[48:51], v{vL16}, {W}, s92 offen")
            a(f"buffer_load_dwordx4 v[48:51], v{vL16}, {W}, s92 offen offset:1024")
        a(f"s_mov_b32 s{sErr}, 0"); a(f"s_mov_b32 s{sLocal}, 0")
        a(f"s_mov_b32 s{sM5}, 0x001f001f"); a(f"s_mov_b32 s{sM5+1}, 0x001f001f")
        for i in range(4): a(f"s_mov_b32 s{sSel[i]}, {0x07060500+i:#x}")
        for t in range(4):
            a(f"s_mov_b32 s{sMask[t]}, {(0x000f000f << (4*t)):#x}"); a(f"s_mov_b32 s{sMask[t]+1}, {(0x000f000f << (4*t)):#x}")
        a(f"s_getpc_b64 s[{sSPC}:{sSPC+1}]")
        a.label("L_pc0")
        a(f"s_add_u32 s{sSPC}, s{sSPC}, L_stream-L_pc0"); a(f"s_addc_u32 s{sSPC+1}, s{sSPC+1}, 0")
        a(f"s_mov_b32 s{sAct}, 1"); a(f"s_mov_b32 s{sPos}, 0")
        a(f"s_mov_b32 s{sCol}, {O_COL:#x}")
        a(f"s_getreg_b32 s{sXcc}, hwreg(HW_REG_XCC_ID)"); a(f"s_and_b32 s{sXcc}, s{sXcc}, 0xf"); a(f"s_add_u32 s{sXcc}, s{sXcc}, 1"); a(f"s_lshl_b32 s{sXcc}, s{sXcc}, 8")
        a(f"s_getpc_b64 s[{sDW}:{sDW+1}]")
        a.label("L_pc1")
        a(f"s_add_u32 s{sDW}, s{sDW}, L_dw-L_pc1"); a(f"s_addc_u32 s{sDW+1}, s{sDW+1}, 0")
        if self.bud is not None: a(f"s_mov_b32 s{sBud}, {self.bud.get('pro', self.bud.get('*', 8))}")
        self.dwait(6 if self.pretouch else 4, 0, 'pro')
        a(f"v_readfirstlane_b32 s{sTf}, v{vT}")
        self.next_tag()
        a(f"v_lshlrev_b32 v{vX}, 16, v{vX}")
        if self.local:
            lx = a.newlabel("xp")
            a(f"s_cmp_lg_u32 s{sW}, 0"); a(f"s_cbranch_scc1 {lx}")
            for r in range(4): a(f"v_mov_b32 v{16+r}, s{sXcc}")
            self.tag([16, 17, 18, 19])
            a(f"s_lshl_b32 s92, s{sXG}, 9"); a(f"s_lshl_b32 s93, s{sI}, 4"); a("s_add_u32 s92, s92, s93"); a(f"s_add_u32 s92, s92, {O_XCC}")
            a("v_mov_b32 v20, 0")
            a("s_mov_b64 exec, 1")
            a(f"buffer_store_dwordx4 v[16:19], v20, {W}, s92 offen sc1")
            self.exec_all()
            a.label(lx)
        if self.mode == "first":
            self.drain(16)

    NLOADS = 136
    def first_block(self):
        r = self.NLOADS % self.kblk
        return r if r else self.kblk
    def stream(self):
        a = self.a
        loads = [("C", i) for i in range(16)] + [("K", i) for i in range(64)]
        loads += [("V", b, u) for b in range(10) for u in range(4)]
        loads += [("L", b, u) for b in range(10, 14) for u in range(4)]
        k = self.kblk
        assert len(loads) == self.NLOADS
        a.label("L_stream")
        starts = [0] + list(range(self.first_block(), len(loads), k))
        for bn, bi in enumerate(starts):
            be = starts[bn+1] if bn + 1 < len(starts) else len(loads)
            last_so = None
            for ld in loads[bi:be]:
                if ld[0] == "C":
                    self.ckv_one(ld[1]); last_so = None
                elif ld[0] == "K":
                    i = ld[1]; so = (i >> 2) * 4096
                    if so != last_so: a(f"s_mov_b32 s{sSO}, {so}"); last_so = so
                    a(f"buffer_load_dwordx4 {ar(4*i,4)}, v{vKoff}, s[{SRD_K}:{SRD_K+3}], s{sSO} offen offset:{(i&3)*1024} {self.pol}")
                elif ld[0] == "V":
                    _, b, u = ld; so = b * 4096
                    if so != last_so: a(f"s_mov_b32 s{sSO}, {so}"); last_so = so
                    a(f"buffer_load_dwordx4 {vr(VRES+16*b+4*u,4)}, v{vVoff}, s[{SRD_V}:{SRD_V+3}], s{sSO} offen offset:{u*256} {self.pol}")
                else:
                    _, b, u = ld
                    a(f"s_lshl_b32 s{sSO}, s{sW}, 14"); a(f"s_add_u32 m0, s{sSO}, {L_VL + ((b-10)*4+u)*1024}")
                    a(f"s_mov_b32 s{sSO}, {b*4096+u*256}"); last_so = None
                    a(f"buffer_load_dwordx4 v{vVoff}, s[{SRD_V}:{SRD_V+3}], s{sSO} offen {self.pol} lds")
            a(f"s_add_u32 s{sPos}, s{sPos}, {be-bi}")
            if be >= len(loads): a(f"s_mov_b32 s{sAct}, 0")
            a(f"s_swappc_b64 s[{sSPC}:{sSPC+1}], s[{sRET}:{sRET+1}]")
        a("s_endpgm")

    def qpart(self):
        a = self.a
        self.stamp(0)
        if self.split2:
            l0 = a.newlabel("q2w")
            a(f"s_cmp_eq_u32 s{sL}, 0"); a(f"s_cbranch_scc1 {l0}")
            self.second_w()
            a.label(l0)
        Xp, S1, S2 = 14, 15, 36
        D, Du, Ab = 16, 20, 24
        a(f"v_cvt_pk_bf16_f32 v{Xp}, v{vX}, v{vX}")
        a(f"v_and_b32 v{S1}, 0xffff0000, v{Xp}")
        a(f"v_mul_f32 v{S2}, v{S1}, v{S1}")
        self.pv_gemv(Xp, 5, lambda i: vr(WQ+4*i, 4), D, Ab)
        self.reduce63([S1, S2], "v_add_f32")
        lu = a.newlabel("nou")
        a(f"s_cmp_ge_u32 s{sL}, 2"); a(f"s_cbranch_scc1 {lu}")
        for r in range(4): a(f"v_and_b32 v{32+r}, 0x3f803f80, v{vM[r]}")
        for i in range(5):
            c = "0" if i == 0 else vr(Du, 4)
            a(f"v_mfma_f32_16x16x32_bf16 {vr(Du,4)}, {vr(32,4)}, {vr(WQ+4*i,4)}, {c}")
        self.red_write(Du, 528)
        a.label(lu)
        a(f"v_readlane_b32 s{sA}, v{S1}, 63"); a(f"v_readlane_b32 s{sB_}, v{S2}, 63")
        a(f"v_writelane_b32 v{D}, s{sA}, 32"); a(f"v_writelane_b32 v{D+1}, s{sB_}, 32")
        self.red_write(D)
        t = 14
        a(f"v_lshrrev_b32 v{t}, 4, v{vL16}")
        a(f"v_and_b32 v15, 1, v{t}"); a(f"v_lshlrev_b32 v15, 4, v15")
        a(f"v_lshrrev_b32 v36, 1, v{t}"); a(f"v_add_u32 v15, v15, v36"); a(f"v_lshlrev_b32 v15, 4, v15")
        a(f"v_cmp_gt_u32 vcc, 32, v{t}"); a(f"v_mov_b32 v36, 512"); a(f"v_cndmask_b32 v{t}, v36, v15, vcc")
        a(f"s_lshl_b32 s{sTmp[0]}, s{sH}, 3"); a(f"s_add_u32 s{sTmp[0]}, s{sTmp[0]}, s{sJ}"); a(f"s_lshl_b32 s{sTmp[0]}, s{sTmp[0]}, 11")
        a(f"s_add_u32 s{sTmp[0]}, s{sTmp[0]}, {O_QP}")
        a("s_waitcnt lgkmcnt(0)"); a("s_barrier")
        lf = a.newlabel("qfin")
        a(f"s_cmp_lg_u32 s{sW}, 0"); a(f"s_cbranch_scc1 {lf}")
        G = 16
        self.red_final_read(G)
        a("s_waitcnt lgkmcnt(0)")
        self.sum4(G); self.tag([G, G+1, G+2, G+3])
        a("s_mov_b32 exec_hi, 1")
        self.local_stores([(G, t, sTmp[0], None)])
        a("s_mov_b32 exec_hi, -1")
        a(f"s_cmp_ge_u32 s{sL}, 2"); a(f"s_cbranch_scc1 {lf}")
        G2 = 32
        self.red_final_read(G2, 528)
        a(f"s_add_u32 s{sTmp[0]}, s{sTmp[0]}, 1024")
        a("s_waitcnt lgkmcnt(0)")
        self.sum4(G2); self.tag([G2, G2+1, G2+2, G2+3])
        a("s_mov_b32 exec_hi, 0")
        self.local_stores([(G2, t, sTmp[0], None)])
        a("s_mov_b32 exec_hi, -1")
        a.label(lf)
        self.stamp(1)
        ad, ad2, adu, adx = 14, 15, 56, 57
        Gq, Gs, Gu, Gx = 16, 32, 36, 52
        a(f"v_lshrrev_b32 v{ad}, 8, v{vKoff}"); a(f"v_lshlrev_b32 v{ad}, 11, v{ad}")
        a(f"v_and_b32 v{ad2}, s{sFF}, v{vKoff}"); a(f"v_or_b32 v{ad}, v{ad}, v{ad2}")
        a(f"v_lshlrev_b32 v{adu}, 1, v{ad2}")
        a(f"v_lshrrev_b32 v{ad2}, 4, v{vL16}"); a(f"v_and_b32 v{ad2}, 7, v{ad2}"); a(f"v_lshlrev_b32 v{ad2}, 11, v{ad2}")
        a(f"s_lshl_b32 s{sTmp[0]}, s{sH}, 14"); a(f"s_add_u32 s{sTmp[0]}, s{sTmp[0]}, {O_QP}")
        a(f"s_add_u32 s{sTmp[1]}, s{sTmp[0]}, 8192")
        def iss_q():
            for i in range(2):
                for hf in range(2):
                    a(f"buffer_load_dwordx4 {vr(Gq+8*i+4*hf,4)}, v{ad}, {W}, s{sTmp[i]} offen offset:{hf*256} sc1")
            a(f"buffer_load_dwordx4 {vr(Gs,4)}, v{ad2}, {W}, s{sTmp[0]} offen offset:512 sc1")
        def iss_u():
            for i in range(2):
                for hf in range(2):
                    a(f"buffer_load_dwordx4 {vr(Gu+8*i+4*hf,4)}, v{ad}, {W}, s{sTmp[i]} offen offset:{1024+hf*256} sc1")
        def iss_x():
            a(f"buffer_load_dwordx4 {vr(Gx,4)}, v{adx}, {W}, s{sTmp[3]} offen sc1")
        U = 36
        l_late = a.newlabel("qlate"); l_j = a.newlabel("qj")
        a(f"s_and_b32 s{sTmp[2]}, s{sL}, 1"); a(f"s_lshl_b32 s{sTmp[2]}, s{sTmp[2]}, 9"); a(f"s_add_u32 s{sTmp[2]}, s{sTmp[2]}, {L_U}")
        a(f"v_add_u32 v{adu}, s{sTmp[2]}, v{adu}")
        a(f"s_cmp_ge_u32 s{sL}, 2"); a(f"s_cbranch_scc1 {l_late}")
        base_regs = [Gq, Gq+4, Gq+8, Gq+12, Gs, Gu, Gu+4, Gu+8, Gu+12]
        if self.local:
            l_one = a.newlabel("qone"); l_u = a.newlabel("qu")
            a(f"s_cmp_eq_u32 s{sL}, 1"); a(f"s_cbranch_scc1 {l_one}")
            a(f"v_and_b32 v{adx}, 0x1f0, v{vL16}")
            a(f"s_lshl_b32 s{sTmp[3]}, s{sXG}, 9"); a(f"s_add_u32 s{sTmp[3]}, s{sTmp[3]}, {O_XCC}")
            self.poll(lambda: (iss_q(), iss_u(), iss_x()), base_regs + [Gx], site='q0')
            a(f"v_cmp_ne_u32 vcc, s{sXcc}, v{Gx}")
            a(f"s_cmp_eq_u64 vcc, 0"); a(f"s_cselect_b32 s{sLocal}, 1, 0")
            a(f"s_branch {l_u}")
            a.label(l_one)
            self.poll(lambda: (iss_q(), iss_u()), base_regs, site='q1')
            a.label(l_u)
        else:
            self.poll(lambda: (iss_q(), iss_u()), base_regs)
        for r in range(8): a(f"v_add_f32 v{Gu+r}, v{Gu+r}, v{Gu+8+r}")
        self.dpp_steps([Gu+r for r in range(8)], "v_add_f32", ["row_ror:4", "row_ror:8"])
        lw = a.newlabel("uw")
        a(f"s_cmp_lg_u32 s{sW}, 0"); a(f"s_cbranch_scc1 {lw}")
        self.exec_set(0x000f000f, 0x000f000f)
        a(f"ds_write_b128 v{adu}, {vr(U,4)}"); a(f"ds_write_b128 v{adu}, {vr(U+4,4)} offset:16")
        self.exec_all()
        a.label(lw)
        a(f"s_branch {l_j}")
        a.label(l_late)
        a(f"ds_read_b128 {vr(U,4)}, v{adu}"); a(f"ds_read_b128 {vr(U+4,4)}, v{adu} offset:16")
        self.poll(iss_q, [Gq, Gq+4, Gq+8, Gq+12, Gs])
        a("s_waitcnt lgkmcnt(0)")
        a.label(l_j)
        self.stamp(2)
        st = [Gs, Gs+1]
        adds = [f"v_add_f32 v{Gq+r}, v{Gq+r}, v{Gq+8+r}" for r in range(8)]
        seq = []
        for k, d in enumerate((self.X1, self.X2, self.HM)):
            seq += [f"v_add_f32_dpp v{r}, v{r}, v{r} {d} {DPPALL}" for r in st]
            seq += adds[3*k:3*k+3] if k < 2 else adds[6:]
        for s_ in seq: a(s_)
        a(f"v_mul_f32 v{Gs}, {f32hex(1/640)}, v{Gs}")
        ror4 = [f"v_add_f32_dpp v{Gq+r}, v{Gq+r}, v{Gq+r} row_ror:4 {DPPALL}" for r in range(8)]
        ror8 = [f"v_add_f32_dpp v{Gq+r}, v{Gq+r}, v{Gq+r} row_ror:8 {DPPALL}" for r in range(8)]
        a(f"v_mul_f32 v{Gs+1}, {f32hex(1/640)}, v{Gs+1}")
        for s_ in ror4[:4]: a(s_)
        a(f"v_fma_f32 v{Gs+1}, -v{Gs}, v{Gs}, v{Gs+1}")
        for s_ in ror4[4:]: a(s_)
        a(f"v_add_f32 v{Gs+1}, {f32hex(1e-5)}, v{Gs+1}")
        for s_ in ror8[:4]: a(s_)
        a(f"v_rsq_f32 v{Gs+1}, v{Gs+1}")
        for s_ in ror8[4:]: a(s_)
        a(f"v_mul_f32 v{Gs+1}, {f32hex(SC)}, v{Gs+1}")
        for r in range(8): a(f"v_fma_f32 v{Gq+r}, -v{Gs}, v{U+r}, v{Gq+r}")
        a(f"v_readfirstlane_b32 s{sSc}, v{Gs+1}")
        Qp = 24
        for r in range(4): a(f"v_cvt_pk_bf16_f32 v{Qp+r}, v{Gq+2*r}, v{Gq+2*r+1}")
        for t in range(4):
            for r in range(4):
                a(f"v_cndmask_b32 v{AT+4*t+r}, 0, v{Qp+r}, s[{sMask[t]}:{sMask[t]+1}]")

    def combine8(self, G, ML, tmp):
        a = self.a
        M, f, Ls = tmp, tmp+1, tmp+2
        a(f"v_max_f32_dpp v{M}, v{ML}, v{ML} row_ror:8 {DPPALL}")
        self.dpp_steps([M], "v_max_f32", ["b15", "b31"])
        a(f"v_readlane_b32 s{sA}, v{M}, 63")
        a(f"v_subrev_f32 v{f}, s{sA}, v{ML}"); a(f"v_exp_f32 v{f}, v{f}")
        a(f"v_mul_f32 v{Ls}, v{f}, v{ML+1}")
        for r in range(4): a(f"v_mul_f32 v{G+r}, v{f}, v{G+r}")
        a(f"v_add_f32_dpp v{Ls}, v{Ls}, v{Ls} row_ror:8 {DPPALL}")
        for r in range(4): a(f"v_add_f32_dpp v{G+r}, v{G+r}, v{G+r} row_ror:8 {DPPALL}")
        a(f"v_add_f32_dpp v{Ls}, v{Ls}, v{Ls} row_bcast:15 row_mask:0xa bank_mask:0xf")
        a(f"v_permlane32_swap_b32 v{G}, v{G+2}")
        a(f"v_permlane32_swap_b32 v{G+1}, v{G+3}")
        a(f"v_add_f32_dpp v{Ls}, v{Ls}, v{Ls} row_bcast:31 row_mask:0xc bank_mask:0xf")
        a(f"v_add_f32 v{G}, v{G}, v{G+2}")
        a(f"v_add_f32 v{G+1}, v{G+1}, v{G+3}")
        a(f"v_readlane_b32 s{sA}, v{Ls}, 63")
        a(f"v_permlane16_swap_b32 v{G}, v{G+1}")
        a(f"v_rcp_f32 v{Ls}, s{sA}")
        a(f"v_add_f32 v{G}, v{G}, v{G+1}")
        a(f"v_mul_f32 v{G}, v{G}, v{Ls}")

    def amiddle(self):
        a = self.a
        D = 16
        for t in range(4):
            c = "0" if t == 0 else vr(D, 4)
            a(f"v_mfma_f32_16x16x32_bf16 {vr(D,4)}, {vr(AT+4*t,4)}, {vr(WUK+4*t,4)}, {c}")
        a(f"v_lshrrev_b32 v14, 8, v{vL16}"); a("v_lshlrev_b32 v14, 4, v14")
        a(f"s_lshl_b32 s{sTmp[0]}, s{sH}, 11"); a(f"s_lshl_b32 s{sTmp[1]}, s{sJ}, 8"); a(f"s_add_u32 s{sTmp[0]}, s{sTmp[0]}, s{sTmp[1]}")
        a(f"s_lshl_b32 s{sTmp[1]}, s{sW}, 6"); a(f"s_add_u32 s{sTmp[0]}, s{sTmp[0]}, s{sTmp[1]}")
        a(f"s_add_u32 s{sTmp[0]}, s{sTmp[0]}, {O_QABS}")
        S, S2 = 20, 21
        a(f"v_mov_b32_dpp v{S}, v{D} quad_perm:[0,0,0,0] {DPPALL}")
        a(f"v_mov_b32_dpp v{S2}, v{D+2} quad_perm:[2,2,2,2] {DPPALL}")
        a(f"s_nop 0")
        a(f"v_add_f32_dpp v{S}, v{D+1}, v{S} quad_perm:[1,1,1,1] {DPPALL}")
        a(f"v_add_f32_dpp v{S2}, v{D+3}, v{S2} quad_perm:[3,3,3,3] {DPPALL}")
        a(f"v_add_f32 v{S}, v{S}, v{S2}")
        a(f"v_mul_f32 v{S}, s{sSc}, v{S}")
        G = 24
        for q in range(4): a(f"v_mov_b32_dpp v{G+q}, v{S} row_newbcast:{4*q} {DPPALL}")
        self.tag([G, G+1, G+2, G+3])
        self.exec_set(0x00010001, 0x00010001)
        a(f"buffer_store_dwordx4 {vr(G,4)}, v14, {W}, s{sTmp[0]} offen sc1")
        self.exec_all()
        self.stamp(3)
        if not self.pfnew: self.load_wuv()
        Gq = 16
        a(f"s_lshl_b32 s{sTmp[0]}, s{sGA}, 15"); a(f"s_lshl_b32 s{sTmp[1]}, s{sW}, 9"); a(f"s_add_u32 s{sTmp[0]}, s{sTmp[0]}, s{sTmp[1]}")
        a(f"s_add_u32 s{sTmp[0]}, s{sTmp[0]}, {O_QABS}")
        for i in range(1, 4): a(f"s_add_u32 s{sTmp[i]}, s{sTmp[0]}, {i*8192}")
        vA0, vB0, vAx = 52, 53, 54
        n, g = 48, 49
        a(f"v_lshrrev_b32 v{n}, 4, v{vL16}"); a(f"v_lshrrev_b32 v{g}, 4, v{n}"); a(f"v_and_b32 v{n}, 15, v{n}")
        a(f"v_and_b32 v50, 8, v{n}"); a(f"v_and_b32 v51, 3, v{n}"); a(f"v_lshl_or_b32 v50, v51, 1, v50")
        a(f"v_bfe_u32 v51, v{n}, 2, 1"); a(f"v_or_b32 v50, v50, v51")
        a(f"s_lshl_b32 s{sTmp[4]}, s{sW}, 14"); a(f"s_add_u32 s{sTmp[4]}, s{sTmp[4]}, {L_CKV}")
        a(f"v_lshlrev_b32 v51, 10, v{n}"); a(f"v_lshl_add_u32 v51, v{g}, 8, v51"); a(f"v_lshl_add_u32 v51, v50, 4, v51")
        a(f"v_add_u32 v{vA0}, s{sTmp[4]}, v51")
        a(f"v_mul_u32_u24 v{vB0}, 1040, v{n}"); a(f"v_lshl_add_u32 v{vB0}, v{g}, 8, v{vB0}"); a(f"v_add_u32 v{vB0}, {L_R0}, v{vB0}")
        a(f"v_mul_u32_u24 v51, 272, v{n}"); a(f"v_lshl_add_u32 v50, v{g}, 4, v51")
        a(f"s_lshl_b32 s{sTmp[4]}, s{sW}, 6"); a(f"s_add_u32 s{sTmp[4]}, s{sTmp[4]}, {L_ST}"); a(f"v_add_u32 v50, s{sTmp[4]}, v50")
        a(f"v_lshl_add_u32 v51, v{g}, 5, v51"); a(f"v_add_u32 v51, {L_ST}, v51")
        vC0, vC1, vX0, vX1 = 76, 77, 78, 79
        a(f"v_and_b32 v14, 3, v{n}"); a(f"v_lshrrev_b32 v15, 2, v{n}")
        a(f"v_and_b32 v55, 1, v{g}"); a(f"v_lshlrev_b32 v55, 3, v55"); a(f"v_lshl_add_u32 v55, v15, 1, v55")
        a(f"v_lshrrev_b32 v56, 1, v14"); a(f"v_xor_b32 v55, v55, v56")
        a(f"v_lshl_add_u32 v56, v{g}, 3, v15"); a(f"v_lshlrev_b32 v56, 10, v56")
        a(f"v_lshl_add_u32 v56, v55, 4, v56"); a(f"v_and_b32 v14, 1, v14"); a(f"v_lshl_add_u32 v56, v14, 3, v56")
        a(f"s_lshl_b32 s{sTmp[4]}, s{sW}, 8"); a(f"s_add_u32 s{sTmp[4]}, s{sTmp[4]}, {L_CKV}")
        a(f"v_add_u32 v{vC0}, s{sTmp[4]}, v56")
        a(f"v_add_u32 v{vC1}, 4096, v{vC0}"); a(f"v_xor_b32 v{vC1}, 16, v{vC1}")
        a(f"s_lshl_b32 s{sTmp[4]}, s{sW}, 8"); a(f"s_add_u32 s{sTmp[4]}, s{sTmp[4]}, {L_R0}")
        a(f"v_lshrrev_b32 v14, 9, v{vL16}"); a(f"v_and_b32 v57, 0x1f0, v{vL16}")
        a(f"v_lshrrev_b32 v15, 1, v57"); a(f"v_mul_u32_u24 v58, 1040, v14"); a(f"v_add_u32 v15, v15, v58"); a(f"v_add_u32 v15, s{sTmp[4]}, v15")
        a(f"v_lshl_add_u32 v57, v14, 11, v57")
        lg0 = a.newlabel("cg"); lg1 = a.newlabel("cg")
        a.label(lg0)
        a(f"s_cmp_ge_u32 s{sPos}, 16"); a(f"s_cbranch_scc1 {lg1}")
        self.stream_call()
        a(f"s_branch {lg0}")
        a.label(lg1)
        if self.sent:
            lsk = a.newlabel("nosent")
            if not self.sent1:
                a(f"s_cmp_lg_u32 s{sAct}, 0"); a(f"s_cbranch_scc1 {lsk}")
            a(f"v_lshrrev_b32 v14, 7, v{vL16}"); a(f"v_lshlrev_b32 v14, 11, v14"); a(f"v_and_b32 v58, 0x70, v{vL16}"); a(f"v_lshl_add_u32 v14, v58, 2, v14")
            def iss0():
                a(f"buffer_load_dwordx4 {vr(Gq,4)}, v14, {W}, s{sTmp[0]} offen sc1")
                a(f"buffer_load_dwordx4 {vr(Gq+4,4)}, v14, {W}, s{sTmp[2]} offen sc1")
            self.poll(iss0, [Gq, Gq+4], site='sent')
            a.label(lsk)
            self.stamp(15)
        def iss():
            for i in range(8):
                so = sTmp[i >> 1]
                if i & 1:
                    a(f"s_add_u32 s{sTmp[5-1]}, s{so}, 4096"); so = sTmp[4]
                a(f"buffer_load_dwordx4 {vr(Gq+4*i,4)}, v57, {W}, s{so} offen sc1")
        self.poll(iss, [Gq+4*i for i in range(8)], site='h4')
        self.stampval(30, sSpin); self.stampval(31, sPos)
        self.stamp(4)
        if self.pfnew: self.load_wuv()
        for i in range(8):
            b = Gq + 4*i
            a(f"v_cvt_pk_bf16_f32 v{b}, v{b}, v{b+1}"); a(f"v_cvt_pk_bf16_f32 v{b+1}, v{b+2}, v{b+3}")
            a(f"ds_write_b64 v15, {vr(b,2)} offset:{i*2*1040}")
        a("s_waitcnt lgkmcnt(0)"); a("s_barrier")
        self.stamp(16)
        if "S" in self.xcalls: self.topup()
        AB = 16
        Ds = 56
        def rd(st):
            b = AB + 8 * (st % 4)
            if st == 0: a(f"ds_read_b128 {vr(b,4)}, v{vA0}")
            else:
                a(f"v_xor_b32 v{vAx}, {st<<4}, v{vA0}"); a(f"ds_read_b128 {vr(b,4)}, v{vAx}")
            a(f"ds_read_b128 {vr(b+4,4)}, v{vB0} offset:{st*16}")
        for st in range(4): rd(st)
        for st in range(16):
            rem = min(3, 15 - st)
            a(f"s_waitcnt lgkmcnt({2*rem})")
            b = AB + 8 * (st % 4)
            c = "0" if st == 0 else vr(Ds, 4)
            a(f"v_mfma_f32_16x16x32_bf16 {vr(Ds,4)}, {vr(b,4)}, {vr(b+4,4)}, {c}")
            if st + 4 < 16: rd(st + 4)
        a(f"ds_write_b128 v50, {vr(Ds,4)}")
        a("s_waitcnt lgkmcnt(0)"); a("s_barrier")
        self.stamp(17)
        SS = 16
        for u in range(2):
            for hf in range(2):
                a(f"ds_read_b128 {vr(SS+8*u+4*hf,4)}, v51 offset:{u*128+hf*16}")
        if self.pfnew: self.load_wo(pWoA)
        DT = 44; AF = 56
        m, l, t1, t2 = 32, 33, 34, 35
        a("s_waitcnt lgkmcnt(0)")
        a(f"v_max3_f32 v{m}, v{SS}, v{SS+1}, v{SS+2}"); a(f"v_max3_f32 v{t1}, v{SS+3}, v{SS+4}, v{SS+5}")
        a(f"v_max3_f32 v{m}, v{m}, v{SS+6}, v{SS+7}"); a(f"v_max3_f32 v{t1}, v{t1}, v{SS+8}, v{SS+9}")
        a(f"v_max3_f32 v{m}, v{m}, v{SS+10}, v{SS+11}"); a(f"v_max3_f32 v{t1}, v{t1}, v{SS+12}, v{SS+13}")
        a(f"v_max3_f32 v{m}, v{m}, v{SS+14}, v{SS+15}"); a(f"v_max_f32 v{m}, v{m}, v{t1}")
        for sw in ("v_permlane16_swap_b32", "v_permlane32_swap_b32"):
            a(f"v_mov_b32 v{t1}, v{m}"); a(f"{sw} v{m}, v{t1}"); a(f"v_max_f32 v{m}, v{m}, v{t1}")
        for k in range(16): a(f"v_sub_f32 v{SS+k}, v{SS+k}, v{m}")
        for k in range(16): a(f"v_exp_f32 v{SS+k}, v{SS+k}")
        P = 36
        for k in range(8): a(f"v_cvt_pk_bf16_f32 v{P+k}, v{SS+2*k}, v{SS+2*k+1}")
        for k in range(8): a(f"v_add_f32 v{SS+k}, v{SS+k}, v{SS+8+k}")
        for k in range(4): a(f"v_add_f32 v{SS+k}, v{SS+k}, v{SS+4+k}")
        a(f"v_add_f32 v{SS}, v{SS}, v{SS+1}"); a(f"v_add_f32 v{SS+2}, v{SS+2}, v{SS+3}"); a(f"v_add_f32 v{l}, v{SS}, v{SS+2}")
        self.stamp(18)
        if "smax" in self.xcalls: self.topup()
        AF = 16
        steps = [(t, u) for t in range(8) for u in range(2)]
        def rdA(k):
            t, u = steps[k]; b = AF + 4 * (k % 4)
            if u == 0:
                if t == 0:
                    a(f"v_mov_b32 v{vX0}, v{vC0}"); a(f"v_mov_b32 v{vX1}, v{vC1}")
                else:
                    a(f"v_xor_b32 v{vX0}, {t<<5}, v{vC0}"); a(f"v_xor_b32 v{vX1}, {t<<5}, v{vC1}")
            a(f"ds_read_b64_tr_b16 {vr(b,2)}, v{vX0} offset:{u*32768}")
            a(f"ds_read_b64_tr_b16 {vr(b+2,2)}, v{vX1} offset:{u*32768}")
        for k in range(4): rdA(k)
        for sw in ("v_permlane16_swap_b32", "v_permlane32_swap_b32"):
            a(f"v_mov_b32 v{t1}, v{l}"); a(f"{sw} v{l}, v{t1}"); a(f"v_add_f32 v{l}, v{l}, v{t1}")
        a(f"v_lshrrev_b32 v14, 8, v{vL16}"); a(f"v_lshlrev_b32 v14, 17, v14"); a(f"v_and_b32 v15, 0xf0, v{vL16}"); a(f"v_add_u32 v14, v14, v15")
        a(f"s_lshl_b32 s{sTmp[0]}, s{sXG}, 20"); a(f"s_lshl_b32 s{sTmp[1]}, s{sGA}, 19"); a(f"s_add_u32 s{sTmp[0]}, s{sTmp[0]}, s{sTmp[1]}")
        a(f"s_lshl_b32 s{sTmp[1]}, s{sW}, 15"); a(f"s_add_u32 s{sTmp[0]}, s{sTmp[0]}, s{sTmp[1]}")
        a(f"s_and_b32 s{sTmp[2]}, s{sS}, 15"); a(f"s_lshl_b32 s{sTmp[1]}, s{sTmp[2]}, 9"); a(f"s_add_u32 s{sTmp[0]}, s{sTmp[0]}, s{sTmp[1]}")
        a(f"s_add_u32 s{sTmp[0]}, s{sTmp[0]}, {O_C1}")
        a(f"s_lshl_b32 s{sTmp[3]}, s{sXG}, 14"); a(f"s_lshl_b32 s{sTmp[1]}, s{sGA}, 13"); a(f"s_add_u32 s{sTmp[3]}, s{sTmp[3]}, s{sTmp[1]}")
        a(f"s_lshl_b32 s{sTmp[1]}, s{sW}, 9"); a(f"s_add_u32 s{sTmp[3]}, s{sTmp[3]}, s{sTmp[1]}")
        a(f"s_lshl_b32 s{sTmp[1]}, s{sTmp[2]}, 5"); a(f"s_add_u32 s{sTmp[3]}, s{sTmp[3]}, s{sTmp[1]}")
        a(f"s_add_u32 s{sTmp[3]}, s{sTmp[3]}, {O_ML1}")
        a(f"v_bfe_u32 v15, v{vL16}, 6, 2"); a(f"v_lshlrev_b32 v15, 11, v15")
        a(f"v_bfe_u32 v32+2, v{vL16}, 8, 1".replace("v32+2", "v34")); a(f"v_lshl_add_u32 v15, v34, 4, v15")
        MG = 76 - 0
        a(f"s_mov_b32 vcc_lo, 0xffff0000"); a("s_mov_b32 vcc_hi, 0")
        a(f"v_cndmask_b32 v34, v32, v33, vcc")
        mlops = [f"v_mov_b32_dpp v32, v34 quad_perm:[0,0,0,0] {DPPALL}", f"v_mov_b32_dpp v33, v34 quad_perm:[1,1,1,1] {DPPALL}",
                 f"v_mov_b32_dpp v35, v34 quad_perm:[3,3,3,3] {DPPALL}", f"v_mov_b32_dpp v34, v34 quad_perm:[2,2,2,2] {DPPALL}"]
        for k in range(16):
            t, u = steps[k]; b = AF + 4 * (k % 4)
            rem = min(3, 15 - k)
            a(f"s_waitcnt lgkmcnt({2*rem})")
            c = "0" if u == 0 else vr(DT+4*t, 4)
            a(f"v_mfma_f32_16x16x32_bf16 {vr(DT+4*t,4)}, {vr(P+4*u,4)}, {vr(b,4)}, {c}")
            if k + 4 < 16: rdA(k + 4)
            if k == 0:
                for x_ in mlops: a(x_)
            if k == 2: self.tag([32, 33, 34, 35])
            if u == 1 and t >= 2: self.tag([DT+4*(t-2)+r for r in range(4)])
        self.tag([DT+4*6+r for r in range(4)]); self.tag([DT+4*7+r for r in range(4)])
        self.stamp(19)
        items = []
        for t in range(8):
            def pre(t=t): a(f"s_add_u32 s{sTmp[1]}, s{sTmp[0]}, {(t>>1)*8192+(t&1)*256}")
            items.append((DT+4*t, 14, sTmp[1], pre))
        def pre_ml(): a("s_mov_b32 exec_lo, 0x11111111"); a("s_mov_b32 exec_hi, 0")
        items.append((32, 15, sTmp[3], pre_ml))
        self.local_stores(items)
        self.exec_all()
        self.stamp(5)
        G, MM, LL = 16, 48, 52
        a(f"v_lshrrev_b32 v14, 4, v{vL16}"); a(f"v_and_b32 v15, 7, v14"); a(f"v_lshrrev_b32 v14, 5, v14")
        a(f"v_lshl_add_u32 v14, v15, 1, v14"); a(f"v_lshlrev_b32 v14, 5, v14")
        a(f"s_lshl_b32 s{sTmp[0]}, s{sXG}, 5"); a(f"s_add_u32 s{sTmp[0]}, s{sTmp[0]}, s{sI}")
        a(f"s_lshl_b32 s{sTmp[2]}, s{sTmp[0]}, 9"); a(f"s_add_u32 s{sTmp[2]}, s{sTmp[2]}, {O_ML1}")
        a(f"s_lshl_b32 s{sTmp[0]}, s{sTmp[0]}, 2"); a(f"s_add_u32 s{sTmp[0]}, s{sTmp[0]}, s{sW}")
        a(f"s_lshl_b32 s{sTmp[0]}, s{sTmp[0]}, 13"); a(f"s_add_u32 s{sTmp[0]}, s{sTmp[0]}, {O_C1}")
        a(f"s_add_u32 s{sTmp[1]}, s{sTmp[0]}, 4096")
        def issML():
            a(f"buffer_load_dwordx4 {vr(MM,4)}, v14, {W}, s{sTmp[2]} offen sc1")
            a(f"buffer_load_dwordx4 {vr(LL,4)}, v14, {W}, s{sTmp[2]} offen offset:16 sc1")
        lsk = a.newlabel("noml")
        if not self.mlsent:
            a(f"s_cmp_lg_u32 s{sAct}, 0"); a(f"s_cbranch_scc1 {lsk}")
        if not self.mltail:
            a(f"s_cmp_ge_u32 s{sL}, 2"); a(f"s_cbranch_scc1 {lsk}")
        self.poll(issML, [MM, LL], site='ml1')
        a.label(lsk)
        self.stamp(20)
        Mx, wv, den, t1 = 56, 60, 64, 68
        chk = 72
        lp = a.newlabel("sw1"); ns = a.newlabel("sw1n"); jn = a.newlabel("sw1j"); dn = a.newlabel("sw1d"); ns2 = a.newlabel("sw1m"); jn2 = a.newlabel("sw1k")
        a(f"s_mov_b32 s{sSpin}, 0")
        if self.bud is not None: a(f"s_mov_b32 s{sBud}, {self.bud.get('sw1', self.bud.get('*', 8))}")
        if self.pre.get('sw1'): a(f"s_sleep {self.pre['sw1']}")
        a.label(lp)
        issML()
        for i in range(8):
            a(f"buffer_load_dwordx4 {vr(G+4*i,4)}, v{vL16}, {W}, s{sTmp[i>>2]} offen offset:{(i&3)*1024} sc1")
        a(f"s_mov_b32 s{sYoung}, 8")
        self.dwait(8, 10 if self.addn else 0, 'sw1')
        a(f"s_sub_u32 s{sTmp[4]}, s{sYoung}, 8")
        for r in range(4): a(f"v_xor_b32 v{MM+r}, s{sT[r]}, v{MM+r}")
        for r in range(4): a(f"v_xor_b32 v{LL+r}, s{sT[r]}, v{LL+r}")
        a(f"v_or3_b32 v{chk}, v{MM}, v{MM+1}, v{MM+2}"); a(f"v_or3_b32 v{chk}, v{chk}, v{MM+3}, v{LL}")
        a(f"v_or3_b32 v{chk}, v{chk}, v{LL+1}, v{LL+2}"); a(f"v_or_b32 v{chk}, v{chk}, v{LL+3}")
        R4 = range(4)
        for r in R4: a(f"v_max_f32_dpp v{Mx+r}, v{MM+r}, v{MM+r} {self.X1} {DPPALL}")
        self.dpp_steps([Mx+r for r in R4], "v_max_f32", [self.X2, self.HM])
        for r in R4: a(f"v_mov_b32 v{t1+r}, v{Mx+r}")
        for r in R4: a(f"v_permlane32_swap_b32 v{Mx+r}, v{t1+r}")
        for r in R4: a(f"v_max_f32 v{Mx+r}, v{Mx+r}, v{t1+r}")
        for r in R4: a(f"v_sub_f32 v{wv+r}, v{MM+r}, v{Mx+r}")
        for r in R4: a(f"v_exp_f32 v{wv+r}, v{wv+r}")
        for r in R4: a(f"v_mul_f32 v{den+r}, v{wv+r}, v{LL+r}")
        self.dpp_steps([den+r for r in R4], "v_add_f32", [self.X1, self.X2, self.HM])
        for r in R4: a(f"v_mov_b32 v{t1+r}, v{den+r}")
        for r in R4: a(f"v_permlane32_swap_b32 v{den+r}, v{t1+r}")
        for r in R4: a(f"v_add_f32 v{den+r}, v{den+r}, v{t1+r}")
        if self.mode == "co":
            a(f"s_cmp_eq_u32 s{sTmp[4]}, 0"); a(f"s_cbranch_scc1 {ns2}")
            a(f"s_mov_b32 s{sYoung}, s{sTmp[4]}")
            a(f"s_swappc_b64 s[{sRET2}:{sRET2+1}], s[{sDW}:{sDW+1}]")
            a(f"s_branch {jn2}")
            a.label(ns2)
        self.dwait(0, 0, 'sw1')
        a.label(jn2)
        dw = [G + i for i in range(32)]
        for k, r in enumerate(dw): a(f"v_xor_b32 v{r}, s{sT[k % 4]}, v{r}")
        a(f"v_or3_b32 v{vT0}, v{dw[0]}, v{dw[1]}, v{chk}"); a(f"v_or3_b32 v{vT0+1}, v{dw[2]}, v{dw[3]}, v{dw[4]}")
        k = 5; tog = 0
        while k < 31:
            tgt = vT0 + tog
            a(f"v_or3_b32 v{tgt}, v{tgt}, v{dw[k]}, v{dw[k+1]}"); k += 2; tog ^= 1
        a(f"v_or3_b32 v{vT0}, v{vT0}, v{vT0+1}, v{dw[31]}")
        a(f"v_and_b32 v{vT0}, s{sFF}, v{vT0}")
        a(f"v_cmp_ne_u32 vcc, 0, v{vT0}")
        a(f"s_cbranch_vccz {dn}")
        a(f"s_add_u32 s{sSpin}, s{sSpin}, 1"); a(f"s_cmp_lt_u32 s{sSpin}, {SPIN_MAX}"); a(f"s_cbranch_scc1 {lp}")
        a(f"s_mov_b32 s{sErr}, 1")
        a.label(dn)
        self.stampval(24, sSpin); self.stampval(25, sPos)
        self.stamp(6)
        acc = 48
        for i in range(8):
            for r in range(4):
                op = "v_mul_f32_dpp" if i == 0 else "v_fmac_f32_dpp"
                a(f"{op} v{acc+r}, v{wv+r}, v{G+4*i+r} row_newbcast:{i} {DPPALL}")
        a(f"v_bfe_u32 v14, v{vL16}, 8, 1"); a(f"v_lshlrev_b32 v14, 11, v14"); a(f"v_and_b32 v15, 0xf0, v{vL16}"); a(f"v_add_u32 v14, v14, v15")
        for r in R4: a(f"v_mov_b32 v{t1+r}, v{acc+r}")
        a(f"s_lshr_b32 s{sTmp[0]}, s{sI}, 2"); a(f"s_lshl_b32 s{sTmp[0]}, s{sTmp[0]}, 16")
        a(f"s_and_b32 s{sTmp[1]}, s{sI}, 3"); a(f"s_lshl_b32 s{sTmp[1]}, s{sTmp[1]}, 14"); a(f"s_add_u32 s{sTmp[0]}, s{sTmp[0]}, s{sTmp[1]}")
        for r in R4: a(f"v_permlane32_swap_b32 v{acc+r}, v{t1+r}")
        a(f"s_lshl_b32 s{sTmp[1]}, s{sW}, 12"); a(f"s_add_u32 s{sTmp[0]}, s{sTmp[0]}, s{sTmp[1]}")
        a(f"s_lshl_b32 s{sTmp[1]}, s{sXG}, 8"); a(f"s_add_u32 s{sTmp[0]}, s{sTmp[0]}, s{sTmp[1]}")
        for r in R4: a(f"v_add_f32 v{acc+r}, v{acc+r}, v{t1+r}")
        a(f"s_add_u32 s{sTmp[0]}, s{sTmp[0]}, {O_C2}")
        self.tag([acc, acc+1, acc+2, acc+3])
        a("s_mov_b32 exec_hi, 0")
        a(f"buffer_store_dwordx4 {vr(acc,4)}, v14, {W}, s{sTmp[0]} offen sc1")
        a("s_mov_b32 exec_hi, -1")
        lm = a.newlabel("ml2")
        a(f"s_and_b32 s{sTmp[1]}, s{sI}, 3"); a(f"s_or_b32 s{sTmp[1]}, s{sTmp[1]}, s{sW}"); a(f"s_cmp_lg_u32 s{sTmp[1]}, 0"); a(f"s_cbranch_scc1 {lm}")
        for r in (1, 2, 3):
            a(f"s_mov_b64 vcc, {1 << r}")
            a(f"v_cndmask_b32 v{Mx}, v{Mx}, v{Mx+r}, vcc"); a(f"v_cndmask_b32 v{den}, v{den}, v{den+r}, vcc")
        a(f"v_mov_b32 v{Mx+1}, v{den}"); a(f"v_mov_b32 v{Mx+2}, 0"); a(f"v_mov_b32 v{Mx+3}, 0")
        self.tag([Mx, Mx+1, Mx+2, Mx+3])
        a(f"s_lshl_b32 s{sTmp[1]}, s{sI}, 7"); a(f"s_lshl_b32 s{sTmp[2]}, s{sXG}, 4"); a(f"s_add_u32 s{sTmp[1]}, s{sTmp[1]}, s{sTmp[2]}")
        a(f"s_add_u32 s{sTmp[1]}, s{sTmp[1]}, {O_ML2}")
        a(f"v_lshlrev_b32 v15, 3, v{vL16}")
        a("s_mov_b64 exec, 15")
        a(f"buffer_store_dwordx4 {vr(Mx,4)}, v15, {W}, s{sTmp[1]} offen sc1")
        self.exec_all()
        a.label(lm)
        self.stamp(21)
        if not self.pfnew: self.load_wo(pWoA)
        G0, G1, M0, M1 = 16, 20, 24, 28
        a(f"v_bfe_u32 v15, v{vL16}, 6, 2")
        a(f"v_bfe_u32 v14, v{vL16}, 4, 2"); a(f"v_lshlrev_b32 v14, 2, v14"); a(f"v_lshrrev_b32 v32, 8, v{vL16}"); a(f"v_add_u32 v14, v14, v32")
        a(f"v_lshlrev_b32 v14, 4, v14"); a(f"v_lshl_add_u32 v14, v15, 8, v14")
        a(f"v_lshlrev_b32 v15, 4, v15")
        a(f"s_lshr_b32 s{sTmp[0]}, s{sH}, 2"); a(f"s_lshl_b32 s{sTmp[0]}, s{sTmp[0]}, 16"); a(f"s_lshl_b32 s{sTmp[1]}, s{sJ}, 13"); a(f"s_add_u32 s{sTmp[0]}, s{sTmp[0]}, s{sTmp[1]}")
        a(f"s_lshl_b32 s{sTmp[1]}, s{sW}, 11"); a(f"s_add_u32 s{sTmp[0]}, s{sTmp[0]}, s{sTmp[1]}"); a(f"s_add_u32 s{sTmp[0]}, s{sTmp[0]}, {O_C2}")
        a(f"s_lshl_b32 s{sTmp[2]}, s{sH}, 7"); a(f"s_add_u32 s{sTmp[2]}, s{sTmp[2]}, {O_ML2}")
        def iss2():
            a(f"buffer_load_dwordx4 {vr(M0,4)}, v15, {W}, s{sTmp[2]} offen sc1")
            a(f"buffer_load_dwordx4 {vr(M1,4)}, v15, {W}, s{sTmp[2]} offen offset:64 sc1")
            a(f"buffer_load_dwordx4 {vr(G0,4)}, v14, {W}, s{sTmp[0]} offen sc1")
            a(f"buffer_load_dwordx4 {vr(G1,4)}, v14, {W}, s{sTmp[0]} offen offset:1024 sc1")
        self.poll(iss2, [M0, M1, G0, G1], site='h5b')
        self.stampval(26, sSpin); self.stampval(27, sPos)
        self.stamp(14)
        lsel = [a.newlabel("sel") for _ in range(4)]; lj = a.newlabel("selj")
        Mx, f0, f1, Ls = 32, 33, 34, 35
        a(f"v_max_f32 v{Mx}, v{M0}, v{M1}")
        a(f"s_and_b32 s{sTmp[1]}, s{sH}, 3")
        for r in (1, 2, 3):
            a(f"s_cmp_eq_u32 s{sTmp[1]}, {r}"); a(f"s_cbranch_scc1 {lsel[r]}")
        a(f"s_branch {lj}")
        for r in (1, 2, 3):
            a.label(lsel[r])
            a(f"v_mov_b32 v{G0}, v{G0+r}"); a(f"v_mov_b32 v{G1}, v{G1+r}")
            if r < 3: a(f"s_branch {lj}")
        a.label(lj)
        self.dpp_steps([Mx], "v_max_f32", ["row_ror:4", "row_ror:8"])
        a(f"v_sub_f32 v{f0}, v{M0}, v{Mx}"); a(f"v_sub_f32 v{f1}, v{M1}, v{Mx}")
        a(f"v_exp_f32 v{f0}, v{f0}"); a(f"v_exp_f32 v{f1}, v{f1}")
        a(f"v_mul_f32 v{Ls}, v{f0}, v{M0+1}"); a(f"v_mul_f32 v{G0}, v{f0}, v{G0}")
        a(f"v_fmac_f32 v{Ls}, v{f1}, v{M1+1}"); a(f"v_fmac_f32 v{G0}, v{f1}, v{G1}")
        self.dpp_steps([Ls, G0], "v_add_f32", ["row_ror:4", "row_ror:8"])
        a(f"v_rcp_f32 v{Ls}, v{Ls}")
        a(f"v_mul_f32 v{G0}, v{G0}, v{Ls}")
        Xp = 14
        a(f"v_cvt_pk_bf16_f32 v{Xp}, v{G0}, v{G0}")
        D, Ab = 16, 20
        self.pv_gemv(Xp, 4, lambda i: vr(WUV+4*i, 4), D, Ab)
        self.red_write(D)
        self.row_slot_addr()
        a("s_waitcnt lgkmcnt(0)"); a("s_barrier")
        lf = a.newlabel("uvfin")
        a(f"s_cmp_lg_u32 s{sW}, 0"); a(f"s_cbranch_scc1 {lf}")
        G = 16
        self.red_final_read(G)
        a(f"s_mov_b32 s{sA}, {f32hex(0.125)}")
        a("s_waitcnt lgkmcnt(0)")
        self.sum4(G)
        a(f"v_writelane_b32 v{G}, 0, 32"); a(f"v_writelane_b32 v{G+1}, s{sA}, 32")
        self.tag([G, G+1, G+2, G+3])
        a("s_mov_b32 exec_hi, 1")
        self.local_stores([(G, vL16, sTmp[0], None)])
        a("s_mov_b32 exec_hi, -1")
        a.label(lf)
        self.stamp(7)

    def check_inline(self, regs, ok_label):
        a = self.a
        acc, acc2 = vT0, vT0 + 1
        dw = [g + i for g in regs for i in range(4)]
        for k, r in enumerate(dw): a(f"v_xor_b32 v{r}, s{sT[k % 4]}, v{r}")
        a(f"v_or3_b32 v{acc}, v{dw[0]}, v{dw[1]}, v{dw[2]}")
        a(f"v_or3_b32 v{acc2}, v{dw[3]}, v{dw[4]}, v{dw[5]}")
        k = 6; tog = 0
        while k < len(dw):
            tgt = acc if tog == 0 else acc2
            a(f"v_or3_b32 v{tgt}, v{tgt}, v{dw[k]}, v{dw[k+1]}"); k += 2; tog ^= 1
        a(f"v_or_b32 v{acc}, v{acc}, v{acc2}")
        a(f"v_and_b32 v{acc}, s{sFF}, v{acc}")
        a(f"v_cmp_ne_u32 vcc, 0, v{acc}")
        a(f"s_cbranch_vccz {ok_label}")

    def row_slot_addr(self):
        a = self.a
        a(f"s_lshl_b32 s{sTmp[0]}, s{sH}, 3"); a(f"s_add_u32 s{sTmp[0]}, s{sTmp[0]}, s{sJ}"); a(f"s_lshl_b32 s{sTmp[0]}, s{sTmp[0]}, 10")
        a(f"s_add_u32 s{sTmp[0]}, s{sTmp[0]}, {O_ROW}")

    def bmiddle(self):
        a = self.a
        k = self.kblk
        if self.mode == "co":
            l0 = a.newlabel("kw"); l1 = a.newlabel("kw")
            a.label(l0)
            a(f"s_cmp_ge_u32 s{sPos}, {80+self.keep}"); a(f"s_cbranch_scc1 {l1}")
            self.stream_call()
            a(f"s_waitcnt vmcnt({self.keep})")
            a(f"s_branch {l0}")
            a.label(l1)
            a(f"s_waitcnt vmcnt({self.keep})")
        self.stampval(24, sPos)
        self.stamp(16)
        if not self.vsplit or self.woqk: self.wo_setup(pWoB)
        Db = [16, 20, 24]; SB = 28; Tt = 14
        def redops(b):
            D = Db[b % 3]; S = SB + b
            return [f"v_mov_b32_dpp v{S}, v{D} quad_perm:[0,0,0,0] {DPPALL}",
                    f"v_mov_b32_dpp v{Tt}, v{D+2} quad_perm:[2,2,2,2] {DPPALL}",
                    f"v_add_f32_dpp v{S}, v{D+1}, v{S} quad_perm:[1,1,1,1] {DPPALL}",
                    f"v_add_f32_dpp v{Tt}, v{D+3}, v{Tt} quad_perm:[3,3,3,3] {DPPALL}",
                    f"v_add_f32 v{S}, v{S}, v{Tt}"]
        for b in range(16):
            D = Db[b % 3]
            ro = redops(b - 2) if b >= 2 else []
            for t in range(4):
                c = "0" if t == 0 else vr(D, 4)
                a(f"v_mfma_f32_16x16x32_bf16 {vr(D,4)}, {vr(AT+4*t,4)}, {ar(16*b+4*t,4)}, {c}")
                if ro: a(ro[t])
                if self.vsplit:
                    if self.woqk and t == 1 and b < 6: self.wo_one(b)
                    if t == 2 and (6 if self.woqk else 0) <= b < (10 if self.woqk else 4): self.vtr_one(4 + b - (6 if self.woqk else 0))
                else:
                    if t == 1 and b < 8: self.pf_guard(lambda: self.vtr_one(b))
                    if t == 2 and 8 <= b < 14: self.pf_guard(lambda: self.wo_one(b - 8))
            if ro: a(ro[4])
            if b in self.qkcalls: self.topup(self.dq)
        r14, r15 = redops(14), redops(15)
        r15 = [x.replace(f"v{Tt}", "v15") for x in r15]
        for x14, x15 in zip(r14, r15):
            a(x14); a(x15)
        self.stamp(3)
        m, m2 = 14, 15
        a(f"v_max3_f32 v{m}, v{SB}, v{SB+1}, v{SB+2}"); a(f"v_max3_f32 v{m2}, v{SB+3}, v{SB+4}, v{SB+5}")
        a(f"v_max3_f32 v{m}, v{m}, v{SB+6}, v{SB+7}"); a(f"v_max3_f32 v{m2}, v{m2}, v{SB+8}, v{SB+9}")
        a(f"v_max3_f32 v{m}, v{m}, v{SB+10}, v{SB+11}"); a(f"v_max3_f32 v{m2}, v{m2}, v{SB+12}, v{SB+13}")
        a(f"v_max3_f32 v{m}, v{m}, v{SB+14}, v{SB+15}"); a(f"v_max_f32 v{m}, v{m}, v{m2}")
        self.dpp_steps([m], "v_max_f32", ["row_ror:4", "row_ror:8", "b15", "b31"])
        a(f"v_readlane_b32 s{sA}, v{m}, 63")
        a(f"v_mov_b32 v{m2}, s{sSc}")
        a(f"v_mul_f32 v{m}, s{sA}, v{m2}")
        a(f"v_readfirstlane_b32 s{sA}, v{m}")
        for q in range(16): a(f"v_fma_f32 v{SB+q}, v{SB+q}, s{sSc}, -v{m}")
        for q in range(16): a(f"v_exp_f32 v{SB+q}, v{SB+q}")
        l, l2 = 14, 15
        a(f"v_add_f32 v{l}, v{SB}, v{SB+1}"); a(f"v_add_f32 v{l2}, v{SB+2}, v{SB+3}")
        for q in range(4, 16, 2):
            a(f"v_add_f32 v{l}, v{l}, v{SB+q}"); a(f"v_add_f32 v{l2}, v{l2}, v{SB+q+1}")
        a(f"v_add_f32 v{l}, v{l}, v{l2}")
        pk = [f"v_cvt_pk_bf16_f32 v{SB+q}, v{SB+q}, v{SB+q}" for q in range(16)]
        red = [f"v_add_f32_dpp v{l}, v{l}, v{l} row_ror:4 {DPPALL}", f"v_add_f32_dpp v{l}, v{l}, v{l} row_ror:8 {DPPALL}",
               f"v_add_f32_dpp v{l}, v{l}, v{l} row_bcast:15 row_mask:0xa bank_mask:0xf", f"v_add_f32_dpp v{l}, v{l}, v{l} row_bcast:31 row_mask:0xc bank_mask:0xf"]
        for i in range(4):
            for x_ in pk[4*i:4*i+2]: a(x_)
            a(red[i])
            for x_ in pk[4*i+2:4*i+4]: a(x_)
        a(f"v_readlane_b32 s{sB_}, v{l}, 63")
        self.stamp(4)
        if self.mode == "co":
            self.drain(self.keep)
            a("s_waitcnt vmcnt(16)")
        Ab, Do = 44, 52
        LB = [16, 20, 24, 56]
        a(f"s_lshl_b32 s{sTmp[0]}, s{sW}, 14"); a(f"v_add_u32 v15, s{sTmp[0]}, v{vL16}")
        if L_VL: a(f"v_add_u32 v15, {L_VL}, v15")
        order = [(b, u) for b in range(10) for u in range(4)] + [(b, u) for b in range(10, 14) for u in range(4)] + [(b, u) for b in (14, 15) for u in range(4)]
        def build(kk):
            b, u = order[kk]; A = Ab + 4 * (kk % 2)
            for r in range(4):
                a(f"v_and_b32_dpp v{A+r}, v{SB+b}, v{vM[r]} row_newbcast:{4*u} {DPPALL}")
        def bop(kk):
            b, u = order[kk]
            if b < 10: return vr(VRES+16*b+4*u, 4)
            if b < 14: return vr(LB[u], 4)
            return vr(self.vtr_reg(b, u), 4)
        def ldsrd(b, u):
            a(f"ds_read_b128 {vr(LB[u],4)}, v15 offset:{((b-10)*4+u)*1024}")
        build(0); build(1)
        for kk in range(len(order)):
            b, u = order[kk]
            if (b, u) == (8, 0):
                self.stamp(17)
                a("s_waitcnt vmcnt(0)")
                self.stamp(18)
                for uu in range(4): ldsrd(10, uu)
            if 10 <= b < 14: a(f"s_waitcnt lgkmcnt(3)" if not (b == 13 and u > 0) else f"s_waitcnt lgkmcnt({3-u})")
            A = Ab + 4 * (kk % 2)
            c = "0" if kk == 0 else vr(Do, 4)
            a(f"v_mfma_f32_16x16x32_bf16 {vr(Do,4)}, {vr(A,4)}, {bop(kk)}, {c}")
            if 10 <= b < 13: ldsrd(b + 1, u)
            if kk + 2 < len(order): build(kk + 2)
        self.row_slot_addr()
        a(f"v_writelane_b32 v{Do}, s{sA}, 32"); a(f"v_writelane_b32 v{Do+1}, s{sB_}, 32")
        self.red_write(Do)
        a("s_waitcnt lgkmcnt(0)"); a("s_barrier")
        self.stamp(5)
        lf = a.newlabel("bfin")
        a(f"s_cmp_lg_u32 s{sW}, 0"); a(f"s_cbranch_scc1 {lf}")
        G = 16; MLr = 32
        a(f"v_mov_b32 v14, {L_RED+512}")
        for w in range(4): a(f"ds_read_b64 {vr(MLr+2*w,2)}, v14 offset:{w*RSTR}")
        self.red_final_read(G)
        a("s_waitcnt lgkmcnt(4)")
        M = 40
        a(f"v_max3_f32 v{M}, v{MLr}, v{MLr+2}, v{MLr+4}"); a(f"v_max_f32 v{M}, v{M}, v{MLr+6}")
        for w in range(4): a(f"v_sub_f32 v{MLr+2*w}, v{MLr+2*w}, v{M}")
        for w in range(4): a(f"v_exp_f32 v{MLr+2*w}, v{MLr+2*w}")
        a(f"v_readfirstlane_b32 s{sA}, v{M}")
        a("s_waitcnt lgkmcnt(0)")
        for r in range(4): a(f"v_mul_f32 v{G+r}, v{MLr}, v{G+r}")
        for w in range(1, 4):
            for r in range(4): a(f"v_fmac_f32 v{G+r}, v{MLr+2*w}, v{G+4*w+r}")
        a(f"v_writelane_b32 v{G}, s{sA}, 32")
        self.tag([G, G+1, G+2, G+3])
        a("s_mov_b32 exec_hi, 1")
        self.local_stores([(G, vL16, sTmp[0], None)])
        a("s_mov_b32 exec_hi, -1")
        a.label(lf)
        self.stamp(7)

    def opart(self):
        a = self.a
        G, ML = 16, 20
        a(f"v_lshrrev_b32 v14, 7, v{vL16}"); a(f"v_lshlrev_b32 v15, 10, v14")
        a(f"v_and_b32 v14, 0x70, v{vL16}"); a(f"v_add_u32 v14, v15, v14")
        a(f"s_lshl_b32 s{sTmp[0]}, s{sH}, 13"); a(f"s_add_u32 s{sTmp[0]}, s{sTmp[0]}, {O_ROW}")
        a(f"s_lshl_b32 s{sTmp[1]}, s{sW}, 7"); a(f"s_add_u32 s{sTmp[1]}, s{sTmp[1]}, s{sTmp[0]}")
        a(f"v_lshrrev_b32 v59, 8, v{vL16}"); a(f"v_mul_u32_u24 v59, 160, v59")
        a(f"v_and_b32 v58, 0xf0, v{vL16}"); a(f"v_add_u32 v59, v59, v58")
        a(f"s_mul_i32 s{sTmp[2]}, s{sW}, {32*160}"); a(f"s_add_u32 s{sTmp[2]}, s{sTmp[2]}, {L_R0}"); a(f"v_add_u32 v59, s{sTmp[2]}, v59")
        def iss():
            a(f"buffer_load_dwordx4 {vr(ML,4)}, v15, {W}, s{sTmp[0]} offen offset:512 sc1")
            a(f"buffer_load_dwordx4 {vr(G,4)}, v14, {W}, s{sTmp[1]} offen sc1")
        self.poll(iss, [ML, G], site='row')
        self.stamp(8)
        WB = 24
        for i in range(8): a(f"ds_read_b128 {vr(WB+4*i,4)}, v59 offset:{i*640}")
        if self.pfnew: self.next_w()
        self.combine8(G, ML, 56)
        Xp = 14
        a(f"v_cvt_pk_bf16_f32 v{Xp}, v{G}, v{G}")
        D, Ab = 56, 16
        a("s_waitcnt lgkmcnt(0)")
        self.pv_gemv(Xp, 8, lambda i: vr(WB+4*i, 4), D, Ab)
        self.red_write(D)
        a(f"v_lshrrev_b32 v14, 4, v{vL16}"); a(f"v_mul_u32_u24 v15, 13108, v14"); a(f"v_lshrrev_b32 v15, 16, v15")
        a(f"v_mul_u32_u24 v24, 5, v15"); a(f"v_sub_u32 v14, v14, v24"); a(f"v_lshlrev_b32 v14, 4, v14"); a(f"v_lshl_add_u32 v14, v15, 7, v14")
        a(f"s_lshl_b32 s{sTmp[0]}, s{sJ}, 5"); a(f"s_add_u32 s{sTmp[0]}, s{sTmp[0]}, s{sH}"); a(f"s_lshl_b32 s{sTmp[0]}, s{sTmp[0]}, 9")
        a(f"s_add_u32 s{sTmp[0]}, s{sTmp[0]}, s{sCol}")
        a("s_waitcnt lgkmcnt(0)"); a("s_barrier")
        lf = a.newlabel("ofin")
        a(f"s_cmp_lg_u32 s{sW}, 0"); a(f"s_cbranch_scc1 {lf}")
        self.red_final_read(G)
        a("s_waitcnt lgkmcnt(0)")
        self.sum4(G); self.tag([G, G+1, G+2, G+3])
        self.exec_set(0xfffff, 0)
        a(f"buffer_store_dwordx4 {vr(G,4)}, v14, {W}, s{sTmp[0]} offen sc1")
        self.exec_all()
        a.label(lf)
        self.stamp(9)
        if not self.pfnew: self.next_w()
        if self.skipfin:
            lk = a.newlabel("keep")
            a(f"s_cmp_lg_u32 s{sL}, {(self.stop or 4) - 1}"); a(f"s_cbranch_scc1 {lk}")
            a(f"s_cmp_lg_u32 s{sH}, 0"); a("s_cbranch_scc1 L_fin2")
            a.label(lk)
        if self.vsplit and not self.woqk:
            lb = a.newlabel("nowo")
            a(f"s_bitcmp1_b32 s{sL}, 0"); a(f"s_cbranch_scc1 {lb}")
            self.load_wo(pWoB)
            a.label(lb)
        a(f"v_lshrrev_b32 v14, 7, v{vL16}"); a(f"v_lshlrev_b32 v14, 9, v14")
        a(f"v_and_b32 v15, 0x70, v{vL16}"); a(f"v_add_u32 v14, v14, v15")
        a(f"s_lshl_b32 s{sTmp[0]}, s{sJ}, 14"); a(f"s_lshl_b32 s{sTmp[1]}, s{sW}, 7"); a(f"s_add_u32 s{sTmp[0]}, s{sTmp[0]}, s{sTmp[1]}")
        a(f"s_add_u32 s{sTmp[0]}, s{sTmp[0]}, s{sCol}")
        for i in range(1, 4): a(f"s_add_u32 s{sTmp[i]}, s{sTmp[0]}, {i*4096}")
        def issc():
            for i in range(4):
                a(f"buffer_load_dwordx4 {vr(G+4*i,4)}, v14, {W}, s{sTmp[i]} offen sc1")
        self.poll(issc, [G, G+4, G+8, G+12], execmask=(0x1f1f1f1f, 0x1f1f1f1f), site='col')
        self.stampval(28, sSpin); self.stampval(29, sPos)
        self.stamp(10)
        self.sum4(G)
        for r in range(4): a(f"v_add_f32_dpp v{G+r}, v{G+r}, v{G+r} row_ror:8 {DPPALL}")
        self.treduce([G, G+1, G+2, G+3])
        a(f"v_add_f32 v{G}, v{G}, v{vX}")
        a(f"v_cndmask_b32 v{vX}, 0, v{G}, s[{sM5}:{sM5+1}]")

    def second_w(self, lb=None):
        a = self.a
        lb = lb or a.newlabel("nouk")
        a(f"s_bitcmp1_b32 s{sL}, 0"); a(f"s_cbranch_scc1 {lb}")
        self.load_wuk()
        if self.vsplit:
            lc = a.newlabel("vtj")
            a(f"s_branch {lc}")
            a.label(lb)
            for k in range(4): self.vtr_one(k)
            a.label(lc)
        else:
            a.label(lb)

    def next_w(self):
        a = self.a
        lnp = a.newlabel("nopf"); lb = a.newlabel("nouk")
        a(f"s_cmp_eq_u32 s{sL}, 3"); a(f"s_cbranch_scc1 {lnp}")
        a(f"s_add_u32 s{sL}, s{sL}, 1")
        self.load_wq()
        if not self.split2: self.second_w(lb)
        a(f"s_sub_u32 s{sL}, s{sL}, 1")
        a.label(lnp)

    def epilogue(self):
        a = self.a
        le = a.newlabel("fin")
        a(f"s_cmp_lg_u32 s{sH}, 0"); a(f"s_cbranch_scc1 {le}")
        self.srd(SRD_B, pOut, 1280)
        a(f"v_lshrrev_b32 v14, 4, v{vL16}"); a(f"v_and_b32 v15, 15, v14"); a(f"v_lshrrev_b32 v14, 4, v14")
        a(f"v_lshl_add_u32 v14, v15, 2, v14")
        a(f"s_mul_i32 s{sTmp[0]}, s{sJ}, 80"); a(f"s_mul_i32 s{sTmp[1]}, s{sW}, 20"); a(f"s_add_u32 s{sTmp[0]}, s{sTmp[0]}, s{sTmp[1]}")
        a(f"v_add_u32 v14, s{sTmp[0]}, v14"); a(f"v_lshlrev_b32 v14, 1, v14")
        a(f"v_cvt_pk_bf16_f32 v15, v{vX}, v{vX}")
        a(f"s_mov_b64 exec, s[{sM5}:{sM5+1}]")
        a(f"buffer_store_short v15, v14, s[{SRD_B}:{SRD_B+3}], 0 offen")
        self.exec_all()
        a(f"s_cmp_lg_u32 s2, 0"); a(f"s_cbranch_scc1 {le}")
        a(f"s_cmp_lg_u32 s{sW}, 0"); a(f"s_cbranch_scc1 {le}")
        a(f"v_mov_b32 v14, 0")
        a("s_mov_b64 exec, 1")
        a(f"buffer_store_dword v{vT}, v14, {W}, 0 offen sc1")
        self.exec_all()
        a.label(le)
        a.label("L_fin2")
        l2 = a.newlabel("noerr")
        a(f"s_cmp_eq_u32 s{sErr}, 0"); a(f"s_cbranch_scc1 {l2}")
        self.srd(SRD_B, sDbg, 256)
        a(f"v_mov_b32 v14, 0"); a(f"v_mov_b32 v15, 0xdead")
        a("s_mov_b64 exec, 1")
        a(f"buffer_store_dword v15, v14, s[{SRD_B}:{SRD_B+3}], 0 offen")
        self.exec_all()
        a.label(l2)

    def build(self):
        a = self.a
        self.prologue()
        a.label("L_layer")
        self.qpart()
        a(f"s_bitcmp1_b32 s{sL}, 0"); a(f"s_cbranch_scc1 L_bmid")
        self.amiddle()
        a(f"s_branch L_opart")
        a.label("L_bmid")
        self.bmiddle()
        a.label("L_opart")
        self.opart()
        self.stamp(11)
        for L_ in range(4): self.dbgstamp(f"end{L_}", L_)
        a(f"s_add_u32 s{sL}, s{sL}, 1"); a(f"s_xor_b32 s{sCol}, s{sCol}, 0x20000")
        nl = self.stop if self.stop else 4
        a(f"s_cmp_ge_u32 s{sL}, {nl}"); a("s_cbranch_scc1 L_done")
        self.next_tag()
        a("s_branch L_layer")
        a.label("L_done")
        self.epilogue()
        if self.stamps:
            a(f"s_mov_b32 s{sL}, 3")
            self.stamp(13)
        a("s_waitcnt vmcnt(0)")
        a.label("L_end")
        a("s_endpgm")
        self.dw_sub()
        self.stream()
        a.label("L_codeend")
        return fix(a.lines)

HEADER = open("interleave_layers__compressed_kv_cla__mha_block_cached__decode.s.ref").read().split("; Override launch")[0]

def make(path, **kw):
    body = "\n".join(Gen(**kw).build())
    src = f"""{HEADER}; @launch grid=(256,1,1) block=(256,1,1) lds={LDS_BYTES}
.amdgcn_target "amdgcn-amd-amdhsa--gfx950"
.text
.globl {KNAME}
.p2align 8
.type {KNAME},@function
{KNAME}:
{body}
.section .rodata,"a"
.p2align 6
.amdhsa_kernel {KNAME}
  .amdhsa_next_free_vgpr 512
  .amdhsa_next_free_sgpr 102
  .amdhsa_accum_offset 256
  .amdhsa_group_segment_fixed_size 0
  .amdhsa_kernarg_size 112
  .amdhsa_user_sgpr_count 2
  .amdhsa_user_sgpr_kernarg_segment_ptr 1
  .amdhsa_system_sgpr_workgroup_id_x 1
  .amdhsa_float_denorm_mode_32 3
.end_amdhsa_kernel
"""
    open(path, "w").write(src)

if __name__ == "__main__":
    import argparse
    ap = argparse.ArgumentParser()
    ap.add_argument("-o", default="k.s"); ap.add_argument("--opts", default="")
    x = ap.parse_args()
    kw = {}
    for o in filter(None, x.opts.split(";")):
        k_, v_ = o.split("="); kw[k_] = eval(v_)
    make(x.o, **kw)
```

```python
import re

TRANS = ("v_exp_f32", "v_log_f32", "v_rcp_f32", "v_rsq_f32", "v_sqrt_f32", "v_sin_f32", "v_cos_f32", "v_rcp_iflag_f32")

def regs_of(op):
    op = op.strip()
    if op.startswith("-"): op = op[1:]
    if op.startswith("abs(") or op.startswith("|"): op = op.strip("abs()|")
    m = re.fullmatch(r"([vas])(\d+)", op)
    if m: return {m.group(1) + m.group(2)}
    m = re.fullmatch(r"([vas])\[(\d+):(\d+)\]", op)
    if m: return {m.group(1) + str(i) for i in range(int(m.group(2)), int(m.group(3)) + 1)}
    if op == "vcc": return {"vcc_lo", "vcc_hi"}
    if op in ("vcc_lo", "vcc_hi", "m0"): return {op}
    if op == "exec": return {"exec"}
    return set()

class Ins:
    def __init__(self, text):
        self.text = text
        t = text.split(";")[0].strip()
        self.label = None; self.mn = None
        if not t:
            return
        if t.endswith(":"):
            self.label = t[:-1]; return
        parts = t.split(None, 1)
        self.mn = parts[0]
        rest = parts[1] if len(parts) > 1 else ""
        ops = [o.strip() for o in re.split(r",(?![^\[]*\])", rest)] if rest else []
        mods = ""
        if ops:
            last = ops[-1].split(None, 1)
            ops[-1] = last[0]
            mods = last[1] if len(last) > 1 else ""
        self.ops = ops; self.mods = mods
        mn = self.mn
        self.is_mfma = mn.startswith("v_mfma") or mn.startswith("v_smfmac")
        self.is_valu = mn.startswith("v_") and not self.is_mfma
        self.is_vmem = mn.startswith("buffer_") or mn.startswith("global_")
        self.is_ds = mn.startswith("ds_")
        self.is_salu = mn.startswith("s_")
        self.is_dpp = self.is_valu and any(k in mods for k in ("quad_perm", "row_", "wave_"))
        self.is_trans = any(mn.startswith(x) for x in TRANS)
        self.is_perml = mn.startswith("v_permlane")
        self.is_rdlane = mn.startswith("v_readlane") or mn.startswith("v_readfirstlane")
        self.defs = set(); self.uses = set(); self.srcC = set(); self.ab = set(); self.data = set()
        R = [regs_of(o) for o in ops]
        if self.is_mfma and mn.startswith("v_smfmac"):
            self.defs = R[0]; self.ab = R[1] | R[2] | R[3]; self.srcC = R[0]; self.uses = self.ab | self.srcC
        elif self.is_mfma:
            self.defs = R[0]; self.ab = R[1] | R[2]; self.srcC = R[3]; self.uses = self.ab | self.srcC
        elif self.is_valu:
            if mn.startswith("v_cmp"):
                self.defs = R[0]; self.uses = set().union(*R[1:]) if len(R) > 1 else set()
            elif self.is_perml:
                self.defs = R[0] | R[1]; self.uses = R[0] | R[1]
            elif re.match(r"v_(add|sub|subrev|addc|subb)_co_", mn):
                self.defs = R[0] | R[1]; self.uses = set().union(*R[2:])
            else:
                self.defs = R[0]; self.uses = set().union(*R[1:]) if len(R) > 1 else set()
                if mn.startswith("v_fmac") or mn.startswith("v_dot2c") or mn.startswith("v_writelane") or self.is_dpp:
                    self.uses |= R[0]
                if mn.startswith("v_cndmask") and len(ops) == 3: self.uses |= {"vcc_lo", "vcc_hi"}
        elif self.is_vmem:
            lds = " lds" in (" " + mods) or (ops and ops[-1] == "lds")
            if mn.startswith("buffer_load"):
                if lds:
                    self.uses = set().union(*R) | {"m0"}; self.ldsdma = True
                else:
                    self.defs = R[0]; self.uses = set().union(*R[1:])
            elif mn.startswith("buffer_store"):
                self.uses = set().union(*R); self.data = R[0]
            elif mn.startswith("buffer_atomic"):
                self.uses = set().union(*R); self.data = R[0]
                if "sc0" in mods: self.defs = R[0]
            elif mn.startswith("global_load"):
                self.defs = R[0]; self.uses = set().union(*R[1:])
            elif mn.startswith("global_store"):
                self.uses = set().union(*R); self.data = R[1]
            else:
                self.uses = set().union(*R) if R else set()
        elif self.is_ds:
            if mn.startswith("ds_read") or mn.startswith("ds_bpermute") or mn.startswith("ds_swizzle"):
                self.defs = R[0]; self.uses = set().union(*R[1:]) if len(R) > 1 else set()
            else:
                self.uses = set().union(*R) if R else set()
        elif self.is_salu:
            nodef = ("s_cmp", "s_cbranch", "s_branch", "s_waitcnt", "s_nop", "s_barrier", "s_endpgm", "s_setpc", "s_sleep", "s_bitcmp", "s_setprio")
            if mn.startswith(nodef):
                self.uses = set().union(*R) if R else set()
            else:
                self.defs = R[0] if R else set(); self.uses = set().union(*R[1:]) if len(R) > 1 else set()
                if "saveexec" in mn: self.defs |= {"exec"}
        self.wide_store = self.is_vmem and bool(self.data) and (mn.endswith("x4") or mn.endswith("x3"))
    def states(self):
        if self.mn == "s_nop": return int(self.ops[0], 0) + 1
        return 1

def isv(r): return r[0] in "va" and r not in ("vcc_lo", "vcc_hi")
def iss(r): return r[0] == "s" or r.startswith("vcc")

def need(prod, cons):
    n = 0
    if prod.is_valu:
        vd = {r for r in prod.defs if isv(r)}; sd = {r for r in prod.defs if iss(r)}
        if vd:
            if cons.is_mfma and vd & cons.uses: n = max(n, 2)
            if cons.is_dpp and vd & cons.uses: n = max(n, 2)
            if cons.is_perml and vd & cons.uses: n = max(n, 2)
            if cons.is_rdlane and vd & cons.uses: n = max(n, 1)
            if prod.is_trans and (cons.is_valu or cons.is_mfma) and not cons.is_trans and vd & cons.uses: n = max(n, 1)
        if sd:
            if cons.is_valu and sd & cons.uses: n = max(n, 4 if (cons.is_rdlane or cons.mn.startswith("v_writelane")) and sd & regs_of(cons.ops[-1]) else 2)
            if cons.is_vmem and sd & cons.uses: n = max(n, 5)
            if cons.is_salu and sd & cons.uses and not cons.mn.startswith("s_cbranch"): n = max(n, 1)
    if prod.is_mfma:
        passes = 8 if "32x32" in prod.mn else 4
        big = {4: 8, 8: 12}[passes]
        if cons.is_mfma:
            if prod.defs & cons.ab: n = max(n, big)
            if prod.defs & cons.srcC and prod.defs != cons.srcC: n = max(n, {4: 6, 8: 10}[passes])
            if prod.defs & cons.defs and prod.defs != cons.srcC and not (prod.defs & cons.srcC): n = max(n, big)
        elif cons.is_valu or cons.is_vmem or cons.is_ds:
            if prod.defs & (cons.uses | cons.defs): n = max(n, big)
        if cons.is_valu and prod.srcC & cons.defs: n = max(n, {4: 3, 8: 7}[passes])
    if prod.wide_store:
        if prod.data & cons.defs: n = max(n, 2 if cons.is_valu or cons.is_mfma else 1)
    if prod.is_salu and "m0" in prod.defs and cons.is_vmem and "m0" in cons.uses: n = max(n, 1)
    return n

WINDOW = 14
def fix(lines):
    ins = [Ins(l.strip()) for l in lines]
    labels_in = {}
    for it in range(4):
        out = []
        state = []
        new_in = {}
        def merge(a, b):
            d = {}
            for (p, g) in a + b:
                k = id(p)
                if k not in d or g < d[k][1]: d[k] = (p, g)
            return list(d.values())
        for x in ins:
            if x.label is not None:
                state = merge(state, labels_in.get(x.label, []))
                out.append(x); continue
            if x.mn is None: out.append(x); continue
            req = 0
            for (p, age) in state:
                r = need(p, x) - age
                if r > req: req = r
            if req > 0:
                k = req
                while k > 0:
                    s = min(k, 16)
                    out.append(Ins(f"s_nop {s-1}")); k -= s
                state = [(p, a + req) for (p, a) in state]
            out.append(x)
            st = x.states()
            state = [(p, a + st) for (p, a) in state if a + st < WINDOW]
            if x.is_valu or x.is_mfma or x.wide_store or (x.is_salu and "m0" in x.defs):
                state.append((x, 0))
            if x.mn.startswith("s_cbranch") or x.mn == "s_branch":
                tgt = x.ops[0]
                new_in[tgt] = merge(new_in.get(tgt, []), list(state))
                if x.mn == "s_branch": state = []
            if x.mn in ("s_endpgm", "s_setpc_b64"): state = []
        same = all(len(new_in.get(k, [])) == len(labels_in.get(k, [])) and sorted(g for _, g in new_in.get(k, [])) == sorted(g for _, g in labels_in.get(k, [])) for k in set(new_in) | set(labels_in))
        labels_in = new_in
        ins = out
        if same and it > 0: break
    res = []
    for x in ins:
        res.append(x.text if x.label is not None else "    " + x.text)
    return res
```

```python
import sys, struct
from hazard import fix

KNAME = "interleave_layers__compressed_kv_cla__mha_block_cached__decode_kernel"

class Asm:
    def __init__(self): self.lines = []; self.n = 0
    def __call__(self, s):
        for l in s.split("\n"):
            l = l.strip()
            if l: self.lines.append(l)
    def label(self, name): self.lines.append(name + ":")
    def newlabel(self, base="L"):
        self.n += 1; return f"{base}_{self.n}"

def vr(b, n=1): return f"v{b}" if n == 1 else f"v[{b}:{b+n-1}]"
def ar(b, n=1): return f"a{b}" if n == 1 else f"a[{b}:{b+n-1}]"
DPPALL = "row_mask:0xf bank_mask:0xf"
def f32hex(x): return "0x%08x" % struct.unpack("<I", struct.pack("<f", x))[0]

O_XCC  = 0x001000
O_STAMP = 0x080000
O_QP   = 0x100000
O_ROW  = 0x180000
O_COL  = 0x1C0000
O_QABS = 0x200000
O_ML1  = 0x210000
O_C2   = 0x240000
O_ML2  = 0x2C0000
O_C1   = 0x300000

L_VL  = 0
L_CKV = 65536
L_R0  = 131072
L_ST  = 151680
L_RED = 156032
RSTR  = 1056
L_U   = 160256
LDS_BYTES = 163840

sH, sJ, sW, sL, sAct = 3, 4, 5, 6, 7
SRD_WS, SRD_K, SRD_V, SRD_A, SRD_B = 8, 12, 16, 20, 24
sSPC, sRET = 28, 30
sT = [32, 33, 34, 35]
sSel = [36, 37, 38, 39]
pWqA, pWqB, pWuk, pWuv, pWoA, pWoB, pCkv, pOut, pX = 40, 42, 44, 46, 48, 50, 52, 54, 56
sCol = 58
sGA, sS = 59, 60
sSO = 61
sSpin = 62
sPos = 63
sFF = 64
sTmp = list(range(65, 70))
sMask = [76, 78, 80, 82]
sM5 = 84
sDbg = 86
sErr = 88
sLocal = 89
sA, sB_ = 90, 91
sTs = 92
sXG, sI, sSc, sXcc = 98, 99, 100, 101
sTf = 97
sDW, sRET2, sYoung, sVm, sVm2, sDl = 70, 72, 74, 75, 94, 95
sBud = 57
sC1 = 56
sCap = 0

vL16, vM, vT, vX, vWoff, vKoff, vVoff, vRedW = 0, [1, 2, 3, 4], 5, 6, 7, 8, 9, 10
vT0 = 11
vCk = 11
vWo = 13
WQ, WUK, WUV, VTR, VRES = 76, 60, 80, 64, 96
AT = 44

SC = (128 ** -0.5) * 1.4426950408889634
SPIN_MAX = 1 << 16
W = f"s[{SRD_WS}:{SRD_WS+3}]"

class Gen:
    def __init__(self, kblk=8, stream_mode="co", stop_after=None, local=True, stamps="", pol="nt", wpol="", cpol="", codepf=True,
                 qkcalls=(4, 10), sent=True, nopf=False, once=True, xcalls=(), dlim=6, keep=6, addn=True, pretouch=True, mlsent=True, slp=0, sent1=False, pfnew=True, mltail=True, dsite=None, pre=None, rsl=None, dq=None, dbg=None, bud=None, skipfin=True, vsplit=True, woqk=True, split2=True, c1touch=True, c1sc1=False, c1touch2=None, smf=True, cap=None, pre1=None, burst=None):
        self.burstn = burst or {}
        self.pre1 = pre1
        self.cap = cap
        self.smf = smf
        self.c1touch = c1touch; self.c1sc1 = c1sc1; self.c1touch2 = c1touch2
        self.split2 = split2
        self.woqk = woqk
        self.skipfin = skipfin; self.vsplit = vsplit
        self.bud = bud
        self.dbg = dbg
        self.pre = pre or {}; self.rsl = rsl or {}; self.dq = dq
        self.pfnew = pfnew; self.mltail = mltail; self.dsite = dsite or {}
        self.slp = slp; self.sent1 = sent1
        self.addn = addn; self.pretouch = pretouch; self.mlsent = mlsent
        self.once = once; self.xcalls = xcalls; self.dlim = dlim; self.keep = keep
        self.nopf = nopf
        self.a = Asm(); self.kblk = kblk; self.mode = stream_mode; self.stop = stop_after
        self.local = local; self.stamps = stamps; self.pol = pol; self.wpol = wpol; self.cpol = cpol; self.codepf = codepf
        self.qkcalls = qkcalls; self.sent = sent

    def srd(self, s, lo, nbytes):
        a = self.a
        a(f"s_mov_b32 s{s}, s{lo}"); a(f"s_mov_b32 s{s+1}, s{lo+1}")
        a(f"s_mov_b32 s{s+2}, {nbytes:#x}"); a(f"s_mov_b32 s{s+3}, 0x20000")
    def exec_all(self): self.a("s_mov_b64 exec, -1")
    def exec_set(self, lo, hi):
        self.a(f"s_mov_b32 exec_lo, {lo:#x}"); self.a(f"s_mov_b32 exec_hi, {hi:#x}")
    def tag(self, regs):
        for i, r in enumerate(regs):
            self.a(f"v_perm_b32 v{r}, v{r}, v{vT}, s{sSel[i%4]}")
    def stamp(self, idx):
        if not self.stamps: return
        if self.stamps == "light" and idx not in (12, 13, 5): return
        a = self.a
        lab = a.newlabel("st")
        a(f"s_cmp_lg_u32 s{sW}, 0"); a(f"s_cbranch_scc1 {lab}")
        a(f"s_memrealtime s[{sTs}:{sTs+1}]")
        a("s_waitcnt lgkmcnt(0)")
        a(f"s_lshl_b32 s96, s2, 2"); a(f"s_add_u32 s96, s96, s{sL}"); a(f"s_lshl_b32 s96, s96, 7")
        a(f"s_add_u32 s96, s96, {O_STAMP + idx*4}")
        a(f"v_mov_b32 v{vT0}, s{sTs}")
        a(f"s_mov_b64 s[{sTs}:{sTs+1}], exec"); a("s_mov_b64 exec, 1")
        a(f"buffer_store_dword v{vT0}, off, {W}, s96")
        a(f"s_mov_b64 exec, s[{sTs}:{sTs+1}]")
        a.label(lab)
    def dbgstamp(self, k, cond_layer=None):
        if not self.dbg or k not in self.dbg: return
        a = self.a
        k = self.dbg.index(k)
        lab = a.newlabel("db")
        a(f"s_cmp_lg_u32 s{sW}, 0"); a(f"s_cbranch_scc1 {lab}")
        a(f"s_cmp_ge_u32 s2, 8"); a(f"s_cbranch_scc1 {lab}")
        if cond_layer is not None:
            a(f"s_cmp_lg_u32 s{sL}, {cond_layer}"); a(f"s_cbranch_scc1 {lab}")
        a(f"s_memrealtime s[{sTs}:{sTs+1}]")
        a("s_waitcnt lgkmcnt(0)")
        a(f"s_mov_b32 s{SRD_A}, s{sDbg}"); a(f"s_mov_b32 s{SRD_A+1}, s{sDbg+1}"); a(f"s_mov_b32 s{SRD_A+2}, 256"); a(f"s_mov_b32 s{SRD_A+3}, 0x20000")
        a(f"s_lshl_b32 s96, s2, 3"); a(f"s_add_u32 s96, s96, {4*k}")
        a(f"v_mov_b32 v{vT0}, s{sTs}")
        a(f"s_mov_b64 s[{sTs}:{sTs+1}], exec"); a("s_mov_b64 exec, 1")
        a(f"buffer_store_dword v{vT0}, off, s[{SRD_A}:{SRD_A+3}], s96")
        a(f"s_mov_b64 exec, s[{sTs}:{sTs+1}]")
        a.label(lab)
    def stampval(self, idx, sreg):
        if self.stamps != "full": return
        a = self.a
        lab = a.newlabel("sv")
        a(f"s_cmp_lg_u32 s{sW}, 0"); a(f"s_cbranch_scc1 {lab}")
        a(f"s_lshl_b32 s96, s2, 2"); a(f"s_add_u32 s96, s96, s{sL}"); a(f"s_lshl_b32 s96, s96, 7")
        a(f"s_add_u32 s96, s96, {O_STAMP + idx*4}")
        a(f"v_mov_b32 v{vT0}, s{sreg}")
        a(f"s_mov_b64 s[{sTs}:{sTs+1}], exec"); a("s_mov_b64 exec, 1")
        a(f"buffer_store_dword v{vT0}, off, {W}, s96")
        a(f"s_mov_b64 exec, s[{sTs}:{sTs+1}]")
        a.label(lab)
    def stream_call(self):
        self.a(f"s_swappc_b64 s[{sRET}:{sRET+1}], s[{sSPC}:{sSPC+1}]")
    def maybe_stream(self):
        a = self.a
        lab = a.newlabel("ns")
        a(f"s_cmp_eq_u32 s{sAct}, 0"); a(f"s_cbranch_scc1 {lab}")
        self.stream_call()
        a.label(lab)
    def read_vm(self):
        a = self.a
        a(f"s_getreg_b32 s{sVm}, hwreg(HW_REG_IB_STS)")
        a(f"s_bfe_u32 s{sVm2}, s{sVm}, 0x20016"); a(f"s_and_b32 s{sVm}, s{sVm}, 15")
        a(f"s_lshl4_add_u32 s{sVm}, s{sVm2}, s{sVm}")
    def dw_sub(self):
        a = self.a
        a.label("L_dw")
        self.read_vm()
        a(f"s_cmp_le_u32 s{sVm}, s{sYoung}"); a("s_cbranch_scc1 L_dwret")
        a(f"s_cmp_ge_u32 s{sVm}, s{sDl}"); a("s_cbranch_scc1 L_dw")
        a(f"s_cmp_eq_u32 s{sAct}, 0"); a("s_cbranch_scc1 L_dw")
        if self.cap is not None:
            a(f"s_cmp_ge_u32 s{sPos}, s{sCap}"); a("s_cbranch_scc1 L_dw")
        if self.bud is not None:
            a(f"s_cmp_le_i32 s{sBud}, 0"); a("s_cbranch_scc1 L_dw")
            a(f"s_sub_u32 s{sBud}, s{sBud}, {self.kblk}")
        self.stream_call()
        a(f"s_add_u32 s{sYoung}, s{sYoung}, {self.kblk}")
        a("s_branch L_dw")
        a.label("L_dwret")
        a(f"s_setpc_b64 s[{sRET2}:{sRET2+1}]")
    def dwait(self, young, n=0, site=None):
        dl = self.dsite.get(site, self.dlim)
        a = self.a
        if self.mode != "co":
            a(f"s_waitcnt vmcnt({young})"); return
        ns = a.newlabel("dwn"); jn = a.newlabel("dwj")
        a(f"s_cmp_eq_u32 s{sAct}, 0"); a(f"s_cbranch_scc1 {ns}")
        a(f"s_mov_b32 s{sYoung}, {young}"); a(f"s_mov_b32 s{sDl}, {dl + n if dl else 0}")
        if self.cap is not None: a(f"s_mov_b32 s{sCap}, {self.cap.get(site, 999)}")
        a(f"s_swappc_b64 s[{sRET2}:{sRET2+1}], s[{sDW}:{sDW+1}]")
        a(f"s_branch {jn}")
        a.label(ns)
        a(f"s_waitcnt vmcnt({young})")
        a.label(jn)
    def burst(self, site):
        n = self.burstn.get(site, 0)
        if self.mode != "co" or not n: return
        a = self.a
        lab = a.newlabel("bu")
        for i in range(n // self.kblk):
            a(f"s_cmp_eq_u32 s{sAct}, 0"); a(f"s_cbranch_scc1 {lab}")
            self.stream_call()
        a.label(lab)
    def topup(self, depth=None, site=None):
        if self.mode != "co": return
        depth = self.dlim if depth is None else depth
        capv = self.cap.get(site) if self.cap else None
        a = self.a
        lab = a.newlabel("tu")
        a(f"s_cmp_eq_u32 s{sAct}, 0"); a(f"s_cbranch_scc1 {lab}")
        self.read_vm()
        a(f"s_cmp_ge_u32 s{sVm}, {depth}"); a(f"s_cbranch_scc1 {lab}")
        if capv: a(f"s_cmp_ge_u32 s{sPos}, {capv}"); a(f"s_cbranch_scc1 {lab}")
        self.stream_call()
        a.label(lab)
    def drain(self, keep):
        a = self.a
        l0 = a.newlabel("drain"); l1 = a.newlabel("drained")
        a.label(l0)
        a(f"s_cmp_eq_u32 s{sAct}, 0"); a(f"s_cbranch_scc1 {l1}")
        self.stream_call()
        a(f"s_waitcnt vmcnt({keep})")
        a(f"s_branch {l0}")
        a.label(l1)

    def predelay(self, site):
        a = self.a
        p0 = self.pre.get(site, 0)
        p1 = self.pre1.get(site, p0) if self.pre1 is not None else p0
        if p0 == p1:
            if p0: a(f"s_sleep {p0}")
            return
        l0 = a.newlabel("pd"); l1 = a.newlabel("pd")
        a(f"s_cmp_ge_u32 s{sL}, 2"); a(f"s_cbranch_scc1 {l0}")
        if p1: a(f"s_sleep {p1}")
        a(f"s_branch {l1}")
        a.label(l0)
        if p0: a(f"s_sleep {p0}")
        a.label(l1)

    def poll(self, issue, regs, execmask=None, stream=True, site=None):
        a = self.a
        lp = a.newlabel("poll"); ns = a.newlabel("pns"); jn = a.newlabel("pj"); dn = a.newlabel("pdone")
        if execmask: self.exec_set(*execmask)
        a(f"s_mov_b32 s{sSpin}, 0")
        if self.bud is not None: a(f"s_mov_b32 s{sBud}, {self.bud.get(site, self.bud.get('*', 8))}")
        self.predelay(site)
        a.label(lp)
        issue()
        if execmask and self.mode == "co": self.exec_all()
        self.dwait(0, len(regs) if self.addn else 0, site)
        if execmask and self.mode == "co": self.exec_set(*execmask)
        a.label(jn)
        acc, acc2 = vT0, vT0 + 1
        dw = [g + i for g in regs for i in range(4)]
        for k, r in enumerate(dw): a(f"v_xor_b32 v{r}, s{sT[k % 4]}, v{r}")
        a(f"v_or3_b32 v{acc}, v{dw[0]}, v{dw[1]}, v{dw[2]}")
        if len(dw) == 4:
            a(f"v_or_b32 v{acc}, v{acc}, v{dw[3]}")
        else:
            a(f"v_or3_b32 v{acc2}, v{dw[3]}, v{dw[4]}, v{dw[5]}")
            k = 6; tog = 0
            while k < len(dw):
                tgt = acc if tog == 0 else acc2
                a(f"v_or3_b32 v{tgt}, v{tgt}, v{dw[k]}, v{dw[k+1]}"); k += 2
                tog ^= 1
            a(f"v_or_b32 v{acc}, v{acc}, v{acc2}")
        a(f"v_and_b32 v{acc}, s{sFF}, v{acc}")
        a(f"v_cmp_ne_u32 vcc, 0, v{acc}")
        a(f"s_cbranch_vccz {dn}")
        if self.rsl.get(site): a(f"s_sleep {self.rsl[site]}")
        if self.slp:
            lz = a.newlabel("nsl")
            a(f"s_cmp_eq_u32 s{sAct}, 0"); a(f"s_cbranch_scc1 {lz}")
            a(f"s_sleep {self.slp}")
            a.label(lz)
        a(f"s_add_u32 s{sSpin}, s{sSpin}, 1")
        a(f"s_cmp_lt_u32 s{sSpin}, {SPIN_MAX}")
        a(f"s_cbranch_scc1 {lp}")
        a(f"s_mov_b32 s{sErr}, 1")
        a.label(dn)
        if execmask: self.exec_all()

    def dpp_steps(self, regs, op, steps):
        for d in steps:
            for r in regs:
                if d == "b15": self.a(f"{op}_dpp v{r}, v{r}, v{r} row_bcast:15 row_mask:0xa bank_mask:0xf")
                elif d == "b31": self.a(f"{op}_dpp v{r}, v{r}, v{r} row_bcast:31 row_mask:0xc bank_mask:0xf")
                else: self.a(f"{op}_dpp v{r}, v{r}, v{r} {d} {DPPALL}")
    X1, X2, HM, RM = "quad_perm:[1,0,3,2]", "quad_perm:[2,3,0,1]", "row_half_mirror", "row_mirror"
    def reduce63(self, regs, op):
        self.dpp_steps(regs, op, [self.X1, self.X2, self.HM, self.RM, "b15", "b31"])

    def treduce(self, r):
        a = self.a
        a(f"v_permlane32_swap_b32 v{r[0]}, v{r[2]}")
        a(f"v_permlane32_swap_b32 v{r[1]}, v{r[3]}")
        a(f"v_add_f32 v{r[0]}, v{r[0]}, v{r[2]}")
        a(f"v_add_f32 v{r[1]}, v{r[1]}, v{r[3]}")
        a(f"v_permlane16_swap_b32 v{r[0]}, v{r[1]}")
        a(f"v_add_f32 v{r[0]}, v{r[0]}, v{r[1]}")

    def pv_gemv(self, Xp, nload, bop, D, Abuf):
        a = self.a
        def build(i):
            A = Abuf + 4 * (i % 2)
            for r in range(4):
                a(f"v_and_b32_dpp v{A+r}, v{Xp}, v{vM[r]} row_newbcast:{i} {DPPALL}")
        build(0)
        if nload > 1: build(1)
        for i in range(nload):
            A = Abuf + 4 * (i % 2)
            c = "0" if i == 0 else vr(D, 4)
            a(f"v_mfma_f32_16x16x32_bf16 {vr(D,4)}, {vr(A,4)}, {bop(i)}, {c}")
            if i + 2 < nload: build(i + 2)

    def red_write(self, D, off=0):
        a = self.a
        a("s_mov_b32 exec_hi, 1")
        a(f"ds_write_b128 v{vRedW}, {vr(D,4)} offset:{off}")
        a("s_mov_b32 exec_hi, -1")
    def red_final_read(self, G, off=0):
        a = self.a
        a(f"v_add_u32 v{vT0}, {L_RED}, v{vL16}")
        for w in range(4):
            a(f"ds_read_b128 {vr(G+4*w,4)}, v{vT0} offset:{w*RSTR+off}")
    def sum4(self, G):
        a = self.a
        for r in range(4):
            a(f"v_add_f32 v{G+r}, v{G+r}, v{G+4+r}")
            a(f"v_add_f32 v{G+8+r}, v{G+8+r}, v{G+12+r}")
        for r in range(4):
            a(f"v_add_f32 v{G+r}, v{G+r}, v{G+8+r}")

    def local_stores(self, items):
        a = self.a
        def emit(flag):
            for (data, vaddr, soff, pre) in items:
                if pre: pre()
                a(f"buffer_store_dwordx4 {vr(data,4)}, v{vaddr}, {W}, s{soff} offen {flag}")
        if self.local:
            l0 = a.newlabel("ls"); l1 = a.newlabel("ls")
            a(f"s_cmp_eq_u32 s{sLocal}, 0"); a(f"s_cbranch_scc1 {l0}")
            emit("")
            a(f"s_branch {l1}")
            a.label(l0)
            emit("sc1")
            a.label(l1)
        else:
            emit("sc1")

    def next_tag(self):
        a = self.a
        a(f"s_mul_i32 s{sTf}, s{sTf}, 0x9E3779B1"); a(f"s_add_u32 s{sTf}, s{sTf}, 0x7F4A7C15")
        a(f"v_mov_b32 v{vT}, s{sTf}")
        a(f"s_and_b32 s{sT[0]}, s{sTf}, 0xff"); a(f"s_bfe_u32 s{sT[1]}, s{sTf}, 0x80008")
        a(f"s_bfe_u32 s{sT[2]}, s{sTf}, 0x80010"); a(f"s_lshr_b32 s{sT[3]}, s{sTf}, 24")

    def pf_guard(self, fn, lmin=2):
        if not self.nopf: return fn()
        a = self.a; l = a.newlabel("npf")
        a(f"s_cmp_ge_u32 s{sL}, {lmin}"); a(f"s_cbranch_scc1 {l}")
        fn()
        a.label(l)
    def load_wq(self):
        self.pf_guard(self.load_wq_)
    def load_wq_(self):
        a = self.a
        l0 = a.newlabel("wq"); l1 = a.newlabel("wq")
        a(f"s_bitcmp1_b32 s{sL}, 0"); a(f"s_cbranch_scc1 {l0}")
        a(f"s_mov_b32 s{SRD_A}, s{pWqA}"); a(f"s_mov_b32 s{SRD_A+1}, s{pWqA+1}"); a(f"s_branch {l1}")
        a.label(l0)
        a(f"s_mov_b32 s{SRD_A}, s{pWqB}"); a(f"s_mov_b32 s{SRD_A+1}, s{pWqB+1}")
        a.label(l1)
        a(f"s_mov_b32 s{SRD_A+2}, {19*8192+256}"); a(f"s_mov_b32 s{SRD_A+3}, 0x20000")
        for i in range(5):
            a(f"s_mov_b32 s{sTmp[0]}, {i*32768}")
            a(f"buffer_load_dwordx4 {vr(WQ+4*i,4)}, v{vWoff}, s[{SRD_A}:{SRD_A+3}], s{sTmp[0]} offen {self.wpol}")
    def load_wuk(self):
        self.pf_guard(self.load_wuk_)
    def load_wuk_(self):
        a = self.a
        self.srd(SRD_A, pWuk, 15*8192+256)
        t = vT0
        a(f"v_lshrrev_b32 v{t}, 8, v{vKoff}"); a(f"v_lshlrev_b32 v{t}, 13, v{t}")
        a(f"v_and_b32 v{t+1}, s{sFF}, v{vKoff}"); a(f"v_or_b32 v{t}, v{t}, v{t+1}")
        for i in range(4):
            a(f"s_mov_b32 s{sTmp[0]}, {i*32768}")
            a(f"buffer_load_dwordx4 {vr(WUK+4*i,4)}, v{t}, s[{SRD_A}:{SRD_A+3}], s{sTmp[0]} offen {self.wpol}")
    def load_wuv(self):
        self.pf_guard(self.load_wuv_)
    def load_wuv_(self):
        a = self.a
        self.srd(SRD_A, pWuv, 15*8192+256)
        for i in range(4):
            a(f"s_mov_b32 s{sTmp[0]}, {i*32768}")
            a(f"buffer_load_dwordx4 {vr(WUV+4*i,4)}, v{vWoff}, s[{SRD_A}:{SRD_A+3}], s{sTmp[0]} offen {self.wpol}")
    def wo_setup(self, p):
        a = self.a
        self.srd(SRD_A, p, 31*1280+160)
        a(f"s_mul_i32 s{sTmp[1]}, s{sW}, {32*160}"); a(f"s_add_u32 s{sTmp[1]}, s{sTmp[1]}, {L_R0}")
    def wo_one(self, i):
        a = self.a
        a(f"s_add_u32 m0, s{sTmp[1]}, {i*6*160}")
        a(f"s_mov_b32 s{sTmp[0]}, {i*6*1280}")
        if i < 5: a("s_mov_b32 exec_hi, 0x0fffffff")
        else: self.exec_set(0x000fffff, 0)
        a(f"buffer_load_dwordx4 v{vWo}, s[{SRD_A}:{SRD_A+3}], s{sTmp[0]} offen {self.wpol} lds")
        if i < 5: a("s_mov_b32 exec_hi, -1")
        else: self.exec_all()
    def load_wo(self, p):
        def f():
            self.wo_setup(p)
            for i in range(6): self.wo_one(i)
        self.pf_guard(f)
    def ckv_one(self, kk):
        a = self.a
        f = (kk & 8) | ((kk & 3) << 1) | ((kk >> 2) & 1)
        a(f"v_xor_b32 v{vCk}, {f*16}, v{vL16}")
        a(f"s_lshl_b32 s{sSO}, s{sW}, 14"); a(f"s_add_u32 m0, s{sSO}, {L_CKV + kk*1024}")
        a(f"s_mov_b32 s{sSO}, {kk*1024}")
        a(f"buffer_load_dwordx4 v{vCk}, s[{SRD_B}:{SRD_B+3}], s{sSO} offen {self.cpol} lds")
    def voff(self, u):
        return (u & 1) * 2048 + (u >> 1) * 512 if self.smf else u * 256
    def vtr_reg(self, b, u):
        if self.vsplit: return (60 if b == 14 else 80) + 4 * u
        return VTR + (b - 14) * 16 + 4 * u
    def vtr_one(self, k):
        a = self.a
        b, u = 14 + (k >> 2), k & 3
        if u == 0: a(f"s_mov_b32 s{sTmp[2]}, {b*4096}")
        a(f"buffer_load_dwordx4 {vr(self.vtr_reg(b, u),4)}, v{vVoff}, s[{SRD_V}:{SRD_V+3}], s{sTmp[2]} offen offset:{self.voff(u)} {self.pol}")

    def prologue(self):
        a = self.a
        a("s_cmp_ge_u32 s2, 256"); a("s_cbranch_scc1 L_end")
        a("s_load_dwordx4 s[64:67], s[0:1], 0")
        a("s_load_dwordx4 s[68:71], s[0:1], 16")
        a("s_load_dwordx4 s[72:75], s[0:1], 32")
        a("s_load_dwordx4 s[76:79], s[0:1], 56")
        a("s_load_dwordx4 s[80:83], s[0:1], 72")
        a("s_load_dwordx4 s[84:87], s[0:1], 88")
        a("s_load_dwordx2 s[8:9], s[0:1], 104")
        a(f"v_lshrrev_b32 v20, 6, v0")
        a(f"v_and_b32 v21, 63, v0")
        a(f"v_readfirstlane_b32 s{sW}, v20")
        a(f"s_and_b32 s{sH}, s2, 31"); a(f"s_lshr_b32 s{sJ}, s2, 5")
        a(f"s_and_b32 s{sXG}, s2, 7"); a(f"s_lshr_b32 s{sI}, s2, 3")
        a(f"s_and_b32 s{sGA}, s{sI}, 1")
        a(f"s_lshr_b32 s{sS}, s{sI}, 1"); a(f"s_lshl_b32 s92, s{sXG}, 4"); a(f"s_add_u32 s{sS}, s{sS}, s92")
        a(f"v_lshlrev_b32 v{vL16}, 4, v21")
        if self.codepf:
            lc = a.newlabel("cpf")
            a(f"s_cmp_lg_u32 s{sW}, 3"); a(f"s_cbranch_scc1 {lc}")
            a("s_getpc_b64 s[20:21]")
            a.label("L_pcx")
            a("s_mov_b32 s22, L_codeend-L_pcx"); a("s_mov_b32 s23, 0x20000")
            a("v_lshlrev_b32 v22, 6, v21")
            self.ncode = 7
            for i in range(self.ncode):
                a(f"s_mov_b32 s92, {i*4096}")
                a(f"buffer_load_dword v23, v22, s[20:23], s92 offen")
            a.label(lc)
        a("v_and_b32 v22, 15, v21")
        a("v_lshrrev_b32 v23, 4, v21") if not self.codepf else a("v_lshrrev_b32 v19, 4, v21")
        g = 23 if not self.codepf else 19
        a(f"v_lshlrev_b32 v24, 4, v22")
        a(f"v_lshl_add_u32 v{vWoff}, v{g}, 13, v24")
        if self.smf:
            a(f"v_lshrrev_b32 v25, 1, v{g}"); a(f"v_and_b32 v26, 1, v{g}"); a(f"v_lshl_add_u32 v25, v25, 2, v26")
            a(f"v_lshl_add_u32 v{vVoff}, v25, 8, v24")
        else:
            a(f"v_lshl_add_u32 v{vVoff}, v{g}, 10, v24")
        a(f"v_and_b32 v25, 3, v22"); a(f"v_lshl_add_u32 v25, v{g}, 2, v25"); a("v_lshlrev_b32 v25, 4, v25")
        a("v_lshrrev_b32 v26, 2, v22"); a(f"v_lshl_add_u32 v{vKoff}, v26, 8, v25")
        a("v_and_b32 v25, 1, v22"); a("v_cmp_eq_u32 vcc, 1, v25")
        a("v_mov_b32 v26, 0xffff"); a("v_mov_b32 v27, 0xffff0000"); a("v_cndmask_b32 v26, v26, v27, vcc")
        a("v_lshrrev_b32 v25, 1, v22")
        for r in range(4):
            a(f"v_cmp_eq_u32 vcc, {r}, v25"); a(f"v_cndmask_b32 v{vM[r]}, 0, v26, vcc")
        a(f"v_lshl_add_u32 v25, v22, 1, v{g}"); a("v_lshlrev_b32 v25, 4, v25")
        a("v_cmp_gt_u32 vcc, 32, v21"); a("v_mov_b32 v26, 512"); a("v_cndmask_b32 v25, v26, v25, vcc")
        a(f"s_mul_i32 s92, s{sW}, {RSTR}"); a(f"s_add_u32 s92, s92, {L_RED}"); a(f"v_add_u32 v{vRedW}, s92, v25")
        a(f"v_mul_u32_u24 v25, 6554, v21"); a(f"v_lshrrev_b32 v25, 16, v25")
        a(f"v_mul_u32_u24 v26, 10, v25"); a(f"v_sub_u32 v26, v21, v26")
        a(f"v_mul_u32_u24 v25, 1280, v25"); a(f"v_lshl_add_u32 v{vWo}, v26, 4, v25")
        a("s_waitcnt lgkmcnt(0)")
        a(f"s_mov_b32 s{SRD_WS+2}, 0x10000000"); a(f"s_mov_b32 s{SRD_WS+3}, 0x20000")
        if self.stamps:
            a(f"s_mov_b32 s{sL}, 0")
            self.stamp(12)
        self.dbgstamp("entry")
        a("v_mov_b32 v28, 0")
        a(f"buffer_load_dword v{vT}, v28, {W}, 0 offen sc1")
        a(f"s_mov_b32 s{pX}, s64"); a(f"s_mov_b32 s{pX+1}, s65")
        self.srd(SRD_B, pX, 1280)
        a(f"s_mul_i32 s92, s{sJ}, 80"); a(f"s_mul_i32 s93, s{sW}, 20"); a("s_add_u32 s92, s92, s93")
        a(f"v_lshl_add_u32 v25, v22, 2, v{g}"); a("v_add_u32 v25, s92, v25"); a("v_lshlrev_b32 v29, 1, v25")
        a(f"s_mov_b32 s94, 0x001f001f"); a(f"s_mov_b32 s95, 0x001f001f")
        a(f"v_mov_b32 v{vX}, 0")
        a("s_mov_b64 exec, s[94:95]")
        a(f"buffer_load_ushort v{vX}, v29, s[{SRD_B}:{SRD_B+3}], 0 offen")
        self.exec_all()
        def addp(dst, src, terms):
            a(f"s_mov_b32 s92, 0")
            for (sreg, c) in terms:
                a(f"s_mul_i32 s93, s{sreg}, {c}"); a("s_add_u32 s92, s92, s93")
            a(f"s_add_u32 s{dst}, s{src}, s92"); a(f"s_addc_u32 s{dst+1}, s{src+1}, 0")
        addp(pWqA, 68, [(sJ, 80*8192), (sW, 20*8192), (sH, 256)])
        a(f"s_mov_b32 s{sL}, 0")
        self.load_wq()
        addp(pWuk, 70, [(sJ, 64*8192), (sW, 16*8192), (sH, 256)])
        a(f"s_mov_b32 s{sFF}, 0xff")
        self.load_wuk()
        addp(pCkv, 66, [(sS, 65536), (sW, 16384)])
        addp(pWqB, 80, [(sJ, 80*8192), (sW, 20*8192), (sH, 256)])
        addp(pWuv, 72, [(sJ, 64*8192), (sW, 16*8192), (sH, 256)])
        addp(pWoA, 74, [(sH, 163840), (sW, 32*1280), (sJ, 160)])
        addp(pWoB, 82, [(sH, 163840), (sW, 32*1280), (sJ, 160)])
        addp(SRD_K, 76, [(sH, 2097152), (sJ, 262144), (sW, 65536)])
        addp(SRD_V, 78, [(sH, 2097152), (sJ, 262144), (sW, 65536)])
        a(f"s_mov_b32 s{SRD_K+2}, 65536"); a(f"s_mov_b32 s{SRD_K+3}, 0x20000")
        a(f"s_mov_b32 s{SRD_V+2}, 65536"); a(f"s_mov_b32 s{SRD_V+3}, 0x20000")
        a(f"s_mov_b32 s{pOut}, s84"); a(f"s_mov_b32 s{pOut+1}, s85")
        self.srd(SRD_B, pCkv, 16384)
        if self.pretouch:
            a(f"s_lshl_b32 s92, s2, 13"); a(f"s_lshl_b32 s93, s{sW}, 11"); a("s_add_u32 s92, s92, s93"); a(f"s_add_u32 s92, s92, {O_QP}")
            a(f"buffer_load_dwordx4 v[48:51], v{vL16}, {W}, s92 offen")
            a(f"buffer_load_dwordx4 v[48:51], v{vL16}, {W}, s92 offen offset:1024")
        a(f"s_mov_b32 s{sErr}, 0"); a(f"s_mov_b32 s{sLocal}, 0")
        a(f"s_mov_b32 s{sM5}, 0x001f001f"); a(f"s_mov_b32 s{sM5+1}, 0x001f001f")
        for i in range(4): a(f"s_mov_b32 s{sSel[i]}, {0x07060500+i:#x}")
        for t in range(4):
            a(f"s_mov_b32 s{sMask[t]}, {(0x000f000f << (4*t)):#x}"); a(f"s_mov_b32 s{sMask[t]+1}, {(0x000f000f << (4*t)):#x}")
        a(f"s_lshl_b32 s92, s{sXG}, 5"); a(f"s_add_u32 s92, s92, s{sI}"); a(f"s_lshl_b32 s92, s92, 2"); a(f"s_add_u32 s92, s92, s{sW}")
        a(f"s_lshl_b32 s92, s92, 13"); a(f"s_add_u32 s{sC1}, s92, {O_C1}")
        a(f"s_getpc_b64 s[{sSPC}:{sSPC+1}]")
        a.label("L_pc0")
        a(f"s_add_u32 s{sSPC}, s{sSPC}, L_stream-L_pc0"); a(f"s_addc_u32 s{sSPC+1}, s{sSPC+1}, 0")
        a(f"s_mov_b32 s{sAct}, 1"); a(f"s_mov_b32 s{sPos}, 0")
        a(f"s_mov_b32 s{sCol}, {O_COL:#x}")
        a(f"s_getreg_b32 s{sXcc}, hwreg(HW_REG_XCC_ID)"); a(f"s_and_b32 s{sXcc}, s{sXcc}, 0xf"); a(f"s_add_u32 s{sXcc}, s{sXcc}, 1"); a(f"s_lshl_b32 s{sXcc}, s{sXcc}, 8")
        a(f"s_getpc_b64 s[{sDW}:{sDW+1}]")
        a.label("L_pc1")
        a(f"s_add_u32 s{sDW}, s{sDW}, L_dw-L_pc1"); a(f"s_addc_u32 s{sDW+1}, s{sDW+1}, 0")
        if self.bud is not None: a(f"s_mov_b32 s{sBud}, {self.bud.get('pro', self.bud.get('*', 8))}")
        self.dwait(6 if self.pretouch else 4, 0, 'pro')
        a(f"v_readfirstlane_b32 s{sTf}, v{vT}")
        self.next_tag()
        a(f"v_lshlrev_b32 v{vX}, 16, v{vX}")
        if self.local:
            lx = a.newlabel("xp")
            a(f"s_cmp_lg_u32 s{sW}, 0"); a(f"s_cbranch_scc1 {lx}")
            for r in range(4): a(f"v_mov_b32 v{16+r}, s{sXcc}")
            self.tag([16, 17, 18, 19])
            a(f"s_lshl_b32 s92, s{sXG}, 9"); a(f"s_lshl_b32 s93, s{sI}, 4"); a("s_add_u32 s92, s92, s93"); a(f"s_add_u32 s92, s92, {O_XCC}")
            a("v_mov_b32 v20, 0")
            a("s_mov_b64 exec, 1")
            a(f"buffer_store_dwordx4 v[16:19], v20, {W}, s92 offen sc1")
            self.exec_all()
            a.label(lx)
        if self.mode == "first":
            self.drain(16)

    @property
    def NLOADS(self): return 138 if self.c1touch else 136
    @property
    def KEND(self): return 82 if self.c1touch else 80
    def first_block(self):
        r = self.NLOADS % self.kblk
        return r if r else self.kblk
    def stream(self):
        a = self.a
        loads = [("C", i) for i in range(16)] + ([("T", i) for i in range(2)] if self.c1touch else []) + [("K", i) for i in range(64)]
        loads += [("V", b, u) for b in range(10) for u in range(4)]
        loads += [("L", b, u) for b in range(10, 14) for u in range(4)]
        k = self.kblk
        assert len(loads) == self.NLOADS
        a.label("L_stream")
        starts = [0] + list(range(self.first_block(), len(loads), k))
        for bn, bi in enumerate(starts):
            be = starts[bn+1] if bn + 1 < len(starts) else len(loads)
            last_so = None
            for ld in loads[bi:be]:
                if ld[0] == "C":
                    self.ckv_one(ld[1]); last_so = None
                elif ld[0] == "T":
                    i = ld[1]; last_so = None
                    a(f"v_lshlrev_b32 v{vCk}, 2, v{vL16}")
                    a(f"s_add_u32 s{sSO}, s{sC1}, {i * 4096}")
                    a(f"buffer_load_dword v255, v{vCk}, {W}, s{sSO} offen")
                elif ld[0] == "K":
                    i = ld[1]; so = (i >> 2) * 4096
                    if so != last_so: a(f"s_mov_b32 s{sSO}, {so}"); last_so = so
                    a(f"buffer_load_dwordx4 {ar(4*i,4)}, v{vKoff}, s[{SRD_K}:{SRD_K+3}], s{sSO} offen offset:{(i&3)*1024} {self.pol}")
                elif ld[0] == "V":
                    _, b, u = ld; so = b * 4096
                    if so != last_so: a(f"s_mov_b32 s{sSO}, {so}"); last_so = so
                    a(f"buffer_load_dwordx4 {vr(VRES+16*b+4*u,4)}, v{vVoff}, s[{SRD_V}:{SRD_V+3}], s{sSO} offen offset:{self.voff(u)} {self.pol}")
                else:
                    _, b, u = ld
                    a(f"s_lshl_b32 s{sSO}, s{sW}, 14"); a(f"s_add_u32 m0, s{sSO}, {L_VL + ((b-10)*4+u)*1024}")
                    a(f"s_mov_b32 s{sSO}, {b*4096+self.voff(u)}"); last_so = None
                    a(f"buffer_load_dwordx4 v{vVoff}, s[{SRD_V}:{SRD_V+3}], s{sSO} offen {self.pol} lds")
            a(f"s_add_u32 s{sPos}, s{sPos}, {be-bi}")
            if be >= len(loads): a(f"s_mov_b32 s{sAct}, 0")
            a(f"s_swappc_b64 s[{sSPC}:{sSPC+1}], s[{sRET}:{sRET+1}]")
        a("s_endpgm")

    def qpart(self):
        a = self.a
        self.stamp(0)
        if self.split2:
            l0 = a.newlabel("q2w")
            a(f"s_cmp_eq_u32 s{sL}, 0"); a(f"s_cbranch_scc1 {l0}")
            self.second_w()
            a.label(l0)
        Xp, S1, S2 = 14, 15, 36
        D, Du, Ab = 16, 20, 24
        a(f"v_cvt_pk_bf16_f32 v{Xp}, v{vX}, v{vX}")
        a(f"v_and_b32 v{S1}, 0xffff0000, v{Xp}")
        a(f"v_mul_f32 v{S2}, v{S1}, v{S1}")
        self.pv_gemv(Xp, 5, lambda i: vr(WQ+4*i, 4), D, Ab)
        self.reduce63([S1, S2], "v_add_f32")
        lu = a.newlabel("nou")
        a(f"s_cmp_ge_u32 s{sL}, 2"); a(f"s_cbranch_scc1 {lu}")
        for r in range(4): a(f"v_and_b32 v{32+r}, 0x3f803f80, v{vM[r]}")
        for i in range(5):
            c = "0" if i == 0 else vr(Du, 4)
            a(f"v_mfma_f32_16x16x32_bf16 {vr(Du,4)}, {vr(32,4)}, {vr(WQ+4*i,4)}, {c}")
        self.red_write(Du, 528)
        a.label(lu)
        a(f"v_readlane_b32 s{sA}, v{S1}, 63"); a(f"v_readlane_b32 s{sB_}, v{S2}, 63")
        a(f"v_writelane_b32 v{D}, s{sA}, 32"); a(f"v_writelane_b32 v{D+1}, s{sB_}, 32")
        self.red_write(D)
        t = 14
        a(f"v_lshrrev_b32 v{t}, 4, v{vL16}")
        a(f"v_and_b32 v15, 1, v{t}"); a(f"v_lshlrev_b32 v15, 4, v15")
        a(f"v_lshrrev_b32 v36, 1, v{t}"); a(f"v_add_u32 v15, v15, v36"); a(f"v_lshlrev_b32 v15, 4, v15")
        a(f"v_cmp_gt_u32 vcc, 32, v{t}"); a(f"v_mov_b32 v36, 512"); a(f"v_cndmask_b32 v{t}, v36, v15, vcc")
        a(f"s_lshl_b32 s{sTmp[0]}, s{sH}, 3"); a(f"s_add_u32 s{sTmp[0]}, s{sTmp[0]}, s{sJ}"); a(f"s_lshl_b32 s{sTmp[0]}, s{sTmp[0]}, 11")
        a(f"s_add_u32 s{sTmp[0]}, s{sTmp[0]}, {O_QP}")
        a("s_waitcnt lgkmcnt(0)"); a("s_barrier")
        lf = a.newlabel("qfin")
        a(f"s_cmp_lg_u32 s{sW}, 0"); a(f"s_cbranch_scc1 {lf}")
        G = 16
        self.red_final_read(G)
        a("s_waitcnt lgkmcnt(0)")
        self.sum4(G); self.tag([G, G+1, G+2, G+3])
        a("s_mov_b32 exec_hi, 1")
        self.local_stores([(G, t, sTmp[0], None)])
        a("s_mov_b32 exec_hi, -1")
        a(f"s_cmp_ge_u32 s{sL}, 2"); a(f"s_cbranch_scc1 {lf}")
        G2 = 32
        self.red_final_read(G2, 528)
        a(f"s_add_u32 s{sTmp[0]}, s{sTmp[0]}, 1024")
        a("s_waitcnt lgkmcnt(0)")
        self.sum4(G2); self.tag([G2, G2+1, G2+2, G2+3])
        a("s_mov_b32 exec_hi, 0")
        self.local_stores([(G2, t, sTmp[0], None)])
        a("s_mov_b32 exec_hi, -1")
        a.label(lf)
        self.stamp(1)
        ad, ad2, adu, adx = 14, 15, 56, 57
        Gq, Gs, Gu, Gx = 16, 32, 36, 52
        a(f"v_lshrrev_b32 v{ad}, 8, v{vKoff}"); a(f"v_lshlrev_b32 v{ad}, 11, v{ad}")
        a(f"v_and_b32 v{ad2}, s{sFF}, v{vKoff}"); a(f"v_or_b32 v{ad}, v{ad}, v{ad2}")
        a(f"v_lshlrev_b32 v{adu}, 1, v{ad2}")
        a(f"v_lshrrev_b32 v{ad2}, 4, v{vL16}"); a(f"v_and_b32 v{ad2}, 7, v{ad2}"); a(f"v_lshlrev_b32 v{ad2}, 11, v{ad2}")
        a(f"s_lshl_b32 s{sTmp[0]}, s{sH}, 14"); a(f"s_add_u32 s{sTmp[0]}, s{sTmp[0]}, {O_QP}")
        a(f"s_add_u32 s{sTmp[1]}, s{sTmp[0]}, 8192")
        def iss_q():
            for i in range(2):
                for hf in range(2):
                    a(f"buffer_load_dwordx4 {vr(Gq+8*i+4*hf,4)}, v{ad}, {W}, s{sTmp[i]} offen offset:{hf*256} sc1")
            a(f"buffer_load_dwordx4 {vr(Gs,4)}, v{ad2}, {W}, s{sTmp[0]} offen offset:512 sc1")
        def iss_u():
            for i in range(2):
                for hf in range(2):
                    a(f"buffer_load_dwordx4 {vr(Gu+8*i+4*hf,4)}, v{ad}, {W}, s{sTmp[i]} offen offset:{1024+hf*256} sc1")
        def iss_x():
            a(f"buffer_load_dwordx4 {vr(Gx,4)}, v{adx}, {W}, s{sTmp[3]} offen sc1")
        U = 36
        l_late = a.newlabel("qlate"); l_j = a.newlabel("qj")
        a(f"s_and_b32 s{sTmp[2]}, s{sL}, 1"); a(f"s_lshl_b32 s{sTmp[2]}, s{sTmp[2]}, 9"); a(f"s_add_u32 s{sTmp[2]}, s{sTmp[2]}, {L_U}")
        a(f"v_add_u32 v{adu}, s{sTmp[2]}, v{adu}")
        a(f"s_cmp_ge_u32 s{sL}, 2"); a(f"s_cbranch_scc1 {l_late}")
        base_regs = [Gq, Gq+4, Gq+8, Gq+12, Gs, Gu, Gu+4, Gu+8, Gu+12]
        if self.local:
            l_one = a.newlabel("qone"); l_u = a.newlabel("qu")
            a(f"s_cmp_eq_u32 s{sL}, 1"); a(f"s_cbranch_scc1 {l_one}")
            a(f"v_and_b32 v{adx}, 0x1f0, v{vL16}")
            a(f"s_lshl_b32 s{sTmp[3]}, s{sXG}, 9"); a(f"s_add_u32 s{sTmp[3]}, s{sTmp[3]}, {O_XCC}")
            self.poll(lambda: (iss_q(), iss_u(), iss_x()), base_regs + [Gx], site='q0')
            a(f"v_cmp_ne_u32 vcc, s{sXcc}, v{Gx}")
            a(f"s_cmp_eq_u64 vcc, 0"); a(f"s_cselect_b32 s{sLocal}, 1, 0")
            a(f"s_branch {l_u}")
            a.label(l_one)
            self.poll(lambda: (iss_q(), iss_u()), base_regs, site='q1')
            a.label(l_u)
        else:
            self.poll(lambda: (iss_q(), iss_u()), base_regs)
        for r in range(8): a(f"v_add_f32 v{Gu+r}, v{Gu+r}, v{Gu+8+r}")
        self.dpp_steps([Gu+r for r in range(8)], "v_add_f32", ["row_ror:4", "row_ror:8"])
        lw = a.newlabel("uw")
        a(f"s_cmp_lg_u32 s{sW}, 0"); a(f"s_cbranch_scc1 {lw}")
        self.exec_set(0x000f000f, 0x000f000f)
        a(f"ds_write_b128 v{adu}, {vr(U,4)}"); a(f"ds_write_b128 v{adu}, {vr(U+4,4)} offset:16")
        self.exec_all()
        a.label(lw)
        a(f"s_branch {l_j}")
        a.label(l_late)
        a(f"ds_read_b128 {vr(U,4)}, v{adu}"); a(f"ds_read_b128 {vr(U+4,4)}, v{adu} offset:16")
        self.poll(iss_q, [Gq, Gq+4, Gq+8, Gq+12, Gs], site='q2')
        a("s_waitcnt lgkmcnt(0)")
        a.label(l_j)
        self.stamp(2)
        self.burst('Q1')
        st = [Gs, Gs+1]
        adds = [f"v_add_f32 v{Gq+r}, v{Gq+r}, v{Gq+8+r}" for r in range(8)]
        seq = []
        for k, d in enumerate((self.X1, self.X2, self.HM)):
            seq += [f"v_add_f32_dpp v{r}, v{r}, v{r} {d} {DPPALL}" for r in st]
            seq += adds[3*k:3*k+3] if k < 2 else adds[6:]
        for s_ in seq: a(s_)
        a(f"v_mul_f32 v{Gs}, {f32hex(1/640)}, v{Gs}")
        ror4 = [f"v_add_f32_dpp v{Gq+r}, v{Gq+r}, v{Gq+r} row_ror:4 {DPPALL}" for r in range(8)]
        ror8 = [f"v_add_f32_dpp v{Gq+r}, v{Gq+r}, v{Gq+r} row_ror:8 {DPPALL}" for r in range(8)]
        a(f"v_mul_f32 v{Gs+1}, {f32hex(1/640)}, v{Gs+1}")
        for s_ in ror4[:4]: a(s_)
        a(f"v_fma_f32 v{Gs+1}, -v{Gs}, v{Gs}, v{Gs+1}")
        for s_ in ror4[4:]: a(s_)
        a(f"v_add_f32 v{Gs+1}, {f32hex(1e-5)}, v{Gs+1}")
        for s_ in ror8[:4]: a(s_)
        a(f"v_rsq_f32 v{Gs+1}, v{Gs+1}")
        for s_ in ror8[4:]: a(s_)
        a(f"v_mul_f32 v{Gs+1}, {f32hex(SC)}, v{Gs+1}")
        for r in range(8): a(f"v_fma_f32 v{Gq+r}, -v{Gs}, v{U+r}, v{Gq+r}")
        a(f"v_readfirstlane_b32 s{sSc}, v{Gs+1}")
        Qp = 24
        for r in range(4): a(f"v_cvt_pk_bf16_f32 v{Qp+r}, v{Gq+2*r}, v{Gq+2*r+1}")
        for t in range(4):
            for r in range(4):
                a(f"v_cndmask_b32 v{AT+4*t+r}, 0, v{Qp+r}, s[{sMask[t]}:{sMask[t]+1}]")

    def combine8(self, G, ML, tmp):
        a = self.a
        M, f, Ls = tmp, tmp+1, tmp+2
        a(f"v_max_f32_dpp v{M}, v{ML}, v{ML} row_ror:8 {DPPALL}")
        self.dpp_steps([M], "v_max_f32", ["b15", "b31"])
        a(f"v_readlane_b32 s{sA}, v{M}, 63")
        a(f"v_subrev_f32 v{f}, s{sA}, v{ML}"); a(f"v_exp_f32 v{f}, v{f}")
        a(f"v_mul_f32 v{Ls}, v{f}, v{ML+1}")
        for r in range(4): a(f"v_mul_f32 v{G+r}, v{f}, v{G+r}")
        a(f"v_add_f32_dpp v{Ls}, v{Ls}, v{Ls} row_ror:8 {DPPALL}")
        for r in range(4): a(f"v_add_f32_dpp v{G+r}, v{G+r}, v{G+r} row_ror:8 {DPPALL}")
        a(f"v_add_f32_dpp v{Ls}, v{Ls}, v{Ls} row_bcast:15 row_mask:0xa bank_mask:0xf")
        a(f"v_permlane32_swap_b32 v{G}, v{G+2}")
        a(f"v_permlane32_swap_b32 v{G+1}, v{G+3}")
        a(f"v_add_f32_dpp v{Ls}, v{Ls}, v{Ls} row_bcast:31 row_mask:0xc bank_mask:0xf")
        a(f"v_add_f32 v{G}, v{G}, v{G+2}")
        a(f"v_add_f32 v{G+1}, v{G+1}, v{G+3}")
        a(f"v_readlane_b32 s{sA}, v{Ls}, 63")
        a(f"v_permlane16_swap_b32 v{G}, v{G+1}")
        a(f"v_rcp_f32 v{Ls}, s{sA}")
        a(f"v_add_f32 v{G}, v{G}, v{G+1}")
        a(f"v_mul_f32 v{G}, v{G}, v{Ls}")

    def amiddle(self):
        a = self.a
        D = 16
        for t in range(4):
            c = "0" if t == 0 else vr(D, 4)
            a(f"v_mfma_f32_16x16x32_bf16 {vr(D,4)}, {vr(AT+4*t,4)}, {vr(WUK+4*t,4)}, {c}")
        a(f"v_lshrrev_b32 v14, 8, v{vL16}"); a("v_lshlrev_b32 v14, 4, v14")
        a(f"s_lshl_b32 s{sTmp[0]}, s{sH}, 11"); a(f"s_lshl_b32 s{sTmp[1]}, s{sJ}, 8"); a(f"s_add_u32 s{sTmp[0]}, s{sTmp[0]}, s{sTmp[1]}")
        a(f"s_lshl_b32 s{sTmp[1]}, s{sW}, 6"); a(f"s_add_u32 s{sTmp[0]}, s{sTmp[0]}, s{sTmp[1]}")
        a(f"s_add_u32 s{sTmp[0]}, s{sTmp[0]}, {O_QABS}")
        S, S2 = 20, 21
        a(f"v_mov_b32_dpp v{S}, v{D} quad_perm:[0,0,0,0] {DPPALL}")
        a(f"v_mov_b32_dpp v{S2}, v{D+2} quad_perm:[2,2,2,2] {DPPALL}")
        a(f"s_nop 0")
        a(f"v_add_f32_dpp v{S}, v{D+1}, v{S} quad_perm:[1,1,1,1] {DPPALL}")
        a(f"v_add_f32_dpp v{S2}, v{D+3}, v{S2} quad_perm:[3,3,3,3] {DPPALL}")
        a(f"v_add_f32 v{S}, v{S}, v{S2}")
        a(f"v_mul_f32 v{S}, s{sSc}, v{S}")
        G = 24
        for q in range(4): a(f"v_mov_b32_dpp v{G+q}, v{S} row_newbcast:{4*q} {DPPALL}")
        self.tag([G, G+1, G+2, G+3])
        self.exec_set(0x00010001, 0x00010001)
        a(f"buffer_store_dwordx4 {vr(G,4)}, v14, {W}, s{sTmp[0]} offen sc1")
        self.exec_all()
        self.stamp(3)
        if not self.pfnew: self.load_wuv()
        Gq = 16
        a(f"s_lshl_b32 s{sTmp[0]}, s{sGA}, 15"); a(f"s_lshl_b32 s{sTmp[1]}, s{sW}, 9"); a(f"s_add_u32 s{sTmp[0]}, s{sTmp[0]}, s{sTmp[1]}")
        a(f"s_add_u32 s{sTmp[0]}, s{sTmp[0]}, {O_QABS}")
        for i in range(1, 4): a(f"s_add_u32 s{sTmp[i]}, s{sTmp[0]}, {i*8192}")
        vA0, vB0, vAx = 52, 53, 54
        n, g = 48, 49
        a(f"v_lshrrev_b32 v{n}, 4, v{vL16}"); a(f"v_lshrrev_b32 v{g}, 4, v{n}"); a(f"v_and_b32 v{n}, 15, v{n}")
        a(f"v_and_b32 v50, 8, v{n}"); a(f"v_and_b32 v51, 3, v{n}"); a(f"v_lshl_or_b32 v50, v51, 1, v50")
        a(f"v_bfe_u32 v51, v{n}, 2, 1"); a(f"v_or_b32 v50, v50, v51")
        a(f"s_lshl_b32 s{sTmp[4]}, s{sW}, 14"); a(f"s_add_u32 s{sTmp[4]}, s{sTmp[4]}, {L_CKV}")
        a(f"v_lshlrev_b32 v51, 10, v{n}"); a(f"v_lshl_add_u32 v51, v{g}, 8, v51"); a(f"v_lshl_add_u32 v51, v50, 4, v51")
        a(f"v_add_u32 v{vA0}, s{sTmp[4]}, v51")
        a(f"v_mul_u32_u24 v{vB0}, 1040, v{n}"); a(f"v_lshl_add_u32 v{vB0}, v{g}, 8, v{vB0}"); a(f"v_add_u32 v{vB0}, {L_R0}, v{vB0}")
        a(f"v_mul_u32_u24 v51, 272, v{n}"); a(f"v_lshl_add_u32 v50, v{g}, 4, v51")
        a(f"s_lshl_b32 s{sTmp[4]}, s{sW}, 6"); a(f"s_add_u32 s{sTmp[4]}, s{sTmp[4]}, {L_ST}"); a(f"v_add_u32 v50, s{sTmp[4]}, v50")
        a(f"v_lshl_add_u32 v51, v{g}, 5, v51"); a(f"v_add_u32 v51, {L_ST}, v51")
        vC0, vC1, vX0, vX1 = 76, 77, 78, 79
        a(f"v_and_b32 v14, 3, v{n}"); a(f"v_lshrrev_b32 v15, 2, v{n}")
        a(f"v_and_b32 v55, 1, v{g}"); a(f"v_lshlrev_b32 v55, 3, v55"); a(f"v_lshl_add_u32 v55, v15, 1, v55")
        a(f"v_lshrrev_b32 v56, 1, v14"); a(f"v_xor_b32 v55, v55, v56")
        a(f"v_lshl_add_u32 v56, v{g}, 3, v15"); a(f"v_lshlrev_b32 v56, 10, v56")
        a(f"v_lshl_add_u32 v56, v55, 4, v56"); a(f"v_and_b32 v14, 1, v14"); a(f"v_lshl_add_u32 v56, v14, 3, v56")
        a(f"s_lshl_b32 s{sTmp[4]}, s{sW}, 8"); a(f"s_add_u32 s{sTmp[4]}, s{sTmp[4]}, {L_CKV}")
        a(f"v_add_u32 v{vC0}, s{sTmp[4]}, v56")
        a(f"v_add_u32 v{vC1}, 4096, v{vC0}"); a(f"v_xor_b32 v{vC1}, 16, v{vC1}")
        a(f"s_lshl_b32 s{sTmp[4]}, s{sW}, 8"); a(f"s_add_u32 s{sTmp[4]}, s{sTmp[4]}, {L_R0}")
        a(f"v_lshrrev_b32 v14, 9, v{vL16}"); a(f"v_and_b32 v57, 0x1f0, v{vL16}")
        a(f"v_lshrrev_b32 v15, 1, v57"); a(f"v_mul_u32_u24 v58, 1040, v14"); a(f"v_add_u32 v15, v15, v58"); a(f"v_add_u32 v15, s{sTmp[4]}, v15")
        a(f"v_lshl_add_u32 v57, v14, 11, v57")
        lg0 = a.newlabel("cg"); lg1 = a.newlabel("cg")
        a.label(lg0)
        a(f"s_cmp_ge_u32 s{sPos}, 16"); a(f"s_cbranch_scc1 {lg1}")
        self.stream_call()
        a(f"s_branch {lg0}")
        a.label(lg1)
        if self.sent:
            lsk = a.newlabel("nosent")
            if not self.sent1:
                a(f"s_cmp_lg_u32 s{sAct}, 0"); a(f"s_cbranch_scc1 {lsk}")
            a(f"v_lshrrev_b32 v14, 7, v{vL16}"); a(f"v_lshlrev_b32 v14, 11, v14"); a(f"v_and_b32 v58, 0x70, v{vL16}"); a(f"v_lshl_add_u32 v14, v58, 2, v14")
            def iss0():
                a(f"buffer_load_dwordx4 {vr(Gq,4)}, v14, {W}, s{sTmp[0]} offen sc1")
                a(f"buffer_load_dwordx4 {vr(Gq+4,4)}, v14, {W}, s{sTmp[2]} offen sc1")
            self.poll(iss0, [Gq, Gq+4], site='sent')
            a.label(lsk)
            self.stamp(15)
        def iss():
            for i in range(8):
                so = sTmp[i >> 1]
                if i & 1:
                    a(f"s_add_u32 s{sTmp[5-1]}, s{so}, 4096"); so = sTmp[4]
                a(f"buffer_load_dwordx4 {vr(Gq+4*i,4)}, v57, {W}, s{so} offen sc1")
        self.poll(iss, [Gq+4*i for i in range(8)], site='h4')
        self.stampval(30, sSpin); self.stampval(31, sPos)
        self.stamp(4)
        if self.pfnew: self.load_wuv()
        self.burst('A0')
        if self.c1touch2 == "h4":
            lt = a.newlabel("t2")
            a(f"s_cmp_eq_u32 s{sL}, 0"); a(f"s_cbranch_scc1 {lt}")
            a(f"v_lshlrev_b32 v11, 2, v{vL16}")
            for i in range(2):
                a(f"s_add_u32 s{sTmp[0]}, s{sC1}, {i * 4096}")
                a(f"buffer_load_dword v12, v11, {W}, s{sTmp[0]} offen")
            a.label(lt)
        for i in range(8):
            b = Gq + 4*i
            a(f"v_cvt_pk_bf16_f32 v{b}, v{b}, v{b+1}"); a(f"v_cvt_pk_bf16_f32 v{b+1}, v{b+2}, v{b+3}")
            a(f"ds_write_b64 v15, {vr(b,2)} offset:{i*2*1040}")
        a("s_waitcnt lgkmcnt(0)"); a("s_barrier")
        self.stamp(16)
        if "S" in self.xcalls: self.topup(site='S')
        self.burst('S')
        AB = 16
        Ds = 56
        def rd(st):
            b = AB + 8 * (st % 4)
            if st == 0: a(f"ds_read_b128 {vr(b,4)}, v{vA0}")
            else:
                a(f"v_xor_b32 v{vAx}, {st<<4}, v{vA0}"); a(f"ds_read_b128 {vr(b,4)}, v{vAx}")
            a(f"ds_read_b128 {vr(b+4,4)}, v{vB0} offset:{st*16}")
        for st in range(4): rd(st)
        for st in range(16):
            rem = min(3, 15 - st)
            a(f"s_waitcnt lgkmcnt({2*rem})")
            b = AB + 8 * (st % 4)
            c = "0" if st == 0 else vr(Ds, 4)
            a(f"v_mfma_f32_16x16x32_bf16 {vr(Ds,4)}, {vr(b,4)}, {vr(b+4,4)}, {c}")
            if st + 4 < 16: rd(st + 4)
        a(f"ds_write_b128 v50, {vr(Ds,4)}")
        a("s_waitcnt lgkmcnt(0)"); a("s_barrier")
        self.stamp(17)
        SS = 16
        for u in range(2):
            for hf in range(2):
                a(f"ds_read_b128 {vr(SS+8*u+4*hf,4)}, v51 offset:{u*128+hf*16}")
        if self.pfnew: self.load_wo(pWoA)
        DT = 44; AF = 56
        m, l, t1, t2 = 32, 33, 34, 35
        a("s_waitcnt lgkmcnt(0)")
        a(f"v_max3_f32 v{m}, v{SS}, v{SS+1}, v{SS+2}"); a(f"v_max3_f32 v{t1}, v{SS+3}, v{SS+4}, v{SS+5}")
        a(f"v_max3_f32 v{m}, v{m}, v{SS+6}, v{SS+7}"); a(f"v_max3_f32 v{t1}, v{t1}, v{SS+8}, v{SS+9}")
        a(f"v_max3_f32 v{m}, v{m}, v{SS+10}, v{SS+11}"); a(f"v_max3_f32 v{t1}, v{t1}, v{SS+12}, v{SS+13}")
        a(f"v_max3_f32 v{m}, v{m}, v{SS+14}, v{SS+15}"); a(f"v_max_f32 v{m}, v{m}, v{t1}")
        for sw in ("v_permlane16_swap_b32", "v_permlane32_swap_b32"):
            a(f"v_mov_b32 v{t1}, v{m}"); a(f"{sw} v{m}, v{t1}"); a(f"v_max_f32 v{m}, v{m}, v{t1}")
        for k in range(16): a(f"v_sub_f32 v{SS+k}, v{SS+k}, v{m}")
        for k in range(16): a(f"v_exp_f32 v{SS+k}, v{SS+k}")
        P = 36
        for k in range(8): a(f"v_cvt_pk_bf16_f32 v{P+k}, v{SS+2*k}, v{SS+2*k+1}")
        for k in range(8): a(f"v_add_f32 v{SS+k}, v{SS+k}, v{SS+8+k}")
        for k in range(4): a(f"v_add_f32 v{SS+k}, v{SS+k}, v{SS+4+k}")
        a(f"v_add_f32 v{SS}, v{SS}, v{SS+1}"); a(f"v_add_f32 v{SS+2}, v{SS+2}, v{SS+3}"); a(f"v_add_f32 v{l}, v{SS}, v{SS+2}")
        self.stamp(18)
        if "smax" in self.xcalls: self.topup(site='S')
        self.burst('smax')
        AF = 16
        steps = [(t, u) for t in range(8) for u in range(2)]
        def rdA(k):
            t, u = steps[k]; b = AF + 4 * (k % 4)
            if u == 0:
                if t == 0:
                    a(f"v_mov_b32 v{vX0}, v{vC0}"); a(f"v_mov_b32 v{vX1}, v{vC1}")
                else:
                    a(f"v_xor_b32 v{vX0}, {t<<5}, v{vC0}"); a(f"v_xor_b32 v{vX1}, {t<<5}, v{vC1}")
            a(f"ds_read_b64_tr_b16 {vr(b,2)}, v{vX0} offset:{u*32768}")
            a(f"ds_read_b64_tr_b16 {vr(b+2,2)}, v{vX1} offset:{u*32768}")
        for k in range(4): rdA(k)
        for sw in ("v_permlane16_swap_b32", "v_permlane32_swap_b32"):
            a(f"v_mov_b32 v{t1}, v{l}"); a(f"{sw} v{l}, v{t1}"); a(f"v_add_f32 v{l}, v{l}, v{t1}")
        a(f"v_lshrrev_b32 v14, 8, v{vL16}"); a(f"v_lshlrev_b32 v14, 17, v14"); a(f"v_and_b32 v15, 0xf0, v{vL16}"); a(f"v_add_u32 v14, v14, v15")
        a(f"s_lshl_b32 s{sTmp[0]}, s{sXG}, 20"); a(f"s_lshl_b32 s{sTmp[1]}, s{sGA}, 19"); a(f"s_add_u32 s{sTmp[0]}, s{sTmp[0]}, s{sTmp[1]}")
        a(f"s_lshl_b32 s{sTmp[1]}, s{sW}, 15"); a(f"s_add_u32 s{sTmp[0]}, s{sTmp[0]}, s{sTmp[1]}")
        a(f"s_and_b32 s{sTmp[2]}, s{sS}, 15"); a(f"s_lshl_b32 s{sTmp[1]}, s{sTmp[2]}, 9"); a(f"s_add_u32 s{sTmp[0]}, s{sTmp[0]}, s{sTmp[1]}")
        a(f"s_add_u32 s{sTmp[0]}, s{sTmp[0]}, {O_C1}")
        a(f"s_lshl_b32 s{sTmp[3]}, s{sXG}, 14"); a(f"s_lshl_b32 s{sTmp[1]}, s{sGA}, 13"); a(f"s_add_u32 s{sTmp[3]}, s{sTmp[3]}, s{sTmp[1]}")
        a(f"s_lshl_b32 s{sTmp[1]}, s{sW}, 9"); a(f"s_add_u32 s{sTmp[3]}, s{sTmp[3]}, s{sTmp[1]}")
        a(f"s_lshl_b32 s{sTmp[1]}, s{sTmp[2]}, 5"); a(f"s_add_u32 s{sTmp[3]}, s{sTmp[3]}, s{sTmp[1]}")
        a(f"s_add_u32 s{sTmp[3]}, s{sTmp[3]}, {O_ML1}")
        a(f"v_bfe_u32 v15, v{vL16}, 6, 2"); a(f"v_lshlrev_b32 v15, 11, v15")
        a(f"v_bfe_u32 v32+2, v{vL16}, 8, 1".replace("v32+2", "v34")); a(f"v_lshl_add_u32 v15, v34, 4, v15")
        MG = 76 - 0
        a(f"s_mov_b32 vcc_lo, 0xffff0000"); a("s_mov_b32 vcc_hi, 0")
        a(f"v_cndmask_b32 v34, v32, v33, vcc")
        mlops = [f"v_mov_b32_dpp v32, v34 quad_perm:[0,0,0,0] {DPPALL}", f"v_mov_b32_dpp v33, v34 quad_perm:[1,1,1,1] {DPPALL}",
                 f"v_mov_b32_dpp v35, v34 quad_perm:[3,3,3,3] {DPPALL}", f"v_mov_b32_dpp v34, v34 quad_perm:[2,2,2,2] {DPPALL}"]
        for k in range(16):
            t, u = steps[k]; b = AF + 4 * (k % 4)
            rem = min(3, 15 - k)
            a(f"s_waitcnt lgkmcnt({2*rem})")
            c = "0" if u == 0 else vr(DT+4*t, 4)
            a(f"v_mfma_f32_16x16x32_bf16 {vr(DT+4*t,4)}, {vr(P+4*u,4)}, {vr(b,4)}, {c}")
            if k + 4 < 16: rdA(k + 4)
            if k == 0:
                for x_ in mlops: a(x_)
            if k == 2: self.tag([32, 33, 34, 35])
            if u == 1 and t >= 2: self.tag([DT+4*(t-2)+r for r in range(4)])
        self.tag([DT+4*6+r for r in range(4)]); self.tag([DT+4*7+r for r in range(4)])
        self.stamp(19)
        items = []
        for t in range(8):
            def pre(t=t): a(f"s_add_u32 s{sTmp[1]}, s{sTmp[0]}, {(t>>1)*8192+(t&1)*256}")
            items.append((DT+4*t, 14, sTmp[1], pre))
        def pre_ml(): a("s_mov_b32 exec_lo, 0x11111111"); a("s_mov_b32 exec_hi, 0")
        items.append((32, 15, sTmp[3], pre_ml))
        if self.c1sc1:
            loc = self.local; self.local = False
            self.local_stores(items)
            self.local = loc
        else:
            self.local_stores(items)
        self.exec_all()
        self.stamp(5)
        G, MM, LL = 16, 48, 52
        a(f"v_lshrrev_b32 v14, 4, v{vL16}"); a(f"v_and_b32 v15, 7, v14"); a(f"v_lshrrev_b32 v14, 5, v14")
        a(f"v_lshl_add_u32 v14, v15, 1, v14"); a(f"v_lshlrev_b32 v14, 5, v14")
        a(f"s_lshl_b32 s{sTmp[0]}, s{sXG}, 5"); a(f"s_add_u32 s{sTmp[0]}, s{sTmp[0]}, s{sI}")
        a(f"s_lshl_b32 s{sTmp[2]}, s{sTmp[0]}, 9"); a(f"s_add_u32 s{sTmp[2]}, s{sTmp[2]}, {O_ML1}")
        a(f"s_lshl_b32 s{sTmp[0]}, s{sTmp[0]}, 2"); a(f"s_add_u32 s{sTmp[0]}, s{sTmp[0]}, s{sW}")
        a(f"s_lshl_b32 s{sTmp[0]}, s{sTmp[0]}, 13"); a(f"s_add_u32 s{sTmp[0]}, s{sTmp[0]}, {O_C1}")
        a(f"s_add_u32 s{sTmp[1]}, s{sTmp[0]}, 4096")
        def issML():
            a(f"buffer_load_dwordx4 {vr(MM,4)}, v14, {W}, s{sTmp[2]} offen sc1")
            a(f"buffer_load_dwordx4 {vr(LL,4)}, v14, {W}, s{sTmp[2]} offen offset:16 sc1")
        lsk = a.newlabel("noml")
        if not self.mlsent:
            a(f"s_cmp_lg_u32 s{sAct}, 0"); a(f"s_cbranch_scc1 {lsk}")
        if not self.mltail:
            a(f"s_cmp_ge_u32 s{sL}, 2"); a(f"s_cbranch_scc1 {lsk}")
        self.poll(issML, [MM, LL], site='ml1')
        a.label(lsk)
        self.stamp(20)
        Mx, wv, den, t1 = 56, 60, 64, 68
        chk = 72
        lp = a.newlabel("sw1"); ns = a.newlabel("sw1n"); jn = a.newlabel("sw1j"); dn = a.newlabel("sw1d"); ns2 = a.newlabel("sw1m"); jn2 = a.newlabel("sw1k")
        a(f"s_mov_b32 s{sSpin}, 0")
        if self.bud is not None: a(f"s_mov_b32 s{sBud}, {self.bud.get('sw1', self.bud.get('*', 8))}")
        self.predelay('sw1')
        a.label(lp)
        issML()
        for i in range(8):
            a(f"buffer_load_dwordx4 {vr(G+4*i,4)}, v{vL16}, {W}, s{sTmp[i>>2]} offen offset:{(i&3)*1024} sc1")
        a(f"s_mov_b32 s{sYoung}, 8")
        self.dwait(8, 10 if self.addn else 0, 'sw1')
        a(f"s_sub_u32 s{sTmp[4]}, s{sYoung}, 8")
        for r in range(4): a(f"v_xor_b32 v{MM+r}, s{sT[r]}, v{MM+r}")
        for r in range(4): a(f"v_xor_b32 v{LL+r}, s{sT[r]}, v{LL+r}")
        a(f"v_or3_b32 v{chk}, v{MM}, v{MM+1}, v{MM+2}"); a(f"v_or3_b32 v{chk}, v{chk}, v{MM+3}, v{LL}")
        a(f"v_or3_b32 v{chk}, v{chk}, v{LL+1}, v{LL+2}"); a(f"v_or_b32 v{chk}, v{chk}, v{LL+3}")
        R4 = range(4)
        for r in R4: a(f"v_max_f32_dpp v{Mx+r}, v{MM+r}, v{MM+r} {self.X1} {DPPALL}")
        self.dpp_steps([Mx+r for r in R4], "v_max_f32", [self.X2, self.HM])
        for r in R4: a(f"v_mov_b32 v{t1+r}, v{Mx+r}")
        for r in R4: a(f"v_permlane32_swap_b32 v{Mx+r}, v{t1+r}")
        for r in R4: a(f"v_max_f32 v{Mx+r}, v{Mx+r}, v{t1+r}")
        for r in R4: a(f"v_sub_f32 v{wv+r}, v{MM+r}, v{Mx+r}")
        for r in R4: a(f"v_exp_f32 v{wv+r}, v{wv+r}")
        for r in R4: a(f"v_mul_f32 v{den+r}, v{wv+r}, v{LL+r}")
        self.dpp_steps([den+r for r in R4], "v_add_f32", [self.X1, self.X2, self.HM])
        for r in R4: a(f"v_mov_b32 v{t1+r}, v{den+r}")
        for r in R4: a(f"v_permlane32_swap_b32 v{den+r}, v{t1+r}")
        for r in R4: a(f"v_add_f32 v{den+r}, v{den+r}, v{t1+r}")
        if self.mode == "co":
            a(f"s_cmp_eq_u32 s{sTmp[4]}, 0"); a(f"s_cbranch_scc1 {ns2}")
            a(f"s_mov_b32 s{sYoung}, s{sTmp[4]}")
            a(f"s_swappc_b64 s[{sRET2}:{sRET2+1}], s[{sDW}:{sDW+1}]")
            a(f"s_branch {jn2}")
            a.label(ns2)
        self.dwait(0, 0, 'sw1')
        a.label(jn2)
        dw = [G + i for i in range(32)]
        for k, r in enumerate(dw): a(f"v_xor_b32 v{r}, s{sT[k % 4]}, v{r}")
        a(f"v_or3_b32 v{vT0}, v{dw[0]}, v{dw[1]}, v{chk}"); a(f"v_or3_b32 v{vT0+1}, v{dw[2]}, v{dw[3]}, v{dw[4]}")
        k = 5; tog = 0
        while k < 31:
            tgt = vT0 + tog
            a(f"v_or3_b32 v{tgt}, v{tgt}, v{dw[k]}, v{dw[k+1]}"); k += 2; tog ^= 1
        a(f"v_or3_b32 v{vT0}, v{vT0}, v{vT0+1}, v{dw[31]}")
        a(f"v_and_b32 v{vT0}, s{sFF}, v{vT0}")
        a(f"v_cmp_ne_u32 vcc, 0, v{vT0}")
        a(f"s_cbranch_vccz {dn}")
        a(f"s_add_u32 s{sSpin}, s{sSpin}, 1"); a(f"s_cmp_lt_u32 s{sSpin}, {SPIN_MAX}"); a(f"s_cbranch_scc1 {lp}")
        a(f"s_mov_b32 s{sErr}, 1")
        a.label(dn)
        self.stampval(24, sSpin); self.stampval(25, sPos)
        self.stamp(6)
        self.burst('A1')
        acc = 48
        for i in range(8):
            for r in range(4):
                op = "v_mul_f32_dpp" if i == 0 else "v_fmac_f32_dpp"
                a(f"{op} v{acc+r}, v{wv+r}, v{G+4*i+r} row_newbcast:{i} {DPPALL}")
        a(f"v_bfe_u32 v14, v{vL16}, 8, 1"); a(f"v_lshlrev_b32 v14, 11, v14"); a(f"v_and_b32 v15, 0xf0, v{vL16}"); a(f"v_add_u32 v14, v14, v15")
        for r in R4: a(f"v_mov_b32 v{t1+r}, v{acc+r}")
        a(f"s_lshr_b32 s{sTmp[0]}, s{sI}, 2"); a(f"s_lshl_b32 s{sTmp[0]}, s{sTmp[0]}, 16")
        a(f"s_and_b32 s{sTmp[1]}, s{sI}, 3"); a(f"s_lshl_b32 s{sTmp[1]}, s{sTmp[1]}, 14"); a(f"s_add_u32 s{sTmp[0]}, s{sTmp[0]}, s{sTmp[1]}")
        for r in R4: a(f"v_permlane32_swap_b32 v{acc+r}, v{t1+r}")
        a(f"s_lshl_b32 s{sTmp[1]}, s{sW}, 12"); a(f"s_add_u32 s{sTmp[0]}, s{sTmp[0]}, s{sTmp[1]}")
        a(f"s_lshl_b32 s{sTmp[1]}, s{sXG}, 8"); a(f"s_add_u32 s{sTmp[0]}, s{sTmp[0]}, s{sTmp[1]}")
        for r in R4: a(f"v_add_f32 v{acc+r}, v{acc+r}, v{t1+r}")
        a(f"s_add_u32 s{sTmp[0]}, s{sTmp[0]}, {O_C2}")
        self.tag([acc, acc+1, acc+2, acc+3])
        a("s_mov_b32 exec_hi, 0")
        a(f"buffer_store_dwordx4 {vr(acc,4)}, v14, {W}, s{sTmp[0]} offen sc1")
        a("s_mov_b32 exec_hi, -1")
        lm = a.newlabel("ml2")
        a(f"s_and_b32 s{sTmp[1]}, s{sI}, 3"); a(f"s_or_b32 s{sTmp[1]}, s{sTmp[1]}, s{sW}"); a(f"s_cmp_lg_u32 s{sTmp[1]}, 0"); a(f"s_cbranch_scc1 {lm}")
        for r in (1, 2, 3):
            a(f"s_mov_b64 vcc, {1 << r}")
            a(f"v_cndmask_b32 v{Mx}, v{Mx}, v{Mx+r}, vcc"); a(f"v_cndmask_b32 v{den}, v{den}, v{den+r}, vcc")
        a(f"v_mov_b32 v{Mx+1}, v{den}"); a(f"v_mov_b32 v{Mx+2}, 0"); a(f"v_mov_b32 v{Mx+3}, 0")
        self.tag([Mx, Mx+1, Mx+2, Mx+3])
        a(f"s_lshl_b32 s{sTmp[1]}, s{sI}, 7"); a(f"s_lshl_b32 s{sTmp[2]}, s{sXG}, 4"); a(f"s_add_u32 s{sTmp[1]}, s{sTmp[1]}, s{sTmp[2]}")
        a(f"s_add_u32 s{sTmp[1]}, s{sTmp[1]}, {O_ML2}")
        a(f"v_lshlrev_b32 v15, 3, v{vL16}")
        a("s_mov_b64 exec, 15")
        a(f"buffer_store_dwordx4 {vr(Mx,4)}, v15, {W}, s{sTmp[1]} offen sc1")
        self.exec_all()
        a.label(lm)
        self.stamp(21)
        if not self.pfnew: self.load_wo(pWoA)
        G0, G1, M0, M1 = 16, 20, 24, 28
        a(f"v_bfe_u32 v15, v{vL16}, 6, 2")
        a(f"v_bfe_u32 v14, v{vL16}, 4, 2"); a(f"v_lshlrev_b32 v14, 2, v14"); a(f"v_lshrrev_b32 v32, 8, v{vL16}"); a(f"v_add_u32 v14, v14, v32")
        a(f"v_lshlrev_b32 v14, 4, v14"); a(f"v_lshl_add_u32 v14, v15, 8, v14")
        a(f"v_lshlrev_b32 v15, 4, v15")
        a(f"s_lshr_b32 s{sTmp[0]}, s{sH}, 2"); a(f"s_lshl_b32 s{sTmp[0]}, s{sTmp[0]}, 16"); a(f"s_lshl_b32 s{sTmp[1]}, s{sJ}, 13"); a(f"s_add_u32 s{sTmp[0]}, s{sTmp[0]}, s{sTmp[1]}")
        a(f"s_lshl_b32 s{sTmp[1]}, s{sW}, 11"); a(f"s_add_u32 s{sTmp[0]}, s{sTmp[0]}, s{sTmp[1]}"); a(f"s_add_u32 s{sTmp[0]}, s{sTmp[0]}, {O_C2}")
        a(f"s_lshl_b32 s{sTmp[2]}, s{sH}, 7"); a(f"s_add_u32 s{sTmp[2]}, s{sTmp[2]}, {O_ML2}")
        def iss2():
            a(f"buffer_load_dwordx4 {vr(M0,4)}, v15, {W}, s{sTmp[2]} offen sc1")
            a(f"buffer_load_dwordx4 {vr(M1,4)}, v15, {W}, s{sTmp[2]} offen offset:64 sc1")
            a(f"buffer_load_dwordx4 {vr(G0,4)}, v14, {W}, s{sTmp[0]} offen sc1")
            a(f"buffer_load_dwordx4 {vr(G1,4)}, v14, {W}, s{sTmp[0]} offen offset:1024 sc1")
        self.poll(iss2, [M0, M1, G0, G1], site='h5b')
        self.stampval(26, sSpin); self.stampval(27, sPos)
        self.stamp(14)
        self.burst('A2')
        lsel = [a.newlabel("sel") for _ in range(4)]; lj = a.newlabel("selj")
        Mx, f0, f1, Ls = 32, 33, 34, 35
        a(f"v_max_f32 v{Mx}, v{M0}, v{M1}")
        a(f"s_and_b32 s{sTmp[1]}, s{sH}, 3")
        for r in (1, 2, 3):
            a(f"s_cmp_eq_u32 s{sTmp[1]}, {r}"); a(f"s_cbranch_scc1 {lsel[r]}")
        a(f"s_branch {lj}")
        for r in (1, 2, 3):
            a.label(lsel[r])
            a(f"v_mov_b32 v{G0}, v{G0+r}"); a(f"v_mov_b32 v{G1}, v{G1+r}")
            if r < 3: a(f"s_branch {lj}")
        a.label(lj)
        self.dpp_steps([Mx], "v_max_f32", ["row_ror:4", "row_ror:8"])
        a(f"v_sub_f32 v{f0}, v{M0}, v{Mx}"); a(f"v_sub_f32 v{f1}, v{M1}, v{Mx}")
        a(f"v_exp_f32 v{f0}, v{f0}"); a(f"v_exp_f32 v{f1}, v{f1}")
        a(f"v_mul_f32 v{Ls}, v{f0}, v{M0+1}"); a(f"v_mul_f32 v{G0}, v{f0}, v{G0}")
        a(f"v_fmac_f32 v{Ls}, v{f1}, v{M1+1}"); a(f"v_fmac_f32 v{G0}, v{f1}, v{G1}")
        self.dpp_steps([Ls, G0], "v_add_f32", ["row_ror:4", "row_ror:8"])
        a(f"v_rcp_f32 v{Ls}, v{Ls}")
        a(f"v_mul_f32 v{G0}, v{G0}, v{Ls}")
        Xp = 14
        a(f"v_cvt_pk_bf16_f32 v{Xp}, v{G0}, v{G0}")
        D, Ab = 16, 20
        self.pv_gemv(Xp, 4, lambda i: vr(WUV+4*i, 4), D, Ab)
        self.red_write(D)
        self.row_slot_addr()
        a("s_waitcnt lgkmcnt(0)"); a("s_barrier")
        lf = a.newlabel("uvfin")
        a(f"s_cmp_lg_u32 s{sW}, 0"); a(f"s_cbranch_scc1 {lf}")
        G = 16
        self.red_final_read(G)
        a(f"s_mov_b32 s{sA}, {f32hex(0.125)}")
        a("s_waitcnt lgkmcnt(0)")
        self.sum4(G)
        a(f"v_writelane_b32 v{G}, 0, 32"); a(f"v_writelane_b32 v{G+1}, s{sA}, 32")
        self.tag([G, G+1, G+2, G+3])
        a("s_mov_b32 exec_hi, 1")
        self.local_stores([(G, vL16, sTmp[0], None)])
        a("s_mov_b32 exec_hi, -1")
        a.label(lf)
        self.stamp(7)

    def check_inline(self, regs, ok_label):
        a = self.a
        acc, acc2 = vT0, vT0 + 1
        dw = [g + i for g in regs for i in range(4)]
        for k, r in enumerate(dw): a(f"v_xor_b32 v{r}, s{sT[k % 4]}, v{r}")
        a(f"v_or3_b32 v{acc}, v{dw[0]}, v{dw[1]}, v{dw[2]}")
        a(f"v_or3_b32 v{acc2}, v{dw[3]}, v{dw[4]}, v{dw[5]}")
        k = 6; tog = 0
        while k < len(dw):
            tgt = acc if tog == 0 else acc2
            a(f"v_or3_b32 v{tgt}, v{tgt}, v{dw[k]}, v{dw[k+1]}"); k += 2; tog ^= 1
        a(f"v_or_b32 v{acc}, v{acc}, v{acc2}")
        a(f"v_and_b32 v{acc}, s{sFF}, v{acc}")
        a(f"v_cmp_ne_u32 vcc, 0, v{acc}")
        a(f"s_cbranch_vccz {ok_label}")

    def row_slot_addr(self):
        a = self.a
        a(f"s_lshl_b32 s{sTmp[0]}, s{sH}, 3"); a(f"s_add_u32 s{sTmp[0]}, s{sTmp[0]}, s{sJ}"); a(f"s_lshl_b32 s{sTmp[0]}, s{sTmp[0]}, 10")
        a(f"s_add_u32 s{sTmp[0]}, s{sTmp[0]}, {O_ROW}")

    def bmiddle(self):
        a = self.a
        k = self.kblk
        if self.mode == "co":
            l0 = a.newlabel("kw"); l1 = a.newlabel("kw")
            a.label(l0)
            a(f"s_cmp_ge_u32 s{sPos}, {self.KEND+self.keep}"); a(f"s_cbranch_scc1 {l1}")
            self.stream_call()
            a(f"s_waitcnt vmcnt({self.keep})")
            a(f"s_branch {l0}")
            a.label(l1)
            a(f"s_waitcnt vmcnt({self.keep})")
        self.stampval(24, sPos)
        self.stamp(16)
        if not self.vsplit or self.woqk: self.wo_setup(pWoB)
        Db = [16, 20, 24]; SB = 28; Tt = 14
        def redops(b):
            D = Db[b % 3]; S = SB + b
            return [f"v_mov_b32_dpp v{S}, v{D} quad_perm:[0,0,0,0] {DPPALL}",
                    f"v_mov_b32_dpp v{Tt}, v{D+2} quad_perm:[2,2,2,2] {DPPALL}",
                    f"v_add_f32_dpp v{S}, v{D+1}, v{S} quad_perm:[1,1,1,1] {DPPALL}",
                    f"v_add_f32_dpp v{Tt}, v{D+3}, v{Tt} quad_perm:[3,3,3,3] {DPPALL}",
                    f"v_add_f32 v{S}, v{S}, v{Tt}"]
        for b in range(16):
            D = Db[b % 3]
            ro = redops(b - 2) if b >= 2 else []
            for t in range(4):
                c = "0" if t == 0 else vr(D, 4)
                a(f"v_mfma_f32_16x16x32_bf16 {vr(D,4)}, {vr(AT+4*t,4)}, {ar(16*b+4*t,4)}, {c}")
                if ro: a(ro[t])
                if self.vsplit:
                    if self.woqk and t == 1 and b < 6: self.wo_one(b)
                    if t == 2 and (6 if self.woqk else 0) <= b < (10 if self.woqk else 4): self.vtr_one(4 + b - (6 if self.woqk else 0))
                else:
                    if t == 1 and b < 8: self.pf_guard(lambda: self.vtr_one(b))
                    if t == 2 and 8 <= b < 14: self.pf_guard(lambda: self.wo_one(b - 8))
            if ro: a(ro[4])
            if b in self.qkcalls: self.topup(self.dq)
        r14, r15 = redops(14), redops(15)
        r15 = [x.replace(f"v{Tt}", "v15") for x in r15]
        for x14, x15 in zip(r14, r15):
            a(x14); a(x15)
        self.stamp(3)
        m, m2 = 14, 15
        a(f"v_max3_f32 v{m}, v{SB}, v{SB+1}, v{SB+2}"); a(f"v_max3_f32 v{m2}, v{SB+3}, v{SB+4}, v{SB+5}")
        a(f"v_max3_f32 v{m}, v{m}, v{SB+6}, v{SB+7}"); a(f"v_max3_f32 v{m2}, v{m2}, v{SB+8}, v{SB+9}")
        a(f"v_max3_f32 v{m}, v{m}, v{SB+10}, v{SB+11}"); a(f"v_max3_f32 v{m2}, v{m2}, v{SB+12}, v{SB+13}")
        a(f"v_max3_f32 v{m}, v{m}, v{SB+14}, v{SB+15}"); a(f"v_max_f32 v{m}, v{m}, v{m2}")
        self.dpp_steps([m], "v_max_f32", ["row_ror:4", "row_ror:8", "b15", "b31"])
        a(f"v_readlane_b32 s{sA}, v{m}, 63")
        a(f"v_mov_b32 v{m2}, s{sSc}")
        a(f"v_mul_f32 v{m}, s{sA}, v{m2}")
        a(f"v_readfirstlane_b32 s{sA}, v{m}")
        for q in range(16): a(f"v_fma_f32 v{SB+q}, v{SB+q}, s{sSc}, -v{m}")
        for q in range(16): a(f"v_exp_f32 v{SB+q}, v{SB+q}")
        l, l2 = 14, 15
        a(f"v_add_f32 v{l}, v{SB}, v{SB+1}"); a(f"v_add_f32 v{l2}, v{SB+2}, v{SB+3}")
        for q in range(4, 16, 2):
            a(f"v_add_f32 v{l}, v{l}, v{SB+q}"); a(f"v_add_f32 v{l2}, v{l2}, v{SB+q+1}")
        a(f"v_add_f32 v{l}, v{l}, v{l2}")
        pk = [f"v_cvt_pk_bf16_f32 v{SB+q}, v{SB+q}, v{SB+q}" for q in range(16)]
        red = [f"v_add_f32_dpp v{l}, v{l}, v{l} row_ror:4 {DPPALL}", f"v_add_f32_dpp v{l}, v{l}, v{l} row_ror:8 {DPPALL}",
               f"v_add_f32_dpp v{l}, v{l}, v{l} row_bcast:15 row_mask:0xa bank_mask:0xf", f"v_add_f32_dpp v{l}, v{l}, v{l} row_bcast:31 row_mask:0xc bank_mask:0xf"]
        for i in range(4):
            for x_ in pk[4*i:4*i+2]: a(x_)
            a(red[i])
            for x_ in pk[4*i+2:4*i+4]: a(x_)
        a(f"v_readlane_b32 s{sB_}, v{l}, 63")
        self.stamp(4)
        if self.mode == "co":
            self.drain(self.keep)
            a("s_waitcnt vmcnt(16)")
        Ab, Do = 44, 52
        a(f"s_lshl_b32 s{sTmp[0]}, s{sW}, 14"); a(f"v_add_u32 v15, s{sTmp[0]}, v{vL16}")
        if L_VL: a(f"v_add_u32 v15, {L_VL}, v15")
        if self.smf:
            self.pv_smf(SB, Ab, Do)
        else:
            self.pv_dense(SB, Ab, Do)
        self.row_slot_addr()
        a(f"v_writelane_b32 v{Do}, s{sA}, 32"); a(f"v_writelane_b32 v{Do+1}, s{sB_}, 32")
        self.red_write(Do)
        a("s_waitcnt lgkmcnt(0)"); a("s_barrier")
        self.stamp(5)
        lf = a.newlabel("bfin")
        a(f"s_cmp_lg_u32 s{sW}, 0"); a(f"s_cbranch_scc1 {lf}")
        G = 16; MLr = 32
        a(f"v_mov_b32 v14, {L_RED+512}")
        for w in range(4): a(f"ds_read_b64 {vr(MLr+2*w,2)}, v14 offset:{w*RSTR}")
        self.red_final_read(G)
        a("s_waitcnt lgkmcnt(4)")
        M = 40
        a(f"v_max3_f32 v{M}, v{MLr}, v{MLr+2}, v{MLr+4}"); a(f"v_max_f32 v{M}, v{M}, v{MLr+6}")
        for w in range(4): a(f"v_sub_f32 v{MLr+2*w}, v{MLr+2*w}, v{M}")
        for w in range(4): a(f"v_exp_f32 v{MLr+2*w}, v{MLr+2*w}")
        a(f"v_readfirstlane_b32 s{sA}, v{M}")
        a("s_waitcnt lgkmcnt(0)")
        for r in range(4): a(f"v_mul_f32 v{G+r}, v{MLr}, v{G+r}")
        for w in range(1, 4):
            for r in range(4): a(f"v_fmac_f32 v{G+r}, v{MLr+2*w}, v{G+4*w+r}")
        a(f"v_writelane_b32 v{G}, s{sA}, 32")
        self.tag([G, G+1, G+2, G+3])
        a("s_mov_b32 exec_hi, 1")
        self.local_stores([(G, vL16, sTmp[0], None)])
        a("s_mov_b32 exec_hi, -1")
        a.label(lf)
        self.stamp(7)

    def pv_dense(self, SB, Ab, Do):
        a = self.a
        LB = [16, 20, 24, 56]
        order = [(b, u) for b in range(10) for u in range(4)] + [(b, u) for b in range(10, 14) for u in range(4)] + [(b, u) for b in (14, 15) for u in range(4)]
        def build(kk):
            b, u = order[kk]; A = Ab + 4 * (kk % 2)
            for r in range(4):
                a(f"v_and_b32_dpp v{A+r}, v{SB+b}, v{vM[r]} row_newbcast:{4*u} {DPPALL}")
        def bop(kk):
            b, u = order[kk]
            if b < 10: return vr(VRES+16*b+4*u, 4)
            if b < 14: return vr(LB[u], 4)
            return vr(self.vtr_reg(b, u), 4)
        def ldsrd(b, u):
            a(f"ds_read_b128 {vr(LB[u],4)}, v15 offset:{((b-10)*4+u)*1024}")
        build(0); build(1)
        for kk in range(len(order)):
            b, u = order[kk]
            if (b, u) == (8, 0):
                self.stamp(17)
                a("s_waitcnt vmcnt(0)")
                self.stamp(18)
                for uu in range(4): ldsrd(10, uu)
            if 10 <= b < 14: a(f"s_waitcnt lgkmcnt(3)" if not (b == 13 and u > 0) else f"s_waitcnt lgkmcnt({3-u})")
            A = Ab + 4 * (kk % 2)
            c = "0" if kk == 0 else vr(Do, 4)
            a(f"v_mfma_f32_16x16x32_bf16 {vr(Do,4)}, {vr(A,4)}, {bop(kk)}, {c}")
            if 10 <= b < 13: ldsrd(b + 1, u)
            if kk + 2 < len(order): build(kk + 2)

    def pv_smf(self, SB, Ab, Do):
        a = self.a
        N0, N1, IDX = 56, 57, 58
        n = 14
        a(f"v_bfe_u32 v{n}, v{vL16}, 4, 4")
        a(f"v_and_b32 v{IDX}, 3, v{n}"); a(f"v_mul_u32_u24 v{IDX}, 0x1111, v{IDX}")
        a(f"v_lshrrev_b32 v{n}, 2, v{n}"); a(f"v_mov_b32 v59, 0xffff")
        a(f"v_cmp_eq_u32 vcc, 0, v{n}"); a(f"v_cndmask_b32 v{N0}, 0, v59, vcc")
        a(f"v_cmp_eq_u32 vcc, 1, v{n}"); a(f"v_cndmask_b32 v{N1}, 0, v59, vcc")
        for r in range(4): a(f"v_mov_b32 v{Do+r}, 0")
        order = [(b, s_) for b in range(16) for s_ in range(2)]
        LB = [16, 28]
        def build(kk):
            b, s_ = order[kk]; A = Ab + 4 * (kk % 2)
            a(f"v_and_b32_dpp v{A}, v{SB+b}, v{N0} row_newbcast:{8*s_} {DPPALL}")
            a(f"v_and_b32_dpp v{A+1}, v{SB+b}, v{N1} row_newbcast:{8*s_} {DPPALL}")
            a(f"v_and_b32_dpp v{A+2}, v{SB+b}, v{N0} row_newbcast:{8*s_+4} {DPPALL}")
            a(f"v_and_b32_dpp v{A+3}, v{SB+b}, v{N1} row_newbcast:{8*s_+4} {DPPALL}")
        def bop(kk):
            b, s_ = order[kk]
            if b < 10: return vr(VRES+16*b+8*s_, 8)
            if b < 14: return vr(LB[s_], 8)
            return vr(self.vtr_reg(b, 2*s_), 8)
        def ldsrd(b, s_):
            for hf in range(2):
                a(f"ds_read_b128 {vr(LB[s_]+4*hf,4)}, v15 offset:{((b-10)*4+2*s_+hf)*1024}")
        build(0); build(1)
        for kk in range(len(order)):
            b, s_ = order[kk]
            if (b, s_) == (8, 0):
                self.stamp(17)
                a("s_waitcnt vmcnt(0)")
                self.stamp(18)
                ldsrd(10, 0); ldsrd(10, 1)
            if 10 <= b < 14: a("s_waitcnt lgkmcnt(2)" if not (b == 13 and s_ == 1) else "s_waitcnt lgkmcnt(0)")
            A = Ab + 4 * (kk % 2)
            a(f"v_smfmac_f32_16x16x64_bf16 {vr(Do,4)}, {vr(A,4)}, {bop(kk)}, v{IDX}")
            if 10 <= b < 13: ldsrd(b + 1, s_)
            if kk + 2 < len(order): build(kk + 2)

    def opart(self):
        a = self.a
        G, ML = 16, 20
        a(f"v_lshrrev_b32 v14, 7, v{vL16}"); a(f"v_lshlrev_b32 v15, 10, v14")
        a(f"v_and_b32 v14, 0x70, v{vL16}"); a(f"v_add_u32 v14, v15, v14")
        a(f"s_lshl_b32 s{sTmp[0]}, s{sH}, 13"); a(f"s_add_u32 s{sTmp[0]}, s{sTmp[0]}, {O_ROW}")
        a(f"s_lshl_b32 s{sTmp[1]}, s{sW}, 7"); a(f"s_add_u32 s{sTmp[1]}, s{sTmp[1]}, s{sTmp[0]}")
        a(f"v_lshrrev_b32 v59, 8, v{vL16}"); a(f"v_mul_u32_u24 v59, 160, v59")
        a(f"v_and_b32 v58, 0xf0, v{vL16}"); a(f"v_add_u32 v59, v59, v58")
        a(f"s_mul_i32 s{sTmp[2]}, s{sW}, {32*160}"); a(f"s_add_u32 s{sTmp[2]}, s{sTmp[2]}, {L_R0}"); a(f"v_add_u32 v59, s{sTmp[2]}, v59")
        def iss():
            a(f"buffer_load_dwordx4 {vr(ML,4)}, v15, {W}, s{sTmp[0]} offen offset:512 sc1")
            a(f"buffer_load_dwordx4 {vr(G,4)}, v14, {W}, s{sTmp[1]} offen sc1")
        self.poll(iss, [ML, G], site='row')
        self.stamp(8)
        self.burst('O0')
        WB = 24
        for i in range(8): a(f"ds_read_b128 {vr(WB+4*i,4)}, v59 offset:{i*640}")
        if self.pfnew: self.next_w()
        self.combine8(G, ML, 56)
        Xp = 14
        a(f"v_cvt_pk_bf16_f32 v{Xp}, v{G}, v{G}")
        D, Ab = 56, 16
        a("s_waitcnt lgkmcnt(0)")
        self.pv_gemv(Xp, 8, lambda i: vr(WB+4*i, 4), D, Ab)
        self.red_write(D)
        a(f"v_lshrrev_b32 v14, 4, v{vL16}"); a(f"v_mul_u32_u24 v15, 13108, v14"); a(f"v_lshrrev_b32 v15, 16, v15")
        a(f"v_mul_u32_u24 v24, 5, v15"); a(f"v_sub_u32 v14, v14, v24"); a(f"v_lshlrev_b32 v14, 4, v14"); a(f"v_lshl_add_u32 v14, v15, 7, v14")
        a(f"s_lshl_b32 s{sTmp[0]}, s{sJ}, 5"); a(f"s_add_u32 s{sTmp[0]}, s{sTmp[0]}, s{sH}"); a(f"s_lshl_b32 s{sTmp[0]}, s{sTmp[0]}, 9")
        a(f"s_add_u32 s{sTmp[0]}, s{sTmp[0]}, s{sCol}")
        a("s_waitcnt lgkmcnt(0)"); a("s_barrier")
        lf = a.newlabel("ofin")
        a(f"s_cmp_lg_u32 s{sW}, 0"); a(f"s_cbranch_scc1 {lf}")
        self.red_final_read(G)
        a("s_waitcnt lgkmcnt(0)")
        self.sum4(G); self.tag([G, G+1, G+2, G+3])
        self.exec_set(0xfffff, 0)
        a(f"buffer_store_dwordx4 {vr(G,4)}, v14, {W}, s{sTmp[0]} offen sc1")
        self.exec_all()
        a.label(lf)
        self.stamp(9)
        if not self.pfnew: self.next_w()
        if self.skipfin:
            lk = a.newlabel("keep")
            a(f"s_cmp_lg_u32 s{sL}, {(self.stop or 4) - 1}"); a(f"s_cbranch_scc1 {lk}")
            a(f"s_cmp_lg_u32 s{sH}, 0"); a("s_cbranch_scc1 L_fin2")
            a.label(lk)
        if self.vsplit and not self.woqk:
            lb = a.newlabel("nowo")
            a(f"s_bitcmp1_b32 s{sL}, 0"); a(f"s_cbranch_scc1 {lb}")
            self.load_wo(pWoB)
            a.label(lb)
        a(f"v_lshrrev_b32 v14, 7, v{vL16}"); a(f"v_lshlrev_b32 v14, 9, v14")
        a(f"v_and_b32 v15, 0x70, v{vL16}"); a(f"v_add_u32 v14, v14, v15")
        a(f"s_lshl_b32 s{sTmp[0]}, s{sJ}, 14"); a(f"s_lshl_b32 s{sTmp[1]}, s{sW}, 7"); a(f"s_add_u32 s{sTmp[0]}, s{sTmp[0]}, s{sTmp[1]}")
        a(f"s_add_u32 s{sTmp[0]}, s{sTmp[0]}, s{sCol}")
        for i in range(1, 4): a(f"s_add_u32 s{sTmp[i]}, s{sTmp[0]}, {i*4096}")
        def issc():
            for i in range(4):
                a(f"buffer_load_dwordx4 {vr(G+4*i,4)}, v14, {W}, s{sTmp[i]} offen sc1")
        self.poll(issc, [G, G+4, G+8, G+12], execmask=(0x1f1f1f1f, 0x1f1f1f1f), site='col')
        self.stampval(28, sSpin); self.stampval(29, sPos)
        self.stamp(10)
        self.burst('Q0')
        self.sum4(G)
        for r in range(4): a(f"v_add_f32_dpp v{G+r}, v{G+r}, v{G+r} row_ror:8 {DPPALL}")
        self.treduce([G, G+1, G+2, G+3])
        a(f"v_add_f32 v{G}, v{G}, v{vX}")
        a(f"v_cndmask_b32 v{vX}, 0, v{G}, s[{sM5}:{sM5+1}]")

    def second_w(self, lb=None):
        a = self.a
        lb = lb or a.newlabel("nouk")
        a(f"s_bitcmp1_b32 s{sL}, 0"); a(f"s_cbranch_scc1 {lb}")
        self.load_wuk()
        if self.vsplit:
            lc = a.newlabel("vtj")
            a(f"s_branch {lc}")
            a.label(lb)
            for k in range(4): self.vtr_one(k)
            a.label(lc)
        else:
            a.label(lb)

    def next_w(self):
        a = self.a
        lnp = a.newlabel("nopf"); lb = a.newlabel("nouk")
        a(f"s_cmp_eq_u32 s{sL}, 3"); a(f"s_cbranch_scc1 {lnp}")
        a(f"s_add_u32 s{sL}, s{sL}, 1")
        self.load_wq()
        if not self.split2: self.second_w(lb)
        a(f"s_sub_u32 s{sL}, s{sL}, 1")
        a.label(lnp)

    def epilogue(self):
        a = self.a
        le = a.newlabel("fin")
        a(f"s_cmp_lg_u32 s{sH}, 0"); a(f"s_cbranch_scc1 {le}")
        self.srd(SRD_B, pOut, 1280)
        a(f"v_lshrrev_b32 v14, 4, v{vL16}"); a(f"v_and_b32 v15, 15, v14"); a(f"v_lshrrev_b32 v14, 4, v14")
        a(f"v_lshl_add_u32 v14, v15, 2, v14")
        a(f"s_mul_i32 s{sTmp[0]}, s{sJ}, 80"); a(f"s_mul_i32 s{sTmp[1]}, s{sW}, 20"); a(f"s_add_u32 s{sTmp[0]}, s{sTmp[0]}, s{sTmp[1]}")
        a(f"v_add_u32 v14, s{sTmp[0]}, v14"); a(f"v_lshlrev_b32 v14, 1, v14")
        a(f"v_cvt_pk_bf16_f32 v15, v{vX}, v{vX}")
        a(f"s_mov_b64 exec, s[{sM5}:{sM5+1}]")
        a(f"buffer_store_short v15, v14, s[{SRD_B}:{SRD_B+3}], 0 offen")
        self.exec_all()
        a(f"s_cmp_lg_u32 s2, 0"); a(f"s_cbranch_scc1 {le}")
        a(f"s_cmp_lg_u32 s{sW}, 0"); a(f"s_cbranch_scc1 {le}")
        a(f"v_mov_b32 v14, 0")
        a("s_mov_b64 exec, 1")
        a(f"buffer_store_dword v{vT}, v14, {W}, 0 offen sc1")
        self.exec_all()
        a.label(le)
        a.label("L_fin2")
        l2 = a.newlabel("noerr")
        a(f"s_cmp_eq_u32 s{sErr}, 0"); a(f"s_cbranch_scc1 {l2}")
        self.srd(SRD_B, sDbg, 256)
        a(f"v_mov_b32 v14, 0"); a(f"v_mov_b32 v15, 0xdead")
        a("s_mov_b64 exec, 1")
        a(f"buffer_store_dword v15, v14, s[{SRD_B}:{SRD_B+3}], 0 offen")
        self.exec_all()
        a.label(l2)

    def build(self):
        a = self.a
        self.prologue()
        a.label("L_layer")
        self.qpart()
        a(f"s_bitcmp1_b32 s{sL}, 0"); a(f"s_cbranch_scc1 L_bmid")
        self.amiddle()
        a(f"s_branch L_opart")
        a.label("L_bmid")
        self.bmiddle()
        a.label("L_opart")
        self.opart()
        self.stamp(11)
        for L_ in range(4): self.dbgstamp(f"end{L_}", L_)
        a(f"s_add_u32 s{sL}, s{sL}, 1"); a(f"s_xor_b32 s{sCol}, s{sCol}, 0x20000")
        nl = self.stop if self.stop else 4
        a(f"s_cmp_ge_u32 s{sL}, {nl}"); a("s_cbranch_scc1 L_done")
        self.next_tag()
        a("s_branch L_layer")
        a.label("L_done")
        self.epilogue()
        if self.stamps:
            a(f"s_mov_b32 s{sL}, 3")
            self.stamp(13)
        a("s_waitcnt vmcnt(0)")
        a.label("L_end")
        a("s_endpgm")
        self.dw_sub()
        self.stream()
        a.label("L_codeend")
        return fix(a.lines)

HEADER = open("interleave_layers__compressed_kv_cla__mha_block_cached__decode.s.ref").read().split("; Override launch")[0]

def make(path, **kw):
    body = "\n".join(Gen(**kw).build())
    src = f"""{HEADER}; @launch grid=(256,1,1) block=(256,1,1) lds={LDS_BYTES}
.amdgcn_target "amdgcn-amd-amdhsa--gfx950"
.text
.globl {KNAME}
.p2align 8
.type {KNAME},@function
{KNAME}:
{body}
.section .rodata,"a"
.p2align 6
.amdhsa_kernel {KNAME}
  .amdhsa_next_free_vgpr 512
  .amdhsa_next_free_sgpr 102
  .amdhsa_accum_offset 256
  .amdhsa_group_segment_fixed_size 0
  .amdhsa_kernarg_size 112
  .amdhsa_user_sgpr_count 2
  .amdhsa_user_sgpr_kernarg_segment_ptr 1
  .amdhsa_system_sgpr_workgroup_id_x 1
  .amdhsa_float_denorm_mode_32 3
.end_amdhsa_kernel
"""
    open(path, "w").write(src)

if __name__ == "__main__":
    import argparse
    ap = argparse.ArgumentParser()
    ap.add_argument("-o", default="k.s"); ap.add_argument("--opts", default="")
    x = ap.parse_args()
    kw = {}
    for o in filter(None, x.opts.split(";")):
        k_, v_ = o.split("="); kw[k_] = eval(v_)
    make(x.o, **kw)
```

```python
import sys, struct
from hazard import fix

KNAME = "interleave_layers__compressed_kv_cla__mha_block_cached__decode_kernel"

class Asm:
    def __init__(self): self.lines = []; self.n = 0
    def __call__(self, s):
        for l in s.split("\n"):
            l = l.strip()
            if l: self.lines.append(l)
    def label(self, name): self.lines.append(name + ":")
    def newlabel(self, base="L"):
        self.n += 1; return f"{base}_{self.n}"

def vr(b, n=1): return f"v{b}" if n == 1 else f"v[{b}:{b+n-1}]"
def ar(b, n=1): return f"a{b}" if n == 1 else f"a[{b}:{b+n-1}]"
DPPALL = "row_mask:0xf bank_mask:0xf"
def f32hex(x): return "0x%08x" % struct.unpack("<I", struct.pack("<f", x))[0]

O_XCC  = 0x001000
O_STAMP = 0x080000
O_QP   = 0x100000
O_ROW  = 0x180000
O_COL  = 0x1C0000
O_QABS = 0x200000
O_ML1  = 0x210000
O_C2   = 0x240000
O_ML2  = 0x2C0000
O_C1   = 0x300000

L_VL  = 0
L_CKV = 65536
L_R0  = 131072
L_ST  = 151680
L_RED = 156032
RSTR  = 1056
L_U   = 160256
LDS_BYTES = 163840

sH, sJ, sW, sL, sAct = 3, 4, 5, 6, 7
SRD_WS, SRD_K, SRD_V, SRD_A, SRD_B = 8, 12, 16, 20, 24
sSPC, sRET = 28, 30
sT = [32, 33, 34, 35]
sSel = [36, 37, 38, 39]
pWqA, pWqB, pWuk, pWuv, pWoA, pWoB, pCkv, pOut, pX = 40, 42, 44, 46, 48, 50, 52, 54, 56
sCol = 58
sGA, sS = 59, 60
sSO = 61
sSpin = 62
sPos = 63
sFF = 64
sTmp = list(range(65, 70))
sMask = [76, 78, 80, 82]
sM5 = 84
sDbg = 86
sErr = 88
sLocal = 89
sA, sB_ = 90, 91
sTs = 92
sXG, sI, sSc, sXcc = 98, 99, 100, 101
sTf = 97
sDW, sRET2, sYoung, sVm, sVm2, sDl = 70, 72, 74, 75, 94, 95
sBud = 57
sC1 = 56
sCap = 0

vL16, vM, vT, vX, vWoff, vKoff, vVoff, vRedW = 0, [1, 2, 3, 4], 5, 6, 7, 8, 9, 10
vT0 = 11
vCk = 11
vWo = 13
WQ, WUK, WUV, VTR, VRES = 76, 60, 80, 64, 96
AT = 44

SC = (128 ** -0.5) * 1.4426950408889634
SPIN_MAX = 1 << 16
W = f"s[{SRD_WS}:{SRD_WS+3}]"

class Gen:
    def __init__(self, kblk=8, stream_mode="co", stop_after=None, local=True, stamps="", pol="nt", wpol="", cpol="", codepf=True,
                 qkcalls=(4, 10), sent=True, nopf=False, once=True, xcalls=(), dlim=6, keep=6, addn=True, pretouch=True, mlsent=True, slp=0, sent1=False, pfnew=True, mltail=True, dsite=None, pre=None, rsl=None, dq=None, dbg=None, bud=None, skipfin=True, vsplit=True, woqk=True, split2=True, c1touch=True, c1sc1=False, c1touch2=None, smf=True, cap=None, pre1=None, burst=None, c1bf=True):
        self.c1bf = c1bf
        self.burstn = burst or {}
        self.pre1 = pre1
        self.cap = cap
        self.smf = smf
        self.c1touch = c1touch; self.c1sc1 = c1sc1; self.c1touch2 = c1touch2
        self.split2 = split2
        self.woqk = woqk
        self.skipfin = skipfin; self.vsplit = vsplit
        self.bud = bud
        self.dbg = dbg
        self.pre = pre or {}; self.rsl = rsl or {}; self.dq = dq
        self.pfnew = pfnew; self.mltail = mltail; self.dsite = dsite or {}
        self.slp = slp; self.sent1 = sent1
        self.addn = addn; self.pretouch = pretouch; self.mlsent = mlsent
        self.once = once; self.xcalls = xcalls; self.dlim = dlim; self.keep = keep
        self.nopf = nopf
        self.a = Asm(); self.kblk = kblk; self.mode = stream_mode; self.stop = stop_after
        self.local = local; self.stamps = stamps; self.pol = pol; self.wpol = wpol; self.cpol = cpol; self.codepf = codepf
        self.qkcalls = qkcalls; self.sent = sent

    def srd(self, s, lo, nbytes):
        a = self.a
        a(f"s_mov_b32 s{s}, s{lo}"); a(f"s_mov_b32 s{s+1}, s{lo+1}")
        a(f"s_mov_b32 s{s+2}, {nbytes:#x}"); a(f"s_mov_b32 s{s+3}, 0x20000")
    def exec_all(self): self.a("s_mov_b64 exec, -1")
    def exec_set(self, lo, hi):
        self.a(f"s_mov_b32 exec_lo, {lo:#x}"); self.a(f"s_mov_b32 exec_hi, {hi:#x}")
    def tag(self, regs):
        for i, r in enumerate(regs):
            self.a(f"v_perm_b32 v{r}, v{r}, v{vT}, s{sSel[i%4]}")
    def stamp(self, idx):
        if not self.stamps: return
        if self.stamps == "light" and idx not in (12, 13, 5): return
        a = self.a
        lab = a.newlabel("st")
        a(f"s_cmp_lg_u32 s{sW}, 0"); a(f"s_cbranch_scc1 {lab}")
        a(f"s_memrealtime s[{sTs}:{sTs+1}]")
        a("s_waitcnt lgkmcnt(0)")
        a(f"s_lshl_b32 s96, s2, 2"); a(f"s_add_u32 s96, s96, s{sL}"); a(f"s_lshl_b32 s96, s96, 7")
        a(f"s_add_u32 s96, s96, {O_STAMP + idx*4}")
        a(f"v_mov_b32 v{vT0}, s{sTs}")
        a(f"s_mov_b64 s[{sTs}:{sTs+1}], exec"); a("s_mov_b64 exec, 1")
        a(f"buffer_store_dword v{vT0}, off, {W}, s96")
        a(f"s_mov_b64 exec, s[{sTs}:{sTs+1}]")
        a.label(lab)
    def dbgstamp(self, k, cond_layer=None):
        if not self.dbg or k not in self.dbg: return
        a = self.a
        k = self.dbg.index(k)
        lab = a.newlabel("db")
        a(f"s_cmp_lg_u32 s{sW}, 0"); a(f"s_cbranch_scc1 {lab}")
        a(f"s_cmp_ge_u32 s2, 8"); a(f"s_cbranch_scc1 {lab}")
        if cond_layer is not None:
            a(f"s_cmp_lg_u32 s{sL}, {cond_layer}"); a(f"s_cbranch_scc1 {lab}")
        a(f"s_memrealtime s[{sTs}:{sTs+1}]")
        a("s_waitcnt lgkmcnt(0)")
        a(f"s_mov_b32 s{SRD_A}, s{sDbg}"); a(f"s_mov_b32 s{SRD_A+1}, s{sDbg+1}"); a(f"s_mov_b32 s{SRD_A+2}, 256"); a(f"s_mov_b32 s{SRD_A+3}, 0x20000")
        a(f"s_lshl_b32 s96, s2, 3"); a(f"s_add_u32 s96, s96, {4*k}")
        a(f"v_mov_b32 v{vT0}, s{sTs}")
        a(f"s_mov_b64 s[{sTs}:{sTs+1}], exec"); a("s_mov_b64 exec, 1")
        a(f"buffer_store_dword v{vT0}, off, s[{SRD_A}:{SRD_A+3}], s96")
        a(f"s_mov_b64 exec, s[{sTs}:{sTs+1}]")
        a.label(lab)
    def stampval(self, idx, sreg):
        if self.stamps != "full": return
        a = self.a
        lab = a.newlabel("sv")
        a(f"s_cmp_lg_u32 s{sW}, 0"); a(f"s_cbranch_scc1 {lab}")
        a(f"s_lshl_b32 s96, s2, 2"); a(f"s_add_u32 s96, s96, s{sL}"); a(f"s_lshl_b32 s96, s96, 7")
        a(f"s_add_u32 s96, s96, {O_STAMP + idx*4}")
        a(f"v_mov_b32 v{vT0}, s{sreg}")
        a(f"s_mov_b64 s[{sTs}:{sTs+1}], exec"); a("s_mov_b64 exec, 1")
        a(f"buffer_store_dword v{vT0}, off, {W}, s96")
        a(f"s_mov_b64 exec, s[{sTs}:{sTs+1}]")
        a.label(lab)
    def stream_call(self):
        self.a(f"s_swappc_b64 s[{sRET}:{sRET+1}], s[{sSPC}:{sSPC+1}]")
    def maybe_stream(self):
        a = self.a
        lab = a.newlabel("ns")
        a(f"s_cmp_eq_u32 s{sAct}, 0"); a(f"s_cbranch_scc1 {lab}")
        self.stream_call()
        a.label(lab)
    def read_vm(self):
        a = self.a
        a(f"s_getreg_b32 s{sVm}, hwreg(HW_REG_IB_STS)")
        a(f"s_bfe_u32 s{sVm2}, s{sVm}, 0x20016"); a(f"s_and_b32 s{sVm}, s{sVm}, 15")
        a(f"s_lshl4_add_u32 s{sVm}, s{sVm2}, s{sVm}")
    def dw_sub(self):
        a = self.a
        a.label("L_dw")
        self.read_vm()
        a(f"s_cmp_le_u32 s{sVm}, s{sYoung}"); a("s_cbranch_scc1 L_dwret")
        a(f"s_cmp_ge_u32 s{sVm}, s{sDl}"); a("s_cbranch_scc1 L_dw")
        a(f"s_cmp_eq_u32 s{sAct}, 0"); a("s_cbranch_scc1 L_dw")
        if self.cap is not None:
            a(f"s_cmp_ge_u32 s{sPos}, s{sCap}"); a("s_cbranch_scc1 L_dw")
        if self.bud is not None:
            a(f"s_cmp_le_i32 s{sBud}, 0"); a("s_cbranch_scc1 L_dw")
            a(f"s_sub_u32 s{sBud}, s{sBud}, {self.kblk}")
        self.stream_call()
        a(f"s_add_u32 s{sYoung}, s{sYoung}, {self.kblk}")
        a("s_branch L_dw")
        a.label("L_dwret")
        a(f"s_setpc_b64 s[{sRET2}:{sRET2+1}]")
    def dwait(self, young, n=0, site=None):
        dl = self.dsite.get(site, self.dlim)
        a = self.a
        if self.mode != "co":
            a(f"s_waitcnt vmcnt({young})"); return
        ns = a.newlabel("dwn"); jn = a.newlabel("dwj")
        a(f"s_cmp_eq_u32 s{sAct}, 0"); a(f"s_cbranch_scc1 {ns}")
        a(f"s_mov_b32 s{sYoung}, {young}"); a(f"s_mov_b32 s{sDl}, {dl + n if dl else 0}")
        if self.cap is not None: a(f"s_mov_b32 s{sCap}, {self.cap.get(site, 999)}")
        a(f"s_swappc_b64 s[{sRET2}:{sRET2+1}], s[{sDW}:{sDW+1}]")
        a(f"s_branch {jn}")
        a.label(ns)
        a(f"s_waitcnt vmcnt({young})")
        a.label(jn)
    def burst(self, site):
        n = self.burstn.get(site, 0)
        if self.mode != "co" or not n: return
        a = self.a
        lab = a.newlabel("bu")
        for i in range(n // self.kblk):
            a(f"s_cmp_eq_u32 s{sAct}, 0"); a(f"s_cbranch_scc1 {lab}")
            self.stream_call()
        a.label(lab)
    def topup(self, depth=None, site=None):
        if self.mode != "co": return
        depth = self.dlim if depth is None else depth
        capv = self.cap.get(site) if self.cap else None
        a = self.a
        lab = a.newlabel("tu")
        a(f"s_cmp_eq_u32 s{sAct}, 0"); a(f"s_cbranch_scc1 {lab}")
        self.read_vm()
        a(f"s_cmp_ge_u32 s{sVm}, {depth}"); a(f"s_cbranch_scc1 {lab}")
        if capv: a(f"s_cmp_ge_u32 s{sPos}, {capv}"); a(f"s_cbranch_scc1 {lab}")
        self.stream_call()
        a.label(lab)
    def drain(self, keep):
        a = self.a
        l0 = a.newlabel("drain"); l1 = a.newlabel("drained")
        a.label(l0)
        a(f"s_cmp_eq_u32 s{sAct}, 0"); a(f"s_cbranch_scc1 {l1}")
        self.stream_call()
        a(f"s_waitcnt vmcnt({keep})")
        a(f"s_branch {l0}")
        a.label(l1)

    def predelay(self, site):
        a = self.a
        p0 = self.pre.get(site, 0)
        p1 = self.pre1.get(site, p0) if self.pre1 is not None else p0
        if p0 == p1:
            if p0: a(f"s_sleep {p0}")
            return
        l0 = a.newlabel("pd"); l1 = a.newlabel("pd")
        a(f"s_cmp_ge_u32 s{sL}, 2"); a(f"s_cbranch_scc1 {l0}")
        if p1: a(f"s_sleep {p1}")
        a(f"s_branch {l1}")
        a.label(l0)
        if p0: a(f"s_sleep {p0}")
        a.label(l1)

    def poll(self, issue, regs, execmask=None, stream=True, site=None):
        a = self.a
        lp = a.newlabel("poll"); ns = a.newlabel("pns"); jn = a.newlabel("pj"); dn = a.newlabel("pdone")
        if execmask: self.exec_set(*execmask)
        a(f"s_mov_b32 s{sSpin}, 0")
        if self.bud is not None: a(f"s_mov_b32 s{sBud}, {self.bud.get(site, self.bud.get('*', 8))}")
        self.predelay(site)
        a.label(lp)
        issue()
        if execmask and self.mode == "co": self.exec_all()
        self.dwait(0, len(regs) if self.addn else 0, site)
        if execmask and self.mode == "co": self.exec_set(*execmask)
        a.label(jn)
        acc, acc2 = vT0, vT0 + 1
        dw = [g + i for g in regs for i in range(4)]
        for k, r in enumerate(dw): a(f"v_xor_b32 v{r}, s{sT[k % 4]}, v{r}")
        a(f"v_or3_b32 v{acc}, v{dw[0]}, v{dw[1]}, v{dw[2]}")
        if len(dw) == 4:
            a(f"v_or_b32 v{acc}, v{acc}, v{dw[3]}")
        else:
            a(f"v_or3_b32 v{acc2}, v{dw[3]}, v{dw[4]}, v{dw[5]}")
            k = 6; tog = 0
            while k < len(dw):
                tgt = acc if tog == 0 else acc2
                a(f"v_or3_b32 v{tgt}, v{tgt}, v{dw[k]}, v{dw[k+1]}"); k += 2
                tog ^= 1
            a(f"v_or_b32 v{acc}, v{acc}, v{acc2}")
        a(f"v_and_b32 v{acc}, s{sFF}, v{acc}")
        a(f"v_cmp_ne_u32 vcc, 0, v{acc}")
        a(f"s_cbranch_vccz {dn}")
        if self.rsl.get(site): a(f"s_sleep {self.rsl[site]}")
        if self.slp:
            lz = a.newlabel("nsl")
            a(f"s_cmp_eq_u32 s{sAct}, 0"); a(f"s_cbranch_scc1 {lz}")
            a(f"s_sleep {self.slp}")
            a.label(lz)
        a(f"s_add_u32 s{sSpin}, s{sSpin}, 1")
        a(f"s_cmp_lt_u32 s{sSpin}, {SPIN_MAX}")
        a(f"s_cbranch_scc1 {lp}")
        a(f"s_mov_b32 s{sErr}, 1")
        a.label(dn)
        if execmask: self.exec_all()

    def dpp_steps(self, regs, op, steps):
        for d in steps:
            for r in regs:
                if d == "b15": self.a(f"{op}_dpp v{r}, v{r}, v{r} row_bcast:15 row_mask:0xa bank_mask:0xf")
                elif d == "b31": self.a(f"{op}_dpp v{r}, v{r}, v{r} row_bcast:31 row_mask:0xc bank_mask:0xf")
                else: self.a(f"{op}_dpp v{r}, v{r}, v{r} {d} {DPPALL}")
    X1, X2, HM, RM = "quad_perm:[1,0,3,2]", "quad_perm:[2,3,0,1]", "row_half_mirror", "row_mirror"
    def reduce63(self, regs, op):
        self.dpp_steps(regs, op, [self.X1, self.X2, self.HM, self.RM, "b15", "b31"])

    def treduce(self, r):
        a = self.a
        a(f"v_permlane32_swap_b32 v{r[0]}, v{r[2]}")
        a(f"v_permlane32_swap_b32 v{r[1]}, v{r[3]}")
        a(f"v_add_f32 v{r[0]}, v{r[0]}, v{r[2]}")
        a(f"v_add_f32 v{r[1]}, v{r[1]}, v{r[3]}")
        a(f"v_permlane16_swap_b32 v{r[0]}, v{r[1]}")
        a(f"v_add_f32 v{r[0]}, v{r[0]}, v{r[1]}")

    def pv_gemv(self, Xp, nload, bop, D, Abuf):
        a = self.a
        def build(i):
            A = Abuf + 4 * (i % 2)
            for r in range(4):
                a(f"v_and_b32_dpp v{A+r}, v{Xp}, v{vM[r]} row_newbcast:{i} {DPPALL}")
        build(0)
        if nload > 1: build(1)
        for i in range(nload):
            A = Abuf + 4 * (i % 2)
            c = "0" if i == 0 else vr(D, 4)
            a(f"v_mfma_f32_16x16x32_bf16 {vr(D,4)}, {vr(A,4)}, {bop(i)}, {c}")
            if i + 2 < nload: build(i + 2)

    def red_write(self, D, off=0):
        a = self.a
        a("s_mov_b32 exec_hi, 1")
        a(f"ds_write_b128 v{vRedW}, {vr(D,4)} offset:{off}")
        a("s_mov_b32 exec_hi, -1")
    def red_final_read(self, G, off=0):
        a = self.a
        a(f"v_add_u32 v{vT0}, {L_RED}, v{vL16}")
        for w in range(4):
            a(f"ds_read_b128 {vr(G+4*w,4)}, v{vT0} offset:{w*RSTR+off}")
    def sum4(self, G):
        a = self.a
        for r in range(4):
            a(f"v_add_f32 v{G+r}, v{G+r}, v{G+4+r}")
            a(f"v_add_f32 v{G+8+r}, v{G+8+r}, v{G+12+r}")
        for r in range(4):
            a(f"v_add_f32 v{G+r}, v{G+r}, v{G+8+r}")

    def local_stores(self, items):
        a = self.a
        def emit(flag):
            for (data, vaddr, soff, pre) in items:
                if pre: pre()
                a(f"buffer_store_dwordx4 {vr(data,4)}, v{vaddr}, {W}, s{soff} offen {flag}")
        if self.local:
            l0 = a.newlabel("ls"); l1 = a.newlabel("ls")
            a(f"s_cmp_eq_u32 s{sLocal}, 0"); a(f"s_cbranch_scc1 {l0}")
            emit("")
            a(f"s_branch {l1}")
            a.label(l0)
            emit("sc1")
            a.label(l1)
        else:
            emit("sc1")

    def next_tag(self):
        a = self.a
        a(f"s_mul_i32 s{sTf}, s{sTf}, 0x9E3779B1"); a(f"s_add_u32 s{sTf}, s{sTf}, 0x7F4A7C15")
        a(f"v_mov_b32 v{vT}, s{sTf}")
        a(f"s_and_b32 s{sT[0]}, s{sTf}, 0xff"); a(f"s_bfe_u32 s{sT[1]}, s{sTf}, 0x80008")
        a(f"s_bfe_u32 s{sT[2]}, s{sTf}, 0x80010"); a(f"s_lshr_b32 s{sT[3]}, s{sTf}, 24")

    def pf_guard(self, fn, lmin=2):
        if not self.nopf: return fn()
        a = self.a; l = a.newlabel("npf")
        a(f"s_cmp_ge_u32 s{sL}, {lmin}"); a(f"s_cbranch_scc1 {l}")
        fn()
        a.label(l)
    def load_wq(self):
        self.pf_guard(self.load_wq_)
    def load_wq_(self):
        a = self.a
        l0 = a.newlabel("wq"); l1 = a.newlabel("wq")
        a(f"s_bitcmp1_b32 s{sL}, 0"); a(f"s_cbranch_scc1 {l0}")
        a(f"s_mov_b32 s{SRD_A}, s{pWqA}"); a(f"s_mov_b32 s{SRD_A+1}, s{pWqA+1}"); a(f"s_branch {l1}")
        a.label(l0)
        a(f"s_mov_b32 s{SRD_A}, s{pWqB}"); a(f"s_mov_b32 s{SRD_A+1}, s{pWqB+1}")
        a.label(l1)
        a(f"s_mov_b32 s{SRD_A+2}, {19*8192+256}"); a(f"s_mov_b32 s{SRD_A+3}, 0x20000")
        for i in range(5):
            a(f"s_mov_b32 s{sTmp[0]}, {i*32768}")
            a(f"buffer_load_dwordx4 {vr(WQ+4*i,4)}, v{vWoff}, s[{SRD_A}:{SRD_A+3}], s{sTmp[0]} offen {self.wpol}")
    def load_wuk(self):
        self.pf_guard(self.load_wuk_)
    def load_wuk_(self):
        a = self.a
        self.srd(SRD_A, pWuk, 15*8192+256)
        t = vT0
        a(f"v_lshrrev_b32 v{t}, 8, v{vKoff}"); a(f"v_lshlrev_b32 v{t}, 13, v{t}")
        a(f"v_and_b32 v{t+1}, s{sFF}, v{vKoff}"); a(f"v_or_b32 v{t}, v{t}, v{t+1}")
        for i in range(4):
            a(f"s_mov_b32 s{sTmp[0]}, {i*32768}")
            a(f"buffer_load_dwordx4 {vr(WUK+4*i,4)}, v{t}, s[{SRD_A}:{SRD_A+3}], s{sTmp[0]} offen {self.wpol}")
    def load_wuv(self):
        self.pf_guard(self.load_wuv_)
    def load_wuv_(self):
        a = self.a
        self.srd(SRD_A, pWuv, 15*8192+256)
        for i in range(4):
            a(f"s_mov_b32 s{sTmp[0]}, {i*32768}")
            a(f"buffer_load_dwordx4 {vr(WUV+4*i,4)}, v{vWoff}, s[{SRD_A}:{SRD_A+3}], s{sTmp[0]} offen {self.wpol}")
    def wo_setup(self, p):
        a = self.a
        self.srd(SRD_A, p, 31*1280+160)
        a(f"s_mul_i32 s{sTmp[1]}, s{sW}, {32*160}"); a(f"s_add_u32 s{sTmp[1]}, s{sTmp[1]}, {L_R0}")
    def wo_one(self, i):
        a = self.a
        a(f"s_add_u32 m0, s{sTmp[1]}, {i*6*160}")
        a(f"s_mov_b32 s{sTmp[0]}, {i*6*1280}")
        if i < 5: a("s_mov_b32 exec_hi, 0x0fffffff")
        else: self.exec_set(0x000fffff, 0)
        a(f"buffer_load_dwordx4 v{vWo}, s[{SRD_A}:{SRD_A+3}], s{sTmp[0]} offen {self.wpol} lds")
        if i < 5: a("s_mov_b32 exec_hi, -1")
        else: self.exec_all()
    def load_wo(self, p):
        def f():
            self.wo_setup(p)
            for i in range(6): self.wo_one(i)
        self.pf_guard(f)
    def ckv_one(self, kk):
        a = self.a
        f = (kk & 8) | ((kk & 3) << 1) | ((kk >> 2) & 1)
        a(f"v_xor_b32 v{vCk}, {f*16}, v{vL16}")
        a(f"s_lshl_b32 s{sSO}, s{sW}, 14"); a(f"s_add_u32 m0, s{sSO}, {L_CKV + kk*1024}")
        a(f"s_mov_b32 s{sSO}, {kk*1024}")
        a(f"buffer_load_dwordx4 v{vCk}, s[{SRD_B}:{SRD_B+3}], s{sSO} offen {self.cpol} lds")
    def voff(self, u):
        return (u & 1) * 2048 + (u >> 1) * 512 if self.smf else u * 256
    def vtr_reg(self, b, u):
        if self.vsplit: return (60 if b == 14 else 80) + 4 * u
        return VTR + (b - 14) * 16 + 4 * u
    def vtr_one(self, k):
        a = self.a
        b, u = 14 + (k >> 2), k & 3
        if u == 0: a(f"s_mov_b32 s{sTmp[2]}, {b*4096}")
        a(f"buffer_load_dwordx4 {vr(self.vtr_reg(b, u),4)}, v{vVoff}, s[{SRD_V}:{SRD_V+3}], s{sTmp[2]} offen offset:{self.voff(u)} {self.pol}")

    def prologue(self):
        a = self.a
        a("s_cmp_ge_u32 s2, 256"); a("s_cbranch_scc1 L_end")
        a("s_load_dwordx4 s[64:67], s[0:1], 0")
        a("s_load_dwordx4 s[68:71], s[0:1], 16")
        a("s_load_dwordx4 s[72:75], s[0:1], 32")
        a("s_load_dwordx4 s[76:79], s[0:1], 56")
        a("s_load_dwordx4 s[80:83], s[0:1], 72")
        a("s_load_dwordx4 s[84:87], s[0:1], 88")
        a("s_load_dwordx2 s[8:9], s[0:1], 104")
        a(f"v_lshrrev_b32 v20, 6, v0")
        a(f"v_and_b32 v21, 63, v0")
        a(f"v_readfirstlane_b32 s{sW}, v20")
        a(f"s_and_b32 s{sH}, s2, 31"); a(f"s_lshr_b32 s{sJ}, s2, 5")
        a(f"s_and_b32 s{sXG}, s2, 7"); a(f"s_lshr_b32 s{sI}, s2, 3")
        a(f"s_and_b32 s{sGA}, s{sI}, 1")
        a(f"s_lshr_b32 s{sS}, s{sI}, 1"); a(f"s_lshl_b32 s92, s{sXG}, 4"); a(f"s_add_u32 s{sS}, s{sS}, s92")
        a(f"v_lshlrev_b32 v{vL16}, 4, v21")
        if self.codepf:
            lc = a.newlabel("cpf")
            a(f"s_cmp_lg_u32 s{sW}, 3"); a(f"s_cbranch_scc1 {lc}")
            a("s_getpc_b64 s[20:21]")
            a.label("L_pcx")
            a("s_mov_b32 s22, L_codeend-L_pcx"); a("s_mov_b32 s23, 0x20000")
            a("v_lshlrev_b32 v22, 6, v21")
            self.ncode = 7
            for i in range(self.ncode):
                a(f"s_mov_b32 s92, {i*4096}")
                a(f"buffer_load_dword v23, v22, s[20:23], s92 offen")
            a.label(lc)
        a("v_and_b32 v22, 15, v21")
        a("v_lshrrev_b32 v23, 4, v21") if not self.codepf else a("v_lshrrev_b32 v19, 4, v21")
        g = 23 if not self.codepf else 19
        a(f"v_lshlrev_b32 v24, 4, v22")
        a(f"v_lshl_add_u32 v{vWoff}, v{g}, 13, v24")
        if self.smf:
            a(f"v_lshrrev_b32 v25, 1, v{g}"); a(f"v_and_b32 v26, 1, v{g}"); a(f"v_lshl_add_u32 v25, v25, 2, v26")
            a(f"v_lshl_add_u32 v{vVoff}, v25, 8, v24")
        else:
            a(f"v_lshl_add_u32 v{vVoff}, v{g}, 10, v24")
        a(f"v_and_b32 v25, 3, v22"); a(f"v_lshl_add_u32 v25, v{g}, 2, v25"); a("v_lshlrev_b32 v25, 4, v25")
        a("v_lshrrev_b32 v26, 2, v22"); a(f"v_lshl_add_u32 v{vKoff}, v26, 8, v25")
        a("v_and_b32 v25, 1, v22"); a("v_cmp_eq_u32 vcc, 1, v25")
        a("v_mov_b32 v26, 0xffff"); a("v_mov_b32 v27, 0xffff0000"); a("v_cndmask_b32 v26, v26, v27, vcc")
        a("v_lshrrev_b32 v25, 1, v22")
        for r in range(4):
            a(f"v_cmp_eq_u32 vcc, {r}, v25"); a(f"v_cndmask_b32 v{vM[r]}, 0, v26, vcc")
        a(f"v_lshl_add_u32 v25, v22, 1, v{g}"); a("v_lshlrev_b32 v25, 4, v25")
        a("v_cmp_gt_u32 vcc, 32, v21"); a("v_mov_b32 v26, 512"); a("v_cndmask_b32 v25, v26, v25, vcc")
        a(f"s_mul_i32 s92, s{sW}, {RSTR}"); a(f"s_add_u32 s92, s92, {L_RED}"); a(f"v_add_u32 v{vRedW}, s92, v25")
        a(f"v_mul_u32_u24 v25, 6554, v21"); a(f"v_lshrrev_b32 v25, 16, v25")
        a(f"v_mul_u32_u24 v26, 10, v25"); a(f"v_sub_u32 v26, v21, v26")
        a(f"v_mul_u32_u24 v25, 1280, v25"); a(f"v_lshl_add_u32 v{vWo}, v26, 4, v25")
        a("s_waitcnt lgkmcnt(0)")
        a(f"s_mov_b32 s{SRD_WS+2}, 0x10000000"); a(f"s_mov_b32 s{SRD_WS+3}, 0x20000")
        if self.stamps:
            a(f"s_mov_b32 s{sL}, 0")
            self.stamp(12)
        self.dbgstamp("entry")
        a("v_mov_b32 v28, 0")
        a(f"buffer_load_dword v{vT}, v28, {W}, 0 offen sc1")
        a(f"s_mov_b32 s{pX}, s64"); a(f"s_mov_b32 s{pX+1}, s65")
        self.srd(SRD_B, pX, 1280)
        a(f"s_mul_i32 s92, s{sJ}, 80"); a(f"s_mul_i32 s93, s{sW}, 20"); a("s_add_u32 s92, s92, s93")
        a(f"v_lshl_add_u32 v25, v22, 2, v{g}"); a("v_add_u32 v25, s92, v25"); a("v_lshlrev_b32 v29, 1, v25")
        a(f"s_mov_b32 s94, 0x001f001f"); a(f"s_mov_b32 s95, 0x001f001f")
        a(f"v_mov_b32 v{vX}, 0")
        a("s_mov_b64 exec, s[94:95]")
        a(f"buffer_load_ushort v{vX}, v29, s[{SRD_B}:{SRD_B+3}], 0 offen")
        self.exec_all()
        def addp(dst, src, terms):
            a(f"s_mov_b32 s92, 0")
            for (sreg, c) in terms:
                a(f"s_mul_i32 s93, s{sreg}, {c}"); a("s_add_u32 s92, s92, s93")
            a(f"s_add_u32 s{dst}, s{src}, s92"); a(f"s_addc_u32 s{dst+1}, s{src+1}, 0")
        addp(pWqA, 68, [(sJ, 80*8192), (sW, 20*8192), (sH, 256)])
        a(f"s_mov_b32 s{sL}, 0")
        self.load_wq()
        addp(pWuk, 70, [(sJ, 64*8192), (sW, 16*8192), (sH, 256)])
        a(f"s_mov_b32 s{sFF}, 0xff")
        self.load_wuk()
        addp(pCkv, 66, [(sS, 65536), (sW, 16384)])
        addp(pWqB, 80, [(sJ, 80*8192), (sW, 20*8192), (sH, 256)])
        addp(pWuv, 72, [(sJ, 64*8192), (sW, 16*8192), (sH, 256)])
        addp(pWoA, 74, [(sH, 163840), (sW, 32*1280), (sJ, 160)])
        addp(pWoB, 82, [(sH, 163840), (sW, 32*1280), (sJ, 160)])
        addp(SRD_K, 76, [(sH, 2097152), (sJ, 262144), (sW, 65536)])
        addp(SRD_V, 78, [(sH, 2097152), (sJ, 262144), (sW, 65536)])
        a(f"s_mov_b32 s{SRD_K+2}, 65536"); a(f"s_mov_b32 s{SRD_K+3}, 0x20000")
        a(f"s_mov_b32 s{SRD_V+2}, 65536"); a(f"s_mov_b32 s{SRD_V+3}, 0x20000")
        a(f"s_mov_b32 s{pOut}, s84"); a(f"s_mov_b32 s{pOut+1}, s85")
        self.srd(SRD_B, pCkv, 16384)
        if self.pretouch:
            a(f"s_lshl_b32 s92, s2, 13"); a(f"s_lshl_b32 s93, s{sW}, 11"); a("s_add_u32 s92, s92, s93"); a(f"s_add_u32 s92, s92, {O_QP}")
            a(f"buffer_load_dwordx4 v[48:51], v{vL16}, {W}, s92 offen")
            a(f"buffer_load_dwordx4 v[48:51], v{vL16}, {W}, s92 offen offset:1024")
        a(f"s_mov_b32 s{sErr}, 0"); a(f"s_mov_b32 s{sLocal}, 0")
        a(f"s_mov_b32 s{sM5}, 0x001f001f"); a(f"s_mov_b32 s{sM5+1}, 0x001f001f")
        for i in range(4): a(f"s_mov_b32 s{sSel[i]}, {0x07060500+i:#x}")
        for t in range(4):
            a(f"s_mov_b32 s{sMask[t]}, {(0x000f000f << (4*t)):#x}"); a(f"s_mov_b32 s{sMask[t]+1}, {(0x000f000f << (4*t)):#x}")
        a(f"s_lshl_b32 s92, s{sXG}, 5"); a(f"s_add_u32 s92, s92, s{sI}"); a(f"s_lshl_b32 s92, s92, 2"); a(f"s_add_u32 s92, s92, s{sW}")
        a(f"s_lshl_b32 s92, s92, {12 if self.c1bf else 13}"); a(f"s_add_u32 s{sC1}, s92, {O_C1}")
        a(f"s_getpc_b64 s[{sSPC}:{sSPC+1}]")
        a.label("L_pc0")
        a(f"s_add_u32 s{sSPC}, s{sSPC}, L_stream-L_pc0"); a(f"s_addc_u32 s{sSPC+1}, s{sSPC+1}, 0")
        a(f"s_mov_b32 s{sAct}, 1"); a(f"s_mov_b32 s{sPos}, 0")
        a(f"s_mov_b32 s{sCol}, {O_COL:#x}")
        a(f"s_getreg_b32 s{sXcc}, hwreg(HW_REG_XCC_ID)"); a(f"s_and_b32 s{sXcc}, s{sXcc}, 0xf"); a(f"s_add_u32 s{sXcc}, s{sXcc}, 1"); a(f"s_lshl_b32 s{sXcc}, s{sXcc}, 8")
        a(f"s_getpc_b64 s[{sDW}:{sDW+1}]")
        a.label("L_pc1")
        a(f"s_add_u32 s{sDW}, s{sDW}, L_dw-L_pc1"); a(f"s_addc_u32 s{sDW+1}, s{sDW+1}, 0")
        if self.bud is not None: a(f"s_mov_b32 s{sBud}, {self.bud.get('pro', self.bud.get('*', 8))}")
        self.dwait(6 if self.pretouch else 4, 0, 'pro')
        a(f"v_readfirstlane_b32 s{sTf}, v{vT}")
        self.next_tag()
        a(f"v_lshlrev_b32 v{vX}, 16, v{vX}")
        if self.local:
            lx = a.newlabel("xp")
            a(f"s_cmp_lg_u32 s{sW}, 0"); a(f"s_cbranch_scc1 {lx}")
            for r in range(4): a(f"v_mov_b32 v{16+r}, s{sXcc}")
            self.tag([16, 17, 18, 19])
            a(f"s_lshl_b32 s92, s{sXG}, 9"); a(f"s_lshl_b32 s93, s{sI}, 4"); a("s_add_u32 s92, s92, s93"); a(f"s_add_u32 s92, s92, {O_XCC}")
            a("v_mov_b32 v20, 0")
            a("s_mov_b64 exec, 1")
            a(f"buffer_store_dwordx4 v[16:19], v20, {W}, s92 offen sc1")
            self.exec_all()
            a.label(lx)
        if self.mode == "first":
            self.drain(16)

    @property
    def NT(self): return 2
    @property
    def NLOADS(self): return 136 + (self.NT if self.c1touch else 0)
    @property
    def KEND(self): return 80 + (self.NT if self.c1touch else 0)
    def first_block(self):
        r = self.NLOADS % self.kblk
        return r if r else self.kblk
    def stream(self):
        a = self.a
        loads = [("C", i) for i in range(16)] + ([("T", i) for i in range(self.NT)] if self.c1touch else []) + [("K", i) for i in range(64)]
        loads += [("V", b, u) for b in range(10) for u in range(4)]
        loads += [("L", b, u) for b in range(10, 14) for u in range(4)]
        k = self.kblk
        assert len(loads) == self.NLOADS and len(loads) % k == 0, "the dynamic wait counts kblk loads per block"
        a.label("L_stream")
        starts = [0] + list(range(self.first_block(), len(loads), k))
        for bn, bi in enumerate(starts):
            be = starts[bn+1] if bn + 1 < len(starts) else len(loads)
            last_so = None
            for ld in loads[bi:be]:
                if ld[0] == "C":
                    self.ckv_one(ld[1]); last_so = None
                elif ld[0] == "T":
                    i = ld[1]; last_so = None
                    a(f"v_lshlrev_b32 v{vCk}, 2, v{vL16}")
                    if self.c1bf:
                        a(f"s_add_u32 s{sSO}, s{sC1}, {i * 32}")
                    else:
                        a(f"s_add_u32 s{sSO}, s{sC1}, {i * 4096}")
                    a(f"buffer_load_dword v255, v{vCk}, {W}, s{sSO} offen")
                elif ld[0] == "K":
                    i = ld[1]; so = (i >> 2) * 4096
                    if so != last_so: a(f"s_mov_b32 s{sSO}, {so}"); last_so = so
                    a(f"buffer_load_dwordx4 {ar(4*i,4)}, v{vKoff}, s[{SRD_K}:{SRD_K+3}], s{sSO} offen offset:{(i&3)*1024} {self.pol}")
                elif ld[0] == "V":
                    _, b, u = ld; so = b * 4096
                    if so != last_so: a(f"s_mov_b32 s{sSO}, {so}"); last_so = so
                    a(f"buffer_load_dwordx4 {vr(VRES+16*b+4*u,4)}, v{vVoff}, s[{SRD_V}:{SRD_V+3}], s{sSO} offen offset:{self.voff(u)} {self.pol}")
                else:
                    _, b, u = ld
                    a(f"s_lshl_b32 s{sSO}, s{sW}, 14"); a(f"s_add_u32 m0, s{sSO}, {L_VL + ((b-10)*4+u)*1024}")
                    a(f"s_mov_b32 s{sSO}, {b*4096+self.voff(u)}"); last_so = None
                    a(f"buffer_load_dwordx4 v{vVoff}, s[{SRD_V}:{SRD_V+3}], s{sSO} offen {self.pol} lds")
            a(f"s_add_u32 s{sPos}, s{sPos}, {be-bi}")
            if be >= len(loads): a(f"s_mov_b32 s{sAct}, 0")
            a(f"s_swappc_b64 s[{sSPC}:{sSPC+1}], s[{sRET}:{sRET+1}]")
        a("s_endpgm")

    def qpart(self):
        a = self.a
        self.stamp(0)
        if self.split2:
            l0 = a.newlabel("q2w")
            a(f"s_cmp_eq_u32 s{sL}, 0"); a(f"s_cbranch_scc1 {l0}")
            self.second_w()
            a.label(l0)
        Xp, S1, S2 = 14, 15, 36
        D, Du, Ab = 16, 20, 24
        a(f"v_cvt_pk_bf16_f32 v{Xp}, v{vX}, v{vX}")
        a(f"v_and_b32 v{S1}, 0xffff0000, v{Xp}")
        a(f"v_mul_f32 v{S2}, v{S1}, v{S1}")
        self.pv_gemv(Xp, 5, lambda i: vr(WQ+4*i, 4), D, Ab)
        self.reduce63([S1, S2], "v_add_f32")
        lu = a.newlabel("nou")
        a(f"s_cmp_ge_u32 s{sL}, 2"); a(f"s_cbranch_scc1 {lu}")
        for r in range(4): a(f"v_and_b32 v{32+r}, 0x3f803f80, v{vM[r]}")
        for i in range(5):
            c = "0" if i == 0 else vr(Du, 4)
            a(f"v_mfma_f32_16x16x32_bf16 {vr(Du,4)}, {vr(32,4)}, {vr(WQ+4*i,4)}, {c}")
        self.red_write(Du, 528)
        a.label(lu)
        a(f"v_readlane_b32 s{sA}, v{S1}, 63"); a(f"v_readlane_b32 s{sB_}, v{S2}, 63")
        a(f"v_writelane_b32 v{D}, s{sA}, 32"); a(f"v_writelane_b32 v{D+1}, s{sB_}, 32")
        self.red_write(D)
        t = 14
        a(f"v_lshrrev_b32 v{t}, 4, v{vL16}")
        a(f"v_and_b32 v15, 1, v{t}"); a(f"v_lshlrev_b32 v15, 4, v15")
        a(f"v_lshrrev_b32 v36, 1, v{t}"); a(f"v_add_u32 v15, v15, v36"); a(f"v_lshlrev_b32 v15, 4, v15")
        a(f"v_cmp_gt_u32 vcc, 32, v{t}"); a(f"v_mov_b32 v36, 512"); a(f"v_cndmask_b32 v{t}, v36, v15, vcc")
        a(f"s_lshl_b32 s{sTmp[0]}, s{sH}, 3"); a(f"s_add_u32 s{sTmp[0]}, s{sTmp[0]}, s{sJ}"); a(f"s_lshl_b32 s{sTmp[0]}, s{sTmp[0]}, 11")
        a(f"s_add_u32 s{sTmp[0]}, s{sTmp[0]}, {O_QP}")
        a("s_waitcnt lgkmcnt(0)"); a("s_barrier")
        lf = a.newlabel("qfin")
        a(f"s_cmp_lg_u32 s{sW}, 0"); a(f"s_cbranch_scc1 {lf}")
        G = 16
        self.red_final_read(G)
        a("s_waitcnt lgkmcnt(0)")
        self.sum4(G); self.tag([G, G+1, G+2, G+3])
        a("s_mov_b32 exec_hi, 1")
        self.local_stores([(G, t, sTmp[0], None)])
        a("s_mov_b32 exec_hi, -1")
        a(f"s_cmp_ge_u32 s{sL}, 2"); a(f"s_cbranch_scc1 {lf}")
        G2 = 32
        self.red_final_read(G2, 528)
        a(f"s_add_u32 s{sTmp[0]}, s{sTmp[0]}, 1024")
        a("s_waitcnt lgkmcnt(0)")
        self.sum4(G2); self.tag([G2, G2+1, G2+2, G2+3])
        a("s_mov_b32 exec_hi, 0")
        self.local_stores([(G2, t, sTmp[0], None)])
        a("s_mov_b32 exec_hi, -1")
        a.label(lf)
        self.stamp(1)
        ad, ad2, adu, adx = 14, 15, 56, 57
        Gq, Gs, Gu, Gx = 16, 32, 36, 52
        a(f"v_lshrrev_b32 v{ad}, 8, v{vKoff}"); a(f"v_lshlrev_b32 v{ad}, 11, v{ad}")
        a(f"v_and_b32 v{ad2}, s{sFF}, v{vKoff}"); a(f"v_or_b32 v{ad}, v{ad}, v{ad2}")
        a(f"v_lshlrev_b32 v{adu}, 1, v{ad2}")
        a(f"v_lshrrev_b32 v{ad2}, 4, v{vL16}"); a(f"v_and_b32 v{ad2}, 7, v{ad2}"); a(f"v_lshlrev_b32 v{ad2}, 11, v{ad2}")
        a(f"s_lshl_b32 s{sTmp[0]}, s{sH}, 14"); a(f"s_add_u32 s{sTmp[0]}, s{sTmp[0]}, {O_QP}")
        a(f"s_add_u32 s{sTmp[1]}, s{sTmp[0]}, 8192")
        def iss_q():
            for i in range(2):
                for hf in range(2):
                    a(f"buffer_load_dwordx4 {vr(Gq+8*i+4*hf,4)}, v{ad}, {W}, s{sTmp[i]} offen offset:{hf*256} sc1")
            a(f"buffer_load_dwordx4 {vr(Gs,4)}, v{ad2}, {W}, s{sTmp[0]} offen offset:512 sc1")
        def iss_u():
            for i in range(2):
                for hf in range(2):
                    a(f"buffer_load_dwordx4 {vr(Gu+8*i+4*hf,4)}, v{ad}, {W}, s{sTmp[i]} offen offset:{1024+hf*256} sc1")
        def iss_x():
            a(f"buffer_load_dwordx4 {vr(Gx,4)}, v{adx}, {W}, s{sTmp[3]} offen sc1")
        U = 36
        l_late = a.newlabel("qlate"); l_j = a.newlabel("qj")
        a(f"s_and_b32 s{sTmp[2]}, s{sL}, 1"); a(f"s_lshl_b32 s{sTmp[2]}, s{sTmp[2]}, 9"); a(f"s_add_u32 s{sTmp[2]}, s{sTmp[2]}, {L_U}")
        a(f"v_add_u32 v{adu}, s{sTmp[2]}, v{adu}")
        a(f"s_cmp_ge_u32 s{sL}, 2"); a(f"s_cbranch_scc1 {l_late}")
        base_regs = [Gq, Gq+4, Gq+8, Gq+12, Gs, Gu, Gu+4, Gu+8, Gu+12]
        if self.local:
            l_one = a.newlabel("qone"); l_u = a.newlabel("qu")
            a(f"s_cmp_eq_u32 s{sL}, 1"); a(f"s_cbranch_scc1 {l_one}")
            a(f"v_and_b32 v{adx}, 0x1f0, v{vL16}")
            a(f"s_lshl_b32 s{sTmp[3]}, s{sXG}, 9"); a(f"s_add_u32 s{sTmp[3]}, s{sTmp[3]}, {O_XCC}")
            self.poll(lambda: (iss_q(), iss_u(), iss_x()), base_regs + [Gx], site='q0')
            a(f"v_cmp_ne_u32 vcc, s{sXcc}, v{Gx}")
            a(f"s_cmp_eq_u64 vcc, 0"); a(f"s_cselect_b32 s{sLocal}, 1, 0")
            a(f"s_branch {l_u}")
            a.label(l_one)
            self.poll(lambda: (iss_q(), iss_u()), base_regs, site='q1')
            a.label(l_u)
        else:
            self.poll(lambda: (iss_q(), iss_u()), base_regs)
        for r in range(8): a(f"v_add_f32 v{Gu+r}, v{Gu+r}, v{Gu+8+r}")
        self.dpp_steps([Gu+r for r in range(8)], "v_add_f32", ["row_ror:4", "row_ror:8"])
        lw = a.newlabel("uw")
        a(f"s_cmp_lg_u32 s{sW}, 0"); a(f"s_cbranch_scc1 {lw}")
        self.exec_set(0x000f000f, 0x000f000f)
        a(f"ds_write_b128 v{adu}, {vr(U,4)}"); a(f"ds_write_b128 v{adu}, {vr(U+4,4)} offset:16")
        self.exec_all()
        a.label(lw)
        a(f"s_branch {l_j}")
        a.label(l_late)
        a(f"ds_read_b128 {vr(U,4)}, v{adu}"); a(f"ds_read_b128 {vr(U+4,4)}, v{adu} offset:16")
        self.poll(iss_q, [Gq, Gq+4, Gq+8, Gq+12, Gs], site='q2')
        a("s_waitcnt lgkmcnt(0)")
        a.label(l_j)
        self.stamp(2)
        self.burst('Q1')
        st = [Gs, Gs+1]
        adds = [f"v_add_f32 v{Gq+r}, v{Gq+r}, v{Gq+8+r}" for r in range(8)]
        seq = []
        for k, d in enumerate((self.X1, self.X2, self.HM)):
            seq += [f"v_add_f32_dpp v{r}, v{r}, v{r} {d} {DPPALL}" for r in st]
            seq += adds[3*k:3*k+3] if k < 2 else adds[6:]
        for s_ in seq: a(s_)
        a(f"v_mul_f32 v{Gs}, {f32hex(1/640)}, v{Gs}")
        ror4 = [f"v_add_f32_dpp v{Gq+r}, v{Gq+r}, v{Gq+r} row_ror:4 {DPPALL}" for r in range(8)]
        ror8 = [f"v_add_f32_dpp v{Gq+r}, v{Gq+r}, v{Gq+r} row_ror:8 {DPPALL}" for r in range(8)]
        a(f"v_mul_f32 v{Gs+1}, {f32hex(1/640)}, v{Gs+1}")
        for s_ in ror4[:4]: a(s_)
        a(f"v_fma_f32 v{Gs+1}, -v{Gs}, v{Gs}, v{Gs+1}")
        for s_ in ror4[4:]: a(s_)
        a(f"v_add_f32 v{Gs+1}, {f32hex(1e-5)}, v{Gs+1}")
        for s_ in ror8[:4]: a(s_)
        a(f"v_rsq_f32 v{Gs+1}, v{Gs+1}")
        for s_ in ror8[4:]: a(s_)
        a(f"v_mul_f32 v{Gs+1}, {f32hex(SC)}, v{Gs+1}")
        for r in range(8): a(f"v_fma_f32 v{Gq+r}, -v{Gs}, v{U+r}, v{Gq+r}")
        a(f"v_readfirstlane_b32 s{sSc}, v{Gs+1}")
        Qp = 24
        for r in range(4): a(f"v_cvt_pk_bf16_f32 v{Qp+r}, v{Gq+2*r}, v{Gq+2*r+1}")
        for t in range(4):
            for r in range(4):
                a(f"v_cndmask_b32 v{AT+4*t+r}, 0, v{Qp+r}, s[{sMask[t]}:{sMask[t]+1}]")

    def combine8(self, G, ML, tmp):
        a = self.a
        M, f, Ls = tmp, tmp+1, tmp+2
        a(f"v_max_f32_dpp v{M}, v{ML}, v{ML} row_ror:8 {DPPALL}")
        self.dpp_steps([M], "v_max_f32", ["b15", "b31"])
        a(f"v_readlane_b32 s{sA}, v{M}, 63")
        a(f"v_subrev_f32 v{f}, s{sA}, v{ML}"); a(f"v_exp_f32 v{f}, v{f}")
        a(f"v_mul_f32 v{Ls}, v{f}, v{ML+1}")
        for r in range(4): a(f"v_mul_f32 v{G+r}, v{f}, v{G+r}")
        a(f"v_add_f32_dpp v{Ls}, v{Ls}, v{Ls} row_ror:8 {DPPALL}")
        for r in range(4): a(f"v_add_f32_dpp v{G+r}, v{G+r}, v{G+r} row_ror:8 {DPPALL}")
        a(f"v_add_f32_dpp v{Ls}, v{Ls}, v{Ls} row_bcast:15 row_mask:0xa bank_mask:0xf")
        a(f"v_permlane32_swap_b32 v{G}, v{G+2}")
        a(f"v_permlane32_swap_b32 v{G+1}, v{G+3}")
        a(f"v_add_f32_dpp v{Ls}, v{Ls}, v{Ls} row_bcast:31 row_mask:0xc bank_mask:0xf")
        a(f"v_add_f32 v{G}, v{G}, v{G+2}")
        a(f"v_add_f32 v{G+1}, v{G+1}, v{G+3}")
        a(f"v_readlane_b32 s{sA}, v{Ls}, 63")
        a(f"v_permlane16_swap_b32 v{G}, v{G+1}")
        a(f"v_rcp_f32 v{Ls}, s{sA}")
        a(f"v_add_f32 v{G}, v{G}, v{G+1}")
        a(f"v_mul_f32 v{G}, v{G}, v{Ls}")

    def amiddle(self):
        a = self.a
        D = 16
        for t in range(4):
            c = "0" if t == 0 else vr(D, 4)
            a(f"v_mfma_f32_16x16x32_bf16 {vr(D,4)}, {vr(AT+4*t,4)}, {vr(WUK+4*t,4)}, {c}")
        a(f"v_lshrrev_b32 v14, 8, v{vL16}"); a("v_lshlrev_b32 v14, 4, v14")
        a(f"s_lshl_b32 s{sTmp[0]}, s{sH}, 11"); a(f"s_lshl_b32 s{sTmp[1]}, s{sJ}, 8"); a(f"s_add_u32 s{sTmp[0]}, s{sTmp[0]}, s{sTmp[1]}")
        a(f"s_lshl_b32 s{sTmp[1]}, s{sW}, 6"); a(f"s_add_u32 s{sTmp[0]}, s{sTmp[0]}, s{sTmp[1]}")
        a(f"s_add_u32 s{sTmp[0]}, s{sTmp[0]}, {O_QABS}")
        S, S2 = 20, 21
        a(f"v_mov_b32_dpp v{S}, v{D} quad_perm:[0,0,0,0] {DPPALL}")
        a(f"v_mov_b32_dpp v{S2}, v{D+2} quad_perm:[2,2,2,2] {DPPALL}")
        a(f"s_nop 0")
        a(f"v_add_f32_dpp v{S}, v{D+1}, v{S} quad_perm:[1,1,1,1] {DPPALL}")
        a(f"v_add_f32_dpp v{S2}, v{D+3}, v{S2} quad_perm:[3,3,3,3] {DPPALL}")
        a(f"v_add_f32 v{S}, v{S}, v{S2}")
        a(f"v_mul_f32 v{S}, s{sSc}, v{S}")
        G = 24
        for q in range(4): a(f"v_mov_b32_dpp v{G+q}, v{S} row_newbcast:{4*q} {DPPALL}")
        self.tag([G, G+1, G+2, G+3])
        self.exec_set(0x00010001, 0x00010001)
        a(f"buffer_store_dwordx4 {vr(G,4)}, v14, {W}, s{sTmp[0]} offen sc1")
        self.exec_all()
        self.stamp(3)
        if not self.pfnew: self.load_wuv()
        Gq = 16
        a(f"s_lshl_b32 s{sTmp[0]}, s{sGA}, 15"); a(f"s_lshl_b32 s{sTmp[1]}, s{sW}, 9"); a(f"s_add_u32 s{sTmp[0]}, s{sTmp[0]}, s{sTmp[1]}")
        a(f"s_add_u32 s{sTmp[0]}, s{sTmp[0]}, {O_QABS}")
        for i in range(1, 4): a(f"s_add_u32 s{sTmp[i]}, s{sTmp[0]}, {i*8192}")
        vA0, vB0, vAx = 52, 53, 54
        n, g = 48, 49
        a(f"v_lshrrev_b32 v{n}, 4, v{vL16}"); a(f"v_lshrrev_b32 v{g}, 4, v{n}"); a(f"v_and_b32 v{n}, 15, v{n}")
        a(f"v_and_b32 v50, 8, v{n}"); a(f"v_and_b32 v51, 3, v{n}"); a(f"v_lshl_or_b32 v50, v51, 1, v50")
        a(f"v_bfe_u32 v51, v{n}, 2, 1"); a(f"v_or_b32 v50, v50, v51")
        a(f"s_lshl_b32 s{sTmp[4]}, s{sW}, 14"); a(f"s_add_u32 s{sTmp[4]}, s{sTmp[4]}, {L_CKV}")
        a(f"v_lshlrev_b32 v51, 10, v{n}"); a(f"v_lshl_add_u32 v51, v{g}, 8, v51"); a(f"v_lshl_add_u32 v51, v50, 4, v51")
        a(f"v_add_u32 v{vA0}, s{sTmp[4]}, v51")
        a(f"v_mul_u32_u24 v{vB0}, 1040, v{n}"); a(f"v_lshl_add_u32 v{vB0}, v{g}, 8, v{vB0}"); a(f"v_add_u32 v{vB0}, {L_R0}, v{vB0}")
        a(f"v_mul_u32_u24 v51, 272, v{n}"); a(f"v_lshl_add_u32 v50, v{g}, 4, v51")
        a(f"s_lshl_b32 s{sTmp[4]}, s{sW}, 6"); a(f"s_add_u32 s{sTmp[4]}, s{sTmp[4]}, {L_ST}"); a(f"v_add_u32 v50, s{sTmp[4]}, v50")
        a(f"v_lshl_add_u32 v51, v{g}, 5, v51"); a(f"v_add_u32 v51, {L_ST}, v51")
        vC0, vC1, vX0, vX1 = 76, 77, 78, 79
        a(f"v_and_b32 v14, 3, v{n}"); a(f"v_lshrrev_b32 v15, 2, v{n}")
        a(f"v_and_b32 v55, 1, v{g}"); a(f"v_lshlrev_b32 v55, 3, v55"); a(f"v_lshl_add_u32 v55, v15, 1, v55")
        a(f"v_lshrrev_b32 v56, 1, v14"); a(f"v_xor_b32 v55, v55, v56")
        a(f"v_lshl_add_u32 v56, v{g}, 3, v15"); a(f"v_lshlrev_b32 v56, 10, v56")
        a(f"v_lshl_add_u32 v56, v55, 4, v56"); a(f"v_and_b32 v14, 1, v14"); a(f"v_lshl_add_u32 v56, v14, 3, v56")
        a(f"s_lshl_b32 s{sTmp[4]}, s{sW}, 8"); a(f"s_add_u32 s{sTmp[4]}, s{sTmp[4]}, {L_CKV}")
        a(f"v_add_u32 v{vC0}, s{sTmp[4]}, v56")
        a(f"v_add_u32 v{vC1}, 4096, v{vC0}"); a(f"v_xor_b32 v{vC1}, 16, v{vC1}")
        a(f"s_lshl_b32 s{sTmp[4]}, s{sW}, 8"); a(f"s_add_u32 s{sTmp[4]}, s{sTmp[4]}, {L_R0}")
        a(f"v_lshrrev_b32 v14, 9, v{vL16}"); a(f"v_and_b32 v57, 0x1f0, v{vL16}")
        a(f"v_lshrrev_b32 v15, 1, v57"); a(f"v_mul_u32_u24 v58, 1040, v14"); a(f"v_add_u32 v15, v15, v58"); a(f"v_add_u32 v15, s{sTmp[4]}, v15")
        a(f"v_lshl_add_u32 v57, v14, 11, v57")
        lg0 = a.newlabel("cg"); lg1 = a.newlabel("cg")
        a.label(lg0)
        a(f"s_cmp_ge_u32 s{sPos}, 16"); a(f"s_cbranch_scc1 {lg1}")
        self.stream_call()
        a(f"s_branch {lg0}")
        a.label(lg1)
        if self.sent:
            lsk = a.newlabel("nosent")
            if not self.sent1:
                a(f"s_cmp_lg_u32 s{sAct}, 0"); a(f"s_cbranch_scc1 {lsk}")
            a(f"v_lshrrev_b32 v14, 7, v{vL16}"); a(f"v_lshlrev_b32 v14, 11, v14"); a(f"v_and_b32 v58, 0x70, v{vL16}"); a(f"v_lshl_add_u32 v14, v58, 2, v14")
            def iss0():
                a(f"buffer_load_dwordx4 {vr(Gq,4)}, v14, {W}, s{sTmp[0]} offen sc1")
                a(f"buffer_load_dwordx4 {vr(Gq+4,4)}, v14, {W}, s{sTmp[2]} offen sc1")
            self.poll(iss0, [Gq, Gq+4], site='sent')
            a.label(lsk)
            self.stamp(15)
        def iss():
            for i in range(8):
                so = sTmp[i >> 1]
                if i & 1:
                    a(f"s_add_u32 s{sTmp[5-1]}, s{so}, 4096"); so = sTmp[4]
                a(f"buffer_load_dwordx4 {vr(Gq+4*i,4)}, v57, {W}, s{so} offen sc1")
        self.poll(iss, [Gq+4*i for i in range(8)], site='h4')
        self.stampval(30, sSpin); self.stampval(31, sPos)
        self.stamp(4)
        if self.pfnew: self.load_wuv()
        self.burst('A0')
        if self.c1touch2 == "h4":
            lt = a.newlabel("t2")
            a(f"s_cmp_eq_u32 s{sL}, 0"); a(f"s_cbranch_scc1 {lt}")
            a(f"v_lshlrev_b32 v11, 2, v{vL16}")
            for i in range(1 if self.c1bf else 2):
                a(f"s_add_u32 s{sTmp[0]}, s{sC1}, {i * 4096}")
                a(f"buffer_load_dword v12, v11, {W}, s{sTmp[0]} offen")
            a.label(lt)
        for i in range(8):
            b = Gq + 4*i
            a(f"v_cvt_pk_bf16_f32 v{b}, v{b}, v{b+1}"); a(f"v_cvt_pk_bf16_f32 v{b+1}, v{b+2}, v{b+3}")
            a(f"ds_write_b64 v15, {vr(b,2)} offset:{i*2*1040}")
        a("s_waitcnt lgkmcnt(0)"); a("s_barrier")
        self.stamp(16)
        if "S" in self.xcalls: self.topup(site='S')
        self.burst('S')
        AB = 16
        Ds = 56
        def rd(st):
            b = AB + 8 * (st % 4)
            if st == 0: a(f"ds_read_b128 {vr(b,4)}, v{vA0}")
            else:
                a(f"v_xor_b32 v{vAx}, {st<<4}, v{vA0}"); a(f"ds_read_b128 {vr(b,4)}, v{vAx}")
            a(f"ds_read_b128 {vr(b+4,4)}, v{vB0} offset:{st*16}")
        for st in range(4): rd(st)
        for st in range(16):
            rem = min(3, 15 - st)
            a(f"s_waitcnt lgkmcnt({2*rem})")
            b = AB + 8 * (st % 4)
            c = "0" if st == 0 else vr(Ds, 4)
            a(f"v_mfma_f32_16x16x32_bf16 {vr(Ds,4)}, {vr(b,4)}, {vr(b+4,4)}, {c}")
            if st + 4 < 16: rd(st + 4)
        a(f"ds_write_b128 v50, {vr(Ds,4)}")
        a("s_waitcnt lgkmcnt(0)"); a("s_barrier")
        self.stamp(17)
        SS = 16
        for u in range(2):
            for hf in range(2):
                a(f"ds_read_b128 {vr(SS+8*u+4*hf,4)}, v51 offset:{u*128+hf*16}")
        if self.pfnew: self.load_wo(pWoA)
        DT = 44; AF = 56
        m, l, t1, t2 = 32, 33, 34, 35
        a("s_waitcnt lgkmcnt(0)")
        a(f"v_max3_f32 v{m}, v{SS}, v{SS+1}, v{SS+2}"); a(f"v_max3_f32 v{t1}, v{SS+3}, v{SS+4}, v{SS+5}")
        a(f"v_max3_f32 v{m}, v{m}, v{SS+6}, v{SS+7}"); a(f"v_max3_f32 v{t1}, v{t1}, v{SS+8}, v{SS+9}")
        a(f"v_max3_f32 v{m}, v{m}, v{SS+10}, v{SS+11}"); a(f"v_max3_f32 v{t1}, v{t1}, v{SS+12}, v{SS+13}")
        a(f"v_max3_f32 v{m}, v{m}, v{SS+14}, v{SS+15}"); a(f"v_max_f32 v{m}, v{m}, v{t1}")
        for sw in ("v_permlane16_swap_b32", "v_permlane32_swap_b32"):
            a(f"v_mov_b32 v{t1}, v{m}"); a(f"{sw} v{m}, v{t1}"); a(f"v_max_f32 v{m}, v{m}, v{t1}")
        for k in range(16): a(f"v_sub_f32 v{SS+k}, v{SS+k}, v{m}")
        for k in range(16): a(f"v_exp_f32 v{SS+k}, v{SS+k}")
        P = 36
        for k in range(8): a(f"v_cvt_pk_bf16_f32 v{P+k}, v{SS+2*k}, v{SS+2*k+1}")
        for k in range(8): a(f"v_add_f32 v{SS+k}, v{SS+k}, v{SS+8+k}")
        for k in range(4): a(f"v_add_f32 v{SS+k}, v{SS+k}, v{SS+4+k}")
        a(f"v_add_f32 v{SS}, v{SS}, v{SS+1}"); a(f"v_add_f32 v{SS+2}, v{SS+2}, v{SS+3}"); a(f"v_add_f32 v{l}, v{SS}, v{SS+2}")
        self.stamp(18)
        if "smax" in self.xcalls: self.topup(site='S')
        self.burst('smax')
        AF = 16
        steps = [(t, u) for t in range(8) for u in range(2)]
        def rdA(k):
            t, u = steps[k]; b = AF + 4 * (k % 4)
            if u == 0:
                if t == 0:
                    a(f"v_mov_b32 v{vX0}, v{vC0}"); a(f"v_mov_b32 v{vX1}, v{vC1}")
                else:
                    a(f"v_xor_b32 v{vX0}, {t<<5}, v{vC0}"); a(f"v_xor_b32 v{vX1}, {t<<5}, v{vC1}")
            a(f"ds_read_b64_tr_b16 {vr(b,2)}, v{vX0} offset:{u*32768}")
            a(f"ds_read_b64_tr_b16 {vr(b+2,2)}, v{vX1} offset:{u*32768}")
        for k in range(4): rdA(k)
        for sw in ("v_permlane16_swap_b32", "v_permlane32_swap_b32"):
            a(f"v_mov_b32 v{t1}, v{l}"); a(f"{sw} v{l}, v{t1}"); a(f"v_add_f32 v{l}, v{l}, v{t1}")
        if self.c1bf:
            self.stage1_bf(DT, P, AF, steps, rdA)
            acc = 48; t1 = 68; Mx = 56; den = 64; R4 = range(4)
        else:
            a(f"v_lshrrev_b32 v14, 8, v{vL16}"); a(f"v_lshlrev_b32 v14, 17, v14"); a(f"v_and_b32 v15, 0xf0, v{vL16}"); a(f"v_add_u32 v14, v14, v15")
            a(f"s_lshl_b32 s{sTmp[0]}, s{sXG}, 20"); a(f"s_lshl_b32 s{sTmp[1]}, s{sGA}, 19"); a(f"s_add_u32 s{sTmp[0]}, s{sTmp[0]}, s{sTmp[1]}")
            a(f"s_lshl_b32 s{sTmp[1]}, s{sW}, 15"); a(f"s_add_u32 s{sTmp[0]}, s{sTmp[0]}, s{sTmp[1]}")
            a(f"s_and_b32 s{sTmp[2]}, s{sS}, 15"); a(f"s_lshl_b32 s{sTmp[1]}, s{sTmp[2]}, 9"); a(f"s_add_u32 s{sTmp[0]}, s{sTmp[0]}, s{sTmp[1]}")
            a(f"s_add_u32 s{sTmp[0]}, s{sTmp[0]}, {O_C1}")
            a(f"s_lshl_b32 s{sTmp[3]}, s{sXG}, 14"); a(f"s_lshl_b32 s{sTmp[1]}, s{sGA}, 13"); a(f"s_add_u32 s{sTmp[3]}, s{sTmp[3]}, s{sTmp[1]}")
            a(f"s_lshl_b32 s{sTmp[1]}, s{sW}, 9"); a(f"s_add_u32 s{sTmp[3]}, s{sTmp[3]}, s{sTmp[1]}")
            a(f"s_lshl_b32 s{sTmp[1]}, s{sTmp[2]}, 5"); a(f"s_add_u32 s{sTmp[3]}, s{sTmp[3]}, s{sTmp[1]}")
            a(f"s_add_u32 s{sTmp[3]}, s{sTmp[3]}, {O_ML1}")
            a(f"v_bfe_u32 v15, v{vL16}, 6, 2"); a(f"v_lshlrev_b32 v15, 11, v15")
            a(f"v_bfe_u32 v32+2, v{vL16}, 8, 1".replace("v32+2", "v34")); a(f"v_lshl_add_u32 v15, v34, 4, v15")
            MG = 76 - 0
            a(f"s_mov_b32 vcc_lo, 0xffff0000"); a("s_mov_b32 vcc_hi, 0")
            a(f"v_cndmask_b32 v34, v32, v33, vcc")
            mlops = [f"v_mov_b32_dpp v32, v34 quad_perm:[0,0,0,0] {DPPALL}", f"v_mov_b32_dpp v33, v34 quad_perm:[1,1,1,1] {DPPALL}",
                     f"v_mov_b32_dpp v35, v34 quad_perm:[3,3,3,3] {DPPALL}", f"v_mov_b32_dpp v34, v34 quad_perm:[2,2,2,2] {DPPALL}"]
            for k in range(16):
                t, u = steps[k]; b = AF + 4 * (k % 4)
                rem = min(3, 15 - k)
                a(f"s_waitcnt lgkmcnt({2*rem})")
                c = "0" if u == 0 else vr(DT+4*t, 4)
                a(f"v_mfma_f32_16x16x32_bf16 {vr(DT+4*t,4)}, {vr(P+4*u,4)}, {vr(b,4)}, {c}")
                if k + 4 < 16: rdA(k + 4)
                if k == 0:
                    for x_ in mlops: a(x_)
                if k == 2: self.tag([32, 33, 34, 35])
                if u == 1 and t >= 2: self.tag([DT+4*(t-2)+r for r in range(4)])
            self.tag([DT+4*6+r for r in range(4)]); self.tag([DT+4*7+r for r in range(4)])
            self.stamp(19)
            items = []
            for t in range(8):
                def pre(t=t): a(f"s_add_u32 s{sTmp[1]}, s{sTmp[0]}, {(t>>1)*8192+(t&1)*256}")
                items.append((DT+4*t, 14, sTmp[1], pre))
            def pre_ml(): a("s_mov_b32 exec_lo, 0x11111111"); a("s_mov_b32 exec_hi, 0")
            items.append((32, 15, sTmp[3], pre_ml))
            if self.c1sc1:
                loc = self.local; self.local = False
                self.local_stores(items)
                self.local = loc
            else:
                self.local_stores(items)
            self.exec_all()
            self.stamp(5)
            G, MM, LL = 16, 48, 52
            a(f"v_lshrrev_b32 v14, 4, v{vL16}"); a(f"v_and_b32 v15, 7, v14"); a(f"v_lshrrev_b32 v14, 5, v14")
            a(f"v_lshl_add_u32 v14, v15, 1, v14"); a(f"v_lshlrev_b32 v14, 5, v14")
            a(f"s_lshl_b32 s{sTmp[0]}, s{sXG}, 5"); a(f"s_add_u32 s{sTmp[0]}, s{sTmp[0]}, s{sI}")
            a(f"s_lshl_b32 s{sTmp[2]}, s{sTmp[0]}, 9"); a(f"s_add_u32 s{sTmp[2]}, s{sTmp[2]}, {O_ML1}")
            a(f"s_lshl_b32 s{sTmp[0]}, s{sTmp[0]}, 2"); a(f"s_add_u32 s{sTmp[0]}, s{sTmp[0]}, s{sW}")
            a(f"s_lshl_b32 s{sTmp[0]}, s{sTmp[0]}, 13"); a(f"s_add_u32 s{sTmp[0]}, s{sTmp[0]}, {O_C1}")
            a(f"s_add_u32 s{sTmp[1]}, s{sTmp[0]}, 4096")
            def issML():
                a(f"buffer_load_dwordx4 {vr(MM,4)}, v14, {W}, s{sTmp[2]} offen sc1")
                a(f"buffer_load_dwordx4 {vr(LL,4)}, v14, {W}, s{sTmp[2]} offen offset:16 sc1")
            lsk = a.newlabel("noml")
            if not self.mlsent:
                a(f"s_cmp_lg_u32 s{sAct}, 0"); a(f"s_cbranch_scc1 {lsk}")
            if not self.mltail:
                a(f"s_cmp_ge_u32 s{sL}, 2"); a(f"s_cbranch_scc1 {lsk}")
            self.poll(issML, [MM, LL], site='ml1')
            a.label(lsk)
            self.stamp(20)
            Mx, wv, den, t1 = 56, 60, 64, 68
            chk = 72
            lp = a.newlabel("sw1"); ns = a.newlabel("sw1n"); jn = a.newlabel("sw1j"); dn = a.newlabel("sw1d"); ns2 = a.newlabel("sw1m"); jn2 = a.newlabel("sw1k")
            a(f"s_mov_b32 s{sSpin}, 0")
            if self.bud is not None: a(f"s_mov_b32 s{sBud}, {self.bud.get('sw1', self.bud.get('*', 8))}")
            self.predelay('sw1')
            a.label(lp)
            issML()
            for i in range(8):
                a(f"buffer_load_dwordx4 {vr(G+4*i,4)}, v{vL16}, {W}, s{sTmp[i>>2]} offen offset:{(i&3)*1024} sc1")
            a(f"s_mov_b32 s{sYoung}, 8")
            self.dwait(8, 10 if self.addn else 0, 'sw1')
            a(f"s_sub_u32 s{sTmp[4]}, s{sYoung}, 8")
            for r in range(4): a(f"v_xor_b32 v{MM+r}, s{sT[r]}, v{MM+r}")
            for r in range(4): a(f"v_xor_b32 v{LL+r}, s{sT[r]}, v{LL+r}")
            a(f"v_or3_b32 v{chk}, v{MM}, v{MM+1}, v{MM+2}"); a(f"v_or3_b32 v{chk}, v{chk}, v{MM+3}, v{LL}")
            a(f"v_or3_b32 v{chk}, v{chk}, v{LL+1}, v{LL+2}"); a(f"v_or_b32 v{chk}, v{chk}, v{LL+3}")
            R4 = range(4)
            for r in R4: a(f"v_max_f32_dpp v{Mx+r}, v{MM+r}, v{MM+r} {self.X1} {DPPALL}")
            self.dpp_steps([Mx+r for r in R4], "v_max_f32", [self.X2, self.HM])
            for r in R4: a(f"v_mov_b32 v{t1+r}, v{Mx+r}")
            for r in R4: a(f"v_permlane32_swap_b32 v{Mx+r}, v{t1+r}")
            for r in R4: a(f"v_max_f32 v{Mx+r}, v{Mx+r}, v{t1+r}")
            for r in R4: a(f"v_sub_f32 v{wv+r}, v{MM+r}, v{Mx+r}")
            for r in R4: a(f"v_exp_f32 v{wv+r}, v{wv+r}")
            for r in R4: a(f"v_mul_f32 v{den+r}, v{wv+r}, v{LL+r}")
            self.dpp_steps([den+r for r in R4], "v_add_f32", [self.X1, self.X2, self.HM])
            for r in R4: a(f"v_mov_b32 v{t1+r}, v{den+r}")
            for r in R4: a(f"v_permlane32_swap_b32 v{den+r}, v{t1+r}")
            for r in R4: a(f"v_add_f32 v{den+r}, v{den+r}, v{t1+r}")
            if self.mode == "co":
                a(f"s_cmp_eq_u32 s{sTmp[4]}, 0"); a(f"s_cbranch_scc1 {ns2}")
                a(f"s_mov_b32 s{sYoung}, s{sTmp[4]}")
                a(f"s_swappc_b64 s[{sRET2}:{sRET2+1}], s[{sDW}:{sDW+1}]")
                a(f"s_branch {jn2}")
                a.label(ns2)
            self.dwait(0, 0, 'sw1')
            a.label(jn2)
            dw = [G + i for i in range(32)]
            for k, r in enumerate(dw): a(f"v_xor_b32 v{r}, s{sT[k % 4]}, v{r}")
            a(f"v_or3_b32 v{vT0}, v{dw[0]}, v{dw[1]}, v{chk}"); a(f"v_or3_b32 v{vT0+1}, v{dw[2]}, v{dw[3]}, v{dw[4]}")
            k = 5; tog = 0
            while k < 31:
                tgt = vT0 + tog
                a(f"v_or3_b32 v{tgt}, v{tgt}, v{dw[k]}, v{dw[k+1]}"); k += 2; tog ^= 1
            a(f"v_or3_b32 v{vT0}, v{vT0}, v{vT0+1}, v{dw[31]}")
            a(f"v_and_b32 v{vT0}, s{sFF}, v{vT0}")
            a(f"v_cmp_ne_u32 vcc, 0, v{vT0}")
            a(f"s_cbranch_vccz {dn}")
            a(f"s_add_u32 s{sSpin}, s{sSpin}, 1"); a(f"s_cmp_lt_u32 s{sSpin}, {SPIN_MAX}"); a(f"s_cbranch_scc1 {lp}")
            a(f"s_mov_b32 s{sErr}, 1")
            a.label(dn)
            self.stampval(24, sSpin); self.stampval(25, sPos)
            self.stamp(6)
            self.burst('A1')
            acc = 48
            for i in range(8):
                for r in range(4):
                    op = "v_mul_f32_dpp" if i == 0 else "v_fmac_f32_dpp"
                    a(f"{op} v{acc+r}, v{wv+r}, v{G+4*i+r} row_newbcast:{i} {DPPALL}")

        if self.c1bf:
            a(f"v_bfe_u32 v14, v{vL16}, 9, 1"); a(f"v_lshlrev_b32 v14, 11, v14"); a(f"v_and_b32 v15, 0xf0, v{vL16}"); a(f"v_add_u32 v14, v14, v15")
        else:
            a(f"v_bfe_u32 v14, v{vL16}, 8, 1"); a(f"v_lshlrev_b32 v14, 11, v14"); a(f"v_and_b32 v15, 0xf0, v{vL16}"); a(f"v_add_u32 v14, v14, v15")
            for r in R4: a(f"v_mov_b32 v{t1+r}, v{acc+r}")
        a(f"s_lshr_b32 s{sTmp[0]}, s{sI}, 2"); a(f"s_lshl_b32 s{sTmp[0]}, s{sTmp[0]}, 16")
        a(f"s_and_b32 s{sTmp[1]}, s{sI}, 3"); a(f"s_lshl_b32 s{sTmp[1]}, s{sTmp[1]}, 14"); a(f"s_add_u32 s{sTmp[0]}, s{sTmp[0]}, s{sTmp[1]}")
        if not self.c1bf:
            for r in R4: a(f"v_permlane32_swap_b32 v{acc+r}, v{t1+r}")
        a(f"s_lshl_b32 s{sTmp[1]}, s{sW}, 12"); a(f"s_add_u32 s{sTmp[0]}, s{sTmp[0]}, s{sTmp[1]}")
        a(f"s_lshl_b32 s{sTmp[1]}, s{sXG}, 8"); a(f"s_add_u32 s{sTmp[0]}, s{sTmp[0]}, s{sTmp[1]}")
        if not self.c1bf:
            for r in R4: a(f"v_add_f32 v{acc+r}, v{acc+r}, v{t1+r}")
        a(f"s_add_u32 s{sTmp[0]}, s{sTmp[0]}, {O_C2}")
        self.tag([acc, acc+1, acc+2, acc+3])
        if self.c1bf: self.exec_set(0xffff, 0xffff)
        else: a("s_mov_b32 exec_hi, 0")
        a(f"buffer_store_dwordx4 {vr(acc,4)}, v14, {W}, s{sTmp[0]} offen sc1")
        self.exec_all()
        lm = a.newlabel("ml2")
        a(f"s_and_b32 s{sTmp[1]}, s{sI}, 3"); a(f"s_or_b32 s{sTmp[1]}, s{sTmp[1]}, s{sW}"); a(f"s_cmp_lg_u32 s{sTmp[1]}, 0"); a(f"s_cbranch_scc1 {lm}")
        for r in (1, 2, 3):
            a(f"s_mov_b64 vcc, {1 << r}")
            a(f"v_cndmask_b32 v{Mx}, v{Mx}, v{Mx+r}, vcc"); a(f"v_cndmask_b32 v{den}, v{den}, v{den+r}, vcc")
        a(f"v_mov_b32 v{Mx+1}, v{den}"); a(f"v_mov_b32 v{Mx+2}, 0"); a(f"v_mov_b32 v{Mx+3}, 0")
        self.tag([Mx, Mx+1, Mx+2, Mx+3])
        a(f"s_lshl_b32 s{sTmp[1]}, s{sI}, 7"); a(f"s_lshl_b32 s{sTmp[2]}, s{sXG}, 4"); a(f"s_add_u32 s{sTmp[1]}, s{sTmp[1]}, s{sTmp[2]}")
        a(f"s_add_u32 s{sTmp[1]}, s{sTmp[1]}, {O_ML2}")
        a(f"v_lshlrev_b32 v15, 3, v{vL16}")
        a("s_mov_b64 exec, 15")
        a(f"buffer_store_dwordx4 {vr(Mx,4)}, v15, {W}, s{sTmp[1]} offen sc1")
        self.exec_all()
        a.label(lm)
        self.stamp(21)
        if not self.pfnew: self.load_wo(pWoA)
        G0, G1, M0, M1 = 16, 20, 24, 28
        a(f"v_bfe_u32 v15, v{vL16}, 6, 2")
        a(f"v_bfe_u32 v14, v{vL16}, 4, 2"); a(f"v_lshlrev_b32 v14, 2, v14"); a(f"v_lshrrev_b32 v32, 8, v{vL16}"); a(f"v_add_u32 v14, v14, v32")
        a(f"v_lshlrev_b32 v14, 4, v14"); a(f"v_lshl_add_u32 v14, v15, 8, v14")
        a(f"v_lshlrev_b32 v15, 4, v15")
        a(f"s_lshr_b32 s{sTmp[0]}, s{sH}, 2"); a(f"s_lshl_b32 s{sTmp[0]}, s{sTmp[0]}, 16"); a(f"s_lshl_b32 s{sTmp[1]}, s{sJ}, 13"); a(f"s_add_u32 s{sTmp[0]}, s{sTmp[0]}, s{sTmp[1]}")
        a(f"s_lshl_b32 s{sTmp[1]}, s{sW}, 11"); a(f"s_add_u32 s{sTmp[0]}, s{sTmp[0]}, s{sTmp[1]}"); a(f"s_add_u32 s{sTmp[0]}, s{sTmp[0]}, {O_C2}")
        a(f"s_lshl_b32 s{sTmp[2]}, s{sH}, 7"); a(f"s_add_u32 s{sTmp[2]}, s{sTmp[2]}, {O_ML2}")
        def iss2():
            a(f"buffer_load_dwordx4 {vr(M0,4)}, v15, {W}, s{sTmp[2]} offen sc1")
            a(f"buffer_load_dwordx4 {vr(M1,4)}, v15, {W}, s{sTmp[2]} offen offset:64 sc1")
            a(f"buffer_load_dwordx4 {vr(G0,4)}, v14, {W}, s{sTmp[0]} offen sc1")
            a(f"buffer_load_dwordx4 {vr(G1,4)}, v14, {W}, s{sTmp[0]} offen offset:1024 sc1")
        self.poll(iss2, [M0, M1, G0, G1], site='h5b')
        self.stampval(26, sSpin); self.stampval(27, sPos)
        self.stamp(14)
        self.burst('A2')
        lsel = [a.newlabel("sel") for _ in range(4)]; lj = a.newlabel("selj")
        Mx, f0, f1, Ls = 32, 33, 34, 35
        a(f"v_max_f32 v{Mx}, v{M0}, v{M1}")
        a(f"s_and_b32 s{sTmp[1]}, s{sH}, 3")
        for r in (1, 2, 3):
            a(f"s_cmp_eq_u32 s{sTmp[1]}, {r}"); a(f"s_cbranch_scc1 {lsel[r]}")
        a(f"s_branch {lj}")
        for r in (1, 2, 3):
            a.label(lsel[r])
            a(f"v_mov_b32 v{G0}, v{G0+r}"); a(f"v_mov_b32 v{G1}, v{G1+r}")
            if r < 3: a(f"s_branch {lj}")
        a.label(lj)
        self.dpp_steps([Mx], "v_max_f32", ["row_ror:4", "row_ror:8"])
        a(f"v_sub_f32 v{f0}, v{M0}, v{Mx}"); a(f"v_sub_f32 v{f1}, v{M1}, v{Mx}")
        a(f"v_exp_f32 v{f0}, v{f0}"); a(f"v_exp_f32 v{f1}, v{f1}")
        a(f"v_mul_f32 v{Ls}, v{f0}, v{M0+1}"); a(f"v_mul_f32 v{G0}, v{f0}, v{G0}")
        a(f"v_fmac_f32 v{Ls}, v{f1}, v{M1+1}"); a(f"v_fmac_f32 v{G0}, v{f1}, v{G1}")
        self.dpp_steps([Ls, G0], "v_add_f32", ["row_ror:4", "row_ror:8"])
        a(f"v_rcp_f32 v{Ls}, v{Ls}")
        a(f"v_mul_f32 v{G0}, v{G0}, v{Ls}")
        Xp = 14
        a(f"v_cvt_pk_bf16_f32 v{Xp}, v{G0}, v{G0}")
        D, Ab = 16, 20
        self.pv_gemv(Xp, 4, lambda i: vr(WUV+4*i, 4), D, Ab)
        self.red_write(D)
        self.row_slot_addr()
        a("s_waitcnt lgkmcnt(0)"); a("s_barrier")
        lf = a.newlabel("uvfin")
        a(f"s_cmp_lg_u32 s{sW}, 0"); a(f"s_cbranch_scc1 {lf}")
        G = 16
        self.red_final_read(G)
        a(f"s_mov_b32 s{sA}, {f32hex(0.125)}")
        a("s_waitcnt lgkmcnt(0)")
        self.sum4(G)
        a(f"v_writelane_b32 v{G}, 0, 32"); a(f"v_writelane_b32 v{G+1}, s{sA}, 32")
        self.tag([G, G+1, G+2, G+3])
        a("s_mov_b32 exec_hi, 1")
        self.local_stores([(G, vL16, sTmp[0], None)])
        a("s_mov_b32 exec_hi, -1")
        a.label(lf)
        self.stamp(7)

    def stage1_bf(self, DT, P, AF, steps, rdA):
        a = self.a
        R4 = range(4)
        a(f"v_lshrrev_b32 v14, 8, v{vL16}"); a(f"v_lshlrev_b32 v14, 16, v14"); a(f"v_and_b32 v15, 0xf0, v{vL16}"); a(f"v_add_u32 v14, v14, v15")
        a(f"s_lshl_b32 s{sTmp[0]}, s{sXG}, 19"); a(f"s_lshl_b32 s{sTmp[1]}, s{sGA}, 18"); a(f"s_add_u32 s{sTmp[0]}, s{sTmp[0]}, s{sTmp[1]}")
        a(f"s_lshl_b32 s{sTmp[1]}, s{sW}, 14"); a(f"s_add_u32 s{sTmp[0]}, s{sTmp[0]}, s{sTmp[1]}")
        a(f"s_and_b32 s{sTmp[2]}, s{sS}, 15"); a(f"s_lshl_b32 s{sTmp[1]}, s{sTmp[2]}, 8"); a(f"s_add_u32 s{sTmp[0]}, s{sTmp[0]}, s{sTmp[1]}")
        a(f"s_add_u32 s{sTmp[0]}, s{sTmp[0]}, {O_C1}")
        a(f"s_lshl_b32 s{sTmp[3]}, s{sXG}, 14"); a(f"s_lshl_b32 s{sTmp[1]}, s{sGA}, 13"); a(f"s_add_u32 s{sTmp[3]}, s{sTmp[3]}, s{sTmp[1]}")
        a(f"s_lshl_b32 s{sTmp[1]}, s{sW}, 9"); a(f"s_add_u32 s{sTmp[3]}, s{sTmp[3]}, s{sTmp[1]}")
        a(f"s_lshl_b32 s{sTmp[1]}, s{sTmp[2]}, 5"); a(f"s_add_u32 s{sTmp[3]}, s{sTmp[3]}, s{sTmp[1]}")
        a(f"s_add_u32 s{sTmp[3]}, s{sTmp[3]}, {O_ML1}")
        a(f"v_bfe_u32 v15, v{vL16}, 6, 2"); a(f"v_lshlrev_b32 v15, 11, v15")
        a(f"v_bfe_u32 v34, v{vL16}, 8, 1"); a(f"v_lshl_add_u32 v15, v34, 4, v15")
        a(f"s_mov_b32 vcc_lo, 0xffff0000"); a("s_mov_b32 vcc_hi, 0")
        a(f"v_cndmask_b32 v34, v32, v33, vcc")
        mlops = [f"v_mov_b32_dpp v32, v34 quad_perm:[0,0,0,0] {DPPALL}", f"v_mov_b32_dpp v33, v34 quad_perm:[1,1,1,1] {DPPALL}",
                 f"v_mov_b32_dpp v35, v34 quad_perm:[3,3,3,3] {DPPALL}", f"v_mov_b32_dpp v34, v34 quad_perm:[2,2,2,2] {DPPALL}"]
        def pack(wp):
            D0, E0 = DT + 8*wp, DT + 8*wp + 4
            a(f"v_cvt_pk_bf16_f32 v{D0}, v{D0}, v{D0+1}"); a(f"v_cvt_pk_bf16_f32 v{D0+1}, v{D0+2}, v{D0+3}")
            a(f"v_cvt_pk_bf16_f32 v{D0+2}, v{E0}, v{E0+1}"); a(f"v_cvt_pk_bf16_f32 v{D0+3}, v{E0+2}, v{E0+3}")
        for k in range(16):
            t, u = steps[k]; b = AF + 4 * (k % 4)
            rem = min(3, 15 - k)
            a(f"s_waitcnt lgkmcnt({2*rem})")
            c = "0" if u == 0 else vr(DT+4*t, 4)
            a(f"v_mfma_f32_16x16x32_bf16 {vr(DT+4*t,4)}, {vr(P+4*u,4)}, {vr(b,4)}, {c}")
            if k + 4 < 16: rdA(k + 4)
            if k == 0:
                for x_ in mlops: a(x_)
            if k == 2: self.tag([32, 33, 34, 35])
            if k in (7, 11, 15) : pack((k - 7) // 4)
        pack(3)
        self.stamp(19)
        items = []
        for wp in range(4):
            def pre(wp=wp): a(f"s_add_u32 s{sTmp[1]}, s{sTmp[0]}, {wp*4096}")
            items.append((DT+8*wp, 14, sTmp[1], pre))
        self.local_stores(items)
        G, MM, LL = 16, 48, 52
        a(f"v_bfe_u32 v14, v{vL16}, 4, 2"); a(f"v_lshlrev_b32 v14, 2, v14"); a(f"v_lshrrev_b32 v36, 8, v{vL16}"); a(f"v_add_u32 v14, v14, v36")
        a(f"v_lshlrev_b32 v14, 5, v14")
        a(f"s_lshl_b32 s{sTmp[0]}, s{sXG}, 5"); a(f"s_add_u32 s{sTmp[0]}, s{sTmp[0]}, s{sI}")
        a(f"s_lshl_b32 s{sTmp[2]}, s{sTmp[0]}, 9"); a(f"s_add_u32 s{sTmp[2]}, s{sTmp[2]}, {O_ML1}")
        a("s_waitcnt vmcnt(0)")
        def pre_ml(): a("s_mov_b32 exec_lo, 0x11111111"); a("s_mov_b32 exec_hi, 0")
        self.local_stores([(32, 15, sTmp[3], pre_ml)])
        self.exec_all()
        self.stamp(5)
        def issML():
            a(f"buffer_load_dwordx4 {vr(MM,4)}, v14, {W}, s{sTmp[2]} offen sc1")
            a(f"buffer_load_dwordx4 {vr(LL,4)}, v14, {W}, s{sTmp[2]} offen offset:16 sc1")
        self.poll(issML, [MM, LL], site='ml1')
        self.stamp(20)
        for i in range(4):
            a(f"buffer_load_dwordx4 {vr(G+4*i,4)}, v{vL16}, {W}, s{sC1} offen offset:{i*1024} sc1")
        Mx, wv, den, t1 = 56, 60, 64, 68
        for r in R4: a(f"v_max_f32_dpp v{Mx+r}, v{MM+r}, v{MM+r} {self.X1} {DPPALL}")
        self.dpp_steps([Mx+r for r in R4], "v_max_f32", [self.X2])
        for sw in ("v_permlane16_swap_b32", "v_permlane32_swap_b32"):
            for r in R4: a(f"v_mov_b32 v{t1+r}, v{Mx+r}")
            for r in R4: a(f"{sw} v{Mx+r}, v{t1+r}")
            for r in R4: a(f"v_max_f32 v{Mx+r}, v{Mx+r}, v{t1+r}")
        for r in R4: a(f"v_sub_f32 v{wv+r}, v{MM+r}, v{Mx+r}")
        for r in R4: a(f"v_exp_f32 v{wv+r}, v{wv+r}")
        for r in R4: a(f"v_mul_f32 v{den+r}, v{wv+r}, v{LL+r}")
        self.dpp_steps([den+r for r in R4], "v_add_f32", [self.X1, self.X2])
        for sw in ("v_permlane16_swap_b32", "v_permlane32_swap_b32"):
            for r in R4: a(f"v_mov_b32 v{t1+r}, v{den+r}")
            for r in R4: a(f"{sw} v{den+r}, v{t1+r}")
            for r in R4: a(f"v_add_f32 v{den+r}, v{den+r}, v{t1+r}")
        self.dwait(0, 4, 'sw1')
        self.stamp(6)
        self.burst('A1')
        accA, accB, un = 48, 52, 32
        for i in range(4):
            g0 = G + 4*i
            for q in range(4):
                a(f"v_lshlrev_b32 v{un+2*q}, 16, v{g0+q}"); a(f"v_and_b32 v{un+2*q+1}, 0xffff0000, v{g0+q}")
            for q in range(8):
                acc = (accA if q < 4 else accB) + (q & 3)
                op = "v_mul_f32_dpp" if i == 0 else "v_fmac_f32_dpp"
                a(f"{op} v{acc}, v{wv+(q&3)}, v{un+q} row_newbcast:{i} {DPPALL}")
        for r in R4: a(f"v_permlane32_swap_b32 v{accA+r}, v{accB+r}")
        for r in R4: a(f"v_add_f32 v{accA+r}, v{accA+r}, v{accB+r}")
        for r in R4: a(f"v_mov_b32 v{t1+r}, v{accA+r}")
        for r in R4: a(f"v_permlane16_swap_b32 v{accA+r}, v{t1+r}")
        for r in R4: a(f"v_add_f32 v{accA+r}, v{accA+r}, v{t1+r}")

    def check_inline(self, regs, ok_label):
        a = self.a
        acc, acc2 = vT0, vT0 + 1
        dw = [g + i for g in regs for i in range(4)]
        for k, r in enumerate(dw): a(f"v_xor_b32 v{r}, s{sT[k % 4]}, v{r}")
        a(f"v_or3_b32 v{acc}, v{dw[0]}, v{dw[1]}, v{dw[2]}")
        a(f"v_or3_b32 v{acc2}, v{dw[3]}, v{dw[4]}, v{dw[5]}")
        k = 6; tog = 0
        while k < len(dw):
            tgt = acc if tog == 0 else acc2
            a(f"v_or3_b32 v{tgt}, v{tgt}, v{dw[k]}, v{dw[k+1]}"); k += 2; tog ^= 1
        a(f"v_or_b32 v{acc}, v{acc}, v{acc2}")
        a(f"v_and_b32 v{acc}, s{sFF}, v{acc}")
        a(f"v_cmp_ne_u32 vcc, 0, v{acc}")
        a(f"s_cbranch_vccz {ok_label}")

    def row_slot_addr(self):
        a = self.a
        a(f"s_lshl_b32 s{sTmp[0]}, s{sH}, 3"); a(f"s_add_u32 s{sTmp[0]}, s{sTmp[0]}, s{sJ}"); a(f"s_lshl_b32 s{sTmp[0]}, s{sTmp[0]}, 10")
        a(f"s_add_u32 s{sTmp[0]}, s{sTmp[0]}, {O_ROW}")

    def bmiddle(self):
        a = self.a
        k = self.kblk
        if self.mode == "co":
            l0 = a.newlabel("kw"); l1 = a.newlabel("kw")
            a.label(l0)
            a(f"s_cmp_ge_u32 s{sPos}, {self.KEND+self.keep}"); a(f"s_cbranch_scc1 {l1}")
            self.stream_call()
            a(f"s_waitcnt vmcnt({self.keep})")
            a(f"s_branch {l0}")
            a.label(l1)
            a(f"s_waitcnt vmcnt({self.keep})")
        self.stampval(24, sPos)
        self.stamp(16)
        if not self.vsplit or self.woqk: self.wo_setup(pWoB)
        Db = [16, 20, 24]; SB = 28; Tt = 14
        def redops(b):
            D = Db[b % 3]; S = SB + b
            return [f"v_mov_b32_dpp v{S}, v{D} quad_perm:[0,0,0,0] {DPPALL}",
                    f"v_mov_b32_dpp v{Tt}, v{D+2} quad_perm:[2,2,2,2] {DPPALL}",
                    f"v_add_f32_dpp v{S}, v{D+1}, v{S} quad_perm:[1,1,1,1] {DPPALL}",
                    f"v_add_f32_dpp v{Tt}, v{D+3}, v{Tt} quad_perm:[3,3,3,3] {DPPALL}",
                    f"v_add_f32 v{S}, v{S}, v{Tt}"]
        for b in range(16):
            D = Db[b % 3]
            ro = redops(b - 2) if b >= 2 else []
            for t in range(4):
                c = "0" if t == 0 else vr(D, 4)
                a(f"v_mfma_f32_16x16x32_bf16 {vr(D,4)}, {vr(AT+4*t,4)}, {ar(16*b+4*t,4)}, {c}")
                if ro: a(ro[t])
                if self.vsplit:
                    if self.woqk and t == 1 and b < 6: self.wo_one(b)
                    if t == 2 and (6 if self.woqk else 0) <= b < (10 if self.woqk else 4): self.vtr_one(4 + b - (6 if self.woqk else 0))
                else:
                    if t == 1 and b < 8: self.pf_guard(lambda: self.vtr_one(b))
                    if t == 2 and 8 <= b < 14: self.pf_guard(lambda: self.wo_one(b - 8))
            if ro: a(ro[4])
            if b in self.qkcalls: self.topup(self.dq)
        r14, r15 = redops(14), redops(15)
        r15 = [x.replace(f"v{Tt}", "v15") for x in r15]
        for x14, x15 in zip(r14, r15):
            a(x14); a(x15)
        self.stamp(3)
        m, m2 = 14, 15
        a(f"v_max3_f32 v{m}, v{SB}, v{SB+1}, v{SB+2}"); a(f"v_max3_f32 v{m2}, v{SB+3}, v{SB+4}, v{SB+5}")
        a(f"v_max3_f32 v{m}, v{m}, v{SB+6}, v{SB+7}"); a(f"v_max3_f32 v{m2}, v{m2}, v{SB+8}, v{SB+9}")
        a(f"v_max3_f32 v{m}, v{m}, v{SB+10}, v{SB+11}"); a(f"v_max3_f32 v{m2}, v{m2}, v{SB+12}, v{SB+13}")
        a(f"v_max3_f32 v{m}, v{m}, v{SB+14}, v{SB+15}"); a(f"v_max_f32 v{m}, v{m}, v{m2}")
        self.dpp_steps([m], "v_max_f32", ["row_ror:4", "row_ror:8", "b15", "b31"])
        a(f"v_readlane_b32 s{sA}, v{m}, 63")
        a(f"v_mov_b32 v{m2}, s{sSc}")
        a(f"v_mul_f32 v{m}, s{sA}, v{m2}")
        a(f"v_readfirstlane_b32 s{sA}, v{m}")
        for q in range(16): a(f"v_fma_f32 v{SB+q}, v{SB+q}, s{sSc}, -v{m}")
        for q in range(16): a(f"v_exp_f32 v{SB+q}, v{SB+q}")
        l, l2 = 14, 15
        a(f"v_add_f32 v{l}, v{SB}, v{SB+1}"); a(f"v_add_f32 v{l2}, v{SB+2}, v{SB+3}")
        for q in range(4, 16, 2):
            a(f"v_add_f32 v{l}, v{l}, v{SB+q}"); a(f"v_add_f32 v{l2}, v{l2}, v{SB+q+1}")
        a(f"v_add_f32 v{l}, v{l}, v{l2}")
        pk = [f"v_cvt_pk_bf16_f32 v{SB+q}, v{SB+q}, v{SB+q}" for q in range(16)]
        red = [f"v_add_f32_dpp v{l}, v{l}, v{l} row_ror:4 {DPPALL}", f"v_add_f32_dpp v{l}, v{l}, v{l} row_ror:8 {DPPALL}",
               f"v_add_f32_dpp v{l}, v{l}, v{l} row_bcast:15 row_mask:0xa bank_mask:0xf", f"v_add_f32_dpp v{l}, v{l}, v{l} row_bcast:31 row_mask:0xc bank_mask:0xf"]
        for i in range(4):
            for x_ in pk[4*i:4*i+2]: a(x_)
            a(red[i])
            for x_ in pk[4*i+2:4*i+4]: a(x_)
        a(f"v_readlane_b32 s{sB_}, v{l}, 63")
        self.stamp(4)
        if self.mode == "co":
            self.drain(self.keep)
            a("s_waitcnt vmcnt(16)")
        Ab, Do = 44, 52
        a(f"s_lshl_b32 s{sTmp[0]}, s{sW}, 14"); a(f"v_add_u32 v15, s{sTmp[0]}, v{vL16}")
        if L_VL: a(f"v_add_u32 v15, {L_VL}, v15")
        if self.smf:
            self.pv_smf(SB, Ab, Do)
        else:
            self.pv_dense(SB, Ab, Do)
        self.row_slot_addr()
        a(f"v_writelane_b32 v{Do}, s{sA}, 32"); a(f"v_writelane_b32 v{Do+1}, s{sB_}, 32")
        self.red_write(Do)
        a("s_waitcnt lgkmcnt(0)"); a("s_barrier")
        self.stamp(5)
        lf = a.newlabel("bfin")
        a(f"s_cmp_lg_u32 s{sW}, 0"); a(f"s_cbranch_scc1 {lf}")
        G = 16; MLr = 32
        a(f"v_mov_b32 v14, {L_RED+512}")
        for w in range(4): a(f"ds_read_b64 {vr(MLr+2*w,2)}, v14 offset:{w*RSTR}")
        self.red_final_read(G)
        a("s_waitcnt lgkmcnt(4)")
        M = 40
        a(f"v_max3_f32 v{M}, v{MLr}, v{MLr+2}, v{MLr+4}"); a(f"v_max_f32 v{M}, v{M}, v{MLr+6}")
        for w in range(4): a(f"v_sub_f32 v{MLr+2*w}, v{MLr+2*w}, v{M}")
        for w in range(4): a(f"v_exp_f32 v{MLr+2*w}, v{MLr+2*w}")
        a(f"v_readfirstlane_b32 s{sA}, v{M}")
        a("s_waitcnt lgkmcnt(0)")
        for r in range(4): a(f"v_mul_f32 v{G+r}, v{MLr}, v{G+r}")
        for w in range(1, 4):
            for r in range(4): a(f"v_fmac_f32 v{G+r}, v{MLr+2*w}, v{G+4*w+r}")
        a(f"v_writelane_b32 v{G}, s{sA}, 32")
        self.tag([G, G+1, G+2, G+3])
        a("s_mov_b32 exec_hi, 1")
        self.local_stores([(G, vL16, sTmp[0], None)])
        a("s_mov_b32 exec_hi, -1")
        a.label(lf)
        self.stamp(7)

    def pv_dense(self, SB, Ab, Do):
        a = self.a
        LB = [16, 20, 24, 56]
        order = [(b, u) for b in range(10) for u in range(4)] + [(b, u) for b in range(10, 14) for u in range(4)] + [(b, u) for b in (14, 15) for u in range(4)]
        def build(kk):
            b, u = order[kk]; A = Ab + 4 * (kk % 2)
            for r in range(4):
                a(f"v_and_b32_dpp v{A+r}, v{SB+b}, v{vM[r]} row_newbcast:{4*u} {DPPALL}")
        def bop(kk):
            b, u = order[kk]
            if b < 10: return vr(VRES+16*b+4*u, 4)
            if b < 14: return vr(LB[u], 4)
            return vr(self.vtr_reg(b, u), 4)
        def ldsrd(b, u):
            a(f"ds_read_b128 {vr(LB[u],4)}, v15 offset:{((b-10)*4+u)*1024}")
        build(0); build(1)
        for kk in range(len(order)):
            b, u = order[kk]
            if (b, u) == (8, 0):
                self.stamp(17)
                a("s_waitcnt vmcnt(0)")
                self.stamp(18)
                for uu in range(4): ldsrd(10, uu)
            if 10 <= b < 14: a(f"s_waitcnt lgkmcnt(3)" if not (b == 13 and u > 0) else f"s_waitcnt lgkmcnt({3-u})")
            A = Ab + 4 * (kk % 2)
            c = "0" if kk == 0 else vr(Do, 4)
            a(f"v_mfma_f32_16x16x32_bf16 {vr(Do,4)}, {vr(A,4)}, {bop(kk)}, {c}")
            if 10 <= b < 13: ldsrd(b + 1, u)
            if kk + 2 < len(order): build(kk + 2)

    def pv_smf(self, SB, Ab, Do):
        a = self.a
        N0, N1, IDX = 56, 57, 58
        n = 14
        a(f"v_bfe_u32 v{n}, v{vL16}, 4, 4")
        a(f"v_and_b32 v{IDX}, 3, v{n}"); a(f"v_mul_u32_u24 v{IDX}, 0x1111, v{IDX}")
        a(f"v_lshrrev_b32 v{n}, 2, v{n}"); a(f"v_mov_b32 v59, 0xffff")
        a(f"v_cmp_eq_u32 vcc, 0, v{n}"); a(f"v_cndmask_b32 v{N0}, 0, v59, vcc")
        a(f"v_cmp_eq_u32 vcc, 1, v{n}"); a(f"v_cndmask_b32 v{N1}, 0, v59, vcc")
        for r in range(4): a(f"v_mov_b32 v{Do+r}, 0")
        order = [(b, s_) for b in range(16) for s_ in range(2)]
        LB = [16, 28]
        def build(kk):
            b, s_ = order[kk]; A = Ab + 4 * (kk % 2)
            a(f"v_and_b32_dpp v{A}, v{SB+b}, v{N0} row_newbcast:{8*s_} {DPPALL}")
            a(f"v_and_b32_dpp v{A+1}, v{SB+b}, v{N1} row_newbcast:{8*s_} {DPPALL}")
            a(f"v_and_b32_dpp v{A+2}, v{SB+b}, v{N0} row_newbcast:{8*s_+4} {DPPALL}")
            a(f"v_and_b32_dpp v{A+3}, v{SB+b}, v{N1} row_newbcast:{8*s_+4} {DPPALL}")
        def bop(kk):
            b, s_ = order[kk]
            if b < 10: return vr(VRES+16*b+8*s_, 8)
            if b < 14: return vr(LB[s_], 8)
            return vr(self.vtr_reg(b, 2*s_), 8)
        def ldsrd(b, s_):
            for hf in range(2):
                a(f"ds_read_b128 {vr(LB[s_]+4*hf,4)}, v15 offset:{((b-10)*4+2*s_+hf)*1024}")
        build(0); build(1)
        for kk in range(len(order)):
            b, s_ = order[kk]
            if (b, s_) == (8, 0):
                self.stamp(17)
                a("s_waitcnt vmcnt(0)")
                self.stamp(18)
                ldsrd(10, 0); ldsrd(10, 1)
            if 10 <= b < 14: a("s_waitcnt lgkmcnt(2)" if not (b == 13 and s_ == 1) else "s_waitcnt lgkmcnt(0)")
            A = Ab + 4 * (kk % 2)
            a(f"v_smfmac_f32_16x16x64_bf16 {vr(Do,4)}, {vr(A,4)}, {bop(kk)}, v{IDX}")
            if 10 <= b < 13: ldsrd(b + 1, s_)
            if kk + 2 < len(order): build(kk + 2)

    def opart(self):
        a = self.a
        G, ML = 16, 20
        a(f"v_lshrrev_b32 v14, 7, v{vL16}"); a(f"v_lshlrev_b32 v15, 10, v14")
        a(f"v_and_b32 v14, 0x70, v{vL16}"); a(f"v_add_u32 v14, v15, v14")
        a(f"s_lshl_b32 s{sTmp[0]}, s{sH}, 13"); a(f"s_add_u32 s{sTmp[0]}, s{sTmp[0]}, {O_ROW}")
        a(f"s_lshl_b32 s{sTmp[1]}, s{sW}, 7"); a(f"s_add_u32 s{sTmp[1]}, s{sTmp[1]}, s{sTmp[0]}")
        a(f"v_lshrrev_b32 v59, 8, v{vL16}"); a(f"v_mul_u32_u24 v59, 160, v59")
        a(f"v_and_b32 v58, 0xf0, v{vL16}"); a(f"v_add_u32 v59, v59, v58")
        a(f"s_mul_i32 s{sTmp[2]}, s{sW}, {32*160}"); a(f"s_add_u32 s{sTmp[2]}, s{sTmp[2]}, {L_R0}"); a(f"v_add_u32 v59, s{sTmp[2]}, v59")
        def iss():
            a(f"buffer_load_dwordx4 {vr(ML,4)}, v15, {W}, s{sTmp[0]} offen offset:512 sc1")
            a(f"buffer_load_dwordx4 {vr(G,4)}, v14, {W}, s{sTmp[1]} offen sc1")
        self.poll(iss, [ML, G], site='row')
        self.stamp(8)
        self.burst('O0')
        WB = 24
        for i in range(8): a(f"ds_read_b128 {vr(WB+4*i,4)}, v59 offset:{i*640}")
        if self.pfnew: self.next_w()
        self.combine8(G, ML, 56)
        Xp = 14
        a(f"v_cvt_pk_bf16_f32 v{Xp}, v{G}, v{G}")
        D, Ab = 56, 16
        a("s_waitcnt lgkmcnt(0)")
        self.pv_gemv(Xp, 8, lambda i: vr(WB+4*i, 4), D, Ab)
        self.red_write(D)
        a(f"v_lshrrev_b32 v14, 4, v{vL16}"); a(f"v_mul_u32_u24 v15, 13108, v14"); a(f"v_lshrrev_b32 v15, 16, v15")
        a(f"v_mul_u32_u24 v24, 5, v15"); a(f"v_sub_u32 v14, v14, v24"); a(f"v_lshlrev_b32 v14, 4, v14"); a(f"v_lshl_add_u32 v14, v15, 7, v14")
        a(f"s_lshl_b32 s{sTmp[0]}, s{sJ}, 5"); a(f"s_add_u32 s{sTmp[0]}, s{sTmp[0]}, s{sH}"); a(f"s_lshl_b32 s{sTmp[0]}, s{sTmp[0]}, 9")
        a(f"s_add_u32 s{sTmp[0]}, s{sTmp[0]}, s{sCol}")
        a("s_waitcnt lgkmcnt(0)"); a("s_barrier")
        lf = a.newlabel("ofin")
        a(f"s_cmp_lg_u32 s{sW}, 0"); a(f"s_cbranch_scc1 {lf}")
        self.red_final_read(G)
        a("s_waitcnt lgkmcnt(0)")
        self.sum4(G); self.tag([G, G+1, G+2, G+3])
        self.exec_set(0xfffff, 0)
        a(f"buffer_store_dwordx4 {vr(G,4)}, v14, {W}, s{sTmp[0]} offen sc1")
        self.exec_all()
        a.label(lf)
        self.stamp(9)
        if not self.pfnew: self.next_w()
        if self.skipfin:
            lk = a.newlabel("keep")
            a(f"s_cmp_lg_u32 s{sL}, {(self.stop or 4) - 1}"); a(f"s_cbranch_scc1 {lk}")
            a(f"s_cmp_lg_u32 s{sH}, 0"); a("s_cbranch_scc1 L_fin2")
            a.label(lk)
        if self.vsplit and not self.woqk:
            lb = a.newlabel("nowo")
            a(f"s_bitcmp1_b32 s{sL}, 0"); a(f"s_cbranch_scc1 {lb}")
            self.load_wo(pWoB)
            a.label(lb)
        a(f"v_lshrrev_b32 v14, 7, v{vL16}"); a(f"v_lshlrev_b32 v14, 9, v14")
        a(f"v_and_b32 v15, 0x70, v{vL16}"); a(f"v_add_u32 v14, v14, v15")
        a(f"s_lshl_b32 s{sTmp[0]}, s{sJ}, 14"); a(f"s_lshl_b32 s{sTmp[1]}, s{sW}, 7"); a(f"s_add_u32 s{sTmp[0]}, s{sTmp[0]}, s{sTmp[1]}")
        a(f"s_add_u32 s{sTmp[0]}, s{sTmp[0]}, s{sCol}")
        for i in range(1, 4): a(f"s_add_u32 s{sTmp[i]}, s{sTmp[0]}, {i*4096}")
        def issc():
            for i in range(4):
                a(f"buffer_load_dwordx4 {vr(G+4*i,4)}, v14, {W}, s{sTmp[i]} offen sc1")
        self.poll(issc, [G, G+4, G+8, G+12], execmask=(0x1f1f1f1f, 0x1f1f1f1f), site='col')
        self.stampval(28, sSpin); self.stampval(29, sPos)
        self.stamp(10)
        self.burst('Q0')
        self.sum4(G)
        for r in range(4): a(f"v_add_f32_dpp v{G+r}, v{G+r}, v{G+r} row_ror:8 {DPPALL}")
        self.treduce([G, G+1, G+2, G+3])
        a(f"v_add_f32 v{G}, v{G}, v{vX}")
        a(f"v_cndmask_b32 v{vX}, 0, v{G}, s[{sM5}:{sM5+1}]")

    def second_w(self, lb=None):
        a = self.a
        lb = lb or a.newlabel("nouk")
        a(f"s_bitcmp1_b32 s{sL}, 0"); a(f"s_cbranch_scc1 {lb}")
        self.load_wuk()
        if self.vsplit:
            lc = a.newlabel("vtj")
            a(f"s_branch {lc}")
            a.label(lb)
            for k in range(4): self.vtr_one(k)
            a.label(lc)
        else:
            a.label(lb)

    def next_w(self):
        a = self.a
        lnp = a.newlabel("nopf"); lb = a.newlabel("nouk")
        a(f"s_cmp_eq_u32 s{sL}, 3"); a(f"s_cbranch_scc1 {lnp}")
        a(f"s_add_u32 s{sL}, s{sL}, 1")
        self.load_wq()
        if not self.split2: self.second_w(lb)
        a(f"s_sub_u32 s{sL}, s{sL}, 1")
        a.label(lnp)

    def epilogue(self):
        a = self.a
        le = a.newlabel("fin")
        a(f"s_cmp_lg_u32 s{sH}, 0"); a(f"s_cbranch_scc1 {le}")
        self.srd(SRD_B, pOut, 1280)
        a(f"v_lshrrev_b32 v14, 4, v{vL16}"); a(f"v_and_b32 v15, 15, v14"); a(f"v_lshrrev_b32 v14, 4, v14")
        a(f"v_lshl_add_u32 v14, v15, 2, v14")
        a(f"s_mul_i32 s{sTmp[0]}, s{sJ}, 80"); a(f"s_mul_i32 s{sTmp[1]}, s{sW}, 20"); a(f"s_add_u32 s{sTmp[0]}, s{sTmp[0]}, s{sTmp[1]}")
        a(f"v_add_u32 v14, s{sTmp[0]}, v14"); a(f"v_lshlrev_b32 v14, 1, v14")
        a(f"v_cvt_pk_bf16_f32 v15, v{vX}, v{vX}")
        a(f"s_mov_b64 exec, s[{sM5}:{sM5+1}]")
        a(f"buffer_store_short v15, v14, s[{SRD_B}:{SRD_B+3}], 0 offen")
        self.exec_all()
        a(f"s_cmp_lg_u32 s2, 0"); a(f"s_cbranch_scc1 {le}")
        a(f"s_cmp_lg_u32 s{sW}, 0"); a(f"s_cbranch_scc1 {le}")
        a(f"v_mov_b32 v14, 0")
        a("s_mov_b64 exec, 1")
        a(f"buffer_store_dword v{vT}, v14, {W}, 0 offen sc1")
        self.exec_all()
        a.label(le)
        a.label("L_fin2")
        l2 = a.newlabel("noerr")
        a(f"s_cmp_eq_u32 s{sErr}, 0"); a(f"s_cbranch_scc1 {l2}")
        self.srd(SRD_B, sDbg, 256)
        a(f"v_mov_b32 v14, 0"); a(f"v_mov_b32 v15, 0xdead")
        a("s_mov_b64 exec, 1")
        a(f"buffer_store_dword v15, v14, s[{SRD_B}:{SRD_B+3}], 0 offen")
        self.exec_all()
        a.label(l2)

    def build(self):
        a = self.a
        self.prologue()
        a.label("L_layer")
        self.qpart()
        a(f"s_bitcmp1_b32 s{sL}, 0"); a(f"s_cbranch_scc1 L_bmid")
        self.amiddle()
        a(f"s_branch L_opart")
        a.label("L_bmid")
        self.bmiddle()
        a.label("L_opart")
        self.opart()
        self.stamp(11)
        for L_ in range(4): self.dbgstamp(f"end{L_}", L_)
        a(f"s_add_u32 s{sL}, s{sL}, 1"); a(f"s_xor_b32 s{sCol}, s{sCol}, 0x20000")
        nl = self.stop if self.stop else 4
        a(f"s_cmp_ge_u32 s{sL}, {nl}"); a("s_cbranch_scc1 L_done")
        self.next_tag()
        a("s_branch L_layer")
        a.label("L_done")
        self.epilogue()
        if self.stamps:
            a(f"s_mov_b32 s{sL}, 3")
            self.stamp(13)
        a("s_waitcnt vmcnt(0)")
        a.label("L_end")
        a("s_endpgm")
        self.dw_sub()
        self.stream()
        a.label("L_codeend")
        return fix(a.lines)

HEADER = open("interleave_layers__compressed_kv_cla__mha_block_cached__decode.s.ref").read().split("; Override launch")[0]

def make(path, **kw):
    body = "\n".join(Gen(**kw).build())
    src = f"""{HEADER}; @launch grid=(256,1,1) block=(256,1,1) lds={LDS_BYTES}
.amdgcn_target "amdgcn-amd-amdhsa--gfx950"
.text
.globl {KNAME}
.p2align 8
.type {KNAME},@function
{KNAME}:
{body}
.section .rodata,"a"
.p2align 6
.amdhsa_kernel {KNAME}
  .amdhsa_next_free_vgpr 512
  .amdhsa_next_free_sgpr 102
  .amdhsa_accum_offset 256
  .amdhsa_group_segment_fixed_size 0
  .amdhsa_kernarg_size 112
  .amdhsa_user_sgpr_count 2
  .amdhsa_user_sgpr_kernarg_segment_ptr 1
  .amdhsa_system_sgpr_workgroup_id_x 1
  .amdhsa_float_denorm_mode_32 3
.end_amdhsa_kernel
"""
    open(path, "w").write(src)

if __name__ == "__main__":
    import argparse
    ap = argparse.ArgumentParser()
    ap.add_argument("-o", default="k.s"); ap.add_argument("--opts", default="")
    x = ap.parse_args()
    kw = {}
    for o in filter(None, x.opts.split(";")):
        k_, v_ = o.split("="); kw[k_] = eval(v_)
    make(x.o, **kw)
```

```python
import sys, struct
from hazard import fix

KNAME = "interleave_layers__compressed_kv_cla__mha_block_cached__decode_kernel"

class Asm:
    def __init__(self): self.lines = []; self.n = 0
    def __call__(self, s):
        for l in s.split("\n"):
            l = l.strip()
            if l: self.lines.append(l)
    def label(self, name): self.lines.append(name + ":")
    def newlabel(self, base="L"):
        self.n += 1; return f"{base}_{self.n}"

def vr(b, n=1): return f"v{b}" if n == 1 else f"v[{b}:{b+n-1}]"
def ar(b, n=1): return f"a{b}" if n == 1 else f"a[{b}:{b+n-1}]"
DPPALL = "row_mask:0xf bank_mask:0xf"
def f32hex(x): return "0x%08x" % struct.unpack("<I", struct.pack("<f", x))[0]

O_XCC  = 0x001000
O_STAMP = 0x080000
O_QP   = 0x100000
O_ROW  = 0x180000
O_COL  = 0x1C0000
O_QABS = 0x200000
O_ML1  = 0x210000
O_C2   = 0x240000
O_ML2  = 0x2C0000
O_C1   = 0x300000

L_VL  = 0
L_CKV = 65536
L_R0  = 131072
WOSTR = 5184
L_ST  = 151808
L_RED = 156160
RSTR  = 1056
L_U   = 160384
LDS_BYTES = 163840

sH, sJ, sW, sL, sAct = 3, 4, 5, 6, 7
SRD_WS, SRD_K, SRD_V, SRD_A, SRD_B = 8, 12, 16, 20, 24
sSPC, sRET = 28, 30
sT = [32, 33, 34, 35]
sSel = [36, 37, 38, 39]
pWqA, pWqB, pWuk, pWuv, pWoA, pWoB, pCkv, pOut, pX = 40, 42, 44, 46, 48, 50, 52, 54, 56
sCol = 58
sGA, sS = 59, 60
sSO = 61
sSpin = 62
sPos = 63
sFF = 64
sTmp = list(range(65, 70))
sMask = [76, 78, 80, 82]
sM5 = 84
sDbg = 86
sErr = 88
sLocal = 89
sA, sB_ = 90, 91
sTs = 92
sXG, sI, sSc, sXcc = 98, 99, 100, 101
sTf = 97
sDW, sRET2, sYoung, sVm, sVm2, sDl = 70, 72, 74, 75, 94, 95
sBud = 57
sC1 = 56
sCap = 0

vL16, vM, vT, vX, vWoff, vKoff, vVoff, vRedW = 0, [1, 2, 3, 4], 5, 6, 7, 8, 9, 10
vT0 = 11
vCk = 11
vWo = 13
WQ, WUK, WUV, VTR, VRES = 76, 60, 80, 64, 96
AT = 44

SC = (128 ** -0.5) * 1.4426950408889634
SPIN_MAX = 1 << 16
W = f"s[{SRD_WS}:{SRD_WS+3}]"

class Gen:
    def __init__(self, kblk=8, stream_mode="co", stop_after=None, local=True, stamps="", pol="nt", wpol="", cpol="", codepf=True,
                 qkcalls=(4, 10), sent=True, nopf=False, once=True, xcalls=(), dlim=6, keep=6, addn=True, pretouch=True, mlsent=True, slp=0, sent1=False, pfnew=True, mltail=True, dsite=None, pre=None, rsl=None, dq=None, dbg=None, bud=None, skipfin=True, vsplit=True, woqk=True, split2=True, c1touch=True, c1sc1=False, c1touch2=None, smf=True, cap=None, pre1=None, burst=None, c1bf=True, opt1=True, latepf=False):
        self.latepf = latepf
        self.opt1 = opt1
        self.c1bf = c1bf
        self.burstn = burst or {}
        self.pre1 = pre1
        self.cap = cap
        self.smf = smf
        self.c1touch = c1touch; self.c1sc1 = c1sc1; self.c1touch2 = c1touch2
        self.split2 = split2
        self.woqk = woqk
        self.skipfin = skipfin; self.vsplit = vsplit
        self.bud = bud
        self.dbg = dbg
        self.pre = pre or {}; self.rsl = rsl or {}; self.dq = dq
        self.pfnew = pfnew; self.mltail = mltail; self.dsite = dsite or {}
        self.slp = slp; self.sent1 = sent1
        self.addn = addn; self.pretouch = pretouch; self.mlsent = mlsent
        self.once = once; self.xcalls = xcalls; self.dlim = dlim; self.keep = keep
        self.nopf = nopf
        self.a = Asm(); self.kblk = kblk; self.mode = stream_mode; self.stop = stop_after
        self.local = local; self.stamps = stamps; self.pol = pol; self.wpol = wpol; self.cpol = cpol; self.codepf = codepf
        self.qkcalls = qkcalls; self.sent = sent

    def capture(self, fn):
        saved = self.a.lines; self.a.lines = []
        fn()
        out = self.a.lines; self.a.lines = saved
        return out
    def emit(self, lines):
        self.a.lines.extend(lines)
    def srd(self, s, lo, nbytes):
        a = self.a
        a(f"s_mov_b32 s{s}, s{lo}"); a(f"s_mov_b32 s{s+1}, s{lo+1}")
        a(f"s_mov_b32 s{s+2}, {nbytes:#x}"); a(f"s_mov_b32 s{s+3}, 0x20000")
    def exec_all(self): self.a("s_mov_b64 exec, -1")
    def exec_set(self, lo, hi):
        self.a(f"s_mov_b32 exec_lo, {lo:#x}"); self.a(f"s_mov_b32 exec_hi, {hi:#x}")
    def tag(self, regs):
        for i, r in enumerate(regs):
            self.a(f"v_perm_b32 v{r}, v{r}, v{vT}, s{sSel[i%4]}")
    def stamp(self, idx):
        if not self.stamps: return
        if self.stamps == "light" and idx not in (12, 13, 5): return
        a = self.a
        lab = a.newlabel("st")
        a(f"s_cmp_lg_u32 s{sW}, 0"); a(f"s_cbranch_scc1 {lab}")
        a(f"s_memrealtime s[{sTs}:{sTs+1}]")
        a("s_waitcnt lgkmcnt(0)")
        a(f"s_lshl_b32 s96, s2, 2"); a(f"s_add_u32 s96, s96, s{sL}"); a(f"s_lshl_b32 s96, s96, 7")
        a(f"s_add_u32 s96, s96, {O_STAMP + idx*4}")
        a(f"v_mov_b32 v{vT0}, s{sTs}")
        a(f"s_mov_b64 s[{sTs}:{sTs+1}], exec"); a("s_mov_b64 exec, 1")
        a(f"buffer_store_dword v{vT0}, off, {W}, s96")
        a(f"s_mov_b64 exec, s[{sTs}:{sTs+1}]")
        a.label(lab)
    def dbgstamp(self, k, cond_layer=None):
        if not self.dbg or k not in self.dbg: return
        a = self.a
        k = self.dbg.index(k)
        lab = a.newlabel("db")
        a(f"s_cmp_lg_u32 s{sW}, 0"); a(f"s_cbranch_scc1 {lab}")
        a(f"s_cmp_ge_u32 s2, 8"); a(f"s_cbranch_scc1 {lab}")
        if cond_layer is not None:
            a(f"s_cmp_lg_u32 s{sL}, {cond_layer}"); a(f"s_cbranch_scc1 {lab}")
        a(f"s_memrealtime s[{sTs}:{sTs+1}]")
        a("s_waitcnt lgkmcnt(0)")
        a(f"s_mov_b32 s{SRD_A}, s{sDbg}"); a(f"s_mov_b32 s{SRD_A+1}, s{sDbg+1}"); a(f"s_mov_b32 s{SRD_A+2}, 256"); a(f"s_mov_b32 s{SRD_A+3}, 0x20000")
        a(f"s_lshl_b32 s96, s2, 3"); a(f"s_add_u32 s96, s96, {4*k}")
        a(f"v_mov_b32 v{vT0}, s{sTs}")
        a(f"s_mov_b64 s[{sTs}:{sTs+1}], exec"); a("s_mov_b64 exec, 1")
        a(f"buffer_store_dword v{vT0}, off, s[{SRD_A}:{SRD_A+3}], s96")
        a(f"s_mov_b64 exec, s[{sTs}:{sTs+1}]")
        a.label(lab)
    def stampval(self, idx, sreg):
        if self.stamps != "full": return
        a = self.a
        lab = a.newlabel("sv")
        a(f"s_cmp_lg_u32 s{sW}, 0"); a(f"s_cbranch_scc1 {lab}")
        a(f"s_lshl_b32 s96, s2, 2"); a(f"s_add_u32 s96, s96, s{sL}"); a(f"s_lshl_b32 s96, s96, 7")
        a(f"s_add_u32 s96, s96, {O_STAMP + idx*4}")
        a(f"v_mov_b32 v{vT0}, s{sreg}")
        a(f"s_mov_b64 s[{sTs}:{sTs+1}], exec"); a("s_mov_b64 exec, 1")
        a(f"buffer_store_dword v{vT0}, off, {W}, s96")
        a(f"s_mov_b64 exec, s[{sTs}:{sTs+1}]")
        a.label(lab)
    def stream_call(self):
        self.a(f"s_swappc_b64 s[{sRET}:{sRET+1}], s[{sSPC}:{sSPC+1}]")
    def maybe_stream(self):
        a = self.a
        lab = a.newlabel("ns")
        a(f"s_cmp_eq_u32 s{sAct}, 0"); a(f"s_cbranch_scc1 {lab}")
        self.stream_call()
        a.label(lab)
    def read_vm(self):
        a = self.a
        a(f"s_getreg_b32 s{sVm}, hwreg(HW_REG_IB_STS)")
        a(f"s_bfe_u32 s{sVm2}, s{sVm}, 0x20016"); a(f"s_and_b32 s{sVm}, s{sVm}, 15")
        a(f"s_lshl4_add_u32 s{sVm}, s{sVm2}, s{sVm}")
    def dw_sub(self):
        a = self.a
        a.label("L_dw")
        self.read_vm()
        a(f"s_cmp_le_u32 s{sVm}, s{sYoung}"); a("s_cbranch_scc1 L_dwret")
        a(f"s_cmp_ge_u32 s{sVm}, s{sDl}"); a("s_cbranch_scc1 L_dw")
        a(f"s_cmp_eq_u32 s{sAct}, 0"); a("s_cbranch_scc1 L_dw")
        if self.cap is not None:
            a(f"s_cmp_ge_u32 s{sPos}, s{sCap}"); a("s_cbranch_scc1 L_dw")
        if self.bud is not None:
            a(f"s_cmp_le_i32 s{sBud}, 0"); a("s_cbranch_scc1 L_dw")
            a(f"s_sub_u32 s{sBud}, s{sBud}, {self.kblk}")
        self.stream_call()
        a(f"s_add_u32 s{sYoung}, s{sYoung}, {self.kblk}")
        a("s_branch L_dw")
        a.label("L_dwret")
        a(f"s_setpc_b64 s[{sRET2}:{sRET2+1}]")
    def dwait(self, young, n=0, site=None):
        dl = self.dsite.get(site, self.dlim)
        a = self.a
        if self.mode != "co":
            a(f"s_waitcnt vmcnt({young})"); return
        ns = a.newlabel("dwn"); jn = a.newlabel("dwj")
        a(f"s_cmp_eq_u32 s{sAct}, 0"); a(f"s_cbranch_scc1 {ns}")
        a(f"s_mov_b32 s{sYoung}, {young}"); a(f"s_mov_b32 s{sDl}, {dl + n if dl else 0}")
        if self.cap is not None: a(f"s_mov_b32 s{sCap}, {self.cap.get(site, 999)}")
        a(f"s_swappc_b64 s[{sRET2}:{sRET2+1}], s[{sDW}:{sDW+1}]")
        a(f"s_branch {jn}")
        a.label(ns)
        a(f"s_waitcnt vmcnt({young})")
        a.label(jn)
    def burst(self, site):
        n = self.burstn.get(site, 0)
        if self.mode != "co" or not n: return
        a = self.a
        lab = a.newlabel("bu")
        for i in range(n // self.kblk):
            a(f"s_cmp_eq_u32 s{sAct}, 0"); a(f"s_cbranch_scc1 {lab}")
            self.stream_call()
        a.label(lab)
    def topup(self, depth=None, site=None):
        if self.mode != "co": return
        depth = self.dlim if depth is None else depth
        capv = self.cap.get(site) if self.cap else None
        a = self.a
        lab = a.newlabel("tu")
        a(f"s_cmp_eq_u32 s{sAct}, 0"); a(f"s_cbranch_scc1 {lab}")
        self.read_vm()
        a(f"s_cmp_ge_u32 s{sVm}, {depth}"); a(f"s_cbranch_scc1 {lab}")
        if capv: a(f"s_cmp_ge_u32 s{sPos}, {capv}"); a(f"s_cbranch_scc1 {lab}")
        self.stream_call()
        a.label(lab)
    def drain(self, keep):
        a = self.a
        l0 = a.newlabel("drain"); l1 = a.newlabel("drained")
        a.label(l0)
        a(f"s_cmp_eq_u32 s{sAct}, 0"); a(f"s_cbranch_scc1 {l1}")
        self.stream_call()
        a(f"s_waitcnt vmcnt({keep})")
        a(f"s_branch {l0}")
        a.label(l1)

    def predelay(self, site):
        a = self.a
        p0 = self.pre.get(site, 0)
        p1 = self.pre1.get(site, p0) if self.pre1 is not None else p0
        if p0 == p1:
            if p0: a(f"s_sleep {p0}")
            return
        l0 = a.newlabel("pd"); l1 = a.newlabel("pd")
        a(f"s_cmp_ge_u32 s{sL}, 2"); a(f"s_cbranch_scc1 {l0}")
        if p1: a(f"s_sleep {p1}")
        a(f"s_branch {l1}")
        a.label(l0)
        if p0: a(f"s_sleep {p0}")
        a.label(l1)

    def poll(self, issue, regs, execmask=None, stream=True, site=None):
        a = self.a
        lp = a.newlabel("poll"); ns = a.newlabel("pns"); jn = a.newlabel("pj"); dn = a.newlabel("pdone")
        if execmask: self.exec_set(*execmask)
        a(f"s_mov_b32 s{sSpin}, 0")
        if self.bud is not None: a(f"s_mov_b32 s{sBud}, {self.bud.get(site, self.bud.get('*', 8))}")
        self.predelay(site)
        a.label(lp)
        issue()
        if execmask and self.mode == "co": self.exec_all()
        self.dwait(0, len(regs) if self.addn else 0, site)
        if execmask and self.mode == "co": self.exec_set(*execmask)
        a.label(jn)
        acc, acc2 = vT0, vT0 + 1
        dw = [g + i for g in regs for i in range(4)]
        for k, r in enumerate(dw): a(f"v_xor_b32 v{r}, s{sT[k % 4]}, v{r}")
        a(f"v_or3_b32 v{acc}, v{dw[0]}, v{dw[1]}, v{dw[2]}")
        if len(dw) == 4:
            a(f"v_or_b32 v{acc}, v{acc}, v{dw[3]}")
        else:
            a(f"v_or3_b32 v{acc2}, v{dw[3]}, v{dw[4]}, v{dw[5]}")
            k = 6; tog = 0
            while k < len(dw):
                tgt = acc if tog == 0 else acc2
                a(f"v_or3_b32 v{tgt}, v{tgt}, v{dw[k]}, v{dw[k+1]}"); k += 2
                tog ^= 1
            a(f"v_or_b32 v{acc}, v{acc}, v{acc2}")
        a(f"v_and_b32 v{acc}, s{sFF}, v{acc}")
        a(f"v_cmp_ne_u32 vcc, 0, v{acc}")
        a(f"s_cbranch_vccz {dn}")
        if self.rsl.get(site): a(f"s_sleep {self.rsl[site]}")
        if self.slp:
            lz = a.newlabel("nsl")
            a(f"s_cmp_eq_u32 s{sAct}, 0"); a(f"s_cbranch_scc1 {lz}")
            a(f"s_sleep {self.slp}")
            a.label(lz)
        a(f"s_add_u32 s{sSpin}, s{sSpin}, 1")
        a(f"s_cmp_lt_u32 s{sSpin}, {SPIN_MAX}")
        a(f"s_cbranch_scc1 {lp}")
        a(f"s_mov_b32 s{sErr}, 1")
        a.label(dn)
        if execmask: self.exec_all()

    def dpp_steps(self, regs, op, steps):
        for d in steps:
            for r in regs:
                if d == "b15": self.a(f"{op}_dpp v{r}, v{r}, v{r} row_bcast:15 row_mask:0xa bank_mask:0xf")
                elif d == "b31": self.a(f"{op}_dpp v{r}, v{r}, v{r} row_bcast:31 row_mask:0xc bank_mask:0xf")
                else: self.a(f"{op}_dpp v{r}, v{r}, v{r} {d} {DPPALL}")
    X1, X2, HM, RM = "quad_perm:[1,0,3,2]", "quad_perm:[2,3,0,1]", "row_half_mirror", "row_mirror"
    def reduce63(self, regs, op):
        self.dpp_steps(regs, op, [self.X1, self.X2, self.HM, self.RM, "b15", "b31"])

    def treduce(self, r):
        a = self.a
        a(f"v_permlane32_swap_b32 v{r[0]}, v{r[2]}")
        a(f"v_permlane32_swap_b32 v{r[1]}, v{r[3]}")
        a(f"v_add_f32 v{r[0]}, v{r[0]}, v{r[2]}")
        a(f"v_add_f32 v{r[1]}, v{r[1]}, v{r[3]}")
        a(f"v_permlane16_swap_b32 v{r[0]}, v{r[1]}")
        a(f"v_add_f32 v{r[0]}, v{r[0]}, v{r[1]}")

    def pv_gemv(self, Xp, nload, bop, D, Abuf):
        a = self.a
        def build(i):
            A = Abuf + 4 * (i % 2)
            for r in range(4):
                a(f"v_and_b32_dpp v{A+r}, v{Xp}, v{vM[r]} row_newbcast:{i} {DPPALL}")
        build(0)
        if nload > 1: build(1)
        for i in range(nload):
            A = Abuf + 4 * (i % 2)
            c = "0" if i == 0 else vr(D, 4)
            a(f"v_mfma_f32_16x16x32_bf16 {vr(D,4)}, {vr(A,4)}, {bop(i)}, {c}")
            if i + 2 < nload: build(i + 2)

    def smf_consts(self, N0, N1, IDX, t):
        a = self.a
        a(f"v_bfe_u32 v{t}, v{vL16}, 4, 4")
        a(f"v_and_b32 v{IDX}, 3, v{t}"); a(f"v_mul_u32_u24 v{IDX}, 0x1111, v{IDX}")
        a(f"v_lshrrev_b32 v{t}, 2, v{t}")
        a(f"v_cmp_eq_u32 vcc, 0, v{t}"); a(f"v_mov_b32 v{N1}, 0xffff"); a(f"v_cndmask_b32 v{N0}, 0, v{N1}, vcc")
        a(f"v_cmp_eq_u32 vcc, 1, v{t}"); a(f"v_cndmask_b32 v{N1}, 0, v{N1}, vcc")
    def pv_gemv_smf(self, Xp, npair, bop, D, Abuf, N0, N1, IDX):
        a = self.a
        def build(i):
            A = Abuf + 4 * (i % 2)
            a(f"v_and_b32_dpp v{A}, v{Xp}, v{N0} row_newbcast:{2*i} {DPPALL}")
            a(f"v_and_b32_dpp v{A+1}, v{Xp}, v{N1} row_newbcast:{2*i} {DPPALL}")
            a(f"v_and_b32_dpp v{A+2}, v{Xp}, v{N0} row_newbcast:{2*i+1} {DPPALL}")
            a(f"v_and_b32_dpp v{A+3}, v{Xp}, v{N1} row_newbcast:{2*i+1} {DPPALL}")
        for r in range(4): a(f"v_mov_b32 v{D+r}, 0")
        build(0)
        if npair > 1: build(1)
        for i in range(npair):
            A = Abuf + 4 * (i % 2)
            a(f"v_smfmac_f32_16x16x64_bf16 {vr(D,4)}, {vr(A,4)}, {bop(i)}, v{IDX}")
            if i + 2 < npair: build(i + 2)

    def red_write(self, D, off=0):
        a = self.a
        a("s_mov_b32 exec_hi, 1")
        a(f"ds_write_b128 v{vRedW}, {vr(D,4)} offset:{off}")
        a("s_mov_b32 exec_hi, -1")
    def red_final_read(self, G, off=0):
        a = self.a
        a(f"v_add_u32 v{vT0}, {L_RED}, v{vL16}")
        for w in range(4):
            a(f"ds_read_b128 {vr(G+4*w,4)}, v{vT0} offset:{w*RSTR+off}")
    def sum4(self, G):
        a = self.a
        for r in range(4):
            a(f"v_add_f32 v{G+r}, v{G+r}, v{G+4+r}")
            a(f"v_add_f32 v{G+8+r}, v{G+8+r}, v{G+12+r}")
        for r in range(4):
            a(f"v_add_f32 v{G+r}, v{G+r}, v{G+8+r}")

    def local_stores(self, items):
        a = self.a
        def emit(flag):
            for (data, vaddr, soff, pre) in items:
                if pre: pre()
                a(f"buffer_store_dwordx4 {vr(data,4)}, v{vaddr}, {W}, s{soff} offen {flag}")
        if self.local:
            l0 = a.newlabel("ls"); l1 = a.newlabel("ls")
            a(f"s_cmp_eq_u32 s{sLocal}, 0"); a(f"s_cbranch_scc1 {l0}")
            emit("")
            a(f"s_branch {l1}")
            a.label(l0)
            emit("sc1")
            a.label(l1)
        else:
            emit("sc1")

    def next_tag(self):
        a = self.a
        a(f"s_mul_i32 s{sTf}, s{sTf}, 0x9E3779B1"); a(f"s_add_u32 s{sTf}, s{sTf}, 0x7F4A7C15")
        a(f"v_mov_b32 v{vT}, s{sTf}")
        a(f"s_and_b32 s{sT[0]}, s{sTf}, 0xff"); a(f"s_bfe_u32 s{sT[1]}, s{sTf}, 0x80008")
        a(f"s_bfe_u32 s{sT[2]}, s{sTf}, 0x80010"); a(f"s_lshr_b32 s{sT[3]}, s{sTf}, 24")

    def pf_guard(self, fn, lmin=2):
        if not self.nopf: return fn()
        a = self.a; l = a.newlabel("npf")
        a(f"s_cmp_ge_u32 s{sL}, {lmin}"); a(f"s_cbranch_scc1 {l}")
        fn()
        a.label(l)
    def load_wq(self):
        self.pf_guard(self.load_wq_)
    def load_wq_(self):
        a = self.a
        l0 = a.newlabel("wq"); l1 = a.newlabel("wq")
        a(f"s_bitcmp1_b32 s{sL}, 0"); a(f"s_cbranch_scc1 {l0}")
        a(f"s_mov_b32 s{SRD_A}, s{pWqA}"); a(f"s_mov_b32 s{SRD_A+1}, s{pWqA+1}"); a(f"s_branch {l1}")
        a.label(l0)
        a(f"s_mov_b32 s{SRD_A}, s{pWqB}"); a(f"s_mov_b32 s{SRD_A+1}, s{pWqB+1}")
        a.label(l1)
        a(f"s_mov_b32 s{SRD_A+2}, {19*8192+256}"); a(f"s_mov_b32 s{SRD_A+3}, 0x20000")
        for i in range(5):
            a(f"s_mov_b32 s{sTmp[0]}, {i*32768}")
            a(f"buffer_load_dwordx4 {vr(WQ+4*i,4)}, v{vWoff}, s[{SRD_A}:{SRD_A+3}], s{sTmp[0]} offen {self.wpol}")
    def load_wuk(self):
        self.pf_guard(self.load_wuk_)
    def load_wuk_(self):
        a = self.a
        self.srd(SRD_A, pWuk, 15*8192+256)
        t = vT0
        a(f"v_lshrrev_b32 v{t}, 8, v{vKoff}"); a(f"v_lshlrev_b32 v{t}, 13, v{t}")
        a(f"v_and_b32 v{t+1}, s{sFF}, v{vKoff}"); a(f"v_or_b32 v{t}, v{t}, v{t+1}")
        for i in range(4):
            a(f"s_mov_b32 s{sTmp[0]}, {i*32768}")
            a(f"buffer_load_dwordx4 {vr(WUK+4*i,4)}, v{t}, s[{SRD_A}:{SRD_A+3}], s{sTmp[0]} offen {self.wpol}")
    def load_wuv(self):
        self.pf_guard(self.load_wuv_)
    def load_wuv_(self):
        a = self.a
        self.srd(SRD_A, pWuv, 15*8192+256)
        for i in range(4):
            a(f"s_mov_b32 s{sTmp[0]}, {i*32768}")
            a(f"buffer_load_dwordx4 {vr(WUV+4*i,4)}, v{vWoff}, s[{SRD_A}:{SRD_A+3}], s{sTmp[0]} offen {self.wpol}")
    def wo_setup(self, p):
        a = self.a
        self.srd(SRD_A, p, 31*1280+160)
        a(f"s_mul_i32 s{sTmp[1]}, s{sW}, {WOSTR}"); a(f"s_add_u32 s{sTmp[1]}, s{sTmp[1]}, {L_R0}")
    def wo_one(self, i):
        a = self.a
        r0 = 6 * i if i < 5 else 26
        a(f"s_add_u32 m0, s{sTmp[1]}, {r0*160}")
        a(f"s_mov_b32 s{sTmp[0]}, {r0*1280}")
        a(f"buffer_load_dwordx4 v{vWo}, s[{SRD_A}:{SRD_A+3}], s{sTmp[0]} offen {self.wpol} lds")
    def load_wo(self, p):
        def f():
            self.wo_setup(p)
            for i in range(6): self.wo_one(i)
        self.pf_guard(f)
    def ckv_one(self, kk):
        a = self.a
        f = (kk & 8) | ((kk & 3) << 1) | ((kk >> 2) & 1)
        a(f"v_xor_b32 v{vCk}, {f*16}, v{vL16}")
        a(f"s_lshl_b32 s{sSO}, s{sW}, 14"); a(f"s_add_u32 m0, s{sSO}, {L_CKV + kk*1024}")
        a(f"s_mov_b32 s{sSO}, {kk*1024}")
        a(f"buffer_load_dwordx4 v{vCk}, s[{SRD_B}:{SRD_B+3}], s{sSO} offen {self.cpol} lds")
    def voff(self, u):
        return (u & 1) * 2048 + (u >> 1) * 512 if self.smf else u * 256
    def vtr_reg(self, b, u):
        if self.vsplit: return (60 if b == 14 else 80) + 4 * u
        return VTR + (b - 14) * 16 + 4 * u
    def vtr_one(self, k):
        a = self.a
        b, u = 14 + (k >> 2), k & 3
        if u == 0: a(f"s_mov_b32 s{sTmp[2]}, {b*4096}")
        a(f"buffer_load_dwordx4 {vr(self.vtr_reg(b, u),4)}, v{vVoff}, s[{SRD_V}:{SRD_V+3}], s{sTmp[2]} offen offset:{self.voff(u)} {self.pol}")

    def prologue(self):
        a = self.a
        a("s_cmp_ge_u32 s2, 256"); a("s_cbranch_scc1 L_end")
        a("s_load_dwordx4 s[64:67], s[0:1], 0")
        a("s_load_dwordx4 s[68:71], s[0:1], 16")
        a("s_load_dwordx4 s[72:75], s[0:1], 32")
        a("s_load_dwordx4 s[76:79], s[0:1], 56")
        a("s_load_dwordx4 s[80:83], s[0:1], 72")
        a("s_load_dwordx4 s[84:87], s[0:1], 88")
        a("s_load_dwordx2 s[8:9], s[0:1], 104")
        a(f"v_lshrrev_b32 v20, 6, v0")
        a(f"v_and_b32 v21, 63, v0")
        a(f"v_readfirstlane_b32 s{sW}, v20")
        a(f"s_and_b32 s{sH}, s2, 31"); a(f"s_lshr_b32 s{sJ}, s2, 5")
        a(f"s_and_b32 s{sXG}, s2, 7"); a(f"s_lshr_b32 s{sI}, s2, 3")
        a(f"s_and_b32 s{sGA}, s{sI}, 1")
        a(f"s_lshr_b32 s{sS}, s{sI}, 1"); a(f"s_lshl_b32 s92, s{sXG}, 4"); a(f"s_add_u32 s{sS}, s{sS}, s92")
        a(f"v_lshlrev_b32 v{vL16}, 4, v21")
        if self.codepf:
            lc = a.newlabel("cpf")
            a(f"s_cmp_lg_u32 s{sW}, 3"); a(f"s_cbranch_scc1 {lc}")
            a("s_getpc_b64 s[20:21]")
            a.label("L_pcx")
            a("s_mov_b32 s22, L_codeend-L_pcx"); a("s_mov_b32 s23, 0x20000")
            a("v_lshlrev_b32 v22, 6, v21")
            self.ncode = 7
            for i in range(self.ncode):
                a(f"s_mov_b32 s92, {i*4096}")
                a(f"buffer_load_dword v23, v22, s[20:23], s92 offen")
            a.label(lc)
        a("v_and_b32 v22, 15, v21")
        a("v_lshrrev_b32 v23, 4, v21") if not self.codepf else a("v_lshrrev_b32 v19, 4, v21")
        g = 23 if not self.codepf else 19
        a(f"v_lshlrev_b32 v24, 4, v22")
        a(f"v_lshl_add_u32 v{vWoff}, v{g}, 13, v24")
        if self.smf:
            a(f"v_lshrrev_b32 v25, 1, v{g}"); a(f"v_and_b32 v26, 1, v{g}"); a(f"v_lshl_add_u32 v25, v25, 2, v26")
            a(f"v_lshl_add_u32 v{vVoff}, v25, 8, v24")
        else:
            a(f"v_lshl_add_u32 v{vVoff}, v{g}, 10, v24")
        a(f"v_and_b32 v25, 3, v22"); a(f"v_lshl_add_u32 v25, v{g}, 2, v25"); a("v_lshlrev_b32 v25, 4, v25")
        a("v_lshrrev_b32 v26, 2, v22"); a(f"v_lshl_add_u32 v{vKoff}, v26, 8, v25")
        a("v_and_b32 v25, 1, v22"); a("v_cmp_eq_u32 vcc, 1, v25")
        a("v_mov_b32 v26, 0xffff"); a("v_mov_b32 v27, 0xffff0000"); a("v_cndmask_b32 v26, v26, v27, vcc")
        a("v_lshrrev_b32 v25, 1, v22")
        for r in range(4):
            a(f"v_cmp_eq_u32 vcc, {r}, v25"); a(f"v_cndmask_b32 v{vM[r]}, 0, v26, vcc")
        a(f"v_lshl_add_u32 v25, v22, 1, v{g}"); a("v_lshlrev_b32 v25, 4, v25")
        a("v_cmp_gt_u32 vcc, 32, v21"); a("v_mov_b32 v26, 512"); a("v_cndmask_b32 v25, v26, v25, vcc")
        a(f"s_mul_i32 s92, s{sW}, {RSTR}"); a(f"s_add_u32 s92, s92, {L_RED}"); a(f"v_add_u32 v{vRedW}, s92, v25")
        a(f"v_mul_u32_u24 v25, 6554, v21"); a(f"v_lshrrev_b32 v25, 16, v25")
        a(f"v_mul_u32_u24 v26, 10, v25"); a(f"v_sub_u32 v26, v21, v26")
        a(f"v_mul_u32_u24 v25, 1280, v25"); a(f"v_lshl_add_u32 v{vWo}, v26, 4, v25")
        a("s_waitcnt lgkmcnt(0)")
        a(f"s_mov_b32 s{SRD_WS+2}, 0x10000000"); a(f"s_mov_b32 s{SRD_WS+3}, 0x20000")
        if self.stamps:
            a(f"s_mov_b32 s{sL}, 0")
            self.stamp(12)
        self.dbgstamp("entry")
        a("v_mov_b32 v28, 0")
        a(f"buffer_load_dword v{vT}, v28, {W}, 0 offen sc1")
        a(f"s_mov_b32 s{pX}, s64"); a(f"s_mov_b32 s{pX+1}, s65")
        self.srd(SRD_B, pX, 1280)
        a(f"s_mul_i32 s92, s{sJ}, 80"); a(f"s_mul_i32 s93, s{sW}, 20"); a("s_add_u32 s92, s92, s93")
        a(f"v_lshl_add_u32 v25, v22, 2, v{g}"); a("v_add_u32 v25, s92, v25"); a("v_lshlrev_b32 v29, 1, v25")
        a(f"s_mov_b32 s94, 0x001f001f"); a(f"s_mov_b32 s95, 0x001f001f")
        a(f"v_mov_b32 v{vX}, 0")
        a("s_mov_b64 exec, s[94:95]")
        a(f"buffer_load_ushort v{vX}, v29, s[{SRD_B}:{SRD_B+3}], 0 offen")
        self.exec_all()
        def addp(dst, src, terms):
            a(f"s_mov_b32 s92, 0")
            for (sreg, c) in terms:
                a(f"s_mul_i32 s93, s{sreg}, {c}"); a("s_add_u32 s92, s92, s93")
            a(f"s_add_u32 s{dst}, s{src}, s92"); a(f"s_addc_u32 s{dst+1}, s{src+1}, 0")
        addp(pWqA, 68, [(sJ, 80*8192), (sW, 20*8192), (sH, 256)])
        a(f"s_mov_b32 s{sL}, 0")
        self.load_wq()
        addp(pWuk, 70, [(sJ, 64*8192), (sW, 16*8192), (sH, 256)])
        a(f"s_mov_b32 s{sFF}, 0xff")
        self.load_wuk()
        addp(pCkv, 66, [(sS, 65536), (sW, 16384)])
        addp(pWqB, 80, [(sJ, 80*8192), (sW, 20*8192), (sH, 256)])
        addp(pWuv, 72, [(sJ, 64*8192), (sW, 16*8192), (sH, 256)])
        addp(pWoA, 74, [(sH, 163840), (sW, 32*1280), (sJ, 160)])
        addp(pWoB, 82, [(sH, 163840), (sW, 32*1280), (sJ, 160)])
        addp(SRD_K, 76, [(sH, 2097152), (sJ, 262144), (sW, 65536)])
        addp(SRD_V, 78, [(sH, 2097152), (sJ, 262144), (sW, 65536)])
        a(f"s_mov_b32 s{SRD_K+2}, 65536"); a(f"s_mov_b32 s{SRD_K+3}, 0x20000")
        a(f"s_mov_b32 s{SRD_V+2}, 65536"); a(f"s_mov_b32 s{SRD_V+3}, 0x20000")
        a(f"s_mov_b32 s{pOut}, s84"); a(f"s_mov_b32 s{pOut+1}, s85")
        self.srd(SRD_B, pCkv, 16384)
        if self.pretouch:
            a(f"s_lshl_b32 s92, s2, 13"); a(f"s_lshl_b32 s93, s{sW}, 11"); a("s_add_u32 s92, s92, s93"); a(f"s_add_u32 s92, s92, {O_QP}")
            a(f"buffer_load_dwordx4 v[48:51], v{vL16}, {W}, s92 offen")
            a(f"buffer_load_dwordx4 v[48:51], v{vL16}, {W}, s92 offen offset:1024")
        a(f"s_mov_b32 s{sErr}, 0"); a(f"s_mov_b32 s{sLocal}, 0")
        a(f"s_mov_b32 s{sM5}, 0x001f001f"); a(f"s_mov_b32 s{sM5+1}, 0x001f001f")
        for i in range(4): a(f"s_mov_b32 s{sSel[i]}, {0x07060500+i:#x}")
        for t in range(4):
            a(f"s_mov_b32 s{sMask[t]}, {(0x000f000f << (4*t)):#x}"); a(f"s_mov_b32 s{sMask[t]+1}, {(0x000f000f << (4*t)):#x}")
        a(f"s_lshl_b32 s92, s{sXG}, 5"); a(f"s_add_u32 s92, s92, s{sI}"); a(f"s_lshl_b32 s92, s92, 2"); a(f"s_add_u32 s92, s92, s{sW}")
        a(f"s_lshl_b32 s92, s92, {12 if self.c1bf else 13}"); a(f"s_add_u32 s{sC1}, s92, {O_C1}")
        a(f"s_getpc_b64 s[{sSPC}:{sSPC+1}]")
        a.label("L_pc0")
        a(f"s_add_u32 s{sSPC}, s{sSPC}, L_stream-L_pc0"); a(f"s_addc_u32 s{sSPC+1}, s{sSPC+1}, 0")
        a(f"s_mov_b32 s{sAct}, 1"); a(f"s_mov_b32 s{sPos}, 0")
        a(f"s_mov_b32 s{sCol}, {O_COL:#x}")
        a(f"s_getreg_b32 s{sXcc}, hwreg(HW_REG_XCC_ID)"); a(f"s_and_b32 s{sXcc}, s{sXcc}, 0xf"); a(f"s_add_u32 s{sXcc}, s{sXcc}, 1"); a(f"s_lshl_b32 s{sXcc}, s{sXcc}, 8")
        a(f"s_getpc_b64 s[{sDW}:{sDW+1}]")
        a.label("L_pc1")
        a(f"s_add_u32 s{sDW}, s{sDW}, L_dw-L_pc1"); a(f"s_addc_u32 s{sDW+1}, s{sDW+1}, 0")
        if self.bud is not None: a(f"s_mov_b32 s{sBud}, {self.bud.get('pro', self.bud.get('*', 8))}")
        self.dwait(6 if self.pretouch else 4, 0, 'pro')
        a(f"v_readfirstlane_b32 s{sTf}, v{vT}")
        self.next_tag()
        a(f"v_lshlrev_b32 v{vX}, 16, v{vX}")
        if self.local:
            lx = a.newlabel("xp")
            a(f"s_cmp_lg_u32 s{sW}, 0"); a(f"s_cbranch_scc1 {lx}")
            for r in range(4): a(f"v_mov_b32 v{16+r}, s{sXcc}")
            self.tag([16, 17, 18, 19])
            a(f"s_lshl_b32 s92, s{sXG}, 9"); a(f"s_lshl_b32 s93, s{sI}, 4"); a("s_add_u32 s92, s92, s93"); a(f"s_add_u32 s92, s92, {O_XCC}")
            a("v_mov_b32 v20, 0")
            a("s_mov_b64 exec, 1")
            a(f"buffer_store_dwordx4 v[16:19], v20, {W}, s92 offen sc1")
            self.exec_all()
            a.label(lx)
        if self.opt1: self.prep_q()
        if self.mode == "first":
            self.drain(16)

    @property
    def NT(self): return 2
    @property
    def NLOADS(self): return 136 + (self.NT if self.c1touch else 0)
    @property
    def KEND(self): return 80 + (self.NT if self.c1touch else 0)
    def first_block(self):
        r = self.NLOADS % self.kblk
        return r if r else self.kblk
    def stream(self):
        a = self.a
        loads = [("C", i) for i in range(16)] + ([("T", i) for i in range(self.NT)] if self.c1touch else []) + [("K", i) for i in range(64)]
        loads += [("V", b, u) for b in range(10) for u in range(4)]
        loads += [("L", b, u) for b in range(10, 14) for u in range(4)]
        k = self.kblk
        assert len(loads) == self.NLOADS and len(loads) % k == 0, "the dynamic wait counts kblk loads per block"
        a.label("L_stream")
        starts = [0] + list(range(self.first_block(), len(loads), k))
        for bn, bi in enumerate(starts):
            be = starts[bn+1] if bn + 1 < len(starts) else len(loads)
            last_so = None
            for ld in loads[bi:be]:
                if ld[0] == "C":
                    self.ckv_one(ld[1]); last_so = None
                elif ld[0] == "T":
                    i = ld[1]; last_so = None
                    a(f"v_lshlrev_b32 v{vCk}, 2, v{vL16}")
                    if self.c1bf:
                        a(f"s_add_u32 s{sSO}, s{sC1}, {i * 32}")
                    else:
                        a(f"s_add_u32 s{sSO}, s{sC1}, {i * 4096}")
                    a(f"buffer_load_dword v255, v{vCk}, {W}, s{sSO} offen")
                elif ld[0] == "K":
                    i = ld[1]; so = (i >> 2) * 4096
                    if so != last_so: a(f"s_mov_b32 s{sSO}, {so}"); last_so = so
                    a(f"buffer_load_dwordx4 {ar(4*i,4)}, v{vKoff}, s[{SRD_K}:{SRD_K+3}], s{sSO} offen offset:{(i&3)*1024} {self.pol}")
                elif ld[0] == "V":
                    _, b, u = ld; so = b * 4096
                    if so != last_so: a(f"s_mov_b32 s{sSO}, {so}"); last_so = so
                    a(f"buffer_load_dwordx4 {vr(VRES+16*b+4*u,4)}, v{vVoff}, s[{SRD_V}:{SRD_V+3}], s{sSO} offen offset:{self.voff(u)} {self.pol}")
                else:
                    _, b, u = ld
                    a(f"s_lshl_b32 s{sSO}, s{sW}, 14"); a(f"s_add_u32 m0, s{sSO}, {L_VL + ((b-10)*4+u)*1024}")
                    a(f"s_mov_b32 s{sSO}, {b*4096+self.voff(u)}"); last_so = None
                    a(f"buffer_load_dwordx4 v{vVoff}, s[{SRD_V}:{SRD_V+3}], s{sSO} offen {self.pol} lds")
            a(f"s_add_u32 s{sPos}, s{sPos}, {be-bi}")
            if be >= len(loads): a(f"s_mov_b32 s{sAct}, 0")
            a(f"s_swappc_b64 s[{sSPC}:{sSPC+1}], s[{sRET}:{sRET+1}]")
        a("s_endpgm")

    def prep_q(self):
        a = self.a
        t = 37
        a(f"v_lshrrev_b32 v{t}, 4, v{vL16}")
        a(f"v_and_b32 v38, 1, v{t}"); a(f"v_lshlrev_b32 v38, 4, v38")
        a(f"v_lshrrev_b32 v39, 1, v{t}"); a(f"v_add_u32 v38, v38, v39"); a(f"v_lshlrev_b32 v38, 4, v38")
        a(f"v_cmp_gt_u32 vcc, 32, v{t}"); a(f"v_mov_b32 v39, 512"); a(f"v_cndmask_b32 v{t}, v39, v38, vcc")
        a(f"s_lshl_b32 s{sTmp[4]}, s{sH}, 3"); a(f"s_add_u32 s{sTmp[4]}, s{sTmp[4]}, s{sJ}"); a(f"s_lshl_b32 s{sTmp[4]}, s{sTmp[4]}, 11")
        a(f"s_add_u32 s{sTmp[4]}, s{sTmp[4]}, {O_QP}")

    def qpart(self):
        a = self.a
        self.stamp(0)
        def second():
            if self.split2:
                l0 = a.newlabel("q2w")
                a(f"s_cmp_eq_u32 s{sL}, 0"); a(f"s_cbranch_scc1 {l0}")
                self.second_w()
                a.label(l0)
        if not (self.opt1 and self.latepf): second()
        Xp, S1, S2 = (14, 38, 39) if self.opt1 else (14, 15, 36)
        D, Du, Ab = 16, 20, 24
        a(f"v_cvt_pk_bf16_f32 v{Xp}, v{vX}, v{vX}")
        a(f"v_and_b32 v{S1}, 0xffff0000, v{Xp}")
        a(f"v_mul_f32 v{S2}, v{S1}, v{S1}")
        self.pv_gemv(Xp, 5, lambda i: vr(WQ+4*i, 4), D, Ab)
        self.reduce63([S1, S2], "v_add_f32")
        lu = a.newlabel("nou")
        if self.opt1:
            a("s_mov_b32 exec_hi, 0")
            a(f"ds_write_b128 v{vRedW}, {vr(D,4)}")
            a("s_mov_b32 exec_lo, 0"); a("s_mov_b32 exec_hi, 0x80000000")
            a(f"ds_write_b64 v{vRedW}, {vr(S1,2)}")
            self.exec_all()
        a(f"s_cmp_ge_u32 s{sL}, 2"); a(f"s_cbranch_scc1 {lu}")
        for r in range(4): a(f"v_and_b32 v{32+r}, 0x3f803f80, v{vM[r]}")
        for i in range(5):
            c = "0" if i == 0 else vr(Du, 4)
            a(f"v_mfma_f32_16x16x32_bf16 {vr(Du,4)}, {vr(32,4)}, {vr(WQ+4*i,4)}, {c}")
        self.red_write(Du, 528)
        a.label(lu)
        if self.opt1:
            t = 37
            if self.latepf: second()
        else:
            a(f"v_readlane_b32 s{sA}, v{S1}, 63"); a(f"v_readlane_b32 s{sB_}, v{S2}, 63")
            a(f"v_writelane_b32 v{D}, s{sA}, 32"); a(f"v_writelane_b32 v{D+1}, s{sB_}, 32")
            self.red_write(D)
            t = 14
            a(f"v_lshrrev_b32 v{t}, 4, v{vL16}")
            a(f"v_and_b32 v15, 1, v{t}"); a(f"v_lshlrev_b32 v15, 4, v15")
            a(f"v_lshrrev_b32 v36, 1, v{t}"); a(f"v_add_u32 v15, v15, v36"); a(f"v_lshlrev_b32 v15, 4, v15")
            a(f"v_cmp_gt_u32 vcc, 32, v{t}"); a(f"v_mov_b32 v36, 512"); a(f"v_cndmask_b32 v{t}, v36, v15, vcc")
            a(f"s_lshl_b32 s{sTmp[4]}, s{sH}, 3"); a(f"s_add_u32 s{sTmp[4]}, s{sTmp[4]}, s{sJ}"); a(f"s_lshl_b32 s{sTmp[4]}, s{sTmp[4]}, 11")
            a(f"s_add_u32 s{sTmp[4]}, s{sTmp[4]}, {O_QP}")
        a("s_waitcnt lgkmcnt(0)"); a("s_barrier")
        lf = a.newlabel("qfin")
        a(f"s_cmp_lg_u32 s{sW}, 0"); a(f"s_cbranch_scc1 {lf}")
        G = 16
        self.red_final_read(G)
        a("s_waitcnt lgkmcnt(0)")
        self.sum4(G); self.tag([G, G+1, G+2, G+3])
        a("s_mov_b32 exec_hi, 1")
        self.local_stores([(G, t, sTmp[4], None)])
        a("s_mov_b32 exec_hi, -1")
        a(f"s_cmp_ge_u32 s{sL}, 2"); a(f"s_cbranch_scc1 {lf}")
        G2 = 40
        self.red_final_read(G2, 528)
        a(f"s_add_u32 s{sTmp[4]}, s{sTmp[4]}, 1024")
        a("s_waitcnt lgkmcnt(0)")
        self.sum4(G2); self.tag([G2, G2+1, G2+2, G2+3])
        a("s_mov_b32 exec_hi, 0")
        self.local_stores([(G2, t, sTmp[4], None)])
        a("s_mov_b32 exec_hi, -1")
        a.label(lf)
        self.stamp(1)
        ad, ad2, adu, adx = 14, 15, 56, 57
        Gq, Gs, Gu, Gx = 16, 32, 36, 52
        a(f"v_lshrrev_b32 v{ad}, 8, v{vKoff}"); a(f"v_lshlrev_b32 v{ad}, 11, v{ad}")
        a(f"v_and_b32 v{ad2}, s{sFF}, v{vKoff}"); a(f"v_or_b32 v{ad}, v{ad}, v{ad2}")
        a(f"v_lshlrev_b32 v{adu}, 1, v{ad2}")
        a(f"v_lshrrev_b32 v{ad2}, 4, v{vL16}"); a(f"v_and_b32 v{ad2}, 7, v{ad2}"); a(f"v_lshlrev_b32 v{ad2}, 11, v{ad2}")
        a(f"s_lshl_b32 s{sTmp[0]}, s{sH}, 14"); a(f"s_add_u32 s{sTmp[0]}, s{sTmp[0]}, {O_QP}")
        a(f"s_add_u32 s{sTmp[1]}, s{sTmp[0]}, 8192")
        def iss_q():
            for i in range(2):
                for hf in range(2):
                    a(f"buffer_load_dwordx4 {vr(Gq+8*i+4*hf,4)}, v{ad}, {W}, s{sTmp[i]} offen offset:{hf*256} sc1")
            a(f"buffer_load_dwordx4 {vr(Gs,4)}, v{ad2}, {W}, s{sTmp[0]} offen offset:512 sc1")
        def iss_u():
            for i in range(2):
                for hf in range(2):
                    a(f"buffer_load_dwordx4 {vr(Gu+8*i+4*hf,4)}, v{ad}, {W}, s{sTmp[i]} offen offset:{1024+hf*256} sc1")
        def iss_x():
            a(f"buffer_load_dwordx4 {vr(Gx,4)}, v{adx}, {W}, s{sTmp[3]} offen sc1")
        U = 36
        l_late = a.newlabel("qlate"); l_j = a.newlabel("qj")
        a(f"s_and_b32 s{sTmp[2]}, s{sL}, 1"); a(f"s_lshl_b32 s{sTmp[2]}, s{sTmp[2]}, 9"); a(f"s_add_u32 s{sTmp[2]}, s{sTmp[2]}, {L_U}")
        a(f"v_add_u32 v{adu}, s{sTmp[2]}, v{adu}")
        a(f"s_cmp_ge_u32 s{sL}, 2"); a(f"s_cbranch_scc1 {l_late}")
        base_regs = [Gq, Gq+4, Gq+8, Gq+12, Gs, Gu, Gu+4, Gu+8, Gu+12]
        if self.local:
            l_one = a.newlabel("qone"); l_u = a.newlabel("qu")
            a(f"s_cmp_eq_u32 s{sL}, 1"); a(f"s_cbranch_scc1 {l_one}")
            a(f"v_and_b32 v{adx}, 0x1f0, v{vL16}")
            a(f"s_lshl_b32 s{sTmp[3]}, s{sXG}, 9"); a(f"s_add_u32 s{sTmp[3]}, s{sTmp[3]}, {O_XCC}")
            self.poll(lambda: (iss_q(), iss_u(), iss_x()), base_regs + [Gx], site='q0')
            a(f"v_cmp_ne_u32 vcc, s{sXcc}, v{Gx}")
            a(f"s_cmp_eq_u64 vcc, 0"); a(f"s_cselect_b32 s{sLocal}, 1, 0")
            a(f"s_branch {l_u}")
            a.label(l_one)
            self.poll(lambda: (iss_q(), iss_u()), base_regs, site='q1')
            a.label(l_u)
        else:
            self.poll(lambda: (iss_q(), iss_u()), base_regs)
        for r in range(8): a(f"v_add_f32 v{Gu+r}, v{Gu+r}, v{Gu+8+r}")
        self.dpp_steps([Gu+r for r in range(8)], "v_add_f32", ["row_ror:4", "row_ror:8"])
        lw = a.newlabel("uw")
        a(f"s_cmp_lg_u32 s{sW}, 0"); a(f"s_cbranch_scc1 {lw}")
        self.exec_set(0x000f000f, 0x000f000f)
        a(f"ds_write_b128 v{adu}, {vr(U,4)}"); a(f"ds_write_b128 v{adu}, {vr(U+4,4)} offset:16")
        self.exec_all()
        a.label(lw)
        a(f"s_branch {l_j}")
        a.label(l_late)
        a(f"ds_read_b128 {vr(U,4)}, v{adu}"); a(f"ds_read_b128 {vr(U+4,4)}, v{adu} offset:16")
        self.poll(iss_q, [Gq, Gq+4, Gq+8, Gq+12, Gs], site='q2')
        a("s_waitcnt lgkmcnt(0)")
        a.label(l_j)
        self.stamp(2)
        self.burst('Q1')
        st = [Gs, Gs+1]
        adds = [f"v_add_f32 v{Gq+r}, v{Gq+r}, v{Gq+8+r}" for r in range(8)]
        seq = []
        for k, d in enumerate((self.X1, self.X2, self.HM)):
            seq += [f"v_add_f32_dpp v{r}, v{r}, v{r} {d} {DPPALL}" for r in st]
            seq += adds[3*k:3*k+3] if k < 2 else adds[6:]
        for s_ in seq: a(s_)
        a(f"v_mul_f32 v{Gs}, {f32hex(1/640)}, v{Gs}")
        ror4 = [f"v_add_f32_dpp v{Gq+r}, v{Gq+r}, v{Gq+r} row_ror:4 {DPPALL}" for r in range(8)]
        ror8 = [f"v_add_f32_dpp v{Gq+r}, v{Gq+r}, v{Gq+r} row_ror:8 {DPPALL}" for r in range(8)]
        a(f"v_mul_f32 v{Gs+1}, {f32hex(1/640)}, v{Gs+1}")
        for s_ in ror4[:4]: a(s_)
        a(f"v_fma_f32 v{Gs+1}, -v{Gs}, v{Gs}, v{Gs+1}")
        for s_ in ror4[4:]: a(s_)
        a(f"v_add_f32 v{Gs+1}, {f32hex(1e-5)}, v{Gs+1}")
        for s_ in ror8[:4]: a(s_)
        a(f"v_rsq_f32 v{Gs+1}, v{Gs+1}")
        for s_ in ror8[4:]: a(s_)
        a(f"v_mul_f32 v{Gs+1}, {f32hex(SC)}, v{Gs+1}")
        for r in range(8): a(f"v_fma_f32 v{Gq+r}, -v{Gs}, v{U+r}, v{Gq+r}")
        a(f"v_readfirstlane_b32 s{sSc}, v{Gs+1}")
        Qp = 24
        for r in range(4): a(f"v_cvt_pk_bf16_f32 v{Qp+r}, v{Gq+2*r}, v{Gq+2*r+1}")
        for t in range(4):
            for r in range(4):
                a(f"v_cndmask_b32 v{AT+4*t+r}, 0, v{Qp+r}, s[{sMask[t]}:{sMask[t]+1}]")

    def combine8(self, G, ML, tmp):
        a = self.a
        M, f, Ls = tmp, tmp+1, tmp+2
        a(f"v_max_f32_dpp v{M}, v{ML}, v{ML} row_ror:8 {DPPALL}")
        self.dpp_steps([M], "v_max_f32", ["b15", "b31"])
        a(f"v_readlane_b32 s{sA}, v{M}, 63")
        a(f"v_subrev_f32 v{f}, s{sA}, v{ML}"); a(f"v_exp_f32 v{f}, v{f}")
        a(f"v_mul_f32 v{Ls}, v{f}, v{ML+1}")
        for r in range(4): a(f"v_mul_f32 v{G+r}, v{f}, v{G+r}")
        a(f"v_add_f32_dpp v{Ls}, v{Ls}, v{Ls} row_ror:8 {DPPALL}")
        for r in range(4): a(f"v_add_f32_dpp v{G+r}, v{G+r}, v{G+r} row_ror:8 {DPPALL}")
        a(f"v_add_f32_dpp v{Ls}, v{Ls}, v{Ls} row_bcast:15 row_mask:0xa bank_mask:0xf")
        a(f"v_permlane32_swap_b32 v{G}, v{G+2}")
        a(f"v_permlane32_swap_b32 v{G+1}, v{G+3}")
        a(f"v_add_f32_dpp v{Ls}, v{Ls}, v{Ls} row_bcast:31 row_mask:0xc bank_mask:0xf")
        a(f"v_add_f32 v{G}, v{G}, v{G+2}")
        a(f"v_add_f32 v{G+1}, v{G+1}, v{G+3}")
        a(f"v_readlane_b32 s{sA}, v{Ls}, 63")
        a(f"v_permlane16_swap_b32 v{G}, v{G+1}")
        a(f"v_rcp_f32 v{Ls}, s{sA}")
        a(f"v_add_f32 v{G}, v{G}, v{G+1}")
        a(f"v_mul_f32 v{G}, v{G}, v{Ls}")

    def amiddle(self):
        a = self.a
        D = 16
        for t in range(4):
            c = "0" if t == 0 else vr(D, 4)
            a(f"v_mfma_f32_16x16x32_bf16 {vr(D,4)}, {vr(AT+4*t,4)}, {vr(WUK+4*t,4)}, {c}")
        a(f"v_lshrrev_b32 v14, 8, v{vL16}"); a("v_lshlrev_b32 v14, 4, v14")
        a(f"s_lshl_b32 s{sTmp[0]}, s{sH}, 11"); a(f"s_lshl_b32 s{sTmp[1]}, s{sJ}, 8"); a(f"s_add_u32 s{sTmp[0]}, s{sTmp[0]}, s{sTmp[1]}")
        a(f"s_lshl_b32 s{sTmp[1]}, s{sW}, 6"); a(f"s_add_u32 s{sTmp[0]}, s{sTmp[0]}, s{sTmp[1]}")
        a(f"s_add_u32 s{sTmp[0]}, s{sTmp[0]}, {O_QABS}")
        S, S2 = 20, 21
        a(f"v_mov_b32_dpp v{S}, v{D} quad_perm:[0,0,0,0] {DPPALL}")
        a(f"v_mov_b32_dpp v{S2}, v{D+2} quad_perm:[2,2,2,2] {DPPALL}")
        a(f"s_nop 0")
        a(f"v_add_f32_dpp v{S}, v{D+1}, v{S} quad_perm:[1,1,1,1] {DPPALL}")
        a(f"v_add_f32_dpp v{S2}, v{D+3}, v{S2} quad_perm:[3,3,3,3] {DPPALL}")
        a(f"v_add_f32 v{S}, v{S}, v{S2}")
        a(f"v_mul_f32 v{S}, s{sSc}, v{S}")
        G = 24
        for q in range(4): a(f"v_mov_b32_dpp v{G+q}, v{S} row_newbcast:{4*q} {DPPALL}")
        self.tag([G, G+1, G+2, G+3])
        self.exec_set(0x00010001, 0x00010001)
        a(f"buffer_store_dwordx4 {vr(G,4)}, v14, {W}, s{sTmp[0]} offen sc1")
        self.exec_all()
        self.stamp(3)
        if not self.pfnew: self.load_wuv()
        Gq = 16
        a(f"s_lshl_b32 s{sTmp[0]}, s{sGA}, 15"); a(f"s_lshl_b32 s{sTmp[1]}, s{sW}, 9"); a(f"s_add_u32 s{sTmp[0]}, s{sTmp[0]}, s{sTmp[1]}")
        a(f"s_add_u32 s{sTmp[0]}, s{sTmp[0]}, {O_QABS}")
        for i in range(1, 4): a(f"s_add_u32 s{sTmp[i]}, s{sTmp[0]}, {i*8192}")
        vA0, vB0, vAx = 52, 53, 54
        n, g = 48, 49
        a(f"v_lshrrev_b32 v{n}, 4, v{vL16}"); a(f"v_lshrrev_b32 v{g}, 4, v{n}"); a(f"v_and_b32 v{n}, 15, v{n}")
        a(f"v_and_b32 v50, 8, v{n}"); a(f"v_and_b32 v51, 3, v{n}"); a(f"v_lshl_or_b32 v50, v51, 1, v50")
        a(f"v_bfe_u32 v51, v{n}, 2, 1"); a(f"v_or_b32 v50, v50, v51")
        a(f"s_lshl_b32 s{sTmp[4]}, s{sW}, 14"); a(f"s_add_u32 s{sTmp[4]}, s{sTmp[4]}, {L_CKV}")
        a(f"v_lshlrev_b32 v51, 10, v{n}"); a(f"v_lshl_add_u32 v51, v{g}, 8, v51"); a(f"v_lshl_add_u32 v51, v50, 4, v51")
        a(f"v_add_u32 v{vA0}, s{sTmp[4]}, v51")
        a(f"v_mul_u32_u24 v{vB0}, 1040, v{n}"); a(f"v_lshl_add_u32 v{vB0}, v{g}, 8, v{vB0}"); a(f"v_add_u32 v{vB0}, {L_R0}, v{vB0}")
        a(f"v_mul_u32_u24 v51, 272, v{n}"); a(f"v_lshl_add_u32 v50, v{g}, 4, v51")
        a(f"s_lshl_b32 s{sTmp[4]}, s{sW}, 6"); a(f"s_add_u32 s{sTmp[4]}, s{sTmp[4]}, {L_ST}"); a(f"v_add_u32 v50, s{sTmp[4]}, v50")
        a(f"v_lshl_add_u32 v51, v{g}, 5, v51"); a(f"v_add_u32 v51, {L_ST}, v51")
        vC0, vC1, vX0, vX1 = 76, 77, 78, 79
        a(f"v_and_b32 v14, 3, v{n}"); a(f"v_lshrrev_b32 v15, 2, v{n}")
        a(f"v_and_b32 v55, 1, v{g}"); a(f"v_lshlrev_b32 v55, 3, v55"); a(f"v_lshl_add_u32 v55, v15, 1, v55")
        a(f"v_lshrrev_b32 v56, 1, v14"); a(f"v_xor_b32 v55, v55, v56")
        a(f"v_lshl_add_u32 v56, v{g}, 3, v15"); a(f"v_lshlrev_b32 v56, 10, v56")
        a(f"v_lshl_add_u32 v56, v55, 4, v56"); a(f"v_and_b32 v14, 1, v14"); a(f"v_lshl_add_u32 v56, v14, 3, v56")
        a(f"s_lshl_b32 s{sTmp[4]}, s{sW}, 8"); a(f"s_add_u32 s{sTmp[4]}, s{sTmp[4]}, {L_CKV}")
        a(f"v_add_u32 v{vC0}, s{sTmp[4]}, v56")
        a(f"v_add_u32 v{vC1}, 4096, v{vC0}"); a(f"v_xor_b32 v{vC1}, 16, v{vC1}")
        a(f"s_lshl_b32 s{sTmp[4]}, s{sW}, 8"); a(f"s_add_u32 s{sTmp[4]}, s{sTmp[4]}, {L_R0}")
        a(f"v_lshrrev_b32 v14, 9, v{vL16}"); a(f"v_and_b32 v57, 0x1f0, v{vL16}")
        a(f"v_lshrrev_b32 v15, 1, v57"); a(f"v_mul_u32_u24 v58, 1040, v14"); a(f"v_add_u32 v15, v15, v58"); a(f"v_add_u32 v15, s{sTmp[4]}, v15")
        a(f"v_lshl_add_u32 v57, v14, 11, v57")
        lg0 = a.newlabel("cg"); lg1 = a.newlabel("cg")
        a.label(lg0)
        a(f"s_cmp_ge_u32 s{sPos}, 16"); a(f"s_cbranch_scc1 {lg1}")
        self.stream_call()
        a(f"s_branch {lg0}")
        a.label(lg1)
        if self.sent:
            lsk = a.newlabel("nosent")
            if not self.sent1:
                a(f"s_cmp_lg_u32 s{sAct}, 0"); a(f"s_cbranch_scc1 {lsk}")
            a(f"v_lshrrev_b32 v14, 7, v{vL16}"); a(f"v_lshlrev_b32 v14, 11, v14"); a(f"v_and_b32 v58, 0x70, v{vL16}"); a(f"v_lshl_add_u32 v14, v58, 2, v14")
            def iss0():
                a(f"buffer_load_dwordx4 {vr(Gq,4)}, v14, {W}, s{sTmp[0]} offen sc1")
                a(f"buffer_load_dwordx4 {vr(Gq+4,4)}, v14, {W}, s{sTmp[2]} offen sc1")
            self.poll(iss0, [Gq, Gq+4], site='sent')
            a.label(lsk)
            self.stamp(15)
        def iss():
            for i in range(8):
                so = sTmp[i >> 1]
                if i & 1:
                    a(f"s_add_u32 s{sTmp[5-1]}, s{so}, 4096"); so = sTmp[4]
                a(f"buffer_load_dwordx4 {vr(Gq+4*i,4)}, v57, {W}, s{so} offen sc1")
        self.poll(iss, [Gq+4*i for i in range(8)], site='h4')
        self.stampval(30, sSpin); self.stampval(31, sPos)
        self.stamp(4)
        if self.pfnew: self.load_wuv()
        self.burst('A0')
        if self.c1touch2 == "h4":
            lt = a.newlabel("t2")
            a(f"s_cmp_eq_u32 s{sL}, 0"); a(f"s_cbranch_scc1 {lt}")
            a(f"v_lshlrev_b32 v11, 2, v{vL16}")
            for i in range(1 if self.c1bf else 2):
                a(f"s_add_u32 s{sTmp[0]}, s{sC1}, {i * 4096}")
                a(f"buffer_load_dword v12, v11, {W}, s{sTmp[0]} offen")
            a.label(lt)
        for i in range(8):
            b = Gq + 4*i
            a(f"v_cvt_pk_bf16_f32 v{b}, v{b}, v{b+1}"); a(f"v_cvt_pk_bf16_f32 v{b+1}, v{b+2}, v{b+3}")
            a(f"ds_write_b64 v15, {vr(b,2)} offset:{i*2*1040}")
        a("s_waitcnt lgkmcnt(0)"); a("s_barrier")
        self.stamp(16)
        if "S" in self.xcalls: self.topup(site='S')
        self.burst('S')
        AB = 16
        Ds = 56
        def rd(st):
            b = AB + 8 * (st % 4)
            if st == 0: a(f"ds_read_b128 {vr(b,4)}, v{vA0}")
            else:
                a(f"v_xor_b32 v{vAx}, {st<<4}, v{vA0}"); a(f"ds_read_b128 {vr(b,4)}, v{vAx}")
            a(f"ds_read_b128 {vr(b+4,4)}, v{vB0} offset:{st*16}")
        for st in range(4): rd(st)
        for st in range(16):
            rem = min(3, 15 - st)
            a(f"s_waitcnt lgkmcnt({2*rem})")
            b = AB + 8 * (st % 4)
            c = "0" if st == 0 else vr(Ds, 4)
            a(f"v_mfma_f32_16x16x32_bf16 {vr(Ds,4)}, {vr(b,4)}, {vr(b+4,4)}, {c}")
            if st + 4 < 16: rd(st + 4)
        a(f"ds_write_b128 v50, {vr(Ds,4)}")
        a("s_waitcnt lgkmcnt(0)"); a("s_barrier")
        self.stamp(17)
        SS = 16
        for u in range(2):
            for hf in range(2):
                a(f"ds_read_b128 {vr(SS+8*u+4*hf,4)}, v51 offset:{u*128+hf*16}")
        if self.pfnew: self.load_wo(pWoA)
        DT = 44; AF = 56
        m, l, t1, t2 = 32, 33, 34, 35
        a("s_waitcnt lgkmcnt(0)")
        a(f"v_max3_f32 v{m}, v{SS}, v{SS+1}, v{SS+2}"); a(f"v_max3_f32 v{t1}, v{SS+3}, v{SS+4}, v{SS+5}")
        a(f"v_max3_f32 v{m}, v{m}, v{SS+6}, v{SS+7}"); a(f"v_max3_f32 v{t1}, v{t1}, v{SS+8}, v{SS+9}")
        a(f"v_max3_f32 v{m}, v{m}, v{SS+10}, v{SS+11}"); a(f"v_max3_f32 v{t1}, v{t1}, v{SS+12}, v{SS+13}")
        a(f"v_max3_f32 v{m}, v{m}, v{SS+14}, v{SS+15}"); a(f"v_max_f32 v{m}, v{m}, v{t1}")
        for sw in ("v_permlane16_swap_b32", "v_permlane32_swap_b32"):
            a(f"v_mov_b32 v{t1}, v{m}"); a(f"{sw} v{m}, v{t1}"); a(f"v_max_f32 v{m}, v{m}, v{t1}")
        for k in range(16): a(f"v_sub_f32 v{SS+k}, v{SS+k}, v{m}")
        for k in range(16): a(f"v_exp_f32 v{SS+k}, v{SS+k}")
        P = 36
        for k in range(8): a(f"v_cvt_pk_bf16_f32 v{P+k}, v{SS+2*k}, v{SS+2*k+1}")
        for k in range(8): a(f"v_add_f32 v{SS+k}, v{SS+k}, v{SS+8+k}")
        for k in range(4): a(f"v_add_f32 v{SS+k}, v{SS+k}, v{SS+4+k}")
        a(f"v_add_f32 v{SS}, v{SS}, v{SS+1}"); a(f"v_add_f32 v{SS+2}, v{SS+2}, v{SS+3}"); a(f"v_add_f32 v{l}, v{SS}, v{SS+2}")
        self.stamp(18)
        if "smax" in self.xcalls: self.topup(site='S')
        self.burst('smax')
        AF = 16
        steps = [(t, u) for t in range(8) for u in range(2)]
        def rdA(k):
            t, u = steps[k]; b = AF + 4 * (k % 4)
            if u == 0:
                if t == 0:
                    a(f"v_mov_b32 v{vX0}, v{vC0}"); a(f"v_mov_b32 v{vX1}, v{vC1}")
                else:
                    a(f"v_xor_b32 v{vX0}, {t<<5}, v{vC0}"); a(f"v_xor_b32 v{vX1}, {t<<5}, v{vC1}")
            a(f"ds_read_b64_tr_b16 {vr(b,2)}, v{vX0} offset:{u*32768}")
            a(f"ds_read_b64_tr_b16 {vr(b+2,2)}, v{vX1} offset:{u*32768}")
        for k in range(4): rdA(k)
        for sw in ("v_permlane16_swap_b32", "v_permlane32_swap_b32"):
            a(f"v_mov_b32 v{t1}, v{l}"); a(f"{sw} v{l}, v{t1}"); a(f"v_add_f32 v{l}, v{l}, v{t1}")
        if self.c1bf:
            self.stage1_bf(DT, P, AF, steps, rdA)
            acc = 48; t1 = 68; Mx = 56; den = 64; R4 = range(4)
        else:
            a(f"v_lshrrev_b32 v14, 8, v{vL16}"); a(f"v_lshlrev_b32 v14, 17, v14"); a(f"v_and_b32 v15, 0xf0, v{vL16}"); a(f"v_add_u32 v14, v14, v15")
            a(f"s_lshl_b32 s{sTmp[0]}, s{sXG}, 20"); a(f"s_lshl_b32 s{sTmp[1]}, s{sGA}, 19"); a(f"s_add_u32 s{sTmp[0]}, s{sTmp[0]}, s{sTmp[1]}")
            a(f"s_lshl_b32 s{sTmp[1]}, s{sW}, 15"); a(f"s_add_u32 s{sTmp[0]}, s{sTmp[0]}, s{sTmp[1]}")
            a(f"s_and_b32 s{sTmp[2]}, s{sS}, 15"); a(f"s_lshl_b32 s{sTmp[1]}, s{sTmp[2]}, 9"); a(f"s_add_u32 s{sTmp[0]}, s{sTmp[0]}, s{sTmp[1]}")
            a(f"s_add_u32 s{sTmp[0]}, s{sTmp[0]}, {O_C1}")
            a(f"s_lshl_b32 s{sTmp[3]}, s{sXG}, 14"); a(f"s_lshl_b32 s{sTmp[1]}, s{sGA}, 13"); a(f"s_add_u32 s{sTmp[3]}, s{sTmp[3]}, s{sTmp[1]}")
            a(f"s_lshl_b32 s{sTmp[1]}, s{sW}, 9"); a(f"s_add_u32 s{sTmp[3]}, s{sTmp[3]}, s{sTmp[1]}")
            a(f"s_lshl_b32 s{sTmp[1]}, s{sTmp[2]}, 5"); a(f"s_add_u32 s{sTmp[3]}, s{sTmp[3]}, s{sTmp[1]}")
            a(f"s_add_u32 s{sTmp[3]}, s{sTmp[3]}, {O_ML1}")
            a(f"v_bfe_u32 v15, v{vL16}, 6, 2"); a(f"v_lshlrev_b32 v15, 11, v15")
            a(f"v_bfe_u32 v32+2, v{vL16}, 8, 1".replace("v32+2", "v34")); a(f"v_lshl_add_u32 v15, v34, 4, v15")
            MG = 76 - 0
            a(f"s_mov_b32 vcc_lo, 0xffff0000"); a("s_mov_b32 vcc_hi, 0")
            a(f"v_cndmask_b32 v34, v32, v33, vcc")
            mlops = [f"v_mov_b32_dpp v32, v34 quad_perm:[0,0,0,0] {DPPALL}", f"v_mov_b32_dpp v33, v34 quad_perm:[1,1,1,1] {DPPALL}",
                     f"v_mov_b32_dpp v35, v34 quad_perm:[3,3,3,3] {DPPALL}", f"v_mov_b32_dpp v34, v34 quad_perm:[2,2,2,2] {DPPALL}"]
            for k in range(16):
                t, u = steps[k]; b = AF + 4 * (k % 4)
                rem = min(3, 15 - k)
                a(f"s_waitcnt lgkmcnt({2*rem})")
                c = "0" if u == 0 else vr(DT+4*t, 4)
                a(f"v_mfma_f32_16x16x32_bf16 {vr(DT+4*t,4)}, {vr(P+4*u,4)}, {vr(b,4)}, {c}")
                if k + 4 < 16: rdA(k + 4)
                if k == 0:
                    for x_ in mlops: a(x_)
                if k == 2: self.tag([32, 33, 34, 35])
                if u == 1 and t >= 2: self.tag([DT+4*(t-2)+r for r in range(4)])
            self.tag([DT+4*6+r for r in range(4)]); self.tag([DT+4*7+r for r in range(4)])
            self.stamp(19)
            items = []
            for t in range(8):
                def pre(t=t): a(f"s_add_u32 s{sTmp[1]}, s{sTmp[0]}, {(t>>1)*8192+(t&1)*256}")
                items.append((DT+4*t, 14, sTmp[1], pre))
            def pre_ml(): a("s_mov_b32 exec_lo, 0x11111111"); a("s_mov_b32 exec_hi, 0")
            items.append((32, 15, sTmp[3], pre_ml))
            if self.c1sc1:
                loc = self.local; self.local = False
                self.local_stores(items)
                self.local = loc
            else:
                self.local_stores(items)
            self.exec_all()
            self.stamp(5)
            G, MM, LL = 16, 48, 52
            a(f"v_lshrrev_b32 v14, 4, v{vL16}"); a(f"v_and_b32 v15, 7, v14"); a(f"v_lshrrev_b32 v14, 5, v14")
            a(f"v_lshl_add_u32 v14, v15, 1, v14"); a(f"v_lshlrev_b32 v14, 5, v14")
            a(f"s_lshl_b32 s{sTmp[0]}, s{sXG}, 5"); a(f"s_add_u32 s{sTmp[0]}, s{sTmp[0]}, s{sI}")
            a(f"s_lshl_b32 s{sTmp[2]}, s{sTmp[0]}, 9"); a(f"s_add_u32 s{sTmp[2]}, s{sTmp[2]}, {O_ML1}")
            a(f"s_lshl_b32 s{sTmp[0]}, s{sTmp[0]}, 2"); a(f"s_add_u32 s{sTmp[0]}, s{sTmp[0]}, s{sW}")
            a(f"s_lshl_b32 s{sTmp[0]}, s{sTmp[0]}, 13"); a(f"s_add_u32 s{sTmp[0]}, s{sTmp[0]}, {O_C1}")
            a(f"s_add_u32 s{sTmp[1]}, s{sTmp[0]}, 4096")
            def issML():
                a(f"buffer_load_dwordx4 {vr(MM,4)}, v14, {W}, s{sTmp[2]} offen sc1")
                a(f"buffer_load_dwordx4 {vr(LL,4)}, v14, {W}, s{sTmp[2]} offen offset:16 sc1")
            lsk = a.newlabel("noml")
            if not self.mlsent:
                a(f"s_cmp_lg_u32 s{sAct}, 0"); a(f"s_cbranch_scc1 {lsk}")
            if not self.mltail:
                a(f"s_cmp_ge_u32 s{sL}, 2"); a(f"s_cbranch_scc1 {lsk}")
            self.poll(issML, [MM, LL], site='ml1')
            a.label(lsk)
            self.stamp(20)
            Mx, wv, den, t1 = 56, 60, 64, 68
            chk = 72
            lp = a.newlabel("sw1"); ns = a.newlabel("sw1n"); jn = a.newlabel("sw1j"); dn = a.newlabel("sw1d"); ns2 = a.newlabel("sw1m"); jn2 = a.newlabel("sw1k")
            a(f"s_mov_b32 s{sSpin}, 0")
            if self.bud is not None: a(f"s_mov_b32 s{sBud}, {self.bud.get('sw1', self.bud.get('*', 8))}")
            self.predelay('sw1')
            a.label(lp)
            issML()
            for i in range(8):
                a(f"buffer_load_dwordx4 {vr(G+4*i,4)}, v{vL16}, {W}, s{sTmp[i>>2]} offen offset:{(i&3)*1024} sc1")
            a(f"s_mov_b32 s{sYoung}, 8")
            self.dwait(8, 10 if self.addn else 0, 'sw1')
            a(f"s_sub_u32 s{sTmp[4]}, s{sYoung}, 8")
            for r in range(4): a(f"v_xor_b32 v{MM+r}, s{sT[r]}, v{MM+r}")
            for r in range(4): a(f"v_xor_b32 v{LL+r}, s{sT[r]}, v{LL+r}")
            a(f"v_or3_b32 v{chk}, v{MM}, v{MM+1}, v{MM+2}"); a(f"v_or3_b32 v{chk}, v{chk}, v{MM+3}, v{LL}")
            a(f"v_or3_b32 v{chk}, v{chk}, v{LL+1}, v{LL+2}"); a(f"v_or_b32 v{chk}, v{chk}, v{LL+3}")
            R4 = range(4)
            for r in R4: a(f"v_max_f32_dpp v{Mx+r}, v{MM+r}, v{MM+r} {self.X1} {DPPALL}")
            self.dpp_steps([Mx+r for r in R4], "v_max_f32", [self.X2, self.HM])
            for r in R4: a(f"v_mov_b32 v{t1+r}, v{Mx+r}")
            for r in R4: a(f"v_permlane32_swap_b32 v{Mx+r}, v{t1+r}")
            for r in R4: a(f"v_max_f32 v{Mx+r}, v{Mx+r}, v{t1+r}")
            for r in R4: a(f"v_sub_f32 v{wv+r}, v{MM+r}, v{Mx+r}")
            for r in R4: a(f"v_exp_f32 v{wv+r}, v{wv+r}")
            for r in R4: a(f"v_mul_f32 v{den+r}, v{wv+r}, v{LL+r}")
            self.dpp_steps([den+r for r in R4], "v_add_f32", [self.X1, self.X2, self.HM])
            for r in R4: a(f"v_mov_b32 v{t1+r}, v{den+r}")
            for r in R4: a(f"v_permlane32_swap_b32 v{den+r}, v{t1+r}")
            for r in R4: a(f"v_add_f32 v{den+r}, v{den+r}, v{t1+r}")
            if self.mode == "co":
                a(f"s_cmp_eq_u32 s{sTmp[4]}, 0"); a(f"s_cbranch_scc1 {ns2}")
                a(f"s_mov_b32 s{sYoung}, s{sTmp[4]}")
                a(f"s_swappc_b64 s[{sRET2}:{sRET2+1}], s[{sDW}:{sDW+1}]")
                a(f"s_branch {jn2}")
                a.label(ns2)
            self.dwait(0, 0, 'sw1')
            a.label(jn2)
            dw = [G + i for i in range(32)]
            for k, r in enumerate(dw): a(f"v_xor_b32 v{r}, s{sT[k % 4]}, v{r}")
            a(f"v_or3_b32 v{vT0}, v{dw[0]}, v{dw[1]}, v{chk}"); a(f"v_or3_b32 v{vT0+1}, v{dw[2]}, v{dw[3]}, v{dw[4]}")
            k = 5; tog = 0
            while k < 31:
                tgt = vT0 + tog
                a(f"v_or3_b32 v{tgt}, v{tgt}, v{dw[k]}, v{dw[k+1]}"); k += 2; tog ^= 1
            a(f"v_or3_b32 v{vT0}, v{vT0}, v{vT0+1}, v{dw[31]}")
            a(f"v_and_b32 v{vT0}, s{sFF}, v{vT0}")
            a(f"v_cmp_ne_u32 vcc, 0, v{vT0}")
            a(f"s_cbranch_vccz {dn}")
            a(f"s_add_u32 s{sSpin}, s{sSpin}, 1"); a(f"s_cmp_lt_u32 s{sSpin}, {SPIN_MAX}"); a(f"s_cbranch_scc1 {lp}")
            a(f"s_mov_b32 s{sErr}, 1")
            a.label(dn)
            self.stampval(24, sSpin); self.stampval(25, sPos)
            self.stamp(6)
            self.burst('A1')
            acc = 48
            for i in range(8):
                for r in range(4):
                    op = "v_mul_f32_dpp" if i == 0 else "v_fmac_f32_dpp"
                    a(f"{op} v{acc+r}, v{wv+r}, v{G+4*i+r} row_newbcast:{i} {DPPALL}")

        if self.c1bf:
            a(f"v_bfe_u32 v14, v{vL16}, 9, 1"); a(f"v_lshlrev_b32 v14, 11, v14"); a(f"v_and_b32 v15, 0xf0, v{vL16}"); a(f"v_add_u32 v14, v14, v15")
        else:
            a(f"v_bfe_u32 v14, v{vL16}, 8, 1"); a(f"v_lshlrev_b32 v14, 11, v14"); a(f"v_and_b32 v15, 0xf0, v{vL16}"); a(f"v_add_u32 v14, v14, v15")
            for r in R4: a(f"v_mov_b32 v{t1+r}, v{acc+r}")
        a(f"s_lshr_b32 s{sTmp[0]}, s{sI}, 2"); a(f"s_lshl_b32 s{sTmp[0]}, s{sTmp[0]}, 16")
        a(f"s_and_b32 s{sTmp[1]}, s{sI}, 3"); a(f"s_lshl_b32 s{sTmp[1]}, s{sTmp[1]}, 14"); a(f"s_add_u32 s{sTmp[0]}, s{sTmp[0]}, s{sTmp[1]}")
        if not self.c1bf:
            for r in R4: a(f"v_permlane32_swap_b32 v{acc+r}, v{t1+r}")
        a(f"s_lshl_b32 s{sTmp[1]}, s{sW}, 12"); a(f"s_add_u32 s{sTmp[0]}, s{sTmp[0]}, s{sTmp[1]}")
        a(f"s_lshl_b32 s{sTmp[1]}, s{sXG}, 8"); a(f"s_add_u32 s{sTmp[0]}, s{sTmp[0]}, s{sTmp[1]}")
        if not self.c1bf:
            for r in R4: a(f"v_add_f32 v{acc+r}, v{acc+r}, v{t1+r}")
        a(f"s_add_u32 s{sTmp[0]}, s{sTmp[0]}, {O_C2}")
        self.tag([acc, acc+1, acc+2, acc+3])
        if self.c1bf: self.exec_set(0xffff, 0xffff)
        else: a("s_mov_b32 exec_hi, 0")
        a(f"buffer_store_dwordx4 {vr(acc,4)}, v14, {W}, s{sTmp[0]} offen sc1")
        self.exec_all()
        lm = a.newlabel("ml2")
        a(f"s_and_b32 s{sTmp[1]}, s{sI}, 3"); a(f"s_or_b32 s{sTmp[1]}, s{sTmp[1]}, s{sW}"); a(f"s_cmp_lg_u32 s{sTmp[1]}, 0"); a(f"s_cbranch_scc1 {lm}")
        for r in (1, 2, 3):
            a(f"s_mov_b64 vcc, {1 << r}")
            a(f"v_cndmask_b32 v{Mx}, v{Mx}, v{Mx+r}, vcc"); a(f"v_cndmask_b32 v{den}, v{den}, v{den+r}, vcc")
        a(f"v_mov_b32 v{Mx+1}, v{den}"); a(f"v_mov_b32 v{Mx+2}, 0"); a(f"v_mov_b32 v{Mx+3}, 0")
        self.tag([Mx, Mx+1, Mx+2, Mx+3])
        a(f"s_lshl_b32 s{sTmp[1]}, s{sI}, 7"); a(f"s_lshl_b32 s{sTmp[2]}, s{sXG}, 4"); a(f"s_add_u32 s{sTmp[1]}, s{sTmp[1]}, s{sTmp[2]}")
        a(f"s_add_u32 s{sTmp[1]}, s{sTmp[1]}, {O_ML2}")
        a(f"v_lshlrev_b32 v15, 3, v{vL16}")
        a("s_mov_b64 exec, 15")
        a(f"buffer_store_dwordx4 {vr(Mx,4)}, v15, {W}, s{sTmp[1]} offen sc1")
        self.exec_all()
        a.label(lm)
        self.stamp(21)
        if not self.pfnew: self.load_wo(pWoA)
        G0, G1, M0, M1 = 16, 20, 24, 28
        a(f"v_bfe_u32 v15, v{vL16}, 6, 2")
        a(f"v_bfe_u32 v14, v{vL16}, 4, 2"); a(f"v_lshlrev_b32 v14, 2, v14"); a(f"v_lshrrev_b32 v32, 8, v{vL16}"); a(f"v_add_u32 v14, v14, v32")
        a(f"v_lshlrev_b32 v14, 4, v14"); a(f"v_lshl_add_u32 v14, v15, 8, v14")
        a(f"v_lshlrev_b32 v15, 4, v15")
        a(f"s_lshr_b32 s{sTmp[0]}, s{sH}, 2"); a(f"s_lshl_b32 s{sTmp[0]}, s{sTmp[0]}, 16"); a(f"s_lshl_b32 s{sTmp[1]}, s{sJ}, 13"); a(f"s_add_u32 s{sTmp[0]}, s{sTmp[0]}, s{sTmp[1]}")
        a(f"s_lshl_b32 s{sTmp[1]}, s{sW}, 11"); a(f"s_add_u32 s{sTmp[0]}, s{sTmp[0]}, s{sTmp[1]}"); a(f"s_add_u32 s{sTmp[0]}, s{sTmp[0]}, {O_C2}")
        a(f"s_lshl_b32 s{sTmp[2]}, s{sH}, 7"); a(f"s_add_u32 s{sTmp[2]}, s{sTmp[2]}, {O_ML2}")
        def iss2():
            a(f"buffer_load_dwordx4 {vr(M0,4)}, v15, {W}, s{sTmp[2]} offen sc1")
            a(f"buffer_load_dwordx4 {vr(M1,4)}, v15, {W}, s{sTmp[2]} offen offset:64 sc1")
            a(f"buffer_load_dwordx4 {vr(G0,4)}, v14, {W}, s{sTmp[0]} offen sc1")
            a(f"buffer_load_dwordx4 {vr(G1,4)}, v14, {W}, s{sTmp[0]} offen offset:1024 sc1")
        self.poll(iss2, [M0, M1, G0, G1], site='h5b')
        self.stampval(26, sSpin); self.stampval(27, sPos)
        self.stamp(14)
        self.burst('A2')
        lsel = [a.newlabel("sel") for _ in range(4)]; lj = a.newlabel("selj")
        Mx, f0, f1, Ls = 32, 33, 34, 35
        a(f"v_max_f32 v{Mx}, v{M0}, v{M1}")
        a(f"s_and_b32 s{sTmp[1]}, s{sH}, 3")
        for r in (1, 2, 3):
            a(f"s_cmp_eq_u32 s{sTmp[1]}, {r}"); a(f"s_cbranch_scc1 {lsel[r]}")
        a(f"s_branch {lj}")
        for r in (1, 2, 3):
            a.label(lsel[r])
            a(f"v_mov_b32 v{G0}, v{G0+r}"); a(f"v_mov_b32 v{G1}, v{G1+r}")
            if r < 3: a(f"s_branch {lj}")
        a.label(lj)
        self.dpp_steps([Mx], "v_max_f32", ["row_ror:4", "row_ror:8"])
        a(f"v_sub_f32 v{f0}, v{M0}, v{Mx}"); a(f"v_sub_f32 v{f1}, v{M1}, v{Mx}")
        a(f"v_exp_f32 v{f0}, v{f0}"); a(f"v_exp_f32 v{f1}, v{f1}")
        a(f"v_mul_f32 v{Ls}, v{f0}, v{M0+1}"); a(f"v_mul_f32 v{G0}, v{f0}, v{G0}")
        a(f"v_fmac_f32 v{Ls}, v{f1}, v{M1+1}"); a(f"v_fmac_f32 v{G0}, v{f1}, v{G1}")
        self.dpp_steps([Ls, G0], "v_add_f32", ["row_ror:4", "row_ror:8"])
        a(f"v_rcp_f32 v{Ls}, v{Ls}")
        a(f"v_mul_f32 v{G0}, v{G0}, v{Ls}")
        Xp = 14
        a(f"v_cvt_pk_bf16_f32 v{Xp}, v{G0}, v{G0}")
        D, Ab = 16, 20
        self.pv_gemv(Xp, 4, lambda i: vr(WUV+4*i, 4), D, Ab)
        self.red_write(D)
        self.row_slot_addr()
        a("s_waitcnt lgkmcnt(0)"); a("s_barrier")
        lf = a.newlabel("uvfin")
        a(f"s_cmp_lg_u32 s{sW}, 0"); a(f"s_cbranch_scc1 {lf}")
        G = 16
        self.red_final_read(G)
        a(f"s_mov_b32 s{sA}, {f32hex(0.125)}")
        a("s_waitcnt lgkmcnt(0)")
        self.sum4(G)
        a(f"v_writelane_b32 v{G}, 0, 32"); a(f"v_writelane_b32 v{G+1}, s{sA}, 32")
        self.tag([G, G+1, G+2, G+3])
        a("s_mov_b32 exec_hi, 1")
        self.local_stores([(G, vL16, sTmp[0], None)])
        a("s_mov_b32 exec_hi, -1")
        a.label(lf)
        self.stamp(7)

    def stage1_bf(self, DT, P, AF, steps, rdA):
        a = self.a
        R4 = range(4)
        a(f"v_lshrrev_b32 v14, 8, v{vL16}"); a(f"v_lshlrev_b32 v14, 16, v14"); a(f"v_and_b32 v15, 0xf0, v{vL16}"); a(f"v_add_u32 v14, v14, v15")
        a(f"s_lshl_b32 s{sTmp[0]}, s{sXG}, 19"); a(f"s_lshl_b32 s{sTmp[1]}, s{sGA}, 18"); a(f"s_add_u32 s{sTmp[0]}, s{sTmp[0]}, s{sTmp[1]}")
        a(f"s_lshl_b32 s{sTmp[1]}, s{sW}, 14"); a(f"s_add_u32 s{sTmp[0]}, s{sTmp[0]}, s{sTmp[1]}")
        a(f"s_and_b32 s{sTmp[2]}, s{sS}, 15"); a(f"s_lshl_b32 s{sTmp[1]}, s{sTmp[2]}, 8"); a(f"s_add_u32 s{sTmp[0]}, s{sTmp[0]}, s{sTmp[1]}")
        a(f"s_add_u32 s{sTmp[0]}, s{sTmp[0]}, {O_C1}")
        a(f"s_lshl_b32 s{sTmp[3]}, s{sXG}, 14"); a(f"s_lshl_b32 s{sTmp[1]}, s{sGA}, 13"); a(f"s_add_u32 s{sTmp[3]}, s{sTmp[3]}, s{sTmp[1]}")
        a(f"s_lshl_b32 s{sTmp[1]}, s{sW}, 9"); a(f"s_add_u32 s{sTmp[3]}, s{sTmp[3]}, s{sTmp[1]}")
        a(f"s_lshl_b32 s{sTmp[1]}, s{sTmp[2]}, 5"); a(f"s_add_u32 s{sTmp[3]}, s{sTmp[3]}, s{sTmp[1]}")
        a(f"s_add_u32 s{sTmp[3]}, s{sTmp[3]}, {O_ML1}")
        a(f"v_bfe_u32 v15, v{vL16}, 6, 2"); a(f"v_lshlrev_b32 v15, 11, v15")
        a(f"v_bfe_u32 v34, v{vL16}, 8, 1"); a(f"v_lshl_add_u32 v15, v34, 4, v15")
        a(f"s_mov_b32 vcc_lo, 0xffff0000"); a("s_mov_b32 vcc_hi, 0")
        a(f"v_cndmask_b32 v34, v32, v33, vcc")
        mlops = [f"v_mov_b32_dpp v32, v34 quad_perm:[0,0,0,0] {DPPALL}", f"v_mov_b32_dpp v33, v34 quad_perm:[1,1,1,1] {DPPALL}",
                 f"v_mov_b32_dpp v35, v34 quad_perm:[3,3,3,3] {DPPALL}", f"v_mov_b32_dpp v34, v34 quad_perm:[2,2,2,2] {DPPALL}"]
        def pack(wp):
            D0, E0 = DT + 8*wp, DT + 8*wp + 4
            a(f"v_cvt_pk_bf16_f32 v{D0}, v{D0}, v{D0+1}"); a(f"v_cvt_pk_bf16_f32 v{D0+1}, v{D0+2}, v{D0+3}")
            a(f"v_cvt_pk_bf16_f32 v{D0+2}, v{E0}, v{E0+1}"); a(f"v_cvt_pk_bf16_f32 v{D0+3}, v{E0+2}, v{E0+3}")
        for k in range(16):
            t, u = steps[k]; b = AF + 4 * (k % 4)
            rem = min(3, 15 - k)
            a(f"s_waitcnt lgkmcnt({2*rem})")
            c = "0" if u == 0 else vr(DT+4*t, 4)
            a(f"v_mfma_f32_16x16x32_bf16 {vr(DT+4*t,4)}, {vr(P+4*u,4)}, {vr(b,4)}, {c}")
            if k + 4 < 16: rdA(k + 4)
            if k == 0:
                for x_ in mlops: a(x_)
            if k == 2: self.tag([32, 33, 34, 35])
            if k in (7, 11, 15) : pack((k - 7) // 4)
        pack(3)
        self.stamp(19)
        items = []
        for wp in range(4):
            def pre(wp=wp): a(f"s_add_u32 s{sTmp[1]}, s{sTmp[0]}, {wp*4096}")
            items.append((DT+8*wp, 14, sTmp[1], pre))
        self.local_stores(items)
        G, MM, LL = 16, 48, 52
        a(f"v_bfe_u32 v14, v{vL16}, 4, 2"); a(f"v_lshlrev_b32 v14, 2, v14"); a(f"v_lshrrev_b32 v36, 8, v{vL16}"); a(f"v_add_u32 v14, v14, v36")
        a(f"v_lshlrev_b32 v14, 5, v14")
        a(f"s_lshl_b32 s{sTmp[0]}, s{sXG}, 5"); a(f"s_add_u32 s{sTmp[0]}, s{sTmp[0]}, s{sI}")
        a(f"s_lshl_b32 s{sTmp[2]}, s{sTmp[0]}, 9"); a(f"s_add_u32 s{sTmp[2]}, s{sTmp[2]}, {O_ML1}")
        a("s_waitcnt vmcnt(0)")
        def pre_ml(): a("s_mov_b32 exec_lo, 0x11111111"); a("s_mov_b32 exec_hi, 0")
        self.local_stores([(32, 15, sTmp[3], pre_ml)])
        self.exec_all()
        self.stamp(5)
        def issML():
            a(f"buffer_load_dwordx4 {vr(MM,4)}, v14, {W}, s{sTmp[2]} offen sc1")
            a(f"buffer_load_dwordx4 {vr(LL,4)}, v14, {W}, s{sTmp[2]} offen offset:16 sc1")
        self.poll(issML, [MM, LL], site='ml1')
        self.stamp(20)
        for i in range(4):
            a(f"buffer_load_dwordx4 {vr(G+4*i,4)}, v{vL16}, {W}, s{sC1} offen offset:{i*1024} sc1")
        Mx, wv, den, t1 = 56, 60, 64, 68
        for r in R4: a(f"v_max_f32_dpp v{Mx+r}, v{MM+r}, v{MM+r} {self.X1} {DPPALL}")
        self.dpp_steps([Mx+r for r in R4], "v_max_f32", [self.X2])
        for sw in ("v_permlane16_swap_b32", "v_permlane32_swap_b32"):
            for r in R4: a(f"v_mov_b32 v{t1+r}, v{Mx+r}")
            for r in R4: a(f"{sw} v{Mx+r}, v{t1+r}")
            for r in R4: a(f"v_max_f32 v{Mx+r}, v{Mx+r}, v{t1+r}")
        for r in R4: a(f"v_sub_f32 v{wv+r}, v{MM+r}, v{Mx+r}")
        for r in R4: a(f"v_exp_f32 v{wv+r}, v{wv+r}")
        for r in R4: a(f"v_mul_f32 v{den+r}, v{wv+r}, v{LL+r}")
        self.dpp_steps([den+r for r in R4], "v_add_f32", [self.X1, self.X2])
        for sw in ("v_permlane16_swap_b32", "v_permlane32_swap_b32"):
            for r in R4: a(f"v_mov_b32 v{t1+r}, v{den+r}")
            for r in R4: a(f"{sw} v{den+r}, v{t1+r}")
            for r in R4: a(f"v_add_f32 v{den+r}, v{den+r}, v{t1+r}")
        self.dwait(0, 4, 'sw1')
        self.stamp(6)
        self.burst('A1')
        accA, accB, un = 48, 52, 32
        for i in range(4):
            g0 = G + 4*i
            for q in range(4):
                a(f"v_lshlrev_b32 v{un+2*q}, 16, v{g0+q}"); a(f"v_and_b32 v{un+2*q+1}, 0xffff0000, v{g0+q}")
            for q in range(8):
                acc = (accA if q < 4 else accB) + (q & 3)
                op = "v_mul_f32_dpp" if i == 0 else "v_fmac_f32_dpp"
                a(f"{op} v{acc}, v{wv+(q&3)}, v{un+q} row_newbcast:{i} {DPPALL}")
        for r in R4: a(f"v_permlane32_swap_b32 v{accA+r}, v{accB+r}")
        for r in R4: a(f"v_add_f32 v{accA+r}, v{accA+r}, v{accB+r}")
        for r in R4: a(f"v_mov_b32 v{t1+r}, v{accA+r}")
        for r in R4: a(f"v_permlane16_swap_b32 v{accA+r}, v{t1+r}")
        for r in R4: a(f"v_add_f32 v{accA+r}, v{accA+r}, v{t1+r}")

    def check_inline(self, regs, ok_label):
        a = self.a
        acc, acc2 = vT0, vT0 + 1
        dw = [g + i for g in regs for i in range(4)]
        for k, r in enumerate(dw): a(f"v_xor_b32 v{r}, s{sT[k % 4]}, v{r}")
        a(f"v_or3_b32 v{acc}, v{dw[0]}, v{dw[1]}, v{dw[2]}")
        a(f"v_or3_b32 v{acc2}, v{dw[3]}, v{dw[4]}, v{dw[5]}")
        k = 6; tog = 0
        while k < len(dw):
            tgt = acc if tog == 0 else acc2
            a(f"v_or3_b32 v{tgt}, v{tgt}, v{dw[k]}, v{dw[k+1]}"); k += 2; tog ^= 1
        a(f"v_or_b32 v{acc}, v{acc}, v{acc2}")
        a(f"v_and_b32 v{acc}, s{sFF}, v{acc}")
        a(f"v_cmp_ne_u32 vcc, 0, v{acc}")
        a(f"s_cbranch_vccz {ok_label}")

    def row_slot_addr(self):
        a = self.a
        a(f"s_lshl_b32 s{sTmp[0]}, s{sH}, 3"); a(f"s_add_u32 s{sTmp[0]}, s{sTmp[0]}, s{sJ}"); a(f"s_lshl_b32 s{sTmp[0]}, s{sTmp[0]}, 10")
        a(f"s_add_u32 s{sTmp[0]}, s{sTmp[0]}, {O_ROW}")

    def bmiddle(self):
        a = self.a
        k = self.kblk
        if self.mode == "co":
            l0 = a.newlabel("kw"); l1 = a.newlabel("kw")
            a.label(l0)
            a(f"s_cmp_ge_u32 s{sPos}, {self.KEND+self.keep}"); a(f"s_cbranch_scc1 {l1}")
            self.stream_call()
            a(f"s_waitcnt vmcnt({self.keep})")
            a(f"s_branch {l0}")
            a.label(l1)
            a(f"s_waitcnt vmcnt({self.keep})")
        self.stampval(24, sPos)
        self.stamp(16)
        if not self.vsplit or self.woqk: self.wo_setup(pWoB)
        Db = [16, 20, 24]; SB = 28; Tt = 14
        def redops(b):
            D = Db[b % 3]; S = SB + b
            return [f"v_mov_b32_dpp v{S}, v{D} quad_perm:[0,0,0,0] {DPPALL}",
                    f"v_mov_b32_dpp v{Tt}, v{D+2} quad_perm:[2,2,2,2] {DPPALL}",
                    f"v_add_f32_dpp v{S}, v{D+1}, v{S} quad_perm:[1,1,1,1] {DPPALL}",
                    f"v_add_f32_dpp v{Tt}, v{D+3}, v{Tt} quad_perm:[3,3,3,3] {DPPALL}",
                    f"v_add_f32 v{S}, v{S}, v{Tt}"]
        for b in range(16):
            D = Db[b % 3]
            ro = redops(b - 2) if b >= 2 else []
            for t in range(4):
                c = "0" if t == 0 else vr(D, 4)
                a(f"v_mfma_f32_16x16x32_bf16 {vr(D,4)}, {vr(AT+4*t,4)}, {ar(16*b+4*t,4)}, {c}")
                if ro: a(ro[t])
                if self.vsplit:
                    if self.woqk and t == 1 and b < 6: self.wo_one(b)
                    if t == 2 and (6 if self.woqk else 0) <= b < (10 if self.woqk else 4): self.vtr_one(4 + b - (6 if self.woqk else 0))
                else:
                    if t == 1 and b < 8: self.pf_guard(lambda: self.vtr_one(b))
                    if t == 2 and 8 <= b < 14: self.pf_guard(lambda: self.wo_one(b - 8))
            if ro: a(ro[4])
            if b in self.qkcalls: self.topup(self.dq)
        r14, r15 = redops(14), redops(15)
        r15 = [x.replace(f"v{Tt}", "v15") for x in r15]
        for x14, x15 in zip(r14, r15):
            a(x14); a(x15)
        self.stamp(3)
        m, m2 = 14, 15
        a(f"v_max3_f32 v{m}, v{SB}, v{SB+1}, v{SB+2}"); a(f"v_max3_f32 v{m2}, v{SB+3}, v{SB+4}, v{SB+5}")
        a(f"v_max3_f32 v{m}, v{m}, v{SB+6}, v{SB+7}"); a(f"v_max3_f32 v{m2}, v{m2}, v{SB+8}, v{SB+9}")
        a(f"v_max3_f32 v{m}, v{m}, v{SB+10}, v{SB+11}"); a(f"v_max3_f32 v{m2}, v{m2}, v{SB+12}, v{SB+13}")
        a(f"v_max3_f32 v{m}, v{m}, v{SB+14}, v{SB+15}"); a(f"v_max_f32 v{m}, v{m}, v{m2}")
        self.dpp_steps([m], "v_max_f32", ["row_ror:4", "row_ror:8", "b15", "b31"])
        a(f"v_readlane_b32 s{sA}, v{m}, 63")
        a(f"v_mov_b32 v{m2}, s{sSc}")
        a(f"v_mul_f32 v{m}, s{sA}, v{m2}")
        a(f"v_readfirstlane_b32 s{sA}, v{m}")
        for q in range(16): a(f"v_fma_f32 v{SB+q}, v{SB+q}, s{sSc}, -v{m}")
        for q in range(16): a(f"v_exp_f32 v{SB+q}, v{SB+q}")
        l, l2 = 14, 15
        a(f"v_add_f32 v{l}, v{SB}, v{SB+1}"); a(f"v_add_f32 v{l2}, v{SB+2}, v{SB+3}")
        for q in range(4, 16, 2):
            a(f"v_add_f32 v{l}, v{l}, v{SB+q}"); a(f"v_add_f32 v{l2}, v{l2}, v{SB+q+1}")
        a(f"v_add_f32 v{l}, v{l}, v{l2}")
        pk = [f"v_cvt_pk_bf16_f32 v{SB+q}, v{SB+q}, v{SB+q}" for q in range(16)]
        red = [f"v_add_f32_dpp v{l}, v{l}, v{l} row_ror:4 {DPPALL}", f"v_add_f32_dpp v{l}, v{l}, v{l} row_ror:8 {DPPALL}",
               f"v_add_f32_dpp v{l}, v{l}, v{l} row_bcast:15 row_mask:0xa bank_mask:0xf", f"v_add_f32_dpp v{l}, v{l}, v{l} row_bcast:31 row_mask:0xc bank_mask:0xf"]
        for i in range(4):
            for x_ in pk[4*i:4*i+2]: a(x_)
            a(red[i])
            for x_ in pk[4*i+2:4*i+4]: a(x_)
        a(f"v_readlane_b32 s{sB_}, v{l}, 63")
        self.stamp(4)
        if self.mode == "co":
            self.drain(self.keep)
            a("s_waitcnt vmcnt(16)")
        Ab, Do = 44, 52
        a(f"s_lshl_b32 s{sTmp[0]}, s{sW}, 14"); a(f"v_add_u32 v15, s{sTmp[0]}, v{vL16}")
        if L_VL: a(f"v_add_u32 v15, {L_VL}, v15")
        if self.smf:
            self.pv_smf(SB, Ab, Do)
        else:
            self.pv_dense(SB, Ab, Do)
        self.row_slot_addr()
        a(f"v_writelane_b32 v{Do}, s{sA}, 32"); a(f"v_writelane_b32 v{Do+1}, s{sB_}, 32")
        self.red_write(Do)
        a("s_waitcnt lgkmcnt(0)"); a("s_barrier")
        self.stamp(5)
        lf = a.newlabel("bfin")
        a(f"s_cmp_lg_u32 s{sW}, 0"); a(f"s_cbranch_scc1 {lf}")
        G = 16; MLr = 32
        a(f"v_mov_b32 v14, {L_RED+512}")
        for w in range(4): a(f"ds_read_b64 {vr(MLr+2*w,2)}, v14 offset:{w*RSTR}")
        self.red_final_read(G)
        a("s_waitcnt lgkmcnt(4)")
        M = 40
        a(f"v_max3_f32 v{M}, v{MLr}, v{MLr+2}, v{MLr+4}"); a(f"v_max_f32 v{M}, v{M}, v{MLr+6}")
        for w in range(4): a(f"v_sub_f32 v{MLr+2*w}, v{MLr+2*w}, v{M}")
        for w in range(4): a(f"v_exp_f32 v{MLr+2*w}, v{MLr+2*w}")
        a(f"v_readfirstlane_b32 s{sA}, v{M}")
        a("s_waitcnt lgkmcnt(0)")
        for r in range(4): a(f"v_mul_f32 v{G+r}, v{MLr}, v{G+r}")
        for w in range(1, 4):
            for r in range(4): a(f"v_fmac_f32 v{G+r}, v{MLr+2*w}, v{G+4*w+r}")
        a(f"v_writelane_b32 v{G}, s{sA}, 32")
        self.tag([G, G+1, G+2, G+3])
        a("s_mov_b32 exec_hi, 1")
        self.local_stores([(G, vL16, sTmp[0], None)])
        a("s_mov_b32 exec_hi, -1")
        a.label(lf)
        self.stamp(7)

    def pv_dense(self, SB, Ab, Do):
        a = self.a
        LB = [16, 20, 24, 56]
        order = [(b, u) for b in range(10) for u in range(4)] + [(b, u) for b in range(10, 14) for u in range(4)] + [(b, u) for b in (14, 15) for u in range(4)]
        def build(kk):
            b, u = order[kk]; A = Ab + 4 * (kk % 2)
            for r in range(4):
                a(f"v_and_b32_dpp v{A+r}, v{SB+b}, v{vM[r]} row_newbcast:{4*u} {DPPALL}")
        def bop(kk):
            b, u = order[kk]
            if b < 10: return vr(VRES+16*b+4*u, 4)
            if b < 14: return vr(LB[u], 4)
            return vr(self.vtr_reg(b, u), 4)
        def ldsrd(b, u):
            a(f"ds_read_b128 {vr(LB[u],4)}, v15 offset:{((b-10)*4+u)*1024}")
        build(0); build(1)
        for kk in range(len(order)):
            b, u = order[kk]
            if (b, u) == (8, 0):
                self.stamp(17)
                a("s_waitcnt vmcnt(0)")
                self.stamp(18)
                for uu in range(4): ldsrd(10, uu)
            if 10 <= b < 14: a(f"s_waitcnt lgkmcnt(3)" if not (b == 13 and u > 0) else f"s_waitcnt lgkmcnt({3-u})")
            A = Ab + 4 * (kk % 2)
            c = "0" if kk == 0 else vr(Do, 4)
            a(f"v_mfma_f32_16x16x32_bf16 {vr(Do,4)}, {vr(A,4)}, {bop(kk)}, {c}")
            if 10 <= b < 13: ldsrd(b + 1, u)
            if kk + 2 < len(order): build(kk + 2)

    def pv_smf(self, SB, Ab, Do):
        a = self.a
        N0, N1, IDX = 56, 57, 58
        n = 14
        a(f"v_bfe_u32 v{n}, v{vL16}, 4, 4")
        a(f"v_and_b32 v{IDX}, 3, v{n}"); a(f"v_mul_u32_u24 v{IDX}, 0x1111, v{IDX}")
        a(f"v_lshrrev_b32 v{n}, 2, v{n}"); a(f"v_mov_b32 v59, 0xffff")
        a(f"v_cmp_eq_u32 vcc, 0, v{n}"); a(f"v_cndmask_b32 v{N0}, 0, v59, vcc")
        a(f"v_cmp_eq_u32 vcc, 1, v{n}"); a(f"v_cndmask_b32 v{N1}, 0, v59, vcc")
        for r in range(4): a(f"v_mov_b32 v{Do+r}, 0")
        order = [(b, s_) for b in range(16) for s_ in range(2)]
        LB = [16, 28]
        def build(kk):
            b, s_ = order[kk]; A = Ab + 4 * (kk % 2)
            a(f"v_and_b32_dpp v{A}, v{SB+b}, v{N0} row_newbcast:{8*s_} {DPPALL}")
            a(f"v_and_b32_dpp v{A+1}, v{SB+b}, v{N1} row_newbcast:{8*s_} {DPPALL}")
            a(f"v_and_b32_dpp v{A+2}, v{SB+b}, v{N0} row_newbcast:{8*s_+4} {DPPALL}")
            a(f"v_and_b32_dpp v{A+3}, v{SB+b}, v{N1} row_newbcast:{8*s_+4} {DPPALL}")
        def bop(kk):
            b, s_ = order[kk]
            if b < 10: return vr(VRES+16*b+8*s_, 8)
            if b < 14: return vr(LB[s_], 8)
            return vr(self.vtr_reg(b, 2*s_), 8)
        def ldsrd(b, s_):
            for hf in range(2):
                a(f"ds_read_b128 {vr(LB[s_]+4*hf,4)}, v15 offset:{((b-10)*4+2*s_+hf)*1024}")
        build(0); build(1)
        for kk in range(len(order)):
            b, s_ = order[kk]
            if (b, s_) == (8, 0):
                self.stamp(17)
                a("s_waitcnt vmcnt(0)")
                self.stamp(18)
                ldsrd(10, 0); ldsrd(10, 1)
            if 10 <= b < 14: a("s_waitcnt lgkmcnt(2)" if not (b == 13 and s_ == 1) else "s_waitcnt lgkmcnt(0)")
            A = Ab + 4 * (kk % 2)
            a(f"v_smfmac_f32_16x16x64_bf16 {vr(Do,4)}, {vr(A,4)}, {bop(kk)}, v{IDX}")
            if 10 <= b < 13: ldsrd(b + 1, s_)
            if kk + 2 < len(order): build(kk + 2)

    def opart(self):
        a = self.a
        G, ML = 16, 20
        a(f"v_lshrrev_b32 v14, 7, v{vL16}"); a(f"v_lshlrev_b32 v15, 10, v14")
        a(f"v_and_b32 v14, 0x70, v{vL16}"); a(f"v_add_u32 v14, v15, v14")
        a(f"s_lshl_b32 s{sTmp[0]}, s{sH}, 13"); a(f"s_add_u32 s{sTmp[0]}, s{sTmp[0]}, {O_ROW}")
        a(f"s_lshl_b32 s{sTmp[1]}, s{sW}, 7"); a(f"s_add_u32 s{sTmp[1]}, s{sTmp[1]}, s{sTmp[0]}")
        N0, N1, IDX = 60, 61, 62
        if self.opt1:
            a(f"v_lshrrev_b32 v59, 8, v{vL16}"); a(f"v_and_b32 v58, 1, v59"); a(f"v_lshrrev_b32 v59, 1, v59"); a(f"v_lshl_add_u32 v59, v58, 2, v59")
            a(f"v_mul_u32_u24 v59, 160, v59")
            self.smf_consts(N0, N1, IDX, 57)
        else:
            a(f"v_lshrrev_b32 v59, 8, v{vL16}"); a(f"v_mul_u32_u24 v59, 160, v59")
        a(f"v_and_b32 v58, 0xf0, v{vL16}"); a(f"v_add_u32 v59, v59, v58")
        a(f"s_mul_i32 s{sTmp[2]}, s{sW}, {WOSTR}"); a(f"s_add_u32 s{sTmp[2]}, s{sTmp[2]}, {L_R0}"); a(f"v_add_u32 v59, s{sTmp[2]}, v59")
        def coladdr():
            t = 63 if self.opt1 else 14
            u = 58 if self.opt1 else 15
            a(f"v_lshrrev_b32 v{t}, 4, v{vL16}"); a(f"v_mul_u32_u24 v{u}, 13108, v{t}"); a(f"v_lshrrev_b32 v{u}, 16, v{u}")
            a(f"v_mul_u32_u24 v{u-1 if self.opt1 else 24}, 5, v{u}"); a(f"v_sub_u32 v{t}, v{t}, v{u-1 if self.opt1 else 24}"); a(f"v_lshlrev_b32 v{t}, 4, v{t}"); a(f"v_lshl_add_u32 v{t}, v{u}, 7, v{t}")
            a(f"s_lshl_b32 s{sTmp[4]}, s{sJ}, 5"); a(f"s_add_u32 s{sTmp[4]}, s{sTmp[4]}, s{sH}"); a(f"s_lshl_b32 s{sTmp[4]}, s{sTmp[4]}, 9")
            a(f"s_add_u32 s{sTmp[4]}, s{sTmp[4]}, s{sCol}")
            return t
        if self.opt1: tcol = coladdr()
        def iss():
            a(f"buffer_load_dwordx4 {vr(ML,4)}, v15, {W}, s{sTmp[0]} offen offset:512 sc1")
            a(f"buffer_load_dwordx4 {vr(G,4)}, v14, {W}, s{sTmp[1]} offen sc1")
        self.poll(iss, [ML, G], site='row')
        self.stamp(8)
        self.burst('O0')
        WB = 24
        for i in range(8):
            off = ((i >> 1) * 8 + (i & 1) * 2) * 160 if self.opt1 else i * 640
            a(f"ds_read_b128 {vr(WB+4*i,4)}, v59 offset:{off}")
        if self.pfnew and not (self.opt1 and self.latepf): self.next_w()
        self.combine8(G, ML, 56)
        Xp = 14
        a(f"v_cvt_pk_bf16_f32 v{Xp}, v{G}, v{G}")
        D, Ab = 56, 16
        a("s_waitcnt lgkmcnt(0)")
        if self.opt1:
            self.pv_gemv_smf(Xp, 4, lambda i: vr(WB+8*i, 8), D, Ab, N0, N1, IDX)
        else:
            self.pv_gemv(Xp, 8, lambda i: vr(WB+4*i, 4), D, Ab)
        self.red_write(D)
        if self.opt1:
            if self.pfnew and self.latepf: self.next_w()
        else:
            tcol = coladdr()
        a("s_waitcnt lgkmcnt(0)"); a("s_barrier")
        lf = a.newlabel("ofin")
        a(f"s_cmp_lg_u32 s{sW}, 0"); a(f"s_cbranch_scc1 {lf}")
        self.red_final_read(G)
        a("s_waitcnt lgkmcnt(0)")
        self.sum4(G); self.tag([G, G+1, G+2, G+3])
        self.exec_set(0xfffff, 0)
        a(f"buffer_store_dwordx4 {vr(G,4)}, v{tcol}, {W}, s{sTmp[4]} offen sc1")
        self.exec_all()
        a.label(lf)
        self.stamp(9)
        if not self.pfnew: self.next_w()
        if self.skipfin:
            lk = a.newlabel("keep")
            a(f"s_cmp_lg_u32 s{sL}, {(self.stop or 4) - 1}"); a(f"s_cbranch_scc1 {lk}")
            a(f"s_cmp_lg_u32 s{sH}, 0"); a("s_cbranch_scc1 L_fin2")
            a.label(lk)
        if self.vsplit and not self.woqk:
            lb = a.newlabel("nowo")
            a(f"s_bitcmp1_b32 s{sL}, 0"); a(f"s_cbranch_scc1 {lb}")
            self.load_wo(pWoB)
            a.label(lb)
        a(f"v_lshrrev_b32 v14, 7, v{vL16}"); a(f"v_lshlrev_b32 v14, 9, v14")
        a(f"v_and_b32 v15, 0x70, v{vL16}"); a(f"v_add_u32 v14, v14, v15")
        a(f"s_lshl_b32 s{sTmp[0]}, s{sJ}, 14"); a(f"s_lshl_b32 s{sTmp[1]}, s{sW}, 7"); a(f"s_add_u32 s{sTmp[0]}, s{sTmp[0]}, s{sTmp[1]}")
        a(f"s_add_u32 s{sTmp[0]}, s{sTmp[0]}, s{sCol}")
        for i in range(1, 4): a(f"s_add_u32 s{sTmp[i]}, s{sTmp[0]}, {i*4096}")
        if self.opt1: self.prep_q()
        def issc():
            for i in range(4):
                a(f"buffer_load_dwordx4 {vr(G+4*i,4)}, v14, {W}, s{sTmp[i]} offen sc1")
        self.poll(issc, [G, G+4, G+8, G+12], execmask=(0x1f1f1f1f, 0x1f1f1f1f), site='col')
        self.stampval(28, sSpin); self.stampval(29, sPos)
        self.stamp(10)
        self.burst('Q0')
        self.sum4(G)
        for r in range(4): a(f"v_add_f32_dpp v{G+r}, v{G+r}, v{G+r} row_ror:8 {DPPALL}")
        self.treduce([G, G+1, G+2, G+3])
        a(f"v_add_f32 v{G}, v{G}, v{vX}")
        a(f"v_cndmask_b32 v{vX}, 0, v{G}, s[{sM5}:{sM5+1}]")

    def second_w(self, lb=None):
        a = self.a
        lb = lb or a.newlabel("nouk")
        a(f"s_bitcmp1_b32 s{sL}, 0"); a(f"s_cbranch_scc1 {lb}")
        self.load_wuk()
        if self.vsplit:
            lc = a.newlabel("vtj")
            a(f"s_branch {lc}")
            a.label(lb)
            for k in range(4): self.vtr_one(k)
            a.label(lc)
        else:
            a.label(lb)

    def next_w(self):
        a = self.a
        lnp = a.newlabel("nopf"); lb = a.newlabel("nouk")
        a(f"s_cmp_eq_u32 s{sL}, 3"); a(f"s_cbranch_scc1 {lnp}")
        a(f"s_add_u32 s{sL}, s{sL}, 1")
        self.load_wq()
        if not self.split2: self.second_w(lb)
        a(f"s_sub_u32 s{sL}, s{sL}, 1")
        a.label(lnp)

    def epilogue(self):
        a = self.a
        le = a.newlabel("fin")
        a(f"s_cmp_lg_u32 s{sH}, 0"); a(f"s_cbranch_scc1 {le}")
        self.srd(SRD_B, pOut, 1280)
        a(f"v_lshrrev_b32 v14, 4, v{vL16}"); a(f"v_and_b32 v15, 15, v14"); a(f"v_lshrrev_b32 v14, 4, v14")
        a(f"v_lshl_add_u32 v14, v15, 2, v14")
        a(f"s_mul_i32 s{sTmp[0]}, s{sJ}, 80"); a(f"s_mul_i32 s{sTmp[1]}, s{sW}, 20"); a(f"s_add_u32 s{sTmp[0]}, s{sTmp[0]}, s{sTmp[1]}")
        a(f"v_add_u32 v14, s{sTmp[0]}, v14"); a(f"v_lshlrev_b32 v14, 1, v14")
        a(f"v_cvt_pk_bf16_f32 v15, v{vX}, v{vX}")
        a(f"s_mov_b64 exec, s[{sM5}:{sM5+1}]")
        a(f"buffer_store_short v15, v14, s[{SRD_B}:{SRD_B+3}], 0 offen")
        self.exec_all()
        a(f"s_cmp_lg_u32 s2, 0"); a(f"s_cbranch_scc1 {le}")
        a(f"s_cmp_lg_u32 s{sW}, 0"); a(f"s_cbranch_scc1 {le}")
        a(f"v_mov_b32 v14, 0")
        a("s_mov_b64 exec, 1")
        a(f"buffer_store_dword v{vT}, v14, {W}, 0 offen sc1")
        self.exec_all()
        a.label(le)
        a.label("L_fin2")
        l2 = a.newlabel("noerr")
        a(f"s_cmp_eq_u32 s{sErr}, 0"); a(f"s_cbranch_scc1 {l2}")
        self.srd(SRD_B, sDbg, 256)
        a(f"v_mov_b32 v14, 0"); a(f"v_mov_b32 v15, 0xdead")
        a("s_mov_b64 exec, 1")
        a(f"buffer_store_dword v15, v14, s[{SRD_B}:{SRD_B+3}], 0 offen")
        self.exec_all()
        a.label(l2)

    def build(self):
        a = self.a
        self.prologue()
        a.label("L_layer")
        self.qpart()
        a(f"s_bitcmp1_b32 s{sL}, 0"); a(f"s_cbranch_scc1 L_bmid")
        self.amiddle()
        a(f"s_branch L_opart")
        a.label("L_bmid")
        self.bmiddle()
        a.label("L_opart")
        self.opart()
        self.stamp(11)
        for L_ in range(4): self.dbgstamp(f"end{L_}", L_)
        a(f"s_add_u32 s{sL}, s{sL}, 1"); a(f"s_xor_b32 s{sCol}, s{sCol}, 0x20000")
        nl = self.stop if self.stop else 4
        a(f"s_cmp_ge_u32 s{sL}, {nl}"); a("s_cbranch_scc1 L_done")
        self.next_tag()
        a("s_branch L_layer")
        a.label("L_done")
        self.epilogue()
        if self.stamps:
            a(f"s_mov_b32 s{sL}, 3")
            self.stamp(13)
        a("s_waitcnt vmcnt(0)")
        a.label("L_end")
        a("s_endpgm")
        self.dw_sub()
        self.stream()
        a.label("L_codeend")
        return fix(a.lines)

HEADER = open("interleave_layers__compressed_kv_cla__mha_block_cached__decode.s.ref").read().split("; Override launch")[0]

def make(path, **kw):
    body = "\n".join(Gen(**kw).build())
    src = f"""{HEADER}; @launch grid=(256,1,1) block=(256,1,1) lds={LDS_BYTES}
.amdgcn_target "amdgcn-amd-amdhsa--gfx950"
.text
.globl {KNAME}
.p2align 8
.type {KNAME},@function
{KNAME}:
{body}
.section .rodata,"a"
.p2align 6
.amdhsa_kernel {KNAME}
  .amdhsa_next_free_vgpr 512
  .amdhsa_next_free_sgpr 102
  .amdhsa_accum_offset 256
  .amdhsa_group_segment_fixed_size 0
  .amdhsa_kernarg_size 112
  .amdhsa_user_sgpr_count 2
  .amdhsa_user_sgpr_kernarg_segment_ptr 1
  .amdhsa_system_sgpr_workgroup_id_x 1
  .amdhsa_float_denorm_mode_32 3
.end_amdhsa_kernel
"""
    open(path, "w").write(src)

if __name__ == "__main__":
    import argparse
    ap = argparse.ArgumentParser()
    ap.add_argument("-o", default="k.s"); ap.add_argument("--opts", default="")
    x = ap.parse_args()
    kw = {}
    for o in filter(None, x.opts.split(";")):
        k_, v_ = o.split("="); kw[k_] = eval(v_)
    make(x.o, **kw)
```

```python
import sys, struct
from hazard import fix

KNAME = "interleave_layers__compressed_kv_cla__mha_block_cached__decode_kernel"

class Asm:
    def __init__(self): self.lines = []; self.n = 0
    def __call__(self, s):
        for l in s.split("\n"):
            l = l.strip()
            if l: self.lines.append(l)
    def label(self, name): self.lines.append(name + ":")
    def newlabel(self, base="L"):
        self.n += 1; return f"{base}_{self.n}"

def vr(b, n=1): return f"v{b}" if n == 1 else f"v[{b}:{b+n-1}]"
def ar(b, n=1): return f"a{b}" if n == 1 else f"a[{b}:{b+n-1}]"
DPPALL = "row_mask:0xf bank_mask:0xf"
def f32hex(x): return "0x%08x" % struct.unpack("<I", struct.pack("<f", x))[0]

O_XCC  = 0x001000
O_STAMP = 0x080000
O_QP   = 0x100000
O_ROW  = 0x180000
O_COL  = 0x1C0000
O_QABS = 0x200000
O_ML1  = 0x210000
O_C2   = 0x240000
O_ML2  = 0x2C0000
O_C1   = 0x300000

L_VL  = 0
L_CKV = 65536
L_R0  = 131072
WOSTR = 5184
L_ST  = 151808
L_RED = 156160
RSTR  = 1056
L_U   = 160384
LDS_BYTES = 163840

sH, sJ, sW, sL, sAct = 3, 4, 5, 6, 7
SRD_WS, SRD_K, SRD_V, SRD_A, SRD_B = 8, 12, 16, 20, 24
sSPC, sRET = 28, 30
sT = [32, 33, 34, 35]
sSel = [36, 37, 38, 39]
pWqA, pWqB, pWuk, pWuv, pWoA, pWoB, pCkv, pOut, pX = 40, 42, 44, 46, 48, 50, 52, 54, 56
sCol = 58
sGA, sS = 59, 60
sSO = 61
sSpin = 62
sPos = 63
sFF = 64
sTmp = list(range(65, 70))
sMask = [76, 78, 80, 82]
sM5 = 84
sDbg = 86
sErr = 88
sLocal = 89
sA, sB_ = 90, 91
sTs = 92
sXG, sI, sSc, sXcc = 98, 99, 100, 101
sTf = 97
sDW, sRET2, sYoung, sVm, sVm2, sDl = 70, 72, 74, 75, 94, 95
sBud = 57
sC1 = 56
sCap = 0

vL16, vM, vT, vX, vWoff, vKoff, vVoff, vRedW = 0, [1, 2, 3, 4], 5, 6, 7, 8, 9, 10
vT0 = 11
vCk = 11
vWo = 13
WQ, WUK, WUV, VTR, VRES = 76, 60, 80, 64, 96
AT = 44

SC = (128 ** -0.5) * 1.4426950408889634
SPIN_MAX = 1 << 16
W = f"s[{SRD_WS}:{SRD_WS+3}]"

class Gen:
    def __init__(self, kblk=8, stream_mode="co", stop_after=None, local=True, stamps="", pol="nt", wpol="", cpol="", codepf=True,
                 qkcalls=(4, 10), sent=True, nopf=False, once=True, xcalls=(), dlim=6, keep=6, addn=True, pretouch=True, mlsent=True, slp=0, sent1=False, pfnew=True, mltail=True, dsite=None, pre=None, rsl=None, dq=None, dbg=None, bud=None, skipfin=True, vsplit=True, woqk=True, split2=True, c1touch=True, c1sc1=False, c1touch2=None, smf=True, cap=None, pre1=None, burst=None, c1bf=True, opt1=True, latepf=False, tus=0, tusl=0):
        self.tus = tus; self.tusl = tusl
        self.latepf = latepf
        self.opt1 = opt1
        self.c1bf = c1bf
        self.burstn = burst or {}
        self.pre1 = pre1
        self.cap = cap
        self.smf = smf
        self.c1touch = c1touch; self.c1sc1 = c1sc1; self.c1touch2 = c1touch2
        self.split2 = split2
        self.woqk = woqk
        self.skipfin = skipfin; self.vsplit = vsplit
        self.bud = bud
        self.dbg = dbg
        self.pre = pre or {}; self.rsl = rsl or {}; self.dq = dq
        self.pfnew = pfnew; self.mltail = mltail; self.dsite = dsite or {}
        self.slp = slp; self.sent1 = sent1
        self.addn = addn; self.pretouch = pretouch; self.mlsent = mlsent
        self.once = once; self.xcalls = xcalls; self.dlim = dlim; self.keep = keep
        self.nopf = nopf
        self.a = Asm(); self.kblk = kblk; self.mode = stream_mode; self.stop = stop_after
        self.local = local; self.stamps = stamps; self.pol = pol; self.wpol = wpol; self.cpol = cpol; self.codepf = codepf
        self.qkcalls = qkcalls; self.sent = sent

    def capture(self, fn):
        saved = self.a.lines; self.a.lines = []
        fn()
        out = self.a.lines; self.a.lines = saved
        return out
    def emit(self, lines):
        self.a.lines.extend(lines)
    def srd(self, s, lo, nbytes):
        a = self.a
        a(f"s_mov_b32 s{s}, s{lo}"); a(f"s_mov_b32 s{s+1}, s{lo+1}")
        a(f"s_mov_b32 s{s+2}, {nbytes:#x}"); a(f"s_mov_b32 s{s+3}, 0x20000")
    def exec_all(self): self.a("s_mov_b64 exec, -1")
    def exec_set(self, lo, hi):
        self.a(f"s_mov_b32 exec_lo, {lo:#x}"); self.a(f"s_mov_b32 exec_hi, {hi:#x}")
    def tag(self, regs):
        for i, r in enumerate(regs):
            self.a(f"v_perm_b32 v{r}, v{r}, v{vT}, s{sSel[i%4]}")
    def stamp(self, idx):
        if not self.stamps: return
        if self.stamps == "light" and idx not in (12, 13, 5): return
        a = self.a
        lab = a.newlabel("st")
        a(f"s_cmp_lg_u32 s{sW}, 0"); a(f"s_cbranch_scc1 {lab}")
        a(f"s_memrealtime s[{sTs}:{sTs+1}]")
        a("s_waitcnt lgkmcnt(0)")
        a(f"s_lshl_b32 s96, s2, 2"); a(f"s_add_u32 s96, s96, s{sL}"); a(f"s_lshl_b32 s96, s96, 7")
        a(f"s_add_u32 s96, s96, {O_STAMP + idx*4}")
        a(f"v_mov_b32 v{vT0}, s{sTs}")
        a(f"s_mov_b64 s[{sTs}:{sTs+1}], exec"); a("s_mov_b64 exec, 1")
        a(f"buffer_store_dword v{vT0}, off, {W}, s96")
        a(f"s_mov_b64 exec, s[{sTs}:{sTs+1}]")
        a.label(lab)
    def dbgstamp(self, k, cond_layer=None):
        if not self.dbg or k not in self.dbg: return
        a = self.a
        k = self.dbg.index(k)
        lab = a.newlabel("db")
        a(f"s_cmp_lg_u32 s{sW}, 0"); a(f"s_cbranch_scc1 {lab}")
        a(f"s_cmp_ge_u32 s2, 8"); a(f"s_cbranch_scc1 {lab}")
        if cond_layer is not None:
            a(f"s_cmp_lg_u32 s{sL}, {cond_layer}"); a(f"s_cbranch_scc1 {lab}")
        a(f"s_memrealtime s[{sTs}:{sTs+1}]")
        a("s_waitcnt lgkmcnt(0)")
        a(f"s_mov_b32 s{SRD_A}, s{sDbg}"); a(f"s_mov_b32 s{SRD_A+1}, s{sDbg+1}"); a(f"s_mov_b32 s{SRD_A+2}, 256"); a(f"s_mov_b32 s{SRD_A+3}, 0x20000")
        a(f"s_lshl_b32 s96, s2, 3"); a(f"s_add_u32 s96, s96, {4*k}")
        a(f"v_mov_b32 v{vT0}, s{sTs}")
        a(f"s_mov_b64 s[{sTs}:{sTs+1}], exec"); a("s_mov_b64 exec, 1")
        a(f"buffer_store_dword v{vT0}, off, s[{SRD_A}:{SRD_A+3}], s96")
        a(f"s_mov_b64 exec, s[{sTs}:{sTs+1}]")
        a.label(lab)
    def stampval(self, idx, sreg):
        if self.stamps != "full": return
        a = self.a
        lab = a.newlabel("sv")
        a(f"s_cmp_lg_u32 s{sW}, 0"); a(f"s_cbranch_scc1 {lab}")
        a(f"s_lshl_b32 s96, s2, 2"); a(f"s_add_u32 s96, s96, s{sL}"); a(f"s_lshl_b32 s96, s96, 7")
        a(f"s_add_u32 s96, s96, {O_STAMP + idx*4}")
        a(f"v_mov_b32 v{vT0}, s{sreg}")
        a(f"s_mov_b64 s[{sTs}:{sTs+1}], exec"); a("s_mov_b64 exec, 1")
        a(f"buffer_store_dword v{vT0}, off, {W}, s96")
        a(f"s_mov_b64 exec, s[{sTs}:{sTs+1}]")
        a.label(lab)
    def stream_call(self):
        self.a(f"s_swappc_b64 s[{sRET}:{sRET+1}], s[{sSPC}:{sSPC+1}]")
    def maybe_stream(self):
        a = self.a
        lab = a.newlabel("ns")
        a(f"s_cmp_eq_u32 s{sAct}, 0"); a(f"s_cbranch_scc1 {lab}")
        self.stream_call()
        a.label(lab)
    def read_vm(self):
        a = self.a
        a(f"s_getreg_b32 s{sVm}, hwreg(HW_REG_IB_STS)")
        a(f"s_bfe_u32 s{sVm2}, s{sVm}, 0x20016"); a(f"s_and_b32 s{sVm}, s{sVm}, 15")
        a(f"s_lshl4_add_u32 s{sVm}, s{sVm2}, s{sVm}")
    def dw_sub(self):
        a = self.a
        a.label("L_dw")
        self.read_vm()
        a(f"s_cmp_le_u32 s{sVm}, s{sYoung}"); a("s_cbranch_scc1 L_dwret")
        a(f"s_cmp_ge_u32 s{sVm}, s{sDl}"); a("s_cbranch_scc1 L_dw")
        a(f"s_cmp_eq_u32 s{sAct}, 0"); a("s_cbranch_scc1 L_dw")
        if self.cap is not None:
            a(f"s_cmp_ge_u32 s{sPos}, s{sCap}"); a("s_cbranch_scc1 L_dw")
        if self.bud is not None:
            a(f"s_cmp_le_i32 s{sBud}, 0"); a("s_cbranch_scc1 L_dw")
            a(f"s_sub_u32 s{sBud}, s{sBud}, {self.kblk}")
        self.stream_call()
        a(f"s_add_u32 s{sYoung}, s{sYoung}, {self.kblk}")
        a("s_branch L_dw")
        a.label("L_dwret")
        a(f"s_setpc_b64 s[{sRET2}:{sRET2+1}]")
    def dwait(self, young, n=0, site=None):
        dl = self.dsite.get(site, self.dlim)
        a = self.a
        if self.mode != "co":
            a(f"s_waitcnt vmcnt({young})"); return
        ns = a.newlabel("dwn"); jn = a.newlabel("dwj")
        a(f"s_cmp_eq_u32 s{sAct}, 0"); a(f"s_cbranch_scc1 {ns}")
        a(f"s_mov_b32 s{sYoung}, {young}"); a(f"s_mov_b32 s{sDl}, {dl + n if dl else 0}")
        if self.cap is not None: a(f"s_mov_b32 s{sCap}, {self.cap.get(site, 999)}")
        a(f"s_swappc_b64 s[{sRET2}:{sRET2+1}], s[{sDW}:{sDW+1}]")
        a(f"s_branch {jn}")
        a.label(ns)
        a(f"s_waitcnt vmcnt({young})")
        a.label(jn)
    def tu(self):
        if self.tus: self.topup(self.tus, site='tu')
    def burst(self, site):
        n = self.burstn.get(site, 0)
        if self.mode != "co" or not n: return
        a = self.a
        lab = a.newlabel("bu")
        for i in range(n // self.kblk):
            a(f"s_cmp_eq_u32 s{sAct}, 0"); a(f"s_cbranch_scc1 {lab}")
            self.stream_call()
        a.label(lab)
    def topup(self, depth=None, site=None):
        if self.mode != "co": return
        depth = self.dlim if depth is None else depth
        capv = self.cap.get(site) if self.cap else None
        a = self.a
        lab = a.newlabel("tu")
        a(f"s_cmp_eq_u32 s{sAct}, 0"); a(f"s_cbranch_scc1 {lab}")
        self.read_vm()
        a(f"s_cmp_ge_u32 s{sVm}, {depth}"); a(f"s_cbranch_scc1 {lab}")
        if capv: a(f"s_cmp_ge_u32 s{sPos}, {capv}"); a(f"s_cbranch_scc1 {lab}")
        self.stream_call()
        a.label(lab)
    def drain(self, keep):
        a = self.a
        l0 = a.newlabel("drain"); l1 = a.newlabel("drained")
        a.label(l0)
        a(f"s_cmp_eq_u32 s{sAct}, 0"); a(f"s_cbranch_scc1 {l1}")
        self.stream_call()
        a(f"s_waitcnt vmcnt({keep})")
        a(f"s_branch {l0}")
        a.label(l1)

    def predelay(self, site):
        a = self.a
        p0 = self.pre.get(site, 0)
        p1 = self.pre1.get(site, p0) if self.pre1 is not None else p0
        if p0 == p1:
            if p0: a(f"s_sleep {p0}")
            return
        l0 = a.newlabel("pd"); l1 = a.newlabel("pd")
        a(f"s_cmp_ge_u32 s{sL}, 2"); a(f"s_cbranch_scc1 {l0}")
        if p1 and self.tusl:
            n = max(1, p1 // self.tusl)
            for _ in range(n):
                self.tu(); a(f"s_sleep {self.tusl}")
        elif p1: a(f"s_sleep {p1}")
        a(f"s_branch {l1}")
        a.label(l0)
        if p0: a(f"s_sleep {p0}")
        a.label(l1)

    def poll(self, issue, regs, execmask=None, stream=True, site=None):
        a = self.a
        lp = a.newlabel("poll"); ns = a.newlabel("pns"); jn = a.newlabel("pj"); dn = a.newlabel("pdone")
        a(f"s_mov_b32 s{sSpin}, 0")
        if self.bud is not None: a(f"s_mov_b32 s{sBud}, {self.bud.get(site, self.bud.get('*', 8))}")
        self.predelay(site)
        if execmask: self.exec_set(*execmask)
        a.label(lp)
        issue()
        if execmask and self.mode == "co": self.exec_all()
        self.dwait(0, len(regs) if self.addn else 0, site)
        if execmask and self.mode == "co": self.exec_set(*execmask)
        a.label(jn)
        acc, acc2 = vT0, vT0 + 1
        dw = [g + i for g in regs for i in range(4)]
        for k, r in enumerate(dw): a(f"v_xor_b32 v{r}, s{sT[k % 4]}, v{r}")
        a(f"v_or3_b32 v{acc}, v{dw[0]}, v{dw[1]}, v{dw[2]}")
        if len(dw) == 4:
            a(f"v_or_b32 v{acc}, v{acc}, v{dw[3]}")
        else:
            a(f"v_or3_b32 v{acc2}, v{dw[3]}, v{dw[4]}, v{dw[5]}")
            k = 6; tog = 0
            while k < len(dw):
                tgt = acc if tog == 0 else acc2
                a(f"v_or3_b32 v{tgt}, v{tgt}, v{dw[k]}, v{dw[k+1]}"); k += 2
                tog ^= 1
            a(f"v_or_b32 v{acc}, v{acc}, v{acc2}")
        a(f"v_and_b32 v{acc}, s{sFF}, v{acc}")
        a(f"v_cmp_ne_u32 vcc, 0, v{acc}")
        a(f"s_cbranch_vccz {dn}")
        if self.rsl.get(site): a(f"s_sleep {self.rsl[site]}")
        if self.slp:
            lz = a.newlabel("nsl")
            a(f"s_cmp_eq_u32 s{sAct}, 0"); a(f"s_cbranch_scc1 {lz}")
            a(f"s_sleep {self.slp}")
            a.label(lz)
        a(f"s_add_u32 s{sSpin}, s{sSpin}, 1")
        a(f"s_cmp_lt_u32 s{sSpin}, {SPIN_MAX}")
        a(f"s_cbranch_scc1 {lp}")
        a(f"s_mov_b32 s{sErr}, 1")
        a.label(dn)
        if execmask: self.exec_all()

    def dpp_steps(self, regs, op, steps):
        for d in steps:
            for r in regs:
                if d == "b15": self.a(f"{op}_dpp v{r}, v{r}, v{r} row_bcast:15 row_mask:0xa bank_mask:0xf")
                elif d == "b31": self.a(f"{op}_dpp v{r}, v{r}, v{r} row_bcast:31 row_mask:0xc bank_mask:0xf")
                else: self.a(f"{op}_dpp v{r}, v{r}, v{r} {d} {DPPALL}")
    X1, X2, HM, RM = "quad_perm:[1,0,3,2]", "quad_perm:[2,3,0,1]", "row_half_mirror", "row_mirror"
    def reduce63(self, regs, op):
        self.dpp_steps(regs, op, [self.X1, self.X2, self.HM, self.RM, "b15", "b31"])

    def treduce(self, r):
        a = self.a
        a(f"v_permlane32_swap_b32 v{r[0]}, v{r[2]}")
        a(f"v_permlane32_swap_b32 v{r[1]}, v{r[3]}")
        a(f"v_add_f32 v{r[0]}, v{r[0]}, v{r[2]}")
        a(f"v_add_f32 v{r[1]}, v{r[1]}, v{r[3]}")
        a(f"v_permlane16_swap_b32 v{r[0]}, v{r[1]}")
        a(f"v_add_f32 v{r[0]}, v{r[0]}, v{r[1]}")

    def pv_gemv(self, Xp, nload, bop, D, Abuf):
        a = self.a
        def build(i):
            A = Abuf + 4 * (i % 2)
            for r in range(4):
                a(f"v_and_b32_dpp v{A+r}, v{Xp}, v{vM[r]} row_newbcast:{i} {DPPALL}")
        build(0)
        if nload > 1: build(1)
        for i in range(nload):
            A = Abuf + 4 * (i % 2)
            c = "0" if i == 0 else vr(D, 4)
            a(f"v_mfma_f32_16x16x32_bf16 {vr(D,4)}, {vr(A,4)}, {bop(i)}, {c}")
            if i + 2 < nload: build(i + 2)

    def smf_consts(self, N0, N1, IDX, t):
        a = self.a
        a(f"v_bfe_u32 v{t}, v{vL16}, 4, 4")
        a(f"v_and_b32 v{IDX}, 3, v{t}"); a(f"v_mul_u32_u24 v{IDX}, 0x1111, v{IDX}")
        a(f"v_lshrrev_b32 v{t}, 2, v{t}")
        a(f"v_cmp_eq_u32 vcc, 0, v{t}"); a(f"v_mov_b32 v{N1}, 0xffff"); a(f"v_cndmask_b32 v{N0}, 0, v{N1}, vcc")
        a(f"v_cmp_eq_u32 vcc, 1, v{t}"); a(f"v_cndmask_b32 v{N1}, 0, v{N1}, vcc")
    def pv_gemv_smf(self, Xp, npair, bop, D, Abuf, N0, N1, IDX):
        a = self.a
        def build(i):
            A = Abuf + 4 * (i % 2)
            a(f"v_and_b32_dpp v{A}, v{Xp}, v{N0} row_newbcast:{2*i} {DPPALL}")
            a(f"v_and_b32_dpp v{A+1}, v{Xp}, v{N1} row_newbcast:{2*i} {DPPALL}")
            a(f"v_and_b32_dpp v{A+2}, v{Xp}, v{N0} row_newbcast:{2*i+1} {DPPALL}")
            a(f"v_and_b32_dpp v{A+3}, v{Xp}, v{N1} row_newbcast:{2*i+1} {DPPALL}")
        for r in range(4): a(f"v_mov_b32 v{D+r}, 0")
        build(0)
        if npair > 1: build(1)
        for i in range(npair):
            A = Abuf + 4 * (i % 2)
            a(f"v_smfmac_f32_16x16x64_bf16 {vr(D,4)}, {vr(A,4)}, {bop(i)}, v{IDX}")
            if i + 2 < npair: build(i + 2)

    def red_write(self, D, off=0):
        a = self.a
        a("s_mov_b32 exec_hi, 1")
        a(f"ds_write_b128 v{vRedW}, {vr(D,4)} offset:{off}")
        a("s_mov_b32 exec_hi, -1")
    def red_final_read(self, G, off=0):
        a = self.a
        a(f"v_add_u32 v{vT0}, {L_RED}, v{vL16}")
        for w in range(4):
            a(f"ds_read_b128 {vr(G+4*w,4)}, v{vT0} offset:{w*RSTR+off}")
    def sum4(self, G):
        a = self.a
        for r in range(4):
            a(f"v_add_f32 v{G+r}, v{G+r}, v{G+4+r}")
            a(f"v_add_f32 v{G+8+r}, v{G+8+r}, v{G+12+r}")
        for r in range(4):
            a(f"v_add_f32 v{G+r}, v{G+r}, v{G+8+r}")

    def local_stores(self, items):
        a = self.a
        def emit(flag):
            for (data, vaddr, soff, pre) in items:
                if pre: pre()
                a(f"buffer_store_dwordx4 {vr(data,4)}, v{vaddr}, {W}, s{soff} offen {flag}")
        if self.local:
            l0 = a.newlabel("ls"); l1 = a.newlabel("ls")
            a(f"s_cmp_eq_u32 s{sLocal}, 0"); a(f"s_cbranch_scc1 {l0}")
            emit("")
            a(f"s_branch {l1}")
            a.label(l0)
            emit("sc1")
            a.label(l1)
        else:
            emit("sc1")

    def next_tag(self):
        a = self.a
        a(f"s_mul_i32 s{sTf}, s{sTf}, 0x9E3779B1"); a(f"s_add_u32 s{sTf}, s{sTf}, 0x7F4A7C15")
        a(f"v_mov_b32 v{vT}, s{sTf}")
        a(f"s_and_b32 s{sT[0]}, s{sTf}, 0xff"); a(f"s_bfe_u32 s{sT[1]}, s{sTf}, 0x80008")
        a(f"s_bfe_u32 s{sT[2]}, s{sTf}, 0x80010"); a(f"s_lshr_b32 s{sT[3]}, s{sTf}, 24")

    def pf_guard(self, fn, lmin=2):
        if not self.nopf: return fn()
        a = self.a; l = a.newlabel("npf")
        a(f"s_cmp_ge_u32 s{sL}, {lmin}"); a(f"s_cbranch_scc1 {l}")
        fn()
        a.label(l)
    def load_wq(self):
        self.pf_guard(self.load_wq_)
    def load_wq_(self):
        a = self.a
        l0 = a.newlabel("wq"); l1 = a.newlabel("wq")
        a(f"s_bitcmp1_b32 s{sL}, 0"); a(f"s_cbranch_scc1 {l0}")
        a(f"s_mov_b32 s{SRD_A}, s{pWqA}"); a(f"s_mov_b32 s{SRD_A+1}, s{pWqA+1}"); a(f"s_branch {l1}")
        a.label(l0)
        a(f"s_mov_b32 s{SRD_A}, s{pWqB}"); a(f"s_mov_b32 s{SRD_A+1}, s{pWqB+1}")
        a.label(l1)
        a(f"s_mov_b32 s{SRD_A+2}, {19*8192+256}"); a(f"s_mov_b32 s{SRD_A+3}, 0x20000")
        for i in range(5):
            a(f"s_mov_b32 s{sTmp[0]}, {i*32768}")
            a(f"buffer_load_dwordx4 {vr(WQ+4*i,4)}, v{vWoff}, s[{SRD_A}:{SRD_A+3}], s{sTmp[0]} offen {self.wpol}")
    def load_wuk(self):
        self.pf_guard(self.load_wuk_)
    def load_wuk_(self):
        a = self.a
        self.srd(SRD_A, pWuk, 15*8192+256)
        t = vT0
        a(f"v_lshrrev_b32 v{t}, 8, v{vKoff}"); a(f"v_lshlrev_b32 v{t}, 13, v{t}")
        a(f"v_and_b32 v{t+1}, s{sFF}, v{vKoff}"); a(f"v_or_b32 v{t}, v{t}, v{t+1}")
        for i in range(4):
            a(f"s_mov_b32 s{sTmp[0]}, {i*32768}")
            a(f"buffer_load_dwordx4 {vr(WUK+4*i,4)}, v{t}, s[{SRD_A}:{SRD_A+3}], s{sTmp[0]} offen {self.wpol}")
    def load_wuv(self):
        self.pf_guard(self.load_wuv_)
    def load_wuv_(self):
        a = self.a
        self.srd(SRD_A, pWuv, 15*8192+256)
        for i in range(4):
            a(f"s_mov_b32 s{sTmp[0]}, {i*32768}")
            a(f"buffer_load_dwordx4 {vr(WUV+4*i,4)}, v{vWoff}, s[{SRD_A}:{SRD_A+3}], s{sTmp[0]} offen {self.wpol}")
    def wo_setup(self, p):
        a = self.a
        self.srd(SRD_A, p, 31*1280+160)
        a(f"s_mul_i32 s{sTmp[1]}, s{sW}, {WOSTR}"); a(f"s_add_u32 s{sTmp[1]}, s{sTmp[1]}, {L_R0}")
    def wo_one(self, i):
        a = self.a
        r0 = 6 * i if i < 5 else 26
        a(f"s_add_u32 m0, s{sTmp[1]}, {r0*160}")
        a(f"s_mov_b32 s{sTmp[0]}, {r0*1280}")
        a(f"buffer_load_dwordx4 v{vWo}, s[{SRD_A}:{SRD_A+3}], s{sTmp[0]} offen {self.wpol} lds")
    def load_wo(self, p):
        def f():
            self.wo_setup(p)
            for i in range(6): self.wo_one(i)
        self.pf_guard(f)
    def ckv_one(self, kk):
        a = self.a
        f = (kk & 8) | ((kk & 3) << 1) | ((kk >> 2) & 1)
        a(f"v_xor_b32 v{vCk}, {f*16}, v{vL16}")
        a(f"s_lshl_b32 s{sSO}, s{sW}, 14"); a(f"s_add_u32 m0, s{sSO}, {L_CKV + kk*1024}")
        a(f"s_mov_b32 s{sSO}, {kk*1024}")
        a(f"buffer_load_dwordx4 v{vCk}, s[{SRD_B}:{SRD_B+3}], s{sSO} offen {self.cpol} lds")
    def voff(self, u):
        return (u & 1) * 2048 + (u >> 1) * 512 if self.smf else u * 256
    def vtr_reg(self, b, u):
        if self.vsplit: return (60 if b == 14 else 80) + 4 * u
        return VTR + (b - 14) * 16 + 4 * u
    def vtr_one(self, k):
        a = self.a
        b, u = 14 + (k >> 2), k & 3
        if u == 0: a(f"s_mov_b32 s{sTmp[2]}, {b*4096}")
        a(f"buffer_load_dwordx4 {vr(self.vtr_reg(b, u),4)}, v{vVoff}, s[{SRD_V}:{SRD_V+3}], s{sTmp[2]} offen offset:{self.voff(u)} {self.pol}")

    def prologue(self):
        a = self.a
        a("s_cmp_ge_u32 s2, 256"); a("s_cbranch_scc1 L_end")
        a("s_load_dwordx4 s[64:67], s[0:1], 0")
        a("s_load_dwordx4 s[68:71], s[0:1], 16")
        a("s_load_dwordx4 s[72:75], s[0:1], 32")
        a("s_load_dwordx4 s[76:79], s[0:1], 56")
        a("s_load_dwordx4 s[80:83], s[0:1], 72")
        a("s_load_dwordx4 s[84:87], s[0:1], 88")
        a("s_load_dwordx2 s[8:9], s[0:1], 104")
        a(f"v_lshrrev_b32 v20, 6, v0")
        a(f"v_and_b32 v21, 63, v0")
        a(f"v_readfirstlane_b32 s{sW}, v20")
        a(f"s_and_b32 s{sH}, s2, 31"); a(f"s_lshr_b32 s{sJ}, s2, 5")
        a(f"s_and_b32 s{sXG}, s2, 7"); a(f"s_lshr_b32 s{sI}, s2, 3")
        a(f"s_and_b32 s{sGA}, s{sI}, 1")
        a(f"s_lshr_b32 s{sS}, s{sI}, 1"); a(f"s_lshl_b32 s92, s{sXG}, 4"); a(f"s_add_u32 s{sS}, s{sS}, s92")
        a(f"v_lshlrev_b32 v{vL16}, 4, v21")
        if self.codepf:
            lc = a.newlabel("cpf")
            a(f"s_cmp_lg_u32 s{sW}, 3"); a(f"s_cbranch_scc1 {lc}")
            a("s_getpc_b64 s[20:21]")
            a.label("L_pcx")
            a("s_mov_b32 s22, L_codeend-L_pcx"); a("s_mov_b32 s23, 0x20000")
            a("v_lshlrev_b32 v22, 6, v21")
            self.ncode = 7
            for i in range(self.ncode):
                a(f"s_mov_b32 s92, {i*4096}")
                a(f"buffer_load_dword v23, v22, s[20:23], s92 offen")
            a.label(lc)
        a("v_and_b32 v22, 15, v21")
        a("v_lshrrev_b32 v23, 4, v21") if not self.codepf else a("v_lshrrev_b32 v19, 4, v21")
        g = 23 if not self.codepf else 19
        a(f"v_lshlrev_b32 v24, 4, v22")
        a(f"v_lshl_add_u32 v{vWoff}, v{g}, 13, v24")
        if self.smf:
            a(f"v_lshrrev_b32 v25, 1, v{g}"); a(f"v_and_b32 v26, 1, v{g}"); a(f"v_lshl_add_u32 v25, v25, 2, v26")
            a(f"v_lshl_add_u32 v{vVoff}, v25, 8, v24")
        else:
            a(f"v_lshl_add_u32 v{vVoff}, v{g}, 10, v24")
        a(f"v_and_b32 v25, 3, v22"); a(f"v_lshl_add_u32 v25, v{g}, 2, v25"); a("v_lshlrev_b32 v25, 4, v25")
        a("v_lshrrev_b32 v26, 2, v22"); a(f"v_lshl_add_u32 v{vKoff}, v26, 8, v25")
        a("v_and_b32 v25, 1, v22"); a("v_cmp_eq_u32 vcc, 1, v25")
        a("v_mov_b32 v26, 0xffff"); a("v_mov_b32 v27, 0xffff0000"); a("v_cndmask_b32 v26, v26, v27, vcc")
        a("v_lshrrev_b32 v25, 1, v22")
        for r in range(4):
            a(f"v_cmp_eq_u32 vcc, {r}, v25"); a(f"v_cndmask_b32 v{vM[r]}, 0, v26, vcc")
        a(f"v_lshl_add_u32 v25, v22, 1, v{g}"); a("v_lshlrev_b32 v25, 4, v25")
        a("v_cmp_gt_u32 vcc, 32, v21"); a("v_mov_b32 v26, 512"); a("v_cndmask_b32 v25, v26, v25, vcc")
        a(f"s_mul_i32 s92, s{sW}, {RSTR}"); a(f"s_add_u32 s92, s92, {L_RED}"); a(f"v_add_u32 v{vRedW}, s92, v25")
        a(f"v_mul_u32_u24 v25, 6554, v21"); a(f"v_lshrrev_b32 v25, 16, v25")
        a(f"v_mul_u32_u24 v26, 10, v25"); a(f"v_sub_u32 v26, v21, v26")
        a(f"v_mul_u32_u24 v25, 1280, v25"); a(f"v_lshl_add_u32 v{vWo}, v26, 4, v25")
        a("s_waitcnt lgkmcnt(0)")
        a(f"s_mov_b32 s{SRD_WS+2}, 0x10000000"); a(f"s_mov_b32 s{SRD_WS+3}, 0x20000")
        if self.stamps:
            a(f"s_mov_b32 s{sL}, 0")
            self.stamp(12)
        self.dbgstamp("entry")
        a("v_mov_b32 v28, 0")
        a(f"buffer_load_dword v{vT}, v28, {W}, 0 offen sc1")
        a(f"s_mov_b32 s{pX}, s64"); a(f"s_mov_b32 s{pX+1}, s65")
        self.srd(SRD_B, pX, 1280)
        a(f"s_mul_i32 s92, s{sJ}, 80"); a(f"s_mul_i32 s93, s{sW}, 20"); a("s_add_u32 s92, s92, s93")
        a(f"v_lshl_add_u32 v25, v22, 2, v{g}"); a("v_add_u32 v25, s92, v25"); a("v_lshlrev_b32 v29, 1, v25")
        a(f"s_mov_b32 s94, 0x001f001f"); a(f"s_mov_b32 s95, 0x001f001f")
        a(f"v_mov_b32 v{vX}, 0")
        a("s_mov_b64 exec, s[94:95]")
        a(f"buffer_load_ushort v{vX}, v29, s[{SRD_B}:{SRD_B+3}], 0 offen")
        self.exec_all()
        def addp(dst, src, terms):
            a(f"s_mov_b32 s92, 0")
            for (sreg, c) in terms:
                a(f"s_mul_i32 s93, s{sreg}, {c}"); a("s_add_u32 s92, s92, s93")
            a(f"s_add_u32 s{dst}, s{src}, s92"); a(f"s_addc_u32 s{dst+1}, s{src+1}, 0")
        addp(pWqA, 68, [(sJ, 80*8192), (sW, 20*8192), (sH, 256)])
        a(f"s_mov_b32 s{sL}, 0")
        self.load_wq()
        addp(pWuk, 70, [(sJ, 64*8192), (sW, 16*8192), (sH, 256)])
        a(f"s_mov_b32 s{sFF}, 0xff")
        self.load_wuk()
        addp(pCkv, 66, [(sS, 65536), (sW, 16384)])
        addp(pWqB, 80, [(sJ, 80*8192), (sW, 20*8192), (sH, 256)])
        addp(pWuv, 72, [(sJ, 64*8192), (sW, 16*8192), (sH, 256)])
        addp(pWoA, 74, [(sH, 163840), (sW, 32*1280), (sJ, 160)])
        addp(pWoB, 82, [(sH, 163840), (sW, 32*1280), (sJ, 160)])
        addp(SRD_K, 76, [(sH, 2097152), (sJ, 262144), (sW, 65536)])
        addp(SRD_V, 78, [(sH, 2097152), (sJ, 262144), (sW, 65536)])
        a(f"s_mov_b32 s{SRD_K+2}, 65536"); a(f"s_mov_b32 s{SRD_K+3}, 0x20000")
        a(f"s_mov_b32 s{SRD_V+2}, 65536"); a(f"s_mov_b32 s{SRD_V+3}, 0x20000")
        a(f"s_mov_b32 s{pOut}, s84"); a(f"s_mov_b32 s{pOut+1}, s85")
        self.srd(SRD_B, pCkv, 16384)
        if self.pretouch:
            a(f"s_lshl_b32 s92, s2, 13"); a(f"s_lshl_b32 s93, s{sW}, 11"); a("s_add_u32 s92, s92, s93"); a(f"s_add_u32 s92, s92, {O_QP}")
            a(f"buffer_load_dwordx4 v[48:51], v{vL16}, {W}, s92 offen")
            a(f"buffer_load_dwordx4 v[48:51], v{vL16}, {W}, s92 offen offset:1024")
        a(f"s_mov_b32 s{sErr}, 0"); a(f"s_mov_b32 s{sLocal}, 0")
        a(f"s_mov_b32 s{sM5}, 0x001f001f"); a(f"s_mov_b32 s{sM5+1}, 0x001f001f")
        for i in range(4): a(f"s_mov_b32 s{sSel[i]}, {0x07060500+i:#x}")
        for t in range(4):
            a(f"s_mov_b32 s{sMask[t]}, {(0x000f000f << (4*t)):#x}"); a(f"s_mov_b32 s{sMask[t]+1}, {(0x000f000f << (4*t)):#x}")
        a(f"s_lshl_b32 s92, s{sXG}, 5"); a(f"s_add_u32 s92, s92, s{sI}"); a(f"s_lshl_b32 s92, s92, 2"); a(f"s_add_u32 s92, s92, s{sW}")
        a(f"s_lshl_b32 s92, s92, {12 if self.c1bf else 13}"); a(f"s_add_u32 s{sC1}, s92, {O_C1}")
        a(f"s_getpc_b64 s[{sSPC}:{sSPC+1}]")
        a.label("L_pc0")
        a(f"s_add_u32 s{sSPC}, s{sSPC}, L_stream-L_pc0"); a(f"s_addc_u32 s{sSPC+1}, s{sSPC+1}, 0")
        a(f"s_mov_b32 s{sAct}, 1"); a(f"s_mov_b32 s{sPos}, 0")
        a(f"s_mov_b32 s{sCol}, {O_COL:#x}")
        a(f"s_getreg_b32 s{sXcc}, hwreg(HW_REG_XCC_ID)"); a(f"s_and_b32 s{sXcc}, s{sXcc}, 0xf"); a(f"s_add_u32 s{sXcc}, s{sXcc}, 1"); a(f"s_lshl_b32 s{sXcc}, s{sXcc}, 8")
        a(f"s_getpc_b64 s[{sDW}:{sDW+1}]")
        a.label("L_pc1")
        a(f"s_add_u32 s{sDW}, s{sDW}, L_dw-L_pc1"); a(f"s_addc_u32 s{sDW+1}, s{sDW+1}, 0")
        if self.bud is not None: a(f"s_mov_b32 s{sBud}, {self.bud.get('pro', self.bud.get('*', 8))}")
        self.dwait(6 if self.pretouch else 4, 0, 'pro')
        a(f"v_readfirstlane_b32 s{sTf}, v{vT}")
        self.next_tag()
        a(f"v_lshlrev_b32 v{vX}, 16, v{vX}")
        if self.local:
            lx = a.newlabel("xp")
            a(f"s_cmp_lg_u32 s{sW}, 0"); a(f"s_cbranch_scc1 {lx}")
            for r in range(4): a(f"v_mov_b32 v{16+r}, s{sXcc}")
            self.tag([16, 17, 18, 19])
            a(f"s_lshl_b32 s92, s{sXG}, 9"); a(f"s_lshl_b32 s93, s{sI}, 4"); a("s_add_u32 s92, s92, s93"); a(f"s_add_u32 s92, s92, {O_XCC}")
            a("v_mov_b32 v20, 0")
            a("s_mov_b64 exec, 1")
            a(f"buffer_store_dwordx4 v[16:19], v20, {W}, s92 offen sc1")
            self.exec_all()
            a.label(lx)
        if self.opt1: self.prep_q()
        if self.mode == "first":
            self.drain(16)

    @property
    def NT(self): return 2
    @property
    def NLOADS(self): return 136 + (self.NT if self.c1touch else 0)
    @property
    def KEND(self): return 80 + (self.NT if self.c1touch else 0)
    def first_block(self):
        r = self.NLOADS % self.kblk
        return r if r else self.kblk
    def stream(self):
        a = self.a
        loads = [("C", i) for i in range(16)] + ([("T", i) for i in range(self.NT)] if self.c1touch else []) + [("K", i) for i in range(64)]
        loads += [("V", b, u) for b in range(10) for u in range(4)]
        loads += [("L", b, u) for b in range(10, 14) for u in range(4)]
        k = self.kblk
        assert len(loads) == self.NLOADS and len(loads) % k == 0, "the dynamic wait counts kblk loads per block"
        a.label("L_stream")
        starts = [0] + list(range(self.first_block(), len(loads), k))
        for bn, bi in enumerate(starts):
            be = starts[bn+1] if bn + 1 < len(starts) else len(loads)
            last_so = None
            for ld in loads[bi:be]:
                if ld[0] == "C":
                    self.ckv_one(ld[1]); last_so = None
                elif ld[0] == "T":
                    i = ld[1]; last_so = None
                    a(f"v_lshlrev_b32 v{vCk}, 2, v{vL16}")
                    if self.c1bf:
                        a(f"s_add_u32 s{sSO}, s{sC1}, {i * 32}")
                    else:
                        a(f"s_add_u32 s{sSO}, s{sC1}, {i * 4096}")
                    a(f"buffer_load_dword v255, v{vCk}, {W}, s{sSO} offen")
                elif ld[0] == "K":
                    i = ld[1]; so = (i >> 2) * 4096
                    if so != last_so: a(f"s_mov_b32 s{sSO}, {so}"); last_so = so
                    a(f"buffer_load_dwordx4 {ar(4*i,4)}, v{vKoff}, s[{SRD_K}:{SRD_K+3}], s{sSO} offen offset:{(i&3)*1024} {self.pol}")
                elif ld[0] == "V":
                    _, b, u = ld; so = b * 4096
                    if so != last_so: a(f"s_mov_b32 s{sSO}, {so}"); last_so = so
                    a(f"buffer_load_dwordx4 {vr(VRES+16*b+4*u,4)}, v{vVoff}, s[{SRD_V}:{SRD_V+3}], s{sSO} offen offset:{self.voff(u)} {self.pol}")
                else:
                    _, b, u = ld
                    a(f"s_lshl_b32 s{sSO}, s{sW}, 14"); a(f"s_add_u32 m0, s{sSO}, {L_VL + ((b-10)*4+u)*1024}")
                    a(f"s_mov_b32 s{sSO}, {b*4096+self.voff(u)}"); last_so = None
                    a(f"buffer_load_dwordx4 v{vVoff}, s[{SRD_V}:{SRD_V+3}], s{sSO} offen {self.pol} lds")
            a(f"s_add_u32 s{sPos}, s{sPos}, {be-bi}")
            if be >= len(loads): a(f"s_mov_b32 s{sAct}, 0")
            a(f"s_swappc_b64 s[{sSPC}:{sSPC+1}], s[{sRET}:{sRET+1}]")
        a("s_endpgm")

    def prep_q(self):
        a = self.a
        t = 37
        a(f"v_lshrrev_b32 v{t}, 4, v{vL16}")
        a(f"v_and_b32 v38, 1, v{t}"); a(f"v_lshlrev_b32 v38, 4, v38")
        a(f"v_lshrrev_b32 v39, 1, v{t}"); a(f"v_add_u32 v38, v38, v39"); a(f"v_lshlrev_b32 v38, 4, v38")
        a(f"v_cmp_gt_u32 vcc, 32, v{t}"); a(f"v_mov_b32 v39, 512"); a(f"v_cndmask_b32 v{t}, v39, v38, vcc")
        a(f"s_lshl_b32 s{sTmp[4]}, s{sH}, 3"); a(f"s_add_u32 s{sTmp[4]}, s{sTmp[4]}, s{sJ}"); a(f"s_lshl_b32 s{sTmp[4]}, s{sTmp[4]}, 11")
        a(f"s_add_u32 s{sTmp[4]}, s{sTmp[4]}, {O_QP}")

    def qpart(self):
        a = self.a
        self.stamp(0)
        def second():
            if self.split2:
                l0 = a.newlabel("q2w")
                a(f"s_cmp_eq_u32 s{sL}, 0"); a(f"s_cbranch_scc1 {l0}")
                self.second_w()
                a.label(l0)
        if not (self.opt1 and self.latepf): second()
        Xp, S1, S2 = (14, 38, 39) if self.opt1 else (14, 15, 36)
        D, Du, Ab = 16, 20, 24
        a(f"v_cvt_pk_bf16_f32 v{Xp}, v{vX}, v{vX}")
        a(f"v_and_b32 v{S1}, 0xffff0000, v{Xp}")
        a(f"v_mul_f32 v{S2}, v{S1}, v{S1}")
        self.pv_gemv(Xp, 5, lambda i: vr(WQ+4*i, 4), D, Ab)
        self.reduce63([S1, S2], "v_add_f32")
        lu = a.newlabel("nou")
        if self.opt1:
            a("s_mov_b32 exec_hi, 0")
            a(f"ds_write_b128 v{vRedW}, {vr(D,4)}")
            a("s_mov_b32 exec_lo, 0"); a("s_mov_b32 exec_hi, 0x80000000")
            a(f"ds_write_b64 v{vRedW}, {vr(S1,2)}")
            self.exec_all()
        a(f"s_cmp_ge_u32 s{sL}, 2"); a(f"s_cbranch_scc1 {lu}")
        for r in range(4): a(f"v_and_b32 v{32+r}, 0x3f803f80, v{vM[r]}")
        for i in range(5):
            c = "0" if i == 0 else vr(Du, 4)
            a(f"v_mfma_f32_16x16x32_bf16 {vr(Du,4)}, {vr(32,4)}, {vr(WQ+4*i,4)}, {c}")
        self.red_write(Du, 528)
        a.label(lu)
        if self.opt1:
            t = 37
            if self.latepf: second()
        else:
            a(f"v_readlane_b32 s{sA}, v{S1}, 63"); a(f"v_readlane_b32 s{sB_}, v{S2}, 63")
            a(f"v_writelane_b32 v{D}, s{sA}, 32"); a(f"v_writelane_b32 v{D+1}, s{sB_}, 32")
            self.red_write(D)
            t = 14
            a(f"v_lshrrev_b32 v{t}, 4, v{vL16}")
            a(f"v_and_b32 v15, 1, v{t}"); a(f"v_lshlrev_b32 v15, 4, v15")
            a(f"v_lshrrev_b32 v36, 1, v{t}"); a(f"v_add_u32 v15, v15, v36"); a(f"v_lshlrev_b32 v15, 4, v15")
            a(f"v_cmp_gt_u32 vcc, 32, v{t}"); a(f"v_mov_b32 v36, 512"); a(f"v_cndmask_b32 v{t}, v36, v15, vcc")
            a(f"s_lshl_b32 s{sTmp[4]}, s{sH}, 3"); a(f"s_add_u32 s{sTmp[4]}, s{sTmp[4]}, s{sJ}"); a(f"s_lshl_b32 s{sTmp[4]}, s{sTmp[4]}, 11")
            a(f"s_add_u32 s{sTmp[4]}, s{sTmp[4]}, {O_QP}")
        self.tu()
        a("s_waitcnt lgkmcnt(0)"); a("s_barrier")
        lf = a.newlabel("qfin")
        a(f"s_cmp_lg_u32 s{sW}, 0"); a(f"s_cbranch_scc1 {lf}")
        G = 16
        self.red_final_read(G)
        a("s_waitcnt lgkmcnt(0)")
        self.sum4(G); self.tag([G, G+1, G+2, G+3])
        a("s_mov_b32 exec_hi, 1")
        self.local_stores([(G, t, sTmp[4], None)])
        a("s_mov_b32 exec_hi, -1")
        a(f"s_cmp_ge_u32 s{sL}, 2"); a(f"s_cbranch_scc1 {lf}")
        G2 = 40
        self.red_final_read(G2, 528)
        a(f"s_add_u32 s{sTmp[4]}, s{sTmp[4]}, 1024")
        a("s_waitcnt lgkmcnt(0)")
        self.sum4(G2); self.tag([G2, G2+1, G2+2, G2+3])
        a("s_mov_b32 exec_hi, 0")
        self.local_stores([(G2, t, sTmp[4], None)])
        a("s_mov_b32 exec_hi, -1")
        a.label(lf)
        self.stamp(1)
        ad, ad2, adu, adx = 14, 15, 56, 57
        Gq, Gs, Gu, Gx = 16, 32, 36, 52
        a(f"v_lshrrev_b32 v{ad}, 8, v{vKoff}"); a(f"v_lshlrev_b32 v{ad}, 11, v{ad}")
        a(f"v_and_b32 v{ad2}, s{sFF}, v{vKoff}"); a(f"v_or_b32 v{ad}, v{ad}, v{ad2}")
        a(f"v_lshlrev_b32 v{adu}, 1, v{ad2}")
        a(f"v_lshrrev_b32 v{ad2}, 4, v{vL16}"); a(f"v_and_b32 v{ad2}, 7, v{ad2}"); a(f"v_lshlrev_b32 v{ad2}, 11, v{ad2}")
        a(f"s_lshl_b32 s{sTmp[0]}, s{sH}, 14"); a(f"s_add_u32 s{sTmp[0]}, s{sTmp[0]}, {O_QP}")
        a(f"s_add_u32 s{sTmp[1]}, s{sTmp[0]}, 8192")
        def iss_q():
            for i in range(2):
                for hf in range(2):
                    a(f"buffer_load_dwordx4 {vr(Gq+8*i+4*hf,4)}, v{ad}, {W}, s{sTmp[i]} offen offset:{hf*256} sc1")
            a(f"buffer_load_dwordx4 {vr(Gs,4)}, v{ad2}, {W}, s{sTmp[0]} offen offset:512 sc1")
        def iss_u():
            for i in range(2):
                for hf in range(2):
                    a(f"buffer_load_dwordx4 {vr(Gu+8*i+4*hf,4)}, v{ad}, {W}, s{sTmp[i]} offen offset:{1024+hf*256} sc1")
        def iss_x():
            a(f"buffer_load_dwordx4 {vr(Gx,4)}, v{adx}, {W}, s{sTmp[3]} offen sc1")
        U = 36
        l_late = a.newlabel("qlate"); l_j = a.newlabel("qj")
        a(f"s_and_b32 s{sTmp[2]}, s{sL}, 1"); a(f"s_lshl_b32 s{sTmp[2]}, s{sTmp[2]}, 9"); a(f"s_add_u32 s{sTmp[2]}, s{sTmp[2]}, {L_U}")
        a(f"v_add_u32 v{adu}, s{sTmp[2]}, v{adu}")
        a(f"s_cmp_ge_u32 s{sL}, 2"); a(f"s_cbranch_scc1 {l_late}")
        base_regs = [Gq, Gq+4, Gq+8, Gq+12, Gs, Gu, Gu+4, Gu+8, Gu+12]
        if self.local:
            l_one = a.newlabel("qone"); l_u = a.newlabel("qu")
            a(f"s_cmp_eq_u32 s{sL}, 1"); a(f"s_cbranch_scc1 {l_one}")
            a(f"v_and_b32 v{adx}, 0x1f0, v{vL16}")
            a(f"s_lshl_b32 s{sTmp[3]}, s{sXG}, 9"); a(f"s_add_u32 s{sTmp[3]}, s{sTmp[3]}, {O_XCC}")
            self.poll(lambda: (iss_q(), iss_u(), iss_x()), base_regs + [Gx], site='q0')
            a(f"v_cmp_ne_u32 vcc, s{sXcc}, v{Gx}")
            a(f"s_cmp_eq_u64 vcc, 0"); a(f"s_cselect_b32 s{sLocal}, 1, 0")
            a(f"s_branch {l_u}")
            a.label(l_one)
            self.poll(lambda: (iss_q(), iss_u()), base_regs, site='q1')
            a.label(l_u)
        else:
            self.poll(lambda: (iss_q(), iss_u()), base_regs)
        for r in range(8): a(f"v_add_f32 v{Gu+r}, v{Gu+r}, v{Gu+8+r}")
        self.dpp_steps([Gu+r for r in range(8)], "v_add_f32", ["row_ror:4", "row_ror:8"])
        lw = a.newlabel("uw")
        a(f"s_cmp_lg_u32 s{sW}, 0"); a(f"s_cbranch_scc1 {lw}")
        self.exec_set(0x000f000f, 0x000f000f)
        a(f"ds_write_b128 v{adu}, {vr(U,4)}"); a(f"ds_write_b128 v{adu}, {vr(U+4,4)} offset:16")
        self.exec_all()
        a.label(lw)
        a(f"s_branch {l_j}")
        a.label(l_late)
        a(f"ds_read_b128 {vr(U,4)}, v{adu}"); a(f"ds_read_b128 {vr(U+4,4)}, v{adu} offset:16")
        self.poll(iss_q, [Gq, Gq+4, Gq+8, Gq+12, Gs], site='q2')
        a("s_waitcnt lgkmcnt(0)")
        a.label(l_j)
        self.stamp(2)
        self.tu()
        self.burst('Q1')
        st = [Gs, Gs+1]
        adds = [f"v_add_f32 v{Gq+r}, v{Gq+r}, v{Gq+8+r}" for r in range(8)]
        seq = []
        for k, d in enumerate((self.X1, self.X2, self.HM)):
            seq += [f"v_add_f32_dpp v{r}, v{r}, v{r} {d} {DPPALL}" for r in st]
            seq += adds[3*k:3*k+3] if k < 2 else adds[6:]
        for s_ in seq: a(s_)
        a(f"v_mul_f32 v{Gs}, {f32hex(1/640)}, v{Gs}")
        ror4 = [f"v_add_f32_dpp v{Gq+r}, v{Gq+r}, v{Gq+r} row_ror:4 {DPPALL}" for r in range(8)]
        ror8 = [f"v_add_f32_dpp v{Gq+r}, v{Gq+r}, v{Gq+r} row_ror:8 {DPPALL}" for r in range(8)]
        a(f"v_mul_f32 v{Gs+1}, {f32hex(1/640)}, v{Gs+1}")
        for s_ in ror4[:4]: a(s_)
        a(f"v_fma_f32 v{Gs+1}, -v{Gs}, v{Gs}, v{Gs+1}")
        for s_ in ror4[4:]: a(s_)
        a(f"v_add_f32 v{Gs+1}, {f32hex(1e-5)}, v{Gs+1}")
        for s_ in ror8[:4]: a(s_)
        a(f"v_rsq_f32 v{Gs+1}, v{Gs+1}")
        for s_ in ror8[4:]: a(s_)
        a(f"v_mul_f32 v{Gs+1}, {f32hex(SC)}, v{Gs+1}")
        for r in range(8): a(f"v_fma_f32 v{Gq+r}, -v{Gs}, v{U+r}, v{Gq+r}")
        a(f"v_readfirstlane_b32 s{sSc}, v{Gs+1}")
        Qp = 24
        for r in range(4): a(f"v_cvt_pk_bf16_f32 v{Qp+r}, v{Gq+2*r}, v{Gq+2*r+1}")
        for t in range(4):
            for r in range(4):
                a(f"v_cndmask_b32 v{AT+4*t+r}, 0, v{Qp+r}, s[{sMask[t]}:{sMask[t]+1}]")

    def combine8(self, G, ML, tmp):
        a = self.a
        M, f, Ls = tmp, tmp+1, tmp+2
        a(f"v_max_f32_dpp v{M}, v{ML}, v{ML} row_ror:8 {DPPALL}")
        self.dpp_steps([M], "v_max_f32", ["b15", "b31"])
        a(f"v_readlane_b32 s{sA}, v{M}, 63")
        a(f"v_subrev_f32 v{f}, s{sA}, v{ML}"); a(f"v_exp_f32 v{f}, v{f}")
        a(f"v_mul_f32 v{Ls}, v{f}, v{ML+1}")
        for r in range(4): a(f"v_mul_f32 v{G+r}, v{f}, v{G+r}")
        a(f"v_add_f32_dpp v{Ls}, v{Ls}, v{Ls} row_ror:8 {DPPALL}")
        for r in range(4): a(f"v_add_f32_dpp v{G+r}, v{G+r}, v{G+r} row_ror:8 {DPPALL}")
        a(f"v_add_f32_dpp v{Ls}, v{Ls}, v{Ls} row_bcast:15 row_mask:0xa bank_mask:0xf")
        a(f"v_permlane32_swap_b32 v{G}, v{G+2}")
        a(f"v_permlane32_swap_b32 v{G+1}, v{G+3}")
        a(f"v_add_f32_dpp v{Ls}, v{Ls}, v{Ls} row_bcast:31 row_mask:0xc bank_mask:0xf")
        a(f"v_add_f32 v{G}, v{G}, v{G+2}")
        a(f"v_add_f32 v{G+1}, v{G+1}, v{G+3}")
        a(f"v_readlane_b32 s{sA}, v{Ls}, 63")
        a(f"v_permlane16_swap_b32 v{G}, v{G+1}")
        a(f"v_rcp_f32 v{Ls}, s{sA}")
        a(f"v_add_f32 v{G}, v{G}, v{G+1}")
        a(f"v_mul_f32 v{G}, v{G}, v{Ls}")

    def amiddle(self):
        a = self.a
        D = 16
        for t in range(4):
            c = "0" if t == 0 else vr(D, 4)
            a(f"v_mfma_f32_16x16x32_bf16 {vr(D,4)}, {vr(AT+4*t,4)}, {vr(WUK+4*t,4)}, {c}")
        a(f"v_lshrrev_b32 v14, 8, v{vL16}"); a("v_lshlrev_b32 v14, 4, v14")
        a(f"s_lshl_b32 s{sTmp[0]}, s{sH}, 11"); a(f"s_lshl_b32 s{sTmp[1]}, s{sJ}, 8"); a(f"s_add_u32 s{sTmp[0]}, s{sTmp[0]}, s{sTmp[1]}")
        a(f"s_lshl_b32 s{sTmp[1]}, s{sW}, 6"); a(f"s_add_u32 s{sTmp[0]}, s{sTmp[0]}, s{sTmp[1]}")
        a(f"s_add_u32 s{sTmp[0]}, s{sTmp[0]}, {O_QABS}")
        S, S2 = 20, 21
        a(f"v_mov_b32_dpp v{S}, v{D} quad_perm:[0,0,0,0] {DPPALL}")
        a(f"v_mov_b32_dpp v{S2}, v{D+2} quad_perm:[2,2,2,2] {DPPALL}")
        a(f"s_nop 0")
        a(f"v_add_f32_dpp v{S}, v{D+1}, v{S} quad_perm:[1,1,1,1] {DPPALL}")
        a(f"v_add_f32_dpp v{S2}, v{D+3}, v{S2} quad_perm:[3,3,3,3] {DPPALL}")
        a(f"v_add_f32 v{S}, v{S}, v{S2}")
        a(f"v_mul_f32 v{S}, s{sSc}, v{S}")
        G = 24
        for q in range(4): a(f"v_mov_b32_dpp v{G+q}, v{S} row_newbcast:{4*q} {DPPALL}")
        self.tag([G, G+1, G+2, G+3])
        self.exec_set(0x00010001, 0x00010001)
        a(f"buffer_store_dwordx4 {vr(G,4)}, v14, {W}, s{sTmp[0]} offen sc1")
        self.exec_all()
        self.stamp(3)
        self.tu()
        if not self.pfnew: self.load_wuv()
        Gq = 16
        a(f"s_lshl_b32 s{sTmp[0]}, s{sGA}, 15"); a(f"s_lshl_b32 s{sTmp[1]}, s{sW}, 9"); a(f"s_add_u32 s{sTmp[0]}, s{sTmp[0]}, s{sTmp[1]}")
        a(f"s_add_u32 s{sTmp[0]}, s{sTmp[0]}, {O_QABS}")
        for i in range(1, 4): a(f"s_add_u32 s{sTmp[i]}, s{sTmp[0]}, {i*8192}")
        vA0, vB0, vAx = 52, 53, 54
        n, g = 48, 49
        a(f"v_lshrrev_b32 v{n}, 4, v{vL16}"); a(f"v_lshrrev_b32 v{g}, 4, v{n}"); a(f"v_and_b32 v{n}, 15, v{n}")
        a(f"v_and_b32 v50, 8, v{n}"); a(f"v_and_b32 v51, 3, v{n}"); a(f"v_lshl_or_b32 v50, v51, 1, v50")
        a(f"v_bfe_u32 v51, v{n}, 2, 1"); a(f"v_or_b32 v50, v50, v51")
        a(f"s_lshl_b32 s{sTmp[4]}, s{sW}, 14"); a(f"s_add_u32 s{sTmp[4]}, s{sTmp[4]}, {L_CKV}")
        a(f"v_lshlrev_b32 v51, 10, v{n}"); a(f"v_lshl_add_u32 v51, v{g}, 8, v51"); a(f"v_lshl_add_u32 v51, v50, 4, v51")
        a(f"v_add_u32 v{vA0}, s{sTmp[4]}, v51")
        a(f"v_mul_u32_u24 v{vB0}, 1040, v{n}"); a(f"v_lshl_add_u32 v{vB0}, v{g}, 8, v{vB0}"); a(f"v_add_u32 v{vB0}, {L_R0}, v{vB0}")
        a(f"v_mul_u32_u24 v51, 272, v{n}"); a(f"v_lshl_add_u32 v50, v{g}, 4, v51")
        a(f"s_lshl_b32 s{sTmp[4]}, s{sW}, 6"); a(f"s_add_u32 s{sTmp[4]}, s{sTmp[4]}, {L_ST}"); a(f"v_add_u32 v50, s{sTmp[4]}, v50")
        a(f"v_lshl_add_u32 v51, v{g}, 5, v51"); a(f"v_add_u32 v51, {L_ST}, v51")
        vC0, vC1, vX0, vX1 = 76, 77, 78, 79
        a(f"v_and_b32 v14, 3, v{n}"); a(f"v_lshrrev_b32 v15, 2, v{n}")
        a(f"v_and_b32 v55, 1, v{g}"); a(f"v_lshlrev_b32 v55, 3, v55"); a(f"v_lshl_add_u32 v55, v15, 1, v55")
        a(f"v_lshrrev_b32 v56, 1, v14"); a(f"v_xor_b32 v55, v55, v56")
        a(f"v_lshl_add_u32 v56, v{g}, 3, v15"); a(f"v_lshlrev_b32 v56, 10, v56")
        a(f"v_lshl_add_u32 v56, v55, 4, v56"); a(f"v_and_b32 v14, 1, v14"); a(f"v_lshl_add_u32 v56, v14, 3, v56")
        a(f"s_lshl_b32 s{sTmp[4]}, s{sW}, 8"); a(f"s_add_u32 s{sTmp[4]}, s{sTmp[4]}, {L_CKV}")
        a(f"v_add_u32 v{vC0}, s{sTmp[4]}, v56")
        a(f"v_add_u32 v{vC1}, 4096, v{vC0}"); a(f"v_xor_b32 v{vC1}, 16, v{vC1}")
        a(f"s_lshl_b32 s{sTmp[4]}, s{sW}, 8"); a(f"s_add_u32 s{sTmp[4]}, s{sTmp[4]}, {L_R0}")
        a(f"v_lshrrev_b32 v14, 9, v{vL16}"); a(f"v_and_b32 v57, 0x1f0, v{vL16}")
        a(f"v_lshrrev_b32 v15, 1, v57"); a(f"v_mul_u32_u24 v58, 1040, v14"); a(f"v_add_u32 v15, v15, v58"); a(f"v_add_u32 v15, s{sTmp[4]}, v15")
        a(f"v_lshl_add_u32 v57, v14, 11, v57")
        lg0 = a.newlabel("cg"); lg1 = a.newlabel("cg")
        a.label(lg0)
        a(f"s_cmp_ge_u32 s{sPos}, 16"); a(f"s_cbranch_scc1 {lg1}")
        self.stream_call()
        a(f"s_branch {lg0}")
        a.label(lg1)
        if self.sent:
            lsk = a.newlabel("nosent")
            if not self.sent1:
                a(f"s_cmp_lg_u32 s{sAct}, 0"); a(f"s_cbranch_scc1 {lsk}")
            a(f"v_lshrrev_b32 v14, 7, v{vL16}"); a(f"v_lshlrev_b32 v14, 11, v14"); a(f"v_and_b32 v58, 0x70, v{vL16}"); a(f"v_lshl_add_u32 v14, v58, 2, v14")
            def iss0():
                a(f"buffer_load_dwordx4 {vr(Gq,4)}, v14, {W}, s{sTmp[0]} offen sc1")
                a(f"buffer_load_dwordx4 {vr(Gq+4,4)}, v14, {W}, s{sTmp[2]} offen sc1")
            self.poll(iss0, [Gq, Gq+4], site='sent')
            a.label(lsk)
            self.stamp(15)
        def iss():
            for i in range(8):
                so = sTmp[i >> 1]
                if i & 1:
                    a(f"s_add_u32 s{sTmp[5-1]}, s{so}, 4096"); so = sTmp[4]
                a(f"buffer_load_dwordx4 {vr(Gq+4*i,4)}, v57, {W}, s{so} offen sc1")
        self.poll(iss, [Gq+4*i for i in range(8)], site='h4')
        self.stampval(30, sSpin); self.stampval(31, sPos)
        self.stamp(4)
        if self.pfnew: self.load_wuv()
        self.burst('A0')
        if self.c1touch2 == "h4":
            lt = a.newlabel("t2")
            a(f"s_cmp_eq_u32 s{sL}, 0"); a(f"s_cbranch_scc1 {lt}")
            a(f"v_lshlrev_b32 v11, 2, v{vL16}")
            for i in range(1 if self.c1bf else 2):
                a(f"s_add_u32 s{sTmp[0]}, s{sC1}, {i * 4096}")
                a(f"buffer_load_dword v12, v11, {W}, s{sTmp[0]} offen")
            a.label(lt)
        for i in range(8):
            b = Gq + 4*i
            a(f"v_cvt_pk_bf16_f32 v{b}, v{b}, v{b+1}"); a(f"v_cvt_pk_bf16_f32 v{b+1}, v{b+2}, v{b+3}")
            a(f"ds_write_b64 v15, {vr(b,2)} offset:{i*2*1040}")
        self.tu()
        a("s_waitcnt lgkmcnt(0)"); a("s_barrier")
        self.stamp(16)
        if "S" in self.xcalls: self.topup(site='S')
        self.burst('S')
        AB = 16
        Ds = 56
        def rd(st):
            b = AB + 8 * (st % 4)
            if st == 0: a(f"ds_read_b128 {vr(b,4)}, v{vA0}")
            else:
                a(f"v_xor_b32 v{vAx}, {st<<4}, v{vA0}"); a(f"ds_read_b128 {vr(b,4)}, v{vAx}")
            a(f"ds_read_b128 {vr(b+4,4)}, v{vB0} offset:{st*16}")
        for st in range(4): rd(st)
        for st in range(16):
            rem = min(3, 15 - st)
            a(f"s_waitcnt lgkmcnt({2*rem})")
            b = AB + 8 * (st % 4)
            c = "0" if st == 0 else vr(Ds, 4)
            a(f"v_mfma_f32_16x16x32_bf16 {vr(Ds,4)}, {vr(b,4)}, {vr(b+4,4)}, {c}")
            if st + 4 < 16: rd(st + 4)
        a(f"ds_write_b128 v50, {vr(Ds,4)}")
        self.tu()
        a("s_waitcnt lgkmcnt(0)"); a("s_barrier")
        self.stamp(17)
        SS = 16
        for u in range(2):
            for hf in range(2):
                a(f"ds_read_b128 {vr(SS+8*u+4*hf,4)}, v51 offset:{u*128+hf*16}")
        if self.pfnew: self.load_wo(pWoA)
        DT = 44; AF = 56
        m, l, t1, t2 = 32, 33, 34, 35
        a("s_waitcnt lgkmcnt(0)")
        a(f"v_max3_f32 v{m}, v{SS}, v{SS+1}, v{SS+2}"); a(f"v_max3_f32 v{t1}, v{SS+3}, v{SS+4}, v{SS+5}")
        a(f"v_max3_f32 v{m}, v{m}, v{SS+6}, v{SS+7}"); a(f"v_max3_f32 v{t1}, v{t1}, v{SS+8}, v{SS+9}")
        a(f"v_max3_f32 v{m}, v{m}, v{SS+10}, v{SS+11}"); a(f"v_max3_f32 v{t1}, v{t1}, v{SS+12}, v{SS+13}")
        a(f"v_max3_f32 v{m}, v{m}, v{SS+14}, v{SS+15}"); a(f"v_max_f32 v{m}, v{m}, v{t1}")
        for sw in ("v_permlane16_swap_b32", "v_permlane32_swap_b32"):
            a(f"v_mov_b32 v{t1}, v{m}"); a(f"{sw} v{m}, v{t1}"); a(f"v_max_f32 v{m}, v{m}, v{t1}")
        for k in range(16): a(f"v_sub_f32 v{SS+k}, v{SS+k}, v{m}")
        for k in range(16): a(f"v_exp_f32 v{SS+k}, v{SS+k}")
        P = 36
        for k in range(8): a(f"v_cvt_pk_bf16_f32 v{P+k}, v{SS+2*k}, v{SS+2*k+1}")
        for k in range(8): a(f"v_add_f32 v{SS+k}, v{SS+k}, v{SS+8+k}")
        for k in range(4): a(f"v_add_f32 v{SS+k}, v{SS+k}, v{SS+4+k}")
        a(f"v_add_f32 v{SS}, v{SS}, v{SS+1}"); a(f"v_add_f32 v{SS+2}, v{SS+2}, v{SS+3}"); a(f"v_add_f32 v{l}, v{SS}, v{SS+2}")
        self.stamp(18)
        if "smax" in self.xcalls: self.topup(site='S')
        self.burst('smax')
        AF = 16
        steps = [(t, u) for t in range(8) for u in range(2)]
        def rdA(k):
            t, u = steps[k]; b = AF + 4 * (k % 4)
            if u == 0:
                if t == 0:
                    a(f"v_mov_b32 v{vX0}, v{vC0}"); a(f"v_mov_b32 v{vX1}, v{vC1}")
                else:
                    a(f"v_xor_b32 v{vX0}, {t<<5}, v{vC0}"); a(f"v_xor_b32 v{vX1}, {t<<5}, v{vC1}")
            a(f"ds_read_b64_tr_b16 {vr(b,2)}, v{vX0} offset:{u*32768}")
            a(f"ds_read_b64_tr_b16 {vr(b+2,2)}, v{vX1} offset:{u*32768}")
        for k in range(4): rdA(k)
        for sw in ("v_permlane16_swap_b32", "v_permlane32_swap_b32"):
            a(f"v_mov_b32 v{t1}, v{l}"); a(f"{sw} v{l}, v{t1}"); a(f"v_add_f32 v{l}, v{l}, v{t1}")
        if self.c1bf:
            self.stage1_bf(DT, P, AF, steps, rdA)
            acc = 48; t1 = 68; Mx = 56; den = 64; R4 = range(4)
        else:
            a(f"v_lshrrev_b32 v14, 8, v{vL16}"); a(f"v_lshlrev_b32 v14, 17, v14"); a(f"v_and_b32 v15, 0xf0, v{vL16}"); a(f"v_add_u32 v14, v14, v15")
            a(f"s_lshl_b32 s{sTmp[0]}, s{sXG}, 20"); a(f"s_lshl_b32 s{sTmp[1]}, s{sGA}, 19"); a(f"s_add_u32 s{sTmp[0]}, s{sTmp[0]}, s{sTmp[1]}")
            a(f"s_lshl_b32 s{sTmp[1]}, s{sW}, 15"); a(f"s_add_u32 s{sTmp[0]}, s{sTmp[0]}, s{sTmp[1]}")
            a(f"s_and_b32 s{sTmp[2]}, s{sS}, 15"); a(f"s_lshl_b32 s{sTmp[1]}, s{sTmp[2]}, 9"); a(f"s_add_u32 s{sTmp[0]}, s{sTmp[0]}, s{sTmp[1]}")
            a(f"s_add_u32 s{sTmp[0]}, s{sTmp[0]}, {O_C1}")
            a(f"s_lshl_b32 s{sTmp[3]}, s{sXG}, 14"); a(f"s_lshl_b32 s{sTmp[1]}, s{sGA}, 13"); a(f"s_add_u32 s{sTmp[3]}, s{sTmp[3]}, s{sTmp[1]}")
            a(f"s_lshl_b32 s{sTmp[1]}, s{sW}, 9"); a(f"s_add_u32 s{sTmp[3]}, s{sTmp[3]}, s{sTmp[1]}")
            a(f"s_lshl_b32 s{sTmp[1]}, s{sTmp[2]}, 5"); a(f"s_add_u32 s{sTmp[3]}, s{sTmp[3]}, s{sTmp[1]}")
            a(f"s_add_u32 s{sTmp[3]}, s{sTmp[3]}, {O_ML1}")
            a(f"v_bfe_u32 v15, v{vL16}, 6, 2"); a(f"v_lshlrev_b32 v15, 11, v15")
            a(f"v_bfe_u32 v32+2, v{vL16}, 8, 1".replace("v32+2", "v34")); a(f"v_lshl_add_u32 v15, v34, 4, v15")
            MG = 76 - 0
            a(f"s_mov_b32 vcc_lo, 0xffff0000"); a("s_mov_b32 vcc_hi, 0")
            a(f"v_cndmask_b32 v34, v32, v33, vcc")
            mlops = [f"v_mov_b32_dpp v32, v34 quad_perm:[0,0,0,0] {DPPALL}", f"v_mov_b32_dpp v33, v34 quad_perm:[1,1,1,1] {DPPALL}",
                     f"v_mov_b32_dpp v35, v34 quad_perm:[3,3,3,3] {DPPALL}", f"v_mov_b32_dpp v34, v34 quad_perm:[2,2,2,2] {DPPALL}"]
            for k in range(16):
                t, u = steps[k]; b = AF + 4 * (k % 4)
                rem = min(3, 15 - k)
                a(f"s_waitcnt lgkmcnt({2*rem})")
                c = "0" if u == 0 else vr(DT+4*t, 4)
                a(f"v_mfma_f32_16x16x32_bf16 {vr(DT+4*t,4)}, {vr(P+4*u,4)}, {vr(b,4)}, {c}")
                if k + 4 < 16: rdA(k + 4)
                if k == 0:
                    for x_ in mlops: a(x_)
                if k == 2: self.tag([32, 33, 34, 35])
                if u == 1 and t >= 2: self.tag([DT+4*(t-2)+r for r in range(4)])
            self.tag([DT+4*6+r for r in range(4)]); self.tag([DT+4*7+r for r in range(4)])
            self.stamp(19)
            items = []
            for t in range(8):
                def pre(t=t): a(f"s_add_u32 s{sTmp[1]}, s{sTmp[0]}, {(t>>1)*8192+(t&1)*256}")
                items.append((DT+4*t, 14, sTmp[1], pre))
            def pre_ml(): a("s_mov_b32 exec_lo, 0x11111111"); a("s_mov_b32 exec_hi, 0")
            items.append((32, 15, sTmp[3], pre_ml))
            if self.c1sc1:
                loc = self.local; self.local = False
                self.local_stores(items)
                self.local = loc
            else:
                self.local_stores(items)
            self.exec_all()
            self.stamp(5)
            G, MM, LL = 16, 48, 52
            a(f"v_lshrrev_b32 v14, 4, v{vL16}"); a(f"v_and_b32 v15, 7, v14"); a(f"v_lshrrev_b32 v14, 5, v14")
            a(f"v_lshl_add_u32 v14, v15, 1, v14"); a(f"v_lshlrev_b32 v14, 5, v14")
            a(f"s_lshl_b32 s{sTmp[0]}, s{sXG}, 5"); a(f"s_add_u32 s{sTmp[0]}, s{sTmp[0]}, s{sI}")
            a(f"s_lshl_b32 s{sTmp[2]}, s{sTmp[0]}, 9"); a(f"s_add_u32 s{sTmp[2]}, s{sTmp[2]}, {O_ML1}")
            a(f"s_lshl_b32 s{sTmp[0]}, s{sTmp[0]}, 2"); a(f"s_add_u32 s{sTmp[0]}, s{sTmp[0]}, s{sW}")
            a(f"s_lshl_b32 s{sTmp[0]}, s{sTmp[0]}, 13"); a(f"s_add_u32 s{sTmp[0]}, s{sTmp[0]}, {O_C1}")
            a(f"s_add_u32 s{sTmp[1]}, s{sTmp[0]}, 4096")
            def issML():
                a(f"buffer_load_dwordx4 {vr(MM,4)}, v14, {W}, s{sTmp[2]} offen sc1")
                a(f"buffer_load_dwordx4 {vr(LL,4)}, v14, {W}, s{sTmp[2]} offen offset:16 sc1")
            lsk = a.newlabel("noml")
            if not self.mlsent:
                a(f"s_cmp_lg_u32 s{sAct}, 0"); a(f"s_cbranch_scc1 {lsk}")
            if not self.mltail:
                a(f"s_cmp_ge_u32 s{sL}, 2"); a(f"s_cbranch_scc1 {lsk}")
            self.poll(issML, [MM, LL], site='ml1')
            a.label(lsk)
            self.stamp(20)
            Mx, wv, den, t1 = 56, 60, 64, 68
            chk = 72
            lp = a.newlabel("sw1"); ns = a.newlabel("sw1n"); jn = a.newlabel("sw1j"); dn = a.newlabel("sw1d"); ns2 = a.newlabel("sw1m"); jn2 = a.newlabel("sw1k")
            a(f"s_mov_b32 s{sSpin}, 0")
            if self.bud is not None: a(f"s_mov_b32 s{sBud}, {self.bud.get('sw1', self.bud.get('*', 8))}")
            self.predelay('sw1')
            a.label(lp)
            issML()
            for i in range(8):
                a(f"buffer_load_dwordx4 {vr(G+4*i,4)}, v{vL16}, {W}, s{sTmp[i>>2]} offen offset:{(i&3)*1024} sc1")
            a(f"s_mov_b32 s{sYoung}, 8")
            self.dwait(8, 10 if self.addn else 0, 'sw1')
            a(f"s_sub_u32 s{sTmp[4]}, s{sYoung}, 8")
            for r in range(4): a(f"v_xor_b32 v{MM+r}, s{sT[r]}, v{MM+r}")
            for r in range(4): a(f"v_xor_b32 v{LL+r}, s{sT[r]}, v{LL+r}")
            a(f"v_or3_b32 v{chk}, v{MM}, v{MM+1}, v{MM+2}"); a(f"v_or3_b32 v{chk}, v{chk}, v{MM+3}, v{LL}")
            a(f"v_or3_b32 v{chk}, v{chk}, v{LL+1}, v{LL+2}"); a(f"v_or_b32 v{chk}, v{chk}, v{LL+3}")
            R4 = range(4)
            for r in R4: a(f"v_max_f32_dpp v{Mx+r}, v{MM+r}, v{MM+r} {self.X1} {DPPALL}")
            self.dpp_steps([Mx+r for r in R4], "v_max_f32", [self.X2, self.HM])
            for r in R4: a(f"v_mov_b32 v{t1+r}, v{Mx+r}")
            for r in R4: a(f"v_permlane32_swap_b32 v{Mx+r}, v{t1+r}")
            for r in R4: a(f"v_max_f32 v{Mx+r}, v{Mx+r}, v{t1+r}")
            for r in R4: a(f"v_sub_f32 v{wv+r}, v{MM+r}, v{Mx+r}")
            for r in R4: a(f"v_exp_f32 v{wv+r}, v{wv+r}")
            for r in R4: a(f"v_mul_f32 v{den+r}, v{wv+r}, v{LL+r}")
            self.dpp_steps([den+r for r in R4], "v_add_f32", [self.X1, self.X2, self.HM])
            for r in R4: a(f"v_mov_b32 v{t1+r}, v{den+r}")
            for r in R4: a(f"v_permlane32_swap_b32 v{den+r}, v{t1+r}")
            for r in R4: a(f"v_add_f32 v{den+r}, v{den+r}, v{t1+r}")
            if self.mode == "co":
                a(f"s_cmp_eq_u32 s{sTmp[4]}, 0"); a(f"s_cbranch_scc1 {ns2}")
                a(f"s_mov_b32 s{sYoung}, s{sTmp[4]}")
                a(f"s_swappc_b64 s[{sRET2}:{sRET2+1}], s[{sDW}:{sDW+1}]")
                a(f"s_branch {jn2}")
                a.label(ns2)
            self.dwait(0, 0, 'sw1')
            a.label(jn2)
            dw = [G + i for i in range(32)]
            for k, r in enumerate(dw): a(f"v_xor_b32 v{r}, s{sT[k % 4]}, v{r}")
            a(f"v_or3_b32 v{vT0}, v{dw[0]}, v{dw[1]}, v{chk}"); a(f"v_or3_b32 v{vT0+1}, v{dw[2]}, v{dw[3]}, v{dw[4]}")
            k = 5; tog = 0
            while k < 31:
                tgt = vT0 + tog
                a(f"v_or3_b32 v{tgt}, v{tgt}, v{dw[k]}, v{dw[k+1]}"); k += 2; tog ^= 1
            a(f"v_or3_b32 v{vT0}, v{vT0}, v{vT0+1}, v{dw[31]}")
            a(f"v_and_b32 v{vT0}, s{sFF}, v{vT0}")
            a(f"v_cmp_ne_u32 vcc, 0, v{vT0}")
            a(f"s_cbranch_vccz {dn}")
            a(f"s_add_u32 s{sSpin}, s{sSpin}, 1"); a(f"s_cmp_lt_u32 s{sSpin}, {SPIN_MAX}"); a(f"s_cbranch_scc1 {lp}")
            a(f"s_mov_b32 s{sErr}, 1")
            a.label(dn)
            self.stampval(24, sSpin); self.stampval(25, sPos)
            self.stamp(6)
            self.burst('A1')
            acc = 48
            for i in range(8):
                for r in range(4):
                    op = "v_mul_f32_dpp" if i == 0 else "v_fmac_f32_dpp"
                    a(f"{op} v{acc+r}, v{wv+r}, v{G+4*i+r} row_newbcast:{i} {DPPALL}")

        if self.c1bf:
            a(f"v_bfe_u32 v14, v{vL16}, 9, 1"); a(f"v_lshlrev_b32 v14, 11, v14"); a(f"v_and_b32 v15, 0xf0, v{vL16}"); a(f"v_add_u32 v14, v14, v15")
        else:
            a(f"v_bfe_u32 v14, v{vL16}, 8, 1"); a(f"v_lshlrev_b32 v14, 11, v14"); a(f"v_and_b32 v15, 0xf0, v{vL16}"); a(f"v_add_u32 v14, v14, v15")
            for r in R4: a(f"v_mov_b32 v{t1+r}, v{acc+r}")
        a(f"s_lshr_b32 s{sTmp[0]}, s{sI}, 2"); a(f"s_lshl_b32 s{sTmp[0]}, s{sTmp[0]}, 16")
        a(f"s_and_b32 s{sTmp[1]}, s{sI}, 3"); a(f"s_lshl_b32 s{sTmp[1]}, s{sTmp[1]}, 14"); a(f"s_add_u32 s{sTmp[0]}, s{sTmp[0]}, s{sTmp[1]}")
        if not self.c1bf:
            for r in R4: a(f"v_permlane32_swap_b32 v{acc+r}, v{t1+r}")
        a(f"s_lshl_b32 s{sTmp[1]}, s{sW}, 12"); a(f"s_add_u32 s{sTmp[0]}, s{sTmp[0]}, s{sTmp[1]}")
        a(f"s_lshl_b32 s{sTmp[1]}, s{sXG}, 8"); a(f"s_add_u32 s{sTmp[0]}, s{sTmp[0]}, s{sTmp[1]}")
        if not self.c1bf:
            for r in R4: a(f"v_add_f32 v{acc+r}, v{acc+r}, v{t1+r}")
        a(f"s_add_u32 s{sTmp[0]}, s{sTmp[0]}, {O_C2}")
        self.tag([acc, acc+1, acc+2, acc+3])
        if self.c1bf: self.exec_set(0xffff, 0xffff)
        else: a("s_mov_b32 exec_hi, 0")
        a(f"buffer_store_dwordx4 {vr(acc,4)}, v14, {W}, s{sTmp[0]} offen sc1")
        self.exec_all()
        lm = a.newlabel("ml2")
        a(f"s_and_b32 s{sTmp[1]}, s{sI}, 3"); a(f"s_or_b32 s{sTmp[1]}, s{sTmp[1]}, s{sW}"); a(f"s_cmp_lg_u32 s{sTmp[1]}, 0"); a(f"s_cbranch_scc1 {lm}")
        for r in (1, 2, 3):
            a(f"s_mov_b64 vcc, {1 << r}")
            a(f"v_cndmask_b32 v{Mx}, v{Mx}, v{Mx+r}, vcc"); a(f"v_cndmask_b32 v{den}, v{den}, v{den+r}, vcc")
        a(f"v_mov_b32 v{Mx+1}, v{den}"); a(f"v_mov_b32 v{Mx+2}, 0"); a(f"v_mov_b32 v{Mx+3}, 0")
        self.tag([Mx, Mx+1, Mx+2, Mx+3])
        a(f"s_lshl_b32 s{sTmp[1]}, s{sI}, 7"); a(f"s_lshl_b32 s{sTmp[2]}, s{sXG}, 4"); a(f"s_add_u32 s{sTmp[1]}, s{sTmp[1]}, s{sTmp[2]}")
        a(f"s_add_u32 s{sTmp[1]}, s{sTmp[1]}, {O_ML2}")
        a(f"v_lshlrev_b32 v15, 3, v{vL16}")
        a("s_mov_b64 exec, 15")
        a(f"buffer_store_dwordx4 {vr(Mx,4)}, v15, {W}, s{sTmp[1]} offen sc1")
        self.exec_all()
        a.label(lm)
        self.stamp(21)
        self.tu()
        if not self.pfnew: self.load_wo(pWoA)
        G0, G1, M0, M1 = 16, 20, 24, 28
        a(f"v_bfe_u32 v15, v{vL16}, 6, 2")
        a(f"v_bfe_u32 v14, v{vL16}, 4, 2"); a(f"v_lshlrev_b32 v14, 2, v14"); a(f"v_lshrrev_b32 v32, 8, v{vL16}"); a(f"v_add_u32 v14, v14, v32")
        a(f"v_lshlrev_b32 v14, 4, v14"); a(f"v_lshl_add_u32 v14, v15, 8, v14")
        a(f"v_lshlrev_b32 v15, 4, v15")
        a(f"s_lshr_b32 s{sTmp[0]}, s{sH}, 2"); a(f"s_lshl_b32 s{sTmp[0]}, s{sTmp[0]}, 16"); a(f"s_lshl_b32 s{sTmp[1]}, s{sJ}, 13"); a(f"s_add_u32 s{sTmp[0]}, s{sTmp[0]}, s{sTmp[1]}")
        a(f"s_lshl_b32 s{sTmp[1]}, s{sW}, 11"); a(f"s_add_u32 s{sTmp[0]}, s{sTmp[0]}, s{sTmp[1]}"); a(f"s_add_u32 s{sTmp[0]}, s{sTmp[0]}, {O_C2}")
        a(f"s_lshl_b32 s{sTmp[2]}, s{sH}, 7"); a(f"s_add_u32 s{sTmp[2]}, s{sTmp[2]}, {O_ML2}")
        def iss2():
            a(f"buffer_load_dwordx4 {vr(M0,4)}, v15, {W}, s{sTmp[2]} offen sc1")
            a(f"buffer_load_dwordx4 {vr(M1,4)}, v15, {W}, s{sTmp[2]} offen offset:64 sc1")
            a(f"buffer_load_dwordx4 {vr(G0,4)}, v14, {W}, s{sTmp[0]} offen sc1")
            a(f"buffer_load_dwordx4 {vr(G1,4)}, v14, {W}, s{sTmp[0]} offen offset:1024 sc1")
        self.poll(iss2, [M0, M1, G0, G1], site='h5b')
        self.stampval(26, sSpin); self.stampval(27, sPos)
        self.stamp(14)
        self.tu()
        self.burst('A2')
        lsel = [a.newlabel("sel") for _ in range(4)]; lj = a.newlabel("selj")
        Mx, f0, f1, Ls = 32, 33, 34, 35
        a(f"v_max_f32 v{Mx}, v{M0}, v{M1}")
        a(f"s_and_b32 s{sTmp[1]}, s{sH}, 3")
        for r in (1, 2, 3):
            a(f"s_cmp_eq_u32 s{sTmp[1]}, {r}"); a(f"s_cbranch_scc1 {lsel[r]}")
        a(f"s_branch {lj}")
        for r in (1, 2, 3):
            a.label(lsel[r])
            a(f"v_mov_b32 v{G0}, v{G0+r}"); a(f"v_mov_b32 v{G1}, v{G1+r}")
            if r < 3: a(f"s_branch {lj}")
        a.label(lj)
        self.dpp_steps([Mx], "v_max_f32", ["row_ror:4", "row_ror:8"])
        a(f"v_sub_f32 v{f0}, v{M0}, v{Mx}"); a(f"v_sub_f32 v{f1}, v{M1}, v{Mx}")
        a(f"v_exp_f32 v{f0}, v{f0}"); a(f"v_exp_f32 v{f1}, v{f1}")
        a(f"v_mul_f32 v{Ls}, v{f0}, v{M0+1}"); a(f"v_mul_f32 v{G0}, v{f0}, v{G0}")
        a(f"v_fmac_f32 v{Ls}, v{f1}, v{M1+1}"); a(f"v_fmac_f32 v{G0}, v{f1}, v{G1}")
        self.dpp_steps([Ls, G0], "v_add_f32", ["row_ror:4", "row_ror:8"])
        a(f"v_rcp_f32 v{Ls}, v{Ls}")
        a(f"v_mul_f32 v{G0}, v{G0}, v{Ls}")
        Xp = 14
        a(f"v_cvt_pk_bf16_f32 v{Xp}, v{G0}, v{G0}")
        D, Ab = 16, 20
        self.pv_gemv(Xp, 4, lambda i: vr(WUV+4*i, 4), D, Ab)
        self.red_write(D)
        self.row_slot_addr()
        self.tu()
        a("s_waitcnt lgkmcnt(0)"); a("s_barrier")
        lf = a.newlabel("uvfin")
        a(f"s_cmp_lg_u32 s{sW}, 0"); a(f"s_cbranch_scc1 {lf}")
        G = 16
        self.red_final_read(G)
        a(f"s_mov_b32 s{sA}, {f32hex(0.125)}")
        a("s_waitcnt lgkmcnt(0)")
        self.sum4(G)
        a(f"v_writelane_b32 v{G}, 0, 32"); a(f"v_writelane_b32 v{G+1}, s{sA}, 32")
        self.tag([G, G+1, G+2, G+3])
        a("s_mov_b32 exec_hi, 1")
        self.local_stores([(G, vL16, sTmp[0], None)])
        a("s_mov_b32 exec_hi, -1")
        a.label(lf)
        self.stamp(7)

    def stage1_bf(self, DT, P, AF, steps, rdA):
        a = self.a
        R4 = range(4)
        a(f"v_lshrrev_b32 v14, 8, v{vL16}"); a(f"v_lshlrev_b32 v14, 16, v14"); a(f"v_and_b32 v15, 0xf0, v{vL16}"); a(f"v_add_u32 v14, v14, v15")
        a(f"s_lshl_b32 s{sTmp[0]}, s{sXG}, 19"); a(f"s_lshl_b32 s{sTmp[1]}, s{sGA}, 18"); a(f"s_add_u32 s{sTmp[0]}, s{sTmp[0]}, s{sTmp[1]}")
        a(f"s_lshl_b32 s{sTmp[1]}, s{sW}, 14"); a(f"s_add_u32 s{sTmp[0]}, s{sTmp[0]}, s{sTmp[1]}")
        a(f"s_and_b32 s{sTmp[2]}, s{sS}, 15"); a(f"s_lshl_b32 s{sTmp[1]}, s{sTmp[2]}, 8"); a(f"s_add_u32 s{sTmp[0]}, s{sTmp[0]}, s{sTmp[1]}")
        a(f"s_add_u32 s{sTmp[0]}, s{sTmp[0]}, {O_C1}")
        a(f"s_lshl_b32 s{sTmp[3]}, s{sXG}, 14"); a(f"s_lshl_b32 s{sTmp[1]}, s{sGA}, 13"); a(f"s_add_u32 s{sTmp[3]}, s{sTmp[3]}, s{sTmp[1]}")
        a(f"s_lshl_b32 s{sTmp[1]}, s{sW}, 9"); a(f"s_add_u32 s{sTmp[3]}, s{sTmp[3]}, s{sTmp[1]}")
        a(f"s_lshl_b32 s{sTmp[1]}, s{sTmp[2]}, 5"); a(f"s_add_u32 s{sTmp[3]}, s{sTmp[3]}, s{sTmp[1]}")
        a(f"s_add_u32 s{sTmp[3]}, s{sTmp[3]}, {O_ML1}")
        a(f"v_bfe_u32 v15, v{vL16}, 6, 2"); a(f"v_lshlrev_b32 v15, 11, v15")
        a(f"v_bfe_u32 v34, v{vL16}, 8, 1"); a(f"v_lshl_add_u32 v15, v34, 4, v15")
        a(f"s_mov_b32 vcc_lo, 0xffff0000"); a("s_mov_b32 vcc_hi, 0")
        a(f"v_cndmask_b32 v34, v32, v33, vcc")
        mlops = [f"v_mov_b32_dpp v32, v34 quad_perm:[0,0,0,0] {DPPALL}", f"v_mov_b32_dpp v33, v34 quad_perm:[1,1,1,1] {DPPALL}",
                 f"v_mov_b32_dpp v35, v34 quad_perm:[3,3,3,3] {DPPALL}", f"v_mov_b32_dpp v34, v34 quad_perm:[2,2,2,2] {DPPALL}"]
        def pack(wp):
            D0, E0 = DT + 8*wp, DT + 8*wp + 4
            a(f"v_cvt_pk_bf16_f32 v{D0}, v{D0}, v{D0+1}"); a(f"v_cvt_pk_bf16_f32 v{D0+1}, v{D0+2}, v{D0+3}")
            a(f"v_cvt_pk_bf16_f32 v{D0+2}, v{E0}, v{E0+1}"); a(f"v_cvt_pk_bf16_f32 v{D0+3}, v{E0+2}, v{E0+3}")
        for k in range(16):
            t, u = steps[k]; b = AF + 4 * (k % 4)
            rem = min(3, 15 - k)
            a(f"s_waitcnt lgkmcnt({2*rem})")
            c = "0" if u == 0 else vr(DT+4*t, 4)
            a(f"v_mfma_f32_16x16x32_bf16 {vr(DT+4*t,4)}, {vr(P+4*u,4)}, {vr(b,4)}, {c}")
            if k + 4 < 16: rdA(k + 4)
            if k == 0:
                for x_ in mlops: a(x_)
            if k == 2: self.tag([32, 33, 34, 35])
            if k in (7, 11, 15) : pack((k - 7) // 4)
        pack(3)
        self.stamp(19)
        items = []
        for wp in range(4):
            def pre(wp=wp): a(f"s_add_u32 s{sTmp[1]}, s{sTmp[0]}, {wp*4096}")
            items.append((DT+8*wp, 14, sTmp[1], pre))
        self.local_stores(items)
        G, MM, LL = 16, 48, 52
        a(f"v_bfe_u32 v14, v{vL16}, 4, 2"); a(f"v_lshlrev_b32 v14, 2, v14"); a(f"v_lshrrev_b32 v36, 8, v{vL16}"); a(f"v_add_u32 v14, v14, v36")
        a(f"v_lshlrev_b32 v14, 5, v14")
        a(f"s_lshl_b32 s{sTmp[0]}, s{sXG}, 5"); a(f"s_add_u32 s{sTmp[0]}, s{sTmp[0]}, s{sI}")
        a(f"s_lshl_b32 s{sTmp[2]}, s{sTmp[0]}, 9"); a(f"s_add_u32 s{sTmp[2]}, s{sTmp[2]}, {O_ML1}")
        a("s_waitcnt vmcnt(0)")
        def pre_ml(): a("s_mov_b32 exec_lo, 0x11111111"); a("s_mov_b32 exec_hi, 0")
        self.local_stores([(32, 15, sTmp[3], pre_ml)])
        self.exec_all()
        self.stamp(5)
        def issML():
            a(f"buffer_load_dwordx4 {vr(MM,4)}, v14, {W}, s{sTmp[2]} offen sc1")
            a(f"buffer_load_dwordx4 {vr(LL,4)}, v14, {W}, s{sTmp[2]} offen offset:16 sc1")
        self.poll(issML, [MM, LL], site='ml1')
        self.stamp(20)
        for i in range(4):
            a(f"buffer_load_dwordx4 {vr(G+4*i,4)}, v{vL16}, {W}, s{sC1} offen offset:{i*1024} sc1")
        Mx, wv, den, t1 = 56, 60, 64, 68
        for r in R4: a(f"v_max_f32_dpp v{Mx+r}, v{MM+r}, v{MM+r} {self.X1} {DPPALL}")
        self.dpp_steps([Mx+r for r in R4], "v_max_f32", [self.X2])
        for sw in ("v_permlane16_swap_b32", "v_permlane32_swap_b32"):
            for r in R4: a(f"v_mov_b32 v{t1+r}, v{Mx+r}")
            for r in R4: a(f"{sw} v{Mx+r}, v{t1+r}")
            for r in R4: a(f"v_max_f32 v{Mx+r}, v{Mx+r}, v{t1+r}")
        for r in R4: a(f"v_sub_f32 v{wv+r}, v{MM+r}, v{Mx+r}")
        for r in R4: a(f"v_exp_f32 v{wv+r}, v{wv+r}")
        for r in R4: a(f"v_mul_f32 v{den+r}, v{wv+r}, v{LL+r}")
        self.dpp_steps([den+r for r in R4], "v_add_f32", [self.X1, self.X2])
        for sw in ("v_permlane16_swap_b32", "v_permlane32_swap_b32"):
            for r in R4: a(f"v_mov_b32 v{t1+r}, v{den+r}")
            for r in R4: a(f"{sw} v{den+r}, v{t1+r}")
            for r in R4: a(f"v_add_f32 v{den+r}, v{den+r}, v{t1+r}")
        self.dwait(0, 4, 'sw1')
        self.stamp(6)
        self.tu()
        self.burst('A1')
        accA, accB, un = 48, 52, 32
        for i in range(4):
            g0 = G + 4*i
            for q in range(4):
                a(f"v_lshlrev_b32 v{un+2*q}, 16, v{g0+q}"); a(f"v_and_b32 v{un+2*q+1}, 0xffff0000, v{g0+q}")
            for q in range(8):
                acc = (accA if q < 4 else accB) + (q & 3)
                op = "v_mul_f32_dpp" if i == 0 else "v_fmac_f32_dpp"
                a(f"{op} v{acc}, v{wv+(q&3)}, v{un+q} row_newbcast:{i} {DPPALL}")
        for r in R4: a(f"v_permlane32_swap_b32 v{accA+r}, v{accB+r}")
        for r in R4: a(f"v_add_f32 v{accA+r}, v{accA+r}, v{accB+r}")
        for r in R4: a(f"v_mov_b32 v{t1+r}, v{accA+r}")
        for r in R4: a(f"v_permlane16_swap_b32 v{accA+r}, v{t1+r}")
        for r in R4: a(f"v_add_f32 v{accA+r}, v{accA+r}, v{t1+r}")

    def check_inline(self, regs, ok_label):
        a = self.a
        acc, acc2 = vT0, vT0 + 1
        dw = [g + i for g in regs for i in range(4)]
        for k, r in enumerate(dw): a(f"v_xor_b32 v{r}, s{sT[k % 4]}, v{r}")
        a(f"v_or3_b32 v{acc}, v{dw[0]}, v{dw[1]}, v{dw[2]}")
        a(f"v_or3_b32 v{acc2}, v{dw[3]}, v{dw[4]}, v{dw[5]}")
        k = 6; tog = 0
        while k < len(dw):
            tgt = acc if tog == 0 else acc2
            a(f"v_or3_b32 v{tgt}, v{tgt}, v{dw[k]}, v{dw[k+1]}"); k += 2; tog ^= 1
        a(f"v_or_b32 v{acc}, v{acc}, v{acc2}")
        a(f"v_and_b32 v{acc}, s{sFF}, v{acc}")
        a(f"v_cmp_ne_u32 vcc, 0, v{acc}")
        a(f"s_cbranch_vccz {ok_label}")

    def row_slot_addr(self):
        a = self.a
        a(f"s_lshl_b32 s{sTmp[0]}, s{sH}, 3"); a(f"s_add_u32 s{sTmp[0]}, s{sTmp[0]}, s{sJ}"); a(f"s_lshl_b32 s{sTmp[0]}, s{sTmp[0]}, 10")
        a(f"s_add_u32 s{sTmp[0]}, s{sTmp[0]}, {O_ROW}")

    def bmiddle(self):
        a = self.a
        k = self.kblk
        if self.mode == "co":
            l0 = a.newlabel("kw"); l1 = a.newlabel("kw")
            a.label(l0)
            a(f"s_cmp_ge_u32 s{sPos}, {self.KEND+self.keep}"); a(f"s_cbranch_scc1 {l1}")
            self.stream_call()
            a(f"s_waitcnt vmcnt({self.keep})")
            a(f"s_branch {l0}")
            a.label(l1)
            a(f"s_waitcnt vmcnt({self.keep})")
        self.stampval(24, sPos)
        self.stamp(16)
        if not self.vsplit or self.woqk: self.wo_setup(pWoB)
        Db = [16, 20, 24]; SB = 28; Tt = 14
        def redops(b):
            D = Db[b % 3]; S = SB + b
            return [f"v_mov_b32_dpp v{S}, v{D} quad_perm:[0,0,0,0] {DPPALL}",
                    f"v_mov_b32_dpp v{Tt}, v{D+2} quad_perm:[2,2,2,2] {DPPALL}",
                    f"v_add_f32_dpp v{S}, v{D+1}, v{S} quad_perm:[1,1,1,1] {DPPALL}",
                    f"v_add_f32_dpp v{Tt}, v{D+3}, v{Tt} quad_perm:[3,3,3,3] {DPPALL}",
                    f"v_add_f32 v{S}, v{S}, v{Tt}"]
        for b in range(16):
            D = Db[b % 3]
            ro = redops(b - 2) if b >= 2 else []
            for t in range(4):
                c = "0" if t == 0 else vr(D, 4)
                a(f"v_mfma_f32_16x16x32_bf16 {vr(D,4)}, {vr(AT+4*t,4)}, {ar(16*b+4*t,4)}, {c}")
                if ro: a(ro[t])
                if self.vsplit:
                    if self.woqk and t == 1 and b < 6: self.wo_one(b)
                    if t == 2 and (6 if self.woqk else 0) <= b < (10 if self.woqk else 4): self.vtr_one(4 + b - (6 if self.woqk else 0))
                else:
                    if t == 1 and b < 8: self.pf_guard(lambda: self.vtr_one(b))
                    if t == 2 and 8 <= b < 14: self.pf_guard(lambda: self.wo_one(b - 8))
            if ro: a(ro[4])
            if b in self.qkcalls: self.topup(self.dq)
        r14, r15 = redops(14), redops(15)
        r15 = [x.replace(f"v{Tt}", "v15") for x in r15]
        for x14, x15 in zip(r14, r15):
            a(x14); a(x15)
        self.stamp(3)
        m, m2 = 14, 15
        a(f"v_max3_f32 v{m}, v{SB}, v{SB+1}, v{SB+2}"); a(f"v_max3_f32 v{m2}, v{SB+3}, v{SB+4}, v{SB+5}")
        a(f"v_max3_f32 v{m}, v{m}, v{SB+6}, v{SB+7}"); a(f"v_max3_f32 v{m2}, v{m2}, v{SB+8}, v{SB+9}")
        a(f"v_max3_f32 v{m}, v{m}, v{SB+10}, v{SB+11}"); a(f"v_max3_f32 v{m2}, v{m2}, v{SB+12}, v{SB+13}")
        a(f"v_max3_f32 v{m}, v{m}, v{SB+14}, v{SB+15}"); a(f"v_max_f32 v{m}, v{m}, v{m2}")
        self.dpp_steps([m], "v_max_f32", ["row_ror:4", "row_ror:8", "b15", "b31"])
        a(f"v_readlane_b32 s{sA}, v{m}, 63")
        a(f"v_mov_b32 v{m2}, s{sSc}")
        a(f"v_mul_f32 v{m}, s{sA}, v{m2}")
        a(f"v_readfirstlane_b32 s{sA}, v{m}")
        for q in range(16): a(f"v_fma_f32 v{SB+q}, v{SB+q}, s{sSc}, -v{m}")
        for q in range(16): a(f"v_exp_f32 v{SB+q}, v{SB+q}")
        l, l2 = 14, 15
        a(f"v_add_f32 v{l}, v{SB}, v{SB+1}"); a(f"v_add_f32 v{l2}, v{SB+2}, v{SB+3}")
        for q in range(4, 16, 2):
            a(f"v_add_f32 v{l}, v{l}, v{SB+q}"); a(f"v_add_f32 v{l2}, v{l2}, v{SB+q+1}")
        a(f"v_add_f32 v{l}, v{l}, v{l2}")
        pk = [f"v_cvt_pk_bf16_f32 v{SB+q}, v{SB+q}, v{SB+q}" for q in range(16)]
        red = [f"v_add_f32_dpp v{l}, v{l}, v{l} row_ror:4 {DPPALL}", f"v_add_f32_dpp v{l}, v{l}, v{l} row_ror:8 {DPPALL}",
               f"v_add_f32_dpp v{l}, v{l}, v{l} row_bcast:15 row_mask:0xa bank_mask:0xf", f"v_add_f32_dpp v{l}, v{l}, v{l} row_bcast:31 row_mask:0xc bank_mask:0xf"]
        for i in range(4):
            for x_ in pk[4*i:4*i+2]: a(x_)
            a(red[i])
            for x_ in pk[4*i+2:4*i+4]: a(x_)
        a(f"v_readlane_b32 s{sB_}, v{l}, 63")
        self.stamp(4)
        if self.mode == "co":
            self.drain(self.keep)
            a("s_waitcnt vmcnt(16)")
        Ab, Do = 44, 52
        a(f"s_lshl_b32 s{sTmp[0]}, s{sW}, 14"); a(f"v_add_u32 v15, s{sTmp[0]}, v{vL16}")
        if L_VL: a(f"v_add_u32 v15, {L_VL}, v15")
        if self.smf:
            self.pv_smf(SB, Ab, Do)
        else:
            self.pv_dense(SB, Ab, Do)
        self.row_slot_addr()
        a(f"v_writelane_b32 v{Do}, s{sA}, 32"); a(f"v_writelane_b32 v{Do+1}, s{sB_}, 32")
        self.red_write(Do)
        a("s_waitcnt lgkmcnt(0)"); a("s_barrier")
        self.stamp(5)
        lf = a.newlabel("bfin")
        a(f"s_cmp_lg_u32 s{sW}, 0"); a(f"s_cbranch_scc1 {lf}")
        G = 16; MLr = 32
        a(f"v_mov_b32 v14, {L_RED+512}")
        for w in range(4): a(f"ds_read_b64 {vr(MLr+2*w,2)}, v14 offset:{w*RSTR}")
        self.red_final_read(G)
        a("s_waitcnt lgkmcnt(4)")
        M = 40
        a(f"v_max3_f32 v{M}, v{MLr}, v{MLr+2}, v{MLr+4}"); a(f"v_max_f32 v{M}, v{M}, v{MLr+6}")
        for w in range(4): a(f"v_sub_f32 v{MLr+2*w}, v{MLr+2*w}, v{M}")
        for w in range(4): a(f"v_exp_f32 v{MLr+2*w}, v{MLr+2*w}")
        a(f"v_readfirstlane_b32 s{sA}, v{M}")
        a("s_waitcnt lgkmcnt(0)")
        for r in range(4): a(f"v_mul_f32 v{G+r}, v{MLr}, v{G+r}")
        for w in range(1, 4):
            for r in range(4): a(f"v_fmac_f32 v{G+r}, v{MLr+2*w}, v{G+4*w+r}")
        a(f"v_writelane_b32 v{G}, s{sA}, 32")
        self.tag([G, G+1, G+2, G+3])
        a("s_mov_b32 exec_hi, 1")
        self.local_stores([(G, vL16, sTmp[0], None)])
        a("s_mov_b32 exec_hi, -1")
        a.label(lf)
        self.stamp(7)

    def pv_dense(self, SB, Ab, Do):
        a = self.a
        LB = [16, 20, 24, 56]
        order = [(b, u) for b in range(10) for u in range(4)] + [(b, u) for b in range(10, 14) for u in range(4)] + [(b, u) for b in (14, 15) for u in range(4)]
        def build(kk):
            b, u = order[kk]; A = Ab + 4 * (kk % 2)
            for r in range(4):
                a(f"v_and_b32_dpp v{A+r}, v{SB+b}, v{vM[r]} row_newbcast:{4*u} {DPPALL}")
        def bop(kk):
            b, u = order[kk]
            if b < 10: return vr(VRES+16*b+4*u, 4)
            if b < 14: return vr(LB[u], 4)
            return vr(self.vtr_reg(b, u), 4)
        def ldsrd(b, u):
            a(f"ds_read_b128 {vr(LB[u],4)}, v15 offset:{((b-10)*4+u)*1024}")
        build(0); build(1)
        for kk in range(len(order)):
            b, u = order[kk]
            if (b, u) == (8, 0):
                self.stamp(17)
                a("s_waitcnt vmcnt(0)")
                self.stamp(18)
                for uu in range(4): ldsrd(10, uu)
            if 10 <= b < 14: a(f"s_waitcnt lgkmcnt(3)" if not (b == 13 and u > 0) else f"s_waitcnt lgkmcnt({3-u})")
            A = Ab + 4 * (kk % 2)
            c = "0" if kk == 0 else vr(Do, 4)
            a(f"v_mfma_f32_16x16x32_bf16 {vr(Do,4)}, {vr(A,4)}, {bop(kk)}, {c}")
            if 10 <= b < 13: ldsrd(b + 1, u)
            if kk + 2 < len(order): build(kk + 2)

    def pv_smf(self, SB, Ab, Do):
        a = self.a
        N0, N1, IDX = 56, 57, 58
        n = 14
        a(f"v_bfe_u32 v{n}, v{vL16}, 4, 4")
        a(f"v_and_b32 v{IDX}, 3, v{n}"); a(f"v_mul_u32_u24 v{IDX}, 0x1111, v{IDX}")
        a(f"v_lshrrev_b32 v{n}, 2, v{n}"); a(f"v_mov_b32 v59, 0xffff")
        a(f"v_cmp_eq_u32 vcc, 0, v{n}"); a(f"v_cndmask_b32 v{N0}, 0, v59, vcc")
        a(f"v_cmp_eq_u32 vcc, 1, v{n}"); a(f"v_cndmask_b32 v{N1}, 0, v59, vcc")
        for r in range(4): a(f"v_mov_b32 v{Do+r}, 0")
        order = [(b, s_) for b in range(16) for s_ in range(2)]
        LB = [16, 28]
        def build(kk):
            b, s_ = order[kk]; A = Ab + 4 * (kk % 2)
            a(f"v_and_b32_dpp v{A}, v{SB+b}, v{N0} row_newbcast:{8*s_} {DPPALL}")
            a(f"v_and_b32_dpp v{A+1}, v{SB+b}, v{N1} row_newbcast:{8*s_} {DPPALL}")
            a(f"v_and_b32_dpp v{A+2}, v{SB+b}, v{N0} row_newbcast:{8*s_+4} {DPPALL}")
            a(f"v_and_b32_dpp v{A+3}, v{SB+b}, v{N1} row_newbcast:{8*s_+4} {DPPALL}")
        def bop(kk):
            b, s_ = order[kk]
            if b < 10: return vr(VRES+16*b+8*s_, 8)
            if b < 14: return vr(LB[s_], 8)
            return vr(self.vtr_reg(b, 2*s_), 8)
        def ldsrd(b, s_):
            for hf in range(2):
                a(f"ds_read_b128 {vr(LB[s_]+4*hf,4)}, v15 offset:{((b-10)*4+2*s_+hf)*1024}")
        build(0); build(1)
        for kk in range(len(order)):
            b, s_ = order[kk]
            if (b, s_) == (8, 0):
                self.stamp(17)
                a("s_waitcnt vmcnt(0)")
                self.stamp(18)
                ldsrd(10, 0); ldsrd(10, 1)
            if 10 <= b < 14: a("s_waitcnt lgkmcnt(2)" if not (b == 13 and s_ == 1) else "s_waitcnt lgkmcnt(0)")
            A = Ab + 4 * (kk % 2)
            a(f"v_smfmac_f32_16x16x64_bf16 {vr(Do,4)}, {vr(A,4)}, {bop(kk)}, v{IDX}")
            if 10 <= b < 13: ldsrd(b + 1, s_)
            if kk + 2 < len(order): build(kk + 2)

    def opart(self):
        a = self.a
        G, ML = 16, 20
        a(f"v_lshrrev_b32 v14, 7, v{vL16}"); a(f"v_lshlrev_b32 v15, 10, v14")
        a(f"v_and_b32 v14, 0x70, v{vL16}"); a(f"v_add_u32 v14, v15, v14")
        a(f"s_lshl_b32 s{sTmp[0]}, s{sH}, 13"); a(f"s_add_u32 s{sTmp[0]}, s{sTmp[0]}, {O_ROW}")
        a(f"s_lshl_b32 s{sTmp[1]}, s{sW}, 7"); a(f"s_add_u32 s{sTmp[1]}, s{sTmp[1]}, s{sTmp[0]}")
        N0, N1, IDX = 60, 61, 62
        if self.opt1:
            a(f"v_lshrrev_b32 v59, 8, v{vL16}"); a(f"v_and_b32 v58, 1, v59"); a(f"v_lshrrev_b32 v59, 1, v59"); a(f"v_lshl_add_u32 v59, v58, 2, v59")
            a(f"v_mul_u32_u24 v59, 160, v59")
            self.smf_consts(N0, N1, IDX, 57)
        else:
            a(f"v_lshrrev_b32 v59, 8, v{vL16}"); a(f"v_mul_u32_u24 v59, 160, v59")
        a(f"v_and_b32 v58, 0xf0, v{vL16}"); a(f"v_add_u32 v59, v59, v58")
        a(f"s_mul_i32 s{sTmp[2]}, s{sW}, {WOSTR}"); a(f"s_add_u32 s{sTmp[2]}, s{sTmp[2]}, {L_R0}"); a(f"v_add_u32 v59, s{sTmp[2]}, v59")
        def coladdr():
            t = 63 if self.opt1 else 14
            u = 58 if self.opt1 else 15
            a(f"v_lshrrev_b32 v{t}, 4, v{vL16}"); a(f"v_mul_u32_u24 v{u}, 13108, v{t}"); a(f"v_lshrrev_b32 v{u}, 16, v{u}")
            a(f"v_mul_u32_u24 v{u-1 if self.opt1 else 24}, 5, v{u}"); a(f"v_sub_u32 v{t}, v{t}, v{u-1 if self.opt1 else 24}"); a(f"v_lshlrev_b32 v{t}, 4, v{t}"); a(f"v_lshl_add_u32 v{t}, v{u}, 7, v{t}")
            a(f"s_lshl_b32 s{sTmp[4]}, s{sJ}, 5"); a(f"s_add_u32 s{sTmp[4]}, s{sTmp[4]}, s{sH}"); a(f"s_lshl_b32 s{sTmp[4]}, s{sTmp[4]}, 9")
            a(f"s_add_u32 s{sTmp[4]}, s{sTmp[4]}, s{sCol}")
            return t
        if self.opt1: tcol = coladdr()
        def iss():
            a(f"buffer_load_dwordx4 {vr(ML,4)}, v15, {W}, s{sTmp[0]} offen offset:512 sc1")
            a(f"buffer_load_dwordx4 {vr(G,4)}, v14, {W}, s{sTmp[1]} offen sc1")
        self.poll(iss, [ML, G], site='row')
        self.stamp(8)
        self.tu()
        self.burst('O0')
        WB = 24
        for i in range(8):
            off = ((i >> 1) * 8 + (i & 1) * 2) * 160 if self.opt1 else i * 640
            a(f"ds_read_b128 {vr(WB+4*i,4)}, v59 offset:{off}")
        if self.pfnew and not (self.opt1 and self.latepf): self.next_w()
        self.combine8(G, ML, 56)
        Xp = 14
        a(f"v_cvt_pk_bf16_f32 v{Xp}, v{G}, v{G}")
        D, Ab = 56, 16
        a("s_waitcnt lgkmcnt(0)")
        if self.opt1:
            self.pv_gemv_smf(Xp, 4, lambda i: vr(WB+8*i, 8), D, Ab, N0, N1, IDX)
        else:
            self.pv_gemv(Xp, 8, lambda i: vr(WB+4*i, 4), D, Ab)
        self.red_write(D)
        if self.opt1:
            if self.pfnew and self.latepf: self.next_w()
        else:
            tcol = coladdr()
        self.tu()
        a("s_waitcnt lgkmcnt(0)"); a("s_barrier")
        lf = a.newlabel("ofin")
        a(f"s_cmp_lg_u32 s{sW}, 0"); a(f"s_cbranch_scc1 {lf}")
        self.red_final_read(G)
        a("s_waitcnt lgkmcnt(0)")
        self.sum4(G); self.tag([G, G+1, G+2, G+3])
        self.exec_set(0xfffff, 0)
        a(f"buffer_store_dwordx4 {vr(G,4)}, v{tcol}, {W}, s{sTmp[4]} offen sc1")
        self.exec_all()
        a.label(lf)
        self.stamp(9)
        if not self.pfnew: self.next_w()
        if self.skipfin:
            lk = a.newlabel("keep")
            a(f"s_cmp_lg_u32 s{sL}, {(self.stop or 4) - 1}"); a(f"s_cbranch_scc1 {lk}")
            a(f"s_cmp_lg_u32 s{sH}, 0"); a("s_cbranch_scc1 L_fin2")
            a.label(lk)
        if self.vsplit and not self.woqk:
            lb = a.newlabel("nowo")
            a(f"s_bitcmp1_b32 s{sL}, 0"); a(f"s_cbranch_scc1 {lb}")
            self.load_wo(pWoB)
            a.label(lb)
        a(f"v_lshrrev_b32 v14, 7, v{vL16}"); a(f"v_lshlrev_b32 v14, 9, v14")
        a(f"v_and_b32 v15, 0x70, v{vL16}"); a(f"v_add_u32 v14, v14, v15")
        a(f"s_lshl_b32 s{sTmp[0]}, s{sJ}, 14"); a(f"s_lshl_b32 s{sTmp[1]}, s{sW}, 7"); a(f"s_add_u32 s{sTmp[0]}, s{sTmp[0]}, s{sTmp[1]}")
        a(f"s_add_u32 s{sTmp[0]}, s{sTmp[0]}, s{sCol}")
        for i in range(1, 4): a(f"s_add_u32 s{sTmp[i]}, s{sTmp[0]}, {i*4096}")
        if self.opt1: self.prep_q()
        def issc():
            for i in range(4):
                a(f"buffer_load_dwordx4 {vr(G+4*i,4)}, v14, {W}, s{sTmp[i]} offen sc1")
        self.poll(issc, [G, G+4, G+8, G+12], execmask=(0x1f1f1f1f, 0x1f1f1f1f), site='col')
        self.stampval(28, sSpin); self.stampval(29, sPos)
        self.stamp(10)
        self.tu()
        self.burst('Q0')
        self.sum4(G)
        for r in range(4): a(f"v_add_f32_dpp v{G+r}, v{G+r}, v{G+r} row_ror:8 {DPPALL}")
        self.treduce([G, G+1, G+2, G+3])
        a(f"v_add_f32 v{G}, v{G}, v{vX}")
        a(f"v_cndmask_b32 v{vX}, 0, v{G}, s[{sM5}:{sM5+1}]")

    def second_w(self, lb=None):
        a = self.a
        lb = lb or a.newlabel("nouk")
        a(f"s_bitcmp1_b32 s{sL}, 0"); a(f"s_cbranch_scc1 {lb}")
        self.load_wuk()
        if self.vsplit:
            lc = a.newlabel("vtj")
            a(f"s_branch {lc}")
            a.label(lb)
            for k in range(4): self.vtr_one(k)
            a.label(lc)
        else:
            a.label(lb)

    def next_w(self):
        a = self.a
        lnp = a.newlabel("nopf"); lb = a.newlabel("nouk")
        a(f"s_cmp_eq_u32 s{sL}, 3"); a(f"s_cbranch_scc1 {lnp}")
        a(f"s_add_u32 s{sL}, s{sL}, 1")
        self.load_wq()
        if not self.split2: self.second_w(lb)
        a(f"s_sub_u32 s{sL}, s{sL}, 1")
        a.label(lnp)

    def epilogue(self):
        a = self.a
        le = a.newlabel("fin")
        a(f"s_cmp_lg_u32 s{sH}, 0"); a(f"s_cbranch_scc1 {le}")
        self.srd(SRD_B, pOut, 1280)
        a(f"v_lshrrev_b32 v14, 4, v{vL16}"); a(f"v_and_b32 v15, 15, v14"); a(f"v_lshrrev_b32 v14, 4, v14")
        a(f"v_lshl_add_u32 v14, v15, 2, v14")
        a(f"s_mul_i32 s{sTmp[0]}, s{sJ}, 80"); a(f"s_mul_i32 s{sTmp[1]}, s{sW}, 20"); a(f"s_add_u32 s{sTmp[0]}, s{sTmp[0]}, s{sTmp[1]}")
        a(f"v_add_u32 v14, s{sTmp[0]}, v14"); a(f"v_lshlrev_b32 v14, 1, v14")
        a(f"v_cvt_pk_bf16_f32 v15, v{vX}, v{vX}")
        a(f"s_mov_b64 exec, s[{sM5}:{sM5+1}]")
        a(f"buffer_store_short v15, v14, s[{SRD_B}:{SRD_B+3}], 0 offen")
        self.exec_all()
        a(f"s_cmp_lg_u32 s2, 0"); a(f"s_cbranch_scc1 {le}")
        a(f"s_cmp_lg_u32 s{sW}, 0"); a(f"s_cbranch_scc1 {le}")
        a(f"v_mov_b32 v14, 0")
        a("s_mov_b64 exec, 1")
        a(f"buffer_store_dword v{vT}, v14, {W}, 0 offen sc1")
        self.exec_all()
        a.label(le)
        a.label("L_fin2")
        l2 = a.newlabel("noerr")
        a(f"s_cmp_eq_u32 s{sErr}, 0"); a(f"s_cbranch_scc1 {l2}")
        self.srd(SRD_B, sDbg, 256)
        a(f"v_mov_b32 v14, 0"); a(f"v_mov_b32 v15, 0xdead")
        a("s_mov_b64 exec, 1")
        a(f"buffer_store_dword v15, v14, s[{SRD_B}:{SRD_B+3}], 0 offen")
        self.exec_all()
        a.label(l2)

    def build(self):
        a = self.a
        self.prologue()
        a.label("L_layer")
        self.qpart()
        a(f"s_bitcmp1_b32 s{sL}, 0"); a(f"s_cbranch_scc1 L_bmid")
        self.amiddle()
        a(f"s_branch L_opart")
        a.label("L_bmid")
        self.bmiddle()
        a.label("L_opart")
        self.opart()
        self.stamp(11)
        for L_ in range(4): self.dbgstamp(f"end{L_}", L_)
        a(f"s_add_u32 s{sL}, s{sL}, 1"); a(f"s_xor_b32 s{sCol}, s{sCol}, 0x20000")
        nl = self.stop if self.stop else 4
        a(f"s_cmp_ge_u32 s{sL}, {nl}"); a("s_cbranch_scc1 L_done")
        self.next_tag()
        a("s_branch L_layer")
        a.label("L_done")
        self.epilogue()
        if self.stamps:
            a(f"s_mov_b32 s{sL}, 3")
            self.stamp(13)
        a("s_waitcnt vmcnt(0)")
        a.label("L_end")
        a("s_endpgm")
        self.dw_sub()
        self.stream()
        a.label("L_codeend")
        return fix(a.lines)

HEADER = open("interleave_layers__compressed_kv_cla__mha_block_cached__decode.s.ref").read().split("; Override launch")[0]

def make(path, **kw):
    body = "\n".join(Gen(**kw).build())
    src = f"""{HEADER}; @launch grid=(256,1,1) block=(256,1,1) lds={LDS_BYTES}
.amdgcn_target "amdgcn-amd-amdhsa--gfx950"
.text
.globl {KNAME}
.p2align 8
.type {KNAME},@function
{KNAME}:
{body}
.section .rodata,"a"
.p2align 6
.amdhsa_kernel {KNAME}
  .amdhsa_next_free_vgpr 512
  .amdhsa_next_free_sgpr 102
  .amdhsa_accum_offset 256
  .amdhsa_group_segment_fixed_size 0
  .amdhsa_kernarg_size 112
  .amdhsa_user_sgpr_count 2
  .amdhsa_user_sgpr_kernarg_segment_ptr 1
  .amdhsa_system_sgpr_workgroup_id_x 1
  .amdhsa_float_denorm_mode_32 3
.end_amdhsa_kernel
"""
    open(path, "w").write(src)

if __name__ == "__main__":
    import argparse
    ap = argparse.ArgumentParser()
    ap.add_argument("-o", default="k.s"); ap.add_argument("--opts", default="")
    x = ap.parse_args()
    kw = {}
    for o in filter(None, x.opts.split(";")):
        k_, v_ = o.split("="); kw[k_] = eval(v_)
    make(x.o, **kw)
```

```python
import sys, struct
from hazard import fix

KNAME = "interleave_layers__compressed_kv_cla__mha_block_cached__decode_kernel"

class Asm:
    def __init__(self): self.lines = []; self.n = 0
    def __call__(self, s):
        for l in s.split("\n"):
            l = l.strip()
            if l: self.lines.append(l)
    def label(self, name): self.lines.append(name + ":")
    def newlabel(self, base="L"):
        self.n += 1; return f"{base}_{self.n}"

def vr(b, n=1): return f"v{b}" if n == 1 else f"v[{b}:{b+n-1}]"
def ar(b, n=1): return f"a{b}" if n == 1 else f"a[{b}:{b+n-1}]"
DPPALL = "row_mask:0xf bank_mask:0xf"
def f32hex(x): return "0x%08x" % struct.unpack("<I", struct.pack("<f", x))[0]

O_XCC  = 0x001000
O_STAMP = 0x080000
O_QP   = 0x100000
O_ROW  = 0x180000
O_COL  = 0x1C0000
O_QABS = 0x200000
O_ML1  = 0x210000
O_C2   = 0x240000
O_ML2  = 0x2C0000
O_C1   = 0x300000

L_VL  = 0
L_CKV = 65536
L_R0  = 131072
WOSTR = 5184
L_ST  = 151808
L_RED = 156160
RSTR  = 1056
L_U   = 160384
LDS_BYTES = 163840

sH, sJ, sW, sL, sAct = 3, 4, 5, 6, 7
SRD_WS, SRD_K, SRD_V, SRD_A, SRD_B = 8, 12, 16, 20, 24
sSPC, sRET = 28, 30
sT = [32, 33, 34, 35]
sSel = [36, 37, 38, 39]
pWqA, pWqB, pWuk, pWuv, pWoA, pWoB, pCkv, pOut, pX = 40, 42, 44, 46, 48, 50, 52, 54, 56
sCol = 58
sGA, sS = 59, 60
sSO = 61
sSpin = 62
sPos = 63
sFF = 64
sTmp = list(range(65, 70))
sMask = [76, 78, 80, 82]
sM5 = 84
sDbg = 86
sErr = 88
sLocal = 89
sA, sB_ = 90, 91
sTs = 92
sXG, sI, sSc, sXcc = 98, 99, 100, 101
sTf = 97
sDW, sRET2, sYoung, sVm, sVm2, sDl = 70, 72, 74, 75, 94, 95
sBud = 57
sC1 = 56
sCap = 0

vL16, vM, vT, vX, vWoff, vKoff, vVoff, vRedW = 0, [1, 2, 3, 4], 5, 6, 7, 8, 9, 10
vT0 = 11
vCk = 11
vWo = 13
WQ, WUK, WUV, VTR, VRES = 76, 60, 80, 64, 96
AT = 44

SC = (128 ** -0.5) * 1.4426950408889634
SPIN_MAX = 1 << 16
W = f"s[{SRD_WS}:{SRD_WS+3}]"

class Gen:
    def __init__(self, kblk=8, stream_mode="co", stop_after=None, local=True, stamps="", pol="nt", wpol="", cpol="", codepf=True,
                 qkcalls=(4, 10), sent=True, nopf=False, once=True, xcalls=(), dlim=6, keep=6, addn=True, pretouch=True, mlsent=True, slp=0, sent1=False, pfnew=True, mltail=True, dsite=None, pre=None, rsl=None, dq=None, dbg=None, bud=None, skipfin=True, vsplit=True, woqk=True, split2=True, c1touch=True, c1sc1=False, c1touch2=None, smf=True, cap=None, pre1=None, burst=None, c1bf=True, opt1=True, latepf=False, tus=0, tusl=0, ack=None, ack1=None):
        self.ack1 = ack1 or ()
        self.ack = ack or ()
        self.tus = tus; self.tusl = tusl
        self.latepf = latepf
        self.opt1 = opt1
        self.c1bf = c1bf
        self.burstn = burst or {}
        self.pre1 = pre1
        self.cap = cap
        self.smf = smf
        self.c1touch = c1touch; self.c1sc1 = c1sc1; self.c1touch2 = c1touch2
        self.split2 = split2
        self.woqk = woqk
        self.skipfin = skipfin; self.vsplit = vsplit
        self.bud = bud
        self.dbg = dbg
        self.pre = pre or {}; self.rsl = rsl or {}; self.dq = dq
        self.pfnew = pfnew; self.mltail = mltail; self.dsite = dsite or {}
        self.slp = slp; self.sent1 = sent1
        self.addn = addn; self.pretouch = pretouch; self.mlsent = mlsent
        self.once = once; self.xcalls = xcalls; self.dlim = dlim; self.keep = keep
        self.nopf = nopf
        self.a = Asm(); self.kblk = kblk; self.mode = stream_mode; self.stop = stop_after
        self.local = local; self.stamps = stamps; self.pol = pol; self.wpol = wpol; self.cpol = cpol; self.codepf = codepf
        self.qkcalls = qkcalls; self.sent = sent

    def capture(self, fn):
        saved = self.a.lines; self.a.lines = []
        fn()
        out = self.a.lines; self.a.lines = saved
        return out
    def emit(self, lines):
        self.a.lines.extend(lines)
    def srd(self, s, lo, nbytes):
        a = self.a
        a(f"s_mov_b32 s{s}, s{lo}"); a(f"s_mov_b32 s{s+1}, s{lo+1}")
        a(f"s_mov_b32 s{s+2}, {nbytes:#x}"); a(f"s_mov_b32 s{s+3}, 0x20000")
    def exec_all(self): self.a("s_mov_b64 exec, -1")
    def exec_set(self, lo, hi):
        self.a(f"s_mov_b32 exec_lo, {lo:#x}"); self.a(f"s_mov_b32 exec_hi, {hi:#x}")
    def tag(self, regs):
        for i, r in enumerate(regs):
            self.a(f"v_perm_b32 v{r}, v{r}, v{vT}, s{sSel[i%4]}")
    def stamp(self, idx):
        if not self.stamps: return
        if self.stamps == "light" and idx not in (12, 13, 5): return
        a = self.a
        lab = a.newlabel("st")
        a(f"s_cmp_lg_u32 s{sW}, 0"); a(f"s_cbranch_scc1 {lab}")
        a(f"s_memrealtime s[{sTs}:{sTs+1}]")
        a("s_waitcnt lgkmcnt(0)")
        a(f"s_lshl_b32 s96, s2, 2"); a(f"s_add_u32 s96, s96, s{sL}"); a(f"s_lshl_b32 s96, s96, 7")
        a(f"s_add_u32 s96, s96, {O_STAMP + idx*4}")
        a(f"v_mov_b32 v{vT0}, s{sTs}")
        a(f"s_mov_b64 s[{sTs}:{sTs+1}], exec"); a("s_mov_b64 exec, 1")
        a(f"buffer_store_dword v{vT0}, off, {W}, s96")
        a(f"s_mov_b64 exec, s[{sTs}:{sTs+1}]")
        a.label(lab)
    def dbgstamp(self, k, cond_layer=None):
        if not self.dbg or k not in self.dbg: return
        a = self.a
        k = self.dbg.index(k)
        lab = a.newlabel("db")
        a(f"s_cmp_lg_u32 s{sW}, 0"); a(f"s_cbranch_scc1 {lab}")
        a(f"s_cmp_ge_u32 s2, 8"); a(f"s_cbranch_scc1 {lab}")
        if cond_layer is not None:
            a(f"s_cmp_lg_u32 s{sL}, {cond_layer}"); a(f"s_cbranch_scc1 {lab}")
        a(f"s_memrealtime s[{sTs}:{sTs+1}]")
        a("s_waitcnt lgkmcnt(0)")
        a(f"s_mov_b32 s{SRD_A}, s{sDbg}"); a(f"s_mov_b32 s{SRD_A+1}, s{sDbg+1}"); a(f"s_mov_b32 s{SRD_A+2}, 256"); a(f"s_mov_b32 s{SRD_A+3}, 0x20000")
        a(f"s_lshl_b32 s96, s2, 3"); a(f"s_add_u32 s96, s96, {4*k}")
        a(f"v_mov_b32 v{vT0}, s{sTs}")
        a(f"s_mov_b64 s[{sTs}:{sTs+1}], exec"); a("s_mov_b64 exec, 1")
        a(f"buffer_store_dword v{vT0}, off, s[{SRD_A}:{SRD_A+3}], s96")
        a(f"s_mov_b64 exec, s[{sTs}:{sTs+1}]")
        a.label(lab)
    def stampval(self, idx, sreg):
        if self.stamps != "full": return
        a = self.a
        lab = a.newlabel("sv")
        a(f"s_cmp_lg_u32 s{sW}, 0"); a(f"s_cbranch_scc1 {lab}")
        a(f"s_lshl_b32 s96, s2, 2"); a(f"s_add_u32 s96, s96, s{sL}"); a(f"s_lshl_b32 s96, s96, 7")
        a(f"s_add_u32 s96, s96, {O_STAMP + idx*4}")
        a(f"v_mov_b32 v{vT0}, s{sreg}")
        a(f"s_mov_b64 s[{sTs}:{sTs+1}], exec"); a("s_mov_b64 exec, 1")
        a(f"buffer_store_dword v{vT0}, off, {W}, s96")
        a(f"s_mov_b64 exec, s[{sTs}:{sTs+1}]")
        a.label(lab)
    def stream_call(self):
        self.a(f"s_swappc_b64 s[{sRET}:{sRET+1}], s[{sSPC}:{sSPC+1}]")
    def maybe_stream(self):
        a = self.a
        lab = a.newlabel("ns")
        a(f"s_cmp_eq_u32 s{sAct}, 0"); a(f"s_cbranch_scc1 {lab}")
        self.stream_call()
        a.label(lab)
    def read_vm(self):
        a = self.a
        a(f"s_getreg_b32 s{sVm}, hwreg(HW_REG_IB_STS)")
        a(f"s_bfe_u32 s{sVm2}, s{sVm}, 0x20016"); a(f"s_and_b32 s{sVm}, s{sVm}, 15")
        a(f"s_lshl4_add_u32 s{sVm}, s{sVm2}, s{sVm}")
    def dw_sub(self):
        a = self.a
        a.label("L_dw")
        self.read_vm()
        a(f"s_cmp_le_u32 s{sVm}, s{sYoung}"); a("s_cbranch_scc1 L_dwret")
        a(f"s_cmp_ge_u32 s{sVm}, s{sDl}"); a("s_cbranch_scc1 L_dw")
        a(f"s_cmp_eq_u32 s{sAct}, 0"); a("s_cbranch_scc1 L_dw")
        if self.cap is not None:
            a(f"s_cmp_ge_u32 s{sPos}, s{sCap}"); a("s_cbranch_scc1 L_dw")
        if self.bud is not None:
            a(f"s_cmp_le_i32 s{sBud}, 0"); a("s_cbranch_scc1 L_dw")
            a(f"s_sub_u32 s{sBud}, s{sBud}, {self.kblk}")
        self.stream_call()
        a(f"s_add_u32 s{sYoung}, s{sYoung}, {self.kblk}")
        a("s_branch L_dw")
        a.label("L_dwret")
        a(f"s_setpc_b64 s[{sRET2}:{sRET2+1}]")
    def dwait(self, young, n=0, site=None):
        dl = self.dsite.get(site, self.dlim)
        a = self.a
        if self.mode != "co":
            a(f"s_waitcnt vmcnt({young})"); return
        ns = a.newlabel("dwn"); jn = a.newlabel("dwj")
        a(f"s_cmp_eq_u32 s{sAct}, 0"); a(f"s_cbranch_scc1 {ns}")
        a(f"s_mov_b32 s{sYoung}, {young}"); a(f"s_mov_b32 s{sDl}, {dl + n if dl else 0}")
        if self.cap is not None: a(f"s_mov_b32 s{sCap}, {self.cap.get(site, 999)}")
        a(f"s_swappc_b64 s[{sRET2}:{sRET2+1}], s[{sDW}:{sDW+1}]")
        a(f"s_branch {jn}")
        a.label(ns)
        a(f"s_waitcnt vmcnt({young})")
        a.label(jn)
    def tu(self):
        if self.tus: self.topup(self.tus, site='tu')
    def burst(self, site):
        n = self.burstn.get(site, 0)
        if self.mode != "co" or not n: return
        a = self.a
        lab = a.newlabel("bu")
        for i in range(n // self.kblk):
            a(f"s_cmp_eq_u32 s{sAct}, 0"); a(f"s_cbranch_scc1 {lab}")
            self.stream_call()
        a.label(lab)
    def topup(self, depth=None, site=None):
        if self.mode != "co": return
        depth = self.dlim if depth is None else depth
        capv = self.cap.get(site) if self.cap else None
        a = self.a
        lab = a.newlabel("tu")
        a(f"s_cmp_eq_u32 s{sAct}, 0"); a(f"s_cbranch_scc1 {lab}")
        self.read_vm()
        a(f"s_cmp_ge_u32 s{sVm}, {depth}"); a(f"s_cbranch_scc1 {lab}")
        if capv: a(f"s_cmp_ge_u32 s{sPos}, {capv}"); a(f"s_cbranch_scc1 {lab}")
        self.stream_call()
        a.label(lab)
    def drain(self, keep):
        a = self.a
        l0 = a.newlabel("drain"); l1 = a.newlabel("drained")
        a.label(l0)
        a(f"s_cmp_eq_u32 s{sAct}, 0"); a(f"s_cbranch_scc1 {l1}")
        self.stream_call()
        a(f"s_waitcnt vmcnt({keep})")
        a(f"s_branch {l0}")
        a.label(l1)

    def predelay(self, site):
        a = self.a
        if site in self.ack:
            if site in ('col', 'row', 'q0', 'q1', 'q2'):
                self.dwait(0, 0, site); a("s_barrier")
            else:
                self.dwait(0, 0, site)
            return
        p0 = self.pre.get(site, 0)
        if site in self.ack1:
            def ackw():
                self.dwait(0, 0, site)
                if site in ('col', 'row', 'q0', 'q1', 'q2'): a("s_barrier")
            if site in ('q0', 'q1'):
                ackw(); return
            if site == 'q2':
                if p0: a(f"s_sleep {p0}")
                return
            l0 = a.newlabel("pd"); l1 = a.newlabel("pd")
            a(f"s_cmp_ge_u32 s{sL}, 2"); a(f"s_cbranch_scc1 {l0}")
            ackw()
            a(f"s_branch {l1}")
            a.label(l0)
            if p0: a(f"s_sleep {p0}")
            a.label(l1)
            return
        p1 = self.pre1.get(site, p0) if self.pre1 is not None else p0
        if p0 == p1:
            if p0: a(f"s_sleep {p0}")
            return
        l0 = a.newlabel("pd"); l1 = a.newlabel("pd")
        a(f"s_cmp_ge_u32 s{sL}, 2"); a(f"s_cbranch_scc1 {l0}")
        if p1 and self.tusl:
            n = max(1, p1 // self.tusl)
            for _ in range(n):
                self.tu(); a(f"s_sleep {self.tusl}")
        elif p1: a(f"s_sleep {p1}")
        a(f"s_branch {l1}")
        a.label(l0)
        if p0: a(f"s_sleep {p0}")
        a.label(l1)

    def poll(self, issue, regs, execmask=None, stream=True, site=None):
        a = self.a
        lp = a.newlabel("poll"); ns = a.newlabel("pns"); jn = a.newlabel("pj"); dn = a.newlabel("pdone")
        a(f"s_mov_b32 s{sSpin}, 0")
        if self.bud is not None: a(f"s_mov_b32 s{sBud}, {self.bud.get(site, self.bud.get('*', 8))}")
        self.predelay(site)
        if execmask: self.exec_set(*execmask)
        a.label(lp)
        issue()
        if execmask and self.mode == "co": self.exec_all()
        self.dwait(0, len(regs) if self.addn else 0, site)
        if execmask and self.mode == "co": self.exec_set(*execmask)
        a.label(jn)
        acc, acc2 = vT0, vT0 + 1
        dw = [g + i for g in regs for i in range(4)]
        for k, r in enumerate(dw): a(f"v_xor_b32 v{r}, s{sT[k % 4]}, v{r}")
        a(f"v_or3_b32 v{acc}, v{dw[0]}, v{dw[1]}, v{dw[2]}")
        if len(dw) == 4:
            a(f"v_or_b32 v{acc}, v{acc}, v{dw[3]}")
        else:
            a(f"v_or3_b32 v{acc2}, v{dw[3]}, v{dw[4]}, v{dw[5]}")
            k = 6; tog = 0
            while k < len(dw):
                tgt = acc if tog == 0 else acc2
                a(f"v_or3_b32 v{tgt}, v{tgt}, v{dw[k]}, v{dw[k+1]}"); k += 2
                tog ^= 1
            a(f"v_or_b32 v{acc}, v{acc}, v{acc2}")
        a(f"v_and_b32 v{acc}, s{sFF}, v{acc}")
        a(f"v_cmp_ne_u32 vcc, 0, v{acc}")
        a(f"s_cbranch_vccz {dn}")
        if self.rsl.get(site): a(f"s_sleep {self.rsl[site]}")
        if self.slp:
            lz = a.newlabel("nsl")
            a(f"s_cmp_eq_u32 s{sAct}, 0"); a(f"s_cbranch_scc1 {lz}")
            a(f"s_sleep {self.slp}")
            a.label(lz)
        a(f"s_add_u32 s{sSpin}, s{sSpin}, 1")
        a(f"s_cmp_lt_u32 s{sSpin}, {SPIN_MAX}")
        a(f"s_cbranch_scc1 {lp}")
        a(f"s_mov_b32 s{sErr}, 1")
        a.label(dn)
        if execmask: self.exec_all()

    def dpp_steps(self, regs, op, steps):
        for d in steps:
            for r in regs:
                if d == "b15": self.a(f"{op}_dpp v{r}, v{r}, v{r} row_bcast:15 row_mask:0xa bank_mask:0xf")
                elif d == "b31": self.a(f"{op}_dpp v{r}, v{r}, v{r} row_bcast:31 row_mask:0xc bank_mask:0xf")
                else: self.a(f"{op}_dpp v{r}, v{r}, v{r} {d} {DPPALL}")
    X1, X2, HM, RM = "quad_perm:[1,0,3,2]", "quad_perm:[2,3,0,1]", "row_half_mirror", "row_mirror"
    def reduce63(self, regs, op):
        self.dpp_steps(regs, op, [self.X1, self.X2, self.HM, self.RM, "b15", "b31"])

    def treduce(self, r):
        a = self.a
        a(f"v_permlane32_swap_b32 v{r[0]}, v{r[2]}")
        a(f"v_permlane32_swap_b32 v{r[1]}, v{r[3]}")
        a(f"v_add_f32 v{r[0]}, v{r[0]}, v{r[2]}")
        a(f"v_add_f32 v{r[1]}, v{r[1]}, v{r[3]}")
        a(f"v_permlane16_swap_b32 v{r[0]}, v{r[1]}")
        a(f"v_add_f32 v{r[0]}, v{r[0]}, v{r[1]}")

    def pv_gemv(self, Xp, nload, bop, D, Abuf):
        a = self.a
        def build(i):
            A = Abuf + 4 * (i % 2)
            for r in range(4):
                a(f"v_and_b32_dpp v{A+r}, v{Xp}, v{vM[r]} row_newbcast:{i} {DPPALL}")
        build(0)
        if nload > 1: build(1)
        for i in range(nload):
            A = Abuf + 4 * (i % 2)
            c = "0" if i == 0 else vr(D, 4)
            a(f"v_mfma_f32_16x16x32_bf16 {vr(D,4)}, {vr(A,4)}, {bop(i)}, {c}")
            if i + 2 < nload: build(i + 2)

    def smf_consts(self, N0, N1, IDX, t):
        a = self.a
        a(f"v_bfe_u32 v{t}, v{vL16}, 4, 4")
        a(f"v_and_b32 v{IDX}, 3, v{t}"); a(f"v_mul_u32_u24 v{IDX}, 0x1111, v{IDX}")
        a(f"v_lshrrev_b32 v{t}, 2, v{t}")
        a(f"v_cmp_eq_u32 vcc, 0, v{t}"); a(f"v_mov_b32 v{N1}, 0xffff"); a(f"v_cndmask_b32 v{N0}, 0, v{N1}, vcc")
        a(f"v_cmp_eq_u32 vcc, 1, v{t}"); a(f"v_cndmask_b32 v{N1}, 0, v{N1}, vcc")
    def pv_gemv_smf(self, Xp, npair, bop, D, Abuf, N0, N1, IDX):
        a = self.a
        def build(i):
            A = Abuf + 4 * (i % 2)
            a(f"v_and_b32_dpp v{A}, v{Xp}, v{N0} row_newbcast:{2*i} {DPPALL}")
            a(f"v_and_b32_dpp v{A+1}, v{Xp}, v{N1} row_newbcast:{2*i} {DPPALL}")
            a(f"v_and_b32_dpp v{A+2}, v{Xp}, v{N0} row_newbcast:{2*i+1} {DPPALL}")
            a(f"v_and_b32_dpp v{A+3}, v{Xp}, v{N1} row_newbcast:{2*i+1} {DPPALL}")
        for r in range(4): a(f"v_mov_b32 v{D+r}, 0")
        build(0)
        if npair > 1: build(1)
        for i in range(npair):
            A = Abuf + 4 * (i % 2)
            a(f"v_smfmac_f32_16x16x64_bf16 {vr(D,4)}, {vr(A,4)}, {bop(i)}, v{IDX}")
            if i + 2 < npair: build(i + 2)

    def red_write(self, D, off=0):
        a = self.a
        a("s_mov_b32 exec_hi, 1")
        a(f"ds_write_b128 v{vRedW}, {vr(D,4)} offset:{off}")
        a("s_mov_b32 exec_hi, -1")
    def red_final_read(self, G, off=0):
        a = self.a
        a(f"v_add_u32 v{vT0}, {L_RED}, v{vL16}")
        for w in range(4):
            a(f"ds_read_b128 {vr(G+4*w,4)}, v{vT0} offset:{w*RSTR+off}")
    def sum4(self, G):
        a = self.a
        for r in range(4):
            a(f"v_add_f32 v{G+r}, v{G+r}, v{G+4+r}")
            a(f"v_add_f32 v{G+8+r}, v{G+8+r}, v{G+12+r}")
        for r in range(4):
            a(f"v_add_f32 v{G+r}, v{G+r}, v{G+8+r}")

    def local_stores(self, items):
        a = self.a
        def emit(flag):
            for (data, vaddr, soff, pre) in items:
                if pre: pre()
                a(f"buffer_store_dwordx4 {vr(data,4)}, v{vaddr}, {W}, s{soff} offen {flag}")
        if self.local:
            l0 = a.newlabel("ls"); l1 = a.newlabel("ls")
            a(f"s_cmp_eq_u32 s{sLocal}, 0"); a(f"s_cbranch_scc1 {l0}")
            emit("")
            a(f"s_branch {l1}")
            a.label(l0)
            emit("sc1")
            a.label(l1)
        else:
            emit("sc1")

    def next_tag(self):
        a = self.a
        a(f"s_mul_i32 s{sTf}, s{sTf}, 0x9E3779B1"); a(f"s_add_u32 s{sTf}, s{sTf}, 0x7F4A7C15")
        a(f"v_mov_b32 v{vT}, s{sTf}")
        a(f"s_and_b32 s{sT[0]}, s{sTf}, 0xff"); a(f"s_bfe_u32 s{sT[1]}, s{sTf}, 0x80008")
        a(f"s_bfe_u32 s{sT[2]}, s{sTf}, 0x80010"); a(f"s_lshr_b32 s{sT[3]}, s{sTf}, 24")

    def pf_guard(self, fn, lmin=2):
        if not self.nopf: return fn()
        a = self.a; l = a.newlabel("npf")
        a(f"s_cmp_ge_u32 s{sL}, {lmin}"); a(f"s_cbranch_scc1 {l}")
        fn()
        a.label(l)
    def load_wq(self):
        self.pf_guard(self.load_wq_)
    def load_wq_(self):
        a = self.a
        l0 = a.newlabel("wq"); l1 = a.newlabel("wq")
        a(f"s_bitcmp1_b32 s{sL}, 0"); a(f"s_cbranch_scc1 {l0}")
        a(f"s_mov_b32 s{SRD_A}, s{pWqA}"); a(f"s_mov_b32 s{SRD_A+1}, s{pWqA+1}"); a(f"s_branch {l1}")
        a.label(l0)
        a(f"s_mov_b32 s{SRD_A}, s{pWqB}"); a(f"s_mov_b32 s{SRD_A+1}, s{pWqB+1}")
        a.label(l1)
        a(f"s_mov_b32 s{SRD_A+2}, {19*8192+256}"); a(f"s_mov_b32 s{SRD_A+3}, 0x20000")
        for i in range(5):
            a(f"s_mov_b32 s{sTmp[0]}, {i*32768}")
            a(f"buffer_load_dwordx4 {vr(WQ+4*i,4)}, v{vWoff}, s[{SRD_A}:{SRD_A+3}], s{sTmp[0]} offen {self.wpol}")
    def load_wuk(self):
        self.pf_guard(self.load_wuk_)
    def load_wuk_(self):
        a = self.a
        self.srd(SRD_A, pWuk, 15*8192+256)
        t = vT0
        a(f"v_lshrrev_b32 v{t}, 8, v{vKoff}"); a(f"v_lshlrev_b32 v{t}, 13, v{t}")
        a(f"v_and_b32 v{t+1}, s{sFF}, v{vKoff}"); a(f"v_or_b32 v{t}, v{t}, v{t+1}")
        for i in range(4):
            a(f"s_mov_b32 s{sTmp[0]}, {i*32768}")
            a(f"buffer_load_dwordx4 {vr(WUK+4*i,4)}, v{t}, s[{SRD_A}:{SRD_A+3}], s{sTmp[0]} offen {self.wpol}")
    def load_wuv(self):
        self.pf_guard(self.load_wuv_)
    def load_wuv_(self):
        a = self.a
        self.srd(SRD_A, pWuv, 15*8192+256)
        for i in range(4):
            a(f"s_mov_b32 s{sTmp[0]}, {i*32768}")
            a(f"buffer_load_dwordx4 {vr(WUV+4*i,4)}, v{vWoff}, s[{SRD_A}:{SRD_A+3}], s{sTmp[0]} offen {self.wpol}")
    def wo_setup(self, p):
        a = self.a
        self.srd(SRD_A, p, 31*1280+160)
        a(f"s_mul_i32 s{sTmp[1]}, s{sW}, {WOSTR}"); a(f"s_add_u32 s{sTmp[1]}, s{sTmp[1]}, {L_R0}")
    def wo_one(self, i):
        a = self.a
        r0 = 6 * i if i < 5 else 26
        a(f"s_add_u32 m0, s{sTmp[1]}, {r0*160}")
        a(f"s_mov_b32 s{sTmp[0]}, {r0*1280}")
        a(f"buffer_load_dwordx4 v{vWo}, s[{SRD_A}:{SRD_A+3}], s{sTmp[0]} offen {self.wpol} lds")
    def load_wo(self, p):
        def f():
            self.wo_setup(p)
            for i in range(6): self.wo_one(i)
        self.pf_guard(f)
    def ckv_one(self, kk):
        a = self.a
        f = (kk & 8) | ((kk & 3) << 1) | ((kk >> 2) & 1)
        a(f"v_xor_b32 v{vCk}, {f*16}, v{vL16}")
        a(f"s_lshl_b32 s{sSO}, s{sW}, 14"); a(f"s_add_u32 m0, s{sSO}, {L_CKV + kk*1024}")
        a(f"s_mov_b32 s{sSO}, {kk*1024}")
        a(f"buffer_load_dwordx4 v{vCk}, s[{SRD_B}:{SRD_B+3}], s{sSO} offen {self.cpol} lds")
    def voff(self, u):
        return (u & 1) * 2048 + (u >> 1) * 512 if self.smf else u * 256
    def vtr_reg(self, b, u):
        if self.vsplit: return (60 if b == 14 else 80) + 4 * u
        return VTR + (b - 14) * 16 + 4 * u
    def vtr_one(self, k):
        a = self.a
        b, u = 14 + (k >> 2), k & 3
        if u == 0: a(f"s_mov_b32 s{sTmp[2]}, {b*4096}")
        a(f"buffer_load_dwordx4 {vr(self.vtr_reg(b, u),4)}, v{vVoff}, s[{SRD_V}:{SRD_V+3}], s{sTmp[2]} offen offset:{self.voff(u)} {self.pol}")

    def prologue(self):
        a = self.a
        a("s_cmp_ge_u32 s2, 256"); a("s_cbranch_scc1 L_end")
        a("s_load_dwordx4 s[64:67], s[0:1], 0")
        a("s_load_dwordx4 s[68:71], s[0:1], 16")
        a("s_load_dwordx4 s[72:75], s[0:1], 32")
        a("s_load_dwordx4 s[76:79], s[0:1], 56")
        a("s_load_dwordx4 s[80:83], s[0:1], 72")
        a("s_load_dwordx4 s[84:87], s[0:1], 88")
        a("s_load_dwordx2 s[8:9], s[0:1], 104")
        a(f"v_lshrrev_b32 v20, 6, v0")
        a(f"v_and_b32 v21, 63, v0")
        a(f"v_readfirstlane_b32 s{sW}, v20")
        a(f"s_and_b32 s{sH}, s2, 31"); a(f"s_lshr_b32 s{sJ}, s2, 5")
        a(f"s_and_b32 s{sXG}, s2, 7"); a(f"s_lshr_b32 s{sI}, s2, 3")
        a(f"s_and_b32 s{sGA}, s{sI}, 1")
        a(f"s_lshr_b32 s{sS}, s{sI}, 1"); a(f"s_lshl_b32 s92, s{sXG}, 4"); a(f"s_add_u32 s{sS}, s{sS}, s92")
        a(f"v_lshlrev_b32 v{vL16}, 4, v21")
        if self.codepf:
            lc = a.newlabel("cpf")
            a(f"s_cmp_lg_u32 s{sW}, 3"); a(f"s_cbranch_scc1 {lc}")
            a("s_getpc_b64 s[20:21]")
            a.label("L_pcx")
            a("s_mov_b32 s22, L_codeend-L_pcx"); a("s_mov_b32 s23, 0x20000")
            a("v_lshlrev_b32 v22, 6, v21")
            self.ncode = 7
            for i in range(self.ncode):
                a(f"s_mov_b32 s92, {i*4096}")
                a(f"buffer_load_dword v23, v22, s[20:23], s92 offen")
            a.label(lc)
        a("v_and_b32 v22, 15, v21")
        a("v_lshrrev_b32 v23, 4, v21") if not self.codepf else a("v_lshrrev_b32 v19, 4, v21")
        g = 23 if not self.codepf else 19
        a(f"v_lshlrev_b32 v24, 4, v22")
        a(f"v_lshl_add_u32 v{vWoff}, v{g}, 13, v24")
        if self.smf:
            a(f"v_lshrrev_b32 v25, 1, v{g}"); a(f"v_and_b32 v26, 1, v{g}"); a(f"v_lshl_add_u32 v25, v25, 2, v26")
            a(f"v_lshl_add_u32 v{vVoff}, v25, 8, v24")
        else:
            a(f"v_lshl_add_u32 v{vVoff}, v{g}, 10, v24")
        a(f"v_and_b32 v25, 3, v22"); a(f"v_lshl_add_u32 v25, v{g}, 2, v25"); a("v_lshlrev_b32 v25, 4, v25")
        a("v_lshrrev_b32 v26, 2, v22"); a(f"v_lshl_add_u32 v{vKoff}, v26, 8, v25")
        a("v_and_b32 v25, 1, v22"); a("v_cmp_eq_u32 vcc, 1, v25")
        a("v_mov_b32 v26, 0xffff"); a("v_mov_b32 v27, 0xffff0000"); a("v_cndmask_b32 v26, v26, v27, vcc")
        a("v_lshrrev_b32 v25, 1, v22")
        for r in range(4):
            a(f"v_cmp_eq_u32 vcc, {r}, v25"); a(f"v_cndmask_b32 v{vM[r]}, 0, v26, vcc")
        a(f"v_lshl_add_u32 v25, v22, 1, v{g}"); a("v_lshlrev_b32 v25, 4, v25")
        a("v_cmp_gt_u32 vcc, 32, v21"); a("v_mov_b32 v26, 512"); a("v_cndmask_b32 v25, v26, v25, vcc")
        a(f"s_mul_i32 s92, s{sW}, {RSTR}"); a(f"s_add_u32 s92, s92, {L_RED}"); a(f"v_add_u32 v{vRedW}, s92, v25")
        a(f"v_mul_u32_u24 v25, 6554, v21"); a(f"v_lshrrev_b32 v25, 16, v25")
        a(f"v_mul_u32_u24 v26, 10, v25"); a(f"v_sub_u32 v26, v21, v26")
        a(f"v_mul_u32_u24 v25, 1280, v25"); a(f"v_lshl_add_u32 v{vWo}, v26, 4, v25")
        a("s_waitcnt lgkmcnt(0)")
        a(f"s_mov_b32 s{SRD_WS+2}, 0x10000000"); a(f"s_mov_b32 s{SRD_WS+3}, 0x20000")
        if self.stamps:
            a(f"s_mov_b32 s{sL}, 0")
            self.stamp(12)
        self.dbgstamp("entry")
        a("v_mov_b32 v28, 0")
        a(f"buffer_load_dword v{vT}, v28, {W}, 0 offen sc1")
        a(f"s_mov_b32 s{pX}, s64"); a(f"s_mov_b32 s{pX+1}, s65")
        self.srd(SRD_B, pX, 1280)
        a(f"s_mul_i32 s92, s{sJ}, 80"); a(f"s_mul_i32 s93, s{sW}, 20"); a("s_add_u32 s92, s92, s93")
        a(f"v_lshl_add_u32 v25, v22, 2, v{g}"); a("v_add_u32 v25, s92, v25"); a("v_lshlrev_b32 v29, 1, v25")
        a(f"s_mov_b32 s94, 0x001f001f"); a(f"s_mov_b32 s95, 0x001f001f")
        a(f"v_mov_b32 v{vX}, 0")
        a("s_mov_b64 exec, s[94:95]")
        a(f"buffer_load_ushort v{vX}, v29, s[{SRD_B}:{SRD_B+3}], 0 offen")
        self.exec_all()
        def addp(dst, src, terms):
            a(f"s_mov_b32 s92, 0")
            for (sreg, c) in terms:
                a(f"s_mul_i32 s93, s{sreg}, {c}"); a("s_add_u32 s92, s92, s93")
            a(f"s_add_u32 s{dst}, s{src}, s92"); a(f"s_addc_u32 s{dst+1}, s{src+1}, 0")
        addp(pWqA, 68, [(sJ, 80*8192), (sW, 20*8192), (sH, 256)])
        a(f"s_mov_b32 s{sL}, 0")
        self.load_wq()
        addp(pWuk, 70, [(sJ, 64*8192), (sW, 16*8192), (sH, 256)])
        a(f"s_mov_b32 s{sFF}, 0xff")
        self.load_wuk()
        addp(pCkv, 66, [(sS, 65536), (sW, 16384)])
        addp(pWqB, 80, [(sJ, 80*8192), (sW, 20*8192), (sH, 256)])
        addp(pWuv, 72, [(sJ, 64*8192), (sW, 16*8192), (sH, 256)])
        addp(pWoA, 74, [(sH, 163840), (sW, 32*1280), (sJ, 160)])
        addp(pWoB, 82, [(sH, 163840), (sW, 32*1280), (sJ, 160)])
        addp(SRD_K, 76, [(sH, 2097152), (sJ, 262144), (sW, 65536)])
        addp(SRD_V, 78, [(sH, 2097152), (sJ, 262144), (sW, 65536)])
        a(f"s_mov_b32 s{SRD_K+2}, 65536"); a(f"s_mov_b32 s{SRD_K+3}, 0x20000")
        a(f"s_mov_b32 s{SRD_V+2}, 65536"); a(f"s_mov_b32 s{SRD_V+3}, 0x20000")
        a(f"s_mov_b32 s{pOut}, s84"); a(f"s_mov_b32 s{pOut+1}, s85")
        self.srd(SRD_B, pCkv, 16384)
        if self.pretouch:
            a(f"s_lshl_b32 s92, s2, 13"); a(f"s_lshl_b32 s93, s{sW}, 11"); a("s_add_u32 s92, s92, s93"); a(f"s_add_u32 s92, s92, {O_QP}")
            a(f"buffer_load_dwordx4 v[48:51], v{vL16}, {W}, s92 offen")
            a(f"buffer_load_dwordx4 v[48:51], v{vL16}, {W}, s92 offen offset:1024")
        a(f"s_mov_b32 s{sErr}, 0"); a(f"s_mov_b32 s{sLocal}, 0")
        a(f"s_mov_b32 s{sM5}, 0x001f001f"); a(f"s_mov_b32 s{sM5+1}, 0x001f001f")
        for i in range(4): a(f"s_mov_b32 s{sSel[i]}, {0x07060500+i:#x}")
        for t in range(4):
            a(f"s_mov_b32 s{sMask[t]}, {(0x000f000f << (4*t)):#x}"); a(f"s_mov_b32 s{sMask[t]+1}, {(0x000f000f << (4*t)):#x}")
        a(f"s_lshl_b32 s92, s{sXG}, 5"); a(f"s_add_u32 s92, s92, s{sI}"); a(f"s_lshl_b32 s92, s92, 2"); a(f"s_add_u32 s92, s92, s{sW}")
        a(f"s_lshl_b32 s92, s92, {12 if self.c1bf else 13}"); a(f"s_add_u32 s{sC1}, s92, {O_C1}")
        a(f"s_getpc_b64 s[{sSPC}:{sSPC+1}]")
        a.label("L_pc0")
        a(f"s_add_u32 s{sSPC}, s{sSPC}, L_stream-L_pc0"); a(f"s_addc_u32 s{sSPC+1}, s{sSPC+1}, 0")
        a(f"s_mov_b32 s{sAct}, 1"); a(f"s_mov_b32 s{sPos}, 0")
        a(f"s_mov_b32 s{sCol}, {O_COL:#x}")
        a(f"s_getreg_b32 s{sXcc}, hwreg(HW_REG_XCC_ID)"); a(f"s_and_b32 s{sXcc}, s{sXcc}, 0xf"); a(f"s_add_u32 s{sXcc}, s{sXcc}, 1"); a(f"s_lshl_b32 s{sXcc}, s{sXcc}, 8")
        a(f"s_getpc_b64 s[{sDW}:{sDW+1}]")
        a.label("L_pc1")
        a(f"s_add_u32 s{sDW}, s{sDW}, L_dw-L_pc1"); a(f"s_addc_u32 s{sDW+1}, s{sDW+1}, 0")
        if self.bud is not None: a(f"s_mov_b32 s{sBud}, {self.bud.get('pro', self.bud.get('*', 8))}")
        self.dwait(6 if self.pretouch else 4, 0, 'pro')
        a(f"v_readfirstlane_b32 s{sTf}, v{vT}")
        self.next_tag()
        a(f"v_lshlrev_b32 v{vX}, 16, v{vX}")
        if self.local:
            lx = a.newlabel("xp")
            a(f"s_cmp_lg_u32 s{sW}, 0"); a(f"s_cbranch_scc1 {lx}")
            for r in range(4): a(f"v_mov_b32 v{16+r}, s{sXcc}")
            self.tag([16, 17, 18, 19])
            a(f"s_lshl_b32 s92, s{sXG}, 9"); a(f"s_lshl_b32 s93, s{sI}, 4"); a("s_add_u32 s92, s92, s93"); a(f"s_add_u32 s92, s92, {O_XCC}")
            a("v_mov_b32 v20, 0")
            a("s_mov_b64 exec, 1")
            a(f"buffer_store_dwordx4 v[16:19], v20, {W}, s92 offen sc1")
            self.exec_all()
            a.label(lx)
        if self.opt1: self.prep_q()
        if self.mode == "first":
            self.drain(16)

    @property
    def NT(self): return 2
    @property
    def NLOADS(self): return 136 + (self.NT if self.c1touch else 0)
    @property
    def KEND(self): return 80 + (self.NT if self.c1touch else 0)
    def first_block(self):
        r = self.NLOADS % self.kblk
        return r if r else self.kblk
    def stream(self):
        a = self.a
        loads = [("C", i) for i in range(16)] + ([("T", i) for i in range(self.NT)] if self.c1touch else []) + [("K", i) for i in range(64)]
        loads += [("V", b, u) for b in range(10) for u in range(4)]
        loads += [("L", b, u) for b in range(10, 14) for u in range(4)]
        k = self.kblk
        assert len(loads) == self.NLOADS and len(loads) % k == 0, "the dynamic wait counts kblk loads per block"
        a.label("L_stream")
        starts = [0] + list(range(self.first_block(), len(loads), k))
        for bn, bi in enumerate(starts):
            be = starts[bn+1] if bn + 1 < len(starts) else len(loads)
            last_so = None
            for ld in loads[bi:be]:
                if ld[0] == "C":
                    self.ckv_one(ld[1]); last_so = None
                elif ld[0] == "T":
                    i = ld[1]; last_so = None
                    a(f"v_lshlrev_b32 v{vCk}, 2, v{vL16}")
                    if self.c1bf:
                        a(f"s_add_u32 s{sSO}, s{sC1}, {i * 32}")
                    else:
                        a(f"s_add_u32 s{sSO}, s{sC1}, {i * 4096}")
                    a(f"buffer_load_dword v255, v{vCk}, {W}, s{sSO} offen")
                elif ld[0] == "K":
                    i = ld[1]; so = (i >> 2) * 4096
                    if so != last_so: a(f"s_mov_b32 s{sSO}, {so}"); last_so = so
                    a(f"buffer_load_dwordx4 {ar(4*i,4)}, v{vKoff}, s[{SRD_K}:{SRD_K+3}], s{sSO} offen offset:{(i&3)*1024} {self.pol}")
                elif ld[0] == "V":
                    _, b, u = ld; so = b * 4096
                    if so != last_so: a(f"s_mov_b32 s{sSO}, {so}"); last_so = so
                    a(f"buffer_load_dwordx4 {vr(VRES+16*b+4*u,4)}, v{vVoff}, s[{SRD_V}:{SRD_V+3}], s{sSO} offen offset:{self.voff(u)} {self.pol}")
                else:
                    _, b, u = ld
                    a(f"s_lshl_b32 s{sSO}, s{sW}, 14"); a(f"s_add_u32 m0, s{sSO}, {L_VL + ((b-10)*4+u)*1024}")
                    a(f"s_mov_b32 s{sSO}, {b*4096+self.voff(u)}"); last_so = None
                    a(f"buffer_load_dwordx4 v{vVoff}, s[{SRD_V}:{SRD_V+3}], s{sSO} offen {self.pol} lds")
            a(f"s_add_u32 s{sPos}, s{sPos}, {be-bi}")
            if be >= len(loads): a(f"s_mov_b32 s{sAct}, 0")
            a(f"s_swappc_b64 s[{sSPC}:{sSPC+1}], s[{sRET}:{sRET+1}]")
        a("s_endpgm")

    def prep_q(self):
        a = self.a
        t = 37
        a(f"v_lshrrev_b32 v{t}, 4, v{vL16}")
        a(f"v_and_b32 v38, 1, v{t}"); a(f"v_lshlrev_b32 v38, 4, v38")
        a(f"v_lshrrev_b32 v39, 1, v{t}"); a(f"v_add_u32 v38, v38, v39"); a(f"v_lshlrev_b32 v38, 4, v38")
        a(f"v_cmp_gt_u32 vcc, 32, v{t}"); a(f"v_mov_b32 v39, 512"); a(f"v_cndmask_b32 v{t}, v39, v38, vcc")
        a(f"s_lshl_b32 s{sTmp[4]}, s{sH}, 3"); a(f"s_add_u32 s{sTmp[4]}, s{sTmp[4]}, s{sJ}"); a(f"s_lshl_b32 s{sTmp[4]}, s{sTmp[4]}, 11")
        a(f"s_add_u32 s{sTmp[4]}, s{sTmp[4]}, {O_QP}")

    def qpart(self):
        a = self.a
        self.stamp(0)
        def second():
            if self.split2:
                l0 = a.newlabel("q2w")
                a(f"s_cmp_eq_u32 s{sL}, 0"); a(f"s_cbranch_scc1 {l0}")
                self.second_w()
                a.label(l0)
        if not (self.opt1 and self.latepf): second()
        Xp, S1, S2 = (14, 38, 39) if self.opt1 else (14, 15, 36)
        D, Du, Ab = 16, 20, 24
        a(f"v_cvt_pk_bf16_f32 v{Xp}, v{vX}, v{vX}")
        a(f"v_and_b32 v{S1}, 0xffff0000, v{Xp}")
        a(f"v_mul_f32 v{S2}, v{S1}, v{S1}")
        self.pv_gemv(Xp, 5, lambda i: vr(WQ+4*i, 4), D, Ab)
        self.reduce63([S1, S2], "v_add_f32")
        lu = a.newlabel("nou")
        if self.opt1:
            a("s_mov_b32 exec_hi, 0")
            a(f"ds_write_b128 v{vRedW}, {vr(D,4)}")
            a("s_mov_b32 exec_lo, 0"); a("s_mov_b32 exec_hi, 0x80000000")
            a(f"ds_write_b64 v{vRedW}, {vr(S1,2)}")
            self.exec_all()
        a(f"s_cmp_ge_u32 s{sL}, 2"); a(f"s_cbranch_scc1 {lu}")
        for r in range(4): a(f"v_and_b32 v{32+r}, 0x3f803f80, v{vM[r]}")
        for i in range(5):
            c = "0" if i == 0 else vr(Du, 4)
            a(f"v_mfma_f32_16x16x32_bf16 {vr(Du,4)}, {vr(32,4)}, {vr(WQ+4*i,4)}, {c}")
        self.red_write(Du, 528)
        a.label(lu)
        if self.opt1:
            t = 37
            if self.latepf: second()
        else:
            a(f"v_readlane_b32 s{sA}, v{S1}, 63"); a(f"v_readlane_b32 s{sB_}, v{S2}, 63")
            a(f"v_writelane_b32 v{D}, s{sA}, 32"); a(f"v_writelane_b32 v{D+1}, s{sB_}, 32")
            self.red_write(D)
            t = 14
            a(f"v_lshrrev_b32 v{t}, 4, v{vL16}")
            a(f"v_and_b32 v15, 1, v{t}"); a(f"v_lshlrev_b32 v15, 4, v15")
            a(f"v_lshrrev_b32 v36, 1, v{t}"); a(f"v_add_u32 v15, v15, v36"); a(f"v_lshlrev_b32 v15, 4, v15")
            a(f"v_cmp_gt_u32 vcc, 32, v{t}"); a(f"v_mov_b32 v36, 512"); a(f"v_cndmask_b32 v{t}, v36, v15, vcc")
            a(f"s_lshl_b32 s{sTmp[4]}, s{sH}, 3"); a(f"s_add_u32 s{sTmp[4]}, s{sTmp[4]}, s{sJ}"); a(f"s_lshl_b32 s{sTmp[4]}, s{sTmp[4]}, 11")
            a(f"s_add_u32 s{sTmp[4]}, s{sTmp[4]}, {O_QP}")
        self.tu()
        a("s_waitcnt lgkmcnt(0)"); a("s_barrier")
        lf = a.newlabel("qfin")
        a(f"s_cmp_lg_u32 s{sW}, 0"); a(f"s_cbranch_scc1 {lf}")
        G = 16
        self.red_final_read(G)
        a("s_waitcnt lgkmcnt(0)")
        self.sum4(G); self.tag([G, G+1, G+2, G+3])
        a("s_mov_b32 exec_hi, 1")
        self.local_stores([(G, t, sTmp[4], None)])
        a("s_mov_b32 exec_hi, -1")
        a(f"s_cmp_ge_u32 s{sL}, 2"); a(f"s_cbranch_scc1 {lf}")
        G2 = 40
        self.red_final_read(G2, 528)
        a(f"s_add_u32 s{sTmp[4]}, s{sTmp[4]}, 1024")
        a("s_waitcnt lgkmcnt(0)")
        self.sum4(G2); self.tag([G2, G2+1, G2+2, G2+3])
        a("s_mov_b32 exec_hi, 0")
        self.local_stores([(G2, t, sTmp[4], None)])
        a("s_mov_b32 exec_hi, -1")
        a.label(lf)
        self.stamp(1)
        ad, ad2, adu, adx = 14, 15, 56, 57
        Gq, Gs, Gu, Gx = 16, 32, 36, 52
        a(f"v_lshrrev_b32 v{ad}, 8, v{vKoff}"); a(f"v_lshlrev_b32 v{ad}, 11, v{ad}")
        a(f"v_and_b32 v{ad2}, s{sFF}, v{vKoff}"); a(f"v_or_b32 v{ad}, v{ad}, v{ad2}")
        a(f"v_lshlrev_b32 v{adu}, 1, v{ad2}")
        a(f"v_lshrrev_b32 v{ad2}, 4, v{vL16}"); a(f"v_and_b32 v{ad2}, 7, v{ad2}"); a(f"v_lshlrev_b32 v{ad2}, 11, v{ad2}")
        a(f"s_lshl_b32 s{sTmp[0]}, s{sH}, 14"); a(f"s_add_u32 s{sTmp[0]}, s{sTmp[0]}, {O_QP}")
        a(f"s_add_u32 s{sTmp[1]}, s{sTmp[0]}, 8192")
        def iss_q():
            for i in range(2):
                for hf in range(2):
                    a(f"buffer_load_dwordx4 {vr(Gq+8*i+4*hf,4)}, v{ad}, {W}, s{sTmp[i]} offen offset:{hf*256} sc1")
            a(f"buffer_load_dwordx4 {vr(Gs,4)}, v{ad2}, {W}, s{sTmp[0]} offen offset:512 sc1")
        def iss_u():
            for i in range(2):
                for hf in range(2):
                    a(f"buffer_load_dwordx4 {vr(Gu+8*i+4*hf,4)}, v{ad}, {W}, s{sTmp[i]} offen offset:{1024+hf*256} sc1")
        def iss_x():
            a(f"buffer_load_dwordx4 {vr(Gx,4)}, v{adx}, {W}, s{sTmp[3]} offen sc1")
        U = 36
        l_late = a.newlabel("qlate"); l_j = a.newlabel("qj")
        a(f"s_and_b32 s{sTmp[2]}, s{sL}, 1"); a(f"s_lshl_b32 s{sTmp[2]}, s{sTmp[2]}, 9"); a(f"s_add_u32 s{sTmp[2]}, s{sTmp[2]}, {L_U}")
        a(f"v_add_u32 v{adu}, s{sTmp[2]}, v{adu}")
        a(f"s_cmp_ge_u32 s{sL}, 2"); a(f"s_cbranch_scc1 {l_late}")
        base_regs = [Gq, Gq+4, Gq+8, Gq+12, Gs, Gu, Gu+4, Gu+8, Gu+12]
        if self.local:
            l_one = a.newlabel("qone"); l_u = a.newlabel("qu")
            a(f"s_cmp_eq_u32 s{sL}, 1"); a(f"s_cbranch_scc1 {l_one}")
            a(f"v_and_b32 v{adx}, 0x1f0, v{vL16}")
            a(f"s_lshl_b32 s{sTmp[3]}, s{sXG}, 9"); a(f"s_add_u32 s{sTmp[3]}, s{sTmp[3]}, {O_XCC}")
            self.poll(lambda: (iss_q(), iss_u(), iss_x()), base_regs + [Gx], site='q0')
            a(f"v_cmp_ne_u32 vcc, s{sXcc}, v{Gx}")
            a(f"s_cmp_eq_u64 vcc, 0"); a(f"s_cselect_b32 s{sLocal}, 1, 0")
            a(f"s_branch {l_u}")
            a.label(l_one)
            self.poll(lambda: (iss_q(), iss_u()), base_regs, site='q1')
            a.label(l_u)
        else:
            self.poll(lambda: (iss_q(), iss_u()), base_regs)
        for r in range(8): a(f"v_add_f32 v{Gu+r}, v{Gu+r}, v{Gu+8+r}")
        self.dpp_steps([Gu+r for r in range(8)], "v_add_f32", ["row_ror:4", "row_ror:8"])
        lw = a.newlabel("uw")
        a(f"s_cmp_lg_u32 s{sW}, 0"); a(f"s_cbranch_scc1 {lw}")
        self.exec_set(0x000f000f, 0x000f000f)
        a(f"ds_write_b128 v{adu}, {vr(U,4)}"); a(f"ds_write_b128 v{adu}, {vr(U+4,4)} offset:16")
        self.exec_all()
        a.label(lw)
        a(f"s_branch {l_j}")
        a.label(l_late)
        a(f"ds_read_b128 {vr(U,4)}, v{adu}"); a(f"ds_read_b128 {vr(U+4,4)}, v{adu} offset:16")
        self.poll(iss_q, [Gq, Gq+4, Gq+8, Gq+12, Gs], site='q2')
        a("s_waitcnt lgkmcnt(0)")
        a.label(l_j)
        self.stamp(2)
        self.tu()
        self.burst('Q1')
        st = [Gs, Gs+1]
        adds = [f"v_add_f32 v{Gq+r}, v{Gq+r}, v{Gq+8+r}" for r in range(8)]
        seq = []
        for k, d in enumerate((self.X1, self.X2, self.HM)):
            seq += [f"v_add_f32_dpp v{r}, v{r}, v{r} {d} {DPPALL}" for r in st]
            seq += adds[3*k:3*k+3] if k < 2 else adds[6:]
        for s_ in seq: a(s_)
        a(f"v_mul_f32 v{Gs}, {f32hex(1/640)}, v{Gs}")
        ror4 = [f"v_add_f32_dpp v{Gq+r}, v{Gq+r}, v{Gq+r} row_ror:4 {DPPALL}" for r in range(8)]
        ror8 = [f"v_add_f32_dpp v{Gq+r}, v{Gq+r}, v{Gq+r} row_ror:8 {DPPALL}" for r in range(8)]
        a(f"v_mul_f32 v{Gs+1}, {f32hex(1/640)}, v{Gs+1}")
        for s_ in ror4[:4]: a(s_)
        a(f"v_fma_f32 v{Gs+1}, -v{Gs}, v{Gs}, v{Gs+1}")
        for s_ in ror4[4:]: a(s_)
        a(f"v_add_f32 v{Gs+1}, {f32hex(1e-5)}, v{Gs+1}")
        for s_ in ror8[:4]: a(s_)
        a(f"v_rsq_f32 v{Gs+1}, v{Gs+1}")
        for s_ in ror8[4:]: a(s_)
        a(f"v_mul_f32 v{Gs+1}, {f32hex(SC)}, v{Gs+1}")
        for r in range(8): a(f"v_fma_f32 v{Gq+r}, -v{Gs}, v{U+r}, v{Gq+r}")
        a(f"v_readfirstlane_b32 s{sSc}, v{Gs+1}")
        Qp = 24
        for r in range(4): a(f"v_cvt_pk_bf16_f32 v{Qp+r}, v{Gq+2*r}, v{Gq+2*r+1}")
        for t in range(4):
            for r in range(4):
                a(f"v_cndmask_b32 v{AT+4*t+r}, 0, v{Qp+r}, s[{sMask[t]}:{sMask[t]+1}]")

    def combine8(self, G, ML, tmp):
        a = self.a
        M, f, Ls = tmp, tmp+1, tmp+2
        a(f"v_max_f32_dpp v{M}, v{ML}, v{ML} row_ror:8 {DPPALL}")
        self.dpp_steps([M], "v_max_f32", ["b15", "b31"])
        a(f"v_readlane_b32 s{sA}, v{M}, 63")
        a(f"v_subrev_f32 v{f}, s{sA}, v{ML}"); a(f"v_exp_f32 v{f}, v{f}")
        a(f"v_mul_f32 v{Ls}, v{f}, v{ML+1}")
        for r in range(4): a(f"v_mul_f32 v{G+r}, v{f}, v{G+r}")
        a(f"v_add_f32_dpp v{Ls}, v{Ls}, v{Ls} row_ror:8 {DPPALL}")
        for r in range(4): a(f"v_add_f32_dpp v{G+r}, v{G+r}, v{G+r} row_ror:8 {DPPALL}")
        a(f"v_add_f32_dpp v{Ls}, v{Ls}, v{Ls} row_bcast:15 row_mask:0xa bank_mask:0xf")
        a(f"v_permlane32_swap_b32 v{G}, v{G+2}")
        a(f"v_permlane32_swap_b32 v{G+1}, v{G+3}")
        a(f"v_add_f32_dpp v{Ls}, v{Ls}, v{Ls} row_bcast:31 row_mask:0xc bank_mask:0xf")
        a(f"v_add_f32 v{G}, v{G}, v{G+2}")
        a(f"v_add_f32 v{G+1}, v{G+1}, v{G+3}")
        a(f"v_readlane_b32 s{sA}, v{Ls}, 63")
        a(f"v_permlane16_swap_b32 v{G}, v{G+1}")
        a(f"v_rcp_f32 v{Ls}, s{sA}")
        a(f"v_add_f32 v{G}, v{G}, v{G+1}")
        a(f"v_mul_f32 v{G}, v{G}, v{Ls}")

    def amiddle(self):
        a = self.a
        D = 16
        for t in range(4):
            c = "0" if t == 0 else vr(D, 4)
            a(f"v_mfma_f32_16x16x32_bf16 {vr(D,4)}, {vr(AT+4*t,4)}, {vr(WUK+4*t,4)}, {c}")
        a(f"v_lshrrev_b32 v14, 8, v{vL16}"); a("v_lshlrev_b32 v14, 4, v14")
        a(f"s_lshl_b32 s{sTmp[0]}, s{sH}, 11"); a(f"s_lshl_b32 s{sTmp[1]}, s{sJ}, 8"); a(f"s_add_u32 s{sTmp[0]}, s{sTmp[0]}, s{sTmp[1]}")
        a(f"s_lshl_b32 s{sTmp[1]}, s{sW}, 6"); a(f"s_add_u32 s{sTmp[0]}, s{sTmp[0]}, s{sTmp[1]}")
        a(f"s_add_u32 s{sTmp[0]}, s{sTmp[0]}, {O_QABS}")
        S, S2 = 20, 21
        a(f"v_mov_b32_dpp v{S}, v{D} quad_perm:[0,0,0,0] {DPPALL}")
        a(f"v_mov_b32_dpp v{S2}, v{D+2} quad_perm:[2,2,2,2] {DPPALL}")
        a(f"s_nop 0")
        a(f"v_add_f32_dpp v{S}, v{D+1}, v{S} quad_perm:[1,1,1,1] {DPPALL}")
        a(f"v_add_f32_dpp v{S2}, v{D+3}, v{S2} quad_perm:[3,3,3,3] {DPPALL}")
        a(f"v_add_f32 v{S}, v{S}, v{S2}")
        a(f"v_mul_f32 v{S}, s{sSc}, v{S}")
        G = 24
        for q in range(4): a(f"v_mov_b32_dpp v{G+q}, v{S} row_newbcast:{4*q} {DPPALL}")
        self.tag([G, G+1, G+2, G+3])
        self.exec_set(0x00010001, 0x00010001)
        a(f"buffer_store_dwordx4 {vr(G,4)}, v14, {W}, s{sTmp[0]} offen sc1")
        self.exec_all()
        self.stamp(3)
        self.tu()
        if not self.pfnew: self.load_wuv()
        Gq = 16
        a(f"s_lshl_b32 s{sTmp[0]}, s{sGA}, 15"); a(f"s_lshl_b32 s{sTmp[1]}, s{sW}, 9"); a(f"s_add_u32 s{sTmp[0]}, s{sTmp[0]}, s{sTmp[1]}")
        a(f"s_add_u32 s{sTmp[0]}, s{sTmp[0]}, {O_QABS}")
        for i in range(1, 4): a(f"s_add_u32 s{sTmp[i]}, s{sTmp[0]}, {i*8192}")
        vA0, vB0, vAx = 52, 53, 54
        n, g = 48, 49
        a(f"v_lshrrev_b32 v{n}, 4, v{vL16}"); a(f"v_lshrrev_b32 v{g}, 4, v{n}"); a(f"v_and_b32 v{n}, 15, v{n}")
        a(f"v_and_b32 v50, 8, v{n}"); a(f"v_and_b32 v51, 3, v{n}"); a(f"v_lshl_or_b32 v50, v51, 1, v50")
        a(f"v_bfe_u32 v51, v{n}, 2, 1"); a(f"v_or_b32 v50, v50, v51")
        a(f"s_lshl_b32 s{sTmp[4]}, s{sW}, 14"); a(f"s_add_u32 s{sTmp[4]}, s{sTmp[4]}, {L_CKV}")
        a(f"v_lshlrev_b32 v51, 10, v{n}"); a(f"v_lshl_add_u32 v51, v{g}, 8, v51"); a(f"v_lshl_add_u32 v51, v50, 4, v51")
        a(f"v_add_u32 v{vA0}, s{sTmp[4]}, v51")
        a(f"v_mul_u32_u24 v{vB0}, 1040, v{n}"); a(f"v_lshl_add_u32 v{vB0}, v{g}, 8, v{vB0}"); a(f"v_add_u32 v{vB0}, {L_R0}, v{vB0}")
        a(f"v_mul_u32_u24 v51, 272, v{n}"); a(f"v_lshl_add_u32 v50, v{g}, 4, v51")
        a(f"s_lshl_b32 s{sTmp[4]}, s{sW}, 6"); a(f"s_add_u32 s{sTmp[4]}, s{sTmp[4]}, {L_ST}"); a(f"v_add_u32 v50, s{sTmp[4]}, v50")
        a(f"v_lshl_add_u32 v51, v{g}, 5, v51"); a(f"v_add_u32 v51, {L_ST}, v51")
        vC0, vC1, vX0, vX1 = 76, 77, 78, 79
        a(f"v_and_b32 v14, 3, v{n}"); a(f"v_lshrrev_b32 v15, 2, v{n}")
        a(f"v_and_b32 v55, 1, v{g}"); a(f"v_lshlrev_b32 v55, 3, v55"); a(f"v_lshl_add_u32 v55, v15, 1, v55")
        a(f"v_lshrrev_b32 v56, 1, v14"); a(f"v_xor_b32 v55, v55, v56")
        a(f"v_lshl_add_u32 v56, v{g}, 3, v15"); a(f"v_lshlrev_b32 v56, 10, v56")
        a(f"v_lshl_add_u32 v56, v55, 4, v56"); a(f"v_and_b32 v14, 1, v14"); a(f"v_lshl_add_u32 v56, v14, 3, v56")
        a(f"s_lshl_b32 s{sTmp[4]}, s{sW}, 8"); a(f"s_add_u32 s{sTmp[4]}, s{sTmp[4]}, {L_CKV}")
        a(f"v_add_u32 v{vC0}, s{sTmp[4]}, v56")
        a(f"v_add_u32 v{vC1}, 4096, v{vC0}"); a(f"v_xor_b32 v{vC1}, 16, v{vC1}")
        a(f"s_lshl_b32 s{sTmp[4]}, s{sW}, 8"); a(f"s_add_u32 s{sTmp[4]}, s{sTmp[4]}, {L_R0}")
        a(f"v_lshrrev_b32 v14, 9, v{vL16}"); a(f"v_and_b32 v57, 0x1f0, v{vL16}")
        a(f"v_lshrrev_b32 v15, 1, v57"); a(f"v_mul_u32_u24 v58, 1040, v14"); a(f"v_add_u32 v15, v15, v58"); a(f"v_add_u32 v15, s{sTmp[4]}, v15")
        a(f"v_lshl_add_u32 v57, v14, 11, v57")
        lg0 = a.newlabel("cg"); lg1 = a.newlabel("cg")
        a.label(lg0)
        a(f"s_cmp_ge_u32 s{sPos}, 16"); a(f"s_cbranch_scc1 {lg1}")
        self.stream_call()
        a(f"s_branch {lg0}")
        a.label(lg1)
        if self.sent:
            lsk = a.newlabel("nosent")
            if not self.sent1:
                a(f"s_cmp_lg_u32 s{sAct}, 0"); a(f"s_cbranch_scc1 {lsk}")
            a(f"v_lshrrev_b32 v14, 7, v{vL16}"); a(f"v_lshlrev_b32 v14, 11, v14"); a(f"v_and_b32 v58, 0x70, v{vL16}"); a(f"v_lshl_add_u32 v14, v58, 2, v14")
            def iss0():
                a(f"buffer_load_dwordx4 {vr(Gq,4)}, v14, {W}, s{sTmp[0]} offen sc1")
                a(f"buffer_load_dwordx4 {vr(Gq+4,4)}, v14, {W}, s{sTmp[2]} offen sc1")
            self.poll(iss0, [Gq, Gq+4], site='sent')
            a.label(lsk)
            self.stamp(15)
        def iss():
            for i in range(8):
                so = sTmp[i >> 1]
                if i & 1:
                    a(f"s_add_u32 s{sTmp[5-1]}, s{so}, 4096"); so = sTmp[4]
                a(f"buffer_load_dwordx4 {vr(Gq+4*i,4)}, v57, {W}, s{so} offen sc1")
        self.poll(iss, [Gq+4*i for i in range(8)], site='h4')
        self.stampval(30, sSpin); self.stampval(31, sPos)
        self.stamp(4)
        if self.pfnew: self.load_wuv()
        self.burst('A0')
        if self.c1touch2 == "h4":
            lt = a.newlabel("t2")
            a(f"s_cmp_eq_u32 s{sL}, 0"); a(f"s_cbranch_scc1 {lt}")
            a(f"v_lshlrev_b32 v11, 2, v{vL16}")
            for i in range(1 if self.c1bf else 2):
                a(f"s_add_u32 s{sTmp[0]}, s{sC1}, {i * 4096}")
                a(f"buffer_load_dword v12, v11, {W}, s{sTmp[0]} offen")
            a.label(lt)
        for i in range(8):
            b = Gq + 4*i
            a(f"v_cvt_pk_bf16_f32 v{b}, v{b}, v{b+1}"); a(f"v_cvt_pk_bf16_f32 v{b+1}, v{b+2}, v{b+3}")
            a(f"ds_write_b64 v15, {vr(b,2)} offset:{i*2*1040}")
        self.tu()
        a("s_waitcnt lgkmcnt(0)"); a("s_barrier")
        self.stamp(16)
        if "S" in self.xcalls: self.topup(site='S')
        self.burst('S')
        AB = 16
        Ds = 56
        def rd(st):
            b = AB + 8 * (st % 4)
            if st == 0: a(f"ds_read_b128 {vr(b,4)}, v{vA0}")
            else:
                a(f"v_xor_b32 v{vAx}, {st<<4}, v{vA0}"); a(f"ds_read_b128 {vr(b,4)}, v{vAx}")
            a(f"ds_read_b128 {vr(b+4,4)}, v{vB0} offset:{st*16}")
        for st in range(4): rd(st)
        for st in range(16):
            rem = min(3, 15 - st)
            a(f"s_waitcnt lgkmcnt({2*rem})")
            b = AB + 8 * (st % 4)
            c = "0" if st == 0 else vr(Ds, 4)
            a(f"v_mfma_f32_16x16x32_bf16 {vr(Ds,4)}, {vr(b,4)}, {vr(b+4,4)}, {c}")
            if st + 4 < 16: rd(st + 4)
        a(f"ds_write_b128 v50, {vr(Ds,4)}")
        self.tu()
        a("s_waitcnt lgkmcnt(0)"); a("s_barrier")
        self.stamp(17)
        SS = 16
        for u in range(2):
            for hf in range(2):
                a(f"ds_read_b128 {vr(SS+8*u+4*hf,4)}, v51 offset:{u*128+hf*16}")
        if self.pfnew: self.load_wo(pWoA)
        DT = 44; AF = 56
        m, l, t1, t2 = 32, 33, 34, 35
        a("s_waitcnt lgkmcnt(0)")
        a(f"v_max3_f32 v{m}, v{SS}, v{SS+1}, v{SS+2}"); a(f"v_max3_f32 v{t1}, v{SS+3}, v{SS+4}, v{SS+5}")
        a(f"v_max3_f32 v{m}, v{m}, v{SS+6}, v{SS+7}"); a(f"v_max3_f32 v{t1}, v{t1}, v{SS+8}, v{SS+9}")
        a(f"v_max3_f32 v{m}, v{m}, v{SS+10}, v{SS+11}"); a(f"v_max3_f32 v{t1}, v{t1}, v{SS+12}, v{SS+13}")
        a(f"v_max3_f32 v{m}, v{m}, v{SS+14}, v{SS+15}"); a(f"v_max_f32 v{m}, v{m}, v{t1}")
        for sw in ("v_permlane16_swap_b32", "v_permlane32_swap_b32"):
            a(f"v_mov_b32 v{t1}, v{m}"); a(f"{sw} v{m}, v{t1}"); a(f"v_max_f32 v{m}, v{m}, v{t1}")
        for k in range(16): a(f"v_sub_f32 v{SS+k}, v{SS+k}, v{m}")
        for k in range(16): a(f"v_exp_f32 v{SS+k}, v{SS+k}")
        P = 36
        for k in range(8): a(f"v_cvt_pk_bf16_f32 v{P+k}, v{SS+2*k}, v{SS+2*k+1}")
        for k in range(8): a(f"v_add_f32 v{SS+k}, v{SS+k}, v{SS+8+k}")
        for k in range(4): a(f"v_add_f32 v{SS+k}, v{SS+k}, v{SS+4+k}")
        a(f"v_add_f32 v{SS}, v{SS}, v{SS+1}"); a(f"v_add_f32 v{SS+2}, v{SS+2}, v{SS+3}"); a(f"v_add_f32 v{l}, v{SS}, v{SS+2}")
        self.stamp(18)
        if "smax" in self.xcalls: self.topup(site='S')
        self.burst('smax')
        AF = 16
        steps = [(t, u) for t in range(8) for u in range(2)]
        def rdA(k):
            t, u = steps[k]; b = AF + 4 * (k % 4)
            if u == 0:
                if t == 0:
                    a(f"v_mov_b32 v{vX0}, v{vC0}"); a(f"v_mov_b32 v{vX1}, v{vC1}")
                else:
                    a(f"v_xor_b32 v{vX0}, {t<<5}, v{vC0}"); a(f"v_xor_b32 v{vX1}, {t<<5}, v{vC1}")
            a(f"ds_read_b64_tr_b16 {vr(b,2)}, v{vX0} offset:{u*32768}")
            a(f"ds_read_b64_tr_b16 {vr(b+2,2)}, v{vX1} offset:{u*32768}")
        for k in range(4): rdA(k)
        for sw in ("v_permlane16_swap_b32", "v_permlane32_swap_b32"):
            a(f"v_mov_b32 v{t1}, v{l}"); a(f"{sw} v{l}, v{t1}"); a(f"v_add_f32 v{l}, v{l}, v{t1}")
        if self.c1bf:
            self.stage1_bf(DT, P, AF, steps, rdA)
            acc = 48; t1 = 68; Mx = 56; den = 64; R4 = range(4)
        else:
            a(f"v_lshrrev_b32 v14, 8, v{vL16}"); a(f"v_lshlrev_b32 v14, 17, v14"); a(f"v_and_b32 v15, 0xf0, v{vL16}"); a(f"v_add_u32 v14, v14, v15")
            a(f"s_lshl_b32 s{sTmp[0]}, s{sXG}, 20"); a(f"s_lshl_b32 s{sTmp[1]}, s{sGA}, 19"); a(f"s_add_u32 s{sTmp[0]}, s{sTmp[0]}, s{sTmp[1]}")
            a(f"s_lshl_b32 s{sTmp[1]}, s{sW}, 15"); a(f"s_add_u32 s{sTmp[0]}, s{sTmp[0]}, s{sTmp[1]}")
            a(f"s_and_b32 s{sTmp[2]}, s{sS}, 15"); a(f"s_lshl_b32 s{sTmp[1]}, s{sTmp[2]}, 9"); a(f"s_add_u32 s{sTmp[0]}, s{sTmp[0]}, s{sTmp[1]}")
            a(f"s_add_u32 s{sTmp[0]}, s{sTmp[0]}, {O_C1}")
            a(f"s_lshl_b32 s{sTmp[3]}, s{sXG}, 14"); a(f"s_lshl_b32 s{sTmp[1]}, s{sGA}, 13"); a(f"s_add_u32 s{sTmp[3]}, s{sTmp[3]}, s{sTmp[1]}")
            a(f"s_lshl_b32 s{sTmp[1]}, s{sW}, 9"); a(f"s_add_u32 s{sTmp[3]}, s{sTmp[3]}, s{sTmp[1]}")
            a(f"s_lshl_b32 s{sTmp[1]}, s{sTmp[2]}, 5"); a(f"s_add_u32 s{sTmp[3]}, s{sTmp[3]}, s{sTmp[1]}")
            a(f"s_add_u32 s{sTmp[3]}, s{sTmp[3]}, {O_ML1}")
            a(f"v_bfe_u32 v15, v{vL16}, 6, 2"); a(f"v_lshlrev_b32 v15, 11, v15")
            a(f"v_bfe_u32 v32+2, v{vL16}, 8, 1".replace("v32+2", "v34")); a(f"v_lshl_add_u32 v15, v34, 4, v15")
            MG = 76 - 0
            a(f"s_mov_b32 vcc_lo, 0xffff0000"); a("s_mov_b32 vcc_hi, 0")
            a(f"v_cndmask_b32 v34, v32, v33, vcc")
            mlops = [f"v_mov_b32_dpp v32, v34 quad_perm:[0,0,0,0] {DPPALL}", f"v_mov_b32_dpp v33, v34 quad_perm:[1,1,1,1] {DPPALL}",
                     f"v_mov_b32_dpp v35, v34 quad_perm:[3,3,3,3] {DPPALL}", f"v_mov_b32_dpp v34, v34 quad_perm:[2,2,2,2] {DPPALL}"]
            for k in range(16):
                t, u = steps[k]; b = AF + 4 * (k % 4)
                rem = min(3, 15 - k)
                a(f"s_waitcnt lgkmcnt({2*rem})")
                c = "0" if u == 0 else vr(DT+4*t, 4)
                a(f"v_mfma_f32_16x16x32_bf16 {vr(DT+4*t,4)}, {vr(P+4*u,4)}, {vr(b,4)}, {c}")
                if k + 4 < 16: rdA(k + 4)
                if k == 0:
                    for x_ in mlops: a(x_)
                if k == 2: self.tag([32, 33, 34, 35])
                if u == 1 and t >= 2: self.tag([DT+4*(t-2)+r for r in range(4)])
            self.tag([DT+4*6+r for r in range(4)]); self.tag([DT+4*7+r for r in range(4)])
            self.stamp(19)
            items = []
            for t in range(8):
                def pre(t=t): a(f"s_add_u32 s{sTmp[1]}, s{sTmp[0]}, {(t>>1)*8192+(t&1)*256}")
                items.append((DT+4*t, 14, sTmp[1], pre))
            def pre_ml(): a("s_mov_b32 exec_lo, 0x11111111"); a("s_mov_b32 exec_hi, 0")
            items.append((32, 15, sTmp[3], pre_ml))
            if self.c1sc1:
                loc = self.local; self.local = False
                self.local_stores(items)
                self.local = loc
            else:
                self.local_stores(items)
            self.exec_all()
            self.stamp(5)
            G, MM, LL = 16, 48, 52
            a(f"v_lshrrev_b32 v14, 4, v{vL16}"); a(f"v_and_b32 v15, 7, v14"); a(f"v_lshrrev_b32 v14, 5, v14")
            a(f"v_lshl_add_u32 v14, v15, 1, v14"); a(f"v_lshlrev_b32 v14, 5, v14")
            a(f"s_lshl_b32 s{sTmp[0]}, s{sXG}, 5"); a(f"s_add_u32 s{sTmp[0]}, s{sTmp[0]}, s{sI}")
            a(f"s_lshl_b32 s{sTmp[2]}, s{sTmp[0]}, 9"); a(f"s_add_u32 s{sTmp[2]}, s{sTmp[2]}, {O_ML1}")
            a(f"s_lshl_b32 s{sTmp[0]}, s{sTmp[0]}, 2"); a(f"s_add_u32 s{sTmp[0]}, s{sTmp[0]}, s{sW}")
            a(f"s_lshl_b32 s{sTmp[0]}, s{sTmp[0]}, 13"); a(f"s_add_u32 s{sTmp[0]}, s{sTmp[0]}, {O_C1}")
            a(f"s_add_u32 s{sTmp[1]}, s{sTmp[0]}, 4096")
            def issML():
                a(f"buffer_load_dwordx4 {vr(MM,4)}, v14, {W}, s{sTmp[2]} offen sc1")
                a(f"buffer_load_dwordx4 {vr(LL,4)}, v14, {W}, s{sTmp[2]} offen offset:16 sc1")
            lsk = a.newlabel("noml")
            if not self.mlsent:
                a(f"s_cmp_lg_u32 s{sAct}, 0"); a(f"s_cbranch_scc1 {lsk}")
            if not self.mltail:
                a(f"s_cmp_ge_u32 s{sL}, 2"); a(f"s_cbranch_scc1 {lsk}")
            self.poll(issML, [MM, LL], site='ml1')
            a.label(lsk)
            self.stamp(20)
            Mx, wv, den, t1 = 56, 60, 64, 68
            chk = 72
            lp = a.newlabel("sw1"); ns = a.newlabel("sw1n"); jn = a.newlabel("sw1j"); dn = a.newlabel("sw1d"); ns2 = a.newlabel("sw1m"); jn2 = a.newlabel("sw1k")
            a(f"s_mov_b32 s{sSpin}, 0")
            if self.bud is not None: a(f"s_mov_b32 s{sBud}, {self.bud.get('sw1', self.bud.get('*', 8))}")
            self.predelay('sw1')
            a.label(lp)
            issML()
            for i in range(8):
                a(f"buffer_load_dwordx4 {vr(G+4*i,4)}, v{vL16}, {W}, s{sTmp[i>>2]} offen offset:{(i&3)*1024} sc1")
            a(f"s_mov_b32 s{sYoung}, 8")
            self.dwait(8, 10 if self.addn else 0, 'sw1')
            a(f"s_sub_u32 s{sTmp[4]}, s{sYoung}, 8")
            for r in range(4): a(f"v_xor_b32 v{MM+r}, s{sT[r]}, v{MM+r}")
            for r in range(4): a(f"v_xor_b32 v{LL+r}, s{sT[r]}, v{LL+r}")
            a(f"v_or3_b32 v{chk}, v{MM}, v{MM+1}, v{MM+2}"); a(f"v_or3_b32 v{chk}, v{chk}, v{MM+3}, v{LL}")
            a(f"v_or3_b32 v{chk}, v{chk}, v{LL+1}, v{LL+2}"); a(f"v_or_b32 v{chk}, v{chk}, v{LL+3}")
            R4 = range(4)
            for r in R4: a(f"v_max_f32_dpp v{Mx+r}, v{MM+r}, v{MM+r} {self.X1} {DPPALL}")
            self.dpp_steps([Mx+r for r in R4], "v_max_f32", [self.X2, self.HM])
            for r in R4: a(f"v_mov_b32 v{t1+r}, v{Mx+r}")
            for r in R4: a(f"v_permlane32_swap_b32 v{Mx+r}, v{t1+r}")
            for r in R4: a(f"v_max_f32 v{Mx+r}, v{Mx+r}, v{t1+r}")
            for r in R4: a(f"v_sub_f32 v{wv+r}, v{MM+r}, v{Mx+r}")
            for r in R4: a(f"v_exp_f32 v{wv+r}, v{wv+r}")
            for r in R4: a(f"v_mul_f32 v{den+r}, v{wv+r}, v{LL+r}")
            self.dpp_steps([den+r for r in R4], "v_add_f32", [self.X1, self.X2, self.HM])
            for r in R4: a(f"v_mov_b32 v{t1+r}, v{den+r}")
            for r in R4: a(f"v_permlane32_swap_b32 v{den+r}, v{t1+r}")
            for r in R4: a(f"v_add_f32 v{den+r}, v{den+r}, v{t1+r}")
            if self.mode == "co":
                a(f"s_cmp_eq_u32 s{sTmp[4]}, 0"); a(f"s_cbranch_scc1 {ns2}")
                a(f"s_mov_b32 s{sYoung}, s{sTmp[4]}")
                a(f"s_swappc_b64 s[{sRET2}:{sRET2+1}], s[{sDW}:{sDW+1}]")
                a(f"s_branch {jn2}")
                a.label(ns2)
            self.dwait(0, 0, 'sw1')
            a.label(jn2)
            dw = [G + i for i in range(32)]
            for k, r in enumerate(dw): a(f"v_xor_b32 v{r}, s{sT[k % 4]}, v{r}")
            a(f"v_or3_b32 v{vT0}, v{dw[0]}, v{dw[1]}, v{chk}"); a(f"v_or3_b32 v{vT0+1}, v{dw[2]}, v{dw[3]}, v{dw[4]}")
            k = 5; tog = 0
            while k < 31:
                tgt = vT0 + tog
                a(f"v_or3_b32 v{tgt}, v{tgt}, v{dw[k]}, v{dw[k+1]}"); k += 2; tog ^= 1
            a(f"v_or3_b32 v{vT0}, v{vT0}, v{vT0+1}, v{dw[31]}")
            a(f"v_and_b32 v{vT0}, s{sFF}, v{vT0}")
            a(f"v_cmp_ne_u32 vcc, 0, v{vT0}")
            a(f"s_cbranch_vccz {dn}")
            a(f"s_add_u32 s{sSpin}, s{sSpin}, 1"); a(f"s_cmp_lt_u32 s{sSpin}, {SPIN_MAX}"); a(f"s_cbranch_scc1 {lp}")
            a(f"s_mov_b32 s{sErr}, 1")
            a.label(dn)
            self.stampval(24, sSpin); self.stampval(25, sPos)
            self.stamp(6)
            self.burst('A1')
            acc = 48
            for i in range(8):
                for r in range(4):
                    op = "v_mul_f32_dpp" if i == 0 else "v_fmac_f32_dpp"
                    a(f"{op} v{acc+r}, v{wv+r}, v{G+4*i+r} row_newbcast:{i} {DPPALL}")

        if self.c1bf:
            a(f"v_bfe_u32 v14, v{vL16}, 9, 1"); a(f"v_lshlrev_b32 v14, 11, v14"); a(f"v_and_b32 v15, 0xf0, v{vL16}"); a(f"v_add_u32 v14, v14, v15")
        else:
            a(f"v_bfe_u32 v14, v{vL16}, 8, 1"); a(f"v_lshlrev_b32 v14, 11, v14"); a(f"v_and_b32 v15, 0xf0, v{vL16}"); a(f"v_add_u32 v14, v14, v15")
            for r in R4: a(f"v_mov_b32 v{t1+r}, v{acc+r}")
        a(f"s_lshr_b32 s{sTmp[0]}, s{sI}, 2"); a(f"s_lshl_b32 s{sTmp[0]}, s{sTmp[0]}, 16")
        a(f"s_and_b32 s{sTmp[1]}, s{sI}, 3"); a(f"s_lshl_b32 s{sTmp[1]}, s{sTmp[1]}, 14"); a(f"s_add_u32 s{sTmp[0]}, s{sTmp[0]}, s{sTmp[1]}")
        if not self.c1bf:
            for r in R4: a(f"v_permlane32_swap_b32 v{acc+r}, v{t1+r}")
        a(f"s_lshl_b32 s{sTmp[1]}, s{sW}, 12"); a(f"s_add_u32 s{sTmp[0]}, s{sTmp[0]}, s{sTmp[1]}")
        a(f"s_lshl_b32 s{sTmp[1]}, s{sXG}, 8"); a(f"s_add_u32 s{sTmp[0]}, s{sTmp[0]}, s{sTmp[1]}")
        if not self.c1bf:
            for r in R4: a(f"v_add_f32 v{acc+r}, v{acc+r}, v{t1+r}")
        a(f"s_add_u32 s{sTmp[0]}, s{sTmp[0]}, {O_C2}")
        self.tag([acc, acc+1, acc+2, acc+3])
        if self.c1bf: self.exec_set(0xffff, 0xffff)
        else: a("s_mov_b32 exec_hi, 0")
        a(f"buffer_store_dwordx4 {vr(acc,4)}, v14, {W}, s{sTmp[0]} offen sc1")
        self.exec_all()
        lm = a.newlabel("ml2")
        a(f"s_and_b32 s{sTmp[1]}, s{sI}, 3"); a(f"s_or_b32 s{sTmp[1]}, s{sTmp[1]}, s{sW}"); a(f"s_cmp_lg_u32 s{sTmp[1]}, 0"); a(f"s_cbranch_scc1 {lm}")
        for r in (1, 2, 3):
            a(f"s_mov_b64 vcc, {1 << r}")
            a(f"v_cndmask_b32 v{Mx}, v{Mx}, v{Mx+r}, vcc"); a(f"v_cndmask_b32 v{den}, v{den}, v{den+r}, vcc")
        a(f"v_mov_b32 v{Mx+1}, v{den}"); a(f"v_mov_b32 v{Mx+2}, 0"); a(f"v_mov_b32 v{Mx+3}, 0")
        self.tag([Mx, Mx+1, Mx+2, Mx+3])
        a(f"s_lshl_b32 s{sTmp[1]}, s{sI}, 7"); a(f"s_lshl_b32 s{sTmp[2]}, s{sXG}, 4"); a(f"s_add_u32 s{sTmp[1]}, s{sTmp[1]}, s{sTmp[2]}")
        a(f"s_add_u32 s{sTmp[1]}, s{sTmp[1]}, {O_ML2}")
        a(f"v_lshlrev_b32 v15, 3, v{vL16}")
        a("s_mov_b64 exec, 15")
        a(f"buffer_store_dwordx4 {vr(Mx,4)}, v15, {W}, s{sTmp[1]} offen sc1")
        self.exec_all()
        a.label(lm)
        self.stamp(21)
        self.tu()
        if not self.pfnew: self.load_wo(pWoA)
        G0, G1, M0, M1 = 16, 20, 24, 28
        a(f"v_bfe_u32 v15, v{vL16}, 6, 2")
        a(f"v_bfe_u32 v14, v{vL16}, 4, 2"); a(f"v_lshlrev_b32 v14, 2, v14"); a(f"v_lshrrev_b32 v32, 8, v{vL16}"); a(f"v_add_u32 v14, v14, v32")
        a(f"v_lshlrev_b32 v14, 4, v14"); a(f"v_lshl_add_u32 v14, v15, 8, v14")
        a(f"v_lshlrev_b32 v15, 4, v15")
        a(f"s_lshr_b32 s{sTmp[0]}, s{sH}, 2"); a(f"s_lshl_b32 s{sTmp[0]}, s{sTmp[0]}, 16"); a(f"s_lshl_b32 s{sTmp[1]}, s{sJ}, 13"); a(f"s_add_u32 s{sTmp[0]}, s{sTmp[0]}, s{sTmp[1]}")
        a(f"s_lshl_b32 s{sTmp[1]}, s{sW}, 11"); a(f"s_add_u32 s{sTmp[0]}, s{sTmp[0]}, s{sTmp[1]}"); a(f"s_add_u32 s{sTmp[0]}, s{sTmp[0]}, {O_C2}")
        a(f"s_lshl_b32 s{sTmp[2]}, s{sH}, 7"); a(f"s_add_u32 s{sTmp[2]}, s{sTmp[2]}, {O_ML2}")
        def iss2():
            a(f"buffer_load_dwordx4 {vr(M0,4)}, v15, {W}, s{sTmp[2]} offen sc1")
            a(f"buffer_load_dwordx4 {vr(M1,4)}, v15, {W}, s{sTmp[2]} offen offset:64 sc1")
            a(f"buffer_load_dwordx4 {vr(G0,4)}, v14, {W}, s{sTmp[0]} offen sc1")
            a(f"buffer_load_dwordx4 {vr(G1,4)}, v14, {W}, s{sTmp[0]} offen offset:1024 sc1")
        self.poll(iss2, [M0, M1, G0, G1], site='h5b')
        self.stampval(26, sSpin); self.stampval(27, sPos)
        self.stamp(14)
        self.tu()
        self.burst('A2')
        lsel = [a.newlabel("sel") for _ in range(4)]; lj = a.newlabel("selj")
        Mx, f0, f1, Ls = 32, 33, 34, 35
        a(f"v_max_f32 v{Mx}, v{M0}, v{M1}")
        a(f"s_and_b32 s{sTmp[1]}, s{sH}, 3")
        for r in (1, 2, 3):
            a(f"s_cmp_eq_u32 s{sTmp[1]}, {r}"); a(f"s_cbranch_scc1 {lsel[r]}")
        a(f"s_branch {lj}")
        for r in (1, 2, 3):
            a.label(lsel[r])
            a(f"v_mov_b32 v{G0}, v{G0+r}"); a(f"v_mov_b32 v{G1}, v{G1+r}")
            if r < 3: a(f"s_branch {lj}")
        a.label(lj)
        self.dpp_steps([Mx], "v_max_f32", ["row_ror:4", "row_ror:8"])
        a(f"v_sub_f32 v{f0}, v{M0}, v{Mx}"); a(f"v_sub_f32 v{f1}, v{M1}, v{Mx}")
        a(f"v_exp_f32 v{f0}, v{f0}"); a(f"v_exp_f32 v{f1}, v{f1}")
        a(f"v_mul_f32 v{Ls}, v{f0}, v{M0+1}"); a(f"v_mul_f32 v{G0}, v{f0}, v{G0}")
        a(f"v_fmac_f32 v{Ls}, v{f1}, v{M1+1}"); a(f"v_fmac_f32 v{G0}, v{f1}, v{G1}")
        self.dpp_steps([Ls, G0], "v_add_f32", ["row_ror:4", "row_ror:8"])
        a(f"v_rcp_f32 v{Ls}, v{Ls}")
        a(f"v_mul_f32 v{G0}, v{G0}, v{Ls}")
        Xp = 14
        a(f"v_cvt_pk_bf16_f32 v{Xp}, v{G0}, v{G0}")
        D, Ab = 16, 20
        self.pv_gemv(Xp, 4, lambda i: vr(WUV+4*i, 4), D, Ab)
        self.red_write(D)
        self.row_slot_addr()
        self.tu()
        a("s_waitcnt lgkmcnt(0)"); a("s_barrier")
        lf = a.newlabel("uvfin")
        a(f"s_cmp_lg_u32 s{sW}, 0"); a(f"s_cbranch_scc1 {lf}")
        G = 16
        self.red_final_read(G)
        a(f"s_mov_b32 s{sA}, {f32hex(0.125)}")
        a("s_waitcnt lgkmcnt(0)")
        self.sum4(G)
        a(f"v_writelane_b32 v{G}, 0, 32"); a(f"v_writelane_b32 v{G+1}, s{sA}, 32")
        self.tag([G, G+1, G+2, G+3])
        a("s_mov_b32 exec_hi, 1")
        self.local_stores([(G, vL16, sTmp[0], None)])
        a("s_mov_b32 exec_hi, -1")
        a.label(lf)
        self.stamp(7)

    def stage1_bf(self, DT, P, AF, steps, rdA):
        a = self.a
        R4 = range(4)
        a(f"v_lshrrev_b32 v14, 8, v{vL16}"); a(f"v_lshlrev_b32 v14, 16, v14"); a(f"v_and_b32 v15, 0xf0, v{vL16}"); a(f"v_add_u32 v14, v14, v15")
        a(f"s_lshl_b32 s{sTmp[0]}, s{sXG}, 19"); a(f"s_lshl_b32 s{sTmp[1]}, s{sGA}, 18"); a(f"s_add_u32 s{sTmp[0]}, s{sTmp[0]}, s{sTmp[1]}")
        a(f"s_lshl_b32 s{sTmp[1]}, s{sW}, 14"); a(f"s_add_u32 s{sTmp[0]}, s{sTmp[0]}, s{sTmp[1]}")
        a(f"s_and_b32 s{sTmp[2]}, s{sS}, 15"); a(f"s_lshl_b32 s{sTmp[1]}, s{sTmp[2]}, 8"); a(f"s_add_u32 s{sTmp[0]}, s{sTmp[0]}, s{sTmp[1]}")
        a(f"s_add_u32 s{sTmp[0]}, s{sTmp[0]}, {O_C1}")
        a(f"s_lshl_b32 s{sTmp[3]}, s{sXG}, 14"); a(f"s_lshl_b32 s{sTmp[1]}, s{sGA}, 13"); a(f"s_add_u32 s{sTmp[3]}, s{sTmp[3]}, s{sTmp[1]}")
        a(f"s_lshl_b32 s{sTmp[1]}, s{sW}, 9"); a(f"s_add_u32 s{sTmp[3]}, s{sTmp[3]}, s{sTmp[1]}")
        a(f"s_lshl_b32 s{sTmp[1]}, s{sTmp[2]}, 5"); a(f"s_add_u32 s{sTmp[3]}, s{sTmp[3]}, s{sTmp[1]}")
        a(f"s_add_u32 s{sTmp[3]}, s{sTmp[3]}, {O_ML1}")
        a(f"v_bfe_u32 v15, v{vL16}, 6, 2"); a(f"v_lshlrev_b32 v15, 11, v15")
        a(f"v_bfe_u32 v34, v{vL16}, 8, 1"); a(f"v_lshl_add_u32 v15, v34, 4, v15")
        a(f"s_mov_b32 vcc_lo, 0xffff0000"); a("s_mov_b32 vcc_hi, 0")
        a(f"v_cndmask_b32 v34, v32, v33, vcc")
        mlops = [f"v_mov_b32_dpp v32, v34 quad_perm:[0,0,0,0] {DPPALL}", f"v_mov_b32_dpp v33, v34 quad_perm:[1,1,1,1] {DPPALL}",
                 f"v_mov_b32_dpp v35, v34 quad_perm:[3,3,3,3] {DPPALL}", f"v_mov_b32_dpp v34, v34 quad_perm:[2,2,2,2] {DPPALL}"]
        def pack(wp):
            D0, E0 = DT + 8*wp, DT + 8*wp + 4
            a(f"v_cvt_pk_bf16_f32 v{D0}, v{D0}, v{D0+1}"); a(f"v_cvt_pk_bf16_f32 v{D0+1}, v{D0+2}, v{D0+3}")
            a(f"v_cvt_pk_bf16_f32 v{D0+2}, v{E0}, v{E0+1}"); a(f"v_cvt_pk_bf16_f32 v{D0+3}, v{E0+2}, v{E0+3}")
        for k in range(16):
            t, u = steps[k]; b = AF + 4 * (k % 4)
            rem = min(3, 15 - k)
            a(f"s_waitcnt lgkmcnt({2*rem})")
            c = "0" if u == 0 else vr(DT+4*t, 4)
            a(f"v_mfma_f32_16x16x32_bf16 {vr(DT+4*t,4)}, {vr(P+4*u,4)}, {vr(b,4)}, {c}")
            if k + 4 < 16: rdA(k + 4)
            if k == 0:
                for x_ in mlops: a(x_)
            if k == 2: self.tag([32, 33, 34, 35])
            if k in (7, 11, 15) : pack((k - 7) // 4)
        pack(3)
        self.stamp(19)
        items = []
        for wp in range(4):
            def pre(wp=wp): a(f"s_add_u32 s{sTmp[1]}, s{sTmp[0]}, {wp*4096}")
            items.append((DT+8*wp, 14, sTmp[1], pre))
        self.local_stores(items)
        G, MM, LL = 16, 48, 52
        a(f"v_bfe_u32 v14, v{vL16}, 4, 2"); a(f"v_lshlrev_b32 v14, 2, v14"); a(f"v_lshrrev_b32 v36, 8, v{vL16}"); a(f"v_add_u32 v14, v14, v36")
        a(f"v_lshlrev_b32 v14, 5, v14")
        a(f"s_lshl_b32 s{sTmp[0]}, s{sXG}, 5"); a(f"s_add_u32 s{sTmp[0]}, s{sTmp[0]}, s{sI}")
        a(f"s_lshl_b32 s{sTmp[2]}, s{sTmp[0]}, 9"); a(f"s_add_u32 s{sTmp[2]}, s{sTmp[2]}, {O_ML1}")
        a("s_waitcnt vmcnt(0)")
        def pre_ml(): a("s_mov_b32 exec_lo, 0x11111111"); a("s_mov_b32 exec_hi, 0")
        self.local_stores([(32, 15, sTmp[3], pre_ml)])
        self.exec_all()
        self.stamp(5)
        def issML():
            a(f"buffer_load_dwordx4 {vr(MM,4)}, v14, {W}, s{sTmp[2]} offen sc1")
            a(f"buffer_load_dwordx4 {vr(LL,4)}, v14, {W}, s{sTmp[2]} offen offset:16 sc1")
        self.poll(issML, [MM, LL], site='ml1')
        self.stamp(20)
        for i in range(4):
            a(f"buffer_load_dwordx4 {vr(G+4*i,4)}, v{vL16}, {W}, s{sC1} offen offset:{i*1024} sc1")
        Mx, wv, den, t1 = 56, 60, 64, 68
        for r in R4: a(f"v_max_f32_dpp v{Mx+r}, v{MM+r}, v{MM+r} {self.X1} {DPPALL}")
        self.dpp_steps([Mx+r for r in R4], "v_max_f32", [self.X2])
        for sw in ("v_permlane16_swap_b32", "v_permlane32_swap_b32"):
            for r in R4: a(f"v_mov_b32 v{t1+r}, v{Mx+r}")
            for r in R4: a(f"{sw} v{Mx+r}, v{t1+r}")
            for r in R4: a(f"v_max_f32 v{Mx+r}, v{Mx+r}, v{t1+r}")
        for r in R4: a(f"v_sub_f32 v{wv+r}, v{MM+r}, v{Mx+r}")
        for r in R4: a(f"v_exp_f32 v{wv+r}, v{wv+r}")
        for r in R4: a(f"v_mul_f32 v{den+r}, v{wv+r}, v{LL+r}")
        self.dpp_steps([den+r for r in R4], "v_add_f32", [self.X1, self.X2])
        for sw in ("v_permlane16_swap_b32", "v_permlane32_swap_b32"):
            for r in R4: a(f"v_mov_b32 v{t1+r}, v{den+r}")
            for r in R4: a(f"{sw} v{den+r}, v{t1+r}")
            for r in R4: a(f"v_add_f32 v{den+r}, v{den+r}, v{t1+r}")
        self.dwait(0, 4, 'sw1')
        self.stamp(6)
        self.tu()
        self.burst('A1')
        accA, accB, un = 48, 52, 32
        for i in range(4):
            g0 = G + 4*i
            for q in range(4):
                a(f"v_lshlrev_b32 v{un+2*q}, 16, v{g0+q}"); a(f"v_and_b32 v{un+2*q+1}, 0xffff0000, v{g0+q}")
            for q in range(8):
                acc = (accA if q < 4 else accB) + (q & 3)
                op = "v_mul_f32_dpp" if i == 0 else "v_fmac_f32_dpp"
                a(f"{op} v{acc}, v{wv+(q&3)}, v{un+q} row_newbcast:{i} {DPPALL}")
        for r in R4: a(f"v_permlane32_swap_b32 v{accA+r}, v{accB+r}")
        for r in R4: a(f"v_add_f32 v{accA+r}, v{accA+r}, v{accB+r}")
        for r in R4: a(f"v_mov_b32 v{t1+r}, v{accA+r}")
        for r in R4: a(f"v_permlane16_swap_b32 v{accA+r}, v{t1+r}")
        for r in R4: a(f"v_add_f32 v{accA+r}, v{accA+r}, v{t1+r}")

    def check_inline(self, regs, ok_label):
        a = self.a
        acc, acc2 = vT0, vT0 + 1
        dw = [g + i for g in regs for i in range(4)]
        for k, r in enumerate(dw): a(f"v_xor_b32 v{r}, s{sT[k % 4]}, v{r}")
        a(f"v_or3_b32 v{acc}, v{dw[0]}, v{dw[1]}, v{dw[2]}")
        a(f"v_or3_b32 v{acc2}, v{dw[3]}, v{dw[4]}, v{dw[5]}")
        k = 6; tog = 0
        while k < len(dw):
            tgt = acc if tog == 0 else acc2
            a(f"v_or3_b32 v{tgt}, v{tgt}, v{dw[k]}, v{dw[k+1]}"); k += 2; tog ^= 1
        a(f"v_or_b32 v{acc}, v{acc}, v{acc2}")
        a(f"v_and_b32 v{acc}, s{sFF}, v{acc}")
        a(f"v_cmp_ne_u32 vcc, 0, v{acc}")
        a(f"s_cbranch_vccz {ok_label}")

    def row_slot_addr(self):
        a = self.a
        a(f"s_lshl_b32 s{sTmp[0]}, s{sH}, 3"); a(f"s_add_u32 s{sTmp[0]}, s{sTmp[0]}, s{sJ}"); a(f"s_lshl_b32 s{sTmp[0]}, s{sTmp[0]}, 10")
        a(f"s_add_u32 s{sTmp[0]}, s{sTmp[0]}, {O_ROW}")

    def bmiddle(self):
        a = self.a
        k = self.kblk
        if self.mode == "co":
            l0 = a.newlabel("kw"); l1 = a.newlabel("kw")
            a.label(l0)
            a(f"s_cmp_ge_u32 s{sPos}, {self.KEND+self.keep}"); a(f"s_cbranch_scc1 {l1}")
            self.stream_call()
            a(f"s_waitcnt vmcnt({self.keep})")
            a(f"s_branch {l0}")
            a.label(l1)
            a(f"s_waitcnt vmcnt({self.keep})")
        self.stampval(24, sPos)
        self.stamp(16)
        if not self.vsplit or self.woqk: self.wo_setup(pWoB)
        Db = [16, 20, 24]; SB = 28; Tt = 14
        def redops(b):
            D = Db[b % 3]; S = SB + b
            return [f"v_mov_b32_dpp v{S}, v{D} quad_perm:[0,0,0,0] {DPPALL}",
                    f"v_mov_b32_dpp v{Tt}, v{D+2} quad_perm:[2,2,2,2] {DPPALL}",
                    f"v_add_f32_dpp v{S}, v{D+1}, v{S} quad_perm:[1,1,1,1] {DPPALL}",
                    f"v_add_f32_dpp v{Tt}, v{D+3}, v{Tt} quad_perm:[3,3,3,3] {DPPALL}",
                    f"v_add_f32 v{S}, v{S}, v{Tt}"]
        for b in range(16):
            D = Db[b % 3]
            ro = redops(b - 2) if b >= 2 else []
            for t in range(4):
                c = "0" if t == 0 else vr(D, 4)
                a(f"v_mfma_f32_16x16x32_bf16 {vr(D,4)}, {vr(AT+4*t,4)}, {ar(16*b+4*t,4)}, {c}")
                if ro: a(ro[t])
                if self.vsplit:
                    if self.woqk and t == 1 and b < 6: self.wo_one(b)
                    if t == 2 and (6 if self.woqk else 0) <= b < (10 if self.woqk else 4): self.vtr_one(4 + b - (6 if self.woqk else 0))
                else:
                    if t == 1 and b < 8: self.pf_guard(lambda: self.vtr_one(b))
                    if t == 2 and 8 <= b < 14: self.pf_guard(lambda: self.wo_one(b - 8))
            if ro: a(ro[4])
            if b in self.qkcalls: self.topup(self.dq)
        r14, r15 = redops(14), redops(15)
        r15 = [x.replace(f"v{Tt}", "v15") for x in r15]
        for x14, x15 in zip(r14, r15):
            a(x14); a(x15)
        self.stamp(3)
        m, m2 = 14, 15
        a(f"v_max3_f32 v{m}, v{SB}, v{SB+1}, v{SB+2}"); a(f"v_max3_f32 v{m2}, v{SB+3}, v{SB+4}, v{SB+5}")
        a(f"v_max3_f32 v{m}, v{m}, v{SB+6}, v{SB+7}"); a(f"v_max3_f32 v{m2}, v{m2}, v{SB+8}, v{SB+9}")
        a(f"v_max3_f32 v{m}, v{m}, v{SB+10}, v{SB+11}"); a(f"v_max3_f32 v{m2}, v{m2}, v{SB+12}, v{SB+13}")
        a(f"v_max3_f32 v{m}, v{m}, v{SB+14}, v{SB+15}"); a(f"v_max_f32 v{m}, v{m}, v{m2}")
        self.dpp_steps([m], "v_max_f32", ["row_ror:4", "row_ror:8", "b15", "b31"])
        a(f"v_readlane_b32 s{sA}, v{m}, 63")
        a(f"v_mov_b32 v{m2}, s{sSc}")
        a(f"v_mul_f32 v{m}, s{sA}, v{m2}")
        a(f"v_readfirstlane_b32 s{sA}, v{m}")
        for q in range(16): a(f"v_fma_f32 v{SB+q}, v{SB+q}, s{sSc}, -v{m}")
        for q in range(16): a(f"v_exp_f32 v{SB+q}, v{SB+q}")
        l, l2 = 14, 15
        a(f"v_add_f32 v{l}, v{SB}, v{SB+1}"); a(f"v_add_f32 v{l2}, v{SB+2}, v{SB+3}")
        for q in range(4, 16, 2):
            a(f"v_add_f32 v{l}, v{l}, v{SB+q}"); a(f"v_add_f32 v{l2}, v{l2}, v{SB+q+1}")
        a(f"v_add_f32 v{l}, v{l}, v{l2}")
        pk = [f"v_cvt_pk_bf16_f32 v{SB+q}, v{SB+q}, v{SB+q}" for q in range(16)]
        red = [f"v_add_f32_dpp v{l}, v{l}, v{l} row_ror:4 {DPPALL}", f"v_add_f32_dpp v{l}, v{l}, v{l} row_ror:8 {DPPALL}",
               f"v_add_f32_dpp v{l}, v{l}, v{l} row_bcast:15 row_mask:0xa bank_mask:0xf", f"v_add_f32_dpp v{l}, v{l}, v{l} row_bcast:31 row_mask:0xc bank_mask:0xf"]
        for i in range(4):
            for x_ in pk[4*i:4*i+2]: a(x_)
            a(red[i])
            for x_ in pk[4*i+2:4*i+4]: a(x_)
        a(f"v_readlane_b32 s{sB_}, v{l}, 63")
        self.stamp(4)
        if self.mode == "co":
            self.drain(self.keep)
            a("s_waitcnt vmcnt(16)")
        Ab, Do = 44, 52
        a(f"s_lshl_b32 s{sTmp[0]}, s{sW}, 14"); a(f"v_add_u32 v15, s{sTmp[0]}, v{vL16}")
        if L_VL: a(f"v_add_u32 v15, {L_VL}, v15")
        if self.smf:
            self.pv_smf(SB, Ab, Do)
        else:
            self.pv_dense(SB, Ab, Do)
        self.row_slot_addr()
        a(f"v_writelane_b32 v{Do}, s{sA}, 32"); a(f"v_writelane_b32 v{Do+1}, s{sB_}, 32")
        self.red_write(Do)
        a("s_waitcnt lgkmcnt(0)"); a("s_barrier")
        self.stamp(5)
        lf = a.newlabel("bfin")
        a(f"s_cmp_lg_u32 s{sW}, 0"); a(f"s_cbranch_scc1 {lf}")
        G = 16; MLr = 32
        a(f"v_mov_b32 v14, {L_RED+512}")
        for w in range(4): a(f"ds_read_b64 {vr(MLr+2*w,2)}, v14 offset:{w*RSTR}")
        self.red_final_read(G)
        a("s_waitcnt lgkmcnt(4)")
        M = 40
        a(f"v_max3_f32 v{M}, v{MLr}, v{MLr+2}, v{MLr+4}"); a(f"v_max_f32 v{M}, v{M}, v{MLr+6}")
        for w in range(4): a(f"v_sub_f32 v{MLr+2*w}, v{MLr+2*w}, v{M}")
        for w in range(4): a(f"v_exp_f32 v{MLr+2*w}, v{MLr+2*w}")
        a(f"v_readfirstlane_b32 s{sA}, v{M}")
        a("s_waitcnt lgkmcnt(0)")
        for r in range(4): a(f"v_mul_f32 v{G+r}, v{MLr}, v{G+r}")
        for w in range(1, 4):
            for r in range(4): a(f"v_fmac_f32 v{G+r}, v{MLr+2*w}, v{G+4*w+r}")
        a(f"v_writelane_b32 v{G}, s{sA}, 32")
        self.tag([G, G+1, G+2, G+3])
        a("s_mov_b32 exec_hi, 1")
        self.local_stores([(G, vL16, sTmp[0], None)])
        a("s_mov_b32 exec_hi, -1")
        a.label(lf)
        self.stamp(7)

    def pv_dense(self, SB, Ab, Do):
        a = self.a
        LB = [16, 20, 24, 56]
        order = [(b, u) for b in range(10) for u in range(4)] + [(b, u) for b in range(10, 14) for u in range(4)] + [(b, u) for b in (14, 15) for u in range(4)]
        def build(kk):
            b, u = order[kk]; A = Ab + 4 * (kk % 2)
            for r in range(4):
                a(f"v_and_b32_dpp v{A+r}, v{SB+b}, v{vM[r]} row_newbcast:{4*u} {DPPALL}")
        def bop(kk):
            b, u = order[kk]
            if b < 10: return vr(VRES+16*b+4*u, 4)
            if b < 14: return vr(LB[u], 4)
            return vr(self.vtr_reg(b, u), 4)
        def ldsrd(b, u):
            a(f"ds_read_b128 {vr(LB[u],4)}, v15 offset:{((b-10)*4+u)*1024}")
        build(0); build(1)
        for kk in range(len(order)):
            b, u = order[kk]
            if (b, u) == (8, 0):
                self.stamp(17)
                a("s_waitcnt vmcnt(0)")
                self.stamp(18)
                for uu in range(4): ldsrd(10, uu)
            if 10 <= b < 14: a(f"s_waitcnt lgkmcnt(3)" if not (b == 13 and u > 0) else f"s_waitcnt lgkmcnt({3-u})")
            A = Ab + 4 * (kk % 2)
            c = "0" if kk == 0 else vr(Do, 4)
            a(f"v_mfma_f32_16x16x32_bf16 {vr(Do,4)}, {vr(A,4)}, {bop(kk)}, {c}")
            if 10 <= b < 13: ldsrd(b + 1, u)
            if kk + 2 < len(order): build(kk + 2)

    def pv_smf(self, SB, Ab, Do):
        a = self.a
        N0, N1, IDX = 56, 57, 58
        n = 14
        a(f"v_bfe_u32 v{n}, v{vL16}, 4, 4")
        a(f"v_and_b32 v{IDX}, 3, v{n}"); a(f"v_mul_u32_u24 v{IDX}, 0x1111, v{IDX}")
        a(f"v_lshrrev_b32 v{n}, 2, v{n}"); a(f"v_mov_b32 v59, 0xffff")
        a(f"v_cmp_eq_u32 vcc, 0, v{n}"); a(f"v_cndmask_b32 v{N0}, 0, v59, vcc")
        a(f"v_cmp_eq_u32 vcc, 1, v{n}"); a(f"v_cndmask_b32 v{N1}, 0, v59, vcc")
        for r in range(4): a(f"v_mov_b32 v{Do+r}, 0")
        order = [(b, s_) for b in range(16) for s_ in range(2)]
        LB = [16, 28]
        def build(kk):
            b, s_ = order[kk]; A = Ab + 4 * (kk % 2)
            a(f"v_and_b32_dpp v{A}, v{SB+b}, v{N0} row_newbcast:{8*s_} {DPPALL}")
            a(f"v_and_b32_dpp v{A+1}, v{SB+b}, v{N1} row_newbcast:{8*s_} {DPPALL}")
            a(f"v_and_b32_dpp v{A+2}, v{SB+b}, v{N0} row_newbcast:{8*s_+4} {DPPALL}")
            a(f"v_and_b32_dpp v{A+3}, v{SB+b}, v{N1} row_newbcast:{8*s_+4} {DPPALL}")
        def bop(kk):
            b, s_ = order[kk]
            if b < 10: return vr(VRES+16*b+8*s_, 8)
            if b < 14: return vr(LB[s_], 8)
            return vr(self.vtr_reg(b, 2*s_), 8)
        def ldsrd(b, s_):
            for hf in range(2):
                a(f"ds_read_b128 {vr(LB[s_]+4*hf,4)}, v15 offset:{((b-10)*4+2*s_+hf)*1024}")
        build(0); build(1)
        for kk in range(len(order)):
            b, s_ = order[kk]
            if (b, s_) == (8, 0):
                self.stamp(17)
                a("s_waitcnt vmcnt(0)")
                self.stamp(18)
                ldsrd(10, 0); ldsrd(10, 1)
            if 10 <= b < 14: a("s_waitcnt lgkmcnt(2)" if not (b == 13 and s_ == 1) else "s_waitcnt lgkmcnt(0)")
            A = Ab + 4 * (kk % 2)
            a(f"v_smfmac_f32_16x16x64_bf16 {vr(Do,4)}, {vr(A,4)}, {bop(kk)}, v{IDX}")
            if 10 <= b < 13: ldsrd(b + 1, s_)
            if kk + 2 < len(order): build(kk + 2)

    def opart(self):
        a = self.a
        G, ML = 16, 20
        a(f"v_lshrrev_b32 v14, 7, v{vL16}"); a(f"v_lshlrev_b32 v15, 10, v14")
        a(f"v_and_b32 v14, 0x70, v{vL16}"); a(f"v_add_u32 v14, v15, v14")
        a(f"s_lshl_b32 s{sTmp[0]}, s{sH}, 13"); a(f"s_add_u32 s{sTmp[0]}, s{sTmp[0]}, {O_ROW}")
        a(f"s_lshl_b32 s{sTmp[1]}, s{sW}, 7"); a(f"s_add_u32 s{sTmp[1]}, s{sTmp[1]}, s{sTmp[0]}")
        N0, N1, IDX = 60, 61, 62
        if self.opt1:
            a(f"v_lshrrev_b32 v59, 8, v{vL16}"); a(f"v_and_b32 v58, 1, v59"); a(f"v_lshrrev_b32 v59, 1, v59"); a(f"v_lshl_add_u32 v59, v58, 2, v59")
            a(f"v_mul_u32_u24 v59, 160, v59")
            self.smf_consts(N0, N1, IDX, 57)
        else:
            a(f"v_lshrrev_b32 v59, 8, v{vL16}"); a(f"v_mul_u32_u24 v59, 160, v59")
        a(f"v_and_b32 v58, 0xf0, v{vL16}"); a(f"v_add_u32 v59, v59, v58")
        a(f"s_mul_i32 s{sTmp[2]}, s{sW}, {WOSTR}"); a(f"s_add_u32 s{sTmp[2]}, s{sTmp[2]}, {L_R0}"); a(f"v_add_u32 v59, s{sTmp[2]}, v59")
        def coladdr():
            t = 63 if self.opt1 else 14
            u = 58 if self.opt1 else 15
            a(f"v_lshrrev_b32 v{t}, 4, v{vL16}"); a(f"v_mul_u32_u24 v{u}, 13108, v{t}"); a(f"v_lshrrev_b32 v{u}, 16, v{u}")
            a(f"v_mul_u32_u24 v{u-1 if self.opt1 else 24}, 5, v{u}"); a(f"v_sub_u32 v{t}, v{t}, v{u-1 if self.opt1 else 24}"); a(f"v_lshlrev_b32 v{t}, 4, v{t}"); a(f"v_lshl_add_u32 v{t}, v{u}, 7, v{t}")
            a(f"s_lshl_b32 s{sTmp[4]}, s{sJ}, 5"); a(f"s_add_u32 s{sTmp[4]}, s{sTmp[4]}, s{sH}"); a(f"s_lshl_b32 s{sTmp[4]}, s{sTmp[4]}, 9")
            a(f"s_add_u32 s{sTmp[4]}, s{sTmp[4]}, s{sCol}")
            return t
        if self.opt1: tcol = coladdr()
        def iss():
            a(f"buffer_load_dwordx4 {vr(ML,4)}, v15, {W}, s{sTmp[0]} offen offset:512 sc1")
            a(f"buffer_load_dwordx4 {vr(G,4)}, v14, {W}, s{sTmp[1]} offen sc1")
        self.poll(iss, [ML, G], site='row')
        self.stamp(8)
        self.tu()
        self.burst('O0')
        WB = 24
        for i in range(8):
            off = ((i >> 1) * 8 + (i & 1) * 2) * 160 if self.opt1 else i * 640
            a(f"ds_read_b128 {vr(WB+4*i,4)}, v59 offset:{off}")
        if self.pfnew and not (self.opt1 and self.latepf): self.next_w()
        self.combine8(G, ML, 56)
        Xp = 14
        a(f"v_cvt_pk_bf16_f32 v{Xp}, v{G}, v{G}")
        D, Ab = 56, 16
        a("s_waitcnt lgkmcnt(0)")
        if self.opt1:
            self.pv_gemv_smf(Xp, 4, lambda i: vr(WB+8*i, 8), D, Ab, N0, N1, IDX)
        else:
            self.pv_gemv(Xp, 8, lambda i: vr(WB+4*i, 4), D, Ab)
        self.red_write(D)
        if self.opt1:
            if self.pfnew and self.latepf: self.next_w()
        else:
            tcol = coladdr()
        self.tu()
        a("s_waitcnt lgkmcnt(0)"); a("s_barrier")
        lf = a.newlabel("ofin")
        a(f"s_cmp_lg_u32 s{sW}, 0"); a(f"s_cbranch_scc1 {lf}")
        self.red_final_read(G)
        a("s_waitcnt lgkmcnt(0)")
        self.sum4(G); self.tag([G, G+1, G+2, G+3])
        self.exec_set(0xfffff, 0)
        a(f"buffer_store_dwordx4 {vr(G,4)}, v{tcol}, {W}, s{sTmp[4]} offen sc1")
        self.exec_all()
        a.label(lf)
        self.stamp(9)
        if not self.pfnew: self.next_w()
        if self.skipfin:
            lk = a.newlabel("keep")
            a(f"s_cmp_lg_u32 s{sL}, {(self.stop or 4) - 1}"); a(f"s_cbranch_scc1 {lk}")
            a(f"s_cmp_lg_u32 s{sH}, 0"); a("s_cbranch_scc1 L_fin2")
            a.label(lk)
        if self.vsplit and not self.woqk:
            lb = a.newlabel("nowo")
            a(f"s_bitcmp1_b32 s{sL}, 0"); a(f"s_cbranch_scc1 {lb}")
            self.load_wo(pWoB)
            a.label(lb)
        a(f"v_lshrrev_b32 v14, 7, v{vL16}"); a(f"v_lshlrev_b32 v14, 9, v14")
        a(f"v_and_b32 v15, 0x70, v{vL16}"); a(f"v_add_u32 v14, v14, v15")
        a(f"s_lshl_b32 s{sTmp[0]}, s{sJ}, 14"); a(f"s_lshl_b32 s{sTmp[1]}, s{sW}, 7"); a(f"s_add_u32 s{sTmp[0]}, s{sTmp[0]}, s{sTmp[1]}")
        a(f"s_add_u32 s{sTmp[0]}, s{sTmp[0]}, s{sCol}")
        for i in range(1, 4): a(f"s_add_u32 s{sTmp[i]}, s{sTmp[0]}, {i*4096}")
        if self.opt1: self.prep_q()
        def issc():
            for i in range(4):
                a(f"buffer_load_dwordx4 {vr(G+4*i,4)}, v14, {W}, s{sTmp[i]} offen sc1")
        self.poll(issc, [G, G+4, G+8, G+12], execmask=(0x1f1f1f1f, 0x1f1f1f1f), site='col')
        self.stampval(28, sSpin); self.stampval(29, sPos)
        self.stamp(10)
        self.tu()
        self.burst('Q0')
        self.sum4(G)
        for r in range(4): a(f"v_add_f32_dpp v{G+r}, v{G+r}, v{G+r} row_ror:8 {DPPALL}")
        self.treduce([G, G+1, G+2, G+3])
        a(f"v_add_f32 v{G}, v{G}, v{vX}")
        a(f"v_cndmask_b32 v{vX}, 0, v{G}, s[{sM5}:{sM5+1}]")

    def second_w(self, lb=None):
        a = self.a
        lb = lb or a.newlabel("nouk")
        a(f"s_bitcmp1_b32 s{sL}, 0"); a(f"s_cbranch_scc1 {lb}")
        self.load_wuk()
        if self.vsplit:
            lc = a.newlabel("vtj")
            a(f"s_branch {lc}")
            a.label(lb)
            for k in range(4): self.vtr_one(k)
            a.label(lc)
        else:
            a.label(lb)

    def next_w(self):
        a = self.a
        lnp = a.newlabel("nopf"); lb = a.newlabel("nouk")
        a(f"s_cmp_eq_u32 s{sL}, 3"); a(f"s_cbranch_scc1 {lnp}")
        a(f"s_add_u32 s{sL}, s{sL}, 1")
        self.load_wq()
        if not self.split2: self.second_w(lb)
        a(f"s_sub_u32 s{sL}, s{sL}, 1")
        a.label(lnp)

    def epilogue(self):
        a = self.a
        le = a.newlabel("fin")
        a(f"s_cmp_lg_u32 s{sH}, 0"); a(f"s_cbranch_scc1 {le}")
        self.srd(SRD_B, pOut, 1280)
        a(f"v_lshrrev_b32 v14, 4, v{vL16}"); a(f"v_and_b32 v15, 15, v14"); a(f"v_lshrrev_b32 v14, 4, v14")
        a(f"v_lshl_add_u32 v14, v15, 2, v14")
        a(f"s_mul_i32 s{sTmp[0]}, s{sJ}, 80"); a(f"s_mul_i32 s{sTmp[1]}, s{sW}, 20"); a(f"s_add_u32 s{sTmp[0]}, s{sTmp[0]}, s{sTmp[1]}")
        a(f"v_add_u32 v14, s{sTmp[0]}, v14"); a(f"v_lshlrev_b32 v14, 1, v14")
        a(f"v_cvt_pk_bf16_f32 v15, v{vX}, v{vX}")
        a(f"s_mov_b64 exec, s[{sM5}:{sM5+1}]")
        a(f"buffer_store_short v15, v14, s[{SRD_B}:{SRD_B+3}], 0 offen")
        self.exec_all()
        a(f"s_cmp_lg_u32 s2, 0"); a(f"s_cbranch_scc1 {le}")
        a(f"s_cmp_lg_u32 s{sW}, 0"); a(f"s_cbranch_scc1 {le}")
        a(f"v_mov_b32 v14, 0")
        a("s_mov_b64 exec, 1")
        a(f"buffer_store_dword v{vT}, v14, {W}, 0 offen sc1")
        self.exec_all()
        a.label(le)
        a.label("L_fin2")
        l2 = a.newlabel("noerr")
        a(f"s_cmp_eq_u32 s{sErr}, 0"); a(f"s_cbranch_scc1 {l2}")
        self.srd(SRD_B, sDbg, 256)
        a(f"v_mov_b32 v14, 0"); a(f"v_mov_b32 v15, 0xdead")
        a("s_mov_b64 exec, 1")
        a(f"buffer_store_dword v15, v14, s[{SRD_B}:{SRD_B+3}], 0 offen")
        self.exec_all()
        a.label(l2)

    def build(self):
        a = self.a
        self.prologue()
        a.label("L_layer")
        self.qpart()
        a(f"s_bitcmp1_b32 s{sL}, 0"); a(f"s_cbranch_scc1 L_bmid")
        self.amiddle()
        a(f"s_branch L_opart")
        a.label("L_bmid")
        self.bmiddle()
        a.label("L_opart")
        self.opart()
        self.stamp(11)
        for L_ in range(4): self.dbgstamp(f"end{L_}", L_)
        a(f"s_add_u32 s{sL}, s{sL}, 1"); a(f"s_xor_b32 s{sCol}, s{sCol}, 0x20000")
        nl = self.stop if self.stop else 4
        a(f"s_cmp_ge_u32 s{sL}, {nl}"); a("s_cbranch_scc1 L_done")
        self.next_tag()
        a("s_branch L_layer")
        a.label("L_done")
        self.epilogue()
        if self.stamps:
            a(f"s_mov_b32 s{sL}, 3")
            self.stamp(13)
        a("s_waitcnt vmcnt(0)")
        a.label("L_end")
        a("s_endpgm")
        self.dw_sub()
        self.stream()
        a.label("L_codeend")
        return fix(a.lines)

HEADER = open("interleave_layers__compressed_kv_cla__mha_block_cached__decode.s.ref").read().split("; Override launch")[0]

def make(path, **kw):
    body = "\n".join(Gen(**kw).build())
    src = f"""{HEADER}; @launch grid=(256,1,1) block=(256,1,1) lds={LDS_BYTES}
.amdgcn_target "amdgcn-amd-amdhsa--gfx950"
.text
.globl {KNAME}
.p2align 8
.type {KNAME},@function
{KNAME}:
{body}
.section .rodata,"a"
.p2align 6
.amdhsa_kernel {KNAME}
  .amdhsa_next_free_vgpr 512
  .amdhsa_next_free_sgpr 102
  .amdhsa_accum_offset 256
  .amdhsa_group_segment_fixed_size 0
  .amdhsa_kernarg_size 112
  .amdhsa_user_sgpr_count 2
  .amdhsa_user_sgpr_kernarg_segment_ptr 1
  .amdhsa_system_sgpr_workgroup_id_x 1
  .amdhsa_float_denorm_mode_32 3
.end_amdhsa_kernel
"""
    open(path, "w").write(src)

if __name__ == "__main__":
    import argparse
    ap = argparse.ArgumentParser()
    ap.add_argument("-o", default="k.s"); ap.add_argument("--opts", default="")
    x = ap.parse_args()
    kw = {}
    for o in filter(None, x.opts.split(";")):
        k_, v_ = o.split("="); kw[k_] = eval(v_)
    make(x.o, **kw)
```

```python
import sys, struct
from hazard import fix

KNAME = "interleave_layers__compressed_kv_cla__mha_block_cached__decode_kernel"

class Asm:
    def __init__(self): self.lines = []; self.n = 0
    def __call__(self, s):
        for l in s.split("\n"):
            l = l.strip()
            if l: self.lines.append(l)
    def label(self, name): self.lines.append(name + ":")
    def newlabel(self, base="L"):
        self.n += 1; return f"{base}_{self.n}"

def vr(b, n=1): return f"v{b}" if n == 1 else f"v[{b}:{b+n-1}]"
def ar(b, n=1): return f"a{b}" if n == 1 else f"a[{b}:{b+n-1}]"
DPPALL = "row_mask:0xf bank_mask:0xf"
def f32hex(x): return "0x%08x" % struct.unpack("<I", struct.pack("<f", x))[0]

O_XCC  = 0x001000
O_STAMP = 0x080000
O_QP   = 0x100000
O_ROW  = 0x180000
O_COL  = 0x1C0000
O_QABS = 0x200000
O_ML1  = 0x210000
O_C2   = 0x240000
O_ML2  = 0x2C0000
O_C1   = 0x300000

L_VL  = 0
L_CKV = 65536
L_R0  = 131072
WOSTR = 5184
L_ST  = 151808
L_RED = 156160
RSTR  = 1056
L_U   = 160384
LDS_BYTES = 163840

sH, sJ, sW, sL, sAct = 3, 4, 5, 6, 7
SRD_WS, SRD_K, SRD_V, SRD_A, SRD_B = 8, 12, 16, 20, 24
sSPC, sRET = 28, 30
sT = [32, 33, 34, 35]
sSel = [36, 37, 38, 39]
pWqA, pWqB, pWuk, pWuv, pWoA, pWoB, pCkv, pOut, pX = 40, 42, 44, 46, 48, 50, 52, 54, 56
sCol = 58
sGA, sS = 59, 60
sSO = 61
sSpin = 62
sPos = 63
sFF = 64
sTmp = list(range(65, 70))
sMask = [76, 78, 80, 82]
sM5 = 84
sDbg = 86
sErr = 88
sLocal = 89
sA, sB_ = 90, 91
sTs = 92
sXG, sI, sSc, sXcc = 98, 99, 100, 101
sTf = 97
sDW, sRET2, sYoung, sVm, sVm2, sDl = 70, 72, 74, 75, 94, 95
sBud = 57
sC1 = 56
sCap = 0

vL16, vM, vT, vX, vWoff, vKoff, vVoff, vRedW = 0, [1, 2, 3, 4], 5, 6, 7, 8, 9, 10
vT0 = 11
vCk = 11
vWo = 13
WQ, WUK, WUV, VTR, VRES = 76, 60, 80, 64, 96
AT = 44

SC = (128 ** -0.5) * 1.4426950408889634
SPIN_MAX = 1 << 16
W = f"s[{SRD_WS}:{SRD_WS+3}]"

class Gen:
    def __init__(self, kblk=8, stream_mode="co", stop_after=None, local=True, stamps="", pol="nt", wpol="", cpol="", codepf=True,
                 qkcalls=(4, 10), sent=True, nopf=False, once=True, xcalls=(), dlim=6, keep=6, addn=True, pretouch=True, mlsent=True, slp=0, sent1=False, pfnew=True, mltail=True, dsite=None, pre=None, rsl=None, dq=None, dbg=None, bud=None, skipfin=True, vsplit=True, woqk=True, split2=True, c1touch=True, c1sc1=False, c1touch2=None, smf=True, cap=None, pre1=None, burst=None, c1bf=True, opt1=True, latepf=False, tus=0, tusl=0, ack=None, ack1=None, ackL=None, vtrpol=None, opt2=True):
        self.opt2 = opt2
        self.ackL = ackL or {}; self.vtrpol = vtrpol
        self.ack1 = ack1 or ()
        self.ack = ack or ()
        self.tus = tus; self.tusl = tusl
        self.latepf = latepf
        self.opt1 = opt1
        self.c1bf = c1bf
        self.burstn = burst or {}
        self.pre1 = pre1
        self.cap = cap
        self.smf = smf
        self.c1touch = c1touch; self.c1sc1 = c1sc1; self.c1touch2 = c1touch2
        self.split2 = split2
        self.woqk = woqk
        self.skipfin = skipfin; self.vsplit = vsplit
        self.bud = bud
        self.dbg = dbg
        self.pre = pre or {}; self.rsl = rsl or {}; self.dq = dq
        self.pfnew = pfnew; self.mltail = mltail; self.dsite = dsite or {}
        self.slp = slp; self.sent1 = sent1
        self.addn = addn; self.pretouch = pretouch; self.mlsent = mlsent
        self.once = once; self.xcalls = xcalls; self.dlim = dlim; self.keep = keep
        self.nopf = nopf
        self.a = Asm(); self.kblk = kblk; self.mode = stream_mode; self.stop = stop_after
        self.local = local; self.stamps = stamps; self.pol = pol; self.wpol = wpol; self.cpol = cpol; self.codepf = codepf
        self.qkcalls = qkcalls; self.sent = sent

    def capture(self, fn):
        saved = self.a.lines; self.a.lines = []
        fn()
        out = self.a.lines; self.a.lines = saved
        return out
    def emit(self, lines):
        self.a.lines.extend(lines)
    def srd(self, s, lo, nbytes):
        a = self.a
        a(f"s_mov_b32 s{s}, s{lo}"); a(f"s_mov_b32 s{s+1}, s{lo+1}")
        a(f"s_mov_b32 s{s+2}, {nbytes:#x}"); a(f"s_mov_b32 s{s+3}, 0x20000")
    def exec_all(self): self.a("s_mov_b64 exec, -1")
    def exec_set(self, lo, hi):
        self.a(f"s_mov_b32 exec_lo, {lo:#x}"); self.a(f"s_mov_b32 exec_hi, {hi:#x}")
    def tag(self, regs):
        for i, r in enumerate(regs):
            self.a(f"v_perm_b32 v{r}, v{r}, v{vT}, s{sSel[i%4]}")
    def stamp(self, idx):
        if not self.stamps: return
        if self.stamps == "light" and idx not in (12, 13, 5): return
        a = self.a
        lab = a.newlabel("st")
        a(f"s_cmp_lg_u32 s{sW}, 0"); a(f"s_cbranch_scc1 {lab}")
        a(f"s_memrealtime s[{sTs}:{sTs+1}]")
        a("s_waitcnt lgkmcnt(0)")
        a(f"s_lshl_b32 s96, s2, 2"); a(f"s_add_u32 s96, s96, s{sL}"); a(f"s_lshl_b32 s96, s96, 7")
        a(f"s_add_u32 s96, s96, {O_STAMP + idx*4}")
        a(f"v_mov_b32 v{vT0}, s{sTs}")
        a(f"s_mov_b64 s[{sTs}:{sTs+1}], exec"); a("s_mov_b64 exec, 1")
        a(f"buffer_store_dword v{vT0}, off, {W}, s96")
        a(f"s_mov_b64 exec, s[{sTs}:{sTs+1}]")
        a.label(lab)
    def dbgstamp(self, k, cond_layer=None):
        if not self.dbg or k not in self.dbg: return
        a = self.a
        k = self.dbg.index(k)
        lab = a.newlabel("db")
        a(f"s_cmp_lg_u32 s{sW}, 0"); a(f"s_cbranch_scc1 {lab}")
        a(f"s_cmp_ge_u32 s2, 8"); a(f"s_cbranch_scc1 {lab}")
        if cond_layer is not None:
            a(f"s_cmp_lg_u32 s{sL}, {cond_layer}"); a(f"s_cbranch_scc1 {lab}")
        a(f"s_memrealtime s[{sTs}:{sTs+1}]")
        a("s_waitcnt lgkmcnt(0)")
        a(f"s_mov_b32 s{SRD_A}, s{sDbg}"); a(f"s_mov_b32 s{SRD_A+1}, s{sDbg+1}"); a(f"s_mov_b32 s{SRD_A+2}, 256"); a(f"s_mov_b32 s{SRD_A+3}, 0x20000")
        a(f"s_lshl_b32 s96, s2, 3"); a(f"s_add_u32 s96, s96, {4*k}")
        a(f"v_mov_b32 v{vT0}, s{sTs}")
        a(f"s_mov_b64 s[{sTs}:{sTs+1}], exec"); a("s_mov_b64 exec, 1")
        a(f"buffer_store_dword v{vT0}, off, s[{SRD_A}:{SRD_A+3}], s96")
        a(f"s_mov_b64 exec, s[{sTs}:{sTs+1}]")
        a.label(lab)
    def stampval(self, idx, sreg):
        if self.stamps != "full": return
        a = self.a
        lab = a.newlabel("sv")
        a(f"s_cmp_lg_u32 s{sW}, 0"); a(f"s_cbranch_scc1 {lab}")
        a(f"s_lshl_b32 s96, s2, 2"); a(f"s_add_u32 s96, s96, s{sL}"); a(f"s_lshl_b32 s96, s96, 7")
        a(f"s_add_u32 s96, s96, {O_STAMP + idx*4}")
        a(f"v_mov_b32 v{vT0}, s{sreg}")
        a(f"s_mov_b64 s[{sTs}:{sTs+1}], exec"); a("s_mov_b64 exec, 1")
        a(f"buffer_store_dword v{vT0}, off, {W}, s96")
        a(f"s_mov_b64 exec, s[{sTs}:{sTs+1}]")
        a.label(lab)
    def stream_call(self):
        self.a(f"s_swappc_b64 s[{sRET}:{sRET+1}], s[{sSPC}:{sSPC+1}]")
    def maybe_stream(self):
        a = self.a
        lab = a.newlabel("ns")
        a(f"s_cmp_eq_u32 s{sAct}, 0"); a(f"s_cbranch_scc1 {lab}")
        self.stream_call()
        a.label(lab)
    def read_vm(self):
        a = self.a
        a(f"s_getreg_b32 s{sVm}, hwreg(HW_REG_IB_STS)")
        a(f"s_bfe_u32 s{sVm2}, s{sVm}, 0x20016"); a(f"s_and_b32 s{sVm}, s{sVm}, 15")
        a(f"s_lshl4_add_u32 s{sVm}, s{sVm2}, s{sVm}")
    def dw_sub(self):
        a = self.a
        a.label("L_dw")
        self.read_vm()
        a(f"s_cmp_le_u32 s{sVm}, s{sYoung}"); a("s_cbranch_scc1 L_dwret")
        a(f"s_cmp_ge_u32 s{sVm}, s{sDl}"); a("s_cbranch_scc1 L_dw")
        a(f"s_cmp_eq_u32 s{sAct}, 0"); a("s_cbranch_scc1 L_dw")
        if self.cap is not None:
            a(f"s_cmp_ge_u32 s{sPos}, s{sCap}"); a("s_cbranch_scc1 L_dw")
        if self.bud is not None:
            a(f"s_cmp_le_i32 s{sBud}, 0"); a("s_cbranch_scc1 L_dw")
            a(f"s_sub_u32 s{sBud}, s{sBud}, {self.kblk}")
        self.stream_call()
        a(f"s_add_u32 s{sYoung}, s{sYoung}, {self.kblk}")
        a("s_branch L_dw")
        a.label("L_dwret")
        a(f"s_setpc_b64 s[{sRET2}:{sRET2+1}]")
    def dwait(self, young, n=0, site=None):
        dl = self.dsite.get(site, self.dlim)
        a = self.a
        if self.mode != "co":
            a(f"s_waitcnt vmcnt({young})"); return
        ns = a.newlabel("dwn"); jn = a.newlabel("dwj")
        a(f"s_cmp_eq_u32 s{sAct}, 0"); a(f"s_cbranch_scc1 {ns}")
        a(f"s_mov_b32 s{sYoung}, {young}"); a(f"s_mov_b32 s{sDl}, {dl + n if dl else 0}")
        if self.cap is not None: a(f"s_mov_b32 s{sCap}, {self.cap.get(site, 999)}")
        a(f"s_swappc_b64 s[{sRET2}:{sRET2+1}], s[{sDW}:{sDW+1}]")
        a(f"s_branch {jn}")
        a.label(ns)
        a(f"s_waitcnt vmcnt({young})")
        a.label(jn)
    def tu(self):
        if self.tus: self.topup(self.tus, site='tu')
    def burst(self, site):
        n = self.burstn.get(site, 0)
        if self.mode != "co" or not n: return
        a = self.a
        lab = a.newlabel("bu")
        for i in range(n // self.kblk):
            a(f"s_cmp_eq_u32 s{sAct}, 0"); a(f"s_cbranch_scc1 {lab}")
            self.stream_call()
        a.label(lab)
    def topup(self, depth=None, site=None):
        if self.mode != "co": return
        depth = self.dlim if depth is None else depth
        capv = self.cap.get(site) if self.cap else None
        a = self.a
        lab = a.newlabel("tu")
        a(f"s_cmp_eq_u32 s{sAct}, 0"); a(f"s_cbranch_scc1 {lab}")
        self.read_vm()
        a(f"s_cmp_ge_u32 s{sVm}, {depth}"); a(f"s_cbranch_scc1 {lab}")
        if capv: a(f"s_cmp_ge_u32 s{sPos}, {capv}"); a(f"s_cbranch_scc1 {lab}")
        self.stream_call()
        a.label(lab)
    def drain(self, keep):
        a = self.a
        l0 = a.newlabel("drain"); l1 = a.newlabel("drained")
        a.label(l0)
        a(f"s_cmp_eq_u32 s{sAct}, 0"); a(f"s_cbranch_scc1 {l1}")
        self.stream_call()
        a(f"s_waitcnt vmcnt({keep})")
        a(f"s_branch {l0}")
        a.label(l1)

    def predelay(self, site):
        a = self.a
        if site in self.ack:
            if site in ('col', 'row', 'q0', 'q1', 'q2'):
                self.dwait(0, 0, site); a("s_barrier")
            else:
                self.dwait(0, 0, site)
            return
        p0 = self.pre.get(site, 0)
        if site in self.ack1:
            def ackw():
                self.dwait(0, 0, site)
                if site in ('col', 'row', 'q0', 'q1', 'q2'): a("s_barrier")
            if site in ('q0', 'q1'):
                ackw(); return
            if site == 'q2':
                if p0: a(f"s_sleep {p0}")
                return
            l0 = a.newlabel("pd"); l1 = a.newlabel("pd")
            a(f"s_cmp_ge_u32 s{sL}, {self.ackL.get(site, 2)}"); a(f"s_cbranch_scc1 {l0}")
            ackw()
            a(f"s_branch {l1}")
            a.label(l0)
            if p0: a(f"s_sleep {p0}")
            a.label(l1)
            return
        p1 = self.pre1.get(site, p0) if self.pre1 is not None else p0
        if p0 == p1:
            if p0: a(f"s_sleep {p0}")
            return
        l0 = a.newlabel("pd"); l1 = a.newlabel("pd")
        a(f"s_cmp_ge_u32 s{sL}, 2"); a(f"s_cbranch_scc1 {l0}")
        if p1 and self.tusl:
            n = max(1, p1 // self.tusl)
            for _ in range(n):
                self.tu(); a(f"s_sleep {self.tusl}")
        elif p1: a(f"s_sleep {p1}")
        a(f"s_branch {l1}")
        a.label(l0)
        if p0: a(f"s_sleep {p0}")
        a.label(l1)

    def poll(self, issue, regs, execmask=None, stream=True, site=None):
        a = self.a
        lp = a.newlabel("poll"); ns = a.newlabel("pns"); jn = a.newlabel("pj"); dn = a.newlabel("pdone")
        a(f"s_mov_b32 s{sSpin}, 0")
        if self.bud is not None: a(f"s_mov_b32 s{sBud}, {self.bud.get(site, self.bud.get('*', 8))}")
        self.predelay(site)
        if execmask: self.exec_set(*execmask)
        a.label(lp)
        issue()
        if execmask and self.mode == "co": self.exec_all()
        self.dwait(0, len(regs) if self.addn else 0, site)
        if execmask and self.mode == "co": self.exec_set(*execmask)
        a.label(jn)
        acc, acc2 = vT0, vT0 + 1
        dw = [g + i for g in regs for i in range(4)]
        for k, r in enumerate(dw): a(f"v_xor_b32 v{r}, s{sT[k % 4]}, v{r}")
        a(f"v_or3_b32 v{acc}, v{dw[0]}, v{dw[1]}, v{dw[2]}")
        if len(dw) == 4:
            a(f"v_or_b32 v{acc}, v{acc}, v{dw[3]}")
        else:
            a(f"v_or3_b32 v{acc2}, v{dw[3]}, v{dw[4]}, v{dw[5]}")
            k = 6; tog = 0
            while k < len(dw):
                tgt = acc if tog == 0 else acc2
                a(f"v_or3_b32 v{tgt}, v{tgt}, v{dw[k]}, v{dw[k+1]}"); k += 2
                tog ^= 1
            a(f"v_or_b32 v{acc}, v{acc}, v{acc2}")
        a(f"v_and_b32 v{acc}, s{sFF}, v{acc}")
        a(f"v_cmp_ne_u32 vcc, 0, v{acc}")
        a(f"s_cbranch_vccz {dn}")
        if self.rsl.get(site): a(f"s_sleep {self.rsl[site]}")
        if self.slp:
            lz = a.newlabel("nsl")
            a(f"s_cmp_eq_u32 s{sAct}, 0"); a(f"s_cbranch_scc1 {lz}")
            a(f"s_sleep {self.slp}")
            a.label(lz)
        a(f"s_add_u32 s{sSpin}, s{sSpin}, 1")
        a(f"s_cmp_lt_u32 s{sSpin}, {SPIN_MAX}")
        a(f"s_cbranch_scc1 {lp}")
        a(f"s_mov_b32 s{sErr}, 1")
        a.label(dn)
        if execmask: self.exec_all()

    def dpp_steps(self, regs, op, steps):
        for d in steps:
            for r in regs:
                if d == "b15": self.a(f"{op}_dpp v{r}, v{r}, v{r} row_bcast:15 row_mask:0xa bank_mask:0xf")
                elif d == "b31": self.a(f"{op}_dpp v{r}, v{r}, v{r} row_bcast:31 row_mask:0xc bank_mask:0xf")
                else: self.a(f"{op}_dpp v{r}, v{r}, v{r} {d} {DPPALL}")
    X1, X2, HM, RM = "quad_perm:[1,0,3,2]", "quad_perm:[2,3,0,1]", "row_half_mirror", "row_mirror"
    def reduce63(self, regs, op):
        self.dpp_steps(regs, op, [self.X1, self.X2, self.HM, self.RM, "b15", "b31"])

    def treduce(self, r):
        a = self.a
        a(f"v_permlane32_swap_b32 v{r[0]}, v{r[2]}")
        a(f"v_permlane32_swap_b32 v{r[1]}, v{r[3]}")
        a(f"v_add_f32 v{r[0]}, v{r[0]}, v{r[2]}")
        a(f"v_add_f32 v{r[1]}, v{r[1]}, v{r[3]}")
        a(f"v_permlane16_swap_b32 v{r[0]}, v{r[1]}")
        a(f"v_add_f32 v{r[0]}, v{r[0]}, v{r[1]}")

    def pv_gemv(self, Xp, nload, bop, D, Abuf):
        a = self.a
        def build(i):
            A = Abuf + 4 * (i % 2)
            for r in range(4):
                a(f"v_and_b32_dpp v{A+r}, v{Xp}, v{vM[r]} row_newbcast:{i} {DPPALL}")
        build(0)
        if nload > 1: build(1)
        for i in range(nload):
            A = Abuf + 4 * (i % 2)
            c = "0" if i == 0 else vr(D, 4)
            a(f"v_mfma_f32_16x16x32_bf16 {vr(D,4)}, {vr(A,4)}, {bop(i)}, {c}")
            if i + 2 < nload: build(i + 2)

    def smf_consts(self, N0, N1, IDX, t):
        a = self.a
        a(f"v_bfe_u32 v{t}, v{vL16}, 4, 4")
        a(f"v_and_b32 v{IDX}, 3, v{t}"); a(f"v_mul_u32_u24 v{IDX}, 0x1111, v{IDX}")
        a(f"v_lshrrev_b32 v{t}, 2, v{t}")
        a(f"v_cmp_eq_u32 vcc, 0, v{t}"); a(f"v_mov_b32 v{N1}, 0xffff"); a(f"v_cndmask_b32 v{N0}, 0, v{N1}, vcc")
        a(f"v_cmp_eq_u32 vcc, 1, v{t}"); a(f"v_cndmask_b32 v{N1}, 0, v{N1}, vcc")
    def pv_gemv_smf(self, Xp, npair, bop, D, Abuf, N0, N1, IDX):
        a = self.a
        def build(i):
            A = Abuf + 4 * (i % 2)
            a(f"v_and_b32_dpp v{A}, v{Xp}, v{N0} row_newbcast:{2*i} {DPPALL}")
            a(f"v_and_b32_dpp v{A+1}, v{Xp}, v{N1} row_newbcast:{2*i} {DPPALL}")
            a(f"v_and_b32_dpp v{A+2}, v{Xp}, v{N0} row_newbcast:{2*i+1} {DPPALL}")
            a(f"v_and_b32_dpp v{A+3}, v{Xp}, v{N1} row_newbcast:{2*i+1} {DPPALL}")
        for r in range(4): a(f"v_mov_b32 v{D+r}, 0")
        build(0)
        if npair > 1: build(1)
        for i in range(npair):
            A = Abuf + 4 * (i % 2)
            a(f"v_smfmac_f32_16x16x64_bf16 {vr(D,4)}, {vr(A,4)}, {bop(i)}, v{IDX}")
            if i + 2 < npair: build(i + 2)

    def red_write(self, D, off=0):
        a = self.a
        a("s_mov_b32 exec_hi, 1")
        a(f"ds_write_b128 v{vRedW}, {vr(D,4)} offset:{off}")
        a("s_mov_b32 exec_hi, -1")
    def red_final_read(self, G, off=0):
        a = self.a
        a(f"v_add_u32 v{vT0}, {L_RED}, v{vL16}")
        for w in range(4):
            a(f"ds_read_b128 {vr(G+4*w,4)}, v{vT0} offset:{w*RSTR+off}")
    def sum4(self, G):
        a = self.a
        for r in range(4):
            a(f"v_add_f32 v{G+r}, v{G+r}, v{G+4+r}")
            a(f"v_add_f32 v{G+8+r}, v{G+8+r}, v{G+12+r}")
        for r in range(4):
            a(f"v_add_f32 v{G+r}, v{G+r}, v{G+8+r}")

    def local_stores(self, items):
        a = self.a
        def emit(flag):
            for (data, vaddr, soff, pre) in items:
                if pre: pre()
                a(f"buffer_store_dwordx4 {vr(data,4)}, v{vaddr}, {W}, s{soff} offen {flag}")
        if self.local:
            l0 = a.newlabel("ls"); l1 = a.newlabel("ls")
            a(f"s_cmp_eq_u32 s{sLocal}, 0"); a(f"s_cbranch_scc1 {l0}")
            emit("")
            a(f"s_branch {l1}")
            a.label(l0)
            emit("sc1")
            a.label(l1)
        else:
            emit("sc1")

    def next_tag(self):
        a = self.a
        a(f"s_mul_i32 s{sTf}, s{sTf}, 0x9E3779B1"); a(f"s_add_u32 s{sTf}, s{sTf}, 0x7F4A7C15")
        a(f"v_mov_b32 v{vT}, s{sTf}")
        a(f"s_and_b32 s{sT[0]}, s{sTf}, 0xff"); a(f"s_bfe_u32 s{sT[1]}, s{sTf}, 0x80008")
        a(f"s_bfe_u32 s{sT[2]}, s{sTf}, 0x80010"); a(f"s_lshr_b32 s{sT[3]}, s{sTf}, 24")

    def pf_guard(self, fn, lmin=2):
        if not self.nopf: return fn()
        a = self.a; l = a.newlabel("npf")
        a(f"s_cmp_ge_u32 s{sL}, {lmin}"); a(f"s_cbranch_scc1 {l}")
        fn()
        a.label(l)
    def load_wq(self):
        self.pf_guard(self.load_wq_)
    def load_wq_(self):
        a = self.a
        l0 = a.newlabel("wq"); l1 = a.newlabel("wq")
        a(f"s_bitcmp1_b32 s{sL}, 0"); a(f"s_cbranch_scc1 {l0}")
        a(f"s_mov_b32 s{SRD_A}, s{pWqA}"); a(f"s_mov_b32 s{SRD_A+1}, s{pWqA+1}"); a(f"s_branch {l1}")
        a.label(l0)
        a(f"s_mov_b32 s{SRD_A}, s{pWqB}"); a(f"s_mov_b32 s{SRD_A+1}, s{pWqB+1}")
        a.label(l1)
        a(f"s_mov_b32 s{SRD_A+2}, {19*8192+256}"); a(f"s_mov_b32 s{SRD_A+3}, 0x20000")
        for i in range(5):
            a(f"s_mov_b32 s{sTmp[0]}, {i*32768}")
            a(f"buffer_load_dwordx4 {vr(WQ+4*i,4)}, v{vWoff}, s[{SRD_A}:{SRD_A+3}], s{sTmp[0]} offen {self.wpol}")
    def load_wuk(self):
        self.pf_guard(self.load_wuk_)
    def load_wuk_(self):
        a = self.a
        self.srd(SRD_A, pWuk, 15*8192+256)
        t = vT0
        a(f"v_lshrrev_b32 v{t}, 8, v{vKoff}"); a(f"v_lshlrev_b32 v{t}, 13, v{t}")
        a(f"v_and_b32 v{t+1}, s{sFF}, v{vKoff}"); a(f"v_or_b32 v{t}, v{t}, v{t+1}")
        for i in range(4):
            a(f"s_mov_b32 s{sTmp[0]}, {i*32768}")
            a(f"buffer_load_dwordx4 {vr(WUK+4*i,4)}, v{t}, s[{SRD_A}:{SRD_A+3}], s{sTmp[0]} offen {self.wpol}")
    def load_wuv(self):
        self.pf_guard(self.load_wuv_)
    def load_wuv_(self):
        a = self.a
        self.srd(SRD_A, pWuv, 15*8192+256)
        for i in range(4):
            a(f"s_mov_b32 s{sTmp[0]}, {i*32768}")
            a(f"buffer_load_dwordx4 {vr(WUV+4*i,4)}, v{vWoff}, s[{SRD_A}:{SRD_A+3}], s{sTmp[0]} offen {self.wpol}")
    def wo_setup(self, p):
        a = self.a
        self.srd(SRD_A, p, 31*1280+160)
        a(f"s_mul_i32 s{sTmp[1]}, s{sW}, {WOSTR}"); a(f"s_add_u32 s{sTmp[1]}, s{sTmp[1]}, {L_R0}")
    def wo_one(self, i):
        a = self.a
        r0 = 6 * i if i < 5 else 26
        a(f"s_add_u32 m0, s{sTmp[1]}, {r0*160}")
        a(f"s_mov_b32 s{sTmp[0]}, {r0*1280}")
        a(f"buffer_load_dwordx4 v{vWo}, s[{SRD_A}:{SRD_A+3}], s{sTmp[0]} offen {self.wpol} lds")
    def load_wo(self, p):
        def f():
            self.wo_setup(p)
            for i in range(6): self.wo_one(i)
        self.pf_guard(f)
    def ckv_one(self, kk):
        a = self.a
        f = (kk & 8) | ((kk & 3) << 1) | ((kk >> 2) & 1)
        a(f"v_xor_b32 v{vCk}, {f*16}, v{vL16}")
        a(f"s_lshl_b32 s{sSO}, s{sW}, 14"); a(f"s_add_u32 m0, s{sSO}, {L_CKV + kk*1024}")
        a(f"s_mov_b32 s{sSO}, {kk*1024}")
        a(f"buffer_load_dwordx4 v{vCk}, s[{SRD_B}:{SRD_B+3}], s{sSO} offen {self.cpol} lds")
    def voff(self, u):
        return (u & 1) * 2048 + (u >> 1) * 512 if self.smf else u * 256
    def vtr_reg(self, b, u):
        if self.vsplit: return (60 if b == 14 else 80) + 4 * u
        return VTR + (b - 14) * 16 + 4 * u
    def vtr_one(self, k):
        a = self.a
        b, u = 14 + (k >> 2), k & 3
        if u == 0: a(f"s_mov_b32 s{sTmp[2]}, {b*4096}")
        a(f"buffer_load_dwordx4 {vr(self.vtr_reg(b, u),4)}, v{vVoff}, s[{SRD_V}:{SRD_V+3}], s{sTmp[2]} offen offset:{self.voff(u)} {self.pol if self.vtrpol is None else self.vtrpol}")

    def prologue(self):
        a = self.a
        a("s_cmp_ge_u32 s2, 256"); a("s_cbranch_scc1 L_end")
        a("s_load_dwordx4 s[64:67], s[0:1], 0")
        a("s_load_dwordx4 s[68:71], s[0:1], 16")
        a("s_load_dwordx4 s[72:75], s[0:1], 32")
        a("s_load_dwordx4 s[76:79], s[0:1], 56")
        a("s_load_dwordx4 s[80:83], s[0:1], 72")
        a("s_load_dwordx4 s[84:87], s[0:1], 88")
        a("s_load_dwordx2 s[8:9], s[0:1], 104")
        a(f"v_lshrrev_b32 v20, 6, v0")
        a(f"v_and_b32 v21, 63, v0")
        a(f"v_readfirstlane_b32 s{sW}, v20")
        a(f"s_and_b32 s{sH}, s2, 31"); a(f"s_lshr_b32 s{sJ}, s2, 5")
        a(f"s_and_b32 s{sXG}, s2, 7"); a(f"s_lshr_b32 s{sI}, s2, 3")
        a(f"s_and_b32 s{sGA}, s{sI}, 1")
        a(f"s_lshr_b32 s{sS}, s{sI}, 1"); a(f"s_lshl_b32 s92, s{sXG}, 4"); a(f"s_add_u32 s{sS}, s{sS}, s92")
        a(f"v_lshlrev_b32 v{vL16}, 4, v21")
        if self.codepf:
            lc = a.newlabel("cpf")
            a(f"s_cmp_lg_u32 s{sW}, 3"); a(f"s_cbranch_scc1 {lc}")
            a("s_getpc_b64 s[20:21]")
            a.label("L_pcx")
            a("s_mov_b32 s22, L_codeend-L_pcx"); a("s_mov_b32 s23, 0x20000")
            a("v_lshlrev_b32 v22, 6, v21")
            self.ncode = 7
            for i in range(self.ncode):
                a(f"s_mov_b32 s92, {i*4096}")
                a(f"buffer_load_dword v23, v22, s[20:23], s92 offen")
            a.label(lc)
        a("v_and_b32 v22, 15, v21")
        a("v_lshrrev_b32 v23, 4, v21") if not self.codepf else a("v_lshrrev_b32 v19, 4, v21")
        g = 23 if not self.codepf else 19
        a(f"v_lshlrev_b32 v24, 4, v22")
        a(f"v_lshl_add_u32 v{vWoff}, v{g}, 13, v24")
        if self.smf:
            a(f"v_lshrrev_b32 v25, 1, v{g}"); a(f"v_and_b32 v26, 1, v{g}"); a(f"v_lshl_add_u32 v25, v25, 2, v26")
            a(f"v_lshl_add_u32 v{vVoff}, v25, 8, v24")
        else:
            a(f"v_lshl_add_u32 v{vVoff}, v{g}, 10, v24")
        a(f"v_and_b32 v25, 3, v22"); a(f"v_lshl_add_u32 v25, v{g}, 2, v25"); a("v_lshlrev_b32 v25, 4, v25")
        a("v_lshrrev_b32 v26, 2, v22"); a(f"v_lshl_add_u32 v{vKoff}, v26, 8, v25")
        a("v_and_b32 v25, 1, v22"); a("v_cmp_eq_u32 vcc, 1, v25")
        a("v_mov_b32 v26, 0xffff"); a("v_mov_b32 v27, 0xffff0000"); a("v_cndmask_b32 v26, v26, v27, vcc")
        a("v_lshrrev_b32 v25, 1, v22")
        for r in range(4):
            a(f"v_cmp_eq_u32 vcc, {r}, v25"); a(f"v_cndmask_b32 v{vM[r]}, 0, v26, vcc")
        a(f"v_lshl_add_u32 v25, v22, 1, v{g}"); a("v_lshlrev_b32 v25, 4, v25")
        a("v_cmp_gt_u32 vcc, 32, v21"); a("v_mov_b32 v26, 512"); a("v_cndmask_b32 v25, v26, v25, vcc")
        a(f"s_mul_i32 s92, s{sW}, {RSTR}"); a(f"s_add_u32 s92, s92, {L_RED}"); a(f"v_add_u32 v{vRedW}, s92, v25")
        a(f"v_mul_u32_u24 v25, 6554, v21"); a(f"v_lshrrev_b32 v25, 16, v25")
        a(f"v_mul_u32_u24 v26, 10, v25"); a(f"v_sub_u32 v26, v21, v26")
        a(f"v_mul_u32_u24 v25, 1280, v25"); a(f"v_lshl_add_u32 v{vWo}, v26, 4, v25")
        a("s_waitcnt lgkmcnt(0)")
        a(f"s_mov_b32 s{SRD_WS+2}, 0x10000000"); a(f"s_mov_b32 s{SRD_WS+3}, 0x20000")
        if self.stamps:
            a(f"s_mov_b32 s{sL}, 0")
            self.stamp(12)
        self.dbgstamp("entry")
        a("v_mov_b32 v28, 0")
        a(f"buffer_load_dword v{vT}, v28, {W}, 0 offen sc1")
        a(f"s_mov_b32 s{pX}, s64"); a(f"s_mov_b32 s{pX+1}, s65")
        self.srd(SRD_B, pX, 1280)
        a(f"s_mul_i32 s92, s{sJ}, 80"); a(f"s_mul_i32 s93, s{sW}, 20"); a("s_add_u32 s92, s92, s93")
        a(f"v_lshl_add_u32 v25, v22, 2, v{g}"); a("v_add_u32 v25, s92, v25"); a("v_lshlrev_b32 v29, 1, v25")
        a(f"s_mov_b32 s94, 0x001f001f"); a(f"s_mov_b32 s95, 0x001f001f")
        a(f"v_mov_b32 v{vX}, 0")
        a("s_mov_b64 exec, s[94:95]")
        a(f"buffer_load_ushort v{vX}, v29, s[{SRD_B}:{SRD_B+3}], 0 offen")
        self.exec_all()
        def addp(dst, src, terms):
            a(f"s_mov_b32 s92, 0")
            for (sreg, c) in terms:
                a(f"s_mul_i32 s93, s{sreg}, {c}"); a("s_add_u32 s92, s92, s93")
            a(f"s_add_u32 s{dst}, s{src}, s92"); a(f"s_addc_u32 s{dst+1}, s{src+1}, 0")
        addp(pWqA, 68, [(sJ, 80*8192), (sW, 20*8192), (sH, 256)])
        a(f"s_mov_b32 s{sL}, 0")
        self.load_wq()
        addp(pWuk, 70, [(sJ, 64*8192), (sW, 16*8192), (sH, 256)])
        a(f"s_mov_b32 s{sFF}, 0xff")
        self.load_wuk()
        addp(pCkv, 66, [(sS, 65536), (sW, 16384)])
        addp(pWqB, 80, [(sJ, 80*8192), (sW, 20*8192), (sH, 256)])
        addp(pWuv, 72, [(sJ, 64*8192), (sW, 16*8192), (sH, 256)])
        addp(pWoA, 74, [(sH, 163840), (sW, 32*1280), (sJ, 160)])
        addp(pWoB, 82, [(sH, 163840), (sW, 32*1280), (sJ, 160)])
        addp(SRD_K, 76, [(sH, 2097152), (sJ, 262144), (sW, 65536)])
        addp(SRD_V, 78, [(sH, 2097152), (sJ, 262144), (sW, 65536)])
        a(f"s_mov_b32 s{SRD_K+2}, 65536"); a(f"s_mov_b32 s{SRD_K+3}, 0x20000")
        a(f"s_mov_b32 s{SRD_V+2}, 65536"); a(f"s_mov_b32 s{SRD_V+3}, 0x20000")
        a(f"s_mov_b32 s{pOut}, s84"); a(f"s_mov_b32 s{pOut+1}, s85")
        self.srd(SRD_B, pCkv, 16384)
        if self.pretouch:
            a(f"s_lshl_b32 s92, s2, 13"); a(f"s_lshl_b32 s93, s{sW}, 11"); a("s_add_u32 s92, s92, s93"); a(f"s_add_u32 s92, s92, {O_QP}")
            a(f"buffer_load_dwordx4 v[48:51], v{vL16}, {W}, s92 offen")
            a(f"buffer_load_dwordx4 v[48:51], v{vL16}, {W}, s92 offen offset:1024")
        a(f"s_mov_b32 s{sErr}, 0"); a(f"s_mov_b32 s{sLocal}, 0")
        a(f"s_mov_b32 s{sM5}, 0x001f001f"); a(f"s_mov_b32 s{sM5+1}, 0x001f001f")
        for i in range(4): a(f"s_mov_b32 s{sSel[i]}, {0x07060500+i:#x}")
        for t in range(4):
            a(f"s_mov_b32 s{sMask[t]}, {(0x000f000f << (4*t)):#x}"); a(f"s_mov_b32 s{sMask[t]+1}, {(0x000f000f << (4*t)):#x}")
        a(f"s_lshl_b32 s92, s{sXG}, 5"); a(f"s_add_u32 s92, s92, s{sI}"); a(f"s_lshl_b32 s92, s92, 2"); a(f"s_add_u32 s92, s92, s{sW}")
        a(f"s_lshl_b32 s92, s92, {12 if self.c1bf else 13}"); a(f"s_add_u32 s{sC1}, s92, {O_C1}")
        a(f"s_getpc_b64 s[{sSPC}:{sSPC+1}]")
        a.label("L_pc0")
        a(f"s_add_u32 s{sSPC}, s{sSPC}, L_stream-L_pc0"); a(f"s_addc_u32 s{sSPC+1}, s{sSPC+1}, 0")
        a(f"s_mov_b32 s{sAct}, 1"); a(f"s_mov_b32 s{sPos}, 0")
        a(f"s_mov_b32 s{sCol}, {O_COL:#x}")
        a(f"s_getreg_b32 s{sXcc}, hwreg(HW_REG_XCC_ID)"); a(f"s_and_b32 s{sXcc}, s{sXcc}, 0xf"); a(f"s_add_u32 s{sXcc}, s{sXcc}, 1"); a(f"s_lshl_b32 s{sXcc}, s{sXcc}, 8")
        a(f"s_getpc_b64 s[{sDW}:{sDW+1}]")
        a.label("L_pc1")
        a(f"s_add_u32 s{sDW}, s{sDW}, L_dw-L_pc1"); a(f"s_addc_u32 s{sDW+1}, s{sDW+1}, 0")
        if self.bud is not None: a(f"s_mov_b32 s{sBud}, {self.bud.get('pro', self.bud.get('*', 8))}")
        self.dwait(6 if self.pretouch else 4, 0, 'pro')
        a(f"v_readfirstlane_b32 s{sTf}, v{vT}")
        self.next_tag()
        a(f"v_lshlrev_b32 v{vX}, 16, v{vX}")
        if self.local:
            lx = a.newlabel("xp")
            a(f"s_cmp_lg_u32 s{sW}, 0"); a(f"s_cbranch_scc1 {lx}")
            for r in range(4): a(f"v_mov_b32 v{16+r}, s{sXcc}")
            self.tag([16, 17, 18, 19])
            a(f"s_lshl_b32 s92, s{sXG}, 9"); a(f"s_lshl_b32 s93, s{sI}, 4"); a("s_add_u32 s92, s92, s93"); a(f"s_add_u32 s92, s92, {O_XCC}")
            a("v_mov_b32 v20, 0")
            a("s_mov_b64 exec, 1")
            a(f"buffer_store_dwordx4 v[16:19], v20, {W}, s92 offen sc1")
            self.exec_all()
            a.label(lx)
        if self.opt1: self.prep_q()
        if self.mode == "first":
            self.drain(16)

    @property
    def NT(self): return 2
    @property
    def NLOADS(self): return 136 + (self.NT if self.c1touch else 0)
    @property
    def KEND(self): return 80 + (self.NT if self.c1touch else 0)
    def first_block(self):
        r = self.NLOADS % self.kblk
        return r if r else self.kblk
    def stream(self):
        a = self.a
        loads = [("C", i) for i in range(16)] + ([("T", i) for i in range(self.NT)] if self.c1touch else []) + [("K", i) for i in range(64)]
        loads += [("V", b, u) for b in range(10) for u in range(4)]
        loads += [("L", b, u) for b in range(10, 14) for u in range(4)]
        k = self.kblk
        assert len(loads) == self.NLOADS and len(loads) % k == 0, "the dynamic wait counts kblk loads per block"
        a.label("L_stream")
        starts = [0] + list(range(self.first_block(), len(loads), k))
        for bn, bi in enumerate(starts):
            be = starts[bn+1] if bn + 1 < len(starts) else len(loads)
            last_so = None
            for ld in loads[bi:be]:
                if ld[0] == "C":
                    self.ckv_one(ld[1]); last_so = None
                elif ld[0] == "T":
                    i = ld[1]; last_so = None
                    a(f"v_lshlrev_b32 v{vCk}, 2, v{vL16}")
                    if self.c1bf:
                        a(f"s_add_u32 s{sSO}, s{sC1}, {i * 32}")
                    else:
                        a(f"s_add_u32 s{sSO}, s{sC1}, {i * 4096}")
                    a(f"buffer_load_dword v255, v{vCk}, {W}, s{sSO} offen")
                elif ld[0] == "K":
                    i = ld[1]; so = (i >> 2) * 4096
                    if so != last_so: a(f"s_mov_b32 s{sSO}, {so}"); last_so = so
                    a(f"buffer_load_dwordx4 {ar(4*i,4)}, v{vKoff}, s[{SRD_K}:{SRD_K+3}], s{sSO} offen offset:{(i&3)*1024} {self.pol}")
                elif ld[0] == "V":
                    _, b, u = ld; so = b * 4096
                    if so != last_so: a(f"s_mov_b32 s{sSO}, {so}"); last_so = so
                    a(f"buffer_load_dwordx4 {vr(VRES+16*b+4*u,4)}, v{vVoff}, s[{SRD_V}:{SRD_V+3}], s{sSO} offen offset:{self.voff(u)} {self.pol}")
                else:
                    _, b, u = ld
                    a(f"s_lshl_b32 s{sSO}, s{sW}, 14"); a(f"s_add_u32 m0, s{sSO}, {L_VL + ((b-10)*4+u)*1024}")
                    a(f"s_mov_b32 s{sSO}, {b*4096+self.voff(u)}"); last_so = None
                    a(f"buffer_load_dwordx4 v{vVoff}, s[{SRD_V}:{SRD_V+3}], s{sSO} offen {self.pol} lds")
            a(f"s_add_u32 s{sPos}, s{sPos}, {be-bi}")
            if be >= len(loads): a(f"s_mov_b32 s{sAct}, 0")
            a(f"s_swappc_b64 s[{sSPC}:{sSPC+1}], s[{sRET}:{sRET+1}]")
        a("s_endpgm")

    def prep_q(self):
        a = self.a
        t = 37
        a(f"v_lshrrev_b32 v{t}, 4, v{vL16}")
        a(f"v_and_b32 v38, 1, v{t}"); a(f"v_lshlrev_b32 v38, 4, v38")
        a(f"v_lshrrev_b32 v39, 1, v{t}"); a(f"v_add_u32 v38, v38, v39"); a(f"v_lshlrev_b32 v38, 4, v38")
        a(f"v_cmp_gt_u32 vcc, 32, v{t}"); a(f"v_mov_b32 v39, 512"); a(f"v_cndmask_b32 v{t}, v39, v38, vcc")
        a(f"s_lshl_b32 s{sTmp[4]}, s{sH}, 3"); a(f"s_add_u32 s{sTmp[4]}, s{sTmp[4]}, s{sJ}"); a(f"s_lshl_b32 s{sTmp[4]}, s{sTmp[4]}, 11")
        a(f"s_add_u32 s{sTmp[4]}, s{sTmp[4]}, {O_QP}")

    def qpart(self):
        a = self.a
        self.stamp(0)
        def second():
            if self.split2:
                l0 = a.newlabel("q2w")
                a(f"s_cmp_eq_u32 s{sL}, 0"); a(f"s_cbranch_scc1 {l0}")
                self.second_w()
                a.label(l0)
        if not (self.opt1 and self.latepf): second()
        Xp, S1, S2 = (14, 38, 39) if self.opt1 else (14, 15, 36)
        D, Du, Ab = 16, 20, 24
        a(f"v_cvt_pk_bf16_f32 v{Xp}, v{vX}, v{vX}")
        a(f"v_and_b32 v{S1}, 0xffff0000, v{Xp}")
        a(f"v_mul_f32 v{S2}, v{S1}, v{S1}")
        self.pv_gemv(Xp, 5, lambda i: vr(WQ+4*i, 4), D, Ab)
        self.reduce63([S1, S2], "v_add_f32")
        lu = a.newlabel("nou")
        if self.opt1:
            a("s_mov_b32 exec_hi, 0")
            a(f"ds_write_b128 v{vRedW}, {vr(D,4)}")
            a("s_mov_b32 exec_lo, 0"); a("s_mov_b32 exec_hi, 0x80000000")
            a(f"ds_write_b64 v{vRedW}, {vr(S1,2)}")
            self.exec_all()
        a(f"s_cmp_ge_u32 s{sL}, 2"); a(f"s_cbranch_scc1 {lu}")
        for r in range(4): a(f"v_and_b32 v{32+r}, 0x3f803f80, v{vM[r]}")
        for i in range(5):
            c = "0" if i == 0 else vr(Du, 4)
            a(f"v_mfma_f32_16x16x32_bf16 {vr(Du,4)}, {vr(32,4)}, {vr(WQ+4*i,4)}, {c}")
        self.red_write(Du, 528)
        a.label(lu)
        if self.opt1:
            t = 37
            if self.latepf: second()
        else:
            a(f"v_readlane_b32 s{sA}, v{S1}, 63"); a(f"v_readlane_b32 s{sB_}, v{S2}, 63")
            a(f"v_writelane_b32 v{D}, s{sA}, 32"); a(f"v_writelane_b32 v{D+1}, s{sB_}, 32")
            self.red_write(D)
            t = 14
            a(f"v_lshrrev_b32 v{t}, 4, v{vL16}")
            a(f"v_and_b32 v15, 1, v{t}"); a(f"v_lshlrev_b32 v15, 4, v15")
            a(f"v_lshrrev_b32 v36, 1, v{t}"); a(f"v_add_u32 v15, v15, v36"); a(f"v_lshlrev_b32 v15, 4, v15")
            a(f"v_cmp_gt_u32 vcc, 32, v{t}"); a(f"v_mov_b32 v36, 512"); a(f"v_cndmask_b32 v{t}, v36, v15, vcc")
            a(f"s_lshl_b32 s{sTmp[4]}, s{sH}, 3"); a(f"s_add_u32 s{sTmp[4]}, s{sTmp[4]}, s{sJ}"); a(f"s_lshl_b32 s{sTmp[4]}, s{sTmp[4]}, 11")
            a(f"s_add_u32 s{sTmp[4]}, s{sTmp[4]}, {O_QP}")
        self.tu()
        a("s_waitcnt lgkmcnt(0)"); a("s_barrier")
        lf = a.newlabel("qfin")
        a(f"s_cmp_lg_u32 s{sW}, 0"); a(f"s_cbranch_scc1 {lf}")
        G = 16
        self.red_final_read(G)
        a("s_waitcnt lgkmcnt(0)")
        self.sum4(G); self.tag([G, G+1, G+2, G+3])
        a("s_mov_b32 exec_hi, 1")
        self.local_stores([(G, t, sTmp[4], None)])
        a("s_mov_b32 exec_hi, -1")
        a(f"s_cmp_ge_u32 s{sL}, 2"); a(f"s_cbranch_scc1 {lf}")
        G2 = 40
        self.red_final_read(G2, 528)
        a(f"s_add_u32 s{sTmp[4]}, s{sTmp[4]}, 1024")
        a("s_waitcnt lgkmcnt(0)")
        self.sum4(G2); self.tag([G2, G2+1, G2+2, G2+3])
        a("s_mov_b32 exec_hi, 0")
        self.local_stores([(G2, t, sTmp[4], None)])
        a("s_mov_b32 exec_hi, -1")
        a.label(lf)
        self.stamp(1)
        ad, ad2, adu, adx = 14, 15, 56, 57
        Gq, Gs, Gu, Gx = 16, 32, 36, 52
        a(f"v_lshrrev_b32 v{ad}, 8, v{vKoff}"); a(f"v_lshlrev_b32 v{ad}, 11, v{ad}")
        a(f"v_and_b32 v{ad2}, s{sFF}, v{vKoff}"); a(f"v_or_b32 v{ad}, v{ad}, v{ad2}")
        a(f"v_lshlrev_b32 v{adu}, 1, v{ad2}")
        a(f"v_lshrrev_b32 v{ad2}, 4, v{vL16}"); a(f"v_and_b32 v{ad2}, 7, v{ad2}"); a(f"v_lshlrev_b32 v{ad2}, 11, v{ad2}")
        a(f"s_lshl_b32 s{sTmp[0]}, s{sH}, 14"); a(f"s_add_u32 s{sTmp[0]}, s{sTmp[0]}, {O_QP}")
        a(f"s_add_u32 s{sTmp[1]}, s{sTmp[0]}, 8192")
        def iss_q():
            for i in range(2):
                for hf in range(2):
                    a(f"buffer_load_dwordx4 {vr(Gq+8*i+4*hf,4)}, v{ad}, {W}, s{sTmp[i]} offen offset:{hf*256} sc1")
            a(f"buffer_load_dwordx4 {vr(Gs,4)}, v{ad2}, {W}, s{sTmp[0]} offen offset:512 sc1")
        def iss_u():
            for i in range(2):
                for hf in range(2):
                    a(f"buffer_load_dwordx4 {vr(Gu+8*i+4*hf,4)}, v{ad}, {W}, s{sTmp[i]} offen offset:{1024+hf*256} sc1")
        def iss_x():
            a(f"buffer_load_dwordx4 {vr(Gx,4)}, v{adx}, {W}, s{sTmp[3]} offen sc1")
        U = 36
        l_late = a.newlabel("qlate"); l_j = a.newlabel("qj")
        a(f"s_and_b32 s{sTmp[2]}, s{sL}, 1"); a(f"s_lshl_b32 s{sTmp[2]}, s{sTmp[2]}, 9"); a(f"s_add_u32 s{sTmp[2]}, s{sTmp[2]}, {L_U}")
        a(f"v_add_u32 v{adu}, s{sTmp[2]}, v{adu}")
        a(f"s_cmp_ge_u32 s{sL}, 2"); a(f"s_cbranch_scc1 {l_late}")
        base_regs = [Gq, Gq+4, Gq+8, Gq+12, Gs, Gu, Gu+4, Gu+8, Gu+12]
        if self.local:
            l_one = a.newlabel("qone"); l_u = a.newlabel("qu")
            a(f"s_cmp_eq_u32 s{sL}, 1"); a(f"s_cbranch_scc1 {l_one}")
            a(f"v_and_b32 v{adx}, 0x1f0, v{vL16}")
            a(f"s_lshl_b32 s{sTmp[3]}, s{sXG}, 9"); a(f"s_add_u32 s{sTmp[3]}, s{sTmp[3]}, {O_XCC}")
            self.poll(lambda: (iss_q(), iss_u(), iss_x()), base_regs + [Gx], site='q0')
            a(f"v_cmp_ne_u32 vcc, s{sXcc}, v{Gx}")
            a(f"s_cmp_eq_u64 vcc, 0"); a(f"s_cselect_b32 s{sLocal}, 1, 0")
            a(f"s_branch {l_u}")
            a.label(l_one)
            self.poll(lambda: (iss_q(), iss_u()), base_regs, site='q1')
            a.label(l_u)
        else:
            self.poll(lambda: (iss_q(), iss_u()), base_regs)
        for r in range(8): a(f"v_add_f32 v{Gu+r}, v{Gu+r}, v{Gu+8+r}")
        self.dpp_steps([Gu+r for r in range(8)], "v_add_f32", ["row_ror:4", "row_ror:8"])
        lw = a.newlabel("uw")
        a(f"s_cmp_lg_u32 s{sW}, 0"); a(f"s_cbranch_scc1 {lw}")
        self.exec_set(0x000f000f, 0x000f000f)
        a(f"ds_write_b128 v{adu}, {vr(U,4)}"); a(f"ds_write_b128 v{adu}, {vr(U+4,4)} offset:16")
        self.exec_all()
        a.label(lw)
        a(f"s_branch {l_j}")
        a.label(l_late)
        a(f"ds_read_b128 {vr(U,4)}, v{adu}"); a(f"ds_read_b128 {vr(U+4,4)}, v{adu} offset:16")
        self.poll(iss_q, [Gq, Gq+4, Gq+8, Gq+12, Gs], site='q2')
        a("s_waitcnt lgkmcnt(0)")
        a.label(l_j)
        self.stamp(2)
        self.tu()
        self.burst('Q1')
        st = [Gs, Gs+1]
        adds = [f"v_add_f32 v{Gq+r}, v{Gq+r}, v{Gq+8+r}" for r in range(8)]
        seq = []
        for k, d in enumerate((self.X1, self.X2, self.HM)):
            seq += [f"v_add_f32_dpp v{r}, v{r}, v{r} {d} {DPPALL}" for r in st]
            seq += adds[3*k:3*k+3] if k < 2 else adds[6:]
        for s_ in seq: a(s_)
        a(f"v_mul_f32 v{Gs}, {f32hex(1/640)}, v{Gs}")
        ror4 = [f"v_add_f32_dpp v{Gq+r}, v{Gq+r}, v{Gq+r} row_ror:4 {DPPALL}" for r in range(8)]
        ror8 = [f"v_add_f32_dpp v{Gq+r}, v{Gq+r}, v{Gq+r} row_ror:8 {DPPALL}" for r in range(8)]
        a(f"v_mul_f32 v{Gs+1}, {f32hex(1/640)}, v{Gs+1}")
        for s_ in ror4[:4]: a(s_)
        a(f"v_fma_f32 v{Gs+1}, -v{Gs}, v{Gs}, v{Gs+1}")
        for s_ in ror4[4:]: a(s_)
        a(f"v_add_f32 v{Gs+1}, {f32hex(1e-5)}, v{Gs+1}")
        for s_ in ror8[:4]: a(s_)
        a(f"v_rsq_f32 v{Gs+1}, v{Gs+1}")
        for s_ in ror8[4:]: a(s_)
        a(f"v_mul_f32 v{Gs+1}, {f32hex(SC)}, v{Gs+1}")
        for r in range(8): a(f"v_fma_f32 v{Gq+r}, -v{Gs}, v{U+r}, v{Gq+r}")
        a(f"v_readfirstlane_b32 s{sSc}, v{Gs+1}")
        Qp = 24
        for r in range(4): a(f"v_cvt_pk_bf16_f32 v{Qp+r}, v{Gq+2*r}, v{Gq+2*r+1}")
        for t in range(4):
            for r in range(4):
                a(f"v_cndmask_b32 v{AT+4*t+r}, 0, v{Qp+r}, s[{sMask[t]}:{sMask[t]+1}]")

    def combine8(self, G, ML, tmp):
        a = self.a
        M, f, Ls = tmp, tmp+1, tmp+2
        a(f"v_max_f32_dpp v{M}, v{ML}, v{ML} row_ror:8 {DPPALL}")
        self.dpp_steps([M], "v_max_f32", ["b15", "b31"])
        a(f"v_readlane_b32 s{sA}, v{M}, 63")
        a(f"v_subrev_f32 v{f}, s{sA}, v{ML}"); a(f"v_exp_f32 v{f}, v{f}")
        a(f"v_mul_f32 v{Ls}, v{f}, v{ML+1}")
        for r in range(4): a(f"v_mul_f32 v{G+r}, v{f}, v{G+r}")
        a(f"v_add_f32_dpp v{Ls}, v{Ls}, v{Ls} row_ror:8 {DPPALL}")
        for r in range(4): a(f"v_add_f32_dpp v{G+r}, v{G+r}, v{G+r} row_ror:8 {DPPALL}")
        a(f"v_add_f32_dpp v{Ls}, v{Ls}, v{Ls} row_bcast:15 row_mask:0xa bank_mask:0xf")
        a(f"v_permlane32_swap_b32 v{G}, v{G+2}")
        a(f"v_permlane32_swap_b32 v{G+1}, v{G+3}")
        a(f"v_add_f32_dpp v{Ls}, v{Ls}, v{Ls} row_bcast:31 row_mask:0xc bank_mask:0xf")
        a(f"v_add_f32 v{G}, v{G}, v{G+2}")
        a(f"v_add_f32 v{G+1}, v{G+1}, v{G+3}")
        a(f"v_readlane_b32 s{sA}, v{Ls}, 63")
        a(f"v_permlane16_swap_b32 v{G}, v{G+1}")
        a(f"v_rcp_f32 v{Ls}, s{sA}")
        a(f"v_add_f32 v{G}, v{G}, v{G+1}")
        a(f"v_mul_f32 v{G}, v{G}, v{Ls}")

    def amiddle(self):
        a = self.a
        D = 16
        for t in range(4):
            c = "0" if t == 0 else vr(D, 4)
            a(f"v_mfma_f32_16x16x32_bf16 {vr(D,4)}, {vr(AT+4*t,4)}, {vr(WUK+4*t,4)}, {c}")
        a(f"v_lshrrev_b32 v14, 8, v{vL16}"); a("v_lshlrev_b32 v14, 4, v14")
        a(f"s_lshl_b32 s{sTmp[0]}, s{sH}, 11"); a(f"s_lshl_b32 s{sTmp[1]}, s{sJ}, 8"); a(f"s_add_u32 s{sTmp[0]}, s{sTmp[0]}, s{sTmp[1]}")
        a(f"s_lshl_b32 s{sTmp[1]}, s{sW}, 6"); a(f"s_add_u32 s{sTmp[0]}, s{sTmp[0]}, s{sTmp[1]}")
        a(f"s_add_u32 s{sTmp[0]}, s{sTmp[0]}, {O_QABS}")
        S, S2 = 20, 21
        a(f"v_mov_b32_dpp v{S}, v{D} quad_perm:[0,0,0,0] {DPPALL}")
        a(f"v_mov_b32_dpp v{S2}, v{D+2} quad_perm:[2,2,2,2] {DPPALL}")
        a(f"s_nop 0")
        a(f"v_add_f32_dpp v{S}, v{D+1}, v{S} quad_perm:[1,1,1,1] {DPPALL}")
        a(f"v_add_f32_dpp v{S2}, v{D+3}, v{S2} quad_perm:[3,3,3,3] {DPPALL}")
        a(f"v_add_f32 v{S}, v{S}, v{S2}")
        a(f"v_mul_f32 v{S}, s{sSc}, v{S}")
        G = 24
        for q in range(4): a(f"v_mov_b32_dpp v{G+q}, v{S} row_newbcast:{4*q} {DPPALL}")
        self.tag([G, G+1, G+2, G+3])
        self.exec_set(0x00010001, 0x00010001)
        a(f"buffer_store_dwordx4 {vr(G,4)}, v14, {W}, s{sTmp[0]} offen sc1")
        self.exec_all()
        self.stamp(3)
        self.tu()
        if not self.pfnew: self.load_wuv()
        Gq = 16
        a(f"s_lshl_b32 s{sTmp[0]}, s{sGA}, 15"); a(f"s_lshl_b32 s{sTmp[1]}, s{sW}, 9"); a(f"s_add_u32 s{sTmp[0]}, s{sTmp[0]}, s{sTmp[1]}")
        a(f"s_add_u32 s{sTmp[0]}, s{sTmp[0]}, {O_QABS}")
        for i in range(1, 4): a(f"s_add_u32 s{sTmp[i]}, s{sTmp[0]}, {i*8192}")
        vA0, vB0, vAx = 52, 53, 54
        n, g = 48, 49
        a(f"v_lshrrev_b32 v{n}, 4, v{vL16}"); a(f"v_lshrrev_b32 v{g}, 4, v{n}"); a(f"v_and_b32 v{n}, 15, v{n}")
        a(f"v_and_b32 v50, 8, v{n}"); a(f"v_and_b32 v51, 3, v{n}"); a(f"v_lshl_or_b32 v50, v51, 1, v50")
        a(f"v_bfe_u32 v51, v{n}, 2, 1"); a(f"v_or_b32 v50, v50, v51")
        a(f"s_lshl_b32 s{sTmp[4]}, s{sW}, 14"); a(f"s_add_u32 s{sTmp[4]}, s{sTmp[4]}, {L_CKV}")
        a(f"v_lshlrev_b32 v51, 10, v{n}"); a(f"v_lshl_add_u32 v51, v{g}, 8, v51"); a(f"v_lshl_add_u32 v51, v50, 4, v51")
        a(f"v_add_u32 v{vA0}, s{sTmp[4]}, v51")
        a(f"v_mul_u32_u24 v{vB0}, 1040, v{n}"); a(f"v_lshl_add_u32 v{vB0}, v{g}, 8, v{vB0}"); a(f"v_add_u32 v{vB0}, {L_R0}, v{vB0}")
        a(f"v_mul_u32_u24 v51, 272, v{n}"); a(f"v_lshl_add_u32 v50, v{g}, 4, v51")
        a(f"s_lshl_b32 s{sTmp[4]}, s{sW}, 6"); a(f"s_add_u32 s{sTmp[4]}, s{sTmp[4]}, {L_ST}"); a(f"v_add_u32 v50, s{sTmp[4]}, v50")
        a(f"v_lshl_add_u32 v51, v{g}, 5, v51"); a(f"v_add_u32 v51, {L_ST}, v51")
        vC0, vC1, vX0, vX1 = 76, 77, 78, 79
        a(f"v_and_b32 v14, 3, v{n}"); a(f"v_lshrrev_b32 v15, 2, v{n}")
        a(f"v_and_b32 v55, 1, v{g}"); a(f"v_lshlrev_b32 v55, 3, v55"); a(f"v_lshl_add_u32 v55, v15, 1, v55")
        a(f"v_lshrrev_b32 v56, 1, v14"); a(f"v_xor_b32 v55, v55, v56")
        a(f"v_lshl_add_u32 v56, v{g}, 3, v15"); a(f"v_lshlrev_b32 v56, 10, v56")
        a(f"v_lshl_add_u32 v56, v55, 4, v56"); a(f"v_and_b32 v14, 1, v14"); a(f"v_lshl_add_u32 v56, v14, 3, v56")
        a(f"s_lshl_b32 s{sTmp[4]}, s{sW}, 8"); a(f"s_add_u32 s{sTmp[4]}, s{sTmp[4]}, {L_CKV}")
        a(f"v_add_u32 v{vC0}, s{sTmp[4]}, v56")
        a(f"v_add_u32 v{vC1}, 4096, v{vC0}"); a(f"v_xor_b32 v{vC1}, 16, v{vC1}")
        a(f"s_lshl_b32 s{sTmp[4]}, s{sW}, 8"); a(f"s_add_u32 s{sTmp[4]}, s{sTmp[4]}, {L_R0}")
        a(f"v_lshrrev_b32 v14, 9, v{vL16}"); a(f"v_and_b32 v57, 0x1f0, v{vL16}")
        a(f"v_lshrrev_b32 v15, 1, v57"); a(f"v_mul_u32_u24 v58, 1040, v14"); a(f"v_add_u32 v15, v15, v58"); a(f"v_add_u32 v15, s{sTmp[4]}, v15")
        a(f"v_lshl_add_u32 v57, v14, 11, v57")
        lg0 = a.newlabel("cg"); lg1 = a.newlabel("cg")
        a.label(lg0)
        a(f"s_cmp_ge_u32 s{sPos}, 16"); a(f"s_cbranch_scc1 {lg1}")
        self.stream_call()
        a(f"s_branch {lg0}")
        a.label(lg1)
        if self.sent:
            lsk = a.newlabel("nosent")
            if not self.sent1:
                a(f"s_cmp_lg_u32 s{sAct}, 0"); a(f"s_cbranch_scc1 {lsk}")
            a(f"v_lshrrev_b32 v14, 7, v{vL16}"); a(f"v_lshlrev_b32 v14, 11, v14"); a(f"v_and_b32 v58, 0x70, v{vL16}"); a(f"v_lshl_add_u32 v14, v58, 2, v14")
            def iss0():
                a(f"buffer_load_dwordx4 {vr(Gq,4)}, v14, {W}, s{sTmp[0]} offen sc1")
                a(f"buffer_load_dwordx4 {vr(Gq+4,4)}, v14, {W}, s{sTmp[2]} offen sc1")
            self.poll(iss0, [Gq, Gq+4], site='sent')
            a.label(lsk)
            self.stamp(15)
        def iss():
            for i in range(8):
                so = sTmp[i >> 1]
                if i & 1:
                    a(f"s_add_u32 s{sTmp[5-1]}, s{so}, 4096"); so = sTmp[4]
                a(f"buffer_load_dwordx4 {vr(Gq+4*i,4)}, v57, {W}, s{so} offen sc1")
        self.poll(iss, [Gq+4*i for i in range(8)], site='h4')
        self.stampval(30, sSpin); self.stampval(31, sPos)
        self.stamp(4)
        def a0_loads():
            if self.pfnew: self.load_wuv()
            self.burst('A0')
            if self.c1touch2 == "h4":
                lt = a.newlabel("t2")
                a(f"s_cmp_eq_u32 s{sL}, 0"); a(f"s_cbranch_scc1 {lt}")
                a(f"v_lshlrev_b32 v11, 2, v{vL16}")
                for i in range(1 if self.c1bf else 2):
                    a(f"s_add_u32 s{sTmp[0]}, s{sC1}, {i * 4096}")
                    a(f"buffer_load_dword v12, v11, {W}, s{sTmp[0]} offen")
                a.label(lt)
        if not self.opt2: a0_loads()
        for i in range(8):
            b = Gq + 4*i
            a(f"v_cvt_pk_bf16_f32 v{b}, v{b}, v{b+1}"); a(f"v_cvt_pk_bf16_f32 v{b+1}, v{b+2}, v{b+3}")
            a(f"ds_write_b64 v15, {vr(b,2)} offset:{i*2*1040}")
        if self.opt2: a0_loads()
        self.tu()
        a("s_waitcnt lgkmcnt(0)"); a("s_barrier")
        self.stamp(16)
        if "S" in self.xcalls: self.topup(site='S')
        self.burst('S')
        AB = 16
        Ds = 56
        def rd(st):
            b = AB + 8 * (st % 4)
            if st == 0: a(f"ds_read_b128 {vr(b,4)}, v{vA0}")
            else:
                a(f"v_xor_b32 v{vAx}, {st<<4}, v{vA0}"); a(f"ds_read_b128 {vr(b,4)}, v{vAx}")
            a(f"ds_read_b128 {vr(b+4,4)}, v{vB0} offset:{st*16}")
        for st in range(4): rd(st)
        for st in range(16):
            rem = min(3, 15 - st)
            a(f"s_waitcnt lgkmcnt({2*rem})")
            b = AB + 8 * (st % 4)
            c = "0" if st == 0 else vr(Ds, 4)
            a(f"v_mfma_f32_16x16x32_bf16 {vr(Ds,4)}, {vr(b,4)}, {vr(b+4,4)}, {c}")
            if st + 4 < 16: rd(st + 4)
        a(f"ds_write_b128 v50, {vr(Ds,4)}")
        self.tu()
        a("s_waitcnt lgkmcnt(0)"); a("s_barrier")
        self.stamp(17)
        SS = 60 if self.opt2 else 16
        for u in range(2):
            for hf in range(2):
                a(f"ds_read_b128 {vr(SS+8*u+4*hf,4)}, v51 offset:{u*128+hf*16}")
        DT = 44
        AF = 16
        steps = [(t, u) for t in range(8) for u in range(2)]
        def rdA(k):
            t, u = steps[k]; b = AF + 4 * (k % 4)
            if u == 0:
                if t == 0:
                    a(f"v_mov_b32 v{vX0}, v{vC0}"); a(f"v_mov_b32 v{vX1}, v{vC1}")
                else:
                    a(f"v_xor_b32 v{vX0}, {t<<5}, v{vC0}"); a(f"v_xor_b32 v{vX1}, {t<<5}, v{vC1}")
            a(f"ds_read_b64_tr_b16 {vr(b,2)}, v{vX0} offset:{u*32768}")
            a(f"ds_read_b64_tr_b16 {vr(b+2,2)}, v{vX1} offset:{u*32768}")
        if self.opt2:
            for k in range(4): rdA(k)
        if self.pfnew: self.load_wo(pWoA)
        m, l, t1, t2 = 32, 33, 34, 35
        a("s_waitcnt lgkmcnt(8)" if self.opt2 else "s_waitcnt lgkmcnt(0)")
        a(f"v_max3_f32 v{m}, v{SS}, v{SS+1}, v{SS+2}"); a(f"v_max3_f32 v{t1}, v{SS+3}, v{SS+4}, v{SS+5}")
        a(f"v_max3_f32 v{m}, v{m}, v{SS+6}, v{SS+7}"); a(f"v_max3_f32 v{t1}, v{t1}, v{SS+8}, v{SS+9}")
        a(f"v_max3_f32 v{m}, v{m}, v{SS+10}, v{SS+11}"); a(f"v_max3_f32 v{t1}, v{t1}, v{SS+12}, v{SS+13}")
        a(f"v_max3_f32 v{m}, v{m}, v{SS+14}, v{SS+15}"); a(f"v_max_f32 v{m}, v{m}, v{t1}")
        for sw in ("v_permlane16_swap_b32", "v_permlane32_swap_b32"):
            a(f"v_mov_b32 v{t1}, v{m}"); a(f"{sw} v{m}, v{t1}"); a(f"v_max_f32 v{m}, v{m}, v{t1}")
        for k in range(16): a(f"v_sub_f32 v{SS+k}, v{SS+k}, v{m}")
        for k in range(16): a(f"v_exp_f32 v{SS+k}, v{SS+k}")
        P = 36
        for k in range(8): a(f"v_cvt_pk_bf16_f32 v{P+k}, v{SS+2*k}, v{SS+2*k+1}")
        for k in range(8): a(f"v_add_f32 v{SS+k}, v{SS+k}, v{SS+8+k}")
        for k in range(4): a(f"v_add_f32 v{SS+k}, v{SS+k}, v{SS+4+k}")
        a(f"v_add_f32 v{SS}, v{SS}, v{SS+1}"); a(f"v_add_f32 v{SS+2}, v{SS+2}, v{SS+3}"); a(f"v_add_f32 v{l}, v{SS}, v{SS+2}")
        self.stamp(18)
        if "smax" in self.xcalls: self.topup(site='S')
        self.burst('smax')
        if not self.opt2:
            for k in range(4): rdA(k)
        for sw in ("v_permlane16_swap_b32", "v_permlane32_swap_b32"):
            a(f"v_mov_b32 v{t1}, v{l}"); a(f"{sw} v{l}, v{t1}"); a(f"v_add_f32 v{l}, v{l}, v{t1}")
        if self.c1bf:
            self.stage1_bf(DT, P, AF, steps, rdA)
            acc = 48; t1 = 68; Mx = 56; den = 64; R4 = range(4)
        else:
            a(f"v_lshrrev_b32 v14, 8, v{vL16}"); a(f"v_lshlrev_b32 v14, 17, v14"); a(f"v_and_b32 v15, 0xf0, v{vL16}"); a(f"v_add_u32 v14, v14, v15")
            a(f"s_lshl_b32 s{sTmp[0]}, s{sXG}, 20"); a(f"s_lshl_b32 s{sTmp[1]}, s{sGA}, 19"); a(f"s_add_u32 s{sTmp[0]}, s{sTmp[0]}, s{sTmp[1]}")
            a(f"s_lshl_b32 s{sTmp[1]}, s{sW}, 15"); a(f"s_add_u32 s{sTmp[0]}, s{sTmp[0]}, s{sTmp[1]}")
            a(f"s_and_b32 s{sTmp[2]}, s{sS}, 15"); a(f"s_lshl_b32 s{sTmp[1]}, s{sTmp[2]}, 9"); a(f"s_add_u32 s{sTmp[0]}, s{sTmp[0]}, s{sTmp[1]}")
            a(f"s_add_u32 s{sTmp[0]}, s{sTmp[0]}, {O_C1}")
            a(f"s_lshl_b32 s{sTmp[3]}, s{sXG}, 14"); a(f"s_lshl_b32 s{sTmp[1]}, s{sGA}, 13"); a(f"s_add_u32 s{sTmp[3]}, s{sTmp[3]}, s{sTmp[1]}")
            a(f"s_lshl_b32 s{sTmp[1]}, s{sW}, 9"); a(f"s_add_u32 s{sTmp[3]}, s{sTmp[3]}, s{sTmp[1]}")
            a(f"s_lshl_b32 s{sTmp[1]}, s{sTmp[2]}, 5"); a(f"s_add_u32 s{sTmp[3]}, s{sTmp[3]}, s{sTmp[1]}")
            a(f"s_add_u32 s{sTmp[3]}, s{sTmp[3]}, {O_ML1}")
            a(f"v_bfe_u32 v15, v{vL16}, 6, 2"); a(f"v_lshlrev_b32 v15, 11, v15")
            a(f"v_bfe_u32 v32+2, v{vL16}, 8, 1".replace("v32+2", "v34")); a(f"v_lshl_add_u32 v15, v34, 4, v15")
            MG = 76 - 0
            a(f"s_mov_b32 vcc_lo, 0xffff0000"); a("s_mov_b32 vcc_hi, 0")
            a(f"v_cndmask_b32 v34, v32, v33, vcc")
            mlops = [f"v_mov_b32_dpp v32, v34 quad_perm:[0,0,0,0] {DPPALL}", f"v_mov_b32_dpp v33, v34 quad_perm:[1,1,1,1] {DPPALL}",
                     f"v_mov_b32_dpp v35, v34 quad_perm:[3,3,3,3] {DPPALL}", f"v_mov_b32_dpp v34, v34 quad_perm:[2,2,2,2] {DPPALL}"]
            for k in range(16):
                t, u = steps[k]; b = AF + 4 * (k % 4)
                rem = min(3, 15 - k)
                a(f"s_waitcnt lgkmcnt({2*rem})")
                c = "0" if u == 0 else vr(DT+4*t, 4)
                a(f"v_mfma_f32_16x16x32_bf16 {vr(DT+4*t,4)}, {vr(P+4*u,4)}, {vr(b,4)}, {c}")
                if k + 4 < 16: rdA(k + 4)
                if k == 0:
                    for x_ in mlops: a(x_)
                if k == 2: self.tag([32, 33, 34, 35])
                if u == 1 and t >= 2: self.tag([DT+4*(t-2)+r for r in range(4)])
            self.tag([DT+4*6+r for r in range(4)]); self.tag([DT+4*7+r for r in range(4)])
            self.stamp(19)
            items = []
            for t in range(8):
                def pre(t=t): a(f"s_add_u32 s{sTmp[1]}, s{sTmp[0]}, {(t>>1)*8192+(t&1)*256}")
                items.append((DT+4*t, 14, sTmp[1], pre))
            def pre_ml(): a("s_mov_b32 exec_lo, 0x11111111"); a("s_mov_b32 exec_hi, 0")
            items.append((32, 15, sTmp[3], pre_ml))
            if self.c1sc1:
                loc = self.local; self.local = False
                self.local_stores(items)
                self.local = loc
            else:
                self.local_stores(items)
            self.exec_all()
            self.stamp(5)
            G, MM, LL = 16, 48, 52
            a(f"v_lshrrev_b32 v14, 4, v{vL16}"); a(f"v_and_b32 v15, 7, v14"); a(f"v_lshrrev_b32 v14, 5, v14")
            a(f"v_lshl_add_u32 v14, v15, 1, v14"); a(f"v_lshlrev_b32 v14, 5, v14")
            a(f"s_lshl_b32 s{sTmp[0]}, s{sXG}, 5"); a(f"s_add_u32 s{sTmp[0]}, s{sTmp[0]}, s{sI}")
            a(f"s_lshl_b32 s{sTmp[2]}, s{sTmp[0]}, 9"); a(f"s_add_u32 s{sTmp[2]}, s{sTmp[2]}, {O_ML1}")
            a(f"s_lshl_b32 s{sTmp[0]}, s{sTmp[0]}, 2"); a(f"s_add_u32 s{sTmp[0]}, s{sTmp[0]}, s{sW}")
            a(f"s_lshl_b32 s{sTmp[0]}, s{sTmp[0]}, 13"); a(f"s_add_u32 s{sTmp[0]}, s{sTmp[0]}, {O_C1}")
            a(f"s_add_u32 s{sTmp[1]}, s{sTmp[0]}, 4096")
            def issML():
                a(f"buffer_load_dwordx4 {vr(MM,4)}, v14, {W}, s{sTmp[2]} offen sc1")
                a(f"buffer_load_dwordx4 {vr(LL,4)}, v14, {W}, s{sTmp[2]} offen offset:16 sc1")
            lsk = a.newlabel("noml")
            if not self.mlsent:
                a(f"s_cmp_lg_u32 s{sAct}, 0"); a(f"s_cbranch_scc1 {lsk}")
            if not self.mltail:
                a(f"s_cmp_ge_u32 s{sL}, 2"); a(f"s_cbranch_scc1 {lsk}")
            self.poll(issML, [MM, LL], site='ml1')
            a.label(lsk)
            self.stamp(20)
            Mx, wv, den, t1 = 56, 60, 64, 68
            chk = 72
            lp = a.newlabel("sw1"); ns = a.newlabel("sw1n"); jn = a.newlabel("sw1j"); dn = a.newlabel("sw1d"); ns2 = a.newlabel("sw1m"); jn2 = a.newlabel("sw1k")
            a(f"s_mov_b32 s{sSpin}, 0")
            if self.bud is not None: a(f"s_mov_b32 s{sBud}, {self.bud.get('sw1', self.bud.get('*', 8))}")
            self.predelay('sw1')
            a.label(lp)
            issML()
            for i in range(8):
                a(f"buffer_load_dwordx4 {vr(G+4*i,4)}, v{vL16}, {W}, s{sTmp[i>>2]} offen offset:{(i&3)*1024} sc1")
            a(f"s_mov_b32 s{sYoung}, 8")
            self.dwait(8, 10 if self.addn else 0, 'sw1')
            a(f"s_sub_u32 s{sTmp[4]}, s{sYoung}, 8")
            for r in range(4): a(f"v_xor_b32 v{MM+r}, s{sT[r]}, v{MM+r}")
            for r in range(4): a(f"v_xor_b32 v{LL+r}, s{sT[r]}, v{LL+r}")
            a(f"v_or3_b32 v{chk}, v{MM}, v{MM+1}, v{MM+2}"); a(f"v_or3_b32 v{chk}, v{chk}, v{MM+3}, v{LL}")
            a(f"v_or3_b32 v{chk}, v{chk}, v{LL+1}, v{LL+2}"); a(f"v_or_b32 v{chk}, v{chk}, v{LL+3}")
            R4 = range(4)
            for r in R4: a(f"v_max_f32_dpp v{Mx+r}, v{MM+r}, v{MM+r} {self.X1} {DPPALL}")
            self.dpp_steps([Mx+r for r in R4], "v_max_f32", [self.X2, self.HM])
            for r in R4: a(f"v_mov_b32 v{t1+r}, v{Mx+r}")
            for r in R4: a(f"v_permlane32_swap_b32 v{Mx+r}, v{t1+r}")
            for r in R4: a(f"v_max_f32 v{Mx+r}, v{Mx+r}, v{t1+r}")
            for r in R4: a(f"v_sub_f32 v{wv+r}, v{MM+r}, v{Mx+r}")
            for r in R4: a(f"v_exp_f32 v{wv+r}, v{wv+r}")
            for r in R4: a(f"v_mul_f32 v{den+r}, v{wv+r}, v{LL+r}")
            self.dpp_steps([den+r for r in R4], "v_add_f32", [self.X1, self.X2, self.HM])
            for r in R4: a(f"v_mov_b32 v{t1+r}, v{den+r}")
            for r in R4: a(f"v_permlane32_swap_b32 v{den+r}, v{t1+r}")
            for r in R4: a(f"v_add_f32 v{den+r}, v{den+r}, v{t1+r}")
            if self.mode == "co":
                a(f"s_cmp_eq_u32 s{sTmp[4]}, 0"); a(f"s_cbranch_scc1 {ns2}")
                a(f"s_mov_b32 s{sYoung}, s{sTmp[4]}")
                a(f"s_swappc_b64 s[{sRET2}:{sRET2+1}], s[{sDW}:{sDW+1}]")
                a(f"s_branch {jn2}")
                a.label(ns2)
            self.dwait(0, 0, 'sw1')
            a.label(jn2)
            dw = [G + i for i in range(32)]
            for k, r in enumerate(dw): a(f"v_xor_b32 v{r}, s{sT[k % 4]}, v{r}")
            a(f"v_or3_b32 v{vT0}, v{dw[0]}, v{dw[1]}, v{chk}"); a(f"v_or3_b32 v{vT0+1}, v{dw[2]}, v{dw[3]}, v{dw[4]}")
            k = 5; tog = 0
            while k < 31:
                tgt = vT0 + tog
                a(f"v_or3_b32 v{tgt}, v{tgt}, v{dw[k]}, v{dw[k+1]}"); k += 2; tog ^= 1
            a(f"v_or3_b32 v{vT0}, v{vT0}, v{vT0+1}, v{dw[31]}")
            a(f"v_and_b32 v{vT0}, s{sFF}, v{vT0}")
            a(f"v_cmp_ne_u32 vcc, 0, v{vT0}")
            a(f"s_cbranch_vccz {dn}")
            a(f"s_add_u32 s{sSpin}, s{sSpin}, 1"); a(f"s_cmp_lt_u32 s{sSpin}, {SPIN_MAX}"); a(f"s_cbranch_scc1 {lp}")
            a(f"s_mov_b32 s{sErr}, 1")
            a.label(dn)
            self.stampval(24, sSpin); self.stampval(25, sPos)
            self.stamp(6)
            self.burst('A1')
            acc = 48
            for i in range(8):
                for r in range(4):
                    op = "v_mul_f32_dpp" if i == 0 else "v_fmac_f32_dpp"
                    a(f"{op} v{acc+r}, v{wv+r}, v{G+4*i+r} row_newbcast:{i} {DPPALL}")

        if self.c1bf:
            a(f"v_bfe_u32 v14, v{vL16}, 9, 1"); a(f"v_lshlrev_b32 v14, 11, v14"); a(f"v_and_b32 v15, 0xf0, v{vL16}"); a(f"v_add_u32 v14, v14, v15")
        else:
            a(f"v_bfe_u32 v14, v{vL16}, 8, 1"); a(f"v_lshlrev_b32 v14, 11, v14"); a(f"v_and_b32 v15, 0xf0, v{vL16}"); a(f"v_add_u32 v14, v14, v15")
            for r in R4: a(f"v_mov_b32 v{t1+r}, v{acc+r}")
        a(f"s_lshr_b32 s{sTmp[0]}, s{sI}, 2"); a(f"s_lshl_b32 s{sTmp[0]}, s{sTmp[0]}, 16")
        a(f"s_and_b32 s{sTmp[1]}, s{sI}, 3"); a(f"s_lshl_b32 s{sTmp[1]}, s{sTmp[1]}, 14"); a(f"s_add_u32 s{sTmp[0]}, s{sTmp[0]}, s{sTmp[1]}")
        if not self.c1bf:
            for r in R4: a(f"v_permlane32_swap_b32 v{acc+r}, v{t1+r}")
        a(f"s_lshl_b32 s{sTmp[1]}, s{sW}, 12"); a(f"s_add_u32 s{sTmp[0]}, s{sTmp[0]}, s{sTmp[1]}")
        a(f"s_lshl_b32 s{sTmp[1]}, s{sXG}, 8"); a(f"s_add_u32 s{sTmp[0]}, s{sTmp[0]}, s{sTmp[1]}")
        if not self.c1bf:
            for r in R4: a(f"v_add_f32 v{acc+r}, v{acc+r}, v{t1+r}")
        a(f"s_add_u32 s{sTmp[0]}, s{sTmp[0]}, {O_C2}")
        self.tag([acc, acc+1, acc+2, acc+3])
        if self.c1bf: self.exec_set(0xffff, 0xffff)
        else: a("s_mov_b32 exec_hi, 0")
        a(f"buffer_store_dwordx4 {vr(acc,4)}, v14, {W}, s{sTmp[0]} offen sc1")
        self.exec_all()
        lm = a.newlabel("ml2")
        a(f"s_and_b32 s{sTmp[1]}, s{sI}, 3"); a(f"s_or_b32 s{sTmp[1]}, s{sTmp[1]}, s{sW}"); a(f"s_cmp_lg_u32 s{sTmp[1]}, 0"); a(f"s_cbranch_scc1 {lm}")
        for r in (1, 2, 3):
            a(f"s_mov_b64 vcc, {1 << r}")
            a(f"v_cndmask_b32 v{Mx}, v{Mx}, v{Mx+r}, vcc"); a(f"v_cndmask_b32 v{den}, v{den}, v{den+r}, vcc")
        a(f"v_mov_b32 v{Mx+1}, v{den}"); a(f"v_mov_b32 v{Mx+2}, 0"); a(f"v_mov_b32 v{Mx+3}, 0")
        self.tag([Mx, Mx+1, Mx+2, Mx+3])
        a(f"s_lshl_b32 s{sTmp[1]}, s{sI}, 7"); a(f"s_lshl_b32 s{sTmp[2]}, s{sXG}, 4"); a(f"s_add_u32 s{sTmp[1]}, s{sTmp[1]}, s{sTmp[2]}")
        a(f"s_add_u32 s{sTmp[1]}, s{sTmp[1]}, {O_ML2}")
        a(f"v_lshlrev_b32 v15, 3, v{vL16}")
        a("s_mov_b64 exec, 15")
        a(f"buffer_store_dwordx4 {vr(Mx,4)}, v15, {W}, s{sTmp[1]} offen sc1")
        self.exec_all()
        a.label(lm)
        self.stamp(21)
        self.tu()
        if not self.pfnew: self.load_wo(pWoA)
        G0, G1, M0, M1 = 16, 20, 24, 28
        a(f"v_bfe_u32 v15, v{vL16}, 6, 2")
        a(f"v_bfe_u32 v14, v{vL16}, 4, 2"); a(f"v_lshlrev_b32 v14, 2, v14"); a(f"v_lshrrev_b32 v32, 8, v{vL16}"); a(f"v_add_u32 v14, v14, v32")
        a(f"v_lshlrev_b32 v14, 4, v14"); a(f"v_lshl_add_u32 v14, v15, 8, v14")
        a(f"v_lshlrev_b32 v15, 4, v15")
        a(f"s_lshr_b32 s{sTmp[0]}, s{sH}, 2"); a(f"s_lshl_b32 s{sTmp[0]}, s{sTmp[0]}, 16"); a(f"s_lshl_b32 s{sTmp[1]}, s{sJ}, 13"); a(f"s_add_u32 s{sTmp[0]}, s{sTmp[0]}, s{sTmp[1]}")
        a(f"s_lshl_b32 s{sTmp[1]}, s{sW}, 11"); a(f"s_add_u32 s{sTmp[0]}, s{sTmp[0]}, s{sTmp[1]}"); a(f"s_add_u32 s{sTmp[0]}, s{sTmp[0]}, {O_C2}")
        a(f"s_lshl_b32 s{sTmp[2]}, s{sH}, 7"); a(f"s_add_u32 s{sTmp[2]}, s{sTmp[2]}, {O_ML2}")
        def iss2():
            a(f"buffer_load_dwordx4 {vr(M0,4)}, v15, {W}, s{sTmp[2]} offen sc1")
            a(f"buffer_load_dwordx4 {vr(M1,4)}, v15, {W}, s{sTmp[2]} offen offset:64 sc1")
            a(f"buffer_load_dwordx4 {vr(G0,4)}, v14, {W}, s{sTmp[0]} offen sc1")
            a(f"buffer_load_dwordx4 {vr(G1,4)}, v14, {W}, s{sTmp[0]} offen offset:1024 sc1")
        self.poll(iss2, [M0, M1, G0, G1], site='h5b')
        self.stampval(26, sSpin); self.stampval(27, sPos)
        self.stamp(14)
        self.tu()
        self.burst('A2')
        lsel = [a.newlabel("sel") for _ in range(4)]; lj = a.newlabel("selj")
        Mx, f0, f1, Ls = 32, 33, 34, 35
        a(f"v_max_f32 v{Mx}, v{M0}, v{M1}")
        a(f"s_and_b32 s{sTmp[1]}, s{sH}, 3")
        for r in (1, 2, 3):
            a(f"s_cmp_eq_u32 s{sTmp[1]}, {r}"); a(f"s_cbranch_scc1 {lsel[r]}")
        a(f"s_branch {lj}")
        for r in (1, 2, 3):
            a.label(lsel[r])
            a(f"v_mov_b32 v{G0}, v{G0+r}"); a(f"v_mov_b32 v{G1}, v{G1+r}")
            if r < 3: a(f"s_branch {lj}")
        a.label(lj)
        self.dpp_steps([Mx], "v_max_f32", ["row_ror:4", "row_ror:8"])
        a(f"v_sub_f32 v{f0}, v{M0}, v{Mx}"); a(f"v_sub_f32 v{f1}, v{M1}, v{Mx}")
        a(f"v_exp_f32 v{f0}, v{f0}"); a(f"v_exp_f32 v{f1}, v{f1}")
        a(f"v_mul_f32 v{Ls}, v{f0}, v{M0+1}"); a(f"v_mul_f32 v{G0}, v{f0}, v{G0}")
        a(f"v_fmac_f32 v{Ls}, v{f1}, v{M1+1}"); a(f"v_fmac_f32 v{G0}, v{f1}, v{G1}")
        self.dpp_steps([Ls, G0], "v_add_f32", ["row_ror:4", "row_ror:8"])
        a(f"v_rcp_f32 v{Ls}, v{Ls}")
        a(f"v_mul_f32 v{G0}, v{G0}, v{Ls}")
        Xp = 14
        a(f"v_cvt_pk_bf16_f32 v{Xp}, v{G0}, v{G0}")
        D, Ab = 16, 20
        self.pv_gemv(Xp, 4, lambda i: vr(WUV+4*i, 4), D, Ab)
        self.red_write(D)
        self.row_slot_addr()
        self.tu()
        a("s_waitcnt lgkmcnt(0)"); a("s_barrier")
        lf = a.newlabel("uvfin")
        a(f"s_cmp_lg_u32 s{sW}, 0"); a(f"s_cbranch_scc1 {lf}")
        G = 16
        self.red_final_read(G)
        a(f"s_mov_b32 s{sA}, {f32hex(0.125)}")
        a("s_waitcnt lgkmcnt(0)")
        self.sum4(G)
        a(f"v_writelane_b32 v{G}, 0, 32"); a(f"v_writelane_b32 v{G+1}, s{sA}, 32")
        self.tag([G, G+1, G+2, G+3])
        a("s_mov_b32 exec_hi, 1")
        self.local_stores([(G, vL16, sTmp[0], None)])
        a("s_mov_b32 exec_hi, -1")
        a.label(lf)
        self.stamp(7)

    def stage1_bf(self, DT, P, AF, steps, rdA):
        a = self.a
        R4 = range(4)
        a(f"v_lshrrev_b32 v14, 8, v{vL16}"); a(f"v_lshlrev_b32 v14, 16, v14"); a(f"v_and_b32 v15, 0xf0, v{vL16}"); a(f"v_add_u32 v14, v14, v15")
        a(f"s_lshl_b32 s{sTmp[0]}, s{sXG}, 19"); a(f"s_lshl_b32 s{sTmp[1]}, s{sGA}, 18"); a(f"s_add_u32 s{sTmp[0]}, s{sTmp[0]}, s{sTmp[1]}")
        a(f"s_lshl_b32 s{sTmp[1]}, s{sW}, 14"); a(f"s_add_u32 s{sTmp[0]}, s{sTmp[0]}, s{sTmp[1]}")
        a(f"s_and_b32 s{sTmp[2]}, s{sS}, 15"); a(f"s_lshl_b32 s{sTmp[1]}, s{sTmp[2]}, 8"); a(f"s_add_u32 s{sTmp[0]}, s{sTmp[0]}, s{sTmp[1]}")
        a(f"s_add_u32 s{sTmp[0]}, s{sTmp[0]}, {O_C1}")
        a(f"s_lshl_b32 s{sTmp[3]}, s{sXG}, 14"); a(f"s_lshl_b32 s{sTmp[1]}, s{sGA}, 13"); a(f"s_add_u32 s{sTmp[3]}, s{sTmp[3]}, s{sTmp[1]}")
        a(f"s_lshl_b32 s{sTmp[1]}, s{sW}, 9"); a(f"s_add_u32 s{sTmp[3]}, s{sTmp[3]}, s{sTmp[1]}")
        a(f"s_lshl_b32 s{sTmp[1]}, s{sTmp[2]}, 5"); a(f"s_add_u32 s{sTmp[3]}, s{sTmp[3]}, s{sTmp[1]}")
        a(f"s_add_u32 s{sTmp[3]}, s{sTmp[3]}, {O_ML1}")
        a(f"v_bfe_u32 v15, v{vL16}, 6, 2"); a(f"v_lshlrev_b32 v15, 11, v15")
        a(f"v_bfe_u32 v34, v{vL16}, 8, 1"); a(f"v_lshl_add_u32 v15, v34, 4, v15")
        a(f"s_mov_b32 vcc_lo, 0xffff0000"); a("s_mov_b32 vcc_hi, 0")
        a(f"v_cndmask_b32 v34, v32, v33, vcc")
        mlops = [f"v_mov_b32_dpp v32, v34 quad_perm:[0,0,0,0] {DPPALL}", f"v_mov_b32_dpp v33, v34 quad_perm:[1,1,1,1] {DPPALL}",
                 f"v_mov_b32_dpp v35, v34 quad_perm:[3,3,3,3] {DPPALL}", f"v_mov_b32_dpp v34, v34 quad_perm:[2,2,2,2] {DPPALL}"]
        def pack(wp):
            D0, E0 = DT + 8*wp, DT + 8*wp + 4
            a(f"v_cvt_pk_bf16_f32 v{D0}, v{D0}, v{D0+1}"); a(f"v_cvt_pk_bf16_f32 v{D0+1}, v{D0+2}, v{D0+3}")
            a(f"v_cvt_pk_bf16_f32 v{D0+2}, v{E0}, v{E0+1}"); a(f"v_cvt_pk_bf16_f32 v{D0+3}, v{E0+2}, v{E0+3}")
        def item(wp):
            def pre(): a(f"s_add_u32 s{sTmp[1]}, s{sTmp[0]}, {wp*4096}")
            return (DT+8*wp, 14, sTmp[1], pre)
        for k in range(16):
            t, u = steps[k]; b = AF + 4 * (k % 4)
            rem = min(3, 15 - k)
            a(f"s_waitcnt lgkmcnt({2*rem})")
            c = "0" if u == 0 else vr(DT+4*t, 4)
            a(f"v_mfma_f32_16x16x32_bf16 {vr(DT+4*t,4)}, {vr(P+4*u,4)}, {vr(b,4)}, {c}")
            if k + 4 < 16: rdA(k + 4)
            if k == 0:
                for x_ in mlops: a(x_)
            if k == 2: self.tag([32, 33, 34, 35])
            if k in (7, 11, 15):
                pack((k - 7) // 4)
                if self.opt2: self.local_stores([item((k - 7) // 4)])
        pack(3)
        self.stamp(19)
        if self.opt2: self.local_stores([item(3)])
        else: self.local_stores([item(wp) for wp in range(4)])
        G, MM, LL = 16, 48, 52
        a(f"v_bfe_u32 v14, v{vL16}, 4, 2"); a(f"v_lshlrev_b32 v14, 2, v14"); a(f"v_lshrrev_b32 v36, 8, v{vL16}"); a(f"v_add_u32 v14, v14, v36")
        a(f"v_lshlrev_b32 v14, 5, v14")
        a(f"s_lshl_b32 s{sTmp[0]}, s{sXG}, 5"); a(f"s_add_u32 s{sTmp[0]}, s{sTmp[0]}, s{sI}")
        a(f"s_lshl_b32 s{sTmp[2]}, s{sTmp[0]}, 9"); a(f"s_add_u32 s{sTmp[2]}, s{sTmp[2]}, {O_ML1}")
        a("s_waitcnt vmcnt(0)")
        def pre_ml(): a("s_mov_b32 exec_lo, 0x11111111"); a("s_mov_b32 exec_hi, 0")
        self.local_stores([(32, 15, sTmp[3], pre_ml)])
        self.exec_all()
        self.stamp(5)
        def issML():
            a(f"buffer_load_dwordx4 {vr(MM,4)}, v14, {W}, s{sTmp[2]} offen sc1")
            a(f"buffer_load_dwordx4 {vr(LL,4)}, v14, {W}, s{sTmp[2]} offen offset:16 sc1")
        self.poll(issML, [MM, LL], site='ml1')
        self.stamp(20)
        for i in range(4):
            a(f"buffer_load_dwordx4 {vr(G+4*i,4)}, v{vL16}, {W}, s{sC1} offen offset:{i*1024} sc1")
        Mx, wv, den, t1 = 56, 60, 64, 68
        for r in R4: a(f"v_max_f32_dpp v{Mx+r}, v{MM+r}, v{MM+r} {self.X1} {DPPALL}")
        self.dpp_steps([Mx+r for r in R4], "v_max_f32", [self.X2])
        for sw in ("v_permlane16_swap_b32", "v_permlane32_swap_b32"):
            for r in R4: a(f"v_mov_b32 v{t1+r}, v{Mx+r}")
            for r in R4: a(f"{sw} v{Mx+r}, v{t1+r}")
            for r in R4: a(f"v_max_f32 v{Mx+r}, v{Mx+r}, v{t1+r}")
        for r in R4: a(f"v_sub_f32 v{wv+r}, v{MM+r}, v{Mx+r}")
        for r in R4: a(f"v_exp_f32 v{wv+r}, v{wv+r}")
        for r in R4: a(f"v_mul_f32 v{den+r}, v{wv+r}, v{LL+r}")
        self.dpp_steps([den+r for r in R4], "v_add_f32", [self.X1, self.X2])
        for sw in ("v_permlane16_swap_b32", "v_permlane32_swap_b32"):
            for r in R4: a(f"v_mov_b32 v{t1+r}, v{den+r}")
            for r in R4: a(f"{sw} v{den+r}, v{t1+r}")
            for r in R4: a(f"v_add_f32 v{den+r}, v{den+r}, v{t1+r}")
        self.dwait(0, 4, 'sw1')
        self.stamp(6)
        self.tu()
        self.burst('A1')
        accA, accB, un = 48, 52, 32
        for i in range(4):
            g0 = G + 4*i
            for q in range(4):
                a(f"v_lshlrev_b32 v{un+2*q}, 16, v{g0+q}"); a(f"v_and_b32 v{un+2*q+1}, 0xffff0000, v{g0+q}")
            for q in range(8):
                acc = (accA if q < 4 else accB) + (q & 3)
                op = "v_mul_f32_dpp" if i == 0 else "v_fmac_f32_dpp"
                a(f"{op} v{acc}, v{wv+(q&3)}, v{un+q} row_newbcast:{i} {DPPALL}")
        for r in R4: a(f"v_permlane32_swap_b32 v{accA+r}, v{accB+r}")
        for r in R4: a(f"v_add_f32 v{accA+r}, v{accA+r}, v{accB+r}")
        for r in R4: a(f"v_mov_b32 v{t1+r}, v{accA+r}")
        for r in R4: a(f"v_permlane16_swap_b32 v{accA+r}, v{t1+r}")
        for r in R4: a(f"v_add_f32 v{accA+r}, v{accA+r}, v{t1+r}")

    def check_inline(self, regs, ok_label):
        a = self.a
        acc, acc2 = vT0, vT0 + 1
        dw = [g + i for g in regs for i in range(4)]
        for k, r in enumerate(dw): a(f"v_xor_b32 v{r}, s{sT[k % 4]}, v{r}")
        a(f"v_or3_b32 v{acc}, v{dw[0]}, v{dw[1]}, v{dw[2]}")
        a(f"v_or3_b32 v{acc2}, v{dw[3]}, v{dw[4]}, v{dw[5]}")
        k = 6; tog = 0
        while k < len(dw):
            tgt = acc if tog == 0 else acc2
            a(f"v_or3_b32 v{tgt}, v{tgt}, v{dw[k]}, v{dw[k+1]}"); k += 2; tog ^= 1
        a(f"v_or_b32 v{acc}, v{acc}, v{acc2}")
        a(f"v_and_b32 v{acc}, s{sFF}, v{acc}")
        a(f"v_cmp_ne_u32 vcc, 0, v{acc}")
        a(f"s_cbranch_vccz {ok_label}")

    def row_slot_addr(self):
        a = self.a
        a(f"s_lshl_b32 s{sTmp[0]}, s{sH}, 3"); a(f"s_add_u32 s{sTmp[0]}, s{sTmp[0]}, s{sJ}"); a(f"s_lshl_b32 s{sTmp[0]}, s{sTmp[0]}, 10")
        a(f"s_add_u32 s{sTmp[0]}, s{sTmp[0]}, {O_ROW}")

    def bmiddle(self):
        a = self.a
        k = self.kblk
        if self.mode == "co":
            l0 = a.newlabel("kw"); l1 = a.newlabel("kw")
            a.label(l0)
            a(f"s_cmp_ge_u32 s{sPos}, {self.KEND+self.keep}"); a(f"s_cbranch_scc1 {l1}")
            self.stream_call()
            a(f"s_waitcnt vmcnt({self.keep})")
            a(f"s_branch {l0}")
            a.label(l1)
            a(f"s_waitcnt vmcnt({self.keep})")
        self.stampval(24, sPos)
        self.stamp(16)
        if not self.vsplit or self.woqk: self.wo_setup(pWoB)
        Db = [16, 20, 24]; SB = 28; Tt = 14
        def redops(b):
            D = Db[b % 3]; S = SB + b
            return [f"v_mov_b32_dpp v{S}, v{D} quad_perm:[0,0,0,0] {DPPALL}",
                    f"v_mov_b32_dpp v{Tt}, v{D+2} quad_perm:[2,2,2,2] {DPPALL}",
                    f"v_add_f32_dpp v{S}, v{D+1}, v{S} quad_perm:[1,1,1,1] {DPPALL}",
                    f"v_add_f32_dpp v{Tt}, v{D+3}, v{Tt} quad_perm:[3,3,3,3] {DPPALL}",
                    f"v_add_f32 v{S}, v{S}, v{Tt}"]
        for b in range(16):
            D = Db[b % 3]
            ro = redops(b - 2) if b >= 2 else []
            for t in range(4):
                c = "0" if t == 0 else vr(D, 4)
                a(f"v_mfma_f32_16x16x32_bf16 {vr(D,4)}, {vr(AT+4*t,4)}, {ar(16*b+4*t,4)}, {c}")
                if ro: a(ro[t])
                if self.vsplit:
                    if self.woqk and t == 1 and b < 6: self.wo_one(b)
                    if t == 2 and (6 if self.woqk else 0) <= b < (10 if self.woqk else 4): self.vtr_one(4 + b - (6 if self.woqk else 0))
                else:
                    if t == 1 and b < 8: self.pf_guard(lambda: self.vtr_one(b))
                    if t == 2 and 8 <= b < 14: self.pf_guard(lambda: self.wo_one(b - 8))
            if ro: a(ro[4])
            if b in self.qkcalls: self.topup(self.dq)
        r14, r15 = redops(14), redops(15)
        r15 = [x.replace(f"v{Tt}", "v15") for x in r15]
        for x14, x15 in zip(r14, r15):
            a(x14); a(x15)
        self.stamp(3)
        m, m2 = 14, 15
        a(f"v_max3_f32 v{m}, v{SB}, v{SB+1}, v{SB+2}"); a(f"v_max3_f32 v{m2}, v{SB+3}, v{SB+4}, v{SB+5}")
        a(f"v_max3_f32 v{m}, v{m}, v{SB+6}, v{SB+7}"); a(f"v_max3_f32 v{m2}, v{m2}, v{SB+8}, v{SB+9}")
        a(f"v_max3_f32 v{m}, v{m}, v{SB+10}, v{SB+11}"); a(f"v_max3_f32 v{m2}, v{m2}, v{SB+12}, v{SB+13}")
        a(f"v_max3_f32 v{m}, v{m}, v{SB+14}, v{SB+15}"); a(f"v_max_f32 v{m}, v{m}, v{m2}")
        self.dpp_steps([m], "v_max_f32", ["row_ror:4", "row_ror:8", "b15", "b31"])
        a(f"v_readlane_b32 s{sA}, v{m}, 63")
        a(f"v_mov_b32 v{m2}, s{sSc}")
        a(f"v_mul_f32 v{m}, s{sA}, v{m2}")
        a(f"v_readfirstlane_b32 s{sA}, v{m}")
        for q in range(16): a(f"v_fma_f32 v{SB+q}, v{SB+q}, s{sSc}, -v{m}")
        for q in range(16): a(f"v_exp_f32 v{SB+q}, v{SB+q}")
        l, l2 = 14, 15
        a(f"v_add_f32 v{l}, v{SB}, v{SB+1}"); a(f"v_add_f32 v{l2}, v{SB+2}, v{SB+3}")
        for q in range(4, 16, 2):
            a(f"v_add_f32 v{l}, v{l}, v{SB+q}"); a(f"v_add_f32 v{l2}, v{l2}, v{SB+q+1}")
        a(f"v_add_f32 v{l}, v{l}, v{l2}")
        pk = [f"v_cvt_pk_bf16_f32 v{SB+q}, v{SB+q}, v{SB+q}" for q in range(16)]
        red = [f"v_add_f32_dpp v{l}, v{l}, v{l} row_ror:4 {DPPALL}", f"v_add_f32_dpp v{l}, v{l}, v{l} row_ror:8 {DPPALL}",
               f"v_add_f32_dpp v{l}, v{l}, v{l} row_bcast:15 row_mask:0xa bank_mask:0xf", f"v_add_f32_dpp v{l}, v{l}, v{l} row_bcast:31 row_mask:0xc bank_mask:0xf"]
        for i in range(4):
            for x_ in pk[4*i:4*i+2]: a(x_)
            a(red[i])
            for x_ in pk[4*i+2:4*i+4]: a(x_)
        a(f"v_readlane_b32 s{sB_}, v{l}, 63")
        self.stamp(4)
        if self.mode == "co":
            self.drain(self.keep)
            a("s_waitcnt vmcnt(16)")
        Ab, Do = 44, 52
        a(f"s_lshl_b32 s{sTmp[0]}, s{sW}, 14"); a(f"v_add_u32 v15, s{sTmp[0]}, v{vL16}")
        if L_VL: a(f"v_add_u32 v15, {L_VL}, v15")
        if self.smf:
            self.pv_smf(SB, Ab, Do)
        else:
            self.pv_dense(SB, Ab, Do)
        self.row_slot_addr()
        a(f"v_writelane_b32 v{Do}, s{sA}, 32"); a(f"v_writelane_b32 v{Do+1}, s{sB_}, 32")
        self.red_write(Do)
        a("s_waitcnt lgkmcnt(0)"); a("s_barrier")
        self.stamp(5)
        lf = a.newlabel("bfin")
        a(f"s_cmp_lg_u32 s{sW}, 0"); a(f"s_cbranch_scc1 {lf}")
        G = 16; MLr = 32
        a(f"v_mov_b32 v14, {L_RED+512}")
        for w in range(4): a(f"ds_read_b64 {vr(MLr+2*w,2)}, v14 offset:{w*RSTR}")
        self.red_final_read(G)
        a("s_waitcnt lgkmcnt(4)")
        M = 40
        a(f"v_max3_f32 v{M}, v{MLr}, v{MLr+2}, v{MLr+4}"); a(f"v_max_f32 v{M}, v{M}, v{MLr+6}")
        for w in range(4): a(f"v_sub_f32 v{MLr+2*w}, v{MLr+2*w}, v{M}")
        for w in range(4): a(f"v_exp_f32 v{MLr+2*w}, v{MLr+2*w}")
        a(f"v_readfirstlane_b32 s{sA}, v{M}")
        a("s_waitcnt lgkmcnt(0)")
        for r in range(4): a(f"v_mul_f32 v{G+r}, v{MLr}, v{G+r}")
        for w in range(1, 4):
            for r in range(4): a(f"v_fmac_f32 v{G+r}, v{MLr+2*w}, v{G+4*w+r}")
        a(f"v_writelane_b32 v{G}, s{sA}, 32")
        self.tag([G, G+1, G+2, G+3])
        a("s_mov_b32 exec_hi, 1")
        self.local_stores([(G, vL16, sTmp[0], None)])
        a("s_mov_b32 exec_hi, -1")
        a.label(lf)
        self.stamp(7)

    def pv_dense(self, SB, Ab, Do):
        a = self.a
        LB = [16, 20, 24, 56]
        order = [(b, u) for b in range(10) for u in range(4)] + [(b, u) for b in range(10, 14) for u in range(4)] + [(b, u) for b in (14, 15) for u in range(4)]
        def build(kk):
            b, u = order[kk]; A = Ab + 4 * (kk % 2)
            for r in range(4):
                a(f"v_and_b32_dpp v{A+r}, v{SB+b}, v{vM[r]} row_newbcast:{4*u} {DPPALL}")
        def bop(kk):
            b, u = order[kk]
            if b < 10: return vr(VRES+16*b+4*u, 4)
            if b < 14: return vr(LB[u], 4)
            return vr(self.vtr_reg(b, u), 4)
        def ldsrd(b, u):
            a(f"ds_read_b128 {vr(LB[u],4)}, v15 offset:{((b-10)*4+u)*1024}")
        build(0); build(1)
        for kk in range(len(order)):
            b, u = order[kk]
            if (b, u) == (8, 0):
                self.stamp(17)
                a("s_waitcnt vmcnt(0)")
                self.stamp(18)
                for uu in range(4): ldsrd(10, uu)
            if 10 <= b < 14: a(f"s_waitcnt lgkmcnt(3)" if not (b == 13 and u > 0) else f"s_waitcnt lgkmcnt({3-u})")
            A = Ab + 4 * (kk % 2)
            c = "0" if kk == 0 else vr(Do, 4)
            a(f"v_mfma_f32_16x16x32_bf16 {vr(Do,4)}, {vr(A,4)}, {bop(kk)}, {c}")
            if 10 <= b < 13: ldsrd(b + 1, u)
            if kk + 2 < len(order): build(kk + 2)

    def pv_smf(self, SB, Ab, Do):
        a = self.a
        N0, N1, IDX = 56, 57, 58
        n = 14
        a(f"v_bfe_u32 v{n}, v{vL16}, 4, 4")
        a(f"v_and_b32 v{IDX}, 3, v{n}"); a(f"v_mul_u32_u24 v{IDX}, 0x1111, v{IDX}")
        a(f"v_lshrrev_b32 v{n}, 2, v{n}"); a(f"v_mov_b32 v59, 0xffff")
        a(f"v_cmp_eq_u32 vcc, 0, v{n}"); a(f"v_cndmask_b32 v{N0}, 0, v59, vcc")
        a(f"v_cmp_eq_u32 vcc, 1, v{n}"); a(f"v_cndmask_b32 v{N1}, 0, v59, vcc")
        for r in range(4): a(f"v_mov_b32 v{Do+r}, 0")
        order = [(b, s_) for b in range(16) for s_ in range(2)]
        LB = [16, 28]
        def build(kk):
            b, s_ = order[kk]; A = Ab + 4 * (kk % 2)
            a(f"v_and_b32_dpp v{A}, v{SB+b}, v{N0} row_newbcast:{8*s_} {DPPALL}")
            a(f"v_and_b32_dpp v{A+1}, v{SB+b}, v{N1} row_newbcast:{8*s_} {DPPALL}")
            a(f"v_and_b32_dpp v{A+2}, v{SB+b}, v{N0} row_newbcast:{8*s_+4} {DPPALL}")
            a(f"v_and_b32_dpp v{A+3}, v{SB+b}, v{N1} row_newbcast:{8*s_+4} {DPPALL}")
        def bop(kk):
            b, s_ = order[kk]
            if b < 10: return vr(VRES+16*b+8*s_, 8)
            if b < 14: return vr(LB[s_], 8)
            return vr(self.vtr_reg(b, 2*s_), 8)
        def ldsrd(b, s_):
            for hf in range(2):
                a(f"ds_read_b128 {vr(LB[s_]+4*hf,4)}, v15 offset:{((b-10)*4+2*s_+hf)*1024}")
        build(0); build(1)
        for kk in range(len(order)):
            b, s_ = order[kk]
            if (b, s_) == (8, 0):
                self.stamp(17)
                a("s_waitcnt vmcnt(0)")
                self.stamp(18)
                ldsrd(10, 0); ldsrd(10, 1)
            if 10 <= b < 14: a("s_waitcnt lgkmcnt(2)" if not (b == 13 and s_ == 1) else "s_waitcnt lgkmcnt(0)")
            A = Ab + 4 * (kk % 2)
            a(f"v_smfmac_f32_16x16x64_bf16 {vr(Do,4)}, {vr(A,4)}, {bop(kk)}, v{IDX}")
            if 10 <= b < 13: ldsrd(b + 1, s_)
            if kk + 2 < len(order): build(kk + 2)

    def opart(self):
        a = self.a
        G, ML = 16, 20
        a(f"v_lshrrev_b32 v14, 7, v{vL16}"); a(f"v_lshlrev_b32 v15, 10, v14")
        a(f"v_and_b32 v14, 0x70, v{vL16}"); a(f"v_add_u32 v14, v15, v14")
        a(f"s_lshl_b32 s{sTmp[0]}, s{sH}, 13"); a(f"s_add_u32 s{sTmp[0]}, s{sTmp[0]}, {O_ROW}")
        a(f"s_lshl_b32 s{sTmp[1]}, s{sW}, 7"); a(f"s_add_u32 s{sTmp[1]}, s{sTmp[1]}, s{sTmp[0]}")
        N0, N1, IDX = 60, 61, 62
        if self.opt1:
            a(f"v_lshrrev_b32 v59, 8, v{vL16}"); a(f"v_and_b32 v58, 1, v59"); a(f"v_lshrrev_b32 v59, 1, v59"); a(f"v_lshl_add_u32 v59, v58, 2, v59")
            a(f"v_mul_u32_u24 v59, 160, v59")
            self.smf_consts(N0, N1, IDX, 57)
        else:
            a(f"v_lshrrev_b32 v59, 8, v{vL16}"); a(f"v_mul_u32_u24 v59, 160, v59")
        a(f"v_and_b32 v58, 0xf0, v{vL16}"); a(f"v_add_u32 v59, v59, v58")
        a(f"s_mul_i32 s{sTmp[2]}, s{sW}, {WOSTR}"); a(f"s_add_u32 s{sTmp[2]}, s{sTmp[2]}, {L_R0}"); a(f"v_add_u32 v59, s{sTmp[2]}, v59")
        def coladdr():
            t = 63 if self.opt1 else 14
            u = 58 if self.opt1 else 15
            a(f"v_lshrrev_b32 v{t}, 4, v{vL16}"); a(f"v_mul_u32_u24 v{u}, 13108, v{t}"); a(f"v_lshrrev_b32 v{u}, 16, v{u}")
            a(f"v_mul_u32_u24 v{u-1 if self.opt1 else 24}, 5, v{u}"); a(f"v_sub_u32 v{t}, v{t}, v{u-1 if self.opt1 else 24}"); a(f"v_lshlrev_b32 v{t}, 4, v{t}"); a(f"v_lshl_add_u32 v{t}, v{u}, 7, v{t}")
            a(f"s_lshl_b32 s{sTmp[4]}, s{sJ}, 5"); a(f"s_add_u32 s{sTmp[4]}, s{sTmp[4]}, s{sH}"); a(f"s_lshl_b32 s{sTmp[4]}, s{sTmp[4]}, 9")
            a(f"s_add_u32 s{sTmp[4]}, s{sTmp[4]}, s{sCol}")
            return t
        if self.opt1: tcol = coladdr()
        def iss():
            a(f"buffer_load_dwordx4 {vr(ML,4)}, v15, {W}, s{sTmp[0]} offen offset:512 sc1")
            a(f"buffer_load_dwordx4 {vr(G,4)}, v14, {W}, s{sTmp[1]} offen sc1")
        self.poll(iss, [ML, G], site='row')
        self.stamp(8)
        self.tu()
        self.burst('O0')
        WB = 24
        for i in range(8):
            off = ((i >> 1) * 8 + (i & 1) * 2) * 160 if self.opt1 else i * 640
            a(f"ds_read_b128 {vr(WB+4*i,4)}, v59 offset:{off}")
        if self.pfnew and not (self.opt1 and self.latepf): self.next_w()
        self.combine8(G, ML, 56)
        Xp = 14
        a(f"v_cvt_pk_bf16_f32 v{Xp}, v{G}, v{G}")
        D, Ab = 56, 16
        a("s_waitcnt lgkmcnt(0)")
        if self.opt1:
            self.pv_gemv_smf(Xp, 4, lambda i: vr(WB+8*i, 8), D, Ab, N0, N1, IDX)
        else:
            self.pv_gemv(Xp, 8, lambda i: vr(WB+4*i, 4), D, Ab)
        self.red_write(D)
        if self.opt1:
            if self.pfnew and self.latepf: self.next_w()
        else:
            tcol = coladdr()
        self.tu()
        a("s_waitcnt lgkmcnt(0)"); a("s_barrier")
        lf = a.newlabel("ofin")
        a(f"s_cmp_lg_u32 s{sW}, 0"); a(f"s_cbranch_scc1 {lf}")
        self.red_final_read(G)
        a("s_waitcnt lgkmcnt(0)")
        self.sum4(G); self.tag([G, G+1, G+2, G+3])
        self.exec_set(0xfffff, 0)
        a(f"buffer_store_dwordx4 {vr(G,4)}, v{tcol}, {W}, s{sTmp[4]} offen sc1")
        self.exec_all()
        a.label(lf)
        self.stamp(9)
        if not self.pfnew: self.next_w()
        if self.skipfin:
            lk = a.newlabel("keep")
            a(f"s_cmp_lg_u32 s{sL}, {(self.stop or 4) - 1}"); a(f"s_cbranch_scc1 {lk}")
            a(f"s_cmp_lg_u32 s{sH}, 0"); a("s_cbranch_scc1 L_fin2")
            a.label(lk)
        if self.vsplit and not self.woqk:
            lb = a.newlabel("nowo")
            a(f"s_bitcmp1_b32 s{sL}, 0"); a(f"s_cbranch_scc1 {lb}")
            self.load_wo(pWoB)
            a.label(lb)
        a(f"v_lshrrev_b32 v14, 7, v{vL16}"); a(f"v_lshlrev_b32 v14, 9, v14")
        a(f"v_and_b32 v15, 0x70, v{vL16}"); a(f"v_add_u32 v14, v14, v15")
        a(f"s_lshl_b32 s{sTmp[0]}, s{sJ}, 14"); a(f"s_lshl_b32 s{sTmp[1]}, s{sW}, 7"); a(f"s_add_u32 s{sTmp[0]}, s{sTmp[0]}, s{sTmp[1]}")
        a(f"s_add_u32 s{sTmp[0]}, s{sTmp[0]}, s{sCol}")
        for i in range(1, 4): a(f"s_add_u32 s{sTmp[i]}, s{sTmp[0]}, {i*4096}")
        if self.opt1: self.prep_q()
        def issc():
            for i in range(4):
                a(f"buffer_load_dwordx4 {vr(G+4*i,4)}, v14, {W}, s{sTmp[i]} offen sc1")
        self.poll(issc, [G, G+4, G+8, G+12], execmask=(0x1f1f1f1f, 0x1f1f1f1f), site='col')
        self.stampval(28, sSpin); self.stampval(29, sPos)
        self.stamp(10)
        self.tu()
        self.burst('Q0')
        self.sum4(G)
        for r in range(4): a(f"v_add_f32_dpp v{G+r}, v{G+r}, v{G+r} row_ror:8 {DPPALL}")
        self.treduce([G, G+1, G+2, G+3])
        a(f"v_add_f32 v{G}, v{G}, v{vX}")
        a(f"v_cndmask_b32 v{vX}, 0, v{G}, s[{sM5}:{sM5+1}]")

    def second_w(self, lb=None):
        a = self.a
        lb = lb or a.newlabel("nouk")
        a(f"s_bitcmp1_b32 s{sL}, 0"); a(f"s_cbranch_scc1 {lb}")
        self.load_wuk()
        if self.vsplit:
            lc = a.newlabel("vtj")
            a(f"s_branch {lc}")
            a.label(lb)
            for k in range(4): self.vtr_one(k)
            a.label(lc)
        else:
            a.label(lb)

    def next_w(self):
        a = self.a
        lnp = a.newlabel("nopf"); lb = a.newlabel("nouk")
        a(f"s_cmp_eq_u32 s{sL}, 3"); a(f"s_cbranch_scc1 {lnp}")
        a(f"s_add_u32 s{sL}, s{sL}, 1")
        self.load_wq()
        if not self.split2: self.second_w(lb)
        a(f"s_sub_u32 s{sL}, s{sL}, 1")
        a.label(lnp)

    def epilogue(self):
        a = self.a
        le = a.newlabel("fin")
        a(f"s_cmp_lg_u32 s{sH}, 0"); a(f"s_cbranch_scc1 {le}")
        self.srd(SRD_B, pOut, 1280)
        a(f"v_lshrrev_b32 v14, 4, v{vL16}"); a(f"v_and_b32 v15, 15, v14"); a(f"v_lshrrev_b32 v14, 4, v14")
        a(f"v_lshl_add_u32 v14, v15, 2, v14")
        a(f"s_mul_i32 s{sTmp[0]}, s{sJ}, 80"); a(f"s_mul_i32 s{sTmp[1]}, s{sW}, 20"); a(f"s_add_u32 s{sTmp[0]}, s{sTmp[0]}, s{sTmp[1]}")
        a(f"v_add_u32 v14, s{sTmp[0]}, v14"); a(f"v_lshlrev_b32 v14, 1, v14")
        a(f"v_cvt_pk_bf16_f32 v15, v{vX}, v{vX}")
        a(f"s_mov_b64 exec, s[{sM5}:{sM5+1}]")
        a(f"buffer_store_short v15, v14, s[{SRD_B}:{SRD_B+3}], 0 offen")
        self.exec_all()
        a(f"s_cmp_lg_u32 s2, 0"); a(f"s_cbranch_scc1 {le}")
        a(f"s_cmp_lg_u32 s{sW}, 0"); a(f"s_cbranch_scc1 {le}")
        a(f"v_mov_b32 v14, 0")
        a("s_mov_b64 exec, 1")
        a(f"buffer_store_dword v{vT}, v14, {W}, 0 offen sc1")
        self.exec_all()
        a.label(le)
        a.label("L_fin2")
        l2 = a.newlabel("noerr")
        a(f"s_cmp_eq_u32 s{sErr}, 0"); a(f"s_cbranch_scc1 {l2}")
        self.srd(SRD_B, sDbg, 256)
        a(f"v_mov_b32 v14, 0"); a(f"v_mov_b32 v15, 0xdead")
        a("s_mov_b64 exec, 1")
        a(f"buffer_store_dword v15, v14, s[{SRD_B}:{SRD_B+3}], 0 offen")
        self.exec_all()
        a.label(l2)

    def build(self):
        a = self.a
        self.prologue()
        a.label("L_layer")
        self.qpart()
        a(f"s_bitcmp1_b32 s{sL}, 0"); a(f"s_cbranch_scc1 L_bmid")
        self.amiddle()
        a(f"s_branch L_opart")
        a.label("L_bmid")
        self.bmiddle()
        a.label("L_opart")
        self.opart()
        self.stamp(11)
        for L_ in range(4): self.dbgstamp(f"end{L_}", L_)
        a(f"s_add_u32 s{sL}, s{sL}, 1"); a(f"s_xor_b32 s{sCol}, s{sCol}, 0x20000")
        nl = self.stop if self.stop else 4
        a(f"s_cmp_ge_u32 s{sL}, {nl}"); a("s_cbranch_scc1 L_done")
        self.next_tag()
        a("s_branch L_layer")
        a.label("L_done")
        self.epilogue()
        if self.stamps:
            a(f"s_mov_b32 s{sL}, 3")
            self.stamp(13)
        a("s_waitcnt vmcnt(0)")
        a.label("L_end")
        a("s_endpgm")
        self.dw_sub()
        self.stream()
        a.label("L_codeend")
        return fix(a.lines)

HEADER = open("interleave_layers__compressed_kv_cla__mha_block_cached__decode.s.ref").read().split("; Override launch")[0]

def make(path, **kw):
    body = "\n".join(Gen(**kw).build())
    src = f"""{HEADER}; @launch grid=(256,1,1) block=(256,1,1) lds={LDS_BYTES}
.amdgcn_target "amdgcn-amd-amdhsa--gfx950"
.text
.globl {KNAME}
.p2align 8
.type {KNAME},@function
{KNAME}:
{body}
.section .rodata,"a"
.p2align 6
.amdhsa_kernel {KNAME}
  .amdhsa_next_free_vgpr 512
  .amdhsa_next_free_sgpr 102
  .amdhsa_accum_offset 256
  .amdhsa_group_segment_fixed_size 0
  .amdhsa_kernarg_size 112
  .amdhsa_user_sgpr_count 2
  .amdhsa_user_sgpr_kernarg_segment_ptr 1
  .amdhsa_system_sgpr_workgroup_id_x 1
  .amdhsa_float_denorm_mode_32 3
.end_amdhsa_kernel
"""
    open(path, "w").write(src)

if __name__ == "__main__":
    import argparse
    ap = argparse.ArgumentParser()
    ap.add_argument("-o", default="k.s"); ap.add_argument("--opts", default="")
    x = ap.parse_args()
    kw = {}
    for o in filter(None, x.opts.split(";")):
        k_, v_ = o.split("="); kw[k_] = eval(v_)
    make(x.o, **kw)
```

```python
import sys, struct
from hazard import fix

KNAME = "interleave_layers__compressed_kv_cla__mha_block_cached__decode_kernel"

class Asm:
    def __init__(self): self.lines = []; self.n = 0
    def __call__(self, s):
        for l in s.split("\n"):
            l = l.strip()
            if l: self.lines.append(l)
    def label(self, name): self.lines.append(name + ":")
    def c(self, text):
        for l in text.strip().split("\n"): self.lines.append("; " + l.strip())
    def newlabel(self, base="L"):
        self.n += 1; return f"{base}_{self.n}"

def vr(b, n=1): return f"v{b}" if n == 1 else f"v[{b}:{b+n-1}]"
def ar(b, n=1): return f"a{b}" if n == 1 else f"a[{b}:{b+n-1}]"
DPPALL = "row_mask:0xf bank_mask:0xf"
def f32hex(x): return "0x%08x" % struct.unpack("<I", struct.pack("<f", x))[0]

O_XCC  = 0x001000
O_STAMP = 0x080000
O_QP   = 0x100000
O_ROW  = 0x180000
O_COL  = 0x1C0000
O_QABS = 0x200000
O_ML1  = 0x210000
O_C2   = 0x240000
O_ML2  = 0x2C0000
O_C1   = 0x300000

L_VL  = 0
L_CKV = 65536
L_R0  = 131072
WOSTR = 5184
L_ST  = 151808
L_RED = 156160
RSTR  = 1056
L_U   = 160384
LDS_BYTES = 163840

sH, sJ, sW, sL, sAct = 3, 4, 5, 6, 7
SRD_WS, SRD_K, SRD_V, SRD_A, SRD_B = 8, 12, 16, 20, 24
sSPC, sRET = 28, 30
sT = [32, 33, 34, 35]
sSel = [36, 37, 38, 39]
pWqA, pWqB, pWuk, pWuv, pWoA, pWoB, pCkv, pOut, pX = 40, 42, 44, 46, 48, 50, 52, 54, 56
sCol = 58
sGA, sS = 59, 60
sSO = 61
sSpin = 62
sPos = 63
sFF = 64
sTmp = list(range(65, 70))
sMask = [76, 78, 80, 82]
sM5 = 84
sDbg = 86
sErr = 88
sLocal = 89
sA, sB_ = 90, 91
sTs = 92
sXG, sI, sSc, sXcc = 98, 99, 100, 101
sTf = 97
sDW, sRET2, sYoung, sVm, sVm2, sDl = 70, 72, 74, 75, 94, 95
sBud = 57
sC1 = 56
sCap = 0

vL16, vM, vT, vX, vWoff, vKoff, vVoff, vRedW = 0, [1, 2, 3, 4], 5, 6, 7, 8, 9, 10
vT0 = 11
vCk = 11
vWo = 13
WQ, WUK, WUV, VTR, VRES = 76, 60, 80, 64, 96
AT = 44

SC = (128 ** -0.5) * 1.4426950408889634
SPIN_MAX = 1 << 16
W = f"s[{SRD_WS}:{SRD_WS+3}]"

class Gen:
    def __init__(self, kblk=8, stream_mode="co", stop_after=None, local=True, stamps="", pol="nt", wpol="", cpol="", codepf=True,
                 qkcalls=(4, 10), sent=True, nopf=False, once=True, xcalls=(), dlim=6, keep=6, addn=True, pretouch=True, mlsent=True, slp=0, sent1=False, pfnew=True, mltail=True, dsite=None, pre=None, rsl=None, dq=None, dbg=None, bud=None, skipfin=True, vsplit=True, woqk=True, split2=True, c1touch=True, c1sc1=False, c1touch2=None, smf=True, cap=None, pre1=None, burst=None, c1bf=True, opt1=True, latepf=False, tus=0, tusl=0, ack=None, ack1=None, ackL=None, vtrpol=None, opt2=True):
        self.opt2 = opt2
        self.ackL = ackL or {}; self.vtrpol = vtrpol
        self.ack1 = ack1 or ()
        self.ack = ack or ()
        self.tus = tus; self.tusl = tusl
        self.latepf = latepf
        self.opt1 = opt1
        self.c1bf = c1bf
        self.burstn = burst or {}
        self.pre1 = pre1
        self.cap = cap
        self.smf = smf
        self.c1touch = c1touch; self.c1sc1 = c1sc1; self.c1touch2 = c1touch2
        self.split2 = split2
        self.woqk = woqk
        self.skipfin = skipfin; self.vsplit = vsplit
        self.bud = bud
        self.dbg = dbg
        self.pre = pre or {}; self.rsl = rsl or {}; self.dq = dq
        self.pfnew = pfnew; self.mltail = mltail; self.dsite = dsite or {}
        self.slp = slp; self.sent1 = sent1
        self.addn = addn; self.pretouch = pretouch; self.mlsent = mlsent
        self.once = once; self.xcalls = xcalls; self.dlim = dlim; self.keep = keep
        self.nopf = nopf
        self.a = Asm(); self.kblk = kblk; self.mode = stream_mode; self.stop = stop_after
        self.local = local; self.stamps = stamps; self.pol = pol; self.wpol = wpol; self.cpol = cpol; self.codepf = codepf
        self.qkcalls = qkcalls; self.sent = sent

    def capture(self, fn):
        saved = self.a.lines; self.a.lines = []
        fn()
        out = self.a.lines; self.a.lines = saved
        return out
    def emit(self, lines):
        self.a.lines.extend(lines)
    def srd(self, s, lo, nbytes):
        a = self.a
        a(f"s_mov_b32 s{s}, s{lo}"); a(f"s_mov_b32 s{s+1}, s{lo+1}")
        a(f"s_mov_b32 s{s+2}, {nbytes:#x}"); a(f"s_mov_b32 s{s+3}, 0x20000")
    def exec_all(self): self.a("s_mov_b64 exec, -1")
    def exec_set(self, lo, hi):
        self.a(f"s_mov_b32 exec_lo, {lo:#x}"); self.a(f"s_mov_b32 exec_hi, {hi:#x}")
    def tag(self, regs):
        for i, r in enumerate(regs):
            self.a(f"v_perm_b32 v{r}, v{r}, v{vT}, s{sSel[i%4]}")
    def stamp(self, idx):
        if not self.stamps: return
        if self.stamps == "light" and idx not in (12, 13, 5): return
        a = self.a
        lab = a.newlabel("st")
        a(f"s_cmp_lg_u32 s{sW}, 0"); a(f"s_cbranch_scc1 {lab}")
        a(f"s_memrealtime s[{sTs}:{sTs+1}]")
        a("s_waitcnt lgkmcnt(0)")
        a(f"s_lshl_b32 s96, s2, 2"); a(f"s_add_u32 s96, s96, s{sL}"); a(f"s_lshl_b32 s96, s96, 7")
        a(f"s_add_u32 s96, s96, {O_STAMP + idx*4}")
        a(f"v_mov_b32 v{vT0}, s{sTs}")
        a(f"s_mov_b64 s[{sTs}:{sTs+1}], exec"); a("s_mov_b64 exec, 1")
        a(f"buffer_store_dword v{vT0}, off, {W}, s96")
        a(f"s_mov_b64 exec, s[{sTs}:{sTs+1}]")
        a.label(lab)
    def dbgstamp(self, k, cond_layer=None):
        if not self.dbg or k not in self.dbg: return
        a = self.a
        k = self.dbg.index(k)
        lab = a.newlabel("db")
        a(f"s_cmp_lg_u32 s{sW}, 0"); a(f"s_cbranch_scc1 {lab}")
        a(f"s_cmp_ge_u32 s2, 8"); a(f"s_cbranch_scc1 {lab}")
        if cond_layer is not None:
            a(f"s_cmp_lg_u32 s{sL}, {cond_layer}"); a(f"s_cbranch_scc1 {lab}")
        a(f"s_memrealtime s[{sTs}:{sTs+1}]")
        a("s_waitcnt lgkmcnt(0)")
        a(f"s_mov_b32 s{SRD_A}, s{sDbg}"); a(f"s_mov_b32 s{SRD_A+1}, s{sDbg+1}"); a(f"s_mov_b32 s{SRD_A+2}, 256"); a(f"s_mov_b32 s{SRD_A+3}, 0x20000")
        a(f"s_lshl_b32 s96, s2, 3"); a(f"s_add_u32 s96, s96, {4*k}")
        a(f"v_mov_b32 v{vT0}, s{sTs}")
        a(f"s_mov_b64 s[{sTs}:{sTs+1}], exec"); a("s_mov_b64 exec, 1")
        a(f"buffer_store_dword v{vT0}, off, s[{SRD_A}:{SRD_A+3}], s96")
        a(f"s_mov_b64 exec, s[{sTs}:{sTs+1}]")
        a.label(lab)
    def stampval(self, idx, sreg):
        if self.stamps != "full": return
        a = self.a
        lab = a.newlabel("sv")
        a(f"s_cmp_lg_u32 s{sW}, 0"); a(f"s_cbranch_scc1 {lab}")
        a(f"s_lshl_b32 s96, s2, 2"); a(f"s_add_u32 s96, s96, s{sL}"); a(f"s_lshl_b32 s96, s96, 7")
        a(f"s_add_u32 s96, s96, {O_STAMP + idx*4}")
        a(f"v_mov_b32 v{vT0}, s{sreg}")
        a(f"s_mov_b64 s[{sTs}:{sTs+1}], exec"); a("s_mov_b64 exec, 1")
        a(f"buffer_store_dword v{vT0}, off, {W}, s96")
        a(f"s_mov_b64 exec, s[{sTs}:{sTs+1}]")
        a.label(lab)
    def stream_call(self):
        self.a(f"s_swappc_b64 s[{sRET}:{sRET+1}], s[{sSPC}:{sSPC+1}]")
    def maybe_stream(self):
        a = self.a
        lab = a.newlabel("ns")
        a(f"s_cmp_eq_u32 s{sAct}, 0"); a(f"s_cbranch_scc1 {lab}")
        self.stream_call()
        a.label(lab)
    def read_vm(self):
        a = self.a
        a(f"s_getreg_b32 s{sVm}, hwreg(HW_REG_IB_STS)")
        a(f"s_bfe_u32 s{sVm2}, s{sVm}, 0x20016"); a(f"s_and_b32 s{sVm}, s{sVm}, 15")
        a(f"s_lshl4_add_u32 s{sVm}, s{sVm2}, s{sVm}")
    def dw_sub(self):
        a = self.a
        a.c("==== dynamic wait: returns once all but the s74 youngest vector-memory operations are complete; keeps the K/V stream going meanwhile ====")
        a.label("L_dw")
        self.read_vm()
        a(f"s_cmp_le_u32 s{sVm}, s{sYoung}"); a("s_cbranch_scc1 L_dwret")
        a(f"s_cmp_ge_u32 s{sVm}, s{sDl}"); a("s_cbranch_scc1 L_dw")
        a(f"s_cmp_eq_u32 s{sAct}, 0"); a("s_cbranch_scc1 L_dw")
        if self.cap is not None:
            a(f"s_cmp_ge_u32 s{sPos}, s{sCap}"); a("s_cbranch_scc1 L_dw")
        if self.bud is not None:
            a(f"s_cmp_le_i32 s{sBud}, 0"); a("s_cbranch_scc1 L_dw")
            a(f"s_sub_u32 s{sBud}, s{sBud}, {self.kblk}")
        self.stream_call()
        a(f"s_add_u32 s{sYoung}, s{sYoung}, {self.kblk}")
        a("s_branch L_dw")
        a.label("L_dwret")
        a(f"s_setpc_b64 s[{sRET2}:{sRET2+1}]")
    def dwait(self, young, n=0, site=None):
        dl = self.dsite.get(site, self.dlim)
        a = self.a
        if self.mode != "co":
            a(f"s_waitcnt vmcnt({young})"); return
        ns = a.newlabel("dwn"); jn = a.newlabel("dwj")
        a(f"s_cmp_eq_u32 s{sAct}, 0"); a(f"s_cbranch_scc1 {ns}")
        a(f"s_mov_b32 s{sYoung}, {young}"); a(f"s_mov_b32 s{sDl}, {dl + n if dl else 0}")
        if self.cap is not None: a(f"s_mov_b32 s{sCap}, {self.cap.get(site, 999)}")
        a(f"s_swappc_b64 s[{sRET2}:{sRET2+1}], s[{sDW}:{sDW+1}]")
        a(f"s_branch {jn}")
        a.label(ns)
        a(f"s_waitcnt vmcnt({young})")
        a.label(jn)
    def tu(self):
        if self.tus: self.topup(self.tus, site='tu')
    def burst(self, site):
        n = self.burstn.get(site, 0)
        if self.mode != "co" or not n: return
        a = self.a
        lab = a.newlabel("bu")
        for i in range(n // self.kblk):
            a(f"s_cmp_eq_u32 s{sAct}, 0"); a(f"s_cbranch_scc1 {lab}")
            self.stream_call()
        a.label(lab)
    def topup(self, depth=None, site=None):
        if self.mode != "co": return
        depth = self.dlim if depth is None else depth
        capv = self.cap.get(site) if self.cap else None
        a = self.a
        lab = a.newlabel("tu")
        a(f"s_cmp_eq_u32 s{sAct}, 0"); a(f"s_cbranch_scc1 {lab}")
        self.read_vm()
        a(f"s_cmp_ge_u32 s{sVm}, {depth}"); a(f"s_cbranch_scc1 {lab}")
        if capv: a(f"s_cmp_ge_u32 s{sPos}, {capv}"); a(f"s_cbranch_scc1 {lab}")
        self.stream_call()
        a.label(lab)
    def drain(self, keep):
        a = self.a
        l0 = a.newlabel("drain"); l1 = a.newlabel("drained")
        a.label(l0)
        a(f"s_cmp_eq_u32 s{sAct}, 0"); a(f"s_cbranch_scc1 {l1}")
        self.stream_call()
        a(f"s_waitcnt vmcnt({keep})")
        a(f"s_branch {l0}")
        a.label(l1)

    def predelay(self, site):
        a = self.a
        if site in self.ack:
            if site in ('col', 'row', 'q0', 'q1', 'q2'):
                self.dwait(0, 0, site); a("s_barrier")
            else:
                self.dwait(0, 0, site)
            return
        p0 = self.pre.get(site, 0)
        if site in self.ack1:
            def ackw():
                self.dwait(0, 0, site)
                if site in ('col', 'row', 'q0', 'q1', 'q2'): a("s_barrier")
            if site in ('q0', 'q1'):
                ackw(); return
            if site == 'q2':
                if p0: a(f"s_sleep {p0}")
                return
            l0 = a.newlabel("pd"); l1 = a.newlabel("pd")
            a(f"s_cmp_ge_u32 s{sL}, {self.ackL.get(site, 2)}"); a(f"s_cbranch_scc1 {l0}")
            ackw()
            a(f"s_branch {l1}")
            a.label(l0)
            if site == 'col' and 'colf' in self.pre:
                l2 = a.newlabel("pd")
                a(f"s_cmp_lg_u32 s{sL}, {(self.stop or 4) - 1}"); a(f"s_cbranch_scc1 {l2}")
                if self.pre['colf']: a(f"s_sleep {self.pre['colf']}")
                a(f"s_branch {l1}")
                a.label(l2)
            if p0: a(f"s_sleep {p0}")
            a.label(l1)
            return
        p1 = self.pre1.get(site, p0) if self.pre1 is not None else p0
        if p0 == p1:
            if p0: a(f"s_sleep {p0}")
            return
        l0 = a.newlabel("pd"); l1 = a.newlabel("pd")
        a(f"s_cmp_ge_u32 s{sL}, 2"); a(f"s_cbranch_scc1 {l0}")
        if p1 and self.tusl:
            n = max(1, p1 // self.tusl)
            for _ in range(n):
                self.tu(); a(f"s_sleep {self.tusl}")
        elif p1: a(f"s_sleep {p1}")
        a(f"s_branch {l1}")
        a.label(l0)
        if p0: a(f"s_sleep {p0}")
        a.label(l1)

    def poll(self, issue, regs, execmask=None, stream=True, site=None):
        a = self.a
        lp = a.newlabel("poll"); ns = a.newlabel("pns"); jn = a.newlabel("pj"); dn = a.newlabel("pdone")
        a(f"s_mov_b32 s{sSpin}, 0")
        if self.bud is not None: a(f"s_mov_b32 s{sBud}, {self.bud.get(site, self.bud.get('*', 8))}")
        self.predelay(site)
        if execmask: self.exec_set(*execmask)
        a.label(lp)
        issue()
        if execmask and self.mode == "co": self.exec_all()
        self.dwait(0, len(regs) if self.addn else 0, site)
        if execmask and self.mode == "co": self.exec_set(*execmask)
        a.label(jn)
        acc, acc2 = vT0, vT0 + 1
        dw = [g + i for g in regs for i in range(4)]
        for k, r in enumerate(dw): a(f"v_xor_b32 v{r}, s{sT[k % 4]}, v{r}")
        a(f"v_or3_b32 v{acc}, v{dw[0]}, v{dw[1]}, v{dw[2]}")
        if len(dw) == 4:
            a(f"v_or_b32 v{acc}, v{acc}, v{dw[3]}")
        else:
            a(f"v_or3_b32 v{acc2}, v{dw[3]}, v{dw[4]}, v{dw[5]}")
            k = 6; tog = 0
            while k < len(dw):
                tgt = acc if tog == 0 else acc2
                a(f"v_or3_b32 v{tgt}, v{tgt}, v{dw[k]}, v{dw[k+1]}"); k += 2
                tog ^= 1
            a(f"v_or_b32 v{acc}, v{acc}, v{acc2}")
        a(f"v_and_b32 v{acc}, s{sFF}, v{acc}")
        a(f"v_cmp_ne_u32 vcc, 0, v{acc}")
        a(f"s_cbranch_vccz {dn}")
        if self.rsl.get(site): a(f"s_sleep {self.rsl[site]}")
        if self.slp:
            lz = a.newlabel("nsl")
            a(f"s_cmp_eq_u32 s{sAct}, 0"); a(f"s_cbranch_scc1 {lz}")
            a(f"s_sleep {self.slp}")
            a.label(lz)
        a(f"s_add_u32 s{sSpin}, s{sSpin}, 1")
        a(f"s_cmp_lt_u32 s{sSpin}, {SPIN_MAX}")
        a(f"s_cbranch_scc1 {lp}")
        a(f"s_mov_b32 s{sErr}, 1")
        a.label(dn)
        if execmask: self.exec_all()

    def dpp_steps(self, regs, op, steps):
        for d in steps:
            for r in regs:
                if d == "b15": self.a(f"{op}_dpp v{r}, v{r}, v{r} row_bcast:15 row_mask:0xa bank_mask:0xf")
                elif d == "b31": self.a(f"{op}_dpp v{r}, v{r}, v{r} row_bcast:31 row_mask:0xc bank_mask:0xf")
                else: self.a(f"{op}_dpp v{r}, v{r}, v{r} {d} {DPPALL}")
    X1, X2, HM, RM = "quad_perm:[1,0,3,2]", "quad_perm:[2,3,0,1]", "row_half_mirror", "row_mirror"
    def reduce63(self, regs, op):
        self.dpp_steps(regs, op, [self.X1, self.X2, self.HM, self.RM, "b15", "b31"])

    def treduce(self, r):
        a = self.a
        a(f"v_permlane32_swap_b32 v{r[0]}, v{r[2]}")
        a(f"v_permlane32_swap_b32 v{r[1]}, v{r[3]}")
        a(f"v_add_f32 v{r[0]}, v{r[0]}, v{r[2]}")
        a(f"v_add_f32 v{r[1]}, v{r[1]}, v{r[3]}")
        a(f"v_permlane16_swap_b32 v{r[0]}, v{r[1]}")
        a(f"v_add_f32 v{r[0]}, v{r[0]}, v{r[1]}")

    def pv_gemv(self, Xp, nload, bop, D, Abuf):
        a = self.a
        def build(i):
            A = Abuf + 4 * (i % 2)
            for r in range(4):
                a(f"v_and_b32_dpp v{A+r}, v{Xp}, v{vM[r]} row_newbcast:{i} {DPPALL}")
        build(0)
        if nload > 1: build(1)
        for i in range(nload):
            A = Abuf + 4 * (i % 2)
            c = "0" if i == 0 else vr(D, 4)
            a(f"v_mfma_f32_16x16x32_bf16 {vr(D,4)}, {vr(A,4)}, {bop(i)}, {c}")
            if i + 2 < nload: build(i + 2)

    def smf_consts(self, N0, N1, IDX, t):
        a = self.a
        a(f"v_bfe_u32 v{t}, v{vL16}, 4, 4")
        a(f"v_and_b32 v{IDX}, 3, v{t}"); a(f"v_mul_u32_u24 v{IDX}, 0x1111, v{IDX}")
        a(f"v_lshrrev_b32 v{t}, 2, v{t}")
        a(f"v_cmp_eq_u32 vcc, 0, v{t}"); a(f"v_mov_b32 v{N1}, 0xffff"); a(f"v_cndmask_b32 v{N0}, 0, v{N1}, vcc")
        a(f"v_cmp_eq_u32 vcc, 1, v{t}"); a(f"v_cndmask_b32 v{N1}, 0, v{N1}, vcc")
    def pv_gemv_smf(self, Xp, npair, bop, D, Abuf, N0, N1, IDX):
        a = self.a
        def build(i):
            A = Abuf + 4 * (i % 2)
            a(f"v_and_b32_dpp v{A}, v{Xp}, v{N0} row_newbcast:{2*i} {DPPALL}")
            a(f"v_and_b32_dpp v{A+1}, v{Xp}, v{N1} row_newbcast:{2*i} {DPPALL}")
            a(f"v_and_b32_dpp v{A+2}, v{Xp}, v{N0} row_newbcast:{2*i+1} {DPPALL}")
            a(f"v_and_b32_dpp v{A+3}, v{Xp}, v{N1} row_newbcast:{2*i+1} {DPPALL}")
        for r in range(4): a(f"v_mov_b32 v{D+r}, 0")
        build(0)
        if npair > 1: build(1)
        for i in range(npair):
            A = Abuf + 4 * (i % 2)
            a(f"v_smfmac_f32_16x16x64_bf16 {vr(D,4)}, {vr(A,4)}, {bop(i)}, v{IDX}")
            if i + 2 < npair: build(i + 2)

    def red_write(self, D, off=0):
        a = self.a
        a("s_mov_b32 exec_hi, 1")
        a(f"ds_write_b128 v{vRedW}, {vr(D,4)} offset:{off}")
        a("s_mov_b32 exec_hi, -1")
    def red_final_read(self, G, off=0):
        a = self.a
        a(f"v_add_u32 v{vT0}, {L_RED}, v{vL16}")
        for w in range(4):
            a(f"ds_read_b128 {vr(G+4*w,4)}, v{vT0} offset:{w*RSTR+off}")
    def sum4(self, G):
        a = self.a
        for r in range(4):
            a(f"v_add_f32 v{G+r}, v{G+r}, v{G+4+r}")
            a(f"v_add_f32 v{G+8+r}, v{G+8+r}, v{G+12+r}")
        for r in range(4):
            a(f"v_add_f32 v{G+r}, v{G+r}, v{G+8+r}")

    def local_stores(self, items):
        a = self.a
        def emit(flag):
            for (data, vaddr, soff, pre) in items:
                if pre: pre()
                a(f"buffer_store_dwordx4 {vr(data,4)}, v{vaddr}, {W}, s{soff} offen {flag}")
        if self.local:
            l0 = a.newlabel("ls"); l1 = a.newlabel("ls")
            a(f"s_cmp_eq_u32 s{sLocal}, 0"); a(f"s_cbranch_scc1 {l0}")
            emit("")
            a(f"s_branch {l1}")
            a.label(l0)
            emit("sc1")
            a.label(l1)
        else:
            emit("sc1")

    def next_tag(self):
        a = self.a
        a(f"s_mul_i32 s{sTf}, s{sTf}, 0x9E3779B1"); a(f"s_add_u32 s{sTf}, s{sTf}, 0x7F4A7C15")
        a(f"v_mov_b32 v{vT}, s{sTf}")
        a(f"s_and_b32 s{sT[0]}, s{sTf}, 0xff"); a(f"s_bfe_u32 s{sT[1]}, s{sTf}, 0x80008")
        a(f"s_bfe_u32 s{sT[2]}, s{sTf}, 0x80010"); a(f"s_lshr_b32 s{sT[3]}, s{sTf}, 24")

    def pf_guard(self, fn, lmin=2):
        if not self.nopf: return fn()
        a = self.a; l = a.newlabel("npf")
        a(f"s_cmp_ge_u32 s{sL}, {lmin}"); a(f"s_cbranch_scc1 {l}")
        fn()
        a.label(l)
    def load_wq(self):
        self.pf_guard(self.load_wq_)
    def load_wq_(self):
        a = self.a
        l0 = a.newlabel("wq"); l1 = a.newlabel("wq")
        a(f"s_bitcmp1_b32 s{sL}, 0"); a(f"s_cbranch_scc1 {l0}")
        a(f"s_mov_b32 s{SRD_A}, s{pWqA}"); a(f"s_mov_b32 s{SRD_A+1}, s{pWqA+1}"); a(f"s_branch {l1}")
        a.label(l0)
        a(f"s_mov_b32 s{SRD_A}, s{pWqB}"); a(f"s_mov_b32 s{SRD_A+1}, s{pWqB+1}")
        a.label(l1)
        a(f"s_mov_b32 s{SRD_A+2}, {19*8192+256}"); a(f"s_mov_b32 s{SRD_A+3}, 0x20000")
        for i in range(5):
            a(f"s_mov_b32 s{sTmp[0]}, {i*32768}")
            a(f"buffer_load_dwordx4 {vr(WQ+4*i,4)}, v{vWoff}, s[{SRD_A}:{SRD_A+3}], s{sTmp[0]} offen {self.wpol}")
    def load_wuk(self):
        self.pf_guard(self.load_wuk_)
    def load_wuk_(self):
        a = self.a
        self.srd(SRD_A, pWuk, 15*8192+256)
        t = vT0
        a(f"v_lshrrev_b32 v{t}, 8, v{vKoff}"); a(f"v_lshlrev_b32 v{t}, 13, v{t}")
        a(f"v_and_b32 v{t+1}, s{sFF}, v{vKoff}"); a(f"v_or_b32 v{t}, v{t}, v{t+1}")
        for i in range(4):
            a(f"s_mov_b32 s{sTmp[0]}, {i*32768}")
            a(f"buffer_load_dwordx4 {vr(WUK+4*i,4)}, v{t}, s[{SRD_A}:{SRD_A+3}], s{sTmp[0]} offen {self.wpol}")
    def load_wuv(self):
        self.pf_guard(self.load_wuv_)
    def load_wuv_(self):
        a = self.a
        self.srd(SRD_A, pWuv, 15*8192+256)
        for i in range(4):
            a(f"s_mov_b32 s{sTmp[0]}, {i*32768}")
            a(f"buffer_load_dwordx4 {vr(WUV+4*i,4)}, v{vWoff}, s[{SRD_A}:{SRD_A+3}], s{sTmp[0]} offen {self.wpol}")
    def wo_setup(self, p):
        a = self.a
        self.srd(SRD_A, p, 31*1280+160)
        a(f"s_mul_i32 s{sTmp[1]}, s{sW}, {WOSTR}"); a(f"s_add_u32 s{sTmp[1]}, s{sTmp[1]}, {L_R0}")
    def wo_one(self, i):
        a = self.a
        r0 = 6 * i if i < 5 else 26
        a(f"s_add_u32 m0, s{sTmp[1]}, {r0*160}")
        a(f"s_mov_b32 s{sTmp[0]}, {r0*1280}")
        a(f"buffer_load_dwordx4 v{vWo}, s[{SRD_A}:{SRD_A+3}], s{sTmp[0]} offen {self.wpol} lds")
    def load_wo(self, p):
        def f():
            self.wo_setup(p)
            for i in range(6): self.wo_one(i)
        self.pf_guard(f)
    def ckv_one(self, kk):
        a = self.a
        f = (kk & 8) | ((kk & 3) << 1) | ((kk >> 2) & 1)
        a(f"v_xor_b32 v{vCk}, {f*16}, v{vL16}")
        a(f"s_lshl_b32 s{sSO}, s{sW}, 14"); a(f"s_add_u32 m0, s{sSO}, {L_CKV + kk*1024}")
        a(f"s_mov_b32 s{sSO}, {kk*1024}")
        a(f"buffer_load_dwordx4 v{vCk}, s[{SRD_B}:{SRD_B+3}], s{sSO} offen {self.cpol} lds")
    def voff(self, u):
        return (u & 1) * 2048 + (u >> 1) * 512 if self.smf else u * 256
    def vtr_reg(self, b, u):
        if self.vsplit: return (60 if b == 14 else 80) + 4 * u
        return VTR + (b - 14) * 16 + 4 * u
    def vtr_one(self, k):
        a = self.a
        b, u = 14 + (k >> 2), k & 3
        if u == 0: a(f"s_mov_b32 s{sTmp[2]}, {b*4096}")
        a(f"buffer_load_dwordx4 {vr(self.vtr_reg(b, u),4)}, v{vVoff}, s[{SRD_V}:{SRD_V+3}], s{sTmp[2]} offen offset:{self.voff(u)} {self.pol if self.vtrpol is None else self.vtrpol}")

    def prologue(self):
        a = self.a
        a.c("==== prologue: workgroups past the 256 that carry work leave at once ====")
        a("s_cmp_ge_u32 s2, 256"); a("s_cbranch_scc1 L_end")
        a("s_load_dwordx4 s[64:67], s[0:1], 0")
        a("s_load_dwordx4 s[68:71], s[0:1], 16")
        a("s_load_dwordx4 s[72:75], s[0:1], 32")
        a("s_load_dwordx4 s[76:79], s[0:1], 56")
        a("s_load_dwordx4 s[80:83], s[0:1], 72")
        a("s_load_dwordx4 s[84:87], s[0:1], 88")
        a("s_load_dwordx2 s[8:9], s[0:1], 104")
        a(f"v_lshrrev_b32 v20, 6, v0")
        a(f"v_and_b32 v21, 63, v0")
        a(f"v_readfirstlane_b32 s{sW}, v20")
        a(f"s_and_b32 s{sH}, s2, 31"); a(f"s_lshr_b32 s{sJ}, s2, 5")
        a(f"s_and_b32 s{sXG}, s2, 7"); a(f"s_lshr_b32 s{sI}, s2, 3")
        a(f"s_and_b32 s{sGA}, s{sI}, 1")
        a(f"s_lshr_b32 s{sS}, s{sI}, 1"); a(f"s_lshl_b32 s92, s{sXG}, 4"); a(f"s_add_u32 s{sS}, s{sS}, s92")
        a(f"v_lshlrev_b32 v{vL16}, 4, v21")
        if self.codepf: a.c("wave 3 pulls this kernel's code into the L2 (plain data loads) so that first-time instruction fetches do not go to HBM")
        if self.codepf:
            lc = a.newlabel("cpf")
            a(f"s_cmp_lg_u32 s{sW}, 3"); a(f"s_cbranch_scc1 {lc}")
            a("s_getpc_b64 s[20:21]")
            a.label("L_pcx")
            a("s_mov_b32 s22, L_codeend-L_pcx"); a("s_mov_b32 s23, 0x20000")
            a("v_lshlrev_b32 v22, 6, v21")
            self.ncode = 7
            for i in range(self.ncode):
                a(f"s_mov_b32 s92, {i*4096}")
                a(f"buffer_load_dword v23, v22, s[20:23], s92 offen")
            a.label(lc)
        a("v_and_b32 v22, 15, v21")
        a("v_lshrrev_b32 v23, 4, v21") if not self.codepf else a("v_lshrrev_b32 v19, 4, v21")
        g = 23 if not self.codepf else 19
        a(f"v_lshlrev_b32 v24, 4, v22")
        a(f"v_lshl_add_u32 v{vWoff}, v{g}, 13, v24")
        if self.smf:
            a(f"v_lshrrev_b32 v25, 1, v{g}"); a(f"v_and_b32 v26, 1, v{g}"); a(f"v_lshl_add_u32 v25, v25, 2, v26")
            a(f"v_lshl_add_u32 v{vVoff}, v25, 8, v24")
        else:
            a(f"v_lshl_add_u32 v{vVoff}, v{g}, 10, v24")
        a(f"v_and_b32 v25, 3, v22"); a(f"v_lshl_add_u32 v25, v{g}, 2, v25"); a("v_lshlrev_b32 v25, 4, v25")
        a("v_lshrrev_b32 v26, 2, v22"); a(f"v_lshl_add_u32 v{vKoff}, v26, 8, v25")
        a("v_and_b32 v25, 1, v22"); a("v_cmp_eq_u32 vcc, 1, v25")
        a("v_mov_b32 v26, 0xffff"); a("v_mov_b32 v27, 0xffff0000"); a("v_cndmask_b32 v26, v26, v27, vcc")
        a("v_lshrrev_b32 v25, 1, v22")
        for r in range(4):
            a(f"v_cmp_eq_u32 vcc, {r}, v25"); a(f"v_cndmask_b32 v{vM[r]}, 0, v26, vcc")
        a(f"v_lshl_add_u32 v25, v22, 1, v{g}"); a("v_lshlrev_b32 v25, 4, v25")
        a("v_cmp_gt_u32 vcc, 32, v21"); a("v_mov_b32 v26, 512"); a("v_cndmask_b32 v25, v26, v25, vcc")
        a(f"s_mul_i32 s92, s{sW}, {RSTR}"); a(f"s_add_u32 s92, s92, {L_RED}"); a(f"v_add_u32 v{vRedW}, s92, v25")
        a(f"v_mul_u32_u24 v25, 6554, v21"); a(f"v_lshrrev_b32 v25, 16, v25")
        a(f"v_mul_u32_u24 v26, 10, v25"); a(f"v_sub_u32 v26, v21, v26")
        a(f"v_mul_u32_u24 v25, 1280, v25"); a(f"v_lshl_add_u32 v{vWo}, v26, 4, v25")
        a("s_waitcnt lgkmcnt(0)")
        a(f"s_mov_b32 s{SRD_WS+2}, 0x10000000"); a(f"s_mov_b32 s{SRD_WS+3}, 0x20000")
        if self.stamps:
            a(f"s_mov_b32 s{sL}, 0")
            self.stamp(12)
        self.dbgstamp("entry")
        a.c("epoch word of the workspace (only used to derive this launch's hand-off tags) and the residual slice x[80j + 20w + 4n + g]")
        a("v_mov_b32 v28, 0")
        a(f"buffer_load_dword v{vT}, v28, {W}, 0 offen sc1")
        a(f"s_mov_b32 s{pX}, s64"); a(f"s_mov_b32 s{pX+1}, s65")
        self.srd(SRD_B, pX, 1280)
        a(f"s_mul_i32 s92, s{sJ}, 80"); a(f"s_mul_i32 s93, s{sW}, 20"); a("s_add_u32 s92, s92, s93")
        a(f"v_lshl_add_u32 v25, v22, 2, v{g}"); a("v_add_u32 v25, s92, v25"); a("v_lshlrev_b32 v29, 1, v25")
        a(f"s_mov_b32 s94, 0x001f001f"); a(f"s_mov_b32 s95, 0x001f001f")
        a(f"v_mov_b32 v{vX}, 0")
        a("s_mov_b64 exec, s[94:95]")
        a(f"buffer_load_ushort v{vX}, v29, s[{SRD_B}:{SRD_B+3}], 0 offen")
        self.exec_all()
        def addp(dst, src, terms):
            a(f"s_mov_b32 s92, 0")
            for (sreg, c) in terms:
                a(f"s_mul_i32 s93, s{sreg}, {c}"); a("s_add_u32 s92, s92, s93")
            a(f"s_add_u32 s{dst}, s{src}, s92"); a(f"s_addc_u32 s{dst+1}, s{src+1}, 0")
        addp(pWqA, 68, [(sJ, 80*8192), (sW, 20*8192), (sH, 256)])
        a(f"s_mov_b32 s{sL}, 0")
        self.load_wq()
        addp(pWuk, 70, [(sJ, 64*8192), (sW, 16*8192), (sH, 256)])
        a(f"s_mov_b32 s{sFF}, 0xff")
        self.load_wuk()
        addp(pCkv, 66, [(sS, 65536), (sW, 16384)])
        addp(pWqB, 80, [(sJ, 80*8192), (sW, 20*8192), (sH, 256)])
        addp(pWuv, 72, [(sJ, 64*8192), (sW, 16*8192), (sH, 256)])
        addp(pWoA, 74, [(sH, 163840), (sW, 32*1280), (sJ, 160)])
        addp(pWoB, 82, [(sH, 163840), (sW, 32*1280), (sJ, 160)])
        addp(SRD_K, 76, [(sH, 2097152), (sJ, 262144), (sW, 65536)])
        addp(SRD_V, 78, [(sH, 2097152), (sJ, 262144), (sW, 65536)])
        a(f"s_mov_b32 s{SRD_K+2}, 65536"); a(f"s_mov_b32 s{SRD_K+3}, 0x20000")
        a(f"s_mov_b32 s{SRD_V+2}, 65536"); a(f"s_mov_b32 s{SRD_V+3}, 0x20000")
        a(f"s_mov_b32 s{pOut}, s84"); a(f"s_mov_b32 s{pOut+1}, s85")
        self.srd(SRD_B, pCkv, 16384)
        if self.pretouch:
            a(f"s_lshl_b32 s92, s2, 13"); a(f"s_lshl_b32 s93, s{sW}, 11"); a("s_add_u32 s92, s92, s93"); a(f"s_add_u32 s92, s92, {O_QP}")
            a(f"buffer_load_dwordx4 v[48:51], v{vL16}, {W}, s92 offen")
            a(f"buffer_load_dwordx4 v[48:51], v{vL16}, {W}, s92 offen offset:1024")
        a(f"s_mov_b32 s{sErr}, 0"); a(f"s_mov_b32 s{sLocal}, 0")
        a(f"s_mov_b32 s{sM5}, 0x001f001f"); a(f"s_mov_b32 s{sM5+1}, 0x001f001f")
        for i in range(4): a(f"s_mov_b32 s{sSel[i]}, {0x07060500+i:#x}")
        for t in range(4):
            a(f"s_mov_b32 s{sMask[t]}, {(0x000f000f << (4*t)):#x}"); a(f"s_mov_b32 s{sMask[t]+1}, {(0x000f000f << (4*t)):#x}")
        a(f"s_lshl_b32 s92, s{sXG}, 5"); a(f"s_add_u32 s92, s92, s{sI}"); a(f"s_lshl_b32 s92, s92, 2"); a(f"s_add_u32 s92, s92, s{sW}")
        a(f"s_lshl_b32 s92, s92, {12 if self.c1bf else 13}"); a(f"s_add_u32 s{sC1}, s92, {O_C1}")
        a(f"s_getpc_b64 s[{sSPC}:{sSPC+1}]")
        a.label("L_pc0")
        a(f"s_add_u32 s{sSPC}, s{sSPC}, L_stream-L_pc0"); a(f"s_addc_u32 s{sSPC+1}, s{sSPC+1}, 0")
        a(f"s_mov_b32 s{sAct}, 1"); a(f"s_mov_b32 s{sPos}, 0")
        a(f"s_mov_b32 s{sCol}, {O_COL:#x}")
        a(f"s_getreg_b32 s{sXcc}, hwreg(HW_REG_XCC_ID)"); a(f"s_and_b32 s{sXcc}, s{sXcc}, 0xf"); a(f"s_add_u32 s{sXcc}, s{sXcc}, 1"); a(f"s_lshl_b32 s{sXcc}, s{sXcc}, 8")
        a(f"s_getpc_b64 s[{sDW}:{sDW+1}]")
        a.label("L_pc1")
        a(f"s_add_u32 s{sDW}, s{sDW}, L_dw-L_pc1"); a(f"s_addc_u32 s{sDW+1}, s{sDW+1}, 0")
        if self.bud is not None: a(f"s_mov_b32 s{sBud}, {self.bud.get('pro', self.bud.get('*', 8))}")
        self.dwait(6 if self.pretouch else 4, 0, 'pro')
        a(f"v_readfirstlane_b32 s{sTf}, v{vT}")
        self.next_tag()
        a(f"v_lshlrev_b32 v{vX}, 16, v{vX}")
        if self.local: a.c("publish the XCD id; the 32 workgroups with equal b & 7 compare them later and use L2-local stores only if they all match")
        if self.local:
            lx = a.newlabel("xp")
            a(f"s_cmp_lg_u32 s{sW}, 0"); a(f"s_cbranch_scc1 {lx}")
            for r in range(4): a(f"v_mov_b32 v{16+r}, s{sXcc}")
            self.tag([16, 17, 18, 19])
            a(f"s_lshl_b32 s92, s{sXG}, 9"); a(f"s_lshl_b32 s93, s{sI}, 4"); a("s_add_u32 s92, s92, s93"); a(f"s_add_u32 s92, s92, {O_XCC}")
            a("v_mov_b32 v20, 0")
            a("s_mov_b64 exec, 1")
            a(f"buffer_store_dwordx4 v[16:19], v20, {W}, s92 offen sc1")
            self.exec_all()
            a.label(lx)
        if self.opt1: self.prep_q()
        if self.mode == "first":
            self.drain(16)

    @property
    def NT(self): return 2
    @property
    def NLOADS(self): return 136 + (self.NT if self.c1touch else 0)
    @property
    def KEND(self): return 80 + (self.NT if self.c1touch else 0)
    def first_block(self):
        r = self.NLOADS % self.kblk
        return r if r else self.kblk
    def stream(self):
        a = self.a
        loads = [("C", i) for i in range(16)] + ([("T", i) for i in range(self.NT)] if self.c1touch else []) + [("K", i) for i in range(64)]
        loads += [("V", b, u) for b in range(10) for u in range(4)]
        loads += [("L", b, u) for b in range(10, 14) for u in range(4)]
        k = self.kblk
        assert len(loads) == self.NLOADS and len(loads) % k == 0, "the dynamic wait counts kblk loads per block"
        a.c("==== K/V stream (coroutine, two loads per call): c_kv rows -> LDS, K -> a0..a255, resident V -> v96..v255, V rows -> LDS ====")
        a.label("L_stream")
        starts = [0] + list(range(self.first_block(), len(loads), k))
        for bn, bi in enumerate(starts):
            be = starts[bn+1] if bn + 1 < len(starts) else len(loads)
            last_so = None
            for ld in loads[bi:be]:
                if ld[0] == "C":
                    self.ckv_one(ld[1]); last_so = None
                elif ld[0] == "T":
                    i = ld[1]; last_so = None
                    a(f"v_lshlrev_b32 v{vCk}, 2, v{vL16}")
                    if self.c1bf:
                        a(f"s_add_u32 s{sSO}, s{sC1}, {i * 32}")
                    else:
                        a(f"s_add_u32 s{sSO}, s{sC1}, {i * 4096}")
                    a(f"buffer_load_dword v255, v{vCk}, {W}, s{sSO} offen")
                elif ld[0] == "K":
                    i = ld[1]; so = (i >> 2) * 4096
                    if so != last_so: a(f"s_mov_b32 s{sSO}, {so}"); last_so = so
                    a(f"buffer_load_dwordx4 {ar(4*i,4)}, v{vKoff}, s[{SRD_K}:{SRD_K+3}], s{sSO} offen offset:{(i&3)*1024} {self.pol}")
                elif ld[0] == "V":
                    _, b, u = ld; so = b * 4096
                    if so != last_so: a(f"s_mov_b32 s{sSO}, {so}"); last_so = so
                    a(f"buffer_load_dwordx4 {vr(VRES+16*b+4*u,4)}, v{vVoff}, s[{SRD_V}:{SRD_V+3}], s{sSO} offen offset:{self.voff(u)} {self.pol}")
                else:
                    _, b, u = ld
                    a(f"s_lshl_b32 s{sSO}, s{sW}, 14"); a(f"s_add_u32 m0, s{sSO}, {L_VL + ((b-10)*4+u)*1024}")
                    a(f"s_mov_b32 s{sSO}, {b*4096+self.voff(u)}"); last_so = None
                    a(f"buffer_load_dwordx4 v{vVoff}, s[{SRD_V}:{SRD_V+3}], s{sSO} offen {self.pol} lds")
            a(f"s_add_u32 s{sPos}, s{sPos}, {be-bi}")
            if be >= len(loads): a(f"s_mov_b32 s{sAct}, 0")
            a(f"s_swappc_b64 s[{sSPC}:{sSPC+1}], s[{sRET}:{sRET+1}]")
        a("s_endpgm")

    def prep_q(self):
        a = self.a
        t = 37
        a(f"v_lshrrev_b32 v{t}, 4, v{vL16}")
        a(f"v_and_b32 v38, 1, v{t}"); a(f"v_lshlrev_b32 v38, 4, v38")
        a(f"v_lshrrev_b32 v39, 1, v{t}"); a(f"v_add_u32 v38, v38, v39"); a(f"v_lshlrev_b32 v38, 4, v38")
        a(f"v_cmp_gt_u32 vcc, 32, v{t}"); a(f"v_mov_b32 v39, 512"); a(f"v_cndmask_b32 v{t}, v39, v38, vcc")
        a(f"s_lshl_b32 s{sTmp[4]}, s{sH}, 3"); a(f"s_add_u32 s{sTmp[4]}, s{sTmp[4]}, s{sJ}"); a(f"s_lshl_b32 s{sTmp[4]}, s{sTmp[4]}, 11")
        a(f"s_add_u32 s{sTmp[4]}, s{sTmp[4]}, {O_QP}")

    def qpart(self):
        a = self.a
        a.c("==== Q part: partial q = bf16(x slice) @ W_q slice (diagonal-operand MFMA), LayerNorm statistics, column sums of W (first two layers) ====")
        self.stamp(0)
        def second():
            if self.split2:
                l0 = a.newlabel("q2w")
                a(f"s_cmp_eq_u32 s{sL}, 0"); a(f"s_cbranch_scc1 {l0}")
                self.second_w()
                a.label(l0)
        if not (self.opt1 and self.latepf): second()
        Xp, S1, S2 = (14, 38, 39) if self.opt1 else (14, 15, 36)
        D, Du, Ab = 16, 20, 24
        a(f"v_cvt_pk_bf16_f32 v{Xp}, v{vX}, v{vX}")
        a(f"v_and_b32 v{S1}, 0xffff0000, v{Xp}")
        a(f"v_mul_f32 v{S2}, v{S1}, v{S1}")
        self.pv_gemv(Xp, 5, lambda i: vr(WQ+4*i, 4), D, Ab)
        self.reduce63([S1, S2], "v_add_f32")
        lu = a.newlabel("nou")
        if self.opt1:
            a("s_mov_b32 exec_hi, 0")
            a(f"ds_write_b128 v{vRedW}, {vr(D,4)}")
            a("s_mov_b32 exec_lo, 0"); a("s_mov_b32 exec_hi, 0x80000000")
            a(f"ds_write_b64 v{vRedW}, {vr(S1,2)}")
            self.exec_all()
        a(f"s_cmp_ge_u32 s{sL}, 2"); a(f"s_cbranch_scc1 {lu}")
        for r in range(4): a(f"v_and_b32 v{32+r}, 0x3f803f80, v{vM[r]}")
        for i in range(5):
            c = "0" if i == 0 else vr(Du, 4)
            a(f"v_mfma_f32_16x16x32_bf16 {vr(Du,4)}, {vr(32,4)}, {vr(WQ+4*i,4)}, {c}")
        self.red_write(Du, 528)
        a.label(lu)
        if self.opt1:
            t = 37
            if self.latepf: second()
        else:
            a(f"v_readlane_b32 s{sA}, v{S1}, 63"); a(f"v_readlane_b32 s{sB_}, v{S2}, 63")
            a(f"v_writelane_b32 v{D}, s{sA}, 32"); a(f"v_writelane_b32 v{D+1}, s{sB_}, 32")
            self.red_write(D)
            t = 14
            a(f"v_lshrrev_b32 v{t}, 4, v{vL16}")
            a(f"v_and_b32 v15, 1, v{t}"); a(f"v_lshlrev_b32 v15, 4, v15")
            a(f"v_lshrrev_b32 v36, 1, v{t}"); a(f"v_add_u32 v15, v15, v36"); a(f"v_lshlrev_b32 v15, 4, v15")
            a(f"v_cmp_gt_u32 vcc, 32, v{t}"); a(f"v_mov_b32 v36, 512"); a(f"v_cndmask_b32 v{t}, v36, v15, vcc")
            a(f"s_lshl_b32 s{sTmp[4]}, s{sH}, 3"); a(f"s_add_u32 s{sTmp[4]}, s{sTmp[4]}, s{sJ}"); a(f"s_lshl_b32 s{sTmp[4]}, s{sTmp[4]}, 11")
            a(f"s_add_u32 s{sTmp[4]}, s{sTmp[4]}, {O_QP}")
        self.tu()
        a("s_waitcnt lgkmcnt(0)"); a("s_barrier")
        lf = a.newlabel("qfin")
        a(f"s_cmp_lg_u32 s{sW}, 0"); a(f"s_cbranch_scc1 {lf}")
        G = 16
        self.red_final_read(G)
        a("s_waitcnt lgkmcnt(0)")
        self.sum4(G); self.tag([G, G+1, G+2, G+3])
        a("s_mov_b32 exec_hi, 1")
        self.local_stores([(G, t, sTmp[4], None)])
        a("s_mov_b32 exec_hi, -1")
        a(f"s_cmp_ge_u32 s{sL}, 2"); a(f"s_cbranch_scc1 {lf}")
        G2 = 40
        self.red_final_read(G2, 528)
        a(f"s_add_u32 s{sTmp[4]}, s{sTmp[4]}, 1024")
        a("s_waitcnt lgkmcnt(0)")
        self.sum4(G2); self.tag([G2, G2+1, G2+2, G2+3])
        a("s_mov_b32 exec_hi, 0")
        self.local_stores([(G2, t, sTmp[4], None)])
        a("s_mov_b32 exec_hi, -1")
        a.label(lf)
        self.stamp(1)
        a.c("row hand-off: gather the 8 partial q vectors of this head, finish the (deferred) LayerNorm, build the QK operands")
        ad, ad2, adu, adx = 14, 15, 56, 57
        Gq, Gs, Gu, Gx = 16, 32, 36, 52
        a(f"v_lshrrev_b32 v{ad}, 8, v{vKoff}"); a(f"v_lshlrev_b32 v{ad}, 11, v{ad}")
        a(f"v_and_b32 v{ad2}, s{sFF}, v{vKoff}"); a(f"v_or_b32 v{ad}, v{ad}, v{ad2}")
        a(f"v_lshlrev_b32 v{adu}, 1, v{ad2}")
        a(f"v_lshrrev_b32 v{ad2}, 4, v{vL16}"); a(f"v_and_b32 v{ad2}, 7, v{ad2}"); a(f"v_lshlrev_b32 v{ad2}, 11, v{ad2}")
        a(f"s_lshl_b32 s{sTmp[0]}, s{sH}, 14"); a(f"s_add_u32 s{sTmp[0]}, s{sTmp[0]}, {O_QP}")
        a(f"s_add_u32 s{sTmp[1]}, s{sTmp[0]}, 8192")
        def iss_q():
            for i in range(2):
                for hf in range(2):
                    a(f"buffer_load_dwordx4 {vr(Gq+8*i+4*hf,4)}, v{ad}, {W}, s{sTmp[i]} offen offset:{hf*256} sc1")
            a(f"buffer_load_dwordx4 {vr(Gs,4)}, v{ad2}, {W}, s{sTmp[0]} offen offset:512 sc1")
        def iss_u():
            for i in range(2):
                for hf in range(2):
                    a(f"buffer_load_dwordx4 {vr(Gu+8*i+4*hf,4)}, v{ad}, {W}, s{sTmp[i]} offen offset:{1024+hf*256} sc1")
        def iss_x():
            a(f"buffer_load_dwordx4 {vr(Gx,4)}, v{adx}, {W}, s{sTmp[3]} offen sc1")
        U = 36
        l_late = a.newlabel("qlate"); l_j = a.newlabel("qj")
        a(f"s_and_b32 s{sTmp[2]}, s{sL}, 1"); a(f"s_lshl_b32 s{sTmp[2]}, s{sTmp[2]}, 9"); a(f"s_add_u32 s{sTmp[2]}, s{sTmp[2]}, {L_U}")
        a(f"v_add_u32 v{adu}, s{sTmp[2]}, v{adu}")
        a(f"s_cmp_ge_u32 s{sL}, 2"); a(f"s_cbranch_scc1 {l_late}")
        base_regs = [Gq, Gq+4, Gq+8, Gq+12, Gs, Gu, Gu+4, Gu+8, Gu+12]
        if self.local:
            l_one = a.newlabel("qone"); l_u = a.newlabel("qu")
            a(f"s_cmp_eq_u32 s{sL}, 1"); a(f"s_cbranch_scc1 {l_one}")
            a(f"v_and_b32 v{adx}, 0x1f0, v{vL16}")
            a(f"s_lshl_b32 s{sTmp[3]}, s{sXG}, 9"); a(f"s_add_u32 s{sTmp[3]}, s{sTmp[3]}, {O_XCC}")
            self.poll(lambda: (iss_q(), iss_u(), iss_x()), base_regs + [Gx], site='q0')
            a(f"v_cmp_ne_u32 vcc, s{sXcc}, v{Gx}")
            a(f"s_cmp_eq_u64 vcc, 0"); a(f"s_cselect_b32 s{sLocal}, 1, 0")
            a(f"s_branch {l_u}")
            a.label(l_one)
            self.poll(lambda: (iss_q(), iss_u()), base_regs, site='q1')
            a.label(l_u)
        else:
            self.poll(lambda: (iss_q(), iss_u()), base_regs)
        for r in range(8): a(f"v_add_f32 v{Gu+r}, v{Gu+r}, v{Gu+8+r}")
        self.dpp_steps([Gu+r for r in range(8)], "v_add_f32", ["row_ror:4", "row_ror:8"])
        lw = a.newlabel("uw")
        a(f"s_cmp_lg_u32 s{sW}, 0"); a(f"s_cbranch_scc1 {lw}")
        self.exec_set(0x000f000f, 0x000f000f)
        a(f"ds_write_b128 v{adu}, {vr(U,4)}"); a(f"ds_write_b128 v{adu}, {vr(U+4,4)} offset:16")
        self.exec_all()
        a.label(lw)
        a(f"s_branch {l_j}")
        a.label(l_late)
        a(f"ds_read_b128 {vr(U,4)}, v{adu}"); a(f"ds_read_b128 {vr(U+4,4)}, v{adu} offset:16")
        self.poll(iss_q, [Gq, Gq+4, Gq+8, Gq+12, Gs], site='q2')
        a("s_waitcnt lgkmcnt(0)")
        a.label(l_j)
        self.stamp(2)
        self.tu()
        self.burst('Q1')
        st = [Gs, Gs+1]
        adds = [f"v_add_f32 v{Gq+r}, v{Gq+r}, v{Gq+8+r}" for r in range(8)]
        seq = []
        for k, d in enumerate((self.X1, self.X2, self.HM)):
            seq += [f"v_add_f32_dpp v{r}, v{r}, v{r} {d} {DPPALL}" for r in st]
            seq += adds[3*k:3*k+3] if k < 2 else adds[6:]
        for s_ in seq: a(s_)
        a(f"v_mul_f32 v{Gs}, {f32hex(1/640)}, v{Gs}")
        ror4 = [f"v_add_f32_dpp v{Gq+r}, v{Gq+r}, v{Gq+r} row_ror:4 {DPPALL}" for r in range(8)]
        ror8 = [f"v_add_f32_dpp v{Gq+r}, v{Gq+r}, v{Gq+r} row_ror:8 {DPPALL}" for r in range(8)]
        a(f"v_mul_f32 v{Gs+1}, {f32hex(1/640)}, v{Gs+1}")
        for s_ in ror4[:4]: a(s_)
        a(f"v_fma_f32 v{Gs+1}, -v{Gs}, v{Gs}, v{Gs+1}")
        for s_ in ror4[4:]: a(s_)
        a(f"v_add_f32 v{Gs+1}, {f32hex(1e-5)}, v{Gs+1}")
        for s_ in ror8[:4]: a(s_)
        a(f"v_rsq_f32 v{Gs+1}, v{Gs+1}")
        for s_ in ror8[4:]: a(s_)
        a(f"v_mul_f32 v{Gs+1}, {f32hex(SC)}, v{Gs+1}")
        for r in range(8): a(f"v_fma_f32 v{Gq+r}, -v{Gs}, v{U+r}, v{Gq+r}")
        a(f"v_readfirstlane_b32 s{sSc}, v{Gs+1}")
        Qp = 24
        for r in range(4): a(f"v_cvt_pk_bf16_f32 v{Qp+r}, v{Gq+2*r}, v{Gq+2*r+1}")
        for t in range(4):
            for r in range(4):
                a(f"v_cndmask_b32 v{AT+4*t+r}, 0, v{Qp+r}, s[{sMask[t]}:{sMask[t]+1}]")

    def combine8(self, G, ML, tmp):
        a = self.a
        M, f, Ls = tmp, tmp+1, tmp+2
        a(f"v_max_f32_dpp v{M}, v{ML}, v{ML} row_ror:8 {DPPALL}")
        self.dpp_steps([M], "v_max_f32", ["b15", "b31"])
        a(f"v_readlane_b32 s{sA}, v{M}, 63")
        a(f"v_subrev_f32 v{f}, s{sA}, v{ML}"); a(f"v_exp_f32 v{f}, v{f}")
        a(f"v_mul_f32 v{Ls}, v{f}, v{ML+1}")
        for r in range(4): a(f"v_mul_f32 v{G+r}, v{f}, v{G+r}")
        a(f"v_add_f32_dpp v{Ls}, v{Ls}, v{Ls} row_ror:8 {DPPALL}")
        for r in range(4): a(f"v_add_f32_dpp v{G+r}, v{G+r}, v{G+r} row_ror:8 {DPPALL}")
        a(f"v_add_f32_dpp v{Ls}, v{Ls}, v{Ls} row_bcast:15 row_mask:0xa bank_mask:0xf")
        a(f"v_permlane32_swap_b32 v{G}, v{G+2}")
        a(f"v_permlane32_swap_b32 v{G+1}, v{G+3}")
        a(f"v_add_f32_dpp v{Ls}, v{Ls}, v{Ls} row_bcast:31 row_mask:0xc bank_mask:0xf")
        a(f"v_add_f32 v{G}, v{G}, v{G+2}")
        a(f"v_add_f32 v{G+1}, v{G+1}, v{G+3}")
        a(f"v_readlane_b32 s{sA}, v{Ls}, 63")
        a(f"v_permlane16_swap_b32 v{G}, v{G+1}")
        a(f"v_rcp_f32 v{Ls}, s{sA}")
        a(f"v_add_f32 v{G}, v{G}, v{G+1}")
        a(f"v_mul_f32 v{G}, v{G}, v{Ls}")

    def amiddle(self):
        a = self.a
        a.c("==== A layer: q_abs slice = q @ w_uk^T (absorbed keys), published to every workgroup ====")
        D = 16
        for t in range(4):
            c = "0" if t == 0 else vr(D, 4)
            a(f"v_mfma_f32_16x16x32_bf16 {vr(D,4)}, {vr(AT+4*t,4)}, {vr(WUK+4*t,4)}, {c}")
        a(f"v_lshrrev_b32 v14, 8, v{vL16}"); a("v_lshlrev_b32 v14, 4, v14")
        a(f"s_lshl_b32 s{sTmp[0]}, s{sH}, 11"); a(f"s_lshl_b32 s{sTmp[1]}, s{sJ}, 8"); a(f"s_add_u32 s{sTmp[0]}, s{sTmp[0]}, s{sTmp[1]}")
        a(f"s_lshl_b32 s{sTmp[1]}, s{sW}, 6"); a(f"s_add_u32 s{sTmp[0]}, s{sTmp[0]}, s{sTmp[1]}")
        a(f"s_add_u32 s{sTmp[0]}, s{sTmp[0]}, {O_QABS}")
        S, S2 = 20, 21
        a(f"v_mov_b32_dpp v{S}, v{D} quad_perm:[0,0,0,0] {DPPALL}")
        a(f"v_mov_b32_dpp v{S2}, v{D+2} quad_perm:[2,2,2,2] {DPPALL}")
        a(f"s_nop 0")
        a(f"v_add_f32_dpp v{S}, v{D+1}, v{S} quad_perm:[1,1,1,1] {DPPALL}")
        a(f"v_add_f32_dpp v{S2}, v{D+3}, v{S2} quad_perm:[3,3,3,3] {DPPALL}")
        a(f"v_add_f32 v{S}, v{S}, v{S2}")
        a(f"v_mul_f32 v{S}, s{sSc}, v{S}")
        G = 24
        for q in range(4): a(f"v_mov_b32_dpp v{G+q}, v{S} row_newbcast:{4*q} {DPPALL}")
        self.tag([G, G+1, G+2, G+3])
        self.exec_set(0x00010001, 0x00010001)
        a(f"buffer_store_dwordx4 {vr(G,4)}, v14, {W}, s{sTmp[0]} offen sc1")
        self.exec_all()
        self.stamp(3)
        self.tu()
        if not self.pfnew: self.load_wuv()
        Gq = 16
        a(f"s_lshl_b32 s{sTmp[0]}, s{sGA}, 15"); a(f"s_lshl_b32 s{sTmp[1]}, s{sW}, 9"); a(f"s_add_u32 s{sTmp[0]}, s{sTmp[0]}, s{sTmp[1]}")
        a(f"s_add_u32 s{sTmp[0]}, s{sTmp[0]}, {O_QABS}")
        for i in range(1, 4): a(f"s_add_u32 s{sTmp[i]}, s{sTmp[0]}, {i*8192}")
        vA0, vB0, vAx = 52, 53, 54
        n, g = 48, 49
        a(f"v_lshrrev_b32 v{n}, 4, v{vL16}"); a(f"v_lshrrev_b32 v{g}, 4, v{n}"); a(f"v_and_b32 v{n}, 15, v{n}")
        a(f"v_and_b32 v50, 8, v{n}"); a(f"v_and_b32 v51, 3, v{n}"); a(f"v_lshl_or_b32 v50, v51, 1, v50")
        a(f"v_bfe_u32 v51, v{n}, 2, 1"); a(f"v_or_b32 v50, v50, v51")
        a(f"s_lshl_b32 s{sTmp[4]}, s{sW}, 14"); a(f"s_add_u32 s{sTmp[4]}, s{sTmp[4]}, {L_CKV}")
        a(f"v_lshlrev_b32 v51, 10, v{n}"); a(f"v_lshl_add_u32 v51, v{g}, 8, v51"); a(f"v_lshl_add_u32 v51, v50, 4, v51")
        a(f"v_add_u32 v{vA0}, s{sTmp[4]}, v51")
        a(f"v_mul_u32_u24 v{vB0}, 1040, v{n}"); a(f"v_lshl_add_u32 v{vB0}, v{g}, 8, v{vB0}"); a(f"v_add_u32 v{vB0}, {L_R0}, v{vB0}")
        a(f"v_mul_u32_u24 v51, 272, v{n}"); a(f"v_lshl_add_u32 v50, v{g}, 4, v51")
        a(f"s_lshl_b32 s{sTmp[4]}, s{sW}, 6"); a(f"s_add_u32 s{sTmp[4]}, s{sTmp[4]}, {L_ST}"); a(f"v_add_u32 v50, s{sTmp[4]}, v50")
        a(f"v_lshl_add_u32 v51, v{g}, 5, v51"); a(f"v_add_u32 v51, {L_ST}, v51")
        vC0, vC1, vX0, vX1 = 76, 77, 78, 79
        a(f"v_and_b32 v14, 3, v{n}"); a(f"v_lshrrev_b32 v15, 2, v{n}")
        a(f"v_and_b32 v55, 1, v{g}"); a(f"v_lshlrev_b32 v55, 3, v55"); a(f"v_lshl_add_u32 v55, v15, 1, v55")
        a(f"v_lshrrev_b32 v56, 1, v14"); a(f"v_xor_b32 v55, v55, v56")
        a(f"v_lshl_add_u32 v56, v{g}, 3, v15"); a(f"v_lshlrev_b32 v56, 10, v56")
        a(f"v_lshl_add_u32 v56, v55, 4, v56"); a(f"v_and_b32 v14, 1, v14"); a(f"v_lshl_add_u32 v56, v14, 3, v56")
        a(f"s_lshl_b32 s{sTmp[4]}, s{sW}, 8"); a(f"s_add_u32 s{sTmp[4]}, s{sTmp[4]}, {L_CKV}")
        a(f"v_add_u32 v{vC0}, s{sTmp[4]}, v56")
        a(f"v_add_u32 v{vC1}, 4096, v{vC0}"); a(f"v_xor_b32 v{vC1}, 16, v{vC1}")
        a(f"s_lshl_b32 s{sTmp[4]}, s{sW}, 8"); a(f"s_add_u32 s{sTmp[4]}, s{sTmp[4]}, {L_R0}")
        a(f"v_lshrrev_b32 v14, 9, v{vL16}"); a(f"v_and_b32 v57, 0x1f0, v{vL16}")
        a(f"v_lshrrev_b32 v15, 1, v57"); a(f"v_mul_u32_u24 v58, 1040, v14"); a(f"v_add_u32 v15, v15, v58"); a(f"v_add_u32 v15, s{sTmp[4]}, v15")
        a(f"v_lshl_add_u32 v57, v14, 11, v57")
        lg0 = a.newlabel("cg"); lg1 = a.newlabel("cg")
        a.label(lg0)
        a(f"s_cmp_ge_u32 s{sPos}, 16"); a(f"s_cbranch_scc1 {lg1}")
        self.stream_call()
        a(f"s_branch {lg0}")
        a.label(lg1)
        if self.sent:
            lsk = a.newlabel("nosent")
            if not self.sent1:
                a(f"s_cmp_lg_u32 s{sAct}, 0"); a(f"s_cbranch_scc1 {lsk}")
            a(f"v_lshrrev_b32 v14, 7, v{vL16}"); a(f"v_lshlrev_b32 v14, 11, v14"); a(f"v_and_b32 v58, 0x70, v{vL16}"); a(f"v_lshl_add_u32 v14, v58, 2, v14")
            def iss0():
                a(f"buffer_load_dwordx4 {vr(Gq,4)}, v14, {W}, s{sTmp[0]} offen sc1")
                a(f"buffer_load_dwordx4 {vr(Gq+4,4)}, v14, {W}, s{sTmp[2]} offen sc1")
            self.poll(iss0, [Gq, Gq+4], site='sent')
            a.label(lsk)
            self.stamp(15)
        def iss():
            for i in range(8):
                so = sTmp[i >> 1]
                if i & 1:
                    a(f"s_add_u32 s{sTmp[5-1]}, s{so}, 4096"); so = sTmp[4]
                a(f"buffer_load_dwordx4 {vr(Gq+4*i,4)}, v57, {W}, s{so} offen sc1")
        self.poll(iss, [Gq+4*i for i in range(8)], site='h4')
        self.stampval(30, sSpin); self.stampval(31, sPos)
        self.stamp(4)
        def a0_loads():
            if self.pfnew: self.load_wuv()
            self.burst('A0')
            if self.c1touch2 == "h4":
                lt = a.newlabel("t2")
                a(f"s_cmp_eq_u32 s{sL}, 0"); a(f"s_cbranch_scc1 {lt}")
                a(f"v_lshlrev_b32 v11, 2, v{vL16}")
                for i in range(1 if self.c1bf else 2):
                    a(f"s_add_u32 s{sTmp[0]}, s{sC1}, {i * 4096}")
                    a(f"buffer_load_dword v12, v11, {W}, s{sTmp[0]} offen")
                a.label(lt)
        if not self.opt2: a0_loads()
        for i in range(8):
            b = Gq + 4*i
            a(f"v_cvt_pk_bf16_f32 v{b}, v{b}, v{b+1}"); a(f"v_cvt_pk_bf16_f32 v{b+1}, v{b+2}, v{b+3}")
            a(f"ds_write_b64 v15, {vr(b,2)} offset:{i*2*1040}")
        if self.opt2: a0_loads()
        self.tu()
        a("s_waitcnt lgkmcnt(0)"); a("s_barrier")
        self.stamp(16)
        if "S" in self.xcalls: self.topup(site='S')
        self.burst('S')
        a.c("scores of this workgroup's 64 keys for 16 heads, softmax with the true maximum of the split, P @ c_kv")
        AB = 16
        Ds = 56
        def rd(st):
            b = AB + 8 * (st % 4)
            if st == 0: a(f"ds_read_b128 {vr(b,4)}, v{vA0}")
            else:
                a(f"v_xor_b32 v{vAx}, {st<<4}, v{vA0}"); a(f"ds_read_b128 {vr(b,4)}, v{vAx}")
            a(f"ds_read_b128 {vr(b+4,4)}, v{vB0} offset:{st*16}")
        for st in range(4): rd(st)
        for st in range(16):
            rem = min(3, 15 - st)
            a(f"s_waitcnt lgkmcnt({2*rem})")
            b = AB + 8 * (st % 4)
            c = "0" if st == 0 else vr(Ds, 4)
            a(f"v_mfma_f32_16x16x32_bf16 {vr(Ds,4)}, {vr(b,4)}, {vr(b+4,4)}, {c}")
            if st + 4 < 16: rd(st + 4)
        a(f"ds_write_b128 v50, {vr(Ds,4)}")
        self.tu()
        a("s_waitcnt lgkmcnt(0)"); a("s_barrier")
        self.stamp(17)
        SS = 60 if self.opt2 else 16
        for u in range(2):
            for hf in range(2):
                a(f"ds_read_b128 {vr(SS+8*u+4*hf,4)}, v51 offset:{u*128+hf*16}")
        DT = 44
        AF = 16
        steps = [(t, u) for t in range(8) for u in range(2)]
        def rdA(k):
            t, u = steps[k]; b = AF + 4 * (k % 4)
            if u == 0:
                if t == 0:
                    a(f"v_mov_b32 v{vX0}, v{vC0}"); a(f"v_mov_b32 v{vX1}, v{vC1}")
                else:
                    a(f"v_xor_b32 v{vX0}, {t<<5}, v{vC0}"); a(f"v_xor_b32 v{vX1}, {t<<5}, v{vC1}")
            a(f"ds_read_b64_tr_b16 {vr(b,2)}, v{vX0} offset:{u*32768}")
            a(f"ds_read_b64_tr_b16 {vr(b+2,2)}, v{vX1} offset:{u*32768}")
        if self.opt2:
            for k in range(4): rdA(k)
        if self.pfnew: self.load_wo(pWoA)
        m, l, t1, t2 = 32, 33, 34, 35
        a("s_waitcnt lgkmcnt(8)" if self.opt2 else "s_waitcnt lgkmcnt(0)")
        a(f"v_max3_f32 v{m}, v{SS}, v{SS+1}, v{SS+2}"); a(f"v_max3_f32 v{t1}, v{SS+3}, v{SS+4}, v{SS+5}")
        a(f"v_max3_f32 v{m}, v{m}, v{SS+6}, v{SS+7}"); a(f"v_max3_f32 v{t1}, v{t1}, v{SS+8}, v{SS+9}")
        a(f"v_max3_f32 v{m}, v{m}, v{SS+10}, v{SS+11}"); a(f"v_max3_f32 v{t1}, v{t1}, v{SS+12}, v{SS+13}")
        a(f"v_max3_f32 v{m}, v{m}, v{SS+14}, v{SS+15}"); a(f"v_max_f32 v{m}, v{m}, v{t1}")
        for sw in ("v_permlane16_swap_b32", "v_permlane32_swap_b32"):
            a(f"v_mov_b32 v{t1}, v{m}"); a(f"{sw} v{m}, v{t1}"); a(f"v_max_f32 v{m}, v{m}, v{t1}")
        for k in range(16): a(f"v_sub_f32 v{SS+k}, v{SS+k}, v{m}")
        for k in range(16): a(f"v_exp_f32 v{SS+k}, v{SS+k}")
        P = 36
        for k in range(8): a(f"v_cvt_pk_bf16_f32 v{P+k}, v{SS+2*k}, v{SS+2*k+1}")
        for k in range(8): a(f"v_add_f32 v{SS+k}, v{SS+k}, v{SS+8+k}")
        for k in range(4): a(f"v_add_f32 v{SS+k}, v{SS+k}, v{SS+4+k}")
        a(f"v_add_f32 v{SS}, v{SS}, v{SS+1}"); a(f"v_add_f32 v{SS+2}, v{SS+2}, v{SS+3}"); a(f"v_add_f32 v{l}, v{SS}, v{SS+2}")
        self.stamp(18)
        if "smax" in self.xcalls: self.topup(site='S')
        self.burst('smax')
        if not self.opt2:
            for k in range(4): rdA(k)
        for sw in ("v_permlane16_swap_b32", "v_permlane32_swap_b32"):
            a(f"v_mov_b32 v{t1}, v{l}"); a(f"{sw} v{l}, v{t1}"); a(f"v_add_f32 v{l}, v{l}, v{t1}")
        if self.c1bf:
            self.stage1_bf(DT, P, AF, steps, rdA)
            acc = 48; t1 = 68; Mx = 56; den = 64; R4 = range(4)
        else:
            a(f"v_lshrrev_b32 v14, 8, v{vL16}"); a(f"v_lshlrev_b32 v14, 17, v14"); a(f"v_and_b32 v15, 0xf0, v{vL16}"); a(f"v_add_u32 v14, v14, v15")
            a(f"s_lshl_b32 s{sTmp[0]}, s{sXG}, 20"); a(f"s_lshl_b32 s{sTmp[1]}, s{sGA}, 19"); a(f"s_add_u32 s{sTmp[0]}, s{sTmp[0]}, s{sTmp[1]}")
            a(f"s_lshl_b32 s{sTmp[1]}, s{sW}, 15"); a(f"s_add_u32 s{sTmp[0]}, s{sTmp[0]}, s{sTmp[1]}")
            a(f"s_and_b32 s{sTmp[2]}, s{sS}, 15"); a(f"s_lshl_b32 s{sTmp[1]}, s{sTmp[2]}, 9"); a(f"s_add_u32 s{sTmp[0]}, s{sTmp[0]}, s{sTmp[1]}")
            a(f"s_add_u32 s{sTmp[0]}, s{sTmp[0]}, {O_C1}")
            a(f"s_lshl_b32 s{sTmp[3]}, s{sXG}, 14"); a(f"s_lshl_b32 s{sTmp[1]}, s{sGA}, 13"); a(f"s_add_u32 s{sTmp[3]}, s{sTmp[3]}, s{sTmp[1]}")
            a(f"s_lshl_b32 s{sTmp[1]}, s{sW}, 9"); a(f"s_add_u32 s{sTmp[3]}, s{sTmp[3]}, s{sTmp[1]}")
            a(f"s_lshl_b32 s{sTmp[1]}, s{sTmp[2]}, 5"); a(f"s_add_u32 s{sTmp[3]}, s{sTmp[3]}, s{sTmp[1]}")
            a(f"s_add_u32 s{sTmp[3]}, s{sTmp[3]}, {O_ML1}")
            a(f"v_bfe_u32 v15, v{vL16}, 6, 2"); a(f"v_lshlrev_b32 v15, 11, v15")
            a(f"v_bfe_u32 v32+2, v{vL16}, 8, 1".replace("v32+2", "v34")); a(f"v_lshl_add_u32 v15, v34, 4, v15")
            MG = 76 - 0
            a(f"s_mov_b32 vcc_lo, 0xffff0000"); a("s_mov_b32 vcc_hi, 0")
            a(f"v_cndmask_b32 v34, v32, v33, vcc")
            mlops = [f"v_mov_b32_dpp v32, v34 quad_perm:[0,0,0,0] {DPPALL}", f"v_mov_b32_dpp v33, v34 quad_perm:[1,1,1,1] {DPPALL}",
                     f"v_mov_b32_dpp v35, v34 quad_perm:[3,3,3,3] {DPPALL}", f"v_mov_b32_dpp v34, v34 quad_perm:[2,2,2,2] {DPPALL}"]
            for k in range(16):
                t, u = steps[k]; b = AF + 4 * (k % 4)
                rem = min(3, 15 - k)
                a(f"s_waitcnt lgkmcnt({2*rem})")
                c = "0" if u == 0 else vr(DT+4*t, 4)
                a(f"v_mfma_f32_16x16x32_bf16 {vr(DT+4*t,4)}, {vr(P+4*u,4)}, {vr(b,4)}, {c}")
                if k + 4 < 16: rdA(k + 4)
                if k == 0:
                    for x_ in mlops: a(x_)
                if k == 2: self.tag([32, 33, 34, 35])
                if u == 1 and t >= 2: self.tag([DT+4*(t-2)+r for r in range(4)])
            self.tag([DT+4*6+r for r in range(4)]); self.tag([DT+4*7+r for r in range(4)])
            self.stamp(19)
            items = []
            for t in range(8):
                def pre(t=t): a(f"s_add_u32 s{sTmp[1]}, s{sTmp[0]}, {(t>>1)*8192+(t&1)*256}")
                items.append((DT+4*t, 14, sTmp[1], pre))
            def pre_ml(): a("s_mov_b32 exec_lo, 0x11111111"); a("s_mov_b32 exec_hi, 0")
            items.append((32, 15, sTmp[3], pre_ml))
            if self.c1sc1:
                loc = self.local; self.local = False
                self.local_stores(items)
                self.local = loc
            else:
                self.local_stores(items)
            self.exec_all()
            self.stamp(5)
            G, MM, LL = 16, 48, 52
            a(f"v_lshrrev_b32 v14, 4, v{vL16}"); a(f"v_and_b32 v15, 7, v14"); a(f"v_lshrrev_b32 v14, 5, v14")
            a(f"v_lshl_add_u32 v14, v15, 1, v14"); a(f"v_lshlrev_b32 v14, 5, v14")
            a(f"s_lshl_b32 s{sTmp[0]}, s{sXG}, 5"); a(f"s_add_u32 s{sTmp[0]}, s{sTmp[0]}, s{sI}")
            a(f"s_lshl_b32 s{sTmp[2]}, s{sTmp[0]}, 9"); a(f"s_add_u32 s{sTmp[2]}, s{sTmp[2]}, {O_ML1}")
            a(f"s_lshl_b32 s{sTmp[0]}, s{sTmp[0]}, 2"); a(f"s_add_u32 s{sTmp[0]}, s{sTmp[0]}, s{sW}")
            a(f"s_lshl_b32 s{sTmp[0]}, s{sTmp[0]}, 13"); a(f"s_add_u32 s{sTmp[0]}, s{sTmp[0]}, {O_C1}")
            a(f"s_add_u32 s{sTmp[1]}, s{sTmp[0]}, 4096")
            def issML():
                a(f"buffer_load_dwordx4 {vr(MM,4)}, v14, {W}, s{sTmp[2]} offen sc1")
                a(f"buffer_load_dwordx4 {vr(LL,4)}, v14, {W}, s{sTmp[2]} offen offset:16 sc1")
            lsk = a.newlabel("noml")
            if not self.mlsent:
                a(f"s_cmp_lg_u32 s{sAct}, 0"); a(f"s_cbranch_scc1 {lsk}")
            if not self.mltail:
                a(f"s_cmp_ge_u32 s{sL}, 2"); a(f"s_cbranch_scc1 {lsk}")
            self.poll(issML, [MM, LL], site='ml1')
            a.label(lsk)
            self.stamp(20)
            Mx, wv, den, t1 = 56, 60, 64, 68
            chk = 72
            lp = a.newlabel("sw1"); ns = a.newlabel("sw1n"); jn = a.newlabel("sw1j"); dn = a.newlabel("sw1d"); ns2 = a.newlabel("sw1m"); jn2 = a.newlabel("sw1k")
            a(f"s_mov_b32 s{sSpin}, 0")
            if self.bud is not None: a(f"s_mov_b32 s{sBud}, {self.bud.get('sw1', self.bud.get('*', 8))}")
            self.predelay('sw1')
            a.label(lp)
            issML()
            for i in range(8):
                a(f"buffer_load_dwordx4 {vr(G+4*i,4)}, v{vL16}, {W}, s{sTmp[i>>2]} offen offset:{(i&3)*1024} sc1")
            a(f"s_mov_b32 s{sYoung}, 8")
            self.dwait(8, 10 if self.addn else 0, 'sw1')
            a(f"s_sub_u32 s{sTmp[4]}, s{sYoung}, 8")
            for r in range(4): a(f"v_xor_b32 v{MM+r}, s{sT[r]}, v{MM+r}")
            for r in range(4): a(f"v_xor_b32 v{LL+r}, s{sT[r]}, v{LL+r}")
            a(f"v_or3_b32 v{chk}, v{MM}, v{MM+1}, v{MM+2}"); a(f"v_or3_b32 v{chk}, v{chk}, v{MM+3}, v{LL}")
            a(f"v_or3_b32 v{chk}, v{chk}, v{LL+1}, v{LL+2}"); a(f"v_or_b32 v{chk}, v{chk}, v{LL+3}")
            R4 = range(4)
            for r in R4: a(f"v_max_f32_dpp v{Mx+r}, v{MM+r}, v{MM+r} {self.X1} {DPPALL}")
            self.dpp_steps([Mx+r for r in R4], "v_max_f32", [self.X2, self.HM])
            for r in R4: a(f"v_mov_b32 v{t1+r}, v{Mx+r}")
            for r in R4: a(f"v_permlane32_swap_b32 v{Mx+r}, v{t1+r}")
            for r in R4: a(f"v_max_f32 v{Mx+r}, v{Mx+r}, v{t1+r}")
            for r in R4: a(f"v_sub_f32 v{wv+r}, v{MM+r}, v{Mx+r}")
            for r in R4: a(f"v_exp_f32 v{wv+r}, v{wv+r}")
            for r in R4: a(f"v_mul_f32 v{den+r}, v{wv+r}, v{LL+r}")
            self.dpp_steps([den+r for r in R4], "v_add_f32", [self.X1, self.X2, self.HM])
            for r in R4: a(f"v_mov_b32 v{t1+r}, v{den+r}")
            for r in R4: a(f"v_permlane32_swap_b32 v{den+r}, v{t1+r}")
            for r in R4: a(f"v_add_f32 v{den+r}, v{den+r}, v{t1+r}")
            if self.mode == "co":
                a(f"s_cmp_eq_u32 s{sTmp[4]}, 0"); a(f"s_cbranch_scc1 {ns2}")
                a(f"s_mov_b32 s{sYoung}, s{sTmp[4]}")
                a(f"s_swappc_b64 s[{sRET2}:{sRET2+1}], s[{sDW}:{sDW+1}]")
                a(f"s_branch {jn2}")
                a.label(ns2)
            self.dwait(0, 0, 'sw1')
            a.label(jn2)
            dw = [G + i for i in range(32)]
            for k, r in enumerate(dw): a(f"v_xor_b32 v{r}, s{sT[k % 4]}, v{r}")
            a(f"v_or3_b32 v{vT0}, v{dw[0]}, v{dw[1]}, v{chk}"); a(f"v_or3_b32 v{vT0+1}, v{dw[2]}, v{dw[3]}, v{dw[4]}")
            k = 5; tog = 0
            while k < 31:
                tgt = vT0 + tog
                a(f"v_or3_b32 v{tgt}, v{tgt}, v{dw[k]}, v{dw[k+1]}"); k += 2; tog ^= 1
            a(f"v_or3_b32 v{vT0}, v{vT0}, v{vT0+1}, v{dw[31]}")
            a(f"v_and_b32 v{vT0}, s{sFF}, v{vT0}")
            a(f"v_cmp_ne_u32 vcc, 0, v{vT0}")
            a(f"s_cbranch_vccz {dn}")
            a(f"s_add_u32 s{sSpin}, s{sSpin}, 1"); a(f"s_cmp_lt_u32 s{sSpin}, {SPIN_MAX}"); a(f"s_cbranch_scc1 {lp}")
            a(f"s_mov_b32 s{sErr}, 1")
            a.label(dn)
            self.stampval(24, sSpin); self.stampval(25, sPos)
            self.stamp(6)
            self.burst('A1')
            acc = 48
            for i in range(8):
                for r in range(4):
                    op = "v_mul_f32_dpp" if i == 0 else "v_fmac_f32_dpp"
                    a(f"{op} v{acc+r}, v{wv+r}, v{G+4*i+r} row_newbcast:{i} {DPPALL}")

        if self.c1bf:
            a(f"v_bfe_u32 v14, v{vL16}, 9, 1"); a(f"v_lshlrev_b32 v14, 11, v14"); a(f"v_and_b32 v15, 0xf0, v{vL16}"); a(f"v_add_u32 v14, v14, v15")
        else:
            a(f"v_bfe_u32 v14, v{vL16}, 8, 1"); a(f"v_lshlrev_b32 v14, 11, v14"); a(f"v_and_b32 v15, 0xf0, v{vL16}"); a(f"v_add_u32 v14, v14, v15")
            for r in R4: a(f"v_mov_b32 v{t1+r}, v{acc+r}")
        a(f"s_lshr_b32 s{sTmp[0]}, s{sI}, 2"); a(f"s_lshl_b32 s{sTmp[0]}, s{sTmp[0]}, 16")
        a(f"s_and_b32 s{sTmp[1]}, s{sI}, 3"); a(f"s_lshl_b32 s{sTmp[1]}, s{sTmp[1]}, 14"); a(f"s_add_u32 s{sTmp[0]}, s{sTmp[0]}, s{sTmp[1]}")
        if not self.c1bf:
            for r in R4: a(f"v_permlane32_swap_b32 v{acc+r}, v{t1+r}")
        a(f"s_lshl_b32 s{sTmp[1]}, s{sW}, 12"); a(f"s_add_u32 s{sTmp[0]}, s{sTmp[0]}, s{sTmp[1]}")
        a(f"s_lshl_b32 s{sTmp[1]}, s{sXG}, 8"); a(f"s_add_u32 s{sTmp[0]}, s{sTmp[0]}, s{sTmp[1]}")
        if not self.c1bf:
            for r in R4: a(f"v_add_f32 v{acc+r}, v{acc+r}, v{t1+r}")
        a(f"s_add_u32 s{sTmp[0]}, s{sTmp[0]}, {O_C2}")
        self.tag([acc, acc+1, acc+2, acc+3])
        if self.c1bf: self.exec_set(0xffff, 0xffff)
        else: a("s_mov_b32 exec_hi, 0")
        a(f"buffer_store_dwordx4 {vr(acc,4)}, v14, {W}, s{sTmp[0]} offen sc1")
        self.exec_all()
        lm = a.newlabel("ml2")
        a(f"s_and_b32 s{sTmp[1]}, s{sI}, 3"); a(f"s_or_b32 s{sTmp[1]}, s{sTmp[1]}, s{sW}"); a(f"s_cmp_lg_u32 s{sTmp[1]}, 0"); a(f"s_cbranch_scc1 {lm}")
        for r in (1, 2, 3):
            a(f"s_mov_b64 vcc, {1 << r}")
            a(f"v_cndmask_b32 v{Mx}, v{Mx}, v{Mx+r}, vcc"); a(f"v_cndmask_b32 v{den}, v{den}, v{den+r}, vcc")
        a(f"v_mov_b32 v{Mx+1}, v{den}"); a(f"v_mov_b32 v{Mx+2}, 0"); a(f"v_mov_b32 v{Mx+3}, 0")
        self.tag([Mx, Mx+1, Mx+2, Mx+3])
        a(f"s_lshl_b32 s{sTmp[1]}, s{sI}, 7"); a(f"s_lshl_b32 s{sTmp[2]}, s{sXG}, 4"); a(f"s_add_u32 s{sTmp[1]}, s{sTmp[1]}, s{sTmp[2]}")
        a(f"s_add_u32 s{sTmp[1]}, s{sTmp[1]}, {O_ML2}")
        a(f"v_lshlrev_b32 v15, 3, v{vL16}")
        a("s_mov_b64 exec, 15")
        a(f"buffer_store_dwordx4 {vr(Mx,4)}, v15, {W}, s{sTmp[1]} offen sc1")
        self.exec_all()
        a.label(lm)
        self.stamp(21)
        self.tu()
        if not self.pfnew: self.load_wo(pWoA)
        a.c("second reduction step (8 key ranges), normalisation, then ctx slice @ w_uv")
        G0, G1, M0, M1 = 16, 20, 24, 28
        a(f"v_bfe_u32 v15, v{vL16}, 6, 2")
        a(f"v_bfe_u32 v14, v{vL16}, 4, 2"); a(f"v_lshlrev_b32 v14, 2, v14"); a(f"v_lshrrev_b32 v32, 8, v{vL16}"); a(f"v_add_u32 v14, v14, v32")
        a(f"v_lshlrev_b32 v14, 4, v14"); a(f"v_lshl_add_u32 v14, v15, 8, v14")
        a(f"v_lshlrev_b32 v15, 4, v15")
        a(f"s_lshr_b32 s{sTmp[0]}, s{sH}, 2"); a(f"s_lshl_b32 s{sTmp[0]}, s{sTmp[0]}, 16"); a(f"s_lshl_b32 s{sTmp[1]}, s{sJ}, 13"); a(f"s_add_u32 s{sTmp[0]}, s{sTmp[0]}, s{sTmp[1]}")
        a(f"s_lshl_b32 s{sTmp[1]}, s{sW}, 11"); a(f"s_add_u32 s{sTmp[0]}, s{sTmp[0]}, s{sTmp[1]}"); a(f"s_add_u32 s{sTmp[0]}, s{sTmp[0]}, {O_C2}")
        a(f"s_lshl_b32 s{sTmp[2]}, s{sH}, 7"); a(f"s_add_u32 s{sTmp[2]}, s{sTmp[2]}, {O_ML2}")
        def iss2():
            a(f"buffer_load_dwordx4 {vr(M0,4)}, v15, {W}, s{sTmp[2]} offen sc1")
            a(f"buffer_load_dwordx4 {vr(M1,4)}, v15, {W}, s{sTmp[2]} offen offset:64 sc1")
            a(f"buffer_load_dwordx4 {vr(G0,4)}, v14, {W}, s{sTmp[0]} offen sc1")
            a(f"buffer_load_dwordx4 {vr(G1,4)}, v14, {W}, s{sTmp[0]} offen offset:1024 sc1")
        self.poll(iss2, [M0, M1, G0, G1], site='h5b')
        self.stampval(26, sSpin); self.stampval(27, sPos)
        self.stamp(14)
        self.tu()
        self.burst('A2')
        lsel = [a.newlabel("sel") for _ in range(4)]; lj = a.newlabel("selj")
        Mx, f0, f1, Ls = 32, 33, 34, 35
        a(f"v_max_f32 v{Mx}, v{M0}, v{M1}")
        a(f"s_and_b32 s{sTmp[1]}, s{sH}, 3")
        for r in (1, 2, 3):
            a(f"s_cmp_eq_u32 s{sTmp[1]}, {r}"); a(f"s_cbranch_scc1 {lsel[r]}")
        a(f"s_branch {lj}")
        for r in (1, 2, 3):
            a.label(lsel[r])
            a(f"v_mov_b32 v{G0}, v{G0+r}"); a(f"v_mov_b32 v{G1}, v{G1+r}")
            if r < 3: a(f"s_branch {lj}")
        a.label(lj)
        self.dpp_steps([Mx], "v_max_f32", ["row_ror:4", "row_ror:8"])
        a(f"v_sub_f32 v{f0}, v{M0}, v{Mx}"); a(f"v_sub_f32 v{f1}, v{M1}, v{Mx}")
        a(f"v_exp_f32 v{f0}, v{f0}"); a(f"v_exp_f32 v{f1}, v{f1}")
        a(f"v_mul_f32 v{Ls}, v{f0}, v{M0+1}"); a(f"v_mul_f32 v{G0}, v{f0}, v{G0}")
        a(f"v_fmac_f32 v{Ls}, v{f1}, v{M1+1}"); a(f"v_fmac_f32 v{G0}, v{f1}, v{G1}")
        self.dpp_steps([Ls, G0], "v_add_f32", ["row_ror:4", "row_ror:8"])
        a(f"v_rcp_f32 v{Ls}, v{Ls}")
        a(f"v_mul_f32 v{G0}, v{G0}, v{Ls}")
        Xp = 14
        a(f"v_cvt_pk_bf16_f32 v{Xp}, v{G0}, v{G0}")
        D, Ab = 16, 20
        self.pv_gemv(Xp, 4, lambda i: vr(WUV+4*i, 4), D, Ab)
        self.red_write(D)
        self.row_slot_addr()
        self.tu()
        a("s_waitcnt lgkmcnt(0)"); a("s_barrier")
        lf = a.newlabel("uvfin")
        a(f"s_cmp_lg_u32 s{sW}, 0"); a(f"s_cbranch_scc1 {lf}")
        G = 16
        self.red_final_read(G)
        a(f"s_mov_b32 s{sA}, {f32hex(0.125)}")
        a("s_waitcnt lgkmcnt(0)")
        self.sum4(G)
        a(f"v_writelane_b32 v{G}, 0, 32"); a(f"v_writelane_b32 v{G+1}, s{sA}, 32")
        self.tag([G, G+1, G+2, G+3])
        a("s_mov_b32 exec_hi, 1")
        self.local_stores([(G, vL16, sTmp[0], None)])
        a("s_mov_b32 exec_hi, -1")
        a.label(lf)
        self.stamp(7)

    def stage1_bf(self, DT, P, AF, steps, rdA):
        a = self.a
        R4 = range(4)
        a.c("bf16 partial sums go to the XCD group; their (max, sum) granules are the flag and leave after the sums have been written")
        a(f"v_lshrrev_b32 v14, 8, v{vL16}"); a(f"v_lshlrev_b32 v14, 16, v14"); a(f"v_and_b32 v15, 0xf0, v{vL16}"); a(f"v_add_u32 v14, v14, v15")
        a(f"s_lshl_b32 s{sTmp[0]}, s{sXG}, 19"); a(f"s_lshl_b32 s{sTmp[1]}, s{sGA}, 18"); a(f"s_add_u32 s{sTmp[0]}, s{sTmp[0]}, s{sTmp[1]}")
        a(f"s_lshl_b32 s{sTmp[1]}, s{sW}, 14"); a(f"s_add_u32 s{sTmp[0]}, s{sTmp[0]}, s{sTmp[1]}")
        a(f"s_and_b32 s{sTmp[2]}, s{sS}, 15"); a(f"s_lshl_b32 s{sTmp[1]}, s{sTmp[2]}, 8"); a(f"s_add_u32 s{sTmp[0]}, s{sTmp[0]}, s{sTmp[1]}")
        a(f"s_add_u32 s{sTmp[0]}, s{sTmp[0]}, {O_C1}")
        a(f"s_lshl_b32 s{sTmp[3]}, s{sXG}, 14"); a(f"s_lshl_b32 s{sTmp[1]}, s{sGA}, 13"); a(f"s_add_u32 s{sTmp[3]}, s{sTmp[3]}, s{sTmp[1]}")
        a(f"s_lshl_b32 s{sTmp[1]}, s{sW}, 9"); a(f"s_add_u32 s{sTmp[3]}, s{sTmp[3]}, s{sTmp[1]}")
        a(f"s_lshl_b32 s{sTmp[1]}, s{sTmp[2]}, 5"); a(f"s_add_u32 s{sTmp[3]}, s{sTmp[3]}, s{sTmp[1]}")
        a(f"s_add_u32 s{sTmp[3]}, s{sTmp[3]}, {O_ML1}")
        a(f"v_bfe_u32 v15, v{vL16}, 6, 2"); a(f"v_lshlrev_b32 v15, 11, v15")
        a(f"v_bfe_u32 v34, v{vL16}, 8, 1"); a(f"v_lshl_add_u32 v15, v34, 4, v15")
        a(f"s_mov_b32 vcc_lo, 0xffff0000"); a("s_mov_b32 vcc_hi, 0")
        a(f"v_cndmask_b32 v34, v32, v33, vcc")
        mlops = [f"v_mov_b32_dpp v32, v34 quad_perm:[0,0,0,0] {DPPALL}", f"v_mov_b32_dpp v33, v34 quad_perm:[1,1,1,1] {DPPALL}",
                 f"v_mov_b32_dpp v35, v34 quad_perm:[3,3,3,3] {DPPALL}", f"v_mov_b32_dpp v34, v34 quad_perm:[2,2,2,2] {DPPALL}"]
        def pack(wp):
            D0, E0 = DT + 8*wp, DT + 8*wp + 4
            a(f"v_cvt_pk_bf16_f32 v{D0}, v{D0}, v{D0+1}"); a(f"v_cvt_pk_bf16_f32 v{D0+1}, v{D0+2}, v{D0+3}")
            a(f"v_cvt_pk_bf16_f32 v{D0+2}, v{E0}, v{E0+1}"); a(f"v_cvt_pk_bf16_f32 v{D0+3}, v{E0+2}, v{E0+3}")
        def item(wp):
            def pre(): a(f"s_add_u32 s{sTmp[1]}, s{sTmp[0]}, {wp*4096}")
            return (DT+8*wp, 14, sTmp[1], pre)
        for k in range(16):
            t, u = steps[k]; b = AF + 4 * (k % 4)
            rem = min(3, 15 - k)
            a(f"s_waitcnt lgkmcnt({2*rem})")
            c = "0" if u == 0 else vr(DT+4*t, 4)
            a(f"v_mfma_f32_16x16x32_bf16 {vr(DT+4*t,4)}, {vr(P+4*u,4)}, {vr(b,4)}, {c}")
            if k + 4 < 16: rdA(k + 4)
            if k == 0:
                for x_ in mlops: a(x_)
            if k == 2: self.tag([32, 33, 34, 35])
            if k in (7, 11, 15):
                pack((k - 7) // 4)
                if self.opt2: self.local_stores([item((k - 7) // 4)])
        pack(3)
        self.stamp(19)
        if self.opt2: self.local_stores([item(3)])
        else: self.local_stores([item(wp) for wp in range(4)])
        G, MM, LL = 16, 48, 52
        a(f"v_bfe_u32 v14, v{vL16}, 4, 2"); a(f"v_lshlrev_b32 v14, 2, v14"); a(f"v_lshrrev_b32 v36, 8, v{vL16}"); a(f"v_add_u32 v14, v14, v36")
        a(f"v_lshlrev_b32 v14, 5, v14")
        a(f"s_lshl_b32 s{sTmp[0]}, s{sXG}, 5"); a(f"s_add_u32 s{sTmp[0]}, s{sTmp[0]}, s{sI}")
        a(f"s_lshl_b32 s{sTmp[2]}, s{sTmp[0]}, 9"); a(f"s_add_u32 s{sTmp[2]}, s{sTmp[2]}, {O_ML1}")
        a("s_waitcnt vmcnt(0)")
        def pre_ml(): a("s_mov_b32 exec_lo, 0x11111111"); a("s_mov_b32 exec_hi, 0")
        self.local_stores([(32, 15, sTmp[3], pre_ml)])
        self.exec_all()
        self.stamp(5)
        def issML():
            a(f"buffer_load_dwordx4 {vr(MM,4)}, v14, {W}, s{sTmp[2]} offen sc1")
            a(f"buffer_load_dwordx4 {vr(LL,4)}, v14, {W}, s{sTmp[2]} offen offset:16 sc1")
        self.poll(issML, [MM, LL], site='ml1')
        self.stamp(20)
        for i in range(4):
            a(f"buffer_load_dwordx4 {vr(G+4*i,4)}, v{vL16}, {W}, s{sC1} offen offset:{i*1024} sc1")
        Mx, wv, den, t1 = 56, 60, 64, 68
        for r in R4: a(f"v_max_f32_dpp v{Mx+r}, v{MM+r}, v{MM+r} {self.X1} {DPPALL}")
        self.dpp_steps([Mx+r for r in R4], "v_max_f32", [self.X2])
        for sw in ("v_permlane16_swap_b32", "v_permlane32_swap_b32"):
            for r in R4: a(f"v_mov_b32 v{t1+r}, v{Mx+r}")
            for r in R4: a(f"{sw} v{Mx+r}, v{t1+r}")
            for r in R4: a(f"v_max_f32 v{Mx+r}, v{Mx+r}, v{t1+r}")
        for r in R4: a(f"v_sub_f32 v{wv+r}, v{MM+r}, v{Mx+r}")
        for r in R4: a(f"v_exp_f32 v{wv+r}, v{wv+r}")
        for r in R4: a(f"v_mul_f32 v{den+r}, v{wv+r}, v{LL+r}")
        self.dpp_steps([den+r for r in R4], "v_add_f32", [self.X1, self.X2])
        for sw in ("v_permlane16_swap_b32", "v_permlane32_swap_b32"):
            for r in R4: a(f"v_mov_b32 v{t1+r}, v{den+r}")
            for r in R4: a(f"{sw} v{den+r}, v{t1+r}")
            for r in R4: a(f"v_add_f32 v{den+r}, v{den+r}, v{t1+r}")
        self.dwait(0, 4, 'sw1')
        self.stamp(6)
        self.tu()
        self.burst('A1')
        accA, accB, un = 48, 52, 32
        for i in range(4):
            g0 = G + 4*i
            for q in range(4):
                a(f"v_lshlrev_b32 v{un+2*q}, 16, v{g0+q}"); a(f"v_and_b32 v{un+2*q+1}, 0xffff0000, v{g0+q}")
            for q in range(8):
                acc = (accA if q < 4 else accB) + (q & 3)
                op = "v_mul_f32_dpp" if i == 0 else "v_fmac_f32_dpp"
                a(f"{op} v{acc}, v{wv+(q&3)}, v{un+q} row_newbcast:{i} {DPPALL}")
        for r in R4: a(f"v_permlane32_swap_b32 v{accA+r}, v{accB+r}")
        for r in R4: a(f"v_add_f32 v{accA+r}, v{accA+r}, v{accB+r}")
        for r in R4: a(f"v_mov_b32 v{t1+r}, v{accA+r}")
        for r in R4: a(f"v_permlane16_swap_b32 v{accA+r}, v{t1+r}")
        for r in R4: a(f"v_add_f32 v{accA+r}, v{accA+r}, v{t1+r}")

    def check_inline(self, regs, ok_label):
        a = self.a
        acc, acc2 = vT0, vT0 + 1
        dw = [g + i for g in regs for i in range(4)]
        for k, r in enumerate(dw): a(f"v_xor_b32 v{r}, s{sT[k % 4]}, v{r}")
        a(f"v_or3_b32 v{acc}, v{dw[0]}, v{dw[1]}, v{dw[2]}")
        a(f"v_or3_b32 v{acc2}, v{dw[3]}, v{dw[4]}, v{dw[5]}")
        k = 6; tog = 0
        while k < len(dw):
            tgt = acc if tog == 0 else acc2
            a(f"v_or3_b32 v{tgt}, v{tgt}, v{dw[k]}, v{dw[k+1]}"); k += 2; tog ^= 1
        a(f"v_or_b32 v{acc}, v{acc}, v{acc2}")
        a(f"v_and_b32 v{acc}, s{sFF}, v{acc}")
        a(f"v_cmp_ne_u32 vcc, 0, v{acc}")
        a(f"s_cbranch_vccz {ok_label}")

    def row_slot_addr(self):
        a = self.a
        a(f"s_lshl_b32 s{sTmp[0]}, s{sH}, 3"); a(f"s_add_u32 s{sTmp[0]}, s{sTmp[0]}, s{sJ}"); a(f"s_lshl_b32 s{sTmp[0]}, s{sTmp[0]}, 10")
        a(f"s_add_u32 s{sTmp[0]}, s{sTmp[0]}, {O_ROW}")

    def bmiddle(self):
        a = self.a
        a.c("==== B layer: scores of this wave's 256 keys from the register-resident K, softmax with the true maximum, P @ V ====")
        k = self.kblk
        if self.mode == "co":
            l0 = a.newlabel("kw"); l1 = a.newlabel("kw")
            a.label(l0)
            a(f"s_cmp_ge_u32 s{sPos}, {self.KEND+self.keep}"); a(f"s_cbranch_scc1 {l1}")
            self.stream_call()
            a(f"s_waitcnt vmcnt({self.keep})")
            a(f"s_branch {l0}")
            a.label(l1)
            a(f"s_waitcnt vmcnt({self.keep})")
        self.stampval(24, sPos)
        self.stamp(16)
        if not self.vsplit or self.woqk: self.wo_setup(pWoB)
        Db = [16, 20, 24]; SB = 28; Tt = 14
        def redops(b):
            D = Db[b % 3]; S = SB + b
            return [f"v_mov_b32_dpp v{S}, v{D} quad_perm:[0,0,0,0] {DPPALL}",
                    f"v_mov_b32_dpp v{Tt}, v{D+2} quad_perm:[2,2,2,2] {DPPALL}",
                    f"v_add_f32_dpp v{S}, v{D+1}, v{S} quad_perm:[1,1,1,1] {DPPALL}",
                    f"v_add_f32_dpp v{Tt}, v{D+3}, v{Tt} quad_perm:[3,3,3,3] {DPPALL}",
                    f"v_add_f32 v{S}, v{S}, v{Tt}"]
        for b in range(16):
            D = Db[b % 3]
            ro = redops(b - 2) if b >= 2 else []
            for t in range(4):
                c = "0" if t == 0 else vr(D, 4)
                a(f"v_mfma_f32_16x16x32_bf16 {vr(D,4)}, {vr(AT+4*t,4)}, {ar(16*b+4*t,4)}, {c}")
                if ro: a(ro[t])
                if self.vsplit:
                    if self.woqk and t == 1 and b < 6: self.wo_one(b)
                    if t == 2 and (6 if self.woqk else 0) <= b < (10 if self.woqk else 4): self.vtr_one(4 + b - (6 if self.woqk else 0))
                else:
                    if t == 1 and b < 8: self.pf_guard(lambda: self.vtr_one(b))
                    if t == 2 and 8 <= b < 14: self.pf_guard(lambda: self.wo_one(b - 8))
            if ro: a(ro[4])
            if b in self.qkcalls: self.topup(self.dq)
        r14, r15 = redops(14), redops(15)
        r15 = [x.replace(f"v{Tt}", "v15") for x in r15]
        for x14, x15 in zip(r14, r15):
            a(x14); a(x15)
        self.stamp(3)
        m, m2 = 14, 15
        a(f"v_max3_f32 v{m}, v{SB}, v{SB+1}, v{SB+2}"); a(f"v_max3_f32 v{m2}, v{SB+3}, v{SB+4}, v{SB+5}")
        a(f"v_max3_f32 v{m}, v{m}, v{SB+6}, v{SB+7}"); a(f"v_max3_f32 v{m2}, v{m2}, v{SB+8}, v{SB+9}")
        a(f"v_max3_f32 v{m}, v{m}, v{SB+10}, v{SB+11}"); a(f"v_max3_f32 v{m2}, v{m2}, v{SB+12}, v{SB+13}")
        a(f"v_max3_f32 v{m}, v{m}, v{SB+14}, v{SB+15}"); a(f"v_max_f32 v{m}, v{m}, v{m2}")
        self.dpp_steps([m], "v_max_f32", ["row_ror:4", "row_ror:8", "b15", "b31"])
        a(f"v_readlane_b32 s{sA}, v{m}, 63")
        a(f"v_mov_b32 v{m2}, s{sSc}")
        a(f"v_mul_f32 v{m}, s{sA}, v{m2}")
        a(f"v_readfirstlane_b32 s{sA}, v{m}")
        for q in range(16): a(f"v_fma_f32 v{SB+q}, v{SB+q}, s{sSc}, -v{m}")
        for q in range(16): a(f"v_exp_f32 v{SB+q}, v{SB+q}")
        l, l2 = 14, 15
        a(f"v_add_f32 v{l}, v{SB}, v{SB+1}"); a(f"v_add_f32 v{l2}, v{SB+2}, v{SB+3}")
        for q in range(4, 16, 2):
            a(f"v_add_f32 v{l}, v{l}, v{SB+q}"); a(f"v_add_f32 v{l2}, v{l2}, v{SB+q+1}")
        a(f"v_add_f32 v{l}, v{l}, v{l2}")
        pk = [f"v_cvt_pk_bf16_f32 v{SB+q}, v{SB+q}, v{SB+q}" for q in range(16)]
        red = [f"v_add_f32_dpp v{l}, v{l}, v{l} row_ror:4 {DPPALL}", f"v_add_f32_dpp v{l}, v{l}, v{l} row_ror:8 {DPPALL}",
               f"v_add_f32_dpp v{l}, v{l}, v{l} row_bcast:15 row_mask:0xa bank_mask:0xf", f"v_add_f32_dpp v{l}, v{l}, v{l} row_bcast:31 row_mask:0xc bank_mask:0xf"]
        for i in range(4):
            for x_ in pk[4*i:4*i+2]: a(x_)
            a(red[i])
            for x_ in pk[4*i+2:4*i+4]: a(x_)
        a(f"v_readlane_b32 s{sB_}, v{l}, 63")
        self.stamp(4)
        if self.mode == "co":
            self.drain(self.keep)
            a("s_waitcnt vmcnt(16)")
        Ab, Do = 44, 52
        a(f"s_lshl_b32 s{sTmp[0]}, s{sW}, 14"); a(f"v_add_u32 v15, s{sTmp[0]}, v{vL16}")
        if L_VL: a(f"v_add_u32 v15, {L_VL}, v15")
        if self.smf:
            self.pv_smf(SB, Ab, Do)
        else:
            self.pv_dense(SB, Ab, Do)
        self.row_slot_addr()
        a(f"v_writelane_b32 v{Do}, s{sA}, 32"); a(f"v_writelane_b32 v{Do+1}, s{sB_}, 32")
        self.red_write(Do)
        a("s_waitcnt lgkmcnt(0)"); a("s_barrier")
        self.stamp(5)
        lf = a.newlabel("bfin")
        a(f"s_cmp_lg_u32 s{sW}, 0"); a(f"s_cbranch_scc1 {lf}")
        G = 16; MLr = 32
        a(f"v_mov_b32 v14, {L_RED+512}")
        for w in range(4): a(f"ds_read_b64 {vr(MLr+2*w,2)}, v14 offset:{w*RSTR}")
        self.red_final_read(G)
        a("s_waitcnt lgkmcnt(4)")
        M = 40
        a(f"v_max3_f32 v{M}, v{MLr}, v{MLr+2}, v{MLr+4}"); a(f"v_max_f32 v{M}, v{M}, v{MLr+6}")
        for w in range(4): a(f"v_sub_f32 v{MLr+2*w}, v{MLr+2*w}, v{M}")
        for w in range(4): a(f"v_exp_f32 v{MLr+2*w}, v{MLr+2*w}")
        a(f"v_readfirstlane_b32 s{sA}, v{M}")
        a("s_waitcnt lgkmcnt(0)")
        for r in range(4): a(f"v_mul_f32 v{G+r}, v{MLr}, v{G+r}")
        for w in range(1, 4):
            for r in range(4): a(f"v_fmac_f32 v{G+r}, v{MLr+2*w}, v{G+4*w+r}")
        a(f"v_writelane_b32 v{G}, s{sA}, 32")
        self.tag([G, G+1, G+2, G+3])
        a("s_mov_b32 exec_hi, 1")
        self.local_stores([(G, vL16, sTmp[0], None)])
        a("s_mov_b32 exec_hi, -1")
        a.label(lf)
        self.stamp(7)

    def pv_dense(self, SB, Ab, Do):
        a = self.a
        LB = [16, 20, 24, 56]
        order = [(b, u) for b in range(10) for u in range(4)] + [(b, u) for b in range(10, 14) for u in range(4)] + [(b, u) for b in (14, 15) for u in range(4)]
        def build(kk):
            b, u = order[kk]; A = Ab + 4 * (kk % 2)
            for r in range(4):
                a(f"v_and_b32_dpp v{A+r}, v{SB+b}, v{vM[r]} row_newbcast:{4*u} {DPPALL}")
        def bop(kk):
            b, u = order[kk]
            if b < 10: return vr(VRES+16*b+4*u, 4)
            if b < 14: return vr(LB[u], 4)
            return vr(self.vtr_reg(b, u), 4)
        def ldsrd(b, u):
            a(f"ds_read_b128 {vr(LB[u],4)}, v15 offset:{((b-10)*4+u)*1024}")
        build(0); build(1)
        for kk in range(len(order)):
            b, u = order[kk]
            if (b, u) == (8, 0):
                self.stamp(17)
                a("s_waitcnt vmcnt(0)")
                self.stamp(18)
                for uu in range(4): ldsrd(10, uu)
            if 10 <= b < 14: a(f"s_waitcnt lgkmcnt(3)" if not (b == 13 and u > 0) else f"s_waitcnt lgkmcnt({3-u})")
            A = Ab + 4 * (kk % 2)
            c = "0" if kk == 0 else vr(Do, 4)
            a(f"v_mfma_f32_16x16x32_bf16 {vr(Do,4)}, {vr(A,4)}, {bop(kk)}, {c}")
            if 10 <= b < 13: ldsrd(b + 1, u)
            if kk + 2 < len(order): build(kk + 2)

    def pv_smf(self, SB, Ab, Do):
        a = self.a
        N0, N1, IDX = 56, 57, 58
        n = 14
        a(f"v_bfe_u32 v{n}, v{vL16}, 4, 4")
        a(f"v_and_b32 v{IDX}, 3, v{n}"); a(f"v_mul_u32_u24 v{IDX}, 0x1111, v{IDX}")
        a(f"v_lshrrev_b32 v{n}, 2, v{n}"); a(f"v_mov_b32 v59, 0xffff")
        a(f"v_cmp_eq_u32 vcc, 0, v{n}"); a(f"v_cndmask_b32 v{N0}, 0, v59, vcc")
        a(f"v_cmp_eq_u32 vcc, 1, v{n}"); a(f"v_cndmask_b32 v{N1}, 0, v59, vcc")
        for r in range(4): a(f"v_mov_b32 v{Do+r}, 0")
        order = [(b, s_) for b in range(16) for s_ in range(2)]
        LB = [16, 28]
        def build(kk):
            b, s_ = order[kk]; A = Ab + 4 * (kk % 2)
            a(f"v_and_b32_dpp v{A}, v{SB+b}, v{N0} row_newbcast:{8*s_} {DPPALL}")
            a(f"v_and_b32_dpp v{A+1}, v{SB+b}, v{N1} row_newbcast:{8*s_} {DPPALL}")
            a(f"v_and_b32_dpp v{A+2}, v{SB+b}, v{N0} row_newbcast:{8*s_+4} {DPPALL}")
            a(f"v_and_b32_dpp v{A+3}, v{SB+b}, v{N1} row_newbcast:{8*s_+4} {DPPALL}")
        def bop(kk):
            b, s_ = order[kk]
            if b < 10: return vr(VRES+16*b+8*s_, 8)
            if b < 14: return vr(LB[s_], 8)
            return vr(self.vtr_reg(b, 2*s_), 8)
        def ldsrd(b, s_):
            for hf in range(2):
                a(f"ds_read_b128 {vr(LB[s_]+4*hf,4)}, v15 offset:{((b-10)*4+2*s_+hf)*1024}")
        build(0); build(1)
        for kk in range(len(order)):
            b, s_ = order[kk]
            if (b, s_) == (8, 0):
                self.stamp(17)
                a("s_waitcnt vmcnt(0)")
                self.stamp(18)
                ldsrd(10, 0); ldsrd(10, 1)
            if 10 <= b < 14: a("s_waitcnt lgkmcnt(2)" if not (b == 13 and s_ == 1) else "s_waitcnt lgkmcnt(0)")
            A = Ab + 4 * (kk % 2)
            a(f"v_smfmac_f32_16x16x64_bf16 {vr(Do,4)}, {vr(A,4)}, {bop(kk)}, v{IDX}")
            if 10 <= b < 13: ldsrd(b + 1, s_)
            if kk + 2 < len(order): build(kk + 2)

    def opart(self):
        a = self.a
        a.c("==== O part: combine the 8 partial results of the head, @ W_o slice, column hand-off, residual update ====")
        G, ML = 16, 20
        a(f"v_lshrrev_b32 v14, 7, v{vL16}"); a(f"v_lshlrev_b32 v15, 10, v14")
        a(f"v_and_b32 v14, 0x70, v{vL16}"); a(f"v_add_u32 v14, v15, v14")
        a(f"s_lshl_b32 s{sTmp[0]}, s{sH}, 13"); a(f"s_add_u32 s{sTmp[0]}, s{sTmp[0]}, {O_ROW}")
        a(f"s_lshl_b32 s{sTmp[1]}, s{sW}, 7"); a(f"s_add_u32 s{sTmp[1]}, s{sTmp[1]}, s{sTmp[0]}")
        N0, N1, IDX = 60, 61, 62
        if self.opt1:
            a(f"v_lshrrev_b32 v59, 8, v{vL16}"); a(f"v_and_b32 v58, 1, v59"); a(f"v_lshrrev_b32 v59, 1, v59"); a(f"v_lshl_add_u32 v59, v58, 2, v59")
            a(f"v_mul_u32_u24 v59, 160, v59")
            self.smf_consts(N0, N1, IDX, 57)
        else:
            a(f"v_lshrrev_b32 v59, 8, v{vL16}"); a(f"v_mul_u32_u24 v59, 160, v59")
        a(f"v_and_b32 v58, 0xf0, v{vL16}"); a(f"v_add_u32 v59, v59, v58")
        a(f"s_mul_i32 s{sTmp[2]}, s{sW}, {WOSTR}"); a(f"s_add_u32 s{sTmp[2]}, s{sTmp[2]}, {L_R0}"); a(f"v_add_u32 v59, s{sTmp[2]}, v59")
        def coladdr():
            t = 63 if self.opt1 else 14
            u = 58 if self.opt1 else 15
            a(f"v_lshrrev_b32 v{t}, 4, v{vL16}"); a(f"v_mul_u32_u24 v{u}, 13108, v{t}"); a(f"v_lshrrev_b32 v{u}, 16, v{u}")
            a(f"v_mul_u32_u24 v{u-1 if self.opt1 else 24}, 5, v{u}"); a(f"v_sub_u32 v{t}, v{t}, v{u-1 if self.opt1 else 24}"); a(f"v_lshlrev_b32 v{t}, 4, v{t}"); a(f"v_lshl_add_u32 v{t}, v{u}, 7, v{t}")
            a(f"s_lshl_b32 s{sTmp[4]}, s{sJ}, 5"); a(f"s_add_u32 s{sTmp[4]}, s{sTmp[4]}, s{sH}"); a(f"s_lshl_b32 s{sTmp[4]}, s{sTmp[4]}, 9")
            a(f"s_add_u32 s{sTmp[4]}, s{sTmp[4]}, s{sCol}")
            return t
        if self.opt1: tcol = coladdr()
        def iss():
            a(f"buffer_load_dwordx4 {vr(ML,4)}, v15, {W}, s{sTmp[0]} offen offset:512 sc1")
            a(f"buffer_load_dwordx4 {vr(G,4)}, v14, {W}, s{sTmp[1]} offen sc1")
        self.poll(iss, [ML, G], site='row')
        self.stamp(8)
        self.tu()
        self.burst('O0')
        WB = 24
        for i in range(8):
            off = ((i >> 1) * 8 + (i & 1) * 2) * 160 if self.opt1 else i * 640
            a(f"ds_read_b128 {vr(WB+4*i,4)}, v59 offset:{off}")
        if self.pfnew and not (self.opt1 and self.latepf): self.next_w()
        self.combine8(G, ML, 56)
        Xp = 14
        a(f"v_cvt_pk_bf16_f32 v{Xp}, v{G}, v{G}")
        D, Ab = 56, 16
        a("s_waitcnt lgkmcnt(0)")
        if self.opt1:
            self.pv_gemv_smf(Xp, 4, lambda i: vr(WB+8*i, 8), D, Ab, N0, N1, IDX)
        else:
            self.pv_gemv(Xp, 8, lambda i: vr(WB+4*i, 4), D, Ab)
        self.red_write(D)
        if self.opt1:
            if self.pfnew and self.latepf: self.next_w()
        else:
            tcol = coladdr()
        self.tu()
        a("s_waitcnt lgkmcnt(0)"); a("s_barrier")
        lf = a.newlabel("ofin")
        a(f"s_cmp_lg_u32 s{sW}, 0"); a(f"s_cbranch_scc1 {lf}")
        self.red_final_read(G)
        a("s_waitcnt lgkmcnt(0)")
        self.sum4(G); self.tag([G, G+1, G+2, G+3])
        self.exec_set(0xfffff, 0)
        a(f"buffer_store_dwordx4 {vr(G,4)}, v{tcol}, {W}, s{sTmp[4]} offen sc1")
        self.exec_all()
        a.label(lf)
        self.stamp(9)
        if not self.pfnew: self.next_w()
        if self.skipfin:
            lk = a.newlabel("keep")
            a(f"s_cmp_lg_u32 s{sL}, {(self.stop or 4) - 1}"); a(f"s_cbranch_scc1 {lk}")
            a(f"s_cmp_lg_u32 s{sH}, 0"); a("s_cbranch_scc1 L_fin2")
            a.label(lk)
        if self.vsplit and not self.woqk:
            lb = a.newlabel("nowo")
            a(f"s_bitcmp1_b32 s{sL}, 0"); a(f"s_cbranch_scc1 {lb}")
            self.load_wo(pWoB)
            a.label(lb)
        a(f"v_lshrrev_b32 v14, 7, v{vL16}"); a(f"v_lshlrev_b32 v14, 9, v14")
        a(f"v_and_b32 v15, 0x70, v{vL16}"); a(f"v_add_u32 v14, v14, v15")
        a(f"s_lshl_b32 s{sTmp[0]}, s{sJ}, 14"); a(f"s_lshl_b32 s{sTmp[1]}, s{sW}, 7"); a(f"s_add_u32 s{sTmp[0]}, s{sTmp[0]}, s{sTmp[1]}")
        a(f"s_add_u32 s{sTmp[0]}, s{sTmp[0]}, s{sCol}")
        for i in range(1, 4): a(f"s_add_u32 s{sTmp[i]}, s{sTmp[0]}, {i*4096}")
        if self.opt1: self.prep_q()
        def issc():
            for i in range(4):
                a(f"buffer_load_dwordx4 {vr(G+4*i,4)}, v14, {W}, s{sTmp[i]} offen sc1")
        self.poll(issc, [G, G+4, G+8, G+12], execmask=(0x1f1f1f1f, 0x1f1f1f1f), site='col')
        self.stampval(28, sSpin); self.stampval(29, sPos)
        self.stamp(10)
        self.tu()
        self.burst('Q0')
        self.sum4(G)
        for r in range(4): a(f"v_add_f32_dpp v{G+r}, v{G+r}, v{G+r} row_ror:8 {DPPALL}")
        self.treduce([G, G+1, G+2, G+3])
        a(f"v_add_f32 v{G}, v{G}, v{vX}")
        a(f"v_cndmask_b32 v{vX}, 0, v{G}, s[{sM5}:{sM5+1}]")

    def second_w(self, lb=None):
        a = self.a
        lb = lb or a.newlabel("nouk")
        a(f"s_bitcmp1_b32 s{sL}, 0"); a(f"s_cbranch_scc1 {lb}")
        self.load_wuk()
        if self.vsplit:
            lc = a.newlabel("vtj")
            a(f"s_branch {lc}")
            a.label(lb)
            for k in range(4): self.vtr_one(k)
            a.label(lc)
        else:
            a.label(lb)

    def next_w(self):
        a = self.a
        lnp = a.newlabel("nopf"); lb = a.newlabel("nouk")
        a(f"s_cmp_eq_u32 s{sL}, 3"); a(f"s_cbranch_scc1 {lnp}")
        a(f"s_add_u32 s{sL}, s{sL}, 1")
        self.load_wq()
        if not self.split2: self.second_w(lb)
        a(f"s_sub_u32 s{sL}, s{sL}, 1")
        a.label(lnp)

    def epilogue(self):
        a = self.a
        a.c("==== epilogue: the workgroups of head 0 write the output; workgroup 0 advances the epoch word ====")
        le = a.newlabel("fin")
        a(f"s_cmp_lg_u32 s{sH}, 0"); a(f"s_cbranch_scc1 {le}")
        self.srd(SRD_B, pOut, 1280)
        a(f"v_lshrrev_b32 v14, 4, v{vL16}"); a(f"v_and_b32 v15, 15, v14"); a(f"v_lshrrev_b32 v14, 4, v14")
        a(f"v_lshl_add_u32 v14, v15, 2, v14")
        a(f"s_mul_i32 s{sTmp[0]}, s{sJ}, 80"); a(f"s_mul_i32 s{sTmp[1]}, s{sW}, 20"); a(f"s_add_u32 s{sTmp[0]}, s{sTmp[0]}, s{sTmp[1]}")
        a(f"v_add_u32 v14, s{sTmp[0]}, v14"); a(f"v_lshlrev_b32 v14, 1, v14")
        a(f"v_cvt_pk_bf16_f32 v15, v{vX}, v{vX}")
        a(f"s_mov_b64 exec, s[{sM5}:{sM5+1}]")
        a(f"buffer_store_short v15, v14, s[{SRD_B}:{SRD_B+3}], 0 offen")
        self.exec_all()
        a(f"s_cmp_lg_u32 s2, 0"); a(f"s_cbranch_scc1 {le}")
        a(f"s_cmp_lg_u32 s{sW}, 0"); a(f"s_cbranch_scc1 {le}")
        a(f"v_mov_b32 v14, 0")
        a("s_mov_b64 exec, 1")
        a(f"buffer_store_dword v{vT}, v14, {W}, 0 offen sc1")
        self.exec_all()
        a.label(le)
        a.label("L_fin2")
        l2 = a.newlabel("noerr")
        a(f"s_cmp_eq_u32 s{sErr}, 0"); a(f"s_cbranch_scc1 {l2}")
        self.srd(SRD_B, sDbg, 256)
        a(f"v_mov_b32 v14, 0"); a(f"v_mov_b32 v15, 0xdead")
        a("s_mov_b64 exec, 1")
        a(f"buffer_store_dword v15, v14, s[{SRD_B}:{SRD_B+3}], 0 offen")
        self.exec_all()
        a.label(l2)

    def build(self):
        a = self.a
        self.prologue()
        a.label("L_layer")
        self.qpart()
        a(f"s_bitcmp1_b32 s{sL}, 0"); a(f"s_cbranch_scc1 L_bmid")
        self.amiddle()
        a(f"s_branch L_opart")
        a.label("L_bmid")
        self.bmiddle()
        a.label("L_opart")
        self.opart()
        self.stamp(11)
        for L_ in range(4): self.dbgstamp(f"end{L_}", L_)
        a(f"s_add_u32 s{sL}, s{sL}, 1"); a(f"s_xor_b32 s{sCol}, s{sCol}, 0x20000")
        nl = self.stop if self.stop else 4
        a(f"s_cmp_ge_u32 s{sL}, {nl}"); a("s_cbranch_scc1 L_done")
        self.next_tag()
        a("s_branch L_layer")
        a.label("L_done")
        self.epilogue()
        if self.stamps:
            a(f"s_mov_b32 s{sL}, 3")
            self.stamp(13)
        a("s_waitcnt vmcnt(0)")
        a.label("L_end")
        a("s_endpgm")
        self.dw_sub()
        self.stream()
        a.label("L_codeend")
        return fix(a.lines)

HEADER = open("interleave_layers__compressed_kv_cla__mha_block_cached__decode.s.ref").read().split("; Override launch")[0]

DOC = """; One persistent launch, one workgroup (4 waves, 512 registers each, 160 KiB LDS) per CU; workgroup b = (head h = b & 31, slice j = b >> 5).
; beside the first A layer.  Layer A uses the absorbed form (q @ w_uk^T against c_kv, context through w_uv afterwards).
; LayerNorm is applied after the projection (q = rstd * (x @ W - mean * colsum(W))).
; (derived from an epoch word in d_ws that the launch advances); consumers re-read until every tag matches and strip it.
; Registers: v0..v13 lane constants, v14..v95 working set (v60..v75 / v80..v95 hold V blocks 14 / 15 in B layers),
;            v96..v255 V blocks 0..9, a0..a255 K.   LDS: V blocks 10..13 | c_kv tile | staging, score and reduction buffers.
"""

def make(path, **kw):
    body = "\n".join(Gen(**kw).build())
    src = f"""{HEADER}; @launch grid=(256,1,1) block=(256,1,1) lds={LDS_BYTES}
.amdgcn_target "amdgcn-amd-amdhsa--gfx950"
.text
.globl {KNAME}
.p2align 8
.type {KNAME},@function
{DOC}{KNAME}:
{body}
.section .rodata,"a"
.p2align 6
.amdhsa_kernel {KNAME}
  .amdhsa_next_free_vgpr 512
  .amdhsa_next_free_sgpr 102
  .amdhsa_accum_offset 256
  .amdhsa_group_segment_fixed_size 0
  .amdhsa_kernarg_size 112
  .amdhsa_user_sgpr_count 2
  .amdhsa_user_sgpr_kernarg_segment_ptr 1
  .amdhsa_system_sgpr_workgroup_id_x 1
  .amdhsa_float_denorm_mode_32 3
.end_amdhsa_kernel
"""
    open(path, "w").write(src)

if __name__ == "__main__":
    import argparse
    ap = argparse.ArgumentParser()
    ap.add_argument("-o", default="k.s"); ap.add_argument("--opts", default="")
    x = ap.parse_args()
    kw = {}
    for o in filter(None, x.opts.split(";")):
        k_, v_ = o.split("="); kw[k_] = eval(v_)
    make(x.o, **kw)
```

```python
import sys, struct
from hazard import fix

KNAME = "interleave_layers__compressed_kv_cla__mha_block_cached__decode_kernel"

class Asm:
    def __init__(self): self.lines = []; self.n = 0
    def __call__(self, s):
        for l in s.split("\n"):
            l = l.strip()
            if l: self.lines.append(l)
    def label(self, name): self.lines.append(name + ":")
    def c(self, text):
        for l in text.strip().split("\n"): self.lines.append("; " + l.strip())
    def newlabel(self, base="L"):
        self.n += 1; return f"{base}_{self.n}"

def vr(b, n=1): return f"v{b}" if n == 1 else f"v[{b}:{b+n-1}]"
def ar(b, n=1): return f"a{b}" if n == 1 else f"a[{b}:{b+n-1}]"
DPPALL = "row_mask:0xf bank_mask:0xf"
def f32hex(x): return "0x%08x" % struct.unpack("<I", struct.pack("<f", x))[0]

O_XCC  = 0x001000
O_STAMP = 0x080000
O_QP   = 0x100000
O_ROW  = 0x180000
O_COL  = 0x1C0000
O_QABS = 0x200000
O_ML1  = 0x210000
O_C2   = 0x240000
O_ML2  = 0x2C0000
O_C1   = 0x300000

L_VL  = 0
L_CKV = 65536
L_R0  = 131072
WOSTR = 5184
L_ST  = 151808
L_RED = 156160
RSTR  = 1056
L_U   = 160384
LDS_BYTES = 163840

sH, sJ, sW, sL, sAct = 3, 4, 5, 6, 7
SRD_WS, SRD_K, SRD_V, SRD_A, SRD_B = 8, 12, 16, 20, 24
sSPC, sRET = 28, 30
sT = [32, 33, 34, 35]
sSel = [36, 37, 38, 39]
pWqA, pWqB, pWuk, pWuv, pWoA, pWoB, pCkv, pOut, pX = 40, 42, 44, 46, 48, 50, 52, 54, 56
sCol = 58
sGA, sS = 59, 60
sSO = 61
sSpin = 62
sPos = 63
sFF = 64
sTmp = list(range(65, 70))
sMask = [76, 78, 80, 82]
sM5 = 84
sDbg = 86
sErr = 88
sLocal = 89
sA, sB_ = 90, 91
sTs = 92
sXG, sI, sSc, sXcc = 98, 99, 100, 101
sTf = 97
sDW, sRET2, sYoung, sVm, sVm2, sDl = 70, 72, 74, 75, 94, 95
sBud = 57
sC1 = 56
sCap = 0

vL16, vM, vT, vX, vWoff, vKoff, vVoff, vRedW = 0, [1, 2, 3, 4], 5, 6, 7, 8, 9, 10
vT0 = 11
vCk = 11
vWo = 13
WQ, WUK, WUV, VTR, VRES = 76, 60, 80, 64, 96
AT = 44

SC = (128 ** -0.5) * 1.4426950408889634
SPIN_MAX = 1 << 16
W = f"s[{SRD_WS}:{SRD_WS+3}]"

class Gen:
    def __init__(self, kblk=8, stream_mode="co", stop_after=None, local=True, stamps="", pol="nt", wpol="", cpol="", codepf=True,
                 qkcalls=(4, 10), sent=True, nopf=False, once=True, xcalls=(), dlim=6, keep=6, addn=True, pretouch=True, mlsent=True, slp=0, sent1=False, pfnew=True, mltail=True, dsite=None, pre=None, rsl=None, dq=None, dbg=None, bud=None, skipfin=True, vsplit=True, woqk=True, split2=True, c1touch=True, c1sc1=False, c1touch2=None, smf=True, cap=None, pre1=None, burst=None, c1bf=True, opt1=True, latepf=False, tus=0, tusl=0, ack=None, ack1=None, ackL=None, vtrpol=None, opt2=True, wolate=False, epi=False):
        self.wolate = wolate; self.epi = epi
        self.opt2 = opt2
        self.ackL = ackL or {}; self.vtrpol = vtrpol
        self.ack1 = ack1 or ()
        self.ack = ack or ()
        self.tus = tus; self.tusl = tusl
        self.latepf = latepf
        self.opt1 = opt1
        self.c1bf = c1bf
        self.burstn = burst or {}
        self.pre1 = pre1
        self.cap = cap
        self.smf = smf
        self.c1touch = c1touch; self.c1sc1 = c1sc1; self.c1touch2 = c1touch2
        self.split2 = split2
        self.woqk = woqk
        self.skipfin = skipfin; self.vsplit = vsplit
        self.bud = bud
        self.dbg = dbg
        self.pre = pre or {}; self.rsl = rsl or {}; self.dq = dq
        self.pfnew = pfnew; self.mltail = mltail; self.dsite = dsite or {}
        self.slp = slp; self.sent1 = sent1
        self.addn = addn; self.pretouch = pretouch; self.mlsent = mlsent
        self.once = once; self.xcalls = xcalls; self.dlim = dlim; self.keep = keep
        self.nopf = nopf
        self.a = Asm(); self.kblk = kblk; self.mode = stream_mode; self.stop = stop_after
        self.local = local; self.stamps = stamps; self.pol = pol; self.wpol = wpol; self.cpol = cpol; self.codepf = codepf
        self.qkcalls = qkcalls; self.sent = sent

    def capture(self, fn):
        saved = self.a.lines; self.a.lines = []
        fn()
        out = self.a.lines; self.a.lines = saved
        return out
    def emit(self, lines):
        self.a.lines.extend(lines)
    def srd(self, s, lo, nbytes):
        a = self.a
        a(f"s_mov_b32 s{s}, s{lo}"); a(f"s_mov_b32 s{s+1}, s{lo+1}")
        a(f"s_mov_b32 s{s+2}, {nbytes:#x}"); a(f"s_mov_b32 s{s+3}, 0x20000")
    def exec_all(self): self.a("s_mov_b64 exec, -1")
    def exec_set(self, lo, hi):
        self.a(f"s_mov_b32 exec_lo, {lo:#x}"); self.a(f"s_mov_b32 exec_hi, {hi:#x}")
    def tag(self, regs):
        for i, r in enumerate(regs):
            self.a(f"v_perm_b32 v{r}, v{r}, v{vT}, s{sSel[i%4]}")
    def stamp(self, idx):
        if not self.stamps: return
        if self.stamps == "light" and idx not in (12, 13, 5): return
        a = self.a
        lab = a.newlabel("st")
        a(f"s_cmp_lg_u32 s{sW}, 0"); a(f"s_cbranch_scc1 {lab}")
        a(f"s_memrealtime s[{sTs}:{sTs+1}]")
        a("s_waitcnt lgkmcnt(0)")
        a(f"s_lshl_b32 s96, s2, 2"); a(f"s_add_u32 s96, s96, s{sL}"); a(f"s_lshl_b32 s96, s96, 7")
        a(f"s_add_u32 s96, s96, {O_STAMP + idx*4}")
        a(f"v_mov_b32 v{vT0}, s{sTs}")
        a(f"s_mov_b64 s[{sTs}:{sTs+1}], exec"); a("s_mov_b64 exec, 1")
        a(f"buffer_store_dword v{vT0}, off, {W}, s96")
        a(f"s_mov_b64 exec, s[{sTs}:{sTs+1}]")
        a.label(lab)
    def dbgstamp(self, k, cond_layer=None):
        if not self.dbg or k not in self.dbg: return
        a = self.a
        k = self.dbg.index(k)
        lab = a.newlabel("db")
        a(f"s_cmp_lg_u32 s{sW}, 0"); a(f"s_cbranch_scc1 {lab}")
        a(f"s_cmp_ge_u32 s2, 8"); a(f"s_cbranch_scc1 {lab}")
        if cond_layer is not None:
            a(f"s_cmp_lg_u32 s{sL}, {cond_layer}"); a(f"s_cbranch_scc1 {lab}")
        a(f"s_memrealtime s[{sTs}:{sTs+1}]")
        a("s_waitcnt lgkmcnt(0)")
        a(f"s_mov_b32 s{SRD_A}, s{sDbg}"); a(f"s_mov_b32 s{SRD_A+1}, s{sDbg+1}"); a(f"s_mov_b32 s{SRD_A+2}, 256"); a(f"s_mov_b32 s{SRD_A+3}, 0x20000")
        a(f"s_lshl_b32 s96, s2, 3"); a(f"s_add_u32 s96, s96, {4*k}")
        a(f"v_mov_b32 v{vT0}, s{sTs}")
        a(f"s_mov_b64 s[{sTs}:{sTs+1}], exec"); a("s_mov_b64 exec, 1")
        a(f"buffer_store_dword v{vT0}, off, s[{SRD_A}:{SRD_A+3}], s96")
        a(f"s_mov_b64 exec, s[{sTs}:{sTs+1}]")
        a.label(lab)
    def stampval(self, idx, sreg):
        if self.stamps != "full": return
        a = self.a
        lab = a.newlabel("sv")
        a(f"s_cmp_lg_u32 s{sW}, 0"); a(f"s_cbranch_scc1 {lab}")
        a(f"s_lshl_b32 s96, s2, 2"); a(f"s_add_u32 s96, s96, s{sL}"); a(f"s_lshl_b32 s96, s96, 7")
        a(f"s_add_u32 s96, s96, {O_STAMP + idx*4}")
        a(f"v_mov_b32 v{vT0}, s{sreg}")
        a(f"s_mov_b64 s[{sTs}:{sTs+1}], exec"); a("s_mov_b64 exec, 1")
        a(f"buffer_store_dword v{vT0}, off, {W}, s96")
        a(f"s_mov_b64 exec, s[{sTs}:{sTs+1}]")
        a.label(lab)
    def stream_call(self):
        self.a(f"s_swappc_b64 s[{sRET}:{sRET+1}], s[{sSPC}:{sSPC+1}]")
    def maybe_stream(self):
        a = self.a
        lab = a.newlabel("ns")
        a(f"s_cmp_eq_u32 s{sAct}, 0"); a(f"s_cbranch_scc1 {lab}")
        self.stream_call()
        a.label(lab)
    def read_vm(self):
        a = self.a
        a(f"s_getreg_b32 s{sVm}, hwreg(HW_REG_IB_STS)")
        a(f"s_bfe_u32 s{sVm2}, s{sVm}, 0x20016"); a(f"s_and_b32 s{sVm}, s{sVm}, 15")
        a(f"s_lshl4_add_u32 s{sVm}, s{sVm2}, s{sVm}")
    def dw_sub(self):
        a = self.a
        a.c("==== dynamic wait: returns once all but the s74 youngest vector-memory operations are complete; keeps the K/V stream going meanwhile ====")
        a.label("L_dw")
        self.read_vm()
        a(f"s_cmp_le_u32 s{sVm}, s{sYoung}"); a("s_cbranch_scc1 L_dwret")
        a(f"s_cmp_ge_u32 s{sVm}, s{sDl}"); a("s_cbranch_scc1 L_dw")
        a(f"s_cmp_eq_u32 s{sAct}, 0"); a("s_cbranch_scc1 L_dw")
        if self.cap is not None:
            a(f"s_cmp_ge_u32 s{sPos}, s{sCap}"); a("s_cbranch_scc1 L_dw")
        if self.bud is not None:
            a(f"s_cmp_le_i32 s{sBud}, 0"); a("s_cbranch_scc1 L_dw")
            a(f"s_sub_u32 s{sBud}, s{sBud}, {self.kblk}")
        self.stream_call()
        a(f"s_add_u32 s{sYoung}, s{sYoung}, {self.kblk}")
        a("s_branch L_dw")
        a.label("L_dwret")
        a(f"s_setpc_b64 s[{sRET2}:{sRET2+1}]")
    def dwait(self, young, n=0, site=None):
        dl = self.dsite.get(site, self.dlim)
        a = self.a
        if self.mode != "co":
            a(f"s_waitcnt vmcnt({young})"); return
        ns = a.newlabel("dwn"); jn = a.newlabel("dwj")
        a(f"s_cmp_eq_u32 s{sAct}, 0"); a(f"s_cbranch_scc1 {ns}")
        a(f"s_mov_b32 s{sYoung}, {young}"); a(f"s_mov_b32 s{sDl}, {dl + n if dl else 0}")
        if self.cap is not None: a(f"s_mov_b32 s{sCap}, {self.cap.get(site, 999)}")
        a(f"s_swappc_b64 s[{sRET2}:{sRET2+1}], s[{sDW}:{sDW+1}]")
        a(f"s_branch {jn}")
        a.label(ns)
        a(f"s_waitcnt vmcnt({young})")
        a.label(jn)
    def tu(self):
        if self.tus: self.topup(self.tus, site='tu')
    def burst(self, site):
        n = self.burstn.get(site, 0)
        if self.mode != "co" or not n: return
        a = self.a
        lab = a.newlabel("bu")
        for i in range(n // self.kblk):
            a(f"s_cmp_eq_u32 s{sAct}, 0"); a(f"s_cbranch_scc1 {lab}")
            self.stream_call()
        a.label(lab)
    def topup(self, depth=None, site=None):
        if self.mode != "co": return
        depth = self.dlim if depth is None else depth
        capv = self.cap.get(site) if self.cap else None
        a = self.a
        lab = a.newlabel("tu")
        a(f"s_cmp_eq_u32 s{sAct}, 0"); a(f"s_cbranch_scc1 {lab}")
        self.read_vm()
        a(f"s_cmp_ge_u32 s{sVm}, {depth}"); a(f"s_cbranch_scc1 {lab}")
        if capv: a(f"s_cmp_ge_u32 s{sPos}, {capv}"); a(f"s_cbranch_scc1 {lab}")
        self.stream_call()
        a.label(lab)
    def drain(self, keep):
        a = self.a
        l0 = a.newlabel("drain"); l1 = a.newlabel("drained")
        a.label(l0)
        a(f"s_cmp_eq_u32 s{sAct}, 0"); a(f"s_cbranch_scc1 {l1}")
        self.stream_call()
        a(f"s_waitcnt vmcnt({keep})")
        a(f"s_branch {l0}")
        a.label(l1)

    def predelay(self, site):
        a = self.a
        if site in self.ack:
            if site in ('col', 'row', 'q0', 'q1', 'q2'):
                self.dwait(0, 0, site); a("s_barrier")
            else:
                self.dwait(0, 0, site)
            return
        p0 = self.pre.get(site, 0)
        if site in self.ack1:
            def ackw():
                self.dwait(0, 0, site)
                if site in ('col', 'row', 'q0', 'q1', 'q2'): a("s_barrier")
            if site in ('q0', 'q1'):
                ackw(); return
            if site == 'q2':
                if p0: a(f"s_sleep {p0}")
                return
            l0 = a.newlabel("pd"); l1 = a.newlabel("pd")
            a(f"s_cmp_ge_u32 s{sL}, {self.ackL.get(site, 2)}"); a(f"s_cbranch_scc1 {l0}")
            ackw()
            a(f"s_branch {l1}")
            a.label(l0)
            if site == 'col' and 'colf' in self.pre:
                l2 = a.newlabel("pd")
                a(f"s_cmp_lg_u32 s{sL}, {(self.stop or 4) - 1}"); a(f"s_cbranch_scc1 {l2}")
                if self.pre['colf']: a(f"s_sleep {self.pre['colf']}")
                a(f"s_branch {l1}")
                a.label(l2)
            if p0: a(f"s_sleep {p0}")
            a.label(l1)
            return
        p1 = self.pre1.get(site, p0) if self.pre1 is not None else p0
        if p0 == p1:
            if p0: a(f"s_sleep {p0}")
            return
        l0 = a.newlabel("pd"); l1 = a.newlabel("pd")
        a(f"s_cmp_ge_u32 s{sL}, 2"); a(f"s_cbranch_scc1 {l0}")
        if p1 and self.tusl:
            n = max(1, p1 // self.tusl)
            for _ in range(n):
                self.tu(); a(f"s_sleep {self.tusl}")
        elif p1: a(f"s_sleep {p1}")
        a(f"s_branch {l1}")
        a.label(l0)
        if p0: a(f"s_sleep {p0}")
        a.label(l1)

    def poll(self, issue, regs, execmask=None, stream=True, site=None):
        a = self.a
        lp = a.newlabel("poll"); ns = a.newlabel("pns"); jn = a.newlabel("pj"); dn = a.newlabel("pdone")
        a(f"s_mov_b32 s{sSpin}, 0")
        if self.bud is not None: a(f"s_mov_b32 s{sBud}, {self.bud.get(site, self.bud.get('*', 8))}")
        self.predelay(site)
        if execmask: self.exec_set(*execmask)
        a.label(lp)
        issue()
        if execmask and self.mode == "co": self.exec_all()
        self.dwait(0, len(regs) if self.addn else 0, site)
        if execmask and self.mode == "co": self.exec_set(*execmask)
        a.label(jn)
        acc, acc2 = vT0, vT0 + 1
        dw = [g + i for g in regs for i in range(4)]
        for k, r in enumerate(dw): a(f"v_xor_b32 v{r}, s{sT[k % 4]}, v{r}")
        a(f"v_or3_b32 v{acc}, v{dw[0]}, v{dw[1]}, v{dw[2]}")
        if len(dw) == 4:
            a(f"v_or_b32 v{acc}, v{acc}, v{dw[3]}")
        else:
            a(f"v_or3_b32 v{acc2}, v{dw[3]}, v{dw[4]}, v{dw[5]}")
            k = 6; tog = 0
            while k < len(dw):
                tgt = acc if tog == 0 else acc2
                a(f"v_or3_b32 v{tgt}, v{tgt}, v{dw[k]}, v{dw[k+1]}"); k += 2
                tog ^= 1
            a(f"v_or_b32 v{acc}, v{acc}, v{acc2}")
        a(f"v_and_b32 v{acc}, s{sFF}, v{acc}")
        a(f"v_cmp_ne_u32 vcc, 0, v{acc}")
        a(f"s_cbranch_vccz {dn}")
        if self.rsl.get(site): a(f"s_sleep {self.rsl[site]}")
        if self.slp:
            lz = a.newlabel("nsl")
            a(f"s_cmp_eq_u32 s{sAct}, 0"); a(f"s_cbranch_scc1 {lz}")
            a(f"s_sleep {self.slp}")
            a.label(lz)
        a(f"s_add_u32 s{sSpin}, s{sSpin}, 1")
        a(f"s_cmp_lt_u32 s{sSpin}, {SPIN_MAX}")
        a(f"s_cbranch_scc1 {lp}")
        a(f"s_mov_b32 s{sErr}, 1")
        a.label(dn)
        if execmask: self.exec_all()

    def dpp_steps(self, regs, op, steps):
        for d in steps:
            for r in regs:
                if d == "b15": self.a(f"{op}_dpp v{r}, v{r}, v{r} row_bcast:15 row_mask:0xa bank_mask:0xf")
                elif d == "b31": self.a(f"{op}_dpp v{r}, v{r}, v{r} row_bcast:31 row_mask:0xc bank_mask:0xf")
                else: self.a(f"{op}_dpp v{r}, v{r}, v{r} {d} {DPPALL}")
    X1, X2, HM, RM = "quad_perm:[1,0,3,2]", "quad_perm:[2,3,0,1]", "row_half_mirror", "row_mirror"
    def reduce63(self, regs, op):
        self.dpp_steps(regs, op, [self.X1, self.X2, self.HM, self.RM, "b15", "b31"])

    def treduce(self, r):
        a = self.a
        a(f"v_permlane32_swap_b32 v{r[0]}, v{r[2]}")
        a(f"v_permlane32_swap_b32 v{r[1]}, v{r[3]}")
        a(f"v_add_f32 v{r[0]}, v{r[0]}, v{r[2]}")
        a(f"v_add_f32 v{r[1]}, v{r[1]}, v{r[3]}")
        a(f"v_permlane16_swap_b32 v{r[0]}, v{r[1]}")
        a(f"v_add_f32 v{r[0]}, v{r[0]}, v{r[1]}")

    def pv_gemv(self, Xp, nload, bop, D, Abuf):
        a = self.a
        def build(i):
            A = Abuf + 4 * (i % 2)
            for r in range(4):
                a(f"v_and_b32_dpp v{A+r}, v{Xp}, v{vM[r]} row_newbcast:{i} {DPPALL}")
        build(0)
        if nload > 1: build(1)
        for i in range(nload):
            A = Abuf + 4 * (i % 2)
            c = "0" if i == 0 else vr(D, 4)
            a(f"v_mfma_f32_16x16x32_bf16 {vr(D,4)}, {vr(A,4)}, {bop(i)}, {c}")
            if i + 2 < nload: build(i + 2)

    def smf_consts(self, N0, N1, IDX, t):
        a = self.a
        a(f"v_bfe_u32 v{t}, v{vL16}, 4, 4")
        a(f"v_and_b32 v{IDX}, 3, v{t}"); a(f"v_mul_u32_u24 v{IDX}, 0x1111, v{IDX}")
        a(f"v_lshrrev_b32 v{t}, 2, v{t}")
        a(f"v_cmp_eq_u32 vcc, 0, v{t}"); a(f"v_mov_b32 v{N1}, 0xffff"); a(f"v_cndmask_b32 v{N0}, 0, v{N1}, vcc")
        a(f"v_cmp_eq_u32 vcc, 1, v{t}"); a(f"v_cndmask_b32 v{N1}, 0, v{N1}, vcc")
    def pv_gemv_smf(self, Xp, npair, bop, D, Abuf, N0, N1, IDX):
        a = self.a
        def build(i):
            A = Abuf + 4 * (i % 2)
            a(f"v_and_b32_dpp v{A}, v{Xp}, v{N0} row_newbcast:{2*i} {DPPALL}")
            a(f"v_and_b32_dpp v{A+1}, v{Xp}, v{N1} row_newbcast:{2*i} {DPPALL}")
            a(f"v_and_b32_dpp v{A+2}, v{Xp}, v{N0} row_newbcast:{2*i+1} {DPPALL}")
            a(f"v_and_b32_dpp v{A+3}, v{Xp}, v{N1} row_newbcast:{2*i+1} {DPPALL}")
        for r in range(4): a(f"v_mov_b32 v{D+r}, 0")
        build(0)
        if npair > 1: build(1)
        for i in range(npair):
            A = Abuf + 4 * (i % 2)
            a(f"v_smfmac_f32_16x16x64_bf16 {vr(D,4)}, {vr(A,4)}, {bop(i)}, v{IDX}")
            if i + 2 < npair: build(i + 2)

    def red_write(self, D, off=0):
        a = self.a
        a("s_mov_b32 exec_hi, 1")
        a(f"ds_write_b128 v{vRedW}, {vr(D,4)} offset:{off}")
        a("s_mov_b32 exec_hi, -1")
    def red_final_read(self, G, off=0):
        a = self.a
        a(f"v_add_u32 v{vT0}, {L_RED}, v{vL16}")
        for w in range(4):
            a(f"ds_read_b128 {vr(G+4*w,4)}, v{vT0} offset:{w*RSTR+off}")
    def sum4(self, G):
        a = self.a
        for r in range(4):
            a(f"v_add_f32 v{G+r}, v{G+r}, v{G+4+r}")
            a(f"v_add_f32 v{G+8+r}, v{G+8+r}, v{G+12+r}")
        for r in range(4):
            a(f"v_add_f32 v{G+r}, v{G+r}, v{G+8+r}")

    def local_stores(self, items):
        a = self.a
        def emit(flag):
            for (data, vaddr, soff, pre) in items:
                if pre: pre()
                a(f"buffer_store_dwordx4 {vr(data,4)}, v{vaddr}, {W}, s{soff} offen {flag}")
        if self.local:
            l0 = a.newlabel("ls"); l1 = a.newlabel("ls")
            a(f"s_cmp_eq_u32 s{sLocal}, 0"); a(f"s_cbranch_scc1 {l0}")
            emit("")
            a(f"s_branch {l1}")
            a.label(l0)
            emit("sc1")
            a.label(l1)
        else:
            emit("sc1")

    def next_tag(self):
        a = self.a
        a(f"s_mul_i32 s{sTf}, s{sTf}, 0x9E3779B1"); a(f"s_add_u32 s{sTf}, s{sTf}, 0x7F4A7C15")
        a(f"v_mov_b32 v{vT}, s{sTf}")
        a(f"s_and_b32 s{sT[0]}, s{sTf}, 0xff"); a(f"s_bfe_u32 s{sT[1]}, s{sTf}, 0x80008")
        a(f"s_bfe_u32 s{sT[2]}, s{sTf}, 0x80010"); a(f"s_lshr_b32 s{sT[3]}, s{sTf}, 24")

    def pf_guard(self, fn, lmin=2):
        if not self.nopf: return fn()
        a = self.a; l = a.newlabel("npf")
        a(f"s_cmp_ge_u32 s{sL}, {lmin}"); a(f"s_cbranch_scc1 {l}")
        fn()
        a.label(l)
    def load_wq(self):
        self.pf_guard(self.load_wq_)
    def load_wq_(self):
        a = self.a
        l0 = a.newlabel("wq"); l1 = a.newlabel("wq")
        a(f"s_bitcmp1_b32 s{sL}, 0"); a(f"s_cbranch_scc1 {l0}")
        a(f"s_mov_b32 s{SRD_A}, s{pWqA}"); a(f"s_mov_b32 s{SRD_A+1}, s{pWqA+1}"); a(f"s_branch {l1}")
        a.label(l0)
        a(f"s_mov_b32 s{SRD_A}, s{pWqB}"); a(f"s_mov_b32 s{SRD_A+1}, s{pWqB+1}")
        a.label(l1)
        a(f"s_mov_b32 s{SRD_A+2}, {19*8192+256}"); a(f"s_mov_b32 s{SRD_A+3}, 0x20000")
        for i in range(5):
            a(f"s_mov_b32 s{sTmp[0]}, {i*32768}")
            a(f"buffer_load_dwordx4 {vr(WQ+4*i,4)}, v{vWoff}, s[{SRD_A}:{SRD_A+3}], s{sTmp[0]} offen {self.wpol}")
    def load_wuk(self):
        self.pf_guard(self.load_wuk_)
    def load_wuk_(self):
        a = self.a
        self.srd(SRD_A, pWuk, 15*8192+256)
        t = vT0
        a(f"v_lshrrev_b32 v{t}, 8, v{vKoff}"); a(f"v_lshlrev_b32 v{t}, 13, v{t}")
        a(f"v_and_b32 v{t+1}, s{sFF}, v{vKoff}"); a(f"v_or_b32 v{t}, v{t}, v{t+1}")
        for i in range(4):
            a(f"s_mov_b32 s{sTmp[0]}, {i*32768}")
            a(f"buffer_load_dwordx4 {vr(WUK+4*i,4)}, v{t}, s[{SRD_A}:{SRD_A+3}], s{sTmp[0]} offen {self.wpol}")
    def load_wuv(self):
        self.pf_guard(self.load_wuv_)
    def load_wuv_(self):
        a = self.a
        self.srd(SRD_A, pWuv, 15*8192+256)
        for i in range(4):
            a(f"s_mov_b32 s{sTmp[0]}, {i*32768}")
            a(f"buffer_load_dwordx4 {vr(WUV+4*i,4)}, v{vWoff}, s[{SRD_A}:{SRD_A+3}], s{sTmp[0]} offen {self.wpol}")
    def wo_setup(self, p):
        a = self.a
        self.srd(SRD_A, p, 31*1280+160)
        a(f"s_mul_i32 s{sTmp[1]}, s{sW}, {WOSTR}"); a(f"s_add_u32 s{sTmp[1]}, s{sTmp[1]}, {L_R0}")
    def wo_one(self, i):
        a = self.a
        r0 = 6 * i if i < 5 else 26
        a(f"s_add_u32 m0, s{sTmp[1]}, {r0*160}")
        a(f"s_mov_b32 s{sTmp[0]}, {r0*1280}")
        a(f"buffer_load_dwordx4 v{vWo}, s[{SRD_A}:{SRD_A+3}], s{sTmp[0]} offen {self.wpol} lds")
    def load_wo(self, p):
        def f():
            self.wo_setup(p)
            for i in range(6): self.wo_one(i)
        self.pf_guard(f)
    def ckv_one(self, kk):
        a = self.a
        f = (kk & 8) | ((kk & 3) << 1) | ((kk >> 2) & 1)
        a(f"v_xor_b32 v{vCk}, {f*16}, v{vL16}")
        a(f"s_lshl_b32 s{sSO}, s{sW}, 14"); a(f"s_add_u32 m0, s{sSO}, {L_CKV + kk*1024}")
        a(f"s_mov_b32 s{sSO}, {kk*1024}")
        a(f"buffer_load_dwordx4 v{vCk}, s[{SRD_B}:{SRD_B+3}], s{sSO} offen {self.cpol} lds")
    def voff(self, u):
        return (u & 1) * 2048 + (u >> 1) * 512 if self.smf else u * 256
    def vtr_reg(self, b, u):
        if self.vsplit: return (60 if b == 14 else 80) + 4 * u
        return VTR + (b - 14) * 16 + 4 * u
    def vtr_one(self, k):
        a = self.a
        b, u = 14 + (k >> 2), k & 3
        if u == 0: a(f"s_mov_b32 s{sTmp[2]}, {b*4096}")
        a(f"buffer_load_dwordx4 {vr(self.vtr_reg(b, u),4)}, v{vVoff}, s[{SRD_V}:{SRD_V+3}], s{sTmp[2]} offen offset:{self.voff(u)} {self.pol if self.vtrpol is None else self.vtrpol}")

    def prologue(self):
        a = self.a
        a.c("==== prologue: workgroups past the 256 that carry work leave at once ====")
        a("s_cmp_ge_u32 s2, 256"); a("s_cbranch_scc1 L_end")
        a("s_load_dwordx4 s[64:67], s[0:1], 0")
        a("s_load_dwordx4 s[68:71], s[0:1], 16")
        a("s_load_dwordx4 s[72:75], s[0:1], 32")
        a("s_load_dwordx4 s[76:79], s[0:1], 56")
        a("s_load_dwordx4 s[80:83], s[0:1], 72")
        a("s_load_dwordx4 s[84:87], s[0:1], 88")
        a("s_load_dwordx2 s[8:9], s[0:1], 104")
        a(f"v_lshrrev_b32 v20, 6, v0")
        a(f"v_and_b32 v21, 63, v0")
        a(f"v_readfirstlane_b32 s{sW}, v20")
        a(f"s_and_b32 s{sH}, s2, 31"); a(f"s_lshr_b32 s{sJ}, s2, 5")
        a(f"s_and_b32 s{sXG}, s2, 7"); a(f"s_lshr_b32 s{sI}, s2, 3")
        a(f"s_and_b32 s{sGA}, s{sI}, 1")
        a(f"s_lshr_b32 s{sS}, s{sI}, 1"); a(f"s_lshl_b32 s92, s{sXG}, 4"); a(f"s_add_u32 s{sS}, s{sS}, s92")
        a(f"v_lshlrev_b32 v{vL16}, 4, v21")
        if self.codepf: a.c("wave 3 pulls this kernel's code into the L2 (plain data loads) so that first-time instruction fetches do not go to HBM")
        if self.codepf:
            lc = a.newlabel("cpf")
            a(f"s_cmp_lg_u32 s{sW}, 3"); a(f"s_cbranch_scc1 {lc}")
            a("s_getpc_b64 s[20:21]")
            a.label("L_pcx")
            a("s_mov_b32 s22, L_codeend-L_pcx"); a("s_mov_b32 s23, 0x20000")
            a("v_lshlrev_b32 v22, 6, v21")
            self.ncode = 7
            for i in range(self.ncode):
                a(f"s_mov_b32 s92, {i*4096}")
                a(f"buffer_load_dword v23, v22, s[20:23], s92 offen")
            a.label(lc)
        a("v_and_b32 v22, 15, v21")
        a("v_lshrrev_b32 v23, 4, v21") if not self.codepf else a("v_lshrrev_b32 v19, 4, v21")
        g = 23 if not self.codepf else 19
        a(f"v_lshlrev_b32 v24, 4, v22")
        a(f"v_lshl_add_u32 v{vWoff}, v{g}, 13, v24")
        if self.smf:
            a(f"v_lshrrev_b32 v25, 1, v{g}"); a(f"v_and_b32 v26, 1, v{g}"); a(f"v_lshl_add_u32 v25, v25, 2, v26")
            a(f"v_lshl_add_u32 v{vVoff}, v25, 8, v24")
        else:
            a(f"v_lshl_add_u32 v{vVoff}, v{g}, 10, v24")
        a(f"v_and_b32 v25, 3, v22"); a(f"v_lshl_add_u32 v25, v{g}, 2, v25"); a("v_lshlrev_b32 v25, 4, v25")
        a("v_lshrrev_b32 v26, 2, v22"); a(f"v_lshl_add_u32 v{vKoff}, v26, 8, v25")
        a("v_and_b32 v25, 1, v22"); a("v_cmp_eq_u32 vcc, 1, v25")
        a("v_mov_b32 v26, 0xffff"); a("v_mov_b32 v27, 0xffff0000"); a("v_cndmask_b32 v26, v26, v27, vcc")
        a("v_lshrrev_b32 v25, 1, v22")
        for r in range(4):
            a(f"v_cmp_eq_u32 vcc, {r}, v25"); a(f"v_cndmask_b32 v{vM[r]}, 0, v26, vcc")
        a(f"v_lshl_add_u32 v25, v22, 1, v{g}"); a("v_lshlrev_b32 v25, 4, v25")
        a("v_cmp_gt_u32 vcc, 32, v21"); a("v_mov_b32 v26, 512"); a("v_cndmask_b32 v25, v26, v25, vcc")
        a(f"s_mul_i32 s92, s{sW}, {RSTR}"); a(f"s_add_u32 s92, s92, {L_RED}"); a(f"v_add_u32 v{vRedW}, s92, v25")
        a(f"v_mul_u32_u24 v25, 6554, v21"); a(f"v_lshrrev_b32 v25, 16, v25")
        a(f"v_mul_u32_u24 v26, 10, v25"); a(f"v_sub_u32 v26, v21, v26")
        a(f"v_mul_u32_u24 v25, 1280, v25"); a(f"v_lshl_add_u32 v{vWo}, v26, 4, v25")
        a("s_waitcnt lgkmcnt(0)")
        a(f"s_mov_b32 s{SRD_WS+2}, 0x10000000"); a(f"s_mov_b32 s{SRD_WS+3}, 0x20000")
        if self.stamps:
            a(f"s_mov_b32 s{sL}, 0")
            self.stamp(12)
        self.dbgstamp("entry")
        a.c("epoch word of the workspace (only used to derive this launch's hand-off tags) and the residual slice x[80j + 20w + 4n + g]")
        a("v_mov_b32 v28, 0")
        a(f"buffer_load_dword v{vT}, v28, {W}, 0 offen sc1")
        a(f"s_mov_b32 s{pX}, s64"); a(f"s_mov_b32 s{pX+1}, s65")
        self.srd(SRD_B, pX, 1280)
        a(f"s_mul_i32 s92, s{sJ}, 80"); a(f"s_mul_i32 s93, s{sW}, 20"); a("s_add_u32 s92, s92, s93")
        a(f"v_lshl_add_u32 v25, v22, 2, v{g}"); a("v_add_u32 v25, s92, v25"); a("v_lshlrev_b32 v29, 1, v25")
        a(f"s_mov_b32 s94, 0x001f001f"); a(f"s_mov_b32 s95, 0x001f001f")
        a(f"v_mov_b32 v{vX}, 0")
        a("s_mov_b64 exec, s[94:95]")
        a(f"buffer_load_ushort v{vX}, v29, s[{SRD_B}:{SRD_B+3}], 0 offen")
        self.exec_all()
        def addp(dst, src, terms):
            a(f"s_mov_b32 s92, 0")
            for (sreg, c) in terms:
                a(f"s_mul_i32 s93, s{sreg}, {c}"); a("s_add_u32 s92, s92, s93")
            a(f"s_add_u32 s{dst}, s{src}, s92"); a(f"s_addc_u32 s{dst+1}, s{src+1}, 0")
        addp(pWqA, 68, [(sJ, 80*8192), (sW, 20*8192), (sH, 256)])
        a(f"s_mov_b32 s{sL}, 0")
        self.load_wq()
        addp(pWuk, 70, [(sJ, 64*8192), (sW, 16*8192), (sH, 256)])
        a(f"s_mov_b32 s{sFF}, 0xff")
        self.load_wuk()
        addp(pCkv, 66, [(sS, 65536), (sW, 16384)])
        addp(pWqB, 80, [(sJ, 80*8192), (sW, 20*8192), (sH, 256)])
        addp(pWuv, 72, [(sJ, 64*8192), (sW, 16*8192), (sH, 256)])
        addp(pWoA, 74, [(sH, 163840), (sW, 32*1280), (sJ, 160)])
        addp(pWoB, 82, [(sH, 163840), (sW, 32*1280), (sJ, 160)])
        addp(SRD_K, 76, [(sH, 2097152), (sJ, 262144), (sW, 65536)])
        addp(SRD_V, 78, [(sH, 2097152), (sJ, 262144), (sW, 65536)])
        a(f"s_mov_b32 s{SRD_K+2}, 65536"); a(f"s_mov_b32 s{SRD_K+3}, 0x20000")
        a(f"s_mov_b32 s{SRD_V+2}, 65536"); a(f"s_mov_b32 s{SRD_V+3}, 0x20000")
        a(f"s_mov_b32 s{pOut}, s84"); a(f"s_mov_b32 s{pOut+1}, s85")
        self.srd(SRD_B, pCkv, 16384)
        if self.pretouch:
            a(f"s_lshl_b32 s92, s2, 13"); a(f"s_lshl_b32 s93, s{sW}, 11"); a("s_add_u32 s92, s92, s93"); a(f"s_add_u32 s92, s92, {O_QP}")
            a(f"buffer_load_dwordx4 v[48:51], v{vL16}, {W}, s92 offen")
            a(f"buffer_load_dwordx4 v[48:51], v{vL16}, {W}, s92 offen offset:1024")
        a(f"s_mov_b32 s{sErr}, 0"); a(f"s_mov_b32 s{sLocal}, 0")
        a(f"s_mov_b32 s{sM5}, 0x001f001f"); a(f"s_mov_b32 s{sM5+1}, 0x001f001f")
        for i in range(4): a(f"s_mov_b32 s{sSel[i]}, {0x07060500+i:#x}")
        for t in range(4):
            a(f"s_mov_b32 s{sMask[t]}, {(0x000f000f << (4*t)):#x}"); a(f"s_mov_b32 s{sMask[t]+1}, {(0x000f000f << (4*t)):#x}")
        a(f"s_lshl_b32 s92, s{sXG}, 5"); a(f"s_add_u32 s92, s92, s{sI}"); a(f"s_lshl_b32 s92, s92, 2"); a(f"s_add_u32 s92, s92, s{sW}")
        a(f"s_lshl_b32 s92, s92, {12 if self.c1bf else 13}"); a(f"s_add_u32 s{sC1}, s92, {O_C1}")
        a(f"s_getpc_b64 s[{sSPC}:{sSPC+1}]")
        a.label("L_pc0")
        a(f"s_add_u32 s{sSPC}, s{sSPC}, L_stream-L_pc0"); a(f"s_addc_u32 s{sSPC+1}, s{sSPC+1}, 0")
        a(f"s_mov_b32 s{sAct}, 1"); a(f"s_mov_b32 s{sPos}, 0")
        a(f"s_mov_b32 s{sCol}, {O_COL:#x}")
        a(f"s_getreg_b32 s{sXcc}, hwreg(HW_REG_XCC_ID)"); a(f"s_and_b32 s{sXcc}, s{sXcc}, 0xf"); a(f"s_add_u32 s{sXcc}, s{sXcc}, 1"); a(f"s_lshl_b32 s{sXcc}, s{sXcc}, 8")
        a(f"s_getpc_b64 s[{sDW}:{sDW+1}]")
        a.label("L_pc1")
        a(f"s_add_u32 s{sDW}, s{sDW}, L_dw-L_pc1"); a(f"s_addc_u32 s{sDW+1}, s{sDW+1}, 0")
        if self.bud is not None: a(f"s_mov_b32 s{sBud}, {self.bud.get('pro', self.bud.get('*', 8))}")
        self.dwait(6 if self.pretouch else 4, 0, 'pro')
        a(f"v_readfirstlane_b32 s{sTf}, v{vT}")
        self.next_tag()
        a(f"v_lshlrev_b32 v{vX}, 16, v{vX}")
        if self.local: a.c("publish the XCD id; the 32 workgroups with equal b & 7 compare them later and use L2-local stores only if they all match")
        if self.local:
            lx = a.newlabel("xp")
            a(f"s_cmp_lg_u32 s{sW}, 0"); a(f"s_cbranch_scc1 {lx}")
            for r in range(4): a(f"v_mov_b32 v{16+r}, s{sXcc}")
            self.tag([16, 17, 18, 19])
            a(f"s_lshl_b32 s92, s{sXG}, 9"); a(f"s_lshl_b32 s93, s{sI}, 4"); a("s_add_u32 s92, s92, s93"); a(f"s_add_u32 s92, s92, {O_XCC}")
            a("v_mov_b32 v20, 0")
            a("s_mov_b64 exec, 1")
            a(f"buffer_store_dwordx4 v[16:19], v20, {W}, s92 offen sc1")
            self.exec_all()
            a.label(lx)
        if self.opt1: self.prep_q()
        if self.mode == "first":
            self.drain(16)

    @property
    def NT(self): return 2
    @property
    def NLOADS(self): return 136 + (self.NT if self.c1touch else 0)
    @property
    def KEND(self): return 80 + (self.NT if self.c1touch else 0)
    def first_block(self):
        r = self.NLOADS % self.kblk
        return r if r else self.kblk
    def stream(self):
        a = self.a
        loads = [("C", i) for i in range(16)] + ([("T", i) for i in range(self.NT)] if self.c1touch else []) + [("K", i) for i in range(64)]
        loads += [("V", b, u) for b in range(10) for u in range(4)]
        loads += [("L", b, u) for b in range(10, 14) for u in range(4)]
        k = self.kblk
        assert len(loads) == self.NLOADS and len(loads) % k == 0, "the dynamic wait counts kblk loads per block"
        a.c("==== K/V stream (coroutine, two loads per call): c_kv rows -> LDS, K -> a0..a255, resident V -> v96..v255, V rows -> LDS ====")
        a.label("L_stream")
        starts = [0] + list(range(self.first_block(), len(loads), k))
        for bn, bi in enumerate(starts):
            be = starts[bn+1] if bn + 1 < len(starts) else len(loads)
            last_so = None
            for ld in loads[bi:be]:
                if ld[0] == "C":
                    self.ckv_one(ld[1]); last_so = None
                elif ld[0] == "T":
                    i = ld[1]; last_so = None
                    a(f"v_lshlrev_b32 v{vCk}, 2, v{vL16}")
                    if self.c1bf:
                        a(f"s_add_u32 s{sSO}, s{sC1}, {i * 32}")
                    else:
                        a(f"s_add_u32 s{sSO}, s{sC1}, {i * 4096}")
                    a(f"buffer_load_dword v255, v{vCk}, {W}, s{sSO} offen")
                elif ld[0] == "K":
                    i = ld[1]; so = (i >> 2) * 4096
                    if so != last_so: a(f"s_mov_b32 s{sSO}, {so}"); last_so = so
                    a(f"buffer_load_dwordx4 {ar(4*i,4)}, v{vKoff}, s[{SRD_K}:{SRD_K+3}], s{sSO} offen offset:{(i&3)*1024} {self.pol}")
                elif ld[0] == "V":
                    _, b, u = ld; so = b * 4096
                    if so != last_so: a(f"s_mov_b32 s{sSO}, {so}"); last_so = so
                    a(f"buffer_load_dwordx4 {vr(VRES+16*b+4*u,4)}, v{vVoff}, s[{SRD_V}:{SRD_V+3}], s{sSO} offen offset:{self.voff(u)} {self.pol}")
                else:
                    _, b, u = ld
                    a(f"s_lshl_b32 s{sSO}, s{sW}, 14"); a(f"s_add_u32 m0, s{sSO}, {L_VL + ((b-10)*4+u)*1024}")
                    a(f"s_mov_b32 s{sSO}, {b*4096+self.voff(u)}"); last_so = None
                    a(f"buffer_load_dwordx4 v{vVoff}, s[{SRD_V}:{SRD_V+3}], s{sSO} offen {self.pol} lds")
            a(f"s_add_u32 s{sPos}, s{sPos}, {be-bi}")
            if be >= len(loads): a(f"s_mov_b32 s{sAct}, 0")
            a(f"s_swappc_b64 s[{sSPC}:{sSPC+1}], s[{sRET}:{sRET+1}]")
        a("s_endpgm")

    def prep_q(self):
        a = self.a
        t = 37
        a(f"v_lshrrev_b32 v{t}, 4, v{vL16}")
        a(f"v_and_b32 v38, 1, v{t}"); a(f"v_lshlrev_b32 v38, 4, v38")
        a(f"v_lshrrev_b32 v39, 1, v{t}"); a(f"v_add_u32 v38, v38, v39"); a(f"v_lshlrev_b32 v38, 4, v38")
        a(f"v_cmp_gt_u32 vcc, 32, v{t}"); a(f"v_mov_b32 v39, 512"); a(f"v_cndmask_b32 v{t}, v39, v38, vcc")
        a(f"s_lshl_b32 s{sTmp[4]}, s{sH}, 3"); a(f"s_add_u32 s{sTmp[4]}, s{sTmp[4]}, s{sJ}"); a(f"s_lshl_b32 s{sTmp[4]}, s{sTmp[4]}, 11")
        a(f"s_add_u32 s{sTmp[4]}, s{sTmp[4]}, {O_QP}")

    def qpart(self):
        a = self.a
        a.c("==== Q part: partial q = bf16(x slice) @ W_q slice (diagonal-operand MFMA), LayerNorm statistics, column sums of W (first two layers) ====")
        self.stamp(0)
        def second():
            if self.split2:
                l0 = a.newlabel("q2w")
                a(f"s_cmp_eq_u32 s{sL}, 0"); a(f"s_cbranch_scc1 {l0}")
                self.second_w()
                a.label(l0)
        if not (self.opt1 and self.latepf): second()
        Xp, S1, S2 = (14, 38, 39) if self.opt1 else (14, 15, 36)
        D, Du, Ab = 16, 20, 24
        a(f"v_cvt_pk_bf16_f32 v{Xp}, v{vX}, v{vX}")
        a(f"v_and_b32 v{S1}, 0xffff0000, v{Xp}")
        a(f"v_mul_f32 v{S2}, v{S1}, v{S1}")
        self.pv_gemv(Xp, 5, lambda i: vr(WQ+4*i, 4), D, Ab)
        self.reduce63([S1, S2], "v_add_f32")
        lu = a.newlabel("nou")
        if self.opt1:
            a("s_mov_b32 exec_hi, 0")
            a(f"ds_write_b128 v{vRedW}, {vr(D,4)}")
            a("s_mov_b32 exec_lo, 0"); a("s_mov_b32 exec_hi, 0x80000000")
            a(f"ds_write_b64 v{vRedW}, {vr(S1,2)}")
            self.exec_all()
        a(f"s_cmp_ge_u32 s{sL}, 2"); a(f"s_cbranch_scc1 {lu}")
        for r in range(4): a(f"v_and_b32 v{32+r}, 0x3f803f80, v{vM[r]}")
        for i in range(5):
            c = "0" if i == 0 else vr(Du, 4)
            a(f"v_mfma_f32_16x16x32_bf16 {vr(Du,4)}, {vr(32,4)}, {vr(WQ+4*i,4)}, {c}")
        self.red_write(Du, 528)
        a.label(lu)
        if self.opt1:
            t = 37
            if self.latepf: second()
        else:
            a(f"v_readlane_b32 s{sA}, v{S1}, 63"); a(f"v_readlane_b32 s{sB_}, v{S2}, 63")
            a(f"v_writelane_b32 v{D}, s{sA}, 32"); a(f"v_writelane_b32 v{D+1}, s{sB_}, 32")
            self.red_write(D)
            t = 14
            a(f"v_lshrrev_b32 v{t}, 4, v{vL16}")
            a(f"v_and_b32 v15, 1, v{t}"); a(f"v_lshlrev_b32 v15, 4, v15")
            a(f"v_lshrrev_b32 v36, 1, v{t}"); a(f"v_add_u32 v15, v15, v36"); a(f"v_lshlrev_b32 v15, 4, v15")
            a(f"v_cmp_gt_u32 vcc, 32, v{t}"); a(f"v_mov_b32 v36, 512"); a(f"v_cndmask_b32 v{t}, v36, v15, vcc")
            a(f"s_lshl_b32 s{sTmp[4]}, s{sH}, 3"); a(f"s_add_u32 s{sTmp[4]}, s{sTmp[4]}, s{sJ}"); a(f"s_lshl_b32 s{sTmp[4]}, s{sTmp[4]}, 11")
            a(f"s_add_u32 s{sTmp[4]}, s{sTmp[4]}, {O_QP}")
        self.tu()
        a("s_waitcnt lgkmcnt(0)"); a("s_barrier")
        lf = a.newlabel("qfin")
        a(f"s_cmp_lg_u32 s{sW}, 0"); a(f"s_cbranch_scc1 {lf}")
        G = 16
        self.red_final_read(G)
        a("s_waitcnt lgkmcnt(0)")
        self.sum4(G); self.tag([G, G+1, G+2, G+3])
        a("s_mov_b32 exec_hi, 1")
        self.local_stores([(G, t, sTmp[4], None)])
        a("s_mov_b32 exec_hi, -1")
        a(f"s_cmp_ge_u32 s{sL}, 2"); a(f"s_cbranch_scc1 {lf}")
        G2 = 40
        self.red_final_read(G2, 528)
        a(f"s_add_u32 s{sTmp[4]}, s{sTmp[4]}, 1024")
        a("s_waitcnt lgkmcnt(0)")
        self.sum4(G2); self.tag([G2, G2+1, G2+2, G2+3])
        a("s_mov_b32 exec_hi, 0")
        self.local_stores([(G2, t, sTmp[4], None)])
        a("s_mov_b32 exec_hi, -1")
        a.label(lf)
        self.stamp(1)
        a.c("row hand-off: gather the 8 partial q vectors of this head, finish the (deferred) LayerNorm, build the QK operands")
        ad, ad2, adu, adx = 14, 15, 56, 57
        Gq, Gs, Gu, Gx = 16, 32, 36, 52
        a(f"v_lshrrev_b32 v{ad}, 8, v{vKoff}"); a(f"v_lshlrev_b32 v{ad}, 11, v{ad}")
        a(f"v_and_b32 v{ad2}, s{sFF}, v{vKoff}"); a(f"v_or_b32 v{ad}, v{ad}, v{ad2}")
        a(f"v_lshlrev_b32 v{adu}, 1, v{ad2}")
        a(f"v_lshrrev_b32 v{ad2}, 4, v{vL16}"); a(f"v_and_b32 v{ad2}, 7, v{ad2}"); a(f"v_lshlrev_b32 v{ad2}, 11, v{ad2}")
        a(f"s_lshl_b32 s{sTmp[0]}, s{sH}, 14"); a(f"s_add_u32 s{sTmp[0]}, s{sTmp[0]}, {O_QP}")
        a(f"s_add_u32 s{sTmp[1]}, s{sTmp[0]}, 8192")
        def iss_q():
            for i in range(2):
                for hf in range(2):
                    a(f"buffer_load_dwordx4 {vr(Gq+8*i+4*hf,4)}, v{ad}, {W}, s{sTmp[i]} offen offset:{hf*256} sc1")
            a(f"buffer_load_dwordx4 {vr(Gs,4)}, v{ad2}, {W}, s{sTmp[0]} offen offset:512 sc1")
        def iss_u():
            for i in range(2):
                for hf in range(2):
                    a(f"buffer_load_dwordx4 {vr(Gu+8*i+4*hf,4)}, v{ad}, {W}, s{sTmp[i]} offen offset:{1024+hf*256} sc1")
        def iss_x():
            a(f"buffer_load_dwordx4 {vr(Gx,4)}, v{adx}, {W}, s{sTmp[3]} offen sc1")
        U = 36
        l_late = a.newlabel("qlate"); l_j = a.newlabel("qj")
        a(f"s_and_b32 s{sTmp[2]}, s{sL}, 1"); a(f"s_lshl_b32 s{sTmp[2]}, s{sTmp[2]}, 9"); a(f"s_add_u32 s{sTmp[2]}, s{sTmp[2]}, {L_U}")
        a(f"v_add_u32 v{adu}, s{sTmp[2]}, v{adu}")
        a(f"s_cmp_ge_u32 s{sL}, 2"); a(f"s_cbranch_scc1 {l_late}")
        base_regs = [Gq, Gq+4, Gq+8, Gq+12, Gs, Gu, Gu+4, Gu+8, Gu+12]
        if self.local:
            l_one = a.newlabel("qone"); l_u = a.newlabel("qu")
            a(f"s_cmp_eq_u32 s{sL}, 1"); a(f"s_cbranch_scc1 {l_one}")
            a(f"v_and_b32 v{adx}, 0x1f0, v{vL16}")
            a(f"s_lshl_b32 s{sTmp[3]}, s{sXG}, 9"); a(f"s_add_u32 s{sTmp[3]}, s{sTmp[3]}, {O_XCC}")
            self.poll(lambda: (iss_q(), iss_u(), iss_x()), base_regs + [Gx], site='q0')
            a(f"v_cmp_ne_u32 vcc, s{sXcc}, v{Gx}")
            a(f"s_cmp_eq_u64 vcc, 0"); a(f"s_cselect_b32 s{sLocal}, 1, 0")
            a(f"s_branch {l_u}")
            a.label(l_one)
            self.poll(lambda: (iss_q(), iss_u()), base_regs, site='q1')
            a.label(l_u)
        else:
            self.poll(lambda: (iss_q(), iss_u()), base_regs)
        for r in range(8): a(f"v_add_f32 v{Gu+r}, v{Gu+r}, v{Gu+8+r}")
        self.dpp_steps([Gu+r for r in range(8)], "v_add_f32", ["row_ror:4", "row_ror:8"])
        lw = a.newlabel("uw")
        a(f"s_cmp_lg_u32 s{sW}, 0"); a(f"s_cbranch_scc1 {lw}")
        self.exec_set(0x000f000f, 0x000f000f)
        a(f"ds_write_b128 v{adu}, {vr(U,4)}"); a(f"ds_write_b128 v{adu}, {vr(U+4,4)} offset:16")
        self.exec_all()
        a.label(lw)
        a(f"s_branch {l_j}")
        a.label(l_late)
        a(f"ds_read_b128 {vr(U,4)}, v{adu}"); a(f"ds_read_b128 {vr(U+4,4)}, v{adu} offset:16")
        self.poll(iss_q, [Gq, Gq+4, Gq+8, Gq+12, Gs], site='q2')
        a("s_waitcnt lgkmcnt(0)")
        a.label(l_j)
        self.stamp(2)
        self.tu()
        self.burst('Q1')
        st = [Gs, Gs+1]
        adds = [f"v_add_f32 v{Gq+r}, v{Gq+r}, v{Gq+8+r}" for r in range(8)]
        seq = []
        for k, d in enumerate((self.X1, self.X2, self.HM)):
            seq += [f"v_add_f32_dpp v{r}, v{r}, v{r} {d} {DPPALL}" for r in st]
            seq += adds[3*k:3*k+3] if k < 2 else adds[6:]
        for s_ in seq: a(s_)
        a(f"v_mul_f32 v{Gs}, {f32hex(1/640)}, v{Gs}")
        ror4 = [f"v_add_f32_dpp v{Gq+r}, v{Gq+r}, v{Gq+r} row_ror:4 {DPPALL}" for r in range(8)]
        ror8 = [f"v_add_f32_dpp v{Gq+r}, v{Gq+r}, v{Gq+r} row_ror:8 {DPPALL}" for r in range(8)]
        a(f"v_mul_f32 v{Gs+1}, {f32hex(1/640)}, v{Gs+1}")
        for s_ in ror4[:4]: a(s_)
        a(f"v_fma_f32 v{Gs+1}, -v{Gs}, v{Gs}, v{Gs+1}")
        for s_ in ror4[4:]: a(s_)
        a(f"v_add_f32 v{Gs+1}, {f32hex(1e-5)}, v{Gs+1}")
        for s_ in ror8[:4]: a(s_)
        a(f"v_rsq_f32 v{Gs+1}, v{Gs+1}")
        for s_ in ror8[4:]: a(s_)
        a(f"v_mul_f32 v{Gs+1}, {f32hex(SC)}, v{Gs+1}")
        for r in range(8): a(f"v_fma_f32 v{Gq+r}, -v{Gs}, v{U+r}, v{Gq+r}")
        a(f"v_readfirstlane_b32 s{sSc}, v{Gs+1}")
        Qp = 24
        for r in range(4): a(f"v_cvt_pk_bf16_f32 v{Qp+r}, v{Gq+2*r}, v{Gq+2*r+1}")
        for t in range(4):
            for r in range(4):
                a(f"v_cndmask_b32 v{AT+4*t+r}, 0, v{Qp+r}, s[{sMask[t]}:{sMask[t]+1}]")

    def combine8(self, G, ML, tmp):
        a = self.a
        M, f, Ls = tmp, tmp+1, tmp+2
        a(f"v_max_f32_dpp v{M}, v{ML}, v{ML} row_ror:8 {DPPALL}")
        self.dpp_steps([M], "v_max_f32", ["b15", "b31"])
        a(f"v_readlane_b32 s{sA}, v{M}, 63")
        a(f"v_subrev_f32 v{f}, s{sA}, v{ML}"); a(f"v_exp_f32 v{f}, v{f}")
        a(f"v_mul_f32 v{Ls}, v{f}, v{ML+1}")
        for r in range(4): a(f"v_mul_f32 v{G+r}, v{f}, v{G+r}")
        a(f"v_add_f32_dpp v{Ls}, v{Ls}, v{Ls} row_ror:8 {DPPALL}")
        for r in range(4): a(f"v_add_f32_dpp v{G+r}, v{G+r}, v{G+r} row_ror:8 {DPPALL}")
        a(f"v_add_f32_dpp v{Ls}, v{Ls}, v{Ls} row_bcast:15 row_mask:0xa bank_mask:0xf")
        a(f"v_permlane32_swap_b32 v{G}, v{G+2}")
        a(f"v_permlane32_swap_b32 v{G+1}, v{G+3}")
        a(f"v_add_f32_dpp v{Ls}, v{Ls}, v{Ls} row_bcast:31 row_mask:0xc bank_mask:0xf")
        a(f"v_add_f32 v{G}, v{G}, v{G+2}")
        a(f"v_add_f32 v{G+1}, v{G+1}, v{G+3}")
        a(f"v_readlane_b32 s{sA}, v{Ls}, 63")
        a(f"v_permlane16_swap_b32 v{G}, v{G+1}")
        a(f"v_rcp_f32 v{Ls}, s{sA}")
        a(f"v_add_f32 v{G}, v{G}, v{G+1}")
        a(f"v_mul_f32 v{G}, v{G}, v{Ls}")

    def amiddle(self):
        a = self.a
        a.c("==== A layer: q_abs slice = q @ w_uk^T (absorbed keys), published to every workgroup ====")
        D = 16
        for t in range(4):
            c = "0" if t == 0 else vr(D, 4)
            a(f"v_mfma_f32_16x16x32_bf16 {vr(D,4)}, {vr(AT+4*t,4)}, {vr(WUK+4*t,4)}, {c}")
        a(f"v_lshrrev_b32 v14, 8, v{vL16}"); a("v_lshlrev_b32 v14, 4, v14")
        a(f"s_lshl_b32 s{sTmp[0]}, s{sH}, 11"); a(f"s_lshl_b32 s{sTmp[1]}, s{sJ}, 8"); a(f"s_add_u32 s{sTmp[0]}, s{sTmp[0]}, s{sTmp[1]}")
        a(f"s_lshl_b32 s{sTmp[1]}, s{sW}, 6"); a(f"s_add_u32 s{sTmp[0]}, s{sTmp[0]}, s{sTmp[1]}")
        a(f"s_add_u32 s{sTmp[0]}, s{sTmp[0]}, {O_QABS}")
        S, S2 = 20, 21
        a(f"v_mov_b32_dpp v{S}, v{D} quad_perm:[0,0,0,0] {DPPALL}")
        a(f"v_mov_b32_dpp v{S2}, v{D+2} quad_perm:[2,2,2,2] {DPPALL}")
        a(f"s_nop 0")
        a(f"v_add_f32_dpp v{S}, v{D+1}, v{S} quad_perm:[1,1,1,1] {DPPALL}")
        a(f"v_add_f32_dpp v{S2}, v{D+3}, v{S2} quad_perm:[3,3,3,3] {DPPALL}")
        a(f"v_add_f32 v{S}, v{S}, v{S2}")
        a(f"v_mul_f32 v{S}, s{sSc}, v{S}")
        G = 24
        for q in range(4): a(f"v_mov_b32_dpp v{G+q}, v{S} row_newbcast:{4*q} {DPPALL}")
        self.tag([G, G+1, G+2, G+3])
        self.exec_set(0x00010001, 0x00010001)
        a(f"buffer_store_dwordx4 {vr(G,4)}, v14, {W}, s{sTmp[0]} offen sc1")
        self.exec_all()
        self.stamp(3)
        self.tu()
        if not self.pfnew: self.load_wuv()
        Gq = 16
        a(f"s_lshl_b32 s{sTmp[0]}, s{sGA}, 15"); a(f"s_lshl_b32 s{sTmp[1]}, s{sW}, 9"); a(f"s_add_u32 s{sTmp[0]}, s{sTmp[0]}, s{sTmp[1]}")
        a(f"s_add_u32 s{sTmp[0]}, s{sTmp[0]}, {O_QABS}")
        for i in range(1, 4): a(f"s_add_u32 s{sTmp[i]}, s{sTmp[0]}, {i*8192}")
        vA0, vB0, vAx = 52, 53, 54
        n, g = 48, 49
        a(f"v_lshrrev_b32 v{n}, 4, v{vL16}"); a(f"v_lshrrev_b32 v{g}, 4, v{n}"); a(f"v_and_b32 v{n}, 15, v{n}")
        a(f"v_and_b32 v50, 8, v{n}"); a(f"v_and_b32 v51, 3, v{n}"); a(f"v_lshl_or_b32 v50, v51, 1, v50")
        a(f"v_bfe_u32 v51, v{n}, 2, 1"); a(f"v_or_b32 v50, v50, v51")
        a(f"s_lshl_b32 s{sTmp[4]}, s{sW}, 14"); a(f"s_add_u32 s{sTmp[4]}, s{sTmp[4]}, {L_CKV}")
        a(f"v_lshlrev_b32 v51, 10, v{n}"); a(f"v_lshl_add_u32 v51, v{g}, 8, v51"); a(f"v_lshl_add_u32 v51, v50, 4, v51")
        a(f"v_add_u32 v{vA0}, s{sTmp[4]}, v51")
        a(f"v_mul_u32_u24 v{vB0}, 1040, v{n}"); a(f"v_lshl_add_u32 v{vB0}, v{g}, 8, v{vB0}"); a(f"v_add_u32 v{vB0}, {L_R0}, v{vB0}")
        a(f"v_mul_u32_u24 v51, 272, v{n}"); a(f"v_lshl_add_u32 v50, v{g}, 4, v51")
        a(f"s_lshl_b32 s{sTmp[4]}, s{sW}, 6"); a(f"s_add_u32 s{sTmp[4]}, s{sTmp[4]}, {L_ST}"); a(f"v_add_u32 v50, s{sTmp[4]}, v50")
        a(f"v_lshl_add_u32 v51, v{g}, 5, v51"); a(f"v_add_u32 v51, {L_ST}, v51")
        vC0, vC1, vX0, vX1 = 76, 77, 78, 79
        a(f"v_and_b32 v14, 3, v{n}"); a(f"v_lshrrev_b32 v15, 2, v{n}")
        a(f"v_and_b32 v55, 1, v{g}"); a(f"v_lshlrev_b32 v55, 3, v55"); a(f"v_lshl_add_u32 v55, v15, 1, v55")
        a(f"v_lshrrev_b32 v56, 1, v14"); a(f"v_xor_b32 v55, v55, v56")
        a(f"v_lshl_add_u32 v56, v{g}, 3, v15"); a(f"v_lshlrev_b32 v56, 10, v56")
        a(f"v_lshl_add_u32 v56, v55, 4, v56"); a(f"v_and_b32 v14, 1, v14"); a(f"v_lshl_add_u32 v56, v14, 3, v56")
        a(f"s_lshl_b32 s{sTmp[4]}, s{sW}, 8"); a(f"s_add_u32 s{sTmp[4]}, s{sTmp[4]}, {L_CKV}")
        a(f"v_add_u32 v{vC0}, s{sTmp[4]}, v56")
        a(f"v_add_u32 v{vC1}, 4096, v{vC0}"); a(f"v_xor_b32 v{vC1}, 16, v{vC1}")
        a(f"s_lshl_b32 s{sTmp[4]}, s{sW}, 8"); a(f"s_add_u32 s{sTmp[4]}, s{sTmp[4]}, {L_R0}")
        a(f"v_lshrrev_b32 v14, 9, v{vL16}"); a(f"v_and_b32 v57, 0x1f0, v{vL16}")
        a(f"v_lshrrev_b32 v15, 1, v57"); a(f"v_mul_u32_u24 v58, 1040, v14"); a(f"v_add_u32 v15, v15, v58"); a(f"v_add_u32 v15, s{sTmp[4]}, v15")
        a(f"v_lshl_add_u32 v57, v14, 11, v57")
        lg0 = a.newlabel("cg"); lg1 = a.newlabel("cg")
        a.label(lg0)
        a(f"s_cmp_ge_u32 s{sPos}, 16"); a(f"s_cbranch_scc1 {lg1}")
        self.stream_call()
        a(f"s_branch {lg0}")
        a.label(lg1)
        if self.sent:
            lsk = a.newlabel("nosent")
            if not self.sent1:
                a(f"s_cmp_lg_u32 s{sAct}, 0"); a(f"s_cbranch_scc1 {lsk}")
            a(f"v_lshrrev_b32 v14, 7, v{vL16}"); a(f"v_lshlrev_b32 v14, 11, v14"); a(f"v_and_b32 v58, 0x70, v{vL16}"); a(f"v_lshl_add_u32 v14, v58, 2, v14")
            def iss0():
                a(f"buffer_load_dwordx4 {vr(Gq,4)}, v14, {W}, s{sTmp[0]} offen sc1")
                a(f"buffer_load_dwordx4 {vr(Gq+4,4)}, v14, {W}, s{sTmp[2]} offen sc1")
            self.poll(iss0, [Gq, Gq+4], site='sent')
            a.label(lsk)
            self.stamp(15)
        def iss():
            for i in range(8):
                so = sTmp[i >> 1]
                if i & 1:
                    a(f"s_add_u32 s{sTmp[5-1]}, s{so}, 4096"); so = sTmp[4]
                a(f"buffer_load_dwordx4 {vr(Gq+4*i,4)}, v57, {W}, s{so} offen sc1")
        self.poll(iss, [Gq+4*i for i in range(8)], site='h4')
        self.stampval(30, sSpin); self.stampval(31, sPos)
        self.stamp(4)
        def a0_loads():
            if self.pfnew: self.load_wuv()
            self.burst('A0')
            if self.c1touch2 == "h4":
                lt = a.newlabel("t2")
                a(f"s_cmp_eq_u32 s{sL}, 0"); a(f"s_cbranch_scc1 {lt}")
                a(f"v_lshlrev_b32 v11, 2, v{vL16}")
                for i in range(1 if self.c1bf else 2):
                    a(f"s_add_u32 s{sTmp[0]}, s{sC1}, {i * 4096}")
                    a(f"buffer_load_dword v12, v11, {W}, s{sTmp[0]} offen")
                a.label(lt)
        if not self.opt2: a0_loads()
        for i in range(8):
            b = Gq + 4*i
            a(f"v_cvt_pk_bf16_f32 v{b}, v{b}, v{b+1}"); a(f"v_cvt_pk_bf16_f32 v{b+1}, v{b+2}, v{b+3}")
            a(f"ds_write_b64 v15, {vr(b,2)} offset:{i*2*1040}")
        if self.opt2: a0_loads()
        self.tu()
        a("s_waitcnt lgkmcnt(0)"); a("s_barrier")
        self.stamp(16)
        if "S" in self.xcalls: self.topup(site='S')
        self.burst('S')
        a.c("scores of this workgroup's 64 keys for 16 heads, softmax with the true maximum of the split, P @ c_kv")
        AB = 16
        Ds = 56
        def rd(st):
            b = AB + 8 * (st % 4)
            if st == 0: a(f"ds_read_b128 {vr(b,4)}, v{vA0}")
            else:
                a(f"v_xor_b32 v{vAx}, {st<<4}, v{vA0}"); a(f"ds_read_b128 {vr(b,4)}, v{vAx}")
            a(f"ds_read_b128 {vr(b+4,4)}, v{vB0} offset:{st*16}")
        for st in range(4): rd(st)
        for st in range(16):
            rem = min(3, 15 - st)
            a(f"s_waitcnt lgkmcnt({2*rem})")
            b = AB + 8 * (st % 4)
            c = "0" if st == 0 else vr(Ds, 4)
            a(f"v_mfma_f32_16x16x32_bf16 {vr(Ds,4)}, {vr(b,4)}, {vr(b+4,4)}, {c}")
            if st + 4 < 16: rd(st + 4)
        a(f"ds_write_b128 v50, {vr(Ds,4)}")
        self.tu()
        a("s_waitcnt lgkmcnt(0)"); a("s_barrier")
        self.stamp(17)
        SS = 60 if self.opt2 else 16
        for u in range(2):
            for hf in range(2):
                a(f"ds_read_b128 {vr(SS+8*u+4*hf,4)}, v51 offset:{u*128+hf*16}")
        DT = 44
        AF = 16
        steps = [(t, u) for t in range(8) for u in range(2)]
        def rdA(k):
            t, u = steps[k]; b = AF + 4 * (k % 4)
            if u == 0:
                if t == 0:
                    a(f"v_mov_b32 v{vX0}, v{vC0}"); a(f"v_mov_b32 v{vX1}, v{vC1}")
                else:
                    a(f"v_xor_b32 v{vX0}, {t<<5}, v{vC0}"); a(f"v_xor_b32 v{vX1}, {t<<5}, v{vC1}")
            a(f"ds_read_b64_tr_b16 {vr(b,2)}, v{vX0} offset:{u*32768}")
            a(f"ds_read_b64_tr_b16 {vr(b+2,2)}, v{vX1} offset:{u*32768}")
        if self.opt2:
            for k in range(4): rdA(k)
        if self.pfnew: self.load_wo(pWoA)
        m, l, t1, t2 = 32, 33, 34, 35
        a("s_waitcnt lgkmcnt(8)" if self.opt2 else "s_waitcnt lgkmcnt(0)")
        a(f"v_max3_f32 v{m}, v{SS}, v{SS+1}, v{SS+2}"); a(f"v_max3_f32 v{t1}, v{SS+3}, v{SS+4}, v{SS+5}")
        a(f"v_max3_f32 v{m}, v{m}, v{SS+6}, v{SS+7}"); a(f"v_max3_f32 v{t1}, v{t1}, v{SS+8}, v{SS+9}")
        a(f"v_max3_f32 v{m}, v{m}, v{SS+10}, v{SS+11}"); a(f"v_max3_f32 v{t1}, v{t1}, v{SS+12}, v{SS+13}")
        a(f"v_max3_f32 v{m}, v{m}, v{SS+14}, v{SS+15}"); a(f"v_max_f32 v{m}, v{m}, v{t1}")
        for sw in ("v_permlane16_swap_b32", "v_permlane32_swap_b32"):
            a(f"v_mov_b32 v{t1}, v{m}"); a(f"{sw} v{m}, v{t1}"); a(f"v_max_f32 v{m}, v{m}, v{t1}")
        for k in range(16): a(f"v_sub_f32 v{SS+k}, v{SS+k}, v{m}")
        for k in range(16): a(f"v_exp_f32 v{SS+k}, v{SS+k}")
        P = 36
        for k in range(8): a(f"v_cvt_pk_bf16_f32 v{P+k}, v{SS+2*k}, v{SS+2*k+1}")
        for k in range(8): a(f"v_add_f32 v{SS+k}, v{SS+k}, v{SS+8+k}")
        for k in range(4): a(f"v_add_f32 v{SS+k}, v{SS+k}, v{SS+4+k}")
        a(f"v_add_f32 v{SS}, v{SS}, v{SS+1}"); a(f"v_add_f32 v{SS+2}, v{SS+2}, v{SS+3}"); a(f"v_add_f32 v{l}, v{SS}, v{SS+2}")
        self.stamp(18)
        if "smax" in self.xcalls: self.topup(site='S')
        self.burst('smax')
        if not self.opt2:
            for k in range(4): rdA(k)
        for sw in ("v_permlane16_swap_b32", "v_permlane32_swap_b32"):
            a(f"v_mov_b32 v{t1}, v{l}"); a(f"{sw} v{l}, v{t1}"); a(f"v_add_f32 v{l}, v{l}, v{t1}")
        if self.c1bf:
            self.stage1_bf(DT, P, AF, steps, rdA)
            acc = 48; t1 = 68; Mx = 56; den = 64; R4 = range(4)
        else:
            a(f"v_lshrrev_b32 v14, 8, v{vL16}"); a(f"v_lshlrev_b32 v14, 17, v14"); a(f"v_and_b32 v15, 0xf0, v{vL16}"); a(f"v_add_u32 v14, v14, v15")
            a(f"s_lshl_b32 s{sTmp[0]}, s{sXG}, 20"); a(f"s_lshl_b32 s{sTmp[1]}, s{sGA}, 19"); a(f"s_add_u32 s{sTmp[0]}, s{sTmp[0]}, s{sTmp[1]}")
            a(f"s_lshl_b32 s{sTmp[1]}, s{sW}, 15"); a(f"s_add_u32 s{sTmp[0]}, s{sTmp[0]}, s{sTmp[1]}")
            a(f"s_and_b32 s{sTmp[2]}, s{sS}, 15"); a(f"s_lshl_b32 s{sTmp[1]}, s{sTmp[2]}, 9"); a(f"s_add_u32 s{sTmp[0]}, s{sTmp[0]}, s{sTmp[1]}")
            a(f"s_add_u32 s{sTmp[0]}, s{sTmp[0]}, {O_C1}")
            a(f"s_lshl_b32 s{sTmp[3]}, s{sXG}, 14"); a(f"s_lshl_b32 s{sTmp[1]}, s{sGA}, 13"); a(f"s_add_u32 s{sTmp[3]}, s{sTmp[3]}, s{sTmp[1]}")
            a(f"s_lshl_b32 s{sTmp[1]}, s{sW}, 9"); a(f"s_add_u32 s{sTmp[3]}, s{sTmp[3]}, s{sTmp[1]}")
            a(f"s_lshl_b32 s{sTmp[1]}, s{sTmp[2]}, 5"); a(f"s_add_u32 s{sTmp[3]}, s{sTmp[3]}, s{sTmp[1]}")
            a(f"s_add_u32 s{sTmp[3]}, s{sTmp[3]}, {O_ML1}")
            a(f"v_bfe_u32 v15, v{vL16}, 6, 2"); a(f"v_lshlrev_b32 v15, 11, v15")
            a(f"v_bfe_u32 v32+2, v{vL16}, 8, 1".replace("v32+2", "v34")); a(f"v_lshl_add_u32 v15, v34, 4, v15")
            MG = 76 - 0
            a(f"s_mov_b32 vcc_lo, 0xffff0000"); a("s_mov_b32 vcc_hi, 0")
            a(f"v_cndmask_b32 v34, v32, v33, vcc")
            mlops = [f"v_mov_b32_dpp v32, v34 quad_perm:[0,0,0,0] {DPPALL}", f"v_mov_b32_dpp v33, v34 quad_perm:[1,1,1,1] {DPPALL}",
                     f"v_mov_b32_dpp v35, v34 quad_perm:[3,3,3,3] {DPPALL}", f"v_mov_b32_dpp v34, v34 quad_perm:[2,2,2,2] {DPPALL}"]
            for k in range(16):
                t, u = steps[k]; b = AF + 4 * (k % 4)
                rem = min(3, 15 - k)
                a(f"s_waitcnt lgkmcnt({2*rem})")
                c = "0" if u == 0 else vr(DT+4*t, 4)
                a(f"v_mfma_f32_16x16x32_bf16 {vr(DT+4*t,4)}, {vr(P+4*u,4)}, {vr(b,4)}, {c}")
                if k + 4 < 16: rdA(k + 4)
                if k == 0:
                    for x_ in mlops: a(x_)
                if k == 2: self.tag([32, 33, 34, 35])
                if u == 1 and t >= 2: self.tag([DT+4*(t-2)+r for r in range(4)])
            self.tag([DT+4*6+r for r in range(4)]); self.tag([DT+4*7+r for r in range(4)])
            self.stamp(19)
            items = []
            for t in range(8):
                def pre(t=t): a(f"s_add_u32 s{sTmp[1]}, s{sTmp[0]}, {(t>>1)*8192+(t&1)*256}")
                items.append((DT+4*t, 14, sTmp[1], pre))
            def pre_ml(): a("s_mov_b32 exec_lo, 0x11111111"); a("s_mov_b32 exec_hi, 0")
            items.append((32, 15, sTmp[3], pre_ml))
            if self.c1sc1:
                loc = self.local; self.local = False
                self.local_stores(items)
                self.local = loc
            else:
                self.local_stores(items)
            self.exec_all()
            self.stamp(5)
            G, MM, LL = 16, 48, 52
            a(f"v_lshrrev_b32 v14, 4, v{vL16}"); a(f"v_and_b32 v15, 7, v14"); a(f"v_lshrrev_b32 v14, 5, v14")
            a(f"v_lshl_add_u32 v14, v15, 1, v14"); a(f"v_lshlrev_b32 v14, 5, v14")
            a(f"s_lshl_b32 s{sTmp[0]}, s{sXG}, 5"); a(f"s_add_u32 s{sTmp[0]}, s{sTmp[0]}, s{sI}")
            a(f"s_lshl_b32 s{sTmp[2]}, s{sTmp[0]}, 9"); a(f"s_add_u32 s{sTmp[2]}, s{sTmp[2]}, {O_ML1}")
            a(f"s_lshl_b32 s{sTmp[0]}, s{sTmp[0]}, 2"); a(f"s_add_u32 s{sTmp[0]}, s{sTmp[0]}, s{sW}")
            a(f"s_lshl_b32 s{sTmp[0]}, s{sTmp[0]}, 13"); a(f"s_add_u32 s{sTmp[0]}, s{sTmp[0]}, {O_C1}")
            a(f"s_add_u32 s{sTmp[1]}, s{sTmp[0]}, 4096")
            def issML():
                a(f"buffer_load_dwordx4 {vr(MM,4)}, v14, {W}, s{sTmp[2]} offen sc1")
                a(f"buffer_load_dwordx4 {vr(LL,4)}, v14, {W}, s{sTmp[2]} offen offset:16 sc1")
            lsk = a.newlabel("noml")
            if not self.mlsent:
                a(f"s_cmp_lg_u32 s{sAct}, 0"); a(f"s_cbranch_scc1 {lsk}")
            if not self.mltail:
                a(f"s_cmp_ge_u32 s{sL}, 2"); a(f"s_cbranch_scc1 {lsk}")
            self.poll(issML, [MM, LL], site='ml1')
            a.label(lsk)
            self.stamp(20)
            Mx, wv, den, t1 = 56, 60, 64, 68
            chk = 72
            lp = a.newlabel("sw1"); ns = a.newlabel("sw1n"); jn = a.newlabel("sw1j"); dn = a.newlabel("sw1d"); ns2 = a.newlabel("sw1m"); jn2 = a.newlabel("sw1k")
            a(f"s_mov_b32 s{sSpin}, 0")
            if self.bud is not None: a(f"s_mov_b32 s{sBud}, {self.bud.get('sw1', self.bud.get('*', 8))}")
            self.predelay('sw1')
            a.label(lp)
            issML()
            for i in range(8):
                a(f"buffer_load_dwordx4 {vr(G+4*i,4)}, v{vL16}, {W}, s{sTmp[i>>2]} offen offset:{(i&3)*1024} sc1")
            a(f"s_mov_b32 s{sYoung}, 8")
            self.dwait(8, 10 if self.addn else 0, 'sw1')
            a(f"s_sub_u32 s{sTmp[4]}, s{sYoung}, 8")
            for r in range(4): a(f"v_xor_b32 v{MM+r}, s{sT[r]}, v{MM+r}")
            for r in range(4): a(f"v_xor_b32 v{LL+r}, s{sT[r]}, v{LL+r}")
            a(f"v_or3_b32 v{chk}, v{MM}, v{MM+1}, v{MM+2}"); a(f"v_or3_b32 v{chk}, v{chk}, v{MM+3}, v{LL}")
            a(f"v_or3_b32 v{chk}, v{chk}, v{LL+1}, v{LL+2}"); a(f"v_or_b32 v{chk}, v{chk}, v{LL+3}")
            R4 = range(4)
            for r in R4: a(f"v_max_f32_dpp v{Mx+r}, v{MM+r}, v{MM+r} {self.X1} {DPPALL}")
            self.dpp_steps([Mx+r for r in R4], "v_max_f32", [self.X2, self.HM])
            for r in R4: a(f"v_mov_b32 v{t1+r}, v{Mx+r}")
            for r in R4: a(f"v_permlane32_swap_b32 v{Mx+r}, v{t1+r}")
            for r in R4: a(f"v_max_f32 v{Mx+r}, v{Mx+r}, v{t1+r}")
            for r in R4: a(f"v_sub_f32 v{wv+r}, v{MM+r}, v{Mx+r}")
            for r in R4: a(f"v_exp_f32 v{wv+r}, v{wv+r}")
            for r in R4: a(f"v_mul_f32 v{den+r}, v{wv+r}, v{LL+r}")
            self.dpp_steps([den+r for r in R4], "v_add_f32", [self.X1, self.X2, self.HM])
            for r in R4: a(f"v_mov_b32 v{t1+r}, v{den+r}")
            for r in R4: a(f"v_permlane32_swap_b32 v{den+r}, v{t1+r}")
            for r in R4: a(f"v_add_f32 v{den+r}, v{den+r}, v{t1+r}")
            if self.mode == "co":
                a(f"s_cmp_eq_u32 s{sTmp[4]}, 0"); a(f"s_cbranch_scc1 {ns2}")
                a(f"s_mov_b32 s{sYoung}, s{sTmp[4]}")
                a(f"s_swappc_b64 s[{sRET2}:{sRET2+1}], s[{sDW}:{sDW+1}]")
                a(f"s_branch {jn2}")
                a.label(ns2)
            self.dwait(0, 0, 'sw1')
            a.label(jn2)
            dw = [G + i for i in range(32)]
            for k, r in enumerate(dw): a(f"v_xor_b32 v{r}, s{sT[k % 4]}, v{r}")
            a(f"v_or3_b32 v{vT0}, v{dw[0]}, v{dw[1]}, v{chk}"); a(f"v_or3_b32 v{vT0+1}, v{dw[2]}, v{dw[3]}, v{dw[4]}")
            k = 5; tog = 0
            while k < 31:
                tgt = vT0 + tog
                a(f"v_or3_b32 v{tgt}, v{tgt}, v{dw[k]}, v{dw[k+1]}"); k += 2; tog ^= 1
            a(f"v_or3_b32 v{vT0}, v{vT0}, v{vT0+1}, v{dw[31]}")
            a(f"v_and_b32 v{vT0}, s{sFF}, v{vT0}")
            a(f"v_cmp_ne_u32 vcc, 0, v{vT0}")
            a(f"s_cbranch_vccz {dn}")
            a(f"s_add_u32 s{sSpin}, s{sSpin}, 1"); a(f"s_cmp_lt_u32 s{sSpin}, {SPIN_MAX}"); a(f"s_cbranch_scc1 {lp}")
            a(f"s_mov_b32 s{sErr}, 1")
            a.label(dn)
            self.stampval(24, sSpin); self.stampval(25, sPos)
            self.stamp(6)
            self.burst('A1')
            acc = 48
            for i in range(8):
                for r in range(4):
                    op = "v_mul_f32_dpp" if i == 0 else "v_fmac_f32_dpp"
                    a(f"{op} v{acc+r}, v{wv+r}, v{G+4*i+r} row_newbcast:{i} {DPPALL}")

        if self.c1bf:
            a(f"v_bfe_u32 v14, v{vL16}, 9, 1"); a(f"v_lshlrev_b32 v14, 11, v14"); a(f"v_and_b32 v15, 0xf0, v{vL16}"); a(f"v_add_u32 v14, v14, v15")
        else:
            a(f"v_bfe_u32 v14, v{vL16}, 8, 1"); a(f"v_lshlrev_b32 v14, 11, v14"); a(f"v_and_b32 v15, 0xf0, v{vL16}"); a(f"v_add_u32 v14, v14, v15")
            for r in R4: a(f"v_mov_b32 v{t1+r}, v{acc+r}")
        a(f"s_lshr_b32 s{sTmp[0]}, s{sI}, 2"); a(f"s_lshl_b32 s{sTmp[0]}, s{sTmp[0]}, 16")
        a(f"s_and_b32 s{sTmp[1]}, s{sI}, 3"); a(f"s_lshl_b32 s{sTmp[1]}, s{sTmp[1]}, 14"); a(f"s_add_u32 s{sTmp[0]}, s{sTmp[0]}, s{sTmp[1]}")
        if not self.c1bf:
            for r in R4: a(f"v_permlane32_swap_b32 v{acc+r}, v{t1+r}")
        a(f"s_lshl_b32 s{sTmp[1]}, s{sW}, 12"); a(f"s_add_u32 s{sTmp[0]}, s{sTmp[0]}, s{sTmp[1]}")
        a(f"s_lshl_b32 s{sTmp[1]}, s{sXG}, 8"); a(f"s_add_u32 s{sTmp[0]}, s{sTmp[0]}, s{sTmp[1]}")
        if not self.c1bf:
            for r in R4: a(f"v_add_f32 v{acc+r}, v{acc+r}, v{t1+r}")
        a(f"s_add_u32 s{sTmp[0]}, s{sTmp[0]}, {O_C2}")
        self.tag([acc, acc+1, acc+2, acc+3])
        if self.c1bf: self.exec_set(0xffff, 0xffff)
        else: a("s_mov_b32 exec_hi, 0")
        a(f"buffer_store_dwordx4 {vr(acc,4)}, v14, {W}, s{sTmp[0]} offen sc1")
        self.exec_all()
        lm = a.newlabel("ml2")
        a(f"s_and_b32 s{sTmp[1]}, s{sI}, 3"); a(f"s_or_b32 s{sTmp[1]}, s{sTmp[1]}, s{sW}"); a(f"s_cmp_lg_u32 s{sTmp[1]}, 0"); a(f"s_cbranch_scc1 {lm}")
        for r in (1, 2, 3):
            a(f"s_mov_b64 vcc, {1 << r}")
            a(f"v_cndmask_b32 v{Mx}, v{Mx}, v{Mx+r}, vcc"); a(f"v_cndmask_b32 v{den}, v{den}, v{den+r}, vcc")
        a(f"v_mov_b32 v{Mx+1}, v{den}"); a(f"v_mov_b32 v{Mx+2}, 0"); a(f"v_mov_b32 v{Mx+3}, 0")
        self.tag([Mx, Mx+1, Mx+2, Mx+3])
        a(f"s_lshl_b32 s{sTmp[1]}, s{sI}, 7"); a(f"s_lshl_b32 s{sTmp[2]}, s{sXG}, 4"); a(f"s_add_u32 s{sTmp[1]}, s{sTmp[1]}, s{sTmp[2]}")
        a(f"s_add_u32 s{sTmp[1]}, s{sTmp[1]}, {O_ML2}")
        a(f"v_lshlrev_b32 v15, 3, v{vL16}")
        a("s_mov_b64 exec, 15")
        a(f"buffer_store_dwordx4 {vr(Mx,4)}, v15, {W}, s{sTmp[1]} offen sc1")
        self.exec_all()
        a.label(lm)
        self.stamp(21)
        self.tu()
        if not self.pfnew: self.load_wo(pWoA)
        a.c("second reduction step (8 key ranges), normalisation, then ctx slice @ w_uv")
        G0, G1, M0, M1 = 16, 20, 24, 28
        a(f"v_bfe_u32 v15, v{vL16}, 6, 2")
        a(f"v_bfe_u32 v14, v{vL16}, 4, 2"); a(f"v_lshlrev_b32 v14, 2, v14"); a(f"v_lshrrev_b32 v32, 8, v{vL16}"); a(f"v_add_u32 v14, v14, v32")
        a(f"v_lshlrev_b32 v14, 4, v14"); a(f"v_lshl_add_u32 v14, v15, 8, v14")
        a(f"v_lshlrev_b32 v15, 4, v15")
        a(f"s_lshr_b32 s{sTmp[0]}, s{sH}, 2"); a(f"s_lshl_b32 s{sTmp[0]}, s{sTmp[0]}, 16"); a(f"s_lshl_b32 s{sTmp[1]}, s{sJ}, 13"); a(f"s_add_u32 s{sTmp[0]}, s{sTmp[0]}, s{sTmp[1]}")
        a(f"s_lshl_b32 s{sTmp[1]}, s{sW}, 11"); a(f"s_add_u32 s{sTmp[0]}, s{sTmp[0]}, s{sTmp[1]}"); a(f"s_add_u32 s{sTmp[0]}, s{sTmp[0]}, {O_C2}")
        a(f"s_lshl_b32 s{sTmp[2]}, s{sH}, 7"); a(f"s_add_u32 s{sTmp[2]}, s{sTmp[2]}, {O_ML2}")
        def iss2():
            a(f"buffer_load_dwordx4 {vr(M0,4)}, v15, {W}, s{sTmp[2]} offen sc1")
            a(f"buffer_load_dwordx4 {vr(M1,4)}, v15, {W}, s{sTmp[2]} offen offset:64 sc1")
            a(f"buffer_load_dwordx4 {vr(G0,4)}, v14, {W}, s{sTmp[0]} offen sc1")
            a(f"buffer_load_dwordx4 {vr(G1,4)}, v14, {W}, s{sTmp[0]} offen offset:1024 sc1")
        self.poll(iss2, [M0, M1, G0, G1], site='h5b')
        self.stampval(26, sSpin); self.stampval(27, sPos)
        self.stamp(14)
        self.tu()
        self.burst('A2')
        lsel = [a.newlabel("sel") for _ in range(4)]; lj = a.newlabel("selj")
        Mx, f0, f1, Ls = 32, 33, 34, 35
        a(f"v_max_f32 v{Mx}, v{M0}, v{M1}")
        a(f"s_and_b32 s{sTmp[1]}, s{sH}, 3")
        for r in (1, 2, 3):
            a(f"s_cmp_eq_u32 s{sTmp[1]}, {r}"); a(f"s_cbranch_scc1 {lsel[r]}")
        a(f"s_branch {lj}")
        for r in (1, 2, 3):
            a.label(lsel[r])
            a(f"v_mov_b32 v{G0}, v{G0+r}"); a(f"v_mov_b32 v{G1}, v{G1+r}")
            if r < 3: a(f"s_branch {lj}")
        a.label(lj)
        self.dpp_steps([Mx], "v_max_f32", ["row_ror:4", "row_ror:8"])
        a(f"v_sub_f32 v{f0}, v{M0}, v{Mx}"); a(f"v_sub_f32 v{f1}, v{M1}, v{Mx}")
        a(f"v_exp_f32 v{f0}, v{f0}"); a(f"v_exp_f32 v{f1}, v{f1}")
        a(f"v_mul_f32 v{Ls}, v{f0}, v{M0+1}"); a(f"v_mul_f32 v{G0}, v{f0}, v{G0}")
        a(f"v_fmac_f32 v{Ls}, v{f1}, v{M1+1}"); a(f"v_fmac_f32 v{G0}, v{f1}, v{G1}")
        self.dpp_steps([Ls, G0], "v_add_f32", ["row_ror:4", "row_ror:8"])
        a(f"v_rcp_f32 v{Ls}, v{Ls}")
        a(f"v_mul_f32 v{G0}, v{G0}, v{Ls}")
        Xp = 14
        a(f"v_cvt_pk_bf16_f32 v{Xp}, v{G0}, v{G0}")
        D, Ab = 16, 20
        self.pv_gemv(Xp, 4, lambda i: vr(WUV+4*i, 4), D, Ab)
        self.red_write(D)
        self.row_slot_addr()
        self.tu()
        a("s_waitcnt lgkmcnt(0)"); a("s_barrier")
        lf = a.newlabel("uvfin")
        a(f"s_cmp_lg_u32 s{sW}, 0"); a(f"s_cbranch_scc1 {lf}")
        G = 16
        self.red_final_read(G)
        a(f"s_mov_b32 s{sA}, {f32hex(0.125)}")
        a("s_waitcnt lgkmcnt(0)")
        self.sum4(G)
        a(f"v_writelane_b32 v{G}, 0, 32"); a(f"v_writelane_b32 v{G+1}, s{sA}, 32")
        self.tag([G, G+1, G+2, G+3])
        a("s_mov_b32 exec_hi, 1")
        self.local_stores([(G, vL16, sTmp[0], None)])
        a("s_mov_b32 exec_hi, -1")
        a.label(lf)
        self.stamp(7)

    def stage1_bf(self, DT, P, AF, steps, rdA):
        a = self.a
        R4 = range(4)
        a.c("bf16 partial sums go to the XCD group; their (max, sum) granules are the flag and leave after the sums have been written")
        a(f"v_lshrrev_b32 v14, 8, v{vL16}"); a(f"v_lshlrev_b32 v14, 16, v14"); a(f"v_and_b32 v15, 0xf0, v{vL16}"); a(f"v_add_u32 v14, v14, v15")
        a(f"s_lshl_b32 s{sTmp[0]}, s{sXG}, 19"); a(f"s_lshl_b32 s{sTmp[1]}, s{sGA}, 18"); a(f"s_add_u32 s{sTmp[0]}, s{sTmp[0]}, s{sTmp[1]}")
        a(f"s_lshl_b32 s{sTmp[1]}, s{sW}, 14"); a(f"s_add_u32 s{sTmp[0]}, s{sTmp[0]}, s{sTmp[1]}")
        a(f"s_and_b32 s{sTmp[2]}, s{sS}, 15"); a(f"s_lshl_b32 s{sTmp[1]}, s{sTmp[2]}, 8"); a(f"s_add_u32 s{sTmp[0]}, s{sTmp[0]}, s{sTmp[1]}")
        a(f"s_add_u32 s{sTmp[0]}, s{sTmp[0]}, {O_C1}")
        a(f"s_lshl_b32 s{sTmp[3]}, s{sXG}, 14"); a(f"s_lshl_b32 s{sTmp[1]}, s{sGA}, 13"); a(f"s_add_u32 s{sTmp[3]}, s{sTmp[3]}, s{sTmp[1]}")
        a(f"s_lshl_b32 s{sTmp[1]}, s{sW}, 9"); a(f"s_add_u32 s{sTmp[3]}, s{sTmp[3]}, s{sTmp[1]}")
        a(f"s_lshl_b32 s{sTmp[1]}, s{sTmp[2]}, 5"); a(f"s_add_u32 s{sTmp[3]}, s{sTmp[3]}, s{sTmp[1]}")
        a(f"s_add_u32 s{sTmp[3]}, s{sTmp[3]}, {O_ML1}")
        a(f"v_bfe_u32 v15, v{vL16}, 6, 2"); a(f"v_lshlrev_b32 v15, 11, v15")
        a(f"v_bfe_u32 v34, v{vL16}, 8, 1"); a(f"v_lshl_add_u32 v15, v34, 4, v15")
        a(f"s_mov_b32 vcc_lo, 0xffff0000"); a("s_mov_b32 vcc_hi, 0")
        a(f"v_cndmask_b32 v34, v32, v33, vcc")
        mlops = [f"v_mov_b32_dpp v32, v34 quad_perm:[0,0,0,0] {DPPALL}", f"v_mov_b32_dpp v33, v34 quad_perm:[1,1,1,1] {DPPALL}",
                 f"v_mov_b32_dpp v35, v34 quad_perm:[3,3,3,3] {DPPALL}", f"v_mov_b32_dpp v34, v34 quad_perm:[2,2,2,2] {DPPALL}"]
        def pack(wp):
            D0, E0 = DT + 8*wp, DT + 8*wp + 4
            a(f"v_cvt_pk_bf16_f32 v{D0}, v{D0}, v{D0+1}"); a(f"v_cvt_pk_bf16_f32 v{D0+1}, v{D0+2}, v{D0+3}")
            a(f"v_cvt_pk_bf16_f32 v{D0+2}, v{E0}, v{E0+1}"); a(f"v_cvt_pk_bf16_f32 v{D0+3}, v{E0+2}, v{E0+3}")
        def item(wp):
            def pre(): a(f"s_add_u32 s{sTmp[1]}, s{sTmp[0]}, {wp*4096}")
            return (DT+8*wp, 14, sTmp[1], pre)
        for k in range(16):
            t, u = steps[k]; b = AF + 4 * (k % 4)
            rem = min(3, 15 - k)
            a(f"s_waitcnt lgkmcnt({2*rem})")
            c = "0" if u == 0 else vr(DT+4*t, 4)
            a(f"v_mfma_f32_16x16x32_bf16 {vr(DT+4*t,4)}, {vr(P+4*u,4)}, {vr(b,4)}, {c}")
            if k + 4 < 16: rdA(k + 4)
            if k == 0:
                for x_ in mlops: a(x_)
            if k == 2: self.tag([32, 33, 34, 35])
            if k in (7, 11, 15):
                pack((k - 7) // 4)
                if self.opt2: self.local_stores([item((k - 7) // 4)])
        pack(3)
        self.stamp(19)
        if self.opt2: self.local_stores([item(3)])
        else: self.local_stores([item(wp) for wp in range(4)])
        G, MM, LL = 16, 48, 52
        a(f"v_bfe_u32 v14, v{vL16}, 4, 2"); a(f"v_lshlrev_b32 v14, 2, v14"); a(f"v_lshrrev_b32 v36, 8, v{vL16}"); a(f"v_add_u32 v14, v14, v36")
        a(f"v_lshlrev_b32 v14, 5, v14")
        a(f"s_lshl_b32 s{sTmp[0]}, s{sXG}, 5"); a(f"s_add_u32 s{sTmp[0]}, s{sTmp[0]}, s{sI}")
        a(f"s_lshl_b32 s{sTmp[2]}, s{sTmp[0]}, 9"); a(f"s_add_u32 s{sTmp[2]}, s{sTmp[2]}, {O_ML1}")
        a("s_waitcnt vmcnt(0)")
        def pre_ml(): a("s_mov_b32 exec_lo, 0x11111111"); a("s_mov_b32 exec_hi, 0")
        self.local_stores([(32, 15, sTmp[3], pre_ml)])
        self.exec_all()
        self.stamp(5)
        def issML():
            a(f"buffer_load_dwordx4 {vr(MM,4)}, v14, {W}, s{sTmp[2]} offen sc1")
            a(f"buffer_load_dwordx4 {vr(LL,4)}, v14, {W}, s{sTmp[2]} offen offset:16 sc1")
        self.poll(issML, [MM, LL], site='ml1')
        self.stamp(20)
        for i in range(4):
            a(f"buffer_load_dwordx4 {vr(G+4*i,4)}, v{vL16}, {W}, s{sC1} offen offset:{i*1024} sc1")
        Mx, wv, den, t1 = 56, 60, 64, 68
        for r in R4: a(f"v_max_f32_dpp v{Mx+r}, v{MM+r}, v{MM+r} {self.X1} {DPPALL}")
        self.dpp_steps([Mx+r for r in R4], "v_max_f32", [self.X2])
        for sw in ("v_permlane16_swap_b32", "v_permlane32_swap_b32"):
            for r in R4: a(f"v_mov_b32 v{t1+r}, v{Mx+r}")
            for r in R4: a(f"{sw} v{Mx+r}, v{t1+r}")
            for r in R4: a(f"v_max_f32 v{Mx+r}, v{Mx+r}, v{t1+r}")
        for r in R4: a(f"v_sub_f32 v{wv+r}, v{MM+r}, v{Mx+r}")
        for r in R4: a(f"v_exp_f32 v{wv+r}, v{wv+r}")
        for r in R4: a(f"v_mul_f32 v{den+r}, v{wv+r}, v{LL+r}")
        self.dpp_steps([den+r for r in R4], "v_add_f32", [self.X1, self.X2])
        for sw in ("v_permlane16_swap_b32", "v_permlane32_swap_b32"):
            for r in R4: a(f"v_mov_b32 v{t1+r}, v{den+r}")
            for r in R4: a(f"{sw} v{den+r}, v{t1+r}")
            for r in R4: a(f"v_add_f32 v{den+r}, v{den+r}, v{t1+r}")
        self.dwait(0, 4, 'sw1')
        self.stamp(6)
        self.tu()
        self.burst('A1')
        accA, accB, un = 48, 52, 32
        for i in range(4):
            g0 = G + 4*i
            for q in range(4):
                a(f"v_lshlrev_b32 v{un+2*q}, 16, v{g0+q}"); a(f"v_and_b32 v{un+2*q+1}, 0xffff0000, v{g0+q}")
            for q in range(8):
                acc = (accA if q < 4 else accB) + (q & 3)
                op = "v_mul_f32_dpp" if i == 0 else "v_fmac_f32_dpp"
                a(f"{op} v{acc}, v{wv+(q&3)}, v{un+q} row_newbcast:{i} {DPPALL}")
        for r in R4: a(f"v_permlane32_swap_b32 v{accA+r}, v{accB+r}")
        for r in R4: a(f"v_add_f32 v{accA+r}, v{accA+r}, v{accB+r}")
        for r in R4: a(f"v_mov_b32 v{t1+r}, v{accA+r}")
        for r in R4: a(f"v_permlane16_swap_b32 v{accA+r}, v{t1+r}")
        for r in R4: a(f"v_add_f32 v{accA+r}, v{accA+r}, v{t1+r}")

    def check_inline(self, regs, ok_label):
        a = self.a
        acc, acc2 = vT0, vT0 + 1
        dw = [g + i for g in regs for i in range(4)]
        for k, r in enumerate(dw): a(f"v_xor_b32 v{r}, s{sT[k % 4]}, v{r}")
        a(f"v_or3_b32 v{acc}, v{dw[0]}, v{dw[1]}, v{dw[2]}")
        a(f"v_or3_b32 v{acc2}, v{dw[3]}, v{dw[4]}, v{dw[5]}")
        k = 6; tog = 0
        while k < len(dw):
            tgt = acc if tog == 0 else acc2
            a(f"v_or3_b32 v{tgt}, v{tgt}, v{dw[k]}, v{dw[k+1]}"); k += 2; tog ^= 1
        a(f"v_or_b32 v{acc}, v{acc}, v{acc2}")
        a(f"v_and_b32 v{acc}, s{sFF}, v{acc}")
        a(f"v_cmp_ne_u32 vcc, 0, v{acc}")
        a(f"s_cbranch_vccz {ok_label}")

    def row_slot_addr(self):
        a = self.a
        a(f"s_lshl_b32 s{sTmp[0]}, s{sH}, 3"); a(f"s_add_u32 s{sTmp[0]}, s{sTmp[0]}, s{sJ}"); a(f"s_lshl_b32 s{sTmp[0]}, s{sTmp[0]}, 10")
        a(f"s_add_u32 s{sTmp[0]}, s{sTmp[0]}, {O_ROW}")

    def bmiddle(self):
        a = self.a
        a.c("==== B layer: scores of this wave's 256 keys from the register-resident K, softmax with the true maximum, P @ V ====")
        k = self.kblk
        if self.mode == "co":
            l0 = a.newlabel("kw"); l1 = a.newlabel("kw")
            a.label(l0)
            a(f"s_cmp_ge_u32 s{sPos}, {self.KEND+self.keep}"); a(f"s_cbranch_scc1 {l1}")
            self.stream_call()
            a(f"s_waitcnt vmcnt({self.keep})")
            a(f"s_branch {l0}")
            a.label(l1)
            a(f"s_waitcnt vmcnt({self.keep})")
        self.stampval(24, sPos)
        self.stamp(16)
        if not self.vsplit or self.woqk: self.wo_setup(pWoB)
        Db = [16, 20, 24]; SB = 28; Tt = 14
        def redops(b):
            D = Db[b % 3]; S = SB + b
            return [f"v_mov_b32_dpp v{S}, v{D} quad_perm:[0,0,0,0] {DPPALL}",
                    f"v_mov_b32_dpp v{Tt}, v{D+2} quad_perm:[2,2,2,2] {DPPALL}",
                    f"v_add_f32_dpp v{S}, v{D+1}, v{S} quad_perm:[1,1,1,1] {DPPALL}",
                    f"v_add_f32_dpp v{Tt}, v{D+3}, v{Tt} quad_perm:[3,3,3,3] {DPPALL}",
                    f"v_add_f32 v{S}, v{S}, v{Tt}"]
        for b in range(16):
            D = Db[b % 3]
            ro = redops(b - 2) if b >= 2 else []
            for t in range(4):
                c = "0" if t == 0 else vr(D, 4)
                a(f"v_mfma_f32_16x16x32_bf16 {vr(D,4)}, {vr(AT+4*t,4)}, {ar(16*b+4*t,4)}, {c}")
                if ro: a(ro[t])
                if self.vsplit and self.wolate:
                    if t == 2 and b < 4: self.vtr_one(4 + b)
                elif self.vsplit:
                    if self.woqk and t == 1 and b < 6: self.wo_one(b)
                    if t == 2 and (6 if self.woqk else 0) <= b < (10 if self.woqk else 4): self.vtr_one(4 + b - (6 if self.woqk else 0))
                else:
                    if t == 1 and b < 8: self.pf_guard(lambda: self.vtr_one(b))
                    if t == 2 and 8 <= b < 14: self.pf_guard(lambda: self.wo_one(b - 8))
            if ro: a(ro[4])
            if b in self.qkcalls: self.topup(self.dq)
        r14, r15 = redops(14), redops(15)
        r15 = [x.replace(f"v{Tt}", "v15") for x in r15]
        for x14, x15 in zip(r14, r15):
            a(x14); a(x15)
        self.stamp(3)
        m, m2 = 14, 15
        a(f"v_max3_f32 v{m}, v{SB}, v{SB+1}, v{SB+2}"); a(f"v_max3_f32 v{m2}, v{SB+3}, v{SB+4}, v{SB+5}")
        a(f"v_max3_f32 v{m}, v{m}, v{SB+6}, v{SB+7}"); a(f"v_max3_f32 v{m2}, v{m2}, v{SB+8}, v{SB+9}")
        a(f"v_max3_f32 v{m}, v{m}, v{SB+10}, v{SB+11}"); a(f"v_max3_f32 v{m2}, v{m2}, v{SB+12}, v{SB+13}")
        a(f"v_max3_f32 v{m}, v{m}, v{SB+14}, v{SB+15}"); a(f"v_max_f32 v{m}, v{m}, v{m2}")
        self.dpp_steps([m], "v_max_f32", ["row_ror:4", "row_ror:8", "b15", "b31"])
        a(f"v_readlane_b32 s{sA}, v{m}, 63")
        a(f"v_mov_b32 v{m2}, s{sSc}")
        a(f"v_mul_f32 v{m}, s{sA}, v{m2}")
        a(f"v_readfirstlane_b32 s{sA}, v{m}")
        for q in range(16): a(f"v_fma_f32 v{SB+q}, v{SB+q}, s{sSc}, -v{m}")
        for q in range(16):
            a(f"v_exp_f32 v{SB+q}, v{SB+q}")
            if self.wolate and q % 2 == 1 and q // 2 < 6: self.wo_one(q // 2)
        l, l2 = 14, 15
        a(f"v_add_f32 v{l}, v{SB}, v{SB+1}"); a(f"v_add_f32 v{l2}, v{SB+2}, v{SB+3}")
        for q in range(4, 16, 2):
            a(f"v_add_f32 v{l}, v{l}, v{SB+q}"); a(f"v_add_f32 v{l2}, v{l2}, v{SB+q+1}")
        a(f"v_add_f32 v{l}, v{l}, v{l2}")
        pk = [f"v_cvt_pk_bf16_f32 v{SB+q}, v{SB+q}, v{SB+q}" for q in range(16)]
        red = [f"v_add_f32_dpp v{l}, v{l}, v{l} row_ror:4 {DPPALL}", f"v_add_f32_dpp v{l}, v{l}, v{l} row_ror:8 {DPPALL}",
               f"v_add_f32_dpp v{l}, v{l}, v{l} row_bcast:15 row_mask:0xa bank_mask:0xf", f"v_add_f32_dpp v{l}, v{l}, v{l} row_bcast:31 row_mask:0xc bank_mask:0xf"]
        for i in range(4):
            for x_ in pk[4*i:4*i+2]: a(x_)
            a(red[i])
            for x_ in pk[4*i+2:4*i+4]: a(x_)
        a(f"v_readlane_b32 s{sB_}, v{l}, 63")
        self.stamp(4)
        if self.mode == "co":
            self.drain(self.keep)
            a("s_waitcnt vmcnt(16)")
        Ab, Do = 44, 52
        a(f"s_lshl_b32 s{sTmp[0]}, s{sW}, 14"); a(f"v_add_u32 v15, s{sTmp[0]}, v{vL16}")
        if L_VL: a(f"v_add_u32 v15, {L_VL}, v15")
        if self.smf:
            self.pv_smf(SB, Ab, Do)
        else:
            self.pv_dense(SB, Ab, Do)
        self.row_slot_addr()
        a(f"v_writelane_b32 v{Do}, s{sA}, 32"); a(f"v_writelane_b32 v{Do+1}, s{sB_}, 32")
        self.red_write(Do)
        a("s_waitcnt lgkmcnt(0)"); a("s_barrier")
        self.stamp(5)
        lf = a.newlabel("bfin")
        a(f"s_cmp_lg_u32 s{sW}, 0"); a(f"s_cbranch_scc1 {lf}")
        G = 16; MLr = 32
        a(f"v_mov_b32 v14, {L_RED+512}")
        for w in range(4): a(f"ds_read_b64 {vr(MLr+2*w,2)}, v14 offset:{w*RSTR}")
        self.red_final_read(G)
        a("s_waitcnt lgkmcnt(4)")
        M = 40
        a(f"v_max3_f32 v{M}, v{MLr}, v{MLr+2}, v{MLr+4}"); a(f"v_max_f32 v{M}, v{M}, v{MLr+6}")
        for w in range(4): a(f"v_sub_f32 v{MLr+2*w}, v{MLr+2*w}, v{M}")
        for w in range(4): a(f"v_exp_f32 v{MLr+2*w}, v{MLr+2*w}")
        a(f"v_readfirstlane_b32 s{sA}, v{M}")
        a("s_waitcnt lgkmcnt(0)")
        for r in range(4): a(f"v_mul_f32 v{G+r}, v{MLr}, v{G+r}")
        for w in range(1, 4):
            for r in range(4): a(f"v_fmac_f32 v{G+r}, v{MLr+2*w}, v{G+4*w+r}")
        a(f"v_writelane_b32 v{G}, s{sA}, 32")
        self.tag([G, G+1, G+2, G+3])
        a("s_mov_b32 exec_hi, 1")
        self.local_stores([(G, vL16, sTmp[0], None)])
        a("s_mov_b32 exec_hi, -1")
        a.label(lf)
        self.stamp(7)

    def pv_dense(self, SB, Ab, Do):
        a = self.a
        LB = [16, 20, 24, 56]
        order = [(b, u) for b in range(10) for u in range(4)] + [(b, u) for b in range(10, 14) for u in range(4)] + [(b, u) for b in (14, 15) for u in range(4)]
        def build(kk):
            b, u = order[kk]; A = Ab + 4 * (kk % 2)
            for r in range(4):
                a(f"v_and_b32_dpp v{A+r}, v{SB+b}, v{vM[r]} row_newbcast:{4*u} {DPPALL}")
        def bop(kk):
            b, u = order[kk]
            if b < 10: return vr(VRES+16*b+4*u, 4)
            if b < 14: return vr(LB[u], 4)
            return vr(self.vtr_reg(b, u), 4)
        def ldsrd(b, u):
            a(f"ds_read_b128 {vr(LB[u],4)}, v15 offset:{((b-10)*4+u)*1024}")
        build(0); build(1)
        for kk in range(len(order)):
            b, u = order[kk]
            if (b, u) == (8, 0):
                self.stamp(17)
                a("s_waitcnt vmcnt(0)")
                self.stamp(18)
                for uu in range(4): ldsrd(10, uu)
            if 10 <= b < 14: a(f"s_waitcnt lgkmcnt(3)" if not (b == 13 and u > 0) else f"s_waitcnt lgkmcnt({3-u})")
            A = Ab + 4 * (kk % 2)
            c = "0" if kk == 0 else vr(Do, 4)
            a(f"v_mfma_f32_16x16x32_bf16 {vr(Do,4)}, {vr(A,4)}, {bop(kk)}, {c}")
            if 10 <= b < 13: ldsrd(b + 1, u)
            if kk + 2 < len(order): build(kk + 2)

    def pv_smf(self, SB, Ab, Do):
        a = self.a
        N0, N1, IDX = 56, 57, 58
        n = 14
        a(f"v_bfe_u32 v{n}, v{vL16}, 4, 4")
        a(f"v_and_b32 v{IDX}, 3, v{n}"); a(f"v_mul_u32_u24 v{IDX}, 0x1111, v{IDX}")
        a(f"v_lshrrev_b32 v{n}, 2, v{n}"); a(f"v_mov_b32 v59, 0xffff")
        a(f"v_cmp_eq_u32 vcc, 0, v{n}"); a(f"v_cndmask_b32 v{N0}, 0, v59, vcc")
        a(f"v_cmp_eq_u32 vcc, 1, v{n}"); a(f"v_cndmask_b32 v{N1}, 0, v59, vcc")
        for r in range(4): a(f"v_mov_b32 v{Do+r}, 0")
        order = [(b, s_) for b in range(16) for s_ in range(2)]
        LB = [16, 28]
        def build(kk):
            b, s_ = order[kk]; A = Ab + 4 * (kk % 2)
            a(f"v_and_b32_dpp v{A}, v{SB+b}, v{N0} row_newbcast:{8*s_} {DPPALL}")
            a(f"v_and_b32_dpp v{A+1}, v{SB+b}, v{N1} row_newbcast:{8*s_} {DPPALL}")
            a(f"v_and_b32_dpp v{A+2}, v{SB+b}, v{N0} row_newbcast:{8*s_+4} {DPPALL}")
            a(f"v_and_b32_dpp v{A+3}, v{SB+b}, v{N1} row_newbcast:{8*s_+4} {DPPALL}")
        def bop(kk):
            b, s_ = order[kk]
            if b < 10: return vr(VRES+16*b+8*s_, 8)
            if b < 14: return vr(LB[s_], 8)
            return vr(self.vtr_reg(b, 2*s_), 8)
        def ldsrd(b, s_):
            for hf in range(2):
                a(f"ds_read_b128 {vr(LB[s_]+4*hf,4)}, v15 offset:{((b-10)*4+2*s_+hf)*1024}")
        build(0); build(1)
        for kk in range(len(order)):
            b, s_ = order[kk]
            if (b, s_) == (8, 0):
                self.stamp(17)
                if self.wolate:
                    l0 = a.newlabel("pw"); l1 = a.newlabel("pw")
                    a(f"s_cmp_ge_u32 s{sL}, 2"); a(f"s_cbranch_scc1 {l0}")
                    a("s_waitcnt vmcnt(0)"); a(f"s_branch {l1}")
                    a.label(l0)
                    a("s_waitcnt vmcnt(6)")
                    a.label(l1)
                else:
                    a("s_waitcnt vmcnt(0)")
                self.stamp(18)
                ldsrd(10, 0); ldsrd(10, 1)
            if 10 <= b < 14: a("s_waitcnt lgkmcnt(2)" if not (b == 13 and s_ == 1) else "s_waitcnt lgkmcnt(0)")
            A = Ab + 4 * (kk % 2)
            a(f"v_smfmac_f32_16x16x64_bf16 {vr(Do,4)}, {vr(A,4)}, {bop(kk)}, v{IDX}")
            if 10 <= b < 13: ldsrd(b + 1, s_)
            if kk + 2 < len(order): build(kk + 2)

    def opart(self):
        a = self.a
        a.c("==== O part: combine the 8 partial results of the head, @ W_o slice, column hand-off, residual update ====")
        G, ML = 16, 20
        a(f"v_lshrrev_b32 v14, 7, v{vL16}"); a(f"v_lshlrev_b32 v15, 10, v14")
        a(f"v_and_b32 v14, 0x70, v{vL16}"); a(f"v_add_u32 v14, v15, v14")
        a(f"s_lshl_b32 s{sTmp[0]}, s{sH}, 13"); a(f"s_add_u32 s{sTmp[0]}, s{sTmp[0]}, {O_ROW}")
        a(f"s_lshl_b32 s{sTmp[1]}, s{sW}, 7"); a(f"s_add_u32 s{sTmp[1]}, s{sTmp[1]}, s{sTmp[0]}")
        N0, N1, IDX = 60, 61, 62
        if self.opt1:
            a(f"v_lshrrev_b32 v59, 8, v{vL16}"); a(f"v_and_b32 v58, 1, v59"); a(f"v_lshrrev_b32 v59, 1, v59"); a(f"v_lshl_add_u32 v59, v58, 2, v59")
            a(f"v_mul_u32_u24 v59, 160, v59")
            self.smf_consts(N0, N1, IDX, 57)
        else:
            a(f"v_lshrrev_b32 v59, 8, v{vL16}"); a(f"v_mul_u32_u24 v59, 160, v59")
        a(f"v_and_b32 v58, 0xf0, v{vL16}"); a(f"v_add_u32 v59, v59, v58")
        a(f"s_mul_i32 s{sTmp[2]}, s{sW}, {WOSTR}"); a(f"s_add_u32 s{sTmp[2]}, s{sTmp[2]}, {L_R0}"); a(f"v_add_u32 v59, s{sTmp[2]}, v59")
        def coladdr():
            t = 63 if self.opt1 else 14
            u = 58 if self.opt1 else 15
            a(f"v_lshrrev_b32 v{t}, 4, v{vL16}"); a(f"v_mul_u32_u24 v{u}, 13108, v{t}"); a(f"v_lshrrev_b32 v{u}, 16, v{u}")
            a(f"v_mul_u32_u24 v{u-1 if self.opt1 else 24}, 5, v{u}"); a(f"v_sub_u32 v{t}, v{t}, v{u-1 if self.opt1 else 24}"); a(f"v_lshlrev_b32 v{t}, 4, v{t}"); a(f"v_lshl_add_u32 v{t}, v{u}, 7, v{t}")
            a(f"s_lshl_b32 s{sTmp[4]}, s{sJ}, 5"); a(f"s_add_u32 s{sTmp[4]}, s{sTmp[4]}, s{sH}"); a(f"s_lshl_b32 s{sTmp[4]}, s{sTmp[4]}, 9")
            a(f"s_add_u32 s{sTmp[4]}, s{sTmp[4]}, s{sCol}")
            return t
        if self.opt1: tcol = coladdr()
        def iss():
            a(f"buffer_load_dwordx4 {vr(ML,4)}, v15, {W}, s{sTmp[0]} offen offset:512 sc1")
            a(f"buffer_load_dwordx4 {vr(G,4)}, v14, {W}, s{sTmp[1]} offen sc1")
        self.poll(iss, [ML, G], site='row')
        self.stamp(8)
        self.tu()
        self.burst('O0')
        WB = 24
        for i in range(8):
            off = ((i >> 1) * 8 + (i & 1) * 2) * 160 if self.opt1 else i * 640
            a(f"ds_read_b128 {vr(WB+4*i,4)}, v59 offset:{off}")
        if self.pfnew and not (self.opt1 and self.latepf): self.next_w()
        self.combine8(G, ML, 56)
        Xp = 14
        a(f"v_cvt_pk_bf16_f32 v{Xp}, v{G}, v{G}")
        D, Ab = 56, 16
        a("s_waitcnt lgkmcnt(0)")
        if self.opt1:
            self.pv_gemv_smf(Xp, 4, lambda i: vr(WB+8*i, 8), D, Ab, N0, N1, IDX)
        else:
            self.pv_gemv(Xp, 8, lambda i: vr(WB+4*i, 4), D, Ab)
        self.red_write(D)
        if self.opt1:
            if self.pfnew and self.latepf: self.next_w()
        else:
            tcol = coladdr()
        self.tu()
        a("s_waitcnt lgkmcnt(0)"); a("s_barrier")
        lf = a.newlabel("ofin")
        a(f"s_cmp_lg_u32 s{sW}, 0"); a(f"s_cbranch_scc1 {lf}")
        self.red_final_read(G)
        a("s_waitcnt lgkmcnt(0)")
        self.sum4(G); self.tag([G, G+1, G+2, G+3])
        self.exec_set(0xfffff, 0)
        a(f"buffer_store_dwordx4 {vr(G,4)}, v{tcol}, {W}, s{sTmp[4]} offen sc1")
        self.exec_all()
        a.label(lf)
        self.stamp(9)
        if not self.pfnew: self.next_w()
        if self.skipfin:
            lk = a.newlabel("keep")
            a(f"s_cmp_lg_u32 s{sL}, {(self.stop or 4) - 1}"); a(f"s_cbranch_scc1 {lk}")
            a(f"s_cmp_lg_u32 s{sH}, 0"); a("s_cbranch_scc1 L_fin2")
            a.label(lk)
        if self.vsplit and not self.woqk:
            lb = a.newlabel("nowo")
            a(f"s_bitcmp1_b32 s{sL}, 0"); a(f"s_cbranch_scc1 {lb}")
            self.load_wo(pWoB)
            a.label(lb)
        a(f"v_lshrrev_b32 v14, 7, v{vL16}"); a(f"v_lshlrev_b32 v14, 9, v14")
        a(f"v_and_b32 v15, 0x70, v{vL16}"); a(f"v_add_u32 v14, v14, v15")
        a(f"s_lshl_b32 s{sTmp[0]}, s{sJ}, 14"); a(f"s_lshl_b32 s{sTmp[1]}, s{sW}, 7"); a(f"s_add_u32 s{sTmp[0]}, s{sTmp[0]}, s{sTmp[1]}")
        a(f"s_add_u32 s{sTmp[0]}, s{sTmp[0]}, s{sCol}")
        for i in range(1, 4): a(f"s_add_u32 s{sTmp[i]}, s{sTmp[0]}, {i*4096}")
        if self.opt1: self.prep_q()
        if self.epi:
            self.srd(SRD_B, pOut, 1280)
            a(f"v_lshrrev_b32 v40, 4, v{vL16}"); a(f"v_and_b32 v41, 15, v40"); a(f"v_lshrrev_b32 v40, 4, v40")
            a(f"v_lshl_add_u32 v40, v41, 2, v40")
            a(f"s_mul_i32 s{sA}, s{sJ}, 80"); a(f"s_mul_i32 s{sB_}, s{sW}, 20"); a(f"s_add_u32 s{sA}, s{sA}, s{sB_}")
            a(f"v_add_u32 v40, s{sA}, v40"); a(f"v_lshlrev_b32 v40, 1, v40")
        def issc():
            for i in range(4):
                a(f"buffer_load_dwordx4 {vr(G+4*i,4)}, v14, {W}, s{sTmp[i]} offen sc1")
        self.poll(issc, [G, G+4, G+8, G+12], execmask=(0x1f1f1f1f, 0x1f1f1f1f), site='col')
        self.stampval(28, sSpin); self.stampval(29, sPos)
        self.stamp(10)
        self.tu()
        self.burst('Q0')
        self.sum4(G)
        for r in range(4): a(f"v_add_f32_dpp v{G+r}, v{G+r}, v{G+r} row_ror:8 {DPPALL}")
        self.treduce([G, G+1, G+2, G+3])
        a(f"v_add_f32 v{G}, v{G}, v{vX}")
        a(f"v_cndmask_b32 v{vX}, 0, v{G}, s[{sM5}:{sM5+1}]")

    def second_w(self, lb=None):
        a = self.a
        lb = lb or a.newlabel("nouk")
        a(f"s_bitcmp1_b32 s{sL}, 0"); a(f"s_cbranch_scc1 {lb}")
        self.load_wuk()
        if self.vsplit:
            lc = a.newlabel("vtj")
            a(f"s_branch {lc}")
            a.label(lb)
            for k in range(4): self.vtr_one(k)
            a.label(lc)
        else:
            a.label(lb)

    def next_w(self):
        a = self.a
        lnp = a.newlabel("nopf"); lb = a.newlabel("nouk")
        a(f"s_cmp_eq_u32 s{sL}, 3"); a(f"s_cbranch_scc1 {lnp}")
        a(f"s_add_u32 s{sL}, s{sL}, 1")
        self.load_wq()
        if not self.split2: self.second_w(lb)
        a(f"s_sub_u32 s{sL}, s{sL}, 1")
        a.label(lnp)

    def epilogue(self):
        a = self.a
        a.c("==== epilogue: the workgroups of head 0 write the output; workgroup 0 advances the epoch word ====")
        le = a.newlabel("fin")
        a(f"s_cmp_lg_u32 s{sH}, 0"); a(f"s_cbranch_scc1 {le}")
        if not self.epi:
            self.srd(SRD_B, pOut, 1280)
            a(f"v_lshrrev_b32 v40, 4, v{vL16}"); a(f"v_and_b32 v15, 15, v40"); a(f"v_lshrrev_b32 v40, 4, v40")
            a(f"v_lshl_add_u32 v40, v15, 2, v40")
            a(f"s_mul_i32 s{sTmp[0]}, s{sJ}, 80"); a(f"s_mul_i32 s{sTmp[1]}, s{sW}, 20"); a(f"s_add_u32 s{sTmp[0]}, s{sTmp[0]}, s{sTmp[1]}")
            a(f"v_add_u32 v40, s{sTmp[0]}, v40"); a(f"v_lshlrev_b32 v40, 1, v40")
        a(f"v_cvt_pk_bf16_f32 v15, v{vX}, v{vX}")
        a(f"s_mov_b64 exec, s[{sM5}:{sM5+1}]")
        a(f"buffer_store_short v15, v40, s[{SRD_B}:{SRD_B+3}], 0 offen")
        self.exec_all()
        a(f"s_cmp_lg_u32 s2, 0"); a(f"s_cbranch_scc1 {le}")
        a(f"s_cmp_lg_u32 s{sW}, 0"); a(f"s_cbranch_scc1 {le}")
        a(f"v_mov_b32 v14, 0")
        a("s_mov_b64 exec, 1")
        a(f"buffer_store_dword v{vT}, v14, {W}, 0 offen sc1")
        self.exec_all()
        a.label(le)
        a.label("L_fin2")
        l2 = a.newlabel("noerr")
        a(f"s_cmp_eq_u32 s{sErr}, 0"); a(f"s_cbranch_scc1 {l2}")
        self.srd(SRD_B, sDbg, 256)
        a(f"v_mov_b32 v14, 0"); a(f"v_mov_b32 v15, 0xdead")
        a("s_mov_b64 exec, 1")
        a(f"buffer_store_dword v15, v14, s[{SRD_B}:{SRD_B+3}], 0 offen")
        self.exec_all()
        a.label(l2)

    def build(self):
        a = self.a
        self.prologue()
        a.label("L_layer")
        self.qpart()
        a(f"s_bitcmp1_b32 s{sL}, 0"); a(f"s_cbranch_scc1 L_bmid")
        self.amiddle()
        a(f"s_branch L_opart")
        a.label("L_bmid")
        self.bmiddle()
        a.label("L_opart")
        self.opart()
        self.stamp(11)
        for L_ in range(4): self.dbgstamp(f"end{L_}", L_)
        a(f"s_add_u32 s{sL}, s{sL}, 1"); a(f"s_xor_b32 s{sCol}, s{sCol}, 0x20000")
        nl = self.stop if self.stop else 4
        a(f"s_cmp_ge_u32 s{sL}, {nl}"); a("s_cbranch_scc1 L_done")
        self.next_tag()
        a("s_branch L_layer")
        a.label("L_done")
        self.epilogue()
        if self.stamps:
            a(f"s_mov_b32 s{sL}, 3")
            self.stamp(13)
        a("s_waitcnt vmcnt(0)")
        a.label("L_end")
        a("s_endpgm")
        self.dw_sub()
        self.stream()
        a.label("L_codeend")
        return fix(a.lines)

HEADER = open("interleave_layers__compressed_kv_cla__mha_block_cached__decode.s.ref").read().split("; Override launch")[0]

DOC = """; One persistent launch, one workgroup (4 waves, 512 registers each, 160 KiB LDS) per CU; workgroup b = (head h = b & 31, slice j = b >> 5).
; beside the first A layer.  Layer A uses the absorbed form (q @ w_uk^T against c_kv, context through w_uv afterwards).
; LayerNorm is applied after the projection (q = rstd * (x @ W - mean * colsum(W))).
; (derived from an epoch word in d_ws that the launch advances); consumers re-read until every tag matches and strip it.
; Registers: v0..v13 lane constants, v14..v95 working set (v60..v75 / v80..v95 hold V blocks 14 / 15 in B layers),
;            v96..v255 V blocks 0..9, a0..a255 K.   LDS: V blocks 10..13 | c_kv tile | staging, score and reduction buffers.
"""

def make(path, **kw):
    body = "\n".join(Gen(**kw).build())
    src = f"""{HEADER}; @launch grid=(256,1,1) block=(256,1,1) lds={LDS_BYTES}
.amdgcn_target "amdgcn-amd-amdhsa--gfx950"
.text
.globl {KNAME}
.p2align 8
.type {KNAME},@function
{DOC}{KNAME}:
{body}
.section .rodata,"a"
.p2align 6
.amdhsa_kernel {KNAME}
  .amdhsa_next_free_vgpr 512
  .amdhsa_next_free_sgpr 102
  .amdhsa_accum_offset 256
  .amdhsa_group_segment_fixed_size 0
  .amdhsa_kernarg_size 112
  .amdhsa_user_sgpr_count 2
  .amdhsa_user_sgpr_kernarg_segment_ptr 1
  .amdhsa_system_sgpr_workgroup_id_x 1
  .amdhsa_float_denorm_mode_32 3
.end_amdhsa_kernel
"""
    open(path, "w").write(src)

if __name__ == "__main__":
    import argparse
    ap = argparse.ArgumentParser()
    ap.add_argument("-o", default="k.s"); ap.add_argument("--opts", default="")
    x = ap.parse_args()
    kw = {}
    for o in filter(None, x.opts.split(";")):
        k_, v_ = o.split("="); kw[k_] = eval(v_)
    make(x.o, **kw)
```

```python
import sys, struct
from hazard import fix

KNAME = "interleave_layers__compressed_kv_cla__mha_block_cached__decode_kernel"

class Asm:
    def __init__(self): self.lines = []; self.n = 0
    def __call__(self, s):
        for l in s.split("\n"):
            l = l.strip()
            if l: self.lines.append(l)
    def label(self, name): self.lines.append(name + ":")
    def c(self, text):
        for l in text.strip().split("\n"): self.lines.append("; " + l.strip())
    def newlabel(self, base="L"):
        self.n += 1; return f"{base}_{self.n}"

def vr(b, n=1): return f"v{b}" if n == 1 else f"v[{b}:{b+n-1}]"
def ar(b, n=1): return f"a{b}" if n == 1 else f"a[{b}:{b+n-1}]"
DPPALL = "row_mask:0xf bank_mask:0xf"
def f32hex(x): return "0x%08x" % struct.unpack("<I", struct.pack("<f", x))[0]

O_XCC  = 0x001000
O_STAMP = 0x080000
O_QP   = 0x100000
O_ROW  = 0x180000
O_COL  = 0x1C0000
O_QABS = 0x200000
O_ML1  = 0x210000
O_C2   = 0x240000
O_ML2  = 0x2C0000
O_C1   = 0x300000

L_VL  = 0
L_CKV = 65536
L_R0  = 131072
WOSTR = 5184
L_ST  = 151808
L_RED = 156160
RSTR  = 1056
L_U   = 160384
LDS_BYTES = 163840

sH, sJ, sW, sL, sAct = 3, 4, 5, 6, 7
SRD_WS, SRD_K, SRD_V, SRD_A, SRD_B = 8, 12, 16, 20, 24
sSPC, sRET = 28, 30
sT = [32, 33, 34, 35]
sSel = [36, 37, 38, 39]
pWqA, pWqB, pWuk, pWuv, pWoA, pWoB, pCkv, pOut, pX = 40, 42, 44, 46, 48, 50, 52, 54, 56
sCol = 58
sGA, sS = 59, 60
sSO = 61
sSpin = 62
sPos = 63
sFF = 64
sTmp = list(range(65, 70))
sMask = [76, 78, 80, 82]
sM5 = 84
sDbg = 86
sErr = 88
sLocal = 89
sA, sB_ = 90, 91
sTs = 92
sXG, sI, sSc, sXcc = 98, 99, 100, 101
sTf = 97
sDW, sRET2, sYoung, sVm, sVm2, sDl = 70, 72, 74, 75, 94, 95
sBud = 57
sC1 = 56
sCap = 0

vL16, vM, vT, vX, vWoff, vKoff, vVoff, vRedW = 0, [1, 2, 3, 4], 5, 6, 7, 8, 9, 10
vT0 = 11
vCk = 11
vWo = 13
WQ, WUK, WUV, VTR, VRES = 76, 60, 80, 64, 96
AT = 44

SC = (128 ** -0.5) * 1.4426950408889634
SPIN_MAX = 1 << 16
W = f"s[{SRD_WS}:{SRD_WS+3}]"

class Gen:
    def __init__(self, kblk=8, stream_mode="co", stop_after=None, local=True, stamps="", pol="nt", wpol="", cpol="", codepf=True,
                 qkcalls=(4, 10), sent=True, nopf=False, once=True, xcalls=(), dlim=6, keep=6, addn=True, pretouch=True, mlsent=True, slp=0, sent1=False, pfnew=True, mltail=True, dsite=None, pre=None, rsl=None, dq=None, dbg=None, bud=None, skipfin=True, vsplit=True, woqk=True, split2=True, c1touch=True, c1sc1=False, c1touch2=None, smf=True, cap=None, pre1=None, burst=None, c1bf=True, opt1=True, latepf=False, tus=0, tusl=0, ack=None, ack1=None, ackL=None, vtrpol=None, opt2=True, wolate=False, epi=False, wuvpol=None, wopol=None):
        self.wuvpol = wuvpol; self.wopol = wopol
        self.wolate = wolate; self.epi = epi
        self.opt2 = opt2
        self.ackL = ackL or {}; self.vtrpol = vtrpol
        self.ack1 = ack1 or ()
        self.ack = ack or ()
        self.tus = tus; self.tusl = tusl
        self.latepf = latepf
        self.opt1 = opt1
        self.c1bf = c1bf
        self.burstn = burst or {}
        self.pre1 = pre1
        self.cap = cap
        self.smf = smf
        self.c1touch = c1touch; self.c1sc1 = c1sc1; self.c1touch2 = c1touch2
        self.split2 = split2
        self.woqk = woqk
        self.skipfin = skipfin; self.vsplit = vsplit
        self.bud = bud
        self.dbg = dbg
        self.pre = pre or {}; self.rsl = rsl or {}; self.dq = dq
        self.pfnew = pfnew; self.mltail = mltail; self.dsite = dsite or {}
        self.slp = slp; self.sent1 = sent1
        self.addn = addn; self.pretouch = pretouch; self.mlsent = mlsent
        self.once = once; self.xcalls = xcalls; self.dlim = dlim; self.keep = keep
        self.nopf = nopf
        self.a = Asm(); self.kblk = kblk; self.mode = stream_mode; self.stop = stop_after
        self.local = local; self.stamps = stamps; self.pol = pol; self.wpol = wpol; self.cpol = cpol; self.codepf = codepf
        self.qkcalls = qkcalls; self.sent = sent

    def capture(self, fn):
        saved = self.a.lines; self.a.lines = []
        fn()
        out = self.a.lines; self.a.lines = saved
        return out
    def emit(self, lines):
        self.a.lines.extend(lines)
    def srd(self, s, lo, nbytes):
        a = self.a
        a(f"s_mov_b32 s{s}, s{lo}"); a(f"s_mov_b32 s{s+1}, s{lo+1}")
        a(f"s_mov_b32 s{s+2}, {nbytes:#x}"); a(f"s_mov_b32 s{s+3}, 0x20000")
    def exec_all(self): self.a("s_mov_b64 exec, -1")
    def exec_set(self, lo, hi):
        self.a(f"s_mov_b32 exec_lo, {lo:#x}"); self.a(f"s_mov_b32 exec_hi, {hi:#x}")
    def tag(self, regs):
        for i, r in enumerate(regs):
            self.a(f"v_perm_b32 v{r}, v{r}, v{vT}, s{sSel[i%4]}")
    def stamp(self, idx):
        if not self.stamps: return
        if self.stamps == "light" and idx not in (12, 13, 5): return
        a = self.a
        lab = a.newlabel("st")
        a(f"s_cmp_lg_u32 s{sW}, 0"); a(f"s_cbranch_scc1 {lab}")
        a(f"s_memrealtime s[{sTs}:{sTs+1}]")
        a("s_waitcnt lgkmcnt(0)")
        a(f"s_lshl_b32 s96, s2, 2"); a(f"s_add_u32 s96, s96, s{sL}"); a(f"s_lshl_b32 s96, s96, 7")
        a(f"s_add_u32 s96, s96, {O_STAMP + idx*4}")
        a(f"v_mov_b32 v{vT0}, s{sTs}")
        a(f"s_mov_b64 s[{sTs}:{sTs+1}], exec"); a("s_mov_b64 exec, 1")
        a(f"buffer_store_dword v{vT0}, off, {W}, s96")
        a(f"s_mov_b64 exec, s[{sTs}:{sTs+1}]")
        a.label(lab)
    def dbgstamp(self, k, cond_layer=None):
        if not self.dbg or k not in self.dbg: return
        a = self.a
        k = self.dbg.index(k)
        lab = a.newlabel("db")
        a(f"s_cmp_lg_u32 s{sW}, 0"); a(f"s_cbranch_scc1 {lab}")
        a(f"s_cmp_ge_u32 s2, 8"); a(f"s_cbranch_scc1 {lab}")
        if cond_layer is not None:
            a(f"s_cmp_lg_u32 s{sL}, {cond_layer}"); a(f"s_cbranch_scc1 {lab}")
        a(f"s_memrealtime s[{sTs}:{sTs+1}]")
        a("s_waitcnt lgkmcnt(0)")
        a(f"s_mov_b32 s{SRD_A}, s{sDbg}"); a(f"s_mov_b32 s{SRD_A+1}, s{sDbg+1}"); a(f"s_mov_b32 s{SRD_A+2}, 256"); a(f"s_mov_b32 s{SRD_A+3}, 0x20000")
        a(f"s_lshl_b32 s96, s2, 3"); a(f"s_add_u32 s96, s96, {4*k}")
        a(f"v_mov_b32 v{vT0}, s{sTs}")
        a(f"s_mov_b64 s[{sTs}:{sTs+1}], exec"); a("s_mov_b64 exec, 1")
        a(f"buffer_store_dword v{vT0}, off, s[{SRD_A}:{SRD_A+3}], s96")
        a(f"s_mov_b64 exec, s[{sTs}:{sTs+1}]")
        a.label(lab)
    def stampval(self, idx, sreg):
        if self.stamps != "full": return
        a = self.a
        lab = a.newlabel("sv")
        a(f"s_cmp_lg_u32 s{sW}, 0"); a(f"s_cbranch_scc1 {lab}")
        a(f"s_lshl_b32 s96, s2, 2"); a(f"s_add_u32 s96, s96, s{sL}"); a(f"s_lshl_b32 s96, s96, 7")
        a(f"s_add_u32 s96, s96, {O_STAMP + idx*4}")
        a(f"v_mov_b32 v{vT0}, s{sreg}")
        a(f"s_mov_b64 s[{sTs}:{sTs+1}], exec"); a("s_mov_b64 exec, 1")
        a(f"buffer_store_dword v{vT0}, off, {W}, s96")
        a(f"s_mov_b64 exec, s[{sTs}:{sTs+1}]")
        a.label(lab)
    def stream_call(self):
        self.a(f"s_swappc_b64 s[{sRET}:{sRET+1}], s[{sSPC}:{sSPC+1}]")
    def maybe_stream(self):
        a = self.a
        lab = a.newlabel("ns")
        a(f"s_cmp_eq_u32 s{sAct}, 0"); a(f"s_cbranch_scc1 {lab}")
        self.stream_call()
        a.label(lab)
    def read_vm(self):
        a = self.a
        a(f"s_getreg_b32 s{sVm}, hwreg(HW_REG_IB_STS)")
        a(f"s_bfe_u32 s{sVm2}, s{sVm}, 0x20016"); a(f"s_and_b32 s{sVm}, s{sVm}, 15")
        a(f"s_lshl4_add_u32 s{sVm}, s{sVm2}, s{sVm}")
    def dw_sub(self):
        a = self.a
        a.c("==== dynamic wait: returns once all but the s74 youngest vector-memory operations are complete; keeps the K/V stream going meanwhile ====")
        a.label("L_dw")
        self.read_vm()
        a(f"s_cmp_le_u32 s{sVm}, s{sYoung}"); a("s_cbranch_scc1 L_dwret")
        a(f"s_cmp_ge_u32 s{sVm}, s{sDl}"); a("s_cbranch_scc1 L_dw")
        a(f"s_cmp_eq_u32 s{sAct}, 0"); a("s_cbranch_scc1 L_dw")
        if self.cap is not None:
            a(f"s_cmp_ge_u32 s{sPos}, s{sCap}"); a("s_cbranch_scc1 L_dw")
        if self.bud is not None:
            a(f"s_cmp_le_i32 s{sBud}, 0"); a("s_cbranch_scc1 L_dw")
            a(f"s_sub_u32 s{sBud}, s{sBud}, {self.kblk}")
        self.stream_call()
        a(f"s_add_u32 s{sYoung}, s{sYoung}, {self.kblk}")
        a("s_branch L_dw")
        a.label("L_dwret")
        a(f"s_setpc_b64 s[{sRET2}:{sRET2+1}]")
    def dwait(self, young, n=0, site=None):
        dl = self.dsite.get(site, self.dlim)
        a = self.a
        if self.mode != "co":
            a(f"s_waitcnt vmcnt({young})"); return
        ns = a.newlabel("dwn"); jn = a.newlabel("dwj")
        a(f"s_cmp_eq_u32 s{sAct}, 0"); a(f"s_cbranch_scc1 {ns}")
        a(f"s_mov_b32 s{sYoung}, {young}"); a(f"s_mov_b32 s{sDl}, {dl + n if dl else 0}")
        if self.cap is not None: a(f"s_mov_b32 s{sCap}, {self.cap.get(site, 999)}")
        a(f"s_swappc_b64 s[{sRET2}:{sRET2+1}], s[{sDW}:{sDW+1}]")
        a(f"s_branch {jn}")
        a.label(ns)
        a(f"s_waitcnt vmcnt({young})")
        a.label(jn)
    def tu(self):
        if self.tus: self.topup(self.tus, site='tu')
    def burst(self, site):
        n = self.burstn.get(site, 0)
        if self.mode != "co" or not n: return
        a = self.a
        lab = a.newlabel("bu")
        for i in range(n // self.kblk):
            a(f"s_cmp_eq_u32 s{sAct}, 0"); a(f"s_cbranch_scc1 {lab}")
            self.stream_call()
        a.label(lab)
    def topup(self, depth=None, site=None):
        if self.mode != "co": return
        depth = self.dlim if depth is None else depth
        capv = self.cap.get(site) if self.cap else None
        a = self.a
        lab = a.newlabel("tu")
        a(f"s_cmp_eq_u32 s{sAct}, 0"); a(f"s_cbranch_scc1 {lab}")
        self.read_vm()
        a(f"s_cmp_ge_u32 s{sVm}, {depth}"); a(f"s_cbranch_scc1 {lab}")
        if capv: a(f"s_cmp_ge_u32 s{sPos}, {capv}"); a(f"s_cbranch_scc1 {lab}")
        self.stream_call()
        a.label(lab)
    def drain(self, keep):
        a = self.a
        l0 = a.newlabel("drain"); l1 = a.newlabel("drained")
        a.label(l0)
        a(f"s_cmp_eq_u32 s{sAct}, 0"); a(f"s_cbranch_scc1 {l1}")
        self.stream_call()
        a(f"s_waitcnt vmcnt({keep})")
        a(f"s_branch {l0}")
        a.label(l1)

    def predelay(self, site):
        a = self.a
        if site in self.ack:
            if site in ('col', 'row', 'q0', 'q1', 'q2'):
                self.dwait(0, 0, site); a("s_barrier")
            else:
                self.dwait(0, 0, site)
            return
        p0 = self.pre.get(site, 0)
        if site in self.ack1:
            def ackw():
                self.dwait(0, 0, site)
                if site in ('col', 'row', 'q0', 'q1', 'q2'): a("s_barrier")
            if site in ('q0', 'q1'):
                ackw(); return
            if site == 'q2':
                if p0: a(f"s_sleep {p0}")
                return
            l0 = a.newlabel("pd"); l1 = a.newlabel("pd")
            a(f"s_cmp_ge_u32 s{sL}, {self.ackL.get(site, 2)}"); a(f"s_cbranch_scc1 {l0}")
            ackw()
            a(f"s_branch {l1}")
            a.label(l0)
            if site == 'col' and 'colf' in self.pre:
                l2 = a.newlabel("pd")
                a(f"s_cmp_lg_u32 s{sL}, {(self.stop or 4) - 1}"); a(f"s_cbranch_scc1 {l2}")
                if self.pre['colf']: a(f"s_sleep {self.pre['colf']}")
                a(f"s_branch {l1}")
                a.label(l2)
            if p0: a(f"s_sleep {p0}")
            a.label(l1)
            return
        p1 = self.pre1.get(site, p0) if self.pre1 is not None else p0
        if p0 == p1:
            if p0: a(f"s_sleep {p0}")
            return
        l0 = a.newlabel("pd"); l1 = a.newlabel("pd")
        a(f"s_cmp_ge_u32 s{sL}, 2"); a(f"s_cbranch_scc1 {l0}")
        if p1 and self.tusl:
            n = max(1, p1 // self.tusl)
            for _ in range(n):
                self.tu(); a(f"s_sleep {self.tusl}")
        elif p1: a(f"s_sleep {p1}")
        a(f"s_branch {l1}")
        a.label(l0)
        if p0: a(f"s_sleep {p0}")
        a.label(l1)

    def poll(self, issue, regs, execmask=None, stream=True, site=None):
        a = self.a
        lp = a.newlabel("poll"); ns = a.newlabel("pns"); jn = a.newlabel("pj"); dn = a.newlabel("pdone")
        a(f"s_mov_b32 s{sSpin}, 0")
        if self.bud is not None: a(f"s_mov_b32 s{sBud}, {self.bud.get(site, self.bud.get('*', 8))}")
        self.predelay(site)
        if execmask: self.exec_set(*execmask)
        a.label(lp)
        issue()
        if execmask and self.mode == "co": self.exec_all()
        self.dwait(0, len(regs) if self.addn else 0, site)
        if execmask and self.mode == "co": self.exec_set(*execmask)
        a.label(jn)
        acc, acc2 = vT0, vT0 + 1
        dw = [g + i for g in regs for i in range(4)]
        for k, r in enumerate(dw): a(f"v_xor_b32 v{r}, s{sT[k % 4]}, v{r}")
        a(f"v_or3_b32 v{acc}, v{dw[0]}, v{dw[1]}, v{dw[2]}")
        if len(dw) == 4:
            a(f"v_or_b32 v{acc}, v{acc}, v{dw[3]}")
        else:
            a(f"v_or3_b32 v{acc2}, v{dw[3]}, v{dw[4]}, v{dw[5]}")
            k = 6; tog = 0
            while k < len(dw):
                tgt = acc if tog == 0 else acc2
                a(f"v_or3_b32 v{tgt}, v{tgt}, v{dw[k]}, v{dw[k+1]}"); k += 2
                tog ^= 1
            a(f"v_or_b32 v{acc}, v{acc}, v{acc2}")
        a(f"v_and_b32 v{acc}, s{sFF}, v{acc}")
        a(f"v_cmp_ne_u32 vcc, 0, v{acc}")
        a(f"s_cbranch_vccz {dn}")
        if self.rsl.get(site): a(f"s_sleep {self.rsl[site]}")
        if self.slp:
            lz = a.newlabel("nsl")
            a(f"s_cmp_eq_u32 s{sAct}, 0"); a(f"s_cbranch_scc1 {lz}")
            a(f"s_sleep {self.slp}")
            a.label(lz)
        a(f"s_add_u32 s{sSpin}, s{sSpin}, 1")
        a(f"s_cmp_lt_u32 s{sSpin}, {SPIN_MAX}")
        a(f"s_cbranch_scc1 {lp}")
        a(f"s_mov_b32 s{sErr}, 1")
        a.label(dn)
        if execmask: self.exec_all()

    def dpp_steps(self, regs, op, steps):
        for d in steps:
            for r in regs:
                if d == "b15": self.a(f"{op}_dpp v{r}, v{r}, v{r} row_bcast:15 row_mask:0xa bank_mask:0xf")
                elif d == "b31": self.a(f"{op}_dpp v{r}, v{r}, v{r} row_bcast:31 row_mask:0xc bank_mask:0xf")
                else: self.a(f"{op}_dpp v{r}, v{r}, v{r} {d} {DPPALL}")
    X1, X2, HM, RM = "quad_perm:[1,0,3,2]", "quad_perm:[2,3,0,1]", "row_half_mirror", "row_mirror"
    def reduce63(self, regs, op):
        self.dpp_steps(regs, op, [self.X1, self.X2, self.HM, self.RM, "b15", "b31"])

    def treduce(self, r):
        a = self.a
        a(f"v_permlane32_swap_b32 v{r[0]}, v{r[2]}")
        a(f"v_permlane32_swap_b32 v{r[1]}, v{r[3]}")
        a(f"v_add_f32 v{r[0]}, v{r[0]}, v{r[2]}")
        a(f"v_add_f32 v{r[1]}, v{r[1]}, v{r[3]}")
        a(f"v_permlane16_swap_b32 v{r[0]}, v{r[1]}")
        a(f"v_add_f32 v{r[0]}, v{r[0]}, v{r[1]}")

    def pv_gemv(self, Xp, nload, bop, D, Abuf):
        a = self.a
        def build(i):
            A = Abuf + 4 * (i % 2)
            for r in range(4):
                a(f"v_and_b32_dpp v{A+r}, v{Xp}, v{vM[r]} row_newbcast:{i} {DPPALL}")
        build(0)
        if nload > 1: build(1)
        for i in range(nload):
            A = Abuf + 4 * (i % 2)
            c = "0" if i == 0 else vr(D, 4)
            a(f"v_mfma_f32_16x16x32_bf16 {vr(D,4)}, {vr(A,4)}, {bop(i)}, {c}")
            if i + 2 < nload: build(i + 2)

    def smf_consts(self, N0, N1, IDX, t):
        a = self.a
        a(f"v_bfe_u32 v{t}, v{vL16}, 4, 4")
        a(f"v_and_b32 v{IDX}, 3, v{t}"); a(f"v_mul_u32_u24 v{IDX}, 0x1111, v{IDX}")
        a(f"v_lshrrev_b32 v{t}, 2, v{t}")
        a(f"v_cmp_eq_u32 vcc, 0, v{t}"); a(f"v_mov_b32 v{N1}, 0xffff"); a(f"v_cndmask_b32 v{N0}, 0, v{N1}, vcc")
        a(f"v_cmp_eq_u32 vcc, 1, v{t}"); a(f"v_cndmask_b32 v{N1}, 0, v{N1}, vcc")
    def pv_gemv_smf(self, Xp, npair, bop, D, Abuf, N0, N1, IDX):
        a = self.a
        def build(i):
            A = Abuf + 4 * (i % 2)
            a(f"v_and_b32_dpp v{A}, v{Xp}, v{N0} row_newbcast:{2*i} {DPPALL}")
            a(f"v_and_b32_dpp v{A+1}, v{Xp}, v{N1} row_newbcast:{2*i} {DPPALL}")
            a(f"v_and_b32_dpp v{A+2}, v{Xp}, v{N0} row_newbcast:{2*i+1} {DPPALL}")
            a(f"v_and_b32_dpp v{A+3}, v{Xp}, v{N1} row_newbcast:{2*i+1} {DPPALL}")
        for r in range(4): a(f"v_mov_b32 v{D+r}, 0")
        build(0)
        if npair > 1: build(1)
        for i in range(npair):
            A = Abuf + 4 * (i % 2)
            a(f"v_smfmac_f32_16x16x64_bf16 {vr(D,4)}, {vr(A,4)}, {bop(i)}, v{IDX}")
            if i + 2 < npair: build(i + 2)

    def red_write(self, D, off=0):
        a = self.a
        a("s_mov_b32 exec_hi, 1")
        a(f"ds_write_b128 v{vRedW}, {vr(D,4)} offset:{off}")
        a("s_mov_b32 exec_hi, -1")
    def red_final_read(self, G, off=0):
        a = self.a
        a(f"v_add_u32 v{vT0}, {L_RED}, v{vL16}")
        for w in range(4):
            a(f"ds_read_b128 {vr(G+4*w,4)}, v{vT0} offset:{w*RSTR+off}")
    def sum4(self, G):
        a = self.a
        for r in range(4):
            a(f"v_add_f32 v{G+r}, v{G+r}, v{G+4+r}")
            a(f"v_add_f32 v{G+8+r}, v{G+8+r}, v{G+12+r}")
        for r in range(4):
            a(f"v_add_f32 v{G+r}, v{G+r}, v{G+8+r}")

    def local_stores(self, items):
        a = self.a
        def emit(flag):
            for (data, vaddr, soff, pre) in items:
                if pre: pre()
                a(f"buffer_store_dwordx4 {vr(data,4)}, v{vaddr}, {W}, s{soff} offen {flag}")
        if self.local:
            l0 = a.newlabel("ls"); l1 = a.newlabel("ls")
            a(f"s_cmp_eq_u32 s{sLocal}, 0"); a(f"s_cbranch_scc1 {l0}")
            emit("")
            a(f"s_branch {l1}")
            a.label(l0)
            emit("sc1")
            a.label(l1)
        else:
            emit("sc1")

    def next_tag(self):
        a = self.a
        a(f"s_mul_i32 s{sTf}, s{sTf}, 0x9E3779B1"); a(f"s_add_u32 s{sTf}, s{sTf}, 0x7F4A7C15")
        a(f"v_mov_b32 v{vT}, s{sTf}")
        a(f"s_and_b32 s{sT[0]}, s{sTf}, 0xff"); a(f"s_bfe_u32 s{sT[1]}, s{sTf}, 0x80008")
        a(f"s_bfe_u32 s{sT[2]}, s{sTf}, 0x80010"); a(f"s_lshr_b32 s{sT[3]}, s{sTf}, 24")

    def pf_guard(self, fn, lmin=2):
        if not self.nopf: return fn()
        a = self.a; l = a.newlabel("npf")
        a(f"s_cmp_ge_u32 s{sL}, {lmin}"); a(f"s_cbranch_scc1 {l}")
        fn()
        a.label(l)
    def load_wq(self):
        self.pf_guard(self.load_wq_)
    def load_wq_(self):
        a = self.a
        l0 = a.newlabel("wq"); l1 = a.newlabel("wq")
        a(f"s_bitcmp1_b32 s{sL}, 0"); a(f"s_cbranch_scc1 {l0}")
        a(f"s_mov_b32 s{SRD_A}, s{pWqA}"); a(f"s_mov_b32 s{SRD_A+1}, s{pWqA+1}"); a(f"s_branch {l1}")
        a.label(l0)
        a(f"s_mov_b32 s{SRD_A}, s{pWqB}"); a(f"s_mov_b32 s{SRD_A+1}, s{pWqB+1}")
        a.label(l1)
        a(f"s_mov_b32 s{SRD_A+2}, {19*8192+256}"); a(f"s_mov_b32 s{SRD_A+3}, 0x20000")
        for i in range(5):
            a(f"s_mov_b32 s{sTmp[0]}, {i*32768}")
            a(f"buffer_load_dwordx4 {vr(WQ+4*i,4)}, v{vWoff}, s[{SRD_A}:{SRD_A+3}], s{sTmp[0]} offen {self.wpol}")
    def load_wuk(self):
        self.pf_guard(self.load_wuk_)
    def load_wuk_(self):
        a = self.a
        self.srd(SRD_A, pWuk, 15*8192+256)
        t = vT0
        a(f"v_lshrrev_b32 v{t}, 8, v{vKoff}"); a(f"v_lshlrev_b32 v{t}, 13, v{t}")
        a(f"v_and_b32 v{t+1}, s{sFF}, v{vKoff}"); a(f"v_or_b32 v{t}, v{t}, v{t+1}")
        for i in range(4):
            a(f"s_mov_b32 s{sTmp[0]}, {i*32768}")
            a(f"buffer_load_dwordx4 {vr(WUK+4*i,4)}, v{t}, s[{SRD_A}:{SRD_A+3}], s{sTmp[0]} offen {self.wpol}")
    def load_wuv(self):
        self.pf_guard(self.load_wuv_)
    def load_wuv_(self):
        a = self.a
        self.srd(SRD_A, pWuv, 15*8192+256)
        for i in range(4):
            a(f"s_mov_b32 s{sTmp[0]}, {i*32768}")
            a(f"buffer_load_dwordx4 {vr(WUV+4*i,4)}, v{vWoff}, s[{SRD_A}:{SRD_A+3}], s{sTmp[0]} offen {self.wpol if self.wuvpol is None else self.wuvpol}")
    def wo_setup(self, p):
        a = self.a
        self.srd(SRD_A, p, 31*1280+160)
        a(f"s_mul_i32 s{sTmp[1]}, s{sW}, {WOSTR}"); a(f"s_add_u32 s{sTmp[1]}, s{sTmp[1]}, {L_R0}")
    def wo_one(self, i):
        a = self.a
        r0 = 6 * i if i < 5 else 26
        a(f"s_add_u32 m0, s{sTmp[1]}, {r0*160}")
        a(f"s_mov_b32 s{sTmp[0]}, {r0*1280}")
        a(f"buffer_load_dwordx4 v{vWo}, s[{SRD_A}:{SRD_A+3}], s{sTmp[0]} offen {self.wpol if self.wopol is None else self.wopol} lds")
    def load_wo(self, p):
        def f():
            self.wo_setup(p)
            for i in range(6): self.wo_one(i)
        self.pf_guard(f)
    def ckv_one(self, kk):
        a = self.a
        f = (kk & 8) | ((kk & 3) << 1) | ((kk >> 2) & 1)
        a(f"v_xor_b32 v{vCk}, {f*16}, v{vL16}")
        a(f"s_lshl_b32 s{sSO}, s{sW}, 14"); a(f"s_add_u32 m0, s{sSO}, {L_CKV + kk*1024}")
        a(f"s_mov_b32 s{sSO}, {kk*1024}")
        a(f"buffer_load_dwordx4 v{vCk}, s[{SRD_B}:{SRD_B+3}], s{sSO} offen {self.cpol} lds")
    def voff(self, u):
        return (u & 1) * 2048 + (u >> 1) * 512 if self.smf else u * 256
    def vtr_reg(self, b, u):
        if self.vsplit: return (60 if b == 14 else 80) + 4 * u
        return VTR + (b - 14) * 16 + 4 * u
    def vtr_one(self, k):
        a = self.a
        b, u = 14 + (k >> 2), k & 3
        if u == 0: a(f"s_mov_b32 s{sTmp[2]}, {b*4096}")
        a(f"buffer_load_dwordx4 {vr(self.vtr_reg(b, u),4)}, v{vVoff}, s[{SRD_V}:{SRD_V+3}], s{sTmp[2]} offen offset:{self.voff(u)} {self.pol if self.vtrpol is None else self.vtrpol}")

    def prologue(self):
        a = self.a
        a.c("==== prologue: workgroups past the 256 that carry work leave at once ====")
        a("s_cmp_ge_u32 s2, 256"); a("s_cbranch_scc1 L_end")
        a("s_load_dwordx4 s[64:67], s[0:1], 0")
        a("s_load_dwordx4 s[68:71], s[0:1], 16")
        a("s_load_dwordx4 s[72:75], s[0:1], 32")
        a("s_load_dwordx4 s[76:79], s[0:1], 56")
        a("s_load_dwordx4 s[80:83], s[0:1], 72")
        a("s_load_dwordx4 s[84:87], s[0:1], 88")
        a("s_load_dwordx2 s[8:9], s[0:1], 104")
        a(f"v_lshrrev_b32 v20, 6, v0")
        a(f"v_and_b32 v21, 63, v0")
        a(f"v_readfirstlane_b32 s{sW}, v20")
        a(f"s_and_b32 s{sH}, s2, 31"); a(f"s_lshr_b32 s{sJ}, s2, 5")
        a(f"s_and_b32 s{sXG}, s2, 7"); a(f"s_lshr_b32 s{sI}, s2, 3")
        a(f"s_and_b32 s{sGA}, s{sI}, 1")
        a(f"s_lshr_b32 s{sS}, s{sI}, 1"); a(f"s_lshl_b32 s92, s{sXG}, 4"); a(f"s_add_u32 s{sS}, s{sS}, s92")
        a(f"v_lshlrev_b32 v{vL16}, 4, v21")
        if self.codepf: a.c("wave 3 pulls this kernel's code into the L2 (plain data loads) so that first-time instruction fetches do not go to HBM")
        if self.codepf:
            lc = a.newlabel("cpf")
            a(f"s_cmp_lg_u32 s{sW}, 3"); a(f"s_cbranch_scc1 {lc}")
            a("s_getpc_b64 s[20:21]")
            a.label("L_pcx")
            a("s_mov_b32 s22, L_codeend-L_pcx"); a("s_mov_b32 s23, 0x20000")
            a("v_lshlrev_b32 v22, 6, v21")
            self.ncode = 7
            for i in range(self.ncode):
                a(f"s_mov_b32 s92, {i*4096}")
                a(f"buffer_load_dword v23, v22, s[20:23], s92 offen")
            a.label(lc)
        a("v_and_b32 v22, 15, v21")
        a("v_lshrrev_b32 v23, 4, v21") if not self.codepf else a("v_lshrrev_b32 v19, 4, v21")
        g = 23 if not self.codepf else 19
        a(f"v_lshlrev_b32 v24, 4, v22")
        a(f"v_lshl_add_u32 v{vWoff}, v{g}, 13, v24")
        if self.smf:
            a(f"v_lshrrev_b32 v25, 1, v{g}"); a(f"v_and_b32 v26, 1, v{g}"); a(f"v_lshl_add_u32 v25, v25, 2, v26")
            a(f"v_lshl_add_u32 v{vVoff}, v25, 8, v24")
        else:
            a(f"v_lshl_add_u32 v{vVoff}, v{g}, 10, v24")
        a(f"v_and_b32 v25, 3, v22"); a(f"v_lshl_add_u32 v25, v{g}, 2, v25"); a("v_lshlrev_b32 v25, 4, v25")
        a("v_lshrrev_b32 v26, 2, v22"); a(f"v_lshl_add_u32 v{vKoff}, v26, 8, v25")
        a("v_and_b32 v25, 1, v22"); a("v_cmp_eq_u32 vcc, 1, v25")
        a("v_mov_b32 v26, 0xffff"); a("v_mov_b32 v27, 0xffff0000"); a("v_cndmask_b32 v26, v26, v27, vcc")
        a("v_lshrrev_b32 v25, 1, v22")
        for r in range(4):
            a(f"v_cmp_eq_u32 vcc, {r}, v25"); a(f"v_cndmask_b32 v{vM[r]}, 0, v26, vcc")
        a(f"v_lshl_add_u32 v25, v22, 1, v{g}"); a("v_lshlrev_b32 v25, 4, v25")
        a("v_cmp_gt_u32 vcc, 32, v21"); a("v_mov_b32 v26, 512"); a("v_cndmask_b32 v25, v26, v25, vcc")
        a(f"s_mul_i32 s92, s{sW}, {RSTR}"); a(f"s_add_u32 s92, s92, {L_RED}"); a(f"v_add_u32 v{vRedW}, s92, v25")
        a(f"v_mul_u32_u24 v25, 6554, v21"); a(f"v_lshrrev_b32 v25, 16, v25")
        a(f"v_mul_u32_u24 v26, 10, v25"); a(f"v_sub_u32 v26, v21, v26")
        a(f"v_mul_u32_u24 v25, 1280, v25"); a(f"v_lshl_add_u32 v{vWo}, v26, 4, v25")
        a("s_waitcnt lgkmcnt(0)")
        a(f"s_mov_b32 s{SRD_WS+2}, 0x10000000"); a(f"s_mov_b32 s{SRD_WS+3}, 0x20000")
        if self.stamps:
            a(f"s_mov_b32 s{sL}, 0")
            self.stamp(12)
        self.dbgstamp("entry")
        a.c("epoch word of the workspace (only used to derive this launch's hand-off tags) and the residual slice x[80j + 20w + 4n + g]")
        a("v_mov_b32 v28, 0")
        a(f"buffer_load_dword v{vT}, v28, {W}, 0 offen sc1")
        a(f"s_mov_b32 s{pX}, s64"); a(f"s_mov_b32 s{pX+1}, s65")
        self.srd(SRD_B, pX, 1280)
        a(f"s_mul_i32 s92, s{sJ}, 80"); a(f"s_mul_i32 s93, s{sW}, 20"); a("s_add_u32 s92, s92, s93")
        a(f"v_lshl_add_u32 v25, v22, 2, v{g}"); a("v_add_u32 v25, s92, v25"); a("v_lshlrev_b32 v29, 1, v25")
        a(f"s_mov_b32 s94, 0x001f001f"); a(f"s_mov_b32 s95, 0x001f001f")
        a(f"v_mov_b32 v{vX}, 0")
        a("s_mov_b64 exec, s[94:95]")
        a(f"buffer_load_ushort v{vX}, v29, s[{SRD_B}:{SRD_B+3}], 0 offen")
        self.exec_all()
        def addp(dst, src, terms):
            a(f"s_mov_b32 s92, 0")
            for (sreg, c) in terms:
                a(f"s_mul_i32 s93, s{sreg}, {c}"); a("s_add_u32 s92, s92, s93")
            a(f"s_add_u32 s{dst}, s{src}, s92"); a(f"s_addc_u32 s{dst+1}, s{src+1}, 0")
        addp(pWqA, 68, [(sJ, 80*8192), (sW, 20*8192), (sH, 256)])
        a(f"s_mov_b32 s{sL}, 0")
        self.load_wq()
        addp(pWuk, 70, [(sJ, 64*8192), (sW, 16*8192), (sH, 256)])
        a(f"s_mov_b32 s{sFF}, 0xff")
        self.load_wuk()
        addp(pCkv, 66, [(sS, 65536), (sW, 16384)])
        addp(pWqB, 80, [(sJ, 80*8192), (sW, 20*8192), (sH, 256)])
        addp(pWuv, 72, [(sJ, 64*8192), (sW, 16*8192), (sH, 256)])
        addp(pWoA, 74, [(sH, 163840), (sW, 32*1280), (sJ, 160)])
        addp(pWoB, 82, [(sH, 163840), (sW, 32*1280), (sJ, 160)])
        addp(SRD_K, 76, [(sH, 2097152), (sJ, 262144), (sW, 65536)])
        addp(SRD_V, 78, [(sH, 2097152), (sJ, 262144), (sW, 65536)])
        a(f"s_mov_b32 s{SRD_K+2}, 65536"); a(f"s_mov_b32 s{SRD_K+3}, 0x20000")
        a(f"s_mov_b32 s{SRD_V+2}, 65536"); a(f"s_mov_b32 s{SRD_V+3}, 0x20000")
        a(f"s_mov_b32 s{pOut}, s84"); a(f"s_mov_b32 s{pOut+1}, s85")
        self.srd(SRD_B, pCkv, 16384)
        if self.pretouch:
            a(f"s_lshl_b32 s92, s2, 13"); a(f"s_lshl_b32 s93, s{sW}, 11"); a("s_add_u32 s92, s92, s93"); a(f"s_add_u32 s92, s92, {O_QP}")
            a(f"buffer_load_dwordx4 v[48:51], v{vL16}, {W}, s92 offen")
            a(f"buffer_load_dwordx4 v[48:51], v{vL16}, {W}, s92 offen offset:1024")
        a(f"s_mov_b32 s{sErr}, 0"); a(f"s_mov_b32 s{sLocal}, 0")
        a(f"s_mov_b32 s{sM5}, 0x001f001f"); a(f"s_mov_b32 s{sM5+1}, 0x001f001f")
        for i in range(4): a(f"s_mov_b32 s{sSel[i]}, {0x07060500+i:#x}")
        for t in range(4):
            a(f"s_mov_b32 s{sMask[t]}, {(0x000f000f << (4*t)):#x}"); a(f"s_mov_b32 s{sMask[t]+1}, {(0x000f000f << (4*t)):#x}")
        a(f"s_lshl_b32 s92, s{sXG}, 5"); a(f"s_add_u32 s92, s92, s{sI}"); a(f"s_lshl_b32 s92, s92, 2"); a(f"s_add_u32 s92, s92, s{sW}")
        a(f"s_lshl_b32 s92, s92, {12 if self.c1bf else 13}"); a(f"s_add_u32 s{sC1}, s92, {O_C1}")
        a(f"s_getpc_b64 s[{sSPC}:{sSPC+1}]")
        a.label("L_pc0")
        a(f"s_add_u32 s{sSPC}, s{sSPC}, L_stream-L_pc0"); a(f"s_addc_u32 s{sSPC+1}, s{sSPC+1}, 0")
        a(f"s_mov_b32 s{sAct}, 1"); a(f"s_mov_b32 s{sPos}, 0")
        a(f"s_mov_b32 s{sCol}, {O_COL:#x}")
        a(f"s_getreg_b32 s{sXcc}, hwreg(HW_REG_XCC_ID)"); a(f"s_and_b32 s{sXcc}, s{sXcc}, 0xf"); a(f"s_add_u32 s{sXcc}, s{sXcc}, 1"); a(f"s_lshl_b32 s{sXcc}, s{sXcc}, 8")
        a(f"s_getpc_b64 s[{sDW}:{sDW+1}]")
        a.label("L_pc1")
        a(f"s_add_u32 s{sDW}, s{sDW}, L_dw-L_pc1"); a(f"s_addc_u32 s{sDW+1}, s{sDW+1}, 0")
        if self.bud is not None: a(f"s_mov_b32 s{sBud}, {self.bud.get('pro', self.bud.get('*', 8))}")
        self.dwait(6 if self.pretouch else 4, 0, 'pro')
        a(f"v_readfirstlane_b32 s{sTf}, v{vT}")
        self.next_tag()
        a(f"v_lshlrev_b32 v{vX}, 16, v{vX}")
        if self.local: a.c("publish the XCD id; the 32 workgroups with equal b & 7 compare them later and use L2-local stores only if they all match")
        if self.local:
            lx = a.newlabel("xp")
            a(f"s_cmp_lg_u32 s{sW}, 0"); a(f"s_cbranch_scc1 {lx}")
            for r in range(4): a(f"v_mov_b32 v{16+r}, s{sXcc}")
            self.tag([16, 17, 18, 19])
            a(f"s_lshl_b32 s92, s{sXG}, 9"); a(f"s_lshl_b32 s93, s{sI}, 4"); a("s_add_u32 s92, s92, s93"); a(f"s_add_u32 s92, s92, {O_XCC}")
            a("v_mov_b32 v20, 0")
            a("s_mov_b64 exec, 1")
            a(f"buffer_store_dwordx4 v[16:19], v20, {W}, s92 offen sc1")
            self.exec_all()
            a.label(lx)
        if self.opt1: self.prep_q()
        if self.mode == "first":
            self.drain(16)

    @property
    def NT(self): return 2
    @property
    def NLOADS(self): return 136 + (self.NT if self.c1touch else 0)
    @property
    def KEND(self): return 80 + (self.NT if self.c1touch else 0)
    def first_block(self):
        r = self.NLOADS % self.kblk
        return r if r else self.kblk
    def stream(self):
        a = self.a
        loads = [("C", i) for i in range(16)] + ([("T", i) for i in range(self.NT)] if self.c1touch else []) + [("K", i) for i in range(64)]
        loads += [("V", b, u) for b in range(10) for u in range(4)]
        loads += [("L", b, u) for b in range(10, 14) for u in range(4)]
        k = self.kblk
        assert len(loads) == self.NLOADS and len(loads) % k == 0, "the dynamic wait counts kblk loads per block"
        a.c("==== K/V stream (coroutine, two loads per call): c_kv rows -> LDS, K -> a0..a255, resident V -> v96..v255, V rows -> LDS ====")
        a.label("L_stream")
        starts = [0] + list(range(self.first_block(), len(loads), k))
        for bn, bi in enumerate(starts):
            be = starts[bn+1] if bn + 1 < len(starts) else len(loads)
            last_so = None
            for ld in loads[bi:be]:
                if ld[0] == "C":
                    self.ckv_one(ld[1]); last_so = None
                elif ld[0] == "T":
                    i = ld[1]; last_so = None
                    a(f"v_lshlrev_b32 v{vCk}, 2, v{vL16}")
                    if self.c1bf:
                        a(f"s_add_u32 s{sSO}, s{sC1}, {i * 32}")
                    else:
                        a(f"s_add_u32 s{sSO}, s{sC1}, {i * 4096}")
                    a(f"buffer_load_dword v255, v{vCk}, {W}, s{sSO} offen")
                elif ld[0] == "K":
                    i = ld[1]; so = (i >> 2) * 4096
                    if so != last_so: a(f"s_mov_b32 s{sSO}, {so}"); last_so = so
                    a(f"buffer_load_dwordx4 {ar(4*i,4)}, v{vKoff}, s[{SRD_K}:{SRD_K+3}], s{sSO} offen offset:{(i&3)*1024} {self.pol}")
                elif ld[0] == "V":
                    _, b, u = ld; so = b * 4096
                    if so != last_so: a(f"s_mov_b32 s{sSO}, {so}"); last_so = so
                    a(f"buffer_load_dwordx4 {vr(VRES+16*b+4*u,4)}, v{vVoff}, s[{SRD_V}:{SRD_V+3}], s{sSO} offen offset:{self.voff(u)} {self.pol}")
                else:
                    _, b, u = ld
                    a(f"s_lshl_b32 s{sSO}, s{sW}, 14"); a(f"s_add_u32 m0, s{sSO}, {L_VL + ((b-10)*4+u)*1024}")
                    a(f"s_mov_b32 s{sSO}, {b*4096+self.voff(u)}"); last_so = None
                    a(f"buffer_load_dwordx4 v{vVoff}, s[{SRD_V}:{SRD_V+3}], s{sSO} offen {self.pol} lds")
            a(f"s_add_u32 s{sPos}, s{sPos}, {be-bi}")
            if be >= len(loads): a(f"s_mov_b32 s{sAct}, 0")
            a(f"s_swappc_b64 s[{sSPC}:{sSPC+1}], s[{sRET}:{sRET+1}]")
        a("s_endpgm")

    def prep_q(self):
        a = self.a
        t = 37
        a(f"v_lshrrev_b32 v{t}, 4, v{vL16}")
        a(f"v_and_b32 v38, 1, v{t}"); a(f"v_lshlrev_b32 v38, 4, v38")
        a(f"v_lshrrev_b32 v39, 1, v{t}"); a(f"v_add_u32 v38, v38, v39"); a(f"v_lshlrev_b32 v38, 4, v38")
        a(f"v_cmp_gt_u32 vcc, 32, v{t}"); a(f"v_mov_b32 v39, 512"); a(f"v_cndmask_b32 v{t}, v39, v38, vcc")
        a(f"s_lshl_b32 s{sTmp[4]}, s{sH}, 3"); a(f"s_add_u32 s{sTmp[4]}, s{sTmp[4]}, s{sJ}"); a(f"s_lshl_b32 s{sTmp[4]}, s{sTmp[4]}, 11")
        a(f"s_add_u32 s{sTmp[4]}, s{sTmp[4]}, {O_QP}")

    def qpart(self):
        a = self.a
        a.c("==== Q part: partial q = bf16(x slice) @ W_q slice (diagonal-operand MFMA), LayerNorm statistics, column sums of W (first two layers) ====")
        self.stamp(0)
        def second():
            if self.split2:
                l0 = a.newlabel("q2w")
                a(f"s_cmp_eq_u32 s{sL}, 0"); a(f"s_cbranch_scc1 {l0}")
                self.second_w()
                a.label(l0)
        if not (self.opt1 and self.latepf): second()
        Xp, S1, S2 = (14, 38, 39) if self.opt1 else (14, 15, 36)
        D, Du, Ab = 16, 20, 24
        a(f"v_cvt_pk_bf16_f32 v{Xp}, v{vX}, v{vX}")
        a(f"v_and_b32 v{S1}, 0xffff0000, v{Xp}")
        a(f"v_mul_f32 v{S2}, v{S1}, v{S1}")
        self.pv_gemv(Xp, 5, lambda i: vr(WQ+4*i, 4), D, Ab)
        self.reduce63([S1, S2], "v_add_f32")
        lu = a.newlabel("nou")
        if self.opt1:
            a("s_mov_b32 exec_hi, 0")
            a(f"ds_write_b128 v{vRedW}, {vr(D,4)}")
            a("s_mov_b32 exec_lo, 0"); a("s_mov_b32 exec_hi, 0x80000000")
            a(f"ds_write_b64 v{vRedW}, {vr(S1,2)}")
            self.exec_all()
        a(f"s_cmp_ge_u32 s{sL}, 2"); a(f"s_cbranch_scc1 {lu}")
        for r in range(4): a(f"v_and_b32 v{32+r}, 0x3f803f80, v{vM[r]}")
        for i in range(5):
            c = "0" if i == 0 else vr(Du, 4)
            a(f"v_mfma_f32_16x16x32_bf16 {vr(Du,4)}, {vr(32,4)}, {vr(WQ+4*i,4)}, {c}")
        self.red_write(Du, 528)
        a.label(lu)
        if self.opt1:
            t = 37
            if self.latepf: second()
        else:
            a(f"v_readlane_b32 s{sA}, v{S1}, 63"); a(f"v_readlane_b32 s{sB_}, v{S2}, 63")
            a(f"v_writelane_b32 v{D}, s{sA}, 32"); a(f"v_writelane_b32 v{D+1}, s{sB_}, 32")
            self.red_write(D)
            t = 14
            a(f"v_lshrrev_b32 v{t}, 4, v{vL16}")
            a(f"v_and_b32 v15, 1, v{t}"); a(f"v_lshlrev_b32 v15, 4, v15")
            a(f"v_lshrrev_b32 v36, 1, v{t}"); a(f"v_add_u32 v15, v15, v36"); a(f"v_lshlrev_b32 v15, 4, v15")
            a(f"v_cmp_gt_u32 vcc, 32, v{t}"); a(f"v_mov_b32 v36, 512"); a(f"v_cndmask_b32 v{t}, v36, v15, vcc")
            a(f"s_lshl_b32 s{sTmp[4]}, s{sH}, 3"); a(f"s_add_u32 s{sTmp[4]}, s{sTmp[4]}, s{sJ}"); a(f"s_lshl_b32 s{sTmp[4]}, s{sTmp[4]}, 11")
            a(f"s_add_u32 s{sTmp[4]}, s{sTmp[4]}, {O_QP}")
        self.tu()
        a("s_waitcnt lgkmcnt(0)"); a("s_barrier")
        lf = a.newlabel("qfin")
        a(f"s_cmp_lg_u32 s{sW}, 0"); a(f"s_cbranch_scc1 {lf}")
        G = 16
        self.red_final_read(G)
        a("s_waitcnt lgkmcnt(0)")
        self.sum4(G); self.tag([G, G+1, G+2, G+3])
        a("s_mov_b32 exec_hi, 1")
        self.local_stores([(G, t, sTmp[4], None)])
        a("s_mov_b32 exec_hi, -1")
        a(f"s_cmp_ge_u32 s{sL}, 2"); a(f"s_cbranch_scc1 {lf}")
        G2 = 40
        self.red_final_read(G2, 528)
        a(f"s_add_u32 s{sTmp[4]}, s{sTmp[4]}, 1024")
        a("s_waitcnt lgkmcnt(0)")
        self.sum4(G2); self.tag([G2, G2+1, G2+2, G2+3])
        a("s_mov_b32 exec_hi, 0")
        self.local_stores([(G2, t, sTmp[4], None)])
        a("s_mov_b32 exec_hi, -1")
        a.label(lf)
        self.stamp(1)
        a.c("row hand-off: gather the 8 partial q vectors of this head, finish the (deferred) LayerNorm, build the QK operands")
        ad, ad2, adu, adx = 14, 15, 56, 57
        Gq, Gs, Gu, Gx = 16, 32, 36, 52
        a(f"v_lshrrev_b32 v{ad}, 8, v{vKoff}"); a(f"v_lshlrev_b32 v{ad}, 11, v{ad}")
        a(f"v_and_b32 v{ad2}, s{sFF}, v{vKoff}"); a(f"v_or_b32 v{ad}, v{ad}, v{ad2}")
        a(f"v_lshlrev_b32 v{adu}, 1, v{ad2}")
        a(f"v_lshrrev_b32 v{ad2}, 4, v{vL16}"); a(f"v_and_b32 v{ad2}, 7, v{ad2}"); a(f"v_lshlrev_b32 v{ad2}, 11, v{ad2}")
        a(f"s_lshl_b32 s{sTmp[0]}, s{sH}, 14"); a(f"s_add_u32 s{sTmp[0]}, s{sTmp[0]}, {O_QP}")
        a(f"s_add_u32 s{sTmp[1]}, s{sTmp[0]}, 8192")
        def iss_q():
            for i in range(2):
                for hf in range(2):
                    a(f"buffer_load_dwordx4 {vr(Gq+8*i+4*hf,4)}, v{ad}, {W}, s{sTmp[i]} offen offset:{hf*256} sc1")
            a(f"buffer_load_dwordx4 {vr(Gs,4)}, v{ad2}, {W}, s{sTmp[0]} offen offset:512 sc1")
        def iss_u():
            for i in range(2):
                for hf in range(2):
                    a(f"buffer_load_dwordx4 {vr(Gu+8*i+4*hf,4)}, v{ad}, {W}, s{sTmp[i]} offen offset:{1024+hf*256} sc1")
        def iss_x():
            a(f"buffer_load_dwordx4 {vr(Gx,4)}, v{adx}, {W}, s{sTmp[3]} offen sc1")
        U = 36
        l_late = a.newlabel("qlate"); l_j = a.newlabel("qj")
        a(f"s_and_b32 s{sTmp[2]}, s{sL}, 1"); a(f"s_lshl_b32 s{sTmp[2]}, s{sTmp[2]}, 9"); a(f"s_add_u32 s{sTmp[2]}, s{sTmp[2]}, {L_U}")
        a(f"v_add_u32 v{adu}, s{sTmp[2]}, v{adu}")
        a(f"s_cmp_ge_u32 s{sL}, 2"); a(f"s_cbranch_scc1 {l_late}")
        base_regs = [Gq, Gq+4, Gq+8, Gq+12, Gs, Gu, Gu+4, Gu+8, Gu+12]
        if self.local:
            l_one = a.newlabel("qone"); l_u = a.newlabel("qu")
            a(f"s_cmp_eq_u32 s{sL}, 1"); a(f"s_cbranch_scc1 {l_one}")
            a(f"v_and_b32 v{adx}, 0x1f0, v{vL16}")
            a(f"s_lshl_b32 s{sTmp[3]}, s{sXG}, 9"); a(f"s_add_u32 s{sTmp[3]}, s{sTmp[3]}, {O_XCC}")
            self.poll(lambda: (iss_q(), iss_u(), iss_x()), base_regs + [Gx], site='q0')
            a(f"v_cmp_ne_u32 vcc, s{sXcc}, v{Gx}")
            a(f"s_cmp_eq_u64 vcc, 0"); a(f"s_cselect_b32 s{sLocal}, 1, 0")
            a(f"s_branch {l_u}")
            a.label(l_one)
            self.poll(lambda: (iss_q(), iss_u()), base_regs, site='q1')
            a.label(l_u)
        else:
            self.poll(lambda: (iss_q(), iss_u()), base_regs)
        for r in range(8): a(f"v_add_f32 v{Gu+r}, v{Gu+r}, v{Gu+8+r}")
        self.dpp_steps([Gu+r for r in range(8)], "v_add_f32", ["row_ror:4", "row_ror:8"])
        lw = a.newlabel("uw")
        a(f"s_cmp_lg_u32 s{sW}, 0"); a(f"s_cbranch_scc1 {lw}")
        self.exec_set(0x000f000f, 0x000f000f)
        a(f"ds_write_b128 v{adu}, {vr(U,4)}"); a(f"ds_write_b128 v{adu}, {vr(U+4,4)} offset:16")
        self.exec_all()
        a.label(lw)
        a(f"s_branch {l_j}")
        a.label(l_late)
        a(f"ds_read_b128 {vr(U,4)}, v{adu}"); a(f"ds_read_b128 {vr(U+4,4)}, v{adu} offset:16")
        self.poll(iss_q, [Gq, Gq+4, Gq+8, Gq+12, Gs], site='q2')
        a("s_waitcnt lgkmcnt(0)")
        a.label(l_j)
        self.stamp(2)
        self.tu()
        self.burst('Q1')
        st = [Gs, Gs+1]
        adds = [f"v_add_f32 v{Gq+r}, v{Gq+r}, v{Gq+8+r}" for r in range(8)]
        seq = []
        for k, d in enumerate((self.X1, self.X2, self.HM)):
            seq += [f"v_add_f32_dpp v{r}, v{r}, v{r} {d} {DPPALL}" for r in st]
            seq += adds[3*k:3*k+3] if k < 2 else adds[6:]
        for s_ in seq: a(s_)
        a(f"v_mul_f32 v{Gs}, {f32hex(1/640)}, v{Gs}")
        ror4 = [f"v_add_f32_dpp v{Gq+r}, v{Gq+r}, v{Gq+r} row_ror:4 {DPPALL}" for r in range(8)]
        ror8 = [f"v_add_f32_dpp v{Gq+r}, v{Gq+r}, v{Gq+r} row_ror:8 {DPPALL}" for r in range(8)]
        a(f"v_mul_f32 v{Gs+1}, {f32hex(1/640)}, v{Gs+1}")
        for s_ in ror4[:4]: a(s_)
        a(f"v_fma_f32 v{Gs+1}, -v{Gs}, v{Gs}, v{Gs+1}")
        for s_ in ror4[4:]: a(s_)
        a(f"v_add_f32 v{Gs+1}, {f32hex(1e-5)}, v{Gs+1}")
        for s_ in ror8[:4]: a(s_)
        a(f"v_rsq_f32 v{Gs+1}, v{Gs+1}")
        for s_ in ror8[4:]: a(s_)
        a(f"v_mul_f32 v{Gs+1}, {f32hex(SC)}, v{Gs+1}")
        for r in range(8): a(f"v_fma_f32 v{Gq+r}, -v{Gs}, v{U+r}, v{Gq+r}")
        a(f"v_readfirstlane_b32 s{sSc}, v{Gs+1}")
        Qp = 24
        for r in range(4): a(f"v_cvt_pk_bf16_f32 v{Qp+r}, v{Gq+2*r}, v{Gq+2*r+1}")
        for t in range(4):
            for r in range(4):
                a(f"v_cndmask_b32 v{AT+4*t+r}, 0, v{Qp+r}, s[{sMask[t]}:{sMask[t]+1}]")

    def combine8(self, G, ML, tmp):
        a = self.a
        M, f, Ls = tmp, tmp+1, tmp+2
        a(f"v_max_f32_dpp v{M}, v{ML}, v{ML} row_ror:8 {DPPALL}")
        self.dpp_steps([M], "v_max_f32", ["b15", "b31"])
        a(f"v_readlane_b32 s{sA}, v{M}, 63")
        a(f"v_subrev_f32 v{f}, s{sA}, v{ML}"); a(f"v_exp_f32 v{f}, v{f}")
        a(f"v_mul_f32 v{Ls}, v{f}, v{ML+1}")
        for r in range(4): a(f"v_mul_f32 v{G+r}, v{f}, v{G+r}")
        a(f"v_add_f32_dpp v{Ls}, v{Ls}, v{Ls} row_ror:8 {DPPALL}")
        for r in range(4): a(f"v_add_f32_dpp v{G+r}, v{G+r}, v{G+r} row_ror:8 {DPPALL}")
        a(f"v_add_f32_dpp v{Ls}, v{Ls}, v{Ls} row_bcast:15 row_mask:0xa bank_mask:0xf")
        a(f"v_permlane32_swap_b32 v{G}, v{G+2}")
        a(f"v_permlane32_swap_b32 v{G+1}, v{G+3}")
        a(f"v_add_f32_dpp v{Ls}, v{Ls}, v{Ls} row_bcast:31 row_mask:0xc bank_mask:0xf")
        a(f"v_add_f32 v{G}, v{G}, v{G+2}")
        a(f"v_add_f32 v{G+1}, v{G+1}, v{G+3}")
        a(f"v_readlane_b32 s{sA}, v{Ls}, 63")
        a(f"v_permlane16_swap_b32 v{G}, v{G+1}")
        a(f"v_rcp_f32 v{Ls}, s{sA}")
        a(f"v_add_f32 v{G}, v{G}, v{G+1}")
        a(f"v_mul_f32 v{G}, v{G}, v{Ls}")

    def amiddle(self):
        a = self.a
        a.c("==== A layer: q_abs slice = q @ w_uk^T (absorbed keys), published to every workgroup ====")
        D = 16
        for t in range(4):
            c = "0" if t == 0 else vr(D, 4)
            a(f"v_mfma_f32_16x16x32_bf16 {vr(D,4)}, {vr(AT+4*t,4)}, {vr(WUK+4*t,4)}, {c}")
        a(f"v_lshrrev_b32 v14, 8, v{vL16}"); a("v_lshlrev_b32 v14, 4, v14")
        a(f"s_lshl_b32 s{sTmp[0]}, s{sH}, 11"); a(f"s_lshl_b32 s{sTmp[1]}, s{sJ}, 8"); a(f"s_add_u32 s{sTmp[0]}, s{sTmp[0]}, s{sTmp[1]}")
        a(f"s_lshl_b32 s{sTmp[1]}, s{sW}, 6"); a(f"s_add_u32 s{sTmp[0]}, s{sTmp[0]}, s{sTmp[1]}")
        a(f"s_add_u32 s{sTmp[0]}, s{sTmp[0]}, {O_QABS}")
        S, S2 = 20, 21
        a(f"v_mov_b32_dpp v{S}, v{D} quad_perm:[0,0,0,0] {DPPALL}")
        a(f"v_mov_b32_dpp v{S2}, v{D+2} quad_perm:[2,2,2,2] {DPPALL}")
        a(f"s_nop 0")
        a(f"v_add_f32_dpp v{S}, v{D+1}, v{S} quad_perm:[1,1,1,1] {DPPALL}")
        a(f"v_add_f32_dpp v{S2}, v{D+3}, v{S2} quad_perm:[3,3,3,3] {DPPALL}")
        a(f"v_add_f32 v{S}, v{S}, v{S2}")
        a(f"v_mul_f32 v{S}, s{sSc}, v{S}")
        G = 24
        for q in range(4): a(f"v_mov_b32_dpp v{G+q}, v{S} row_newbcast:{4*q} {DPPALL}")
        self.tag([G, G+1, G+2, G+3])
        self.exec_set(0x00010001, 0x00010001)
        a(f"buffer_store_dwordx4 {vr(G,4)}, v14, {W}, s{sTmp[0]} offen sc1")
        self.exec_all()
        self.stamp(3)
        self.tu()
        if not self.pfnew: self.load_wuv()
        Gq = 16
        a(f"s_lshl_b32 s{sTmp[0]}, s{sGA}, 15"); a(f"s_lshl_b32 s{sTmp[1]}, s{sW}, 9"); a(f"s_add_u32 s{sTmp[0]}, s{sTmp[0]}, s{sTmp[1]}")
        a(f"s_add_u32 s{sTmp[0]}, s{sTmp[0]}, {O_QABS}")
        for i in range(1, 4): a(f"s_add_u32 s{sTmp[i]}, s{sTmp[0]}, {i*8192}")
        vA0, vB0, vAx = 52, 53, 54
        n, g = 48, 49
        a(f"v_lshrrev_b32 v{n}, 4, v{vL16}"); a(f"v_lshrrev_b32 v{g}, 4, v{n}"); a(f"v_and_b32 v{n}, 15, v{n}")
        a(f"v_and_b32 v50, 8, v{n}"); a(f"v_and_b32 v51, 3, v{n}"); a(f"v_lshl_or_b32 v50, v51, 1, v50")
        a(f"v_bfe_u32 v51, v{n}, 2, 1"); a(f"v_or_b32 v50, v50, v51")
        a(f"s_lshl_b32 s{sTmp[4]}, s{sW}, 14"); a(f"s_add_u32 s{sTmp[4]}, s{sTmp[4]}, {L_CKV}")
        a(f"v_lshlrev_b32 v51, 10, v{n}"); a(f"v_lshl_add_u32 v51, v{g}, 8, v51"); a(f"v_lshl_add_u32 v51, v50, 4, v51")
        a(f"v_add_u32 v{vA0}, s{sTmp[4]}, v51")
        a(f"v_mul_u32_u24 v{vB0}, 1040, v{n}"); a(f"v_lshl_add_u32 v{vB0}, v{g}, 8, v{vB0}"); a(f"v_add_u32 v{vB0}, {L_R0}, v{vB0}")
        a(f"v_mul_u32_u24 v51, 272, v{n}"); a(f"v_lshl_add_u32 v50, v{g}, 4, v51")
        a(f"s_lshl_b32 s{sTmp[4]}, s{sW}, 6"); a(f"s_add_u32 s{sTmp[4]}, s{sTmp[4]}, {L_ST}"); a(f"v_add_u32 v50, s{sTmp[4]}, v50")
        a(f"v_lshl_add_u32 v51, v{g}, 5, v51"); a(f"v_add_u32 v51, {L_ST}, v51")
        vC0, vC1, vX0, vX1 = 76, 77, 78, 79
        a(f"v_and_b32 v14, 3, v{n}"); a(f"v_lshrrev_b32 v15, 2, v{n}")
        a(f"v_and_b32 v55, 1, v{g}"); a(f"v_lshlrev_b32 v55, 3, v55"); a(f"v_lshl_add_u32 v55, v15, 1, v55")
        a(f"v_lshrrev_b32 v56, 1, v14"); a(f"v_xor_b32 v55, v55, v56")
        a(f"v_lshl_add_u32 v56, v{g}, 3, v15"); a(f"v_lshlrev_b32 v56, 10, v56")
        a(f"v_lshl_add_u32 v56, v55, 4, v56"); a(f"v_and_b32 v14, 1, v14"); a(f"v_lshl_add_u32 v56, v14, 3, v56")
        a(f"s_lshl_b32 s{sTmp[4]}, s{sW}, 8"); a(f"s_add_u32 s{sTmp[4]}, s{sTmp[4]}, {L_CKV}")
        a(f"v_add_u32 v{vC0}, s{sTmp[4]}, v56")
        a(f"v_add_u32 v{vC1}, 4096, v{vC0}"); a(f"v_xor_b32 v{vC1}, 16, v{vC1}")
        a(f"s_lshl_b32 s{sTmp[4]}, s{sW}, 8"); a(f"s_add_u32 s{sTmp[4]}, s{sTmp[4]}, {L_R0}")
        a(f"v_lshrrev_b32 v14, 9, v{vL16}"); a(f"v_and_b32 v57, 0x1f0, v{vL16}")
        a(f"v_lshrrev_b32 v15, 1, v57"); a(f"v_mul_u32_u24 v58, 1040, v14"); a(f"v_add_u32 v15, v15, v58"); a(f"v_add_u32 v15, s{sTmp[4]}, v15")
        a(f"v_lshl_add_u32 v57, v14, 11, v57")
        lg0 = a.newlabel("cg"); lg1 = a.newlabel("cg")
        a.label(lg0)
        a(f"s_cmp_ge_u32 s{sPos}, 16"); a(f"s_cbranch_scc1 {lg1}")
        self.stream_call()
        a(f"s_branch {lg0}")
        a.label(lg1)
        if self.sent:
            lsk = a.newlabel("nosent")
            if not self.sent1:
                a(f"s_cmp_lg_u32 s{sAct}, 0"); a(f"s_cbranch_scc1 {lsk}")
            a(f"v_lshrrev_b32 v14, 7, v{vL16}"); a(f"v_lshlrev_b32 v14, 11, v14"); a(f"v_and_b32 v58, 0x70, v{vL16}"); a(f"v_lshl_add_u32 v14, v58, 2, v14")
            def iss0():
                a(f"buffer_load_dwordx4 {vr(Gq,4)}, v14, {W}, s{sTmp[0]} offen sc1")
                a(f"buffer_load_dwordx4 {vr(Gq+4,4)}, v14, {W}, s{sTmp[2]} offen sc1")
            self.poll(iss0, [Gq, Gq+4], site='sent')
            a.label(lsk)
            self.stamp(15)
        def iss():
            for i in range(8):
                so = sTmp[i >> 1]
                if i & 1:
                    a(f"s_add_u32 s{sTmp[5-1]}, s{so}, 4096"); so = sTmp[4]
                a(f"buffer_load_dwordx4 {vr(Gq+4*i,4)}, v57, {W}, s{so} offen sc1")
        self.poll(iss, [Gq+4*i for i in range(8)], site='h4')
        self.stampval(30, sSpin); self.stampval(31, sPos)
        self.stamp(4)
        def a0_loads():
            if self.pfnew: self.load_wuv()
            self.burst('A0')
            if self.c1touch2 == "h4":
                lt = a.newlabel("t2")
                a(f"s_cmp_eq_u32 s{sL}, 0"); a(f"s_cbranch_scc1 {lt}")
                a(f"v_lshlrev_b32 v11, 2, v{vL16}")
                for i in range(1 if self.c1bf else 2):
                    a(f"s_add_u32 s{sTmp[0]}, s{sC1}, {i * 4096}")
                    a(f"buffer_load_dword v12, v11, {W}, s{sTmp[0]} offen")
                a.label(lt)
        if not self.opt2: a0_loads()
        for i in range(8):
            b = Gq + 4*i
            a(f"v_cvt_pk_bf16_f32 v{b}, v{b}, v{b+1}"); a(f"v_cvt_pk_bf16_f32 v{b+1}, v{b+2}, v{b+3}")
            a(f"ds_write_b64 v15, {vr(b,2)} offset:{i*2*1040}")
        if self.opt2: a0_loads()
        self.tu()
        a("s_waitcnt lgkmcnt(0)"); a("s_barrier")
        self.stamp(16)
        if "S" in self.xcalls: self.topup(site='S')
        self.burst('S')
        a.c("scores of this workgroup's 64 keys for 16 heads, softmax with the true maximum of the split, P @ c_kv")
        AB = 16
        Ds = 56
        def rd(st):
            b = AB + 8 * (st % 4)
            if st == 0: a(f"ds_read_b128 {vr(b,4)}, v{vA0}")
            else:
                a(f"v_xor_b32 v{vAx}, {st<<4}, v{vA0}"); a(f"ds_read_b128 {vr(b,4)}, v{vAx}")
            a(f"ds_read_b128 {vr(b+4,4)}, v{vB0} offset:{st*16}")
        for st in range(4): rd(st)
        for st in range(16):
            rem = min(3, 15 - st)
            a(f"s_waitcnt lgkmcnt({2*rem})")
            b = AB + 8 * (st % 4)
            c = "0" if st == 0 else vr(Ds, 4)
            a(f"v_mfma_f32_16x16x32_bf16 {vr(Ds,4)}, {vr(b,4)}, {vr(b+4,4)}, {c}")
            if st + 4 < 16: rd(st + 4)
        a(f"ds_write_b128 v50, {vr(Ds,4)}")
        self.tu()
        a("s_waitcnt lgkmcnt(0)"); a("s_barrier")
        self.stamp(17)
        SS = 60 if self.opt2 else 16
        for u in range(2):
            for hf in range(2):
                a(f"ds_read_b128 {vr(SS+8*u+4*hf,4)}, v51 offset:{u*128+hf*16}")
        DT = 44
        AF = 16
        steps = [(t, u) for t in range(8) for u in range(2)]
        def rdA(k):
            t, u = steps[k]; b = AF + 4 * (k % 4)
            if u == 0:
                if t == 0:
                    a(f"v_mov_b32 v{vX0}, v{vC0}"); a(f"v_mov_b32 v{vX1}, v{vC1}")
                else:
                    a(f"v_xor_b32 v{vX0}, {t<<5}, v{vC0}"); a(f"v_xor_b32 v{vX1}, {t<<5}, v{vC1}")
            a(f"ds_read_b64_tr_b16 {vr(b,2)}, v{vX0} offset:{u*32768}")
            a(f"ds_read_b64_tr_b16 {vr(b+2,2)}, v{vX1} offset:{u*32768}")
        if self.opt2:
            for k in range(4): rdA(k)
        if self.pfnew: self.load_wo(pWoA)
        m, l, t1, t2 = 32, 33, 34, 35
        a("s_waitcnt lgkmcnt(8)" if self.opt2 else "s_waitcnt lgkmcnt(0)")
        a(f"v_max3_f32 v{m}, v{SS}, v{SS+1}, v{SS+2}"); a(f"v_max3_f32 v{t1}, v{SS+3}, v{SS+4}, v{SS+5}")
        a(f"v_max3_f32 v{m}, v{m}, v{SS+6}, v{SS+7}"); a(f"v_max3_f32 v{t1}, v{t1}, v{SS+8}, v{SS+9}")
        a(f"v_max3_f32 v{m}, v{m}, v{SS+10}, v{SS+11}"); a(f"v_max3_f32 v{t1}, v{t1}, v{SS+12}, v{SS+13}")
        a(f"v_max3_f32 v{m}, v{m}, v{SS+14}, v{SS+15}"); a(f"v_max_f32 v{m}, v{m}, v{t1}")
        for sw in ("v_permlane16_swap_b32", "v_permlane32_swap_b32"):
            a(f"v_mov_b32 v{t1}, v{m}"); a(f"{sw} v{m}, v{t1}"); a(f"v_max_f32 v{m}, v{m}, v{t1}")
        for k in range(16): a(f"v_sub_f32 v{SS+k}, v{SS+k}, v{m}")
        for k in range(16): a(f"v_exp_f32 v{SS+k}, v{SS+k}")
        P = 36
        for k in range(8): a(f"v_cvt_pk_bf16_f32 v{P+k}, v{SS+2*k}, v{SS+2*k+1}")
        for k in range(8): a(f"v_add_f32 v{SS+k}, v{SS+k}, v{SS+8+k}")
        for k in range(4): a(f"v_add_f32 v{SS+k}, v{SS+k}, v{SS+4+k}")
        a(f"v_add_f32 v{SS}, v{SS}, v{SS+1}"); a(f"v_add_f32 v{SS+2}, v{SS+2}, v{SS+3}"); a(f"v_add_f32 v{l}, v{SS}, v{SS+2}")
        self.stamp(18)
        if "smax" in self.xcalls: self.topup(site='S')
        self.burst('smax')
        if not self.opt2:
            for k in range(4): rdA(k)
        for sw in ("v_permlane16_swap_b32", "v_permlane32_swap_b32"):
            a(f"v_mov_b32 v{t1}, v{l}"); a(f"{sw} v{l}, v{t1}"); a(f"v_add_f32 v{l}, v{l}, v{t1}")
        if self.c1bf:
            self.stage1_bf(DT, P, AF, steps, rdA)
            acc = 48; t1 = 68; Mx = 56; den = 64; R4 = range(4)
        else:
            a(f"v_lshrrev_b32 v14, 8, v{vL16}"); a(f"v_lshlrev_b32 v14, 17, v14"); a(f"v_and_b32 v15, 0xf0, v{vL16}"); a(f"v_add_u32 v14, v14, v15")
            a(f"s_lshl_b32 s{sTmp[0]}, s{sXG}, 20"); a(f"s_lshl_b32 s{sTmp[1]}, s{sGA}, 19"); a(f"s_add_u32 s{sTmp[0]}, s{sTmp[0]}, s{sTmp[1]}")
            a(f"s_lshl_b32 s{sTmp[1]}, s{sW}, 15"); a(f"s_add_u32 s{sTmp[0]}, s{sTmp[0]}, s{sTmp[1]}")
            a(f"s_and_b32 s{sTmp[2]}, s{sS}, 15"); a(f"s_lshl_b32 s{sTmp[1]}, s{sTmp[2]}, 9"); a(f"s_add_u32 s{sTmp[0]}, s{sTmp[0]}, s{sTmp[1]}")
            a(f"s_add_u32 s{sTmp[0]}, s{sTmp[0]}, {O_C1}")
            a(f"s_lshl_b32 s{sTmp[3]}, s{sXG}, 14"); a(f"s_lshl_b32 s{sTmp[1]}, s{sGA}, 13"); a(f"s_add_u32 s{sTmp[3]}, s{sTmp[3]}, s{sTmp[1]}")
            a(f"s_lshl_b32 s{sTmp[1]}, s{sW}, 9"); a(f"s_add_u32 s{sTmp[3]}, s{sTmp[3]}, s{sTmp[1]}")
            a(f"s_lshl_b32 s{sTmp[1]}, s{sTmp[2]}, 5"); a(f"s_add_u32 s{sTmp[3]}, s{sTmp[3]}, s{sTmp[1]}")
            a(f"s_add_u32 s{sTmp[3]}, s{sTmp[3]}, {O_ML1}")
            a(f"v_bfe_u32 v15, v{vL16}, 6, 2"); a(f"v_lshlrev_b32 v15, 11, v15")
            a(f"v_bfe_u32 v32+2, v{vL16}, 8, 1".replace("v32+2", "v34")); a(f"v_lshl_add_u32 v15, v34, 4, v15")
            MG = 76 - 0
            a(f"s_mov_b32 vcc_lo, 0xffff0000"); a("s_mov_b32 vcc_hi, 0")
            a(f"v_cndmask_b32 v34, v32, v33, vcc")
            mlops = [f"v_mov_b32_dpp v32, v34 quad_perm:[0,0,0,0] {DPPALL}", f"v_mov_b32_dpp v33, v34 quad_perm:[1,1,1,1] {DPPALL}",
                     f"v_mov_b32_dpp v35, v34 quad_perm:[3,3,3,3] {DPPALL}", f"v_mov_b32_dpp v34, v34 quad_perm:[2,2,2,2] {DPPALL}"]
            for k in range(16):
                t, u = steps[k]; b = AF + 4 * (k % 4)
                rem = min(3, 15 - k)
                a(f"s_waitcnt lgkmcnt({2*rem})")
                c = "0" if u == 0 else vr(DT+4*t, 4)
                a(f"v_mfma_f32_16x16x32_bf16 {vr(DT+4*t,4)}, {vr(P+4*u,4)}, {vr(b,4)}, {c}")
                if k + 4 < 16: rdA(k + 4)
                if k == 0:
                    for x_ in mlops: a(x_)
                if k == 2: self.tag([32, 33, 34, 35])
                if u == 1 and t >= 2: self.tag([DT+4*(t-2)+r for r in range(4)])
            self.tag([DT+4*6+r for r in range(4)]); self.tag([DT+4*7+r for r in range(4)])
            self.stamp(19)
            items = []
            for t in range(8):
                def pre(t=t): a(f"s_add_u32 s{sTmp[1]}, s{sTmp[0]}, {(t>>1)*8192+(t&1)*256}")
                items.append((DT+4*t, 14, sTmp[1], pre))
            def pre_ml(): a("s_mov_b32 exec_lo, 0x11111111"); a("s_mov_b32 exec_hi, 0")
            items.append((32, 15, sTmp[3], pre_ml))
            if self.c1sc1:
                loc = self.local; self.local = False
                self.local_stores(items)
                self.local = loc
            else:
                self.local_stores(items)
            self.exec_all()
            self.stamp(5)
            G, MM, LL = 16, 48, 52
            a(f"v_lshrrev_b32 v14, 4, v{vL16}"); a(f"v_and_b32 v15, 7, v14"); a(f"v_lshrrev_b32 v14, 5, v14")
            a(f"v_lshl_add_u32 v14, v15, 1, v14"); a(f"v_lshlrev_b32 v14, 5, v14")
            a(f"s_lshl_b32 s{sTmp[0]}, s{sXG}, 5"); a(f"s_add_u32 s{sTmp[0]}, s{sTmp[0]}, s{sI}")
            a(f"s_lshl_b32 s{sTmp[2]}, s{sTmp[0]}, 9"); a(f"s_add_u32 s{sTmp[2]}, s{sTmp[2]}, {O_ML1}")
            a(f"s_lshl_b32 s{sTmp[0]}, s{sTmp[0]}, 2"); a(f"s_add_u32 s{sTmp[0]}, s{sTmp[0]}, s{sW}")
            a(f"s_lshl_b32 s{sTmp[0]}, s{sTmp[0]}, 13"); a(f"s_add_u32 s{sTmp[0]}, s{sTmp[0]}, {O_C1}")
            a(f"s_add_u32 s{sTmp[1]}, s{sTmp[0]}, 4096")
            def issML():
                a(f"buffer_load_dwordx4 {vr(MM,4)}, v14, {W}, s{sTmp[2]} offen sc1")
                a(f"buffer_load_dwordx4 {vr(LL,4)}, v14, {W}, s{sTmp[2]} offen offset:16 sc1")
            lsk = a.newlabel("noml")
            if not self.mlsent:
                a(f"s_cmp_lg_u32 s{sAct}, 0"); a(f"s_cbranch_scc1 {lsk}")
            if not self.mltail:
                a(f"s_cmp_ge_u32 s{sL}, 2"); a(f"s_cbranch_scc1 {lsk}")
            self.poll(issML, [MM, LL], site='ml1')
            a.label(lsk)
            self.stamp(20)
            Mx, wv, den, t1 = 56, 60, 64, 68
            chk = 72
            lp = a.newlabel("sw1"); ns = a.newlabel("sw1n"); jn = a.newlabel("sw1j"); dn = a.newlabel("sw1d"); ns2 = a.newlabel("sw1m"); jn2 = a.newlabel("sw1k")
            a(f"s_mov_b32 s{sSpin}, 0")
            if self.bud is not None: a(f"s_mov_b32 s{sBud}, {self.bud.get('sw1', self.bud.get('*', 8))}")
            self.predelay('sw1')
            a.label(lp)
            issML()
            for i in range(8):
                a(f"buffer_load_dwordx4 {vr(G+4*i,4)}, v{vL16}, {W}, s{sTmp[i>>2]} offen offset:{(i&3)*1024} sc1")
            a(f"s_mov_b32 s{sYoung}, 8")
            self.dwait(8, 10 if self.addn else 0, 'sw1')
            a(f"s_sub_u32 s{sTmp[4]}, s{sYoung}, 8")
            for r in range(4): a(f"v_xor_b32 v{MM+r}, s{sT[r]}, v{MM+r}")
            for r in range(4): a(f"v_xor_b32 v{LL+r}, s{sT[r]}, v{LL+r}")
            a(f"v_or3_b32 v{chk}, v{MM}, v{MM+1}, v{MM+2}"); a(f"v_or3_b32 v{chk}, v{chk}, v{MM+3}, v{LL}")
            a(f"v_or3_b32 v{chk}, v{chk}, v{LL+1}, v{LL+2}"); a(f"v_or_b32 v{chk}, v{chk}, v{LL+3}")
            R4 = range(4)
            for r in R4: a(f"v_max_f32_dpp v{Mx+r}, v{MM+r}, v{MM+r} {self.X1} {DPPALL}")
            self.dpp_steps([Mx+r for r in R4], "v_max_f32", [self.X2, self.HM])
            for r in R4: a(f"v_mov_b32 v{t1+r}, v{Mx+r}")
            for r in R4: a(f"v_permlane32_swap_b32 v{Mx+r}, v{t1+r}")
            for r in R4: a(f"v_max_f32 v{Mx+r}, v{Mx+r}, v{t1+r}")
            for r in R4: a(f"v_sub_f32 v{wv+r}, v{MM+r}, v{Mx+r}")
            for r in R4: a(f"v_exp_f32 v{wv+r}, v{wv+r}")
            for r in R4: a(f"v_mul_f32 v{den+r}, v{wv+r}, v{LL+r}")
            self.dpp_steps([den+r for r in R4], "v_add_f32", [self.X1, self.X2, self.HM])
            for r in R4: a(f"v_mov_b32 v{t1+r}, v{den+r}")
            for r in R4: a(f"v_permlane32_swap_b32 v{den+r}, v{t1+r}")
            for r in R4: a(f"v_add_f32 v{den+r}, v{den+r}, v{t1+r}")
            if self.mode == "co":
                a(f"s_cmp_eq_u32 s{sTmp[4]}, 0"); a(f"s_cbranch_scc1 {ns2}")
                a(f"s_mov_b32 s{sYoung}, s{sTmp[4]}")
                a(f"s_swappc_b64 s[{sRET2}:{sRET2+1}], s[{sDW}:{sDW+1}]")
                a(f"s_branch {jn2}")
                a.label(ns2)
            self.dwait(0, 0, 'sw1')
            a.label(jn2)
            dw = [G + i for i in range(32)]
            for k, r in enumerate(dw): a(f"v_xor_b32 v{r}, s{sT[k % 4]}, v{r}")
            a(f"v_or3_b32 v{vT0}, v{dw[0]}, v{dw[1]}, v{chk}"); a(f"v_or3_b32 v{vT0+1}, v{dw[2]}, v{dw[3]}, v{dw[4]}")
            k = 5; tog = 0
            while k < 31:
                tgt = vT0 + tog
                a(f"v_or3_b32 v{tgt}, v{tgt}, v{dw[k]}, v{dw[k+1]}"); k += 2; tog ^= 1
            a(f"v_or3_b32 v{vT0}, v{vT0}, v{vT0+1}, v{dw[31]}")
            a(f"v_and_b32 v{vT0}, s{sFF}, v{vT0}")
            a(f"v_cmp_ne_u32 vcc, 0, v{vT0}")
            a(f"s_cbranch_vccz {dn}")
            a(f"s_add_u32 s{sSpin}, s{sSpin}, 1"); a(f"s_cmp_lt_u32 s{sSpin}, {SPIN_MAX}"); a(f"s_cbranch_scc1 {lp}")
            a(f"s_mov_b32 s{sErr}, 1")
            a.label(dn)
            self.stampval(24, sSpin); self.stampval(25, sPos)
            self.stamp(6)
            self.burst('A1')
            acc = 48
            for i in range(8):
                for r in range(4):
                    op = "v_mul_f32_dpp" if i == 0 else "v_fmac_f32_dpp"
                    a(f"{op} v{acc+r}, v{wv+r}, v{G+4*i+r} row_newbcast:{i} {DPPALL}")

        if self.c1bf:
            a(f"v_bfe_u32 v14, v{vL16}, 9, 1"); a(f"v_lshlrev_b32 v14, 11, v14"); a(f"v_and_b32 v15, 0xf0, v{vL16}"); a(f"v_add_u32 v14, v14, v15")
        else:
            a(f"v_bfe_u32 v14, v{vL16}, 8, 1"); a(f"v_lshlrev_b32 v14, 11, v14"); a(f"v_and_b32 v15, 0xf0, v{vL16}"); a(f"v_add_u32 v14, v14, v15")
            for r in R4: a(f"v_mov_b32 v{t1+r}, v{acc+r}")
        a(f"s_lshr_b32 s{sTmp[0]}, s{sI}, 2"); a(f"s_lshl_b32 s{sTmp[0]}, s{sTmp[0]}, 16")
        a(f"s_and_b32 s{sTmp[1]}, s{sI}, 3"); a(f"s_lshl_b32 s{sTmp[1]}, s{sTmp[1]}, 14"); a(f"s_add_u32 s{sTmp[0]}, s{sTmp[0]}, s{sTmp[1]}")
        if not self.c1bf:
            for r in R4: a(f"v_permlane32_swap_b32 v{acc+r}, v{t1+r}")
        a(f"s_lshl_b32 s{sTmp[1]}, s{sW}, 12"); a(f"s_add_u32 s{sTmp[0]}, s{sTmp[0]}, s{sTmp[1]}")
        a(f"s_lshl_b32 s{sTmp[1]}, s{sXG}, 8"); a(f"s_add_u32 s{sTmp[0]}, s{sTmp[0]}, s{sTmp[1]}")
        if not self.c1bf:
            for r in R4: a(f"v_add_f32 v{acc+r}, v{acc+r}, v{t1+r}")
        a(f"s_add_u32 s{sTmp[0]}, s{sTmp[0]}, {O_C2}")
        self.tag([acc, acc+1, acc+2, acc+3])
        if self.c1bf: self.exec_set(0xffff, 0xffff)
        else: a("s_mov_b32 exec_hi, 0")
        a(f"buffer_store_dwordx4 {vr(acc,4)}, v14, {W}, s{sTmp[0]} offen sc1")
        self.exec_all()
        lm = a.newlabel("ml2")
        a(f"s_and_b32 s{sTmp[1]}, s{sI}, 3"); a(f"s_or_b32 s{sTmp[1]}, s{sTmp[1]}, s{sW}"); a(f"s_cmp_lg_u32 s{sTmp[1]}, 0"); a(f"s_cbranch_scc1 {lm}")
        for r in (1, 2, 3):
            a(f"s_mov_b64 vcc, {1 << r}")
            a(f"v_cndmask_b32 v{Mx}, v{Mx}, v{Mx+r}, vcc"); a(f"v_cndmask_b32 v{den}, v{den}, v{den+r}, vcc")
        a(f"v_mov_b32 v{Mx+1}, v{den}"); a(f"v_mov_b32 v{Mx+2}, 0"); a(f"v_mov_b32 v{Mx+3}, 0")
        self.tag([Mx, Mx+1, Mx+2, Mx+3])
        a(f"s_lshl_b32 s{sTmp[1]}, s{sI}, 7"); a(f"s_lshl_b32 s{sTmp[2]}, s{sXG}, 4"); a(f"s_add_u32 s{sTmp[1]}, s{sTmp[1]}, s{sTmp[2]}")
        a(f"s_add_u32 s{sTmp[1]}, s{sTmp[1]}, {O_ML2}")
        a(f"v_lshlrev_b32 v15, 3, v{vL16}")
        a("s_mov_b64 exec, 15")
        a(f"buffer_store_dwordx4 {vr(Mx,4)}, v15, {W}, s{sTmp[1]} offen sc1")
        self.exec_all()
        a.label(lm)
        self.stamp(21)
        self.tu()
        if not self.pfnew: self.load_wo(pWoA)
        a.c("second reduction step (8 key ranges), normalisation, then ctx slice @ w_uv")
        G0, G1, M0, M1 = 16, 20, 24, 28
        a(f"v_bfe_u32 v15, v{vL16}, 6, 2")
        a(f"v_bfe_u32 v14, v{vL16}, 4, 2"); a(f"v_lshlrev_b32 v14, 2, v14"); a(f"v_lshrrev_b32 v32, 8, v{vL16}"); a(f"v_add_u32 v14, v14, v32")
        a(f"v_lshlrev_b32 v14, 4, v14"); a(f"v_lshl_add_u32 v14, v15, 8, v14")
        a(f"v_lshlrev_b32 v15, 4, v15")
        a(f"s_lshr_b32 s{sTmp[0]}, s{sH}, 2"); a(f"s_lshl_b32 s{sTmp[0]}, s{sTmp[0]}, 16"); a(f"s_lshl_b32 s{sTmp[1]}, s{sJ}, 13"); a(f"s_add_u32 s{sTmp[0]}, s{sTmp[0]}, s{sTmp[1]}")
        a(f"s_lshl_b32 s{sTmp[1]}, s{sW}, 11"); a(f"s_add_u32 s{sTmp[0]}, s{sTmp[0]}, s{sTmp[1]}"); a(f"s_add_u32 s{sTmp[0]}, s{sTmp[0]}, {O_C2}")
        a(f"s_lshl_b32 s{sTmp[2]}, s{sH}, 7"); a(f"s_add_u32 s{sTmp[2]}, s{sTmp[2]}, {O_ML2}")
        def iss2():
            a(f"buffer_load_dwordx4 {vr(M0,4)}, v15, {W}, s{sTmp[2]} offen sc1")
            a(f"buffer_load_dwordx4 {vr(M1,4)}, v15, {W}, s{sTmp[2]} offen offset:64 sc1")
            a(f"buffer_load_dwordx4 {vr(G0,4)}, v14, {W}, s{sTmp[0]} offen sc1")
            a(f"buffer_load_dwordx4 {vr(G1,4)}, v14, {W}, s{sTmp[0]} offen offset:1024 sc1")
        self.poll(iss2, [M0, M1, G0, G1], site='h5b')
        self.stampval(26, sSpin); self.stampval(27, sPos)
        self.stamp(14)
        self.tu()
        self.burst('A2')
        lsel = [a.newlabel("sel") for _ in range(4)]; lj = a.newlabel("selj")
        Mx, f0, f1, Ls = 32, 33, 34, 35
        a(f"v_max_f32 v{Mx}, v{M0}, v{M1}")
        a(f"s_and_b32 s{sTmp[1]}, s{sH}, 3")
        for r in (1, 2, 3):
            a(f"s_cmp_eq_u32 s{sTmp[1]}, {r}"); a(f"s_cbranch_scc1 {lsel[r]}")
        a(f"s_branch {lj}")
        for r in (1, 2, 3):
            a.label(lsel[r])
            a(f"v_mov_b32 v{G0}, v{G0+r}"); a(f"v_mov_b32 v{G1}, v{G1+r}")
            if r < 3: a(f"s_branch {lj}")
        a.label(lj)
        self.dpp_steps([Mx], "v_max_f32", ["row_ror:4", "row_ror:8"])
        a(f"v_sub_f32 v{f0}, v{M0}, v{Mx}"); a(f"v_sub_f32 v{f1}, v{M1}, v{Mx}")
        a(f"v_exp_f32 v{f0}, v{f0}"); a(f"v_exp_f32 v{f1}, v{f1}")
        a(f"v_mul_f32 v{Ls}, v{f0}, v{M0+1}"); a(f"v_mul_f32 v{G0}, v{f0}, v{G0}")
        a(f"v_fmac_f32 v{Ls}, v{f1}, v{M1+1}"); a(f"v_fmac_f32 v{G0}, v{f1}, v{G1}")
        self.dpp_steps([Ls, G0], "v_add_f32", ["row_ror:4", "row_ror:8"])
        a(f"v_rcp_f32 v{Ls}, v{Ls}")
        a(f"v_mul_f32 v{G0}, v{G0}, v{Ls}")
        Xp = 14
        a(f"v_cvt_pk_bf16_f32 v{Xp}, v{G0}, v{G0}")
        D, Ab = 16, 20
        self.pv_gemv(Xp, 4, lambda i: vr(WUV+4*i, 4), D, Ab)
        self.red_write(D)
        self.row_slot_addr()
        self.tu()
        a("s_waitcnt lgkmcnt(0)"); a("s_barrier")
        lf = a.newlabel("uvfin")
        a(f"s_cmp_lg_u32 s{sW}, 0"); a(f"s_cbranch_scc1 {lf}")
        G = 16
        self.red_final_read(G)
        a(f"s_mov_b32 s{sA}, {f32hex(0.125)}")
        a("s_waitcnt lgkmcnt(0)")
        self.sum4(G)
        a(f"v_writelane_b32 v{G}, 0, 32"); a(f"v_writelane_b32 v{G+1}, s{sA}, 32")
        self.tag([G, G+1, G+2, G+3])
        a("s_mov_b32 exec_hi, 1")
        self.local_stores([(G, vL16, sTmp[0], None)])
        a("s_mov_b32 exec_hi, -1")
        a.label(lf)
        self.stamp(7)

    def stage1_bf(self, DT, P, AF, steps, rdA):
        a = self.a
        R4 = range(4)
        a.c("bf16 partial sums go to the XCD group; their (max, sum) granules are the flag and leave after the sums have been written")
        a(f"v_lshrrev_b32 v14, 8, v{vL16}"); a(f"v_lshlrev_b32 v14, 16, v14"); a(f"v_and_b32 v15, 0xf0, v{vL16}"); a(f"v_add_u32 v14, v14, v15")
        a(f"s_lshl_b32 s{sTmp[0]}, s{sXG}, 19"); a(f"s_lshl_b32 s{sTmp[1]}, s{sGA}, 18"); a(f"s_add_u32 s{sTmp[0]}, s{sTmp[0]}, s{sTmp[1]}")
        a(f"s_lshl_b32 s{sTmp[1]}, s{sW}, 14"); a(f"s_add_u32 s{sTmp[0]}, s{sTmp[0]}, s{sTmp[1]}")
        a(f"s_and_b32 s{sTmp[2]}, s{sS}, 15"); a(f"s_lshl_b32 s{sTmp[1]}, s{sTmp[2]}, 8"); a(f"s_add_u32 s{sTmp[0]}, s{sTmp[0]}, s{sTmp[1]}")
        a(f"s_add_u32 s{sTmp[0]}, s{sTmp[0]}, {O_C1}")
        a(f"s_lshl_b32 s{sTmp[3]}, s{sXG}, 14"); a(f"s_lshl_b32 s{sTmp[1]}, s{sGA}, 13"); a(f"s_add_u32 s{sTmp[3]}, s{sTmp[3]}, s{sTmp[1]}")
        a(f"s_lshl_b32 s{sTmp[1]}, s{sW}, 9"); a(f"s_add_u32 s{sTmp[3]}, s{sTmp[3]}, s{sTmp[1]}")
        a(f"s_lshl_b32 s{sTmp[1]}, s{sTmp[2]}, 5"); a(f"s_add_u32 s{sTmp[3]}, s{sTmp[3]}, s{sTmp[1]}")
        a(f"s_add_u32 s{sTmp[3]}, s{sTmp[3]}, {O_ML1}")
        a(f"v_bfe_u32 v15, v{vL16}, 6, 2"); a(f"v_lshlrev_b32 v15, 11, v15")
        a(f"v_bfe_u32 v34, v{vL16}, 8, 1"); a(f"v_lshl_add_u32 v15, v34, 4, v15")
        a(f"s_mov_b32 vcc_lo, 0xffff0000"); a("s_mov_b32 vcc_hi, 0")
        a(f"v_cndmask_b32 v34, v32, v33, vcc")
        mlops = [f"v_mov_b32_dpp v32, v34 quad_perm:[0,0,0,0] {DPPALL}", f"v_mov_b32_dpp v33, v34 quad_perm:[1,1,1,1] {DPPALL}",
                 f"v_mov_b32_dpp v35, v34 quad_perm:[3,3,3,3] {DPPALL}", f"v_mov_b32_dpp v34, v34 quad_perm:[2,2,2,2] {DPPALL}"]
        def pack(wp):
            D0, E0 = DT + 8*wp, DT + 8*wp + 4
            a(f"v_cvt_pk_bf16_f32 v{D0}, v{D0}, v{D0+1}"); a(f"v_cvt_pk_bf16_f32 v{D0+1}, v{D0+2}, v{D0+3}")
            a(f"v_cvt_pk_bf16_f32 v{D0+2}, v{E0}, v{E0+1}"); a(f"v_cvt_pk_bf16_f32 v{D0+3}, v{E0+2}, v{E0+3}")
        def item(wp):
            def pre(): a(f"s_add_u32 s{sTmp[1]}, s{sTmp[0]}, {wp*4096}")
            return (DT+8*wp, 14, sTmp[1], pre)
        for k in range(16):
            t, u = steps[k]; b = AF + 4 * (k % 4)
            rem = min(3, 15 - k)
            a(f"s_waitcnt lgkmcnt({2*rem})")
            c = "0" if u == 0 else vr(DT+4*t, 4)
            a(f"v_mfma_f32_16x16x32_bf16 {vr(DT+4*t,4)}, {vr(P+4*u,4)}, {vr(b,4)}, {c}")
            if k + 4 < 16: rdA(k + 4)
            if k == 0:
                for x_ in mlops: a(x_)
            if k == 2: self.tag([32, 33, 34, 35])
            if k in (7, 11, 15):
                pack((k - 7) // 4)
                if self.opt2: self.local_stores([item((k - 7) // 4)])
        pack(3)
        self.stamp(19)
        if self.opt2: self.local_stores([item(3)])
        else: self.local_stores([item(wp) for wp in range(4)])
        G, MM, LL = 16, 48, 52
        a(f"v_bfe_u32 v14, v{vL16}, 4, 2"); a(f"v_lshlrev_b32 v14, 2, v14"); a(f"v_lshrrev_b32 v36, 8, v{vL16}"); a(f"v_add_u32 v14, v14, v36")
        a(f"v_lshlrev_b32 v14, 5, v14")
        a(f"s_lshl_b32 s{sTmp[0]}, s{sXG}, 5"); a(f"s_add_u32 s{sTmp[0]}, s{sTmp[0]}, s{sI}")
        a(f"s_lshl_b32 s{sTmp[2]}, s{sTmp[0]}, 9"); a(f"s_add_u32 s{sTmp[2]}, s{sTmp[2]}, {O_ML1}")
        a("s_waitcnt vmcnt(0)")
        def pre_ml(): a("s_mov_b32 exec_lo, 0x11111111"); a("s_mov_b32 exec_hi, 0")
        self.local_stores([(32, 15, sTmp[3], pre_ml)])
        self.exec_all()
        self.stamp(5)
        def issML():
            a(f"buffer_load_dwordx4 {vr(MM,4)}, v14, {W}, s{sTmp[2]} offen sc1")
            a(f"buffer_load_dwordx4 {vr(LL,4)}, v14, {W}, s{sTmp[2]} offen offset:16 sc1")
        self.poll(issML, [MM, LL], site='ml1')
        self.stamp(20)
        for i in range(4):
            a(f"buffer_load_dwordx4 {vr(G+4*i,4)}, v{vL16}, {W}, s{sC1} offen offset:{i*1024} sc1")
        Mx, wv, den, t1 = 56, 60, 64, 68
        for r in R4: a(f"v_max_f32_dpp v{Mx+r}, v{MM+r}, v{MM+r} {self.X1} {DPPALL}")
        self.dpp_steps([Mx+r for r in R4], "v_max_f32", [self.X2])
        for sw in ("v_permlane16_swap_b32", "v_permlane32_swap_b32"):
            for r in R4: a(f"v_mov_b32 v{t1+r}, v{Mx+r}")
            for r in R4: a(f"{sw} v{Mx+r}, v{t1+r}")
            for r in R4: a(f"v_max_f32 v{Mx+r}, v{Mx+r}, v{t1+r}")
        for r in R4: a(f"v_sub_f32 v{wv+r}, v{MM+r}, v{Mx+r}")
        for r in R4: a(f"v_exp_f32 v{wv+r}, v{wv+r}")
        for r in R4: a(f"v_mul_f32 v{den+r}, v{wv+r}, v{LL+r}")
        self.dpp_steps([den+r for r in R4], "v_add_f32", [self.X1, self.X2])
        for sw in ("v_permlane16_swap_b32", "v_permlane32_swap_b32"):
            for r in R4: a(f"v_mov_b32 v{t1+r}, v{den+r}")
            for r in R4: a(f"{sw} v{den+r}, v{t1+r}")
            for r in R4: a(f"v_add_f32 v{den+r}, v{den+r}, v{t1+r}")
        self.dwait(0, 4, 'sw1')
        self.stamp(6)
        self.tu()
        self.burst('A1')
        accA, accB, un = 48, 52, 32
        for i in range(4):
            g0 = G + 4*i
            for q in range(4):
                a(f"v_lshlrev_b32 v{un+2*q}, 16, v{g0+q}"); a(f"v_and_b32 v{un+2*q+1}, 0xffff0000, v{g0+q}")
            for q in range(8):
                acc = (accA if q < 4 else accB) + (q & 3)
                op = "v_mul_f32_dpp" if i == 0 else "v_fmac_f32_dpp"
                a(f"{op} v{acc}, v{wv+(q&3)}, v{un+q} row_newbcast:{i} {DPPALL}")
        for r in R4: a(f"v_permlane32_swap_b32 v{accA+r}, v{accB+r}")
        for r in R4: a(f"v_add_f32 v{accA+r}, v{accA+r}, v{accB+r}")
        for r in R4: a(f"v_mov_b32 v{t1+r}, v{accA+r}")
        for r in R4: a(f"v_permlane16_swap_b32 v{accA+r}, v{t1+r}")
        for r in R4: a(f"v_add_f32 v{accA+r}, v{accA+r}, v{t1+r}")

    def check_inline(self, regs, ok_label):
        a = self.a
        acc, acc2 = vT0, vT0 + 1
        dw = [g + i for g in regs for i in range(4)]
        for k, r in enumerate(dw): a(f"v_xor_b32 v{r}, s{sT[k % 4]}, v{r}")
        a(f"v_or3_b32 v{acc}, v{dw[0]}, v{dw[1]}, v{dw[2]}")
        a(f"v_or3_b32 v{acc2}, v{dw[3]}, v{dw[4]}, v{dw[5]}")
        k = 6; tog = 0
        while k < len(dw):
            tgt = acc if tog == 0 else acc2
            a(f"v_or3_b32 v{tgt}, v{tgt}, v{dw[k]}, v{dw[k+1]}"); k += 2; tog ^= 1
        a(f"v_or_b32 v{acc}, v{acc}, v{acc2}")
        a(f"v_and_b32 v{acc}, s{sFF}, v{acc}")
        a(f"v_cmp_ne_u32 vcc, 0, v{acc}")
        a(f"s_cbranch_vccz {ok_label}")

    def row_slot_addr(self):
        a = self.a
        a(f"s_lshl_b32 s{sTmp[0]}, s{sH}, 3"); a(f"s_add_u32 s{sTmp[0]}, s{sTmp[0]}, s{sJ}"); a(f"s_lshl_b32 s{sTmp[0]}, s{sTmp[0]}, 10")
        a(f"s_add_u32 s{sTmp[0]}, s{sTmp[0]}, {O_ROW}")

    def bmiddle(self):
        a = self.a
        a.c("==== B layer: scores of this wave's 256 keys from the register-resident K, softmax with the true maximum, P @ V ====")
        k = self.kblk
        if self.mode == "co":
            l0 = a.newlabel("kw"); l1 = a.newlabel("kw")
            a.label(l0)
            a(f"s_cmp_ge_u32 s{sPos}, {self.KEND+self.keep}"); a(f"s_cbranch_scc1 {l1}")
            self.stream_call()
            a(f"s_waitcnt vmcnt({self.keep})")
            a(f"s_branch {l0}")
            a.label(l1)
            a(f"s_waitcnt vmcnt({self.keep})")
        self.stampval(24, sPos)
        self.stamp(16)
        if not self.vsplit or self.woqk: self.wo_setup(pWoB)
        Db = [16, 20, 24]; SB = 28; Tt = 14
        def redops(b):
            D = Db[b % 3]; S = SB + b
            return [f"v_mov_b32_dpp v{S}, v{D} quad_perm:[0,0,0,0] {DPPALL}",
                    f"v_mov_b32_dpp v{Tt}, v{D+2} quad_perm:[2,2,2,2] {DPPALL}",
                    f"v_add_f32_dpp v{S}, v{D+1}, v{S} quad_perm:[1,1,1,1] {DPPALL}",
                    f"v_add_f32_dpp v{Tt}, v{D+3}, v{Tt} quad_perm:[3,3,3,3] {DPPALL}",
                    f"v_add_f32 v{S}, v{S}, v{Tt}"]
        for b in range(16):
            D = Db[b % 3]
            ro = redops(b - 2) if b >= 2 else []
            for t in range(4):
                c = "0" if t == 0 else vr(D, 4)
                a(f"v_mfma_f32_16x16x32_bf16 {vr(D,4)}, {vr(AT+4*t,4)}, {ar(16*b+4*t,4)}, {c}")
                if ro: a(ro[t])
                if self.vsplit and self.wolate:
                    if t == 2 and b < 4: self.vtr_one(4 + b)
                elif self.vsplit:
                    if self.woqk and t == 1 and b < 6: self.wo_one(b)
                    if t == 2 and (6 if self.woqk else 0) <= b < (10 if self.woqk else 4): self.vtr_one(4 + b - (6 if self.woqk else 0))
                else:
                    if t == 1 and b < 8: self.pf_guard(lambda: self.vtr_one(b))
                    if t == 2 and 8 <= b < 14: self.pf_guard(lambda: self.wo_one(b - 8))
            if ro: a(ro[4])
            if b in self.qkcalls: self.topup(self.dq)
        r14, r15 = redops(14), redops(15)
        r15 = [x.replace(f"v{Tt}", "v15") for x in r15]
        for x14, x15 in zip(r14, r15):
            a(x14); a(x15)
        self.stamp(3)
        m, m2 = 14, 15
        a(f"v_max3_f32 v{m}, v{SB}, v{SB+1}, v{SB+2}"); a(f"v_max3_f32 v{m2}, v{SB+3}, v{SB+4}, v{SB+5}")
        a(f"v_max3_f32 v{m}, v{m}, v{SB+6}, v{SB+7}"); a(f"v_max3_f32 v{m2}, v{m2}, v{SB+8}, v{SB+9}")
        a(f"v_max3_f32 v{m}, v{m}, v{SB+10}, v{SB+11}"); a(f"v_max3_f32 v{m2}, v{m2}, v{SB+12}, v{SB+13}")
        a(f"v_max3_f32 v{m}, v{m}, v{SB+14}, v{SB+15}"); a(f"v_max_f32 v{m}, v{m}, v{m2}")
        self.dpp_steps([m], "v_max_f32", ["row_ror:4", "row_ror:8", "b15", "b31"])
        a(f"v_readlane_b32 s{sA}, v{m}, 63")
        a(f"v_mov_b32 v{m2}, s{sSc}")
        a(f"v_mul_f32 v{m}, s{sA}, v{m2}")
        a(f"v_readfirstlane_b32 s{sA}, v{m}")
        for q in range(16): a(f"v_fma_f32 v{SB+q}, v{SB+q}, s{sSc}, -v{m}")
        for q in range(16):
            a(f"v_exp_f32 v{SB+q}, v{SB+q}")
            if self.wolate and q % 2 == 1 and q // 2 < 6: self.wo_one(q // 2)
        l, l2 = 14, 15
        a(f"v_add_f32 v{l}, v{SB}, v{SB+1}"); a(f"v_add_f32 v{l2}, v{SB+2}, v{SB+3}")
        for q in range(4, 16, 2):
            a(f"v_add_f32 v{l}, v{l}, v{SB+q}"); a(f"v_add_f32 v{l2}, v{l2}, v{SB+q+1}")
        a(f"v_add_f32 v{l}, v{l}, v{l2}")
        pk = [f"v_cvt_pk_bf16_f32 v{SB+q}, v{SB+q}, v{SB+q}" for q in range(16)]
        red = [f"v_add_f32_dpp v{l}, v{l}, v{l} row_ror:4 {DPPALL}", f"v_add_f32_dpp v{l}, v{l}, v{l} row_ror:8 {DPPALL}",
               f"v_add_f32_dpp v{l}, v{l}, v{l} row_bcast:15 row_mask:0xa bank_mask:0xf", f"v_add_f32_dpp v{l}, v{l}, v{l} row_bcast:31 row_mask:0xc bank_mask:0xf"]
        for i in range(4):
            for x_ in pk[4*i:4*i+2]: a(x_)
            a(red[i])
            for x_ in pk[4*i+2:4*i+4]: a(x_)
        a(f"v_readlane_b32 s{sB_}, v{l}, 63")
        self.stamp(4)
        if self.mode == "co":
            self.drain(self.keep)
            a("s_waitcnt vmcnt(16)")
        Ab, Do = 44, 52
        a(f"s_lshl_b32 s{sTmp[0]}, s{sW}, 14"); a(f"v_add_u32 v15, s{sTmp[0]}, v{vL16}")
        if L_VL: a(f"v_add_u32 v15, {L_VL}, v15")
        if self.smf:
            self.pv_smf(SB, Ab, Do)
        else:
            self.pv_dense(SB, Ab, Do)
        self.row_slot_addr()
        a(f"v_writelane_b32 v{Do}, s{sA}, 32"); a(f"v_writelane_b32 v{Do+1}, s{sB_}, 32")
        self.red_write(Do)
        a("s_waitcnt lgkmcnt(0)"); a("s_barrier")
        self.stamp(5)
        lf = a.newlabel("bfin")
        a(f"s_cmp_lg_u32 s{sW}, 0"); a(f"s_cbranch_scc1 {lf}")
        G = 16; MLr = 32
        a(f"v_mov_b32 v14, {L_RED+512}")
        for w in range(4): a(f"ds_read_b64 {vr(MLr+2*w,2)}, v14 offset:{w*RSTR}")
        self.red_final_read(G)
        a("s_waitcnt lgkmcnt(4)")
        M = 40
        a(f"v_max3_f32 v{M}, v{MLr}, v{MLr+2}, v{MLr+4}"); a(f"v_max_f32 v{M}, v{M}, v{MLr+6}")
        for w in range(4): a(f"v_sub_f32 v{MLr+2*w}, v{MLr+2*w}, v{M}")
        for w in range(4): a(f"v_exp_f32 v{MLr+2*w}, v{MLr+2*w}")
        a(f"v_readfirstlane_b32 s{sA}, v{M}")
        a("s_waitcnt lgkmcnt(0)")
        for r in range(4): a(f"v_mul_f32 v{G+r}, v{MLr}, v{G+r}")
        for w in range(1, 4):
            for r in range(4): a(f"v_fmac_f32 v{G+r}, v{MLr+2*w}, v{G+4*w+r}")
        a(f"v_writelane_b32 v{G}, s{sA}, 32")
        self.tag([G, G+1, G+2, G+3])
        a("s_mov_b32 exec_hi, 1")
        self.local_stores([(G, vL16, sTmp[0], None)])
        a("s_mov_b32 exec_hi, -1")
        a.label(lf)
        self.stamp(7)

    def pv_dense(self, SB, Ab, Do):
        a = self.a
        LB = [16, 20, 24, 56]
        order = [(b, u) for b in range(10) for u in range(4)] + [(b, u) for b in range(10, 14) for u in range(4)] + [(b, u) for b in (14, 15) for u in range(4)]
        def build(kk):
            b, u = order[kk]; A = Ab + 4 * (kk % 2)
            for r in range(4):
                a(f"v_and_b32_dpp v{A+r}, v{SB+b}, v{vM[r]} row_newbcast:{4*u} {DPPALL}")
        def bop(kk):
            b, u = order[kk]
            if b < 10: return vr(VRES+16*b+4*u, 4)
            if b < 14: return vr(LB[u], 4)
            return vr(self.vtr_reg(b, u), 4)
        def ldsrd(b, u):
            a(f"ds_read_b128 {vr(LB[u],4)}, v15 offset:{((b-10)*4+u)*1024}")
        build(0); build(1)
        for kk in range(len(order)):
            b, u = order[kk]
            if (b, u) == (8, 0):
                self.stamp(17)
                a("s_waitcnt vmcnt(0)")
                self.stamp(18)
                for uu in range(4): ldsrd(10, uu)
            if 10 <= b < 14: a(f"s_waitcnt lgkmcnt(3)" if not (b == 13 and u > 0) else f"s_waitcnt lgkmcnt({3-u})")
            A = Ab + 4 * (kk % 2)
            c = "0" if kk == 0 else vr(Do, 4)
            a(f"v_mfma_f32_16x16x32_bf16 {vr(Do,4)}, {vr(A,4)}, {bop(kk)}, {c}")
            if 10 <= b < 13: ldsrd(b + 1, u)
            if kk + 2 < len(order): build(kk + 2)

    def pv_smf(self, SB, Ab, Do):
        a = self.a
        N0, N1, IDX = 56, 57, 58
        n = 14
        a(f"v_bfe_u32 v{n}, v{vL16}, 4, 4")
        a(f"v_and_b32 v{IDX}, 3, v{n}"); a(f"v_mul_u32_u24 v{IDX}, 0x1111, v{IDX}")
        a(f"v_lshrrev_b32 v{n}, 2, v{n}"); a(f"v_mov_b32 v59, 0xffff")
        a(f"v_cmp_eq_u32 vcc, 0, v{n}"); a(f"v_cndmask_b32 v{N0}, 0, v59, vcc")
        a(f"v_cmp_eq_u32 vcc, 1, v{n}"); a(f"v_cndmask_b32 v{N1}, 0, v59, vcc")
        for r in range(4): a(f"v_mov_b32 v{Do+r}, 0")
        order = [(b, s_) for b in range(16) for s_ in range(2)]
        LB = [16, 28]
        def build(kk):
            b, s_ = order[kk]; A = Ab + 4 * (kk % 2)
            a(f"v_and_b32_dpp v{A}, v{SB+b}, v{N0} row_newbcast:{8*s_} {DPPALL}")
            a(f"v_and_b32_dpp v{A+1}, v{SB+b}, v{N1} row_newbcast:{8*s_} {DPPALL}")
            a(f"v_and_b32_dpp v{A+2}, v{SB+b}, v{N0} row_newbcast:{8*s_+4} {DPPALL}")
            a(f"v_and_b32_dpp v{A+3}, v{SB+b}, v{N1} row_newbcast:{8*s_+4} {DPPALL}")
        def bop(kk):
            b, s_ = order[kk]
            if b < 10: return vr(VRES+16*b+8*s_, 8)
            if b < 14: return vr(LB[s_], 8)
            return vr(self.vtr_reg(b, 2*s_), 8)
        def ldsrd(b, s_):
            for hf in range(2):
                a(f"ds_read_b128 {vr(LB[s_]+4*hf,4)}, v15 offset:{((b-10)*4+2*s_+hf)*1024}")
        build(0); build(1)
        for kk in range(len(order)):
            b, s_ = order[kk]
            if (b, s_) == (8, 0):
                self.stamp(17)
                if self.wolate:
                    l0 = a.newlabel("pw"); l1 = a.newlabel("pw")
                    a(f"s_cmp_ge_u32 s{sL}, 2"); a(f"s_cbranch_scc1 {l0}")
                    a("s_waitcnt vmcnt(0)"); a(f"s_branch {l1}")
                    a.label(l0)
                    a("s_waitcnt vmcnt(6)")
                    a.label(l1)
                else:
                    a("s_waitcnt vmcnt(0)")
                self.stamp(18)
                ldsrd(10, 0); ldsrd(10, 1)
            if 10 <= b < 14: a("s_waitcnt lgkmcnt(2)" if not (b == 13 and s_ == 1) else "s_waitcnt lgkmcnt(0)")
            A = Ab + 4 * (kk % 2)
            a(f"v_smfmac_f32_16x16x64_bf16 {vr(Do,4)}, {vr(A,4)}, {bop(kk)}, v{IDX}")
            if 10 <= b < 13: ldsrd(b + 1, s_)
            if kk + 2 < len(order): build(kk + 2)

    def opart(self):
        a = self.a
        a.c("==== O part: combine the 8 partial results of the head, @ W_o slice, column hand-off, residual update ====")
        G, ML = 16, 20
        a(f"v_lshrrev_b32 v14, 7, v{vL16}"); a(f"v_lshlrev_b32 v15, 10, v14")
        a(f"v_and_b32 v14, 0x70, v{vL16}"); a(f"v_add_u32 v14, v15, v14")
        a(f"s_lshl_b32 s{sTmp[0]}, s{sH}, 13"); a(f"s_add_u32 s{sTmp[0]}, s{sTmp[0]}, {O_ROW}")
        a(f"s_lshl_b32 s{sTmp[1]}, s{sW}, 7"); a(f"s_add_u32 s{sTmp[1]}, s{sTmp[1]}, s{sTmp[0]}")
        N0, N1, IDX = 60, 61, 62
        if self.opt1:
            a(f"v_lshrrev_b32 v59, 8, v{vL16}"); a(f"v_and_b32 v58, 1, v59"); a(f"v_lshrrev_b32 v59, 1, v59"); a(f"v_lshl_add_u32 v59, v58, 2, v59")
            a(f"v_mul_u32_u24 v59, 160, v59")
            self.smf_consts(N0, N1, IDX, 57)
        else:
            a(f"v_lshrrev_b32 v59, 8, v{vL16}"); a(f"v_mul_u32_u24 v59, 160, v59")
        a(f"v_and_b32 v58, 0xf0, v{vL16}"); a(f"v_add_u32 v59, v59, v58")
        a(f"s_mul_i32 s{sTmp[2]}, s{sW}, {WOSTR}"); a(f"s_add_u32 s{sTmp[2]}, s{sTmp[2]}, {L_R0}"); a(f"v_add_u32 v59, s{sTmp[2]}, v59")
        def coladdr():
            t = 63 if self.opt1 else 14
            u = 58 if self.opt1 else 15
            a(f"v_lshrrev_b32 v{t}, 4, v{vL16}"); a(f"v_mul_u32_u24 v{u}, 13108, v{t}"); a(f"v_lshrrev_b32 v{u}, 16, v{u}")
            a(f"v_mul_u32_u24 v{u-1 if self.opt1 else 24}, 5, v{u}"); a(f"v_sub_u32 v{t}, v{t}, v{u-1 if self.opt1 else 24}"); a(f"v_lshlrev_b32 v{t}, 4, v{t}"); a(f"v_lshl_add_u32 v{t}, v{u}, 7, v{t}")
            a(f"s_lshl_b32 s{sTmp[4]}, s{sJ}, 5"); a(f"s_add_u32 s{sTmp[4]}, s{sTmp[4]}, s{sH}"); a(f"s_lshl_b32 s{sTmp[4]}, s{sTmp[4]}, 9")
            a(f"s_add_u32 s{sTmp[4]}, s{sTmp[4]}, s{sCol}")
            return t
        if self.opt1: tcol = coladdr()
        def iss():
            a(f"buffer_load_dwordx4 {vr(ML,4)}, v15, {W}, s{sTmp[0]} offen offset:512 sc1")
            a(f"buffer_load_dwordx4 {vr(G,4)}, v14, {W}, s{sTmp[1]} offen sc1")
        self.poll(iss, [ML, G], site='row')
        self.stamp(8)
        self.tu()
        self.burst('O0')
        WB = 24
        for i in range(8):
            off = ((i >> 1) * 8 + (i & 1) * 2) * 160 if self.opt1 else i * 640
            a(f"ds_read_b128 {vr(WB+4*i,4)}, v59 offset:{off}")
        if self.pfnew and not (self.opt1 and self.latepf): self.next_w()
        self.combine8(G, ML, 56)
        Xp = 14
        a(f"v_cvt_pk_bf16_f32 v{Xp}, v{G}, v{G}")
        D, Ab = 56, 16
        a("s_waitcnt lgkmcnt(0)")
        if self.opt1:
            self.pv_gemv_smf(Xp, 4, lambda i: vr(WB+8*i, 8), D, Ab, N0, N1, IDX)
        else:
            self.pv_gemv(Xp, 8, lambda i: vr(WB+4*i, 4), D, Ab)
        self.red_write(D)
        if self.opt1:
            if self.pfnew and self.latepf: self.next_w()
        else:
            tcol = coladdr()
        self.tu()
        a("s_waitcnt lgkmcnt(0)"); a("s_barrier")
        lf = a.newlabel("ofin")
        a(f"s_cmp_lg_u32 s{sW}, 0"); a(f"s_cbranch_scc1 {lf}")
        self.red_final_read(G)
        a("s_waitcnt lgkmcnt(0)")
        self.sum4(G); self.tag([G, G+1, G+2, G+3])
        self.exec_set(0xfffff, 0)
        a(f"buffer_store_dwordx4 {vr(G,4)}, v{tcol}, {W}, s{sTmp[4]} offen sc1")
        self.exec_all()
        a.label(lf)
        self.stamp(9)
        if not self.pfnew: self.next_w()
        if self.skipfin:
            lk = a.newlabel("keep")
            a(f"s_cmp_lg_u32 s{sL}, {(self.stop or 4) - 1}"); a(f"s_cbranch_scc1 {lk}")
            a(f"s_cmp_lg_u32 s{sH}, 0"); a("s_cbranch_scc1 L_fin2")
            a.label(lk)
        if self.vsplit and not self.woqk:
            lb = a.newlabel("nowo")
            a(f"s_bitcmp1_b32 s{sL}, 0"); a(f"s_cbranch_scc1 {lb}")
            self.load_wo(pWoB)
            a.label(lb)
        a(f"v_lshrrev_b32 v14, 7, v{vL16}"); a(f"v_lshlrev_b32 v14, 9, v14")
        a(f"v_and_b32 v15, 0x70, v{vL16}"); a(f"v_add_u32 v14, v14, v15")
        a(f"s_lshl_b32 s{sTmp[0]}, s{sJ}, 14"); a(f"s_lshl_b32 s{sTmp[1]}, s{sW}, 7"); a(f"s_add_u32 s{sTmp[0]}, s{sTmp[0]}, s{sTmp[1]}")
        a(f"s_add_u32 s{sTmp[0]}, s{sTmp[0]}, s{sCol}")
        for i in range(1, 4): a(f"s_add_u32 s{sTmp[i]}, s{sTmp[0]}, {i*4096}")
        if self.opt1: self.prep_q()
        if self.epi:
            self.srd(SRD_B, pOut, 1280)
            a(f"v_lshrrev_b32 v40, 4, v{vL16}"); a(f"v_and_b32 v41, 15, v40"); a(f"v_lshrrev_b32 v40, 4, v40")
            a(f"v_lshl_add_u32 v40, v41, 2, v40")
            a(f"s_mul_i32 s{sA}, s{sJ}, 80"); a(f"s_mul_i32 s{sB_}, s{sW}, 20"); a(f"s_add_u32 s{sA}, s{sA}, s{sB_}")
            a(f"v_add_u32 v40, s{sA}, v40"); a(f"v_lshlrev_b32 v40, 1, v40")
        def issc():
            for i in range(4):
                a(f"buffer_load_dwordx4 {vr(G+4*i,4)}, v14, {W}, s{sTmp[i]} offen sc1")
        self.poll(issc, [G, G+4, G+8, G+12], execmask=(0x1f1f1f1f, 0x1f1f1f1f), site='col')
        self.stampval(28, sSpin); self.stampval(29, sPos)
        self.stamp(10)
        self.tu()
        self.burst('Q0')
        self.sum4(G)
        for r in range(4): a(f"v_add_f32_dpp v{G+r}, v{G+r}, v{G+r} row_ror:8 {DPPALL}")
        self.treduce([G, G+1, G+2, G+3])
        a(f"v_add_f32 v{G}, v{G}, v{vX}")
        a(f"v_cndmask_b32 v{vX}, 0, v{G}, s[{sM5}:{sM5+1}]")

    def second_w(self, lb=None):
        a = self.a
        lb = lb or a.newlabel("nouk")
        a(f"s_bitcmp1_b32 s{sL}, 0"); a(f"s_cbranch_scc1 {lb}")
        self.load_wuk()
        if self.vsplit:
            lc = a.newlabel("vtj")
            a(f"s_branch {lc}")
            a.label(lb)
            for k in range(4): self.vtr_one(k)
            a.label(lc)
        else:
            a.label(lb)

    def next_w(self):
        a = self.a
        lnp = a.newlabel("nopf"); lb = a.newlabel("nouk")
        a(f"s_cmp_eq_u32 s{sL}, 3"); a(f"s_cbranch_scc1 {lnp}")
        a(f"s_add_u32 s{sL}, s{sL}, 1")
        self.load_wq()
        if not self.split2: self.second_w(lb)
        a(f"s_sub_u32 s{sL}, s{sL}, 1")
        a.label(lnp)

    def epilogue(self):
        a = self.a
        a.c("==== epilogue: the workgroups of head 0 write the output; workgroup 0 advances the epoch word ====")
        le = a.newlabel("fin")
        a(f"s_cmp_lg_u32 s{sH}, 0"); a(f"s_cbranch_scc1 {le}")
        if not self.epi:
            self.srd(SRD_B, pOut, 1280)
            a(f"v_lshrrev_b32 v40, 4, v{vL16}"); a(f"v_and_b32 v15, 15, v40"); a(f"v_lshrrev_b32 v40, 4, v40")
            a(f"v_lshl_add_u32 v40, v15, 2, v40")
            a(f"s_mul_i32 s{sTmp[0]}, s{sJ}, 80"); a(f"s_mul_i32 s{sTmp[1]}, s{sW}, 20"); a(f"s_add_u32 s{sTmp[0]}, s{sTmp[0]}, s{sTmp[1]}")
            a(f"v_add_u32 v40, s{sTmp[0]}, v40"); a(f"v_lshlrev_b32 v40, 1, v40")
        a(f"v_cvt_pk_bf16_f32 v15, v{vX}, v{vX}")
        a(f"s_mov_b64 exec, s[{sM5}:{sM5+1}]")
        a(f"buffer_store_short v15, v40, s[{SRD_B}:{SRD_B+3}], 0 offen")
        self.exec_all()
        a(f"s_cmp_lg_u32 s2, 0"); a(f"s_cbranch_scc1 {le}")
        a(f"s_cmp_lg_u32 s{sW}, 0"); a(f"s_cbranch_scc1 {le}")
        a(f"v_mov_b32 v14, 0")
        a("s_mov_b64 exec, 1")
        a(f"buffer_store_dword v{vT}, v14, {W}, 0 offen sc1")
        self.exec_all()
        a.label(le)
        a.label("L_fin2")
        l2 = a.newlabel("noerr")
        a(f"s_cmp_eq_u32 s{sErr}, 0"); a(f"s_cbranch_scc1 {l2}")
        self.srd(SRD_B, sDbg, 256)
        a(f"v_mov_b32 v14, 0"); a(f"v_mov_b32 v15, 0xdead")
        a("s_mov_b64 exec, 1")
        a(f"buffer_store_dword v15, v14, s[{SRD_B}:{SRD_B+3}], 0 offen")
        self.exec_all()
        a.label(l2)

    def build(self):
        a = self.a
        self.prologue()
        a.label("L_layer")
        self.qpart()
        a(f"s_bitcmp1_b32 s{sL}, 0"); a(f"s_cbranch_scc1 L_bmid")
        self.amiddle()
        a(f"s_branch L_opart")
        a.label("L_bmid")
        self.bmiddle()
        a.label("L_opart")
        self.opart()
        self.stamp(11)
        for L_ in range(4): self.dbgstamp(f"end{L_}", L_)
        a(f"s_add_u32 s{sL}, s{sL}, 1"); a(f"s_xor_b32 s{sCol}, s{sCol}, 0x20000")
        nl = self.stop if self.stop else 4
        a(f"s_cmp_ge_u32 s{sL}, {nl}"); a("s_cbranch_scc1 L_done")
        self.next_tag()
        a("s_branch L_layer")
        a.label("L_done")
        self.epilogue()
        if self.stamps:
            a(f"s_mov_b32 s{sL}, 3")
            self.stamp(13)
        a("s_waitcnt vmcnt(0)")
        a.label("L_end")
        a("s_endpgm")
        self.dw_sub()
        self.stream()
        a.label("L_codeend")
        return fix(a.lines)

HEADER = open("interleave_layers__compressed_kv_cla__mha_block_cached__decode.s.ref").read().split("; Override launch")[0]

DOC = """; One persistent launch, one workgroup (4 waves, 512 registers each, 160 KiB LDS) per CU; workgroup b = (head h = b & 31, slice j = b >> 5).
; beside the first A layer.  Layer A uses the absorbed form (q @ w_uk^T against c_kv, context through w_uv afterwards).
; LayerNorm is applied after the projection (q = rstd * (x @ W - mean * colsum(W))).
; (derived from an epoch word in d_ws that the launch advances); consumers re-read until every tag matches and strip it.
; Registers: v0..v13 lane constants, v14..v95 working set (v60..v75 / v80..v95 hold V blocks 14 / 15 in B layers),
;            v96..v255 V blocks 0..9, a0..a255 K.   LDS: V blocks 10..13 | c_kv tile | staging, score and reduction buffers.
"""

def make(path, **kw):
    body = "\n".join(Gen(**kw).build())
    src = f"""{HEADER}; @launch grid=(256,1,1) block=(256,1,1) lds={LDS_BYTES}
.amdgcn_target "amdgcn-amd-amdhsa--gfx950"
.text
.globl {KNAME}
.p2align 8
.type {KNAME},@function
{DOC}{KNAME}:
{body}
.section .rodata,"a"
.p2align 6
.amdhsa_kernel {KNAME}
  .amdhsa_next_free_vgpr 512
  .amdhsa_next_free_sgpr 102
  .amdhsa_accum_offset 256
  .amdhsa_group_segment_fixed_size 0
  .amdhsa_kernarg_size 112
  .amdhsa_user_sgpr_count 2
  .amdhsa_user_sgpr_kernarg_segment_ptr 1
  .amdhsa_system_sgpr_workgroup_id_x 1
  .amdhsa_float_denorm_mode_32 3
.end_amdhsa_kernel
"""
    open(path, "w").write(src)

if __name__ == "__main__":
    import argparse
    ap = argparse.ArgumentParser()
    ap.add_argument("-o", default="k.s"); ap.add_argument("--opts", default="")
    x = ap.parse_args()
    kw = {}
    for o in filter(None, x.opts.split(";")):
        k_, v_ = o.split("="); kw[k_] = eval(v_)
    make(x.o, **kw)
```
